```python
import torch

def _softmax(x, axis=-1):
    return torch.softmax(x, dim=axis)

def _gelu(x):
    return torch.nn.functional.gelu(x, approximate='tanh')

def _silu(x):
    return torch.nn.functional.silu(x)

def _sigmoid(x):
    return torch.sigmoid(x)

def _layernorm(x, axis=-1, eps=1e-05):
    m = x.mean(dim=axis, keepdim=True)
    v = x.var(dim=axis, keepdim=True, unbiased=False)
    return (x - m) / torch.sqrt(v + eps)

def _scatter_add(tgt, idx, src, axis=0):
    return tgt.clone().index_add_(axis, idx, src)

def _segment_sum(src, seg, n):
    out = torch.zeros((n,) + src.shape[1:], dtype=src.dtype)
    return out.index_add_(0, seg, src)

def _pad(x, pw):
    flat = tuple((v for pair in reversed(pw) for v in pair))
    return torch.nn.functional.pad(x, flat)
kernel_name = 'adaLN_cond__ssm_conv_s4__dense_activation_silu__prompt'

def setup_inputs():

    _w = lambda a: (lambda t: t.to(torch.bfloat16) if t.is_floating_point() else t)(torch.as_tensor(a))

    def _A_setup():
        B, L, D, N = (1, 2048, 640, 192)
        A_re = -(lambda _x: torch.exp(torch.as_tensor(_x)))((lambda *s: torch.randn(*s, dtype=torch.bfloat16) * 3.2)(D, N))
        A_im = torch.pi * (lambda *s: torch.randn(*s, dtype=torch.bfloat16) * 0.05)(D, N)
        B_re = (lambda *s: torch.randn(*s, dtype=torch.bfloat16) * 0.1)(D, N)
        B_im = (lambda *s: torch.randn(*s, dtype=torch.bfloat16) * 0.1)(D, N)
        C_re = (lambda *s: torch.randn(*s, dtype=torch.bfloat16) * 0.1)(D, N)
        C_im = (lambda *s: torch.randn(*s, dtype=torch.bfloat16) * 0.1)(D, N)
        log_dt = (lambda *s: torch.randn(*s, dtype=torch.bfloat16) * 0.05)(D) * 0.5 - 4.0
        Dskip = (lambda *s: torch.randn(*s, dtype=torch.bfloat16) * 0.05)(D)
        return {'u': _w((lambda *s: torch.randn(*s, dtype=torch.bfloat16) * 0.05)(B, L, D)), 'A_re': _w(A_re), 'A_im': _w(A_im), 'B_re': _w(B_re), 'B_im': _w(B_im), 'C_re': _w(C_re), 'C_im': _w(C_im), 'log_dt': _w(log_dt), 'Dskip': _w(Dskip)}
    _A_in = _A_setup()

    def _B_setup():
        B, S, D, F = (1, 2048, 640, 1536)
        return {'x': _w((lambda *s: torch.randn(*s, dtype=torch.bfloat16) * 0.05)(B, S, D)), 'w1': _w((lambda *s: torch.randn(*s, dtype=torch.bfloat16) * 3.2)(D, F) * D ** (-0.5)), 'w2': _w((lambda *s: torch.randn(*s, dtype=torch.bfloat16) * 0.2)(F, D) * F ** (-0.5))}
    _B_in = _B_setup()
    return {'A_u': _A_in['u'], 'A_A_re': _A_in['A_re'], 'A_A_im': _A_in['A_im'], 'A_B_re': _A_in['B_re'], 'A_B_im': _A_in['B_im'], 'A_C_re': _A_in['C_re'], 'A_C_im': _A_in['C_im'], 'A_log_dt': _A_in['log_dt'], 'A_Dskip': _A_in['Dskip'], 'B_x': _B_in['x'], 'B_w1': _B_in['w1'], 'B_w2': _B_in['w2'], 'c': _w((lambda *s: torch.randn(*s, dtype=torch.bfloat16) * 0.2)(1, 640) * 8.0), 'w_mod': _w((lambda *s: torch.randn(*s, dtype=torch.bfloat16) * 0.2)(640, 6 * 640) * 640 ** (-0.5) * 8.0)}

def reference(A_u, A_A_re, A_A_im, A_B_re, A_B_im, A_C_re, A_C_im, A_log_dt, A_Dskip, B_x, B_w1, B_w2, c, w_mod):

    def _A_ref(u, A_re, A_im, B_re, B_im, C_re, C_im, log_dt, Dskip):
        Bsz, L, D = u.shape
        dt = torch.exp(log_dt)[:, None]
        A = A_re + 1j * A_im
        Bc = B_re + 1j * B_im
        Cc = C_re + 1j * C_im
        logdA = dt * A
        dB = dt * Bc
        l = (lambda x, dt: x.to(dt))(torch.arange(L), A_re.dtype)
        P = torch.exp(logdA[:, :, None] * l[None, None, :])
        K = torch.einsum('dn,dnl,dn->dl', Cc, P, dB).real
        L2 = 2 * L
        Kp = _pad(K, ((0, 0), (0, L)))
        up = (lambda x, *d: x.permute(*d))(u, 0, 2, 1)
        up = _pad(up, ((0, 0), (0, 0), (0, L)))
        Kf = (lambda x, axes=(-2, -1): torch.fft.rfft2(x.float(), dim=axes))(Kp[:, None, :], axes=(-2, -1))
        Uf = (lambda x, axes=(-2, -1): torch.fft.rfft2(x.float(), dim=axes))(up[:, :, None, :], axes=(-2, -1))
        Yf = Uf * Kf[None, :, :, :]
        y = (lambda x, s, axes=(-2, -1): torch.fft.irfft2(x, s=s, dim=axes).to(torch.bfloat16))(Yf, (1, L2), axes=(-2, -1))[:, :, 0, :L]
        y = (lambda x, *d: x.permute(*d))(y, 0, 2, 1) + u * Dskip[None, None, :]
        return y

    def _B_ref(x, w1, w2):
        h = torch.einsum('bsd,df->bsf', x, w1)
        h = _silu(h)
        out = torch.einsum('bsf,fd->bsd', h, w2)
        return out
    x = A_u
    mod = (_silu(c) @ w_mod).reshape(c.shape[0], 6, 1, -1)
    sa, ca, ga, sb, cb, gb = (mod[:, 0].clone(), mod[:, 1].clone(), mod[:, 2].clone(), mod[:, 3].clone(), mod[:, 4].clone(), mod[:, 5].clone())
    h = _layernorm(x, axis=-1) * (1 + ca) + sa
    x = x + ga * _A_ref(h, A_A_re, A_A_im, A_B_re, A_B_im, A_C_re, A_C_im, A_log_dt, A_Dskip)
    h = _layernorm(x, axis=-1) * (1 + cb) + sb
    x = x + gb * _B_ref(h, B_w1, B_w2)
    return x
```

```python
import sys
NEMPTY = int(sys.argv[1]) if len(sys.argv) > 1 else 0
OUT = sys.argv[2] if len(sys.argv) > 2 else 'naive.s'
hdr = open('adaLN_cond__ssm_conv_s4__dense_activation_silu__prompt.s.ref').read().split('; Override launch')[0]
kernels = []
def K(name, grid, body, block=256, lds=0, vgpr=64):
    kernels.append((name + '_kernel', grid, block, lds, vgpr, body))
MOD, ST1, ST2, KD, H, X1, H2, HID = 0, 0x10000, 0x20000, 0x100000, 0x400000, 0xA00000, 0x1000000, 0x1600000
def arg(i, s): return f"    s_load_dwordx2 s[{s}:{s+1}], s[0:1], {8*i}\n"
def guard(n): return f"    s_cmp_ge_u32 s2, {n}\n    s_cbranch_scc1 L_end_@\n"
GT = "    s_lshl_b32 s3, s2, 8\n    v_add_u32 v1, s3, v0\n"
def rbf(v, t):
    return f"    v_cvt_pk_bf16_f32 {v}, {v}, {v}\n    v_lshlrev_b32 {v}, 16, {v}\n"
def wsadd(s, off): return f"    s_add_u32 s{s}, s{s}, {off}\n    s_addc_u32 s{s+1}, s{s+1}, 0\n"
SILU = lambda v, t: f"""    v_mul_f32 {t}, 0xbfb8aa3b, {v}
    v_exp_f32 {t}, {t}
    s_nop 0
    v_add_f32 {t}, 1.0, {t}
    v_rcp_f32 {t}, {t}
    s_nop 0
    v_mul_f32 {v}, {v}, {t}
"""
K('n1', 15, guard(15) + arg(12, 4) + arg(13, 6) + arg(16, 8) + GT + f"""
    s_waitcnt lgkmcnt(0)
    v_lshlrev_b32 v2, 1, v1
    v_mov_b32 v3, 0
    v_mov_b32 v8, 0
    s_mov_b32 s10, 0
L_l_@:
    global_load_ushort v4, v8, s[4:5]
    global_load_ushort v5, v2, s[6:7]
    s_waitcnt vmcnt(0)
    v_lshlrev_b32 v4, 16, v4
    v_lshlrev_b32 v5, 16, v5
""" + SILU('v4', 'v6') + rbf('v4', 'v6') + f"""
    v_fmac_f32 v3, v4, v5
    v_add_u32 v2, 7680, v2
    v_add_u32 v8, 2, v8
    s_add_u32 s10, s10, 1
    s_cmp_lt_u32 s10, 640
    s_cbranch_scc1 L_l_@
""" + rbf('v3', 'v6') + f"""
    v_lshlrev_b32 v2, 2, v1
    global_store_dword v2, v3, s[8:9]
""")
def stats(name, src_is_u):
    ld = "global_load_ushort v4, v2, s[4:5]\n    s_waitcnt vmcnt(0)\n    v_lshlrev_b32 v4, 16, v4" if src_is_u else "global_load_dword v4, v2, s[4:5]\n    s_waitcnt vmcnt(0)"
    es = 2 if src_is_u else 4
    pre = (arg(0, 4) if src_is_u else arg(16, 4)) + arg(16, 8) + GT + "    s_waitcnt lgkmcnt(0)\n" + ("" if src_is_u else wsadd(4, X1)) + wsadd(8, ST1 if src_is_u else ST2)
    K(name, 8, guard(8) + pre + f"""
    v_mul_u32_u24 v7, {640*es}, v1
    v_mov_b32 v2, v7
    v_mov_b32 v3, 0
    s_mov_b32 s10, 0
L_a_@:
    {ld}
    v_add_f32 v3, v3, v4
    v_add_u32 v2, {es}, v2
    s_add_u32 s10, s10, 1
    s_cmp_lt_u32 s10, 640
    s_cbranch_scc1 L_a_@
    v_mul_f32 v3, 0x3acccccd, v3
    v_mov_b32 v2, v7
    v_mov_b32 v5, 0
    s_mov_b32 s10, 0
L_b_@:
    {ld}
    v_sub_f32 v4, v4, v3
    v_fmac_f32 v5, v4, v4
    v_add_u32 v2, {es}, v2
    s_add_u32 s10, s10, 1
    s_cmp_lt_u32 s10, 640
    s_cbranch_scc1 L_b_@
    v_mul_f32 v5, 0x3acccccd, v5
    v_add_f32 v5, 0x3727c5ac, v5
    v_rsq_f32 v4, v5
    v_lshlrev_b32 v2, 3, v1
    s_nop 0
    global_store_dword v2, v3, s[8:9]
    global_store_dword v2, v4, s[8:9] offset:4
""")
stats('n2', True)
K('n3', 641*3, guard(641*3) + arg(1,4)+arg(2,6)+arg(3,8)+arg(4,10)+arg(5,12)+arg(6,14)+arg(7,16)+arg(16,18) + f"""
    s_mul_hi_u32 s20, s2, 0x55555556      ; l'
    s_mul_i32 s21, s20, 3
    s_sub_u32 s21, s2, s21
    s_lshl_b32 s21, s21, 8
    v_add_u32 v1, s21, v0                 ; d
    v_min_u32 v1, 639, v1
    ; l value
    s_mov_b32 s22, s20
    s_cmp_le_u32 s20, 256
    s_cbranch_scc1 L_got_@
    s_sub_u32 s22, s20, 128
    s_lshl_b32 s22, s22, 1
    s_cmp_le_u32 s20, 384
    s_cbranch_scc1 L_got_@
    s_sub_u32 s22, s20, 256
    s_lshl_b32 s22, s22, 2
    s_cmp_le_u32 s20, 512
    s_cbranch_scc1 L_got_@
    s_sub_u32 s22, s20, 384
    s_lshl_b32 s22, s22, 3
L_got_@:
    v_cvt_f32_u32 v20, s22
    s_waitcnt lgkmcnt(0)
""" + wsadd(18, KD) + f"""
    v_lshlrev_b32 v2, 1, v1
    global_load_ushort v3, v2, s[16:17]
    s_waitcnt vmcnt(0)
    v_lshlrev_b32 v3, 16, v3
    v_mul_f32 v3, 0x3fb8aa3b, v3
    v_exp_f32 v3, v3
    s_nop 0
""" + rbf('v3', 'v6') + f"""
    v_mul_u32_u24 v2, 384, v1
    v_mov_b32 v21, 0
    s_mov_b32 s23, 0
L_l_@:
    global_load_ushort v4, v2, s[4:5]
    global_load_ushort v5, v2, s[6:7]
    global_load_ushort v6, v2, s[8:9]
    global_load_ushort v7, v2, s[10:11]
    global_load_ushort v8, v2, s[12:13]
    global_load_ushort v9, v2, s[14:15]
    s_waitcnt vmcnt(0)
    v_lshlrev_b32 v4, 16, v4
    v_lshlrev_b32 v5, 16, v5
    v_lshlrev_b32 v6, 16, v6
    v_lshlrev_b32 v7, 16, v7
    v_lshlrev_b32 v8, 16, v8
    v_lshlrev_b32 v9, 16, v9
    v_mul_f32 v4, v4, v3
    v_mul_f32 v5, v5, v3
    v_mul_f32 v4, v4, v20
    v_mul_f32 v5, v5, v20
    v_mul_f32 v4, 0x3fb8aa3b, v4
    v_mul_f32 v5, 0.15915494, v5
    v_exp_f32 v4, v4
    v_fract_f32 v5, v5
    v_cos_f32 v10, v5
    v_sin_f32 v11, v5
    ; CB
    v_mul_f32 v12, v8, v6
    v_fma_f32 v12, -v9, v7, v12
    v_mul_f32 v13, v8, v7
    v_fma_f32 v13, v9, v6, v13
    v_mul_f32 v12, v12, v10
    v_fma_f32 v12, -v13, v11, v12
    v_mul_f32 v12, v12, v4
    v_fmac_f32 v21, v12, v3
    v_add_u32 v2, 2, v2
    s_add_u32 s23, s23, 1
    s_cmp_lt_u32 s23, 192
    s_cbranch_scc1 L_l_@
    s_mul_i32 s24, s20, 2560
    v_lshlrev_b32 v2, 2, v1
    v_add_u32 v2, s24, v2
    global_store_dword v2, v21, s[18:19]
""")
TD = """    s_mul_hi_u32 s20, s2, 0x1999999a      ; t
    s_mul_i32 s21, s20, 10
    s_sub_u32 s21, s2, s21
    s_lshl_b32 s21, s21, 6
    v_add_u32 v1, s21, v0                 ; d
    s_mul_i32 s22, s20, 640
    v_add_u32 v2, s22, v1
"""
def modk(name, first):
    so, co = (0, 640*4) if first else (3*640*4, 4*640*4)
    K(name, 20480, guard(20480) + arg(0,4) + arg(16,6) + arg(16,8) + arg(16,10) + arg(16,12) + TD + "    s_waitcnt lgkmcnt(0)\n" + wsadd(8, ST1 if first else ST2) + wsadd(10, H if first else H2) + wsadd(12, X1) + f"""
    s_lshl_b32 s23, s20, 3
    s_load_dwordx2 s[24:25], s[8:9], s23
    v_lshlrev_b32 v3, 1, v2
    v_lshlrev_b32 v4, 2, v2
    v_lshlrev_b32 v5, 2, v1
    v_add_u32 v9, {co}, v5
    v_add_u32 v5, {so}, v5
""" + ("    global_load_ushort v6, v3, s[4:5]\n" if first else "    global_load_dword v6, v4, s[12:13]\n") + f"""
    global_load_dword v7, v5, s[6:7]
    global_load_dword v8, v9, s[6:7]
    s_waitcnt vmcnt(0) lgkmcnt(0)
""" + ("    v_lshlrev_b32 v6, 16, v6\n" if first else "") + f"""
    v_subrev_f32 v6, s24, v6
    v_mul_f32 v6, s25, v6
""" + rbf('v6','v0') + "    v_add_f32 v8, 1.0, v8\n" + rbf('v8','v0') + "    v_fma_f32 v6, v6, v8, v7\n" + rbf('v6','v0') + """
    global_store_dword v4, v6, s[10:11]
""", block=64)
modk('n4', True)
K('n5', 20480, guard(20480) + arg(0,4) + arg(16,6) + arg(16,8) + arg(16,10) + arg(16,12) + arg(8,14) + TD + "    s_waitcnt lgkmcnt(0)\n" + wsadd(8, KD) + wsadd(10, H) + wsadd(12, X1) + f"""
    v_lshlrev_b32 v3, 1, v2
    v_lshlrev_b32 v4, 2, v2
    v_lshlrev_b32 v5, 2, v1
    v_mov_b32 v10, v4
    v_mov_b32 v11, 0
    s_mov_b32 s23, 0
L_l_@:
    ; l' index of j=s23 : round to bf16 then map
    s_mov_b32 s24, s23
    s_cmp_le_u32 s23, 256
    s_cbranch_scc1 L_g_@
    s_mov_b32 s26, 1
    s_mov_b32 s27, 128
    s_cmp_lt_u32 s23, 512
    s_cbranch_scc1 L_h_@
    s_mov_b32 s26, 2
    s_mov_b32 s27, 256
    s_cmp_lt_u32 s23, 1024
    s_cbranch_scc1 L_h_@
    s_mov_b32 s26, 3
    s_mov_b32 s27, 384
L_h_@:
    s_lshr_b32 s28, s23, s26
    s_and_b32 s28, s28, 1
    s_sub_u32 s29, s26, 1
    s_lshl_b32 s29, 1, s29
    s_sub_u32 s29, s29, 1
    s_add_u32 s29, s29, s28
    s_add_u32 s29, s29, s23
    s_lshr_b32 s29, s29, s26
    s_add_u32 s24, s29, s27
L_g_@:
    s_mul_i32 s24, s24, 2560
    v_add_u32 v12, s24, v5
    global_load_dword v6, v12, s[8:9]
    global_load_dword v7, v10, s[10:11]
    s_waitcnt vmcnt(0)
    v_fmac_f32 v11, v6, v7
    v_subrev_u32 v10, 2560, v10
    s_add_u32 s23, s23, 1
    s_cmp_le_u32 s23, s20
    s_cbranch_scc1 L_l_@
    v_lshlrev_b32 v12, 1, v1
    v_add_u32 v13, {2*640*4}, v5
    global_load_ushort v6, v3, s[4:5]
    global_load_dword v7, v4, s[10:11]
    global_load_ushort v8, v12, s[14:15]
    global_load_dword v9, v13, s[6:7]
    s_waitcnt vmcnt(0)
    v_lshlrev_b32 v6, 16, v6
    v_lshlrev_b32 v8, 16, v8
    v_fmac_f32 v11, v7, v8
    v_fmac_f32 v6, v11, v9
""" + rbf('v6','v0') + """
    global_store_dword v4, v6, s[12:13]
""", block=64)
stats('n6', False)
modk('n7', False)
K('n8', 2048*6, guard(2048*6) + arg(10,4) + arg(16,6) + arg(16,8) + f"""
    s_mul_hi_u32 s20, s2, 0x2aaaaaab
    s_mul_i32 s21, s20, 6
    s_sub_u32 s21, s2, s21
    s_lshl_b32 s21, s21, 8
    v_add_u32 v1, s21, v0
    s_waitcnt lgkmcnt(0)
""" + wsadd(6, H2) + wsadd(8, HID) + f"""
    s_mul_i32 s22, s20, 2560
    v_lshlrev_b32 v2, 1, v1
    v_mov_b32 v3, 0
    s_mov_b32 s23, 0
L_l_@:
    s_load_dword s24, s[6:7], s22
    global_load_ushort v4, v2, s[4:5]
    s_waitcnt vmcnt(0) lgkmcnt(0)
    v_lshlrev_b32 v4, 16, v4
    v_fmac_f32 v3, s24, v4
    v_add_u32 v2, 3072, v2
    s_add_u32 s22, s22, 4
    s_add_u32 s23, s23, 1
    s_cmp_lt_u32 s23, 640
    s_cbranch_scc1 L_l_@
""" + SILU('v3', 'v6') + rbf('v3','v6') + f"""
    s_mul_i32 s22, s20, 6144
    v_lshlrev_b32 v2, 2, v1
    v_add_u32 v2, s22, v2
    global_store_dword v2, v3, s[8:9]
""")
K('n9', 20480, guard(20480) + arg(11,4) + arg(16,6) + arg(16,8) + arg(16,10) + arg(14,12) + TD + "    s_waitcnt lgkmcnt(0)\n" + wsadd(8, HID) + wsadd(10, X1) + f"""
    s_mul_i32 s22, s20, 6144
    v_lshlrev_b32 v4, 1, v1
    v_mov_b32 v3, 0
    s_mov_b32 s23, 0
L_l_@:
    s_load_dword s24, s[8:9], s22
    global_load_ushort v6, v4, s[4:5]
    s_waitcnt vmcnt(0) lgkmcnt(0)
    v_lshlrev_b32 v6, 16, v6
    v_fmac_f32 v3, s24, v6
    v_add_u32 v4, 1280, v4
    s_add_u32 s22, s22, 4
    s_add_u32 s23, s23, 1
    s_cmp_lt_u32 s23, 1536
    s_cbranch_scc1 L_l_@
    v_lshlrev_b32 v4, 2, v2
    v_lshlrev_b32 v5, 2, v1
    v_add_u32 v5, {5*640*4}, v5
    global_load_dword v6, v4, s[10:11]
    global_load_dword v7, v5, s[6:7]
    s_waitcnt vmcnt(0)
    v_fmac_f32 v6, v3, v7
    v_cvt_pk_bf16_f32 v6, v6, v6
    v_lshlrev_b32 v4, 1, v2
    global_store_short v4, v6, s[12:13]
""", block=64)
if NEMPTY: K('empty', 256, "")
s = hdr
for (n, g, b, l, v, body) in kernels:
    reps = NEMPTY if n == 'empty_kernel' else 1
    for _ in range(reps): s += f"; @launch kernel={n} grid=({g},1,1) block=({b},1,1) lds={l}\n"
s += '.amdgcn_target "amdgcn-amd-amdhsa--gfx950"\n.text\n'
for (n, g, b, l, v, body) in kernels:
    s += f".globl {n}\n.p2align 8\n.type {n},@function\n{n}:\n" + body.replace('@', n) + f"L_end_{n}:\n    s_endpgm\n"
s += '.section .rodata,"a"\n'
for (n, g, b, l, v, body) in kernels:
    s += f""".p2align 6
.amdhsa_kernel {n}
  .amdhsa_next_free_vgpr {v}
  .amdhsa_next_free_sgpr 64
  .amdhsa_accum_offset {v}
  .amdhsa_group_segment_fixed_size 0
  .amdhsa_kernarg_size 136
  .amdhsa_user_sgpr_count 2
  .amdhsa_user_sgpr_kernarg_segment_ptr 1
  .amdhsa_system_sgpr_workgroup_id_x 1
.end_amdhsa_kernel
"""
open(OUT, 'w').write(s)
```

```python
import re

REG_RE = re.compile(r'(?<![\w.])([vas])(?:(\d+)|\[(\d+):(\d+)\])(?![\w])')
TRANS = ('v_exp_f32', 'v_log_f32', 'v_rcp_f32', 'v_rsq_f32', 'v_sqrt_f32', 'v_sin_f32', 'v_cos_f32', 'v_rcp_iflag_f32')

def regs_of(tok):
    out = []
    for m in REG_RE.finditer(tok):
        k = m.group(1)
        if m.group(2) is not None: out.append((k, int(m.group(2))))
        else: out += [(k, i) for i in range(int(m.group(3)), int(m.group(4)) + 1)]
    if re.search(r'\bvcc\b', tok): out += [('s', 'vcc')]
    if re.search(r'\bexec\b', tok): out += [('s', 'exec')]
    if re.search(r'\bm0\b', tok): out += [('s', 'm0')]
    return out

class Ins:
    def __init__(self, text):
        self.text = text
        t = text.split(';')[0].strip()
        self.label = t.endswith(':')
        self.mn = '' if self.label or not t else t.split()[0]
        rest = t[len(self.mn):].strip() if self.mn else ''
        ops, depth, cur = [], 0, ''
        for ch in rest:
            if ch in '[(': depth += 1
            if ch in '])': depth -= 1
            if ch == ',' and depth == 0: ops.append(cur.strip()); cur = ''
            else: cur += ch
        if cur.strip(): ops.append(cur.strip())
        self.mods = ''
        if ops:
            last = ops[-1]
            m = re.match(r'^(\S+(?:\([^)]*\))?)\s*(.*)$', last)
            if not self.mn.startswith('s_waitcnt'):
                ops[-1], self.mods = m.group(1), m.group(2)
        self.ops = ops
        mn = self.mn
        base = re.sub(r'_(e32|e64|dpp|sdwa)$', '', mn)
        self.base = base
        self.cls = 'other'; self.w = []; self.r = []
        self.dpp = mn.endswith('_dpp') or 'row_' in self.mods or 'quad_perm' in self.mods or 'wave_' in self.mods
        R = lambda idxs: [x for i in idxs if i < len(ops) for x in regs_of(ops[i])]
        n = len(ops)
        if mn.startswith('v_mfma'):
            self.cls = 'mfma'; self.w = R([0]); self.r = R([1, 2, 3]); self.ab = R([1, 2]); self.c = R([3])
            self.passes = 8 if '32x32x16' in mn else 4 if '16x16x32' in mn else None
            assert self.passes, mn
        elif mn.startswith('v_'):
            self.cls = 'valu'; self.trans = base in TRANS
            if base.startswith('v_cmp'): self.w = R([0]); self.r = R(range(1, n))
            elif base in ('v_add_co_u32', 'v_sub_co_u32', 'v_addc_co_u32'): self.w = R([0, 1]); self.r = R(range(2, n))
            elif 'permlane' in base and 'swap' in base: self.w = R([0, 1]); self.r = R([0, 1])
            else:
                self.w = R([0]); self.r = R(range(1, n))
                if base in ('v_fmac_f32', 'v_dot2c_f32_bf16', 'v_pk_fmac_f16', 'v_writelane_b32') or self.dpp: self.r += R([0])
                if base == 'v_cndmask_b32' and n == 3: self.r += [('s', 'vcc')]
        elif mn.startswith('s_load') or mn.startswith('s_memtime') or mn.startswith('s_memrealtime') or mn.startswith('s_atomic'):
            self.cls = 'smem'; self.w = R([0]); self.r = R(range(1, n))
        elif mn.startswith('s_'):
            self.cls = 'salu'
            if mn.startswith(('s_cmp', 's_cbranch', 's_branch', 's_waitcnt', 's_nop', 's_barrier', 's_endpgm', 's_setprio', 's_sleep', 's_bitcmp')):
                self.r = R(range(n))
            else:
                self.w = R([0]); self.r = R(range(1, n))
                if 'saveexec' in mn: self.w += [('s', 'exec')]; self.r += [('s', 'exec')]
                if mn in ('s_addk_i32', 's_mulk_i32'): self.r += R([0])
        elif mn.startswith('ds_'):
            self.cls = 'ds'
            if mn.startswith(('ds_read', 'ds_bpermute', 'ds_permute', 'ds_swizzle')) or '_rtn' in mn: self.w = R([0]); self.r = R(range(1, n))
            else: self.r = R(range(n))
        elif mn.startswith(('buffer_', 'global_')):
            self.cls = 'vmem'
            self.lds = ' lds' in (' ' + self.mods) or '_lds_' in mn
            self.store = 'store' in mn or ('atomic' in mn and 'sc0' not in self.mods)
            if self.lds: self.r = R(range(n)) + [('s', 'm0')]
            elif self.store: self.r = R(range(n))
            else:
                self.w = R([0]); self.r = R(range(1, n))
                if 'd16' in mn: self.r += R([0])
            self.wide = self.store and ('x4' in mn or 'x3' in mn)
            if self.wide: self.data = R([0]) if mn.startswith('buffer_') else R([1])

def nstates(ins):
    if ins.label or not ins.mn: return 0
    if ins.mn == 's_nop': return int(ins.ops[0], 0) + 1
    return 1

def need(p, c):
    n = 0
    pw, pr, cw, cr = set(p.w), set(p.r), set(c.w), set(c.r)
    vec = lambda s: {x for x in s if x[0] in 'va'}
    sca = lambda s: {x for x in s if x[0] == 's'}
    if p.cls == 'valu':
        if c.cls == 'mfma' and vec(pw) & cr: n = max(n, 2)
        if c.cls == 'mfma' and ('s', 'exec') in pw: n = max(n, 4)
        if p.trans and c.cls == 'valu' and vec(pw) & cr: n = max(n, 1)
        if sca(pw) & cr:
            if c.cls == 'valu': n = max(n, 4 if c.base in ('v_readlane_b32', 'v_writelane_b32') else 2)
            if c.cls == 'vmem': n = max(n, 5)
            if c.cls in ('salu', 'smem'): n = max(n, 1)
        if c.cls == 'valu' and vec(pw) & cr:
            if c.base in ('v_readlane_b32', 'v_readfirstlane_b32'): n = max(n, 1)
            if c.dpp or 'permlane' in c.base: n = max(n, 2)
        if ('s', 'exec') in pw and c.cls == 'valu':
            if c.dpp: n = max(n, 5)
            if c.base in ('v_readlane_b32', 'v_readfirstlane_b32', 'v_writelane_b32') or 'permlane' in c.base: n = max(n, 4)
    if p.cls == 'valu' and p.base.startswith('v_dot') and c.cls in ('valu', 'mfma', 'vmem', 'ds') and pw & (cr | cw):
        same_acc = c.base == p.base and (set(regs_of(c.ops[1])) | set(regs_of(c.ops[2]))).isdisjoint(pw)
        if not same_acc: n = max(n, 3)
    if p.cls == 'mfma':
        big = {4: 8, 8: 12}[p.passes]
        if c.cls == 'mfma':
            if pw & set(c.ab): n = max(n, big)
            if pw & set(c.c) and not (p.w == c.c and p.passes == c.passes): n = max(n, {4: 6, 8: 10}[p.passes])
            elif pw & cw and not (p.w == c.c and p.passes == c.passes): n = max(n, big)
        elif c.cls in ('valu', 'vmem', 'ds'):
            if pw & (cr | cw): n = max(n, big)
            if c.cls == 'valu' and set(p.c) & cw: n = max(n, {4: 3, 8: 7}[p.passes])
    if p.cls == 'salu' and ('s', 'm0') in pw and c.cls == 'vmem' and c.lds: n = max(n, 1)
    if p.cls == 'vmem' and getattr(p, 'wide', False) and set(p.data) & cw: n = max(n, 2 if c.cls in ('valu', 'mfma') else 1)
    return n

class Asm:
    def __init__(self, name):
        self.name = name; self.lines = []
    def __call__(self, text):
        for l in text.split('\n'):
            l = l.strip()
            if l and not l.startswith(';'): self.lines.append(l)
    def autowait(self, ins):
        out, vm, lg, on = [], [], [], False
        for c in ins:
            if c.mn == 'AUTO': on = True; continue
            if c.mn == 'MANUAL': on = False; continue
            if c.label or not c.mn: out.append(c); continue
            if c.mn == 's_waitcnt':
                m = re.search(r'vmcnt\((\d+)\)', c.text)
                if m: k = int(m.group(1)); vm = vm[max(0, len(vm) - k):] if k else []
                m = re.search(r'lgkmcnt\((\d+)\)', c.text)
                if m:
                    k = int(m.group(1))
                    if k == 0: lg = []
                    elif not any(x[1] for x in lg): lg = lg[max(0, len(lg) - k):]
                out.append(c); continue
            if c.mn in ('s_endpgm', 's_branch'): vm, lg = [], []; out.append(c); continue
            if on:
                w = []
                for q, nm, same, cap in ((vm, 'vmcnt', 'vmem', 63), (lg, 'lgkmcnt', 'ds', 15)):
                    t = set(c.r) if c.cls == same else set(c.r) | set(c.w)
                    last = max([i for i, x in enumerate(q) if x[0] & t], default=-1)
                    if last >= 0:
                        n = len(q) - 1 - last
                        if q is lg and any(x[1] for x in q): n = 0
                        n = min(n, cap)
                        w.append(f'{nm}({n})')
                        del q[:len(q) - n]
                if w: out.append(Ins('s_waitcnt ' + ' '.join(w)))
            if c.cls == 'vmem': vm.append((set(c.w), False))
            elif c.cls == 'ds': lg.append((set(c.w), False))
            elif c.cls == 'smem': lg.append((set(c.w), True))
            out.append(c)
        return out
    def finish(self, check=True):
        ins = self.autowait([Ins(l) for l in self.lines])
        out = []
        for c in ins:
            if c.mn and c.mn != 's_nop':
                dist, req = 0, 0
                for p in reversed(out):
                    if dist >= 20: break
                    if p.mn:
                        k = need(p, c)
                        if k - dist > req: req = k - dist
                    dist += nstates(p)
                while req > 0:
                    k = min(req, 16); out.append(Ins(f's_nop {k-1}')); req -= k
            out.append(c)
        if check: self.check_counters(out)
        return '\n'.join(('' if i.label else '    ') + i.text for i in out) + '\n'
    def check_counters(self, ins):
        vm, lg = [], []
        for c in ins:
            if c.label or not c.mn: continue
            if c.mn == 's_waitcnt':
                t = c.text
                m = re.search(r'vmcnt\((\d+)\)', t)
                if m:
                    k = int(m.group(1)); assert k <= 63, t
                    vm = vm[len(vm) - k:] if k < len(vm) and k > 0 else ([] if k == 0 else vm)
                m = re.search(r'lgkmcnt\((\d+)\)', t)
                if m:
                    k = int(m.group(1)); assert k <= 15, t
                    if k == 0: lg = []
                    elif not any(x[2] for x in lg): lg = lg[len(lg) - k:] if k < len(lg) else lg
                continue
            if c.mn in ('s_endpgm', 's_branch'): vm, lg = [], []; continue
            touched = set(c.r) | set(c.w)
            for q in (vm, lg):
                for (rs, tx, _) in q:
                    if rs & touched and not (c.cls == 'vmem' and q is vm and not (rs & set(c.r))) and not (c.cls == 'ds' and q is lg and not (rs & set(c.r))):
                        raise SystemExit(f'[{self.name}] unwaited load: "{tx}" used by "{c.text}"')
            if c.cls == 'vmem': vm.append((set(c.w), c.text, False))
            elif c.cls == 'ds': lg.append((set(c.w), c.text, False))
            elif c.cls == 'smem': lg.append((set(c.w), c.text, True))

def kernel_text(name, body):
    return f".globl {name}\n.p2align 8\n.type {name},@function\n{name}:\n{body}"

def descriptor(name, vgpr, agpr=0, sgpr=96):
    acc = (vgpr + 3) // 4 * 4
    nfv = acc + agpr if agpr else vgpr
    return f""".p2align 6
.amdhsa_kernel {name}
  .amdhsa_next_free_vgpr {nfv}
  .amdhsa_next_free_sgpr {sgpr}
  .amdhsa_accum_offset {acc}
  .amdhsa_group_segment_fixed_size 0
  .amdhsa_kernarg_size 136
  .amdhsa_user_sgpr_count 2
  .amdhsa_user_sgpr_kernarg_segment_ptr 1
  .amdhsa_system_sgpr_workgroup_id_x 1
.end_amdhsa_kernel
"""
```

```python
from asmlib import *
from layout import *

NK, NL, NM = 640, 64, 120
A_GRID = NK + NL + NM
A_LDS = 40960

def cmul(k, z, a, b, t):
    k(f"v_pk_mul_f32 v[{t}:{t+1}], v[{a}:{a+1}], v[{b}:{b+1}] op_sel_hi:[1,0]")
    return f"v_pk_fma_f32 v[{z}:{z+1}], v[{a}:{a+1}], v[{b}:{b+1}], v[{t}:{t+1}] op_sel:[1,1,0] op_sel_hi:[0,1,1] neg_lo:[1,0,0]"

def cmuls(k, lst, tmp):
    second = [cmul(k, z, a, b, tmp + 2 * i) for i, (z, a, b) in enumerate(lst)]
    for s in second: k(s)

def gen_kgen(k):
    k(f"""
    s_load_dwordx16 s[32:47], s[0:1], 8
    s_load_dwordx2 s[48:49], s[0:1], 128
    s_cmp_eq_u32 s21, 3
    s_cbranch_scc1 LA_end
    s_lshr_b32 s22, s20, 5
    s_lshl_b32 s22, s22, 5
    s_and_b32 s23, s20, 7
    s_lshl_b32 s23, s23, 2
    s_add_u32 s22, s22, s23
    s_bfe_u32 s23, s20, 0x20003
    s_add_u32 s22, s22, s23              ; d
    s_mul_i32 s24, s22, 384
    s_lshl_b32 s25, s21, 7
    s_add_u32 s24, s24, s25
    v_lshl_add_u32 v2, v1, 1, s24
    s_lshl_b32 s25, s22, 1
    v_mov_b32 v3, s25
    v_mov_b32 v4, 0
    v_mov_b32 v5, 0
    v_mov_b32 v6, 0
    v_mov_b32 v7, 0
    v_mov_b32 v8, 0
    v_mov_b32 v9, 0
    v_mov_b32 v10, 0
    v_mov_b32 v124, 0
    s_waitcnt lgkmcnt(0)
    global_load_short_d16_hi v10, v3, s[44:45]
    global_load_short_d16_hi v4, v2, s[32:33]
    global_load_short_d16_hi v5, v2, s[34:35]
    global_load_short_d16_hi v6, v2, s[36:37]
    global_load_short_d16_hi v7, v2, s[38:39]
    global_load_short_d16_hi v8, v2, s[40:41]
    global_load_short_d16_hi v9, v2, s[42:43]
    global_load_short_d16_hi v124, v3, s[46:47]
    """)
    k(f"""
    s_mul_i32 s26, s21, 10240
    s_movk_i32 s27, 144
    v_mad_u32_u24 v12, v1, s27, 0
    v_add_u32 v12, s26, v12
    v_bfe_u32 v14, v1, 2, 2               ; r
    v_lshrrev_b32 v15, 5, v1              ; hi
    v_lshlrev_b32 v14, 1, v14
    v_add_u32 v14, v14, v15
    v_mul_u32_u24 v14, 288, v14           ; (4r+2hi)*144
    v_bfe_u32 v16, v1, 4, 1
    v_lshlrev_b32 v16, 5, v16
    v_and_b32 v17, 3, v1
    v_lshlrev_b32 v17, 3, v17
    v_add3_u32 v13, v14, v16, v17
    v_add_u32 v13, s26, v13
    """)
    TB = 30720
    DUM = TB + 2 * 1010
    k(f"""
    s_cmp_lg_u32 s21, 0
    s_cbranch_scc1 LA_k1
    v_mov_b32 v100, 0
    v_mov_b32 v101, 0
    v_mov_b32 v102, 0
    v_mov_b32 v103, 0
    v_lshlrev_b32 v110, 4, v1
    ds_write_b128 v110, v[100:103] offset:{TB}
    ds_write_b128 v110, v[100:103] offset:{TB+1024}
    ds_write_b32 v110, v100 offset:{TB+2048}
    v_and_b32 v104, 1, v1                 ; odd
    v_bfe_u32 v105, v1, 1, 4              ; kappa'
    v_or_b32 v106, v104, v15
    v_mul_u32_u24 v107, 48, v104
    v_mul_u32_u24 v108, 96, v15
    v_add3_u32 v106, v106, v107, v108
    v_add_u32 v106, v106, v105
    v_lshlrev_b32 v106, 1, v106
    v_add_u32 v112, {TB + 2*(B5A - 1 + 1)}, v106
    v_mov_b32 v109, {DUM}
    v_cmp_eq_u32 vcc, 0, v105
    v_cndmask_b32 v113, v112, v109, vcc
    v_mul_u32_u24 v107, {B9 - 1 - B7}, v104
    v_lshlrev_b32 v108, 4, v15
    v_add_u32 v108, v108, v105
    v_sub_u32 v108, v108, v107
    v_lshlrev_b32 v108, 1, v108
    v_add_u32 v114, {TB + 2*(B9 - 1 + 1)}, v108
    v_mov_b32 v107, {TB + 2*(BC + 3 + 1)}
    v_cmp_eq_u32 vcc, 0, v1
    v_cndmask_b32 v115, v114, v107, vcc
    v_mov_b32 v107, {TB + 2*(BC + 4 + 1)}
    v_cndmask_b32 v116, v109, v107, vcc
    v_mov_b32 v107, {TB + 2*(B9 + 63 + 1)}
    v_cndmask_b32 v117, v109, v107, vcc
    v_mov_b32 v107, {TB + 2*(B5A + 31 + 1)}
    v_cmp_eq_u32 vcc, 32, v1
    v_cndmask_b32 v117, v117, v107, vcc
    v_and_b32 v107, 31, v1
    v_lshlrev_b32 v107, 4, v107
    v_lshl_add_u32 v118, v15, 3, v107                     ; 16n + 8hi
    v_and_b32 v107, 30, v1
    v_cmp_eq_u32 vcc, 0, v107
    v_mov_b32 v107, {2*1016 - 2*(BA+1+512)}
    v_cndmask_b32 v119, v107, v118, vcc
    LA_k1:
    """)
    AR, AI, BR, BI, CR, CI, DT, DS = 4, 5, 6, 7, 8, 9, 10, 124
    TMP = 14
    LR = 22
    k(f"""
    s_mov_b32 s28, {LOG2E}
    s_mov_b32 s29, {INV2PI}
    s_waitcnt vmcnt(7)
    v_mul_f32 v14, s28, v{DT}
    v_fma_f32 v15, v{DT}, s28, -v14
    v_fmac_f32 v15, {LOG2E_LO}, v{DT}
    v_exp_f32 v14, v14
    v_mul_f32 v15, {LN2}, v15
    v_fmac_f32 v14, v14, v15
    v_cvt_pk_bf16_f32 v14, v14, v14
    v_lshlrev_b32 v{DT}, 16, v14
    s_waitcnt vmcnt(5)
    v_mul_f32 v{LR}, v{AR}, v{DT}
    v_mul_f32 v{LR+1}, v{AI}, v{DT}
    v_mul_f32 v{LR}, s28, v{LR}
    v_mul_f32 v{LR+1}, s29, v{LR+1}
    """)
    W = {1: 24, 8: 26, 256: 28, 2: 30, 3: 32, 4: 34, 5: 36, 6: 38, 7: 40, 16: 42, 32: 44,
         258: 46, 260: 48, 262: 50, 264: 52, 512: 54}
    for i, (p, r) in enumerate(((1, 24), (8, 26), (256, 28))):
        t = TMP + 2 * i
        if p == 1: k(f"v_fract_f32 v{t+1}, v{LR+1}\nv_exp_f32 v{t}, v{LR}")
        else:
            k(f"s_mov_b32 s30, {f2u(float(p))}\nv_mul_f32 v{t}, s30, v{LR}\nv_mul_f32 v{t+1}, s30, v{LR+1}\nv_exp_f32 v{t}, v{t}\nv_fract_f32 v{t+1}, v{t+1}")
        k(f"v_cos_f32 v{r}, v{t+1}\nv_sin_f32 v{r+1}, v{t+1}")
    for i, (p, r) in enumerate(((1, 24), (8, 26), (256, 28))):
        t = TMP + 2 * i
        k(f"v_pk_mul_f32 v[{r}:{r+1}], v[{r}:{r+1}], v[{t}:{t+1}] op_sel_hi:[1,0]")
    Z = [56 + 2 * i for i in range(8)]
    k("s_waitcnt vmcnt(1)")
    cmuls(k, [(Z[0], CR, BR), (W[2], W[1], W[1]), (W[16], W[8], W[8]), (W[512], W[256], W[256])], TMP)
    k(f"v_pk_mul_f32 v[{Z[0]}:{Z[0]+1}], v[{Z[0]}:{Z[0]+1}], v[{DT}:{DT+1}] op_sel_hi:[1,0]")
    cmuls(k, [(W[3], W[2], W[1]), (W[4], W[2], W[2]), (W[32], W[16], W[16]), (W[258], W[256], W[2])], TMP)
    cmuls(k, [(Z[1], Z[0], W[8]), (Z[2], Z[0], W[16]), (W[5], W[4], W[1]), (W[6], W[4], W[2])], TMP)
    cmuls(k, [(Z[3], Z[1], W[16]), (W[7], W[4], W[3]), (W[260], W[256], W[4]), (W[264], W[256], W[8])], TMP)
    IM = 72
    state = {'g': 0}
    def put(grp, vals, neg):
        state['g'] += 1
        for i in range(4):
            a, b = vals[2 * i], vals[2 * i + 1]
            ra = '1.0' if a is None else f'v{a}'
            k(f"v_cvt_pk_bf16_f32 v{PK[state['g'] & 1] + i}, {ra}, v{b}")
        k(f"ds_write_b128 v12, v[{PK[state['g'] & 1]}:{PK[state['g'] & 1]+3}] offset:{16*grp}")
        for i in range(4):
            a, b = vals[2 * i], vals[2 * i + 1]
            s = '-' if neg else ''
            ia = '0' if a is None else f'{s}v{a+1}'
            k(f"v_cvt_pk_bf16_f32 v{IM + 4*grp + i}, {ia}, {s}v{b+1}")
    PK = [4, 120]
    cmuls(k, [(W[262], W[256], W[6]), (Z[4], Z[0], W[32]), (Z[5], Z[1], W[32]), (Z[6], Z[2], W[32])], TMP)
    put(0, [None, W[1], W[2], W[3], W[4], W[5], W[6], W[7]], True)
    X = {516: W[1], 520: W[3], 768: W[5], 1024: W[7], 772: W[2], 1280: W[6]}
    cmuls(k, [(Z[7], Z[3], W[32]), (X[516], W[512], W[4]), (X[520], W[512], W[8]), (X[768], W[512], W[256])], TMP)
    put(1, [W[256], W[256], W[258], W[260], W[260], W[260], W[262], W[264]], True)
    put(4, Z, False)
    X.update({1536: W[258], 1792: W[260], 2048: W[262]})
    cmuls(k, [(Z[0], Z[4], W[32]), (Z[1], Z[5], W[32]), (Z[2], Z[6], W[32]), (Z[3], Z[7], W[32])], TMP)
    cmuls(k, [(X[1024], W[512], W[512]), (X[772], X[768], W[4]), (Z[4], Z[0], W[32]), (Z[5], Z[1], W[32])], TMP)
    put(2, [W[512], W[512], W[512], X[516], X[516], X[516], X[520], X[520]], True)
    cmuls(k, [(Z[6], Z[2], W[32]), (Z[7], Z[3], W[32]), (X[1280], X[1024], W[256]), (X[1536], X[1024], W[512])], TMP)
    cmuls(k, [(X[1792], X[1024], X[768]), (X[2048], X[1024], X[1024])], TMP)
    put(5, Z, False)
    cmuls(k, [(Z[0], Z[4], W[32]), (Z[1], Z[5], W[32]), (Z[2], Z[6], W[32]), (Z[3], Z[7], W[32])], TMP)
    put(3, [X[768], X[1024], X[1536], X[2048], X[772], X[1280], X[1792], X[1024]], True)
    cmuls(k, [(Z[4], Z[0], W[32]), (Z[5], Z[1], W[32]), (Z[6], Z[2], W[32]), (Z[7], Z[3], W[32])], TMP)
    put(6, Z, False)
    cmuls(k, [(Z[0], Z[4], W[32]), (Z[1], Z[5], W[32]), (Z[2], Z[6], W[32]), (Z[3], Z[7], W[32])], TMP)
    cmuls(k, [(Z[4], Z[0], W[32]), (Z[5], Z[1], W[32]), (Z[6], Z[2], W[32]), (Z[7], Z[3], W[32])], TMP)
    put(7, Z, False)
    FR, ACC = 24, 56
    def reads():
        for s in range(4):
            for tb in range(2):
                for h in range(2):
                    r = FR + 8 * s + 4 * tb + 2 * h
                    k(f"ds_read_b64_tr_b16 v[{r}:{r+1}], v13 offset:{(16*s + h)*144 + 64*tb}")
    def mfmas(first, pend):
        for s in range(4):
            k(f"s_waitcnt lgkmcnt({min(15, pend + 12 - 4*s)})")
            c = '0' if first and s == 0 else f'v[{ACC}:{ACC+15}]'
            k(f"v_mfma_f32_32x32x16_bf16 v[{ACC}:{ACC+15}], v[{FR+8*s}:{FR+8*s+3}], v[{FR+8*s+4}:{FR+8*s+7}], {c}")
    reads()
    mfmas(True, 0)
    for g in range(8): k(f"ds_write_b128 v12, v[{IM+4*g}:{IM+4*g+3}] offset:{16*g}")
    reads()
    mfmas(False, 0)
    k(f"""
    v_lshlrev_b32 v14, 4, v1
    s_cmp_eq_u32 s21, 0
    s_cbranch_scc1 LA_k2
    v_add_u32 v14, s26, v14
    """)
    for q in range(4): k(f"ds_write_b128 v14, v[{ACC+4*q}:{ACC+4*q+3}] offset:{1024*q}")
    k("""
    s_waitcnt lgkmcnt(0)
    s_barrier
    s_endpgm
    LA_k2:
    s_barrier
    """)
    for w in range(2):
        for q in range(4): k(f"ds_read_b128 v[{24+16*w+4*q}:{27+16*w+4*q}], v14 offset:{10240*(w+1) + 1024*q}")
    k(f"""
    v_cmp_eq_u32 vcc, 0, v1
    s_waitcnt vmcnt(0)
    v_cndmask_b32 v{DS}, 0, v{DS}, vcc
    v_cmp_ne_u32 vcc, 33, v1
    s_mul_i32 s24, s22, 4096
    s_add_u32 s48, s48, {WS_TAPS}
    s_addc_u32 s49, s49, 0
    s_add_u32 s48, s48, s24
    s_addc_u32 s49, s49, 0
    s_waitcnt lgkmcnt(4)
    """)
    for i in range(8): k(f"v_pk_add_f32 v[{ACC+2*i}:{ACC+2*i+1}], v[{ACC+2*i}:{ACC+2*i+1}], v[{24+2*i}:{25+2*i}]")
    k("s_waitcnt lgkmcnt(0)")
    for i in range(8): k(f"v_pk_add_f32 v[{ACC+2*i}:{ACC+2*i+1}], v[{ACC+2*i}:{ACC+2*i+1}], v[{40+2*i}:{41+2*i}]")
    P = TB + 2 * (BA + 1)
    k(f"""
    v_add_f32 v{ACC}, v{ACC}, v{DS}
    v_cvt_pk_bf16_f32 v24, v{ACC}, v{ACC+1}
    v_cvt_pk_bf16_f32 v25, v{ACC+2}, v{ACC+3}
    v_cvt_pk_bf16_f32 v26, v{ACC+4}, v{ACC+5}
    v_cvt_pk_bf16_f32 v27, v{ACC+6}, v{ACC+7}
    v_cvt_pk_bf16_f32 v28, v{ACC+8}, v{ACC+9}
    v_cvt_pk_bf16_f32 v29, v{ACC+10}, v{ACC+11}
    v_cvt_pk_bf16_f32 v30, v{ACC+8}, v{ACC+12}
    v_cvt_pk_bf16_f32 v31, v{ACC+13}, v{ACC+14}
    v_cvt_pk_bf16_f32 v32, v{ACC+15}, v{ACC+15}
    v_cndmask_b32 v29, 0, v29, vcc
    ds_write_b64 v118, v[24:25] offset:{P}
    ds_write_b64 v118, v[26:27] offset:{P + 512}
    ds_write_b64 v119, v[28:29] offset:{P + 1024}
    ds_write_b16 v113, v30
    ds_write_b16_d16_hi v112, v30 offset:32
    ds_write_b16 v115, v31
    ds_write_b16 v116, v31
    ds_write_b16_d16_hi v114, v31 offset:64
    ds_write_b16 v117, v32
    ds_read_b128 v[24:27], v14 offset:{TB}
    ds_read_b32 v28, v14 offset:{TB + 16}
    ds_read_b128 v[32:35], v14 offset:{TB + 1024}
    ds_read_b32 v36, v14 offset:{TB + 1024 + 16}
    s_waitcnt lgkmcnt(2)
    global_store_dwordx4 v14, v[24:27], s[48:49]
    v_alignbit_b32 v40, v25, v24, 16
    v_alignbit_b32 v41, v26, v25, 16
    v_alignbit_b32 v42, v27, v26, 16
    v_alignbit_b32 v43, v28, v27, 16
    global_store_dwordx4 v14, v[40:43], s[48:49] offset:2048
    s_waitcnt lgkmcnt(0)
    global_store_dwordx4 v14, v[32:35], s[48:49] offset:1024
    v_alignbit_b32 v44, v33, v32, 16
    v_alignbit_b32 v45, v34, v33, 16
    v_alignbit_b32 v46, v35, v34, 16
    v_alignbit_b32 v47, v36, v35, 16
    global_store_dwordx4 v14, v[44:47], s[48:49] offset:3072
    s_endpgm
    """)

def gen_ln(k):
    k(f"""
    s_load_dwordx2 s[32:33], s[0:1], 0
    s_load_dwordx2 s[48:49], s[0:1], 128
    s_lshl_b32 s22, s20, 2
    s_add_u32 s22, s22, s21               ; t-oct
    v_lshrrev_b32 v2, 3, v1
    v_mul_u32_u24 v2, 1280, v2
    v_and_b32 v3, 7, v1
    v_lshl_add_u32 v2, v3, 4, v2          ; r*1280 + 16c
    s_mul_i32 s23, s22, 10240
    v_add_u32 v3, s23, v2
    s_mul_i32 s26, s21, 10240
    v_add_u32 v2, s26, v2
    s_waitcnt lgkmcnt(0)
    """)
    for q in range(10): k(f"global_load_dwordx4 v[{12+4*q}:{15+4*q}], v3, s[32:33] offset:{128*q}")
    k(f"""
    v_bfe_u32 v4, v1, 2, 2
    v_mul_u32_u24 v4, 1280, v4
    v_lshrrev_b32 v5, 4, v1
    v_lshl_add_u32 v4, v5, 5, v4
    v_and_b32 v5, 3, v1
    v_lshl_add_u32 v4, v5, 3, v4
    v_add_u32 v4, s26, v4
    v_lshrrev_b32 v6, 2, v1
    v_lshlrev_b32 v6, 14, v6
    v_lshl_add_u32 v5, v5, 4, v6
    s_lshl_b32 s23, s22, 6
    v_add_u32 v5, s23, v5
    s_add_u32 s50, s48, {WS_UT}
    s_addc_u32 s51, s49, 0
    s_add_u32 s48, s48, {WS_NT}
    s_addc_u32 s49, s49, 0
    s_mov_b32 s24, 0x3f803f80
    v_mov_b32 v8, 0
    v_mov_b32 v9, 0
    v_mov_b32 v10, 0
    v_mov_b32 v11, 0
    """)
    for q in range(10):
        k(f"s_waitcnt vmcnt({9-q})")
        k(f"ds_write_b128 v2, v[{12+4*q}:{15+4*q}] offset:{128*q}")
        for i in range(4):
            r = 12 + 4 * q + i
            k(f"v_dot2c_f32_bf16 v{8 + (i&1)}, s24, v{r}")
            k(f"v_dot2c_f32_bf16 v{10 + (i&1)}, v{r}, v{r}")
    k(f"""
    s_nop 2
    v_add_f32 v8, v8, v9
    v_add_f32 v10, v10, v11
    v_add_f32_dpp v8, v8, v8 quad_perm:[1,0,3,2] row_mask:0xf bank_mask:0xf
    v_add_f32_dpp v10, v10, v10 quad_perm:[1,0,3,2] row_mask:0xf bank_mask:0xf
    v_add_f32_dpp v8, v8, v8 quad_perm:[2,3,0,1] row_mask:0xf bank_mask:0xf
    v_add_f32_dpp v10, v10, v10 quad_perm:[2,3,0,1] row_mask:0xf bank_mask:0xf
    v_add_f32_dpp v8, v8, v8 row_half_mirror row_mask:0xf bank_mask:0xf
    v_add_f32_dpp v10, v10, v10 row_half_mirror row_mask:0xf bank_mask:0xf
    v_mul_f32 v8, {f2u(1/640)}, v8
    v_mul_f32 v10, {f2u(1/640)}, v10
    v_fma_f32 v10, -v8, v8, v10
    v_max_f32 v10, 0, v10
    v_cvt_pk_bf16_f32 v10, v10, v8
    v_and_b32 v8, 0xffff0000, v10
    v_lshlrev_b32 v10, 16, v10
    v_add_f32 v10, {f2u(1e-5)}, v10
    v_cvt_pk_bf16_f32 v10, v10, v10
    v_lshlrev_b32 v10, 16, v10
    v_sqrt_f32 v10, v10
    v_cvt_pk_bf16_f32 v10, v10, v10
    v_lshlrev_b32 v10, 16, v10
    v_rcp_f32 v10, v10
    v_mul_f32 v8, v8, v10
    """)
    for r in range(8): k(f"v_readlane_b32 s{56+r}, v10, {8*r}")
    for r in range(8): k(f"v_readlane_b32 s{64+r}, v8, {8*r}")
    for r in range(8): k(f"v_mov_b32 v{52+r}, s{64+r}")
    def rd(ch):
        b = 12 + 4 * (ch % 3)
        k(f"ds_read_b64_tr_b16 v[{b}:{b+1}], v4 offset:{128*ch}")
        k(f"ds_read_b64_tr_b16 v[{b+2}:{b+3}], v4 offset:{128*ch + 5120}")
    rd(0); rd(1)
    for ch in range(10):
        b = 12 + 4 * (ch % 3)
        u = 24 + 12 * (ch & 1)
        k(f"s_waitcnt lgkmcnt({2 if ch < 9 else 0})")
        k(f"global_store_dwordx4 v5, v[{b}:{b+3}], s[50:51]")
        for i in range(4):
            k(f"v_lshlrev_b32 v{u+2*i}, 16, v{b+i}")
            k(f"v_and_b32 v{u+2*i+1}, 0xffff0000, v{b+i}")
        if ch + 2 < 10: rd(ch + 2)
        for i in range(4):
            k(f"v_pk_fma_f32 v[{u+2*i}:{u+2*i+1}], v[{u+2*i}:{u+2*i+1}], s[{56+2*i}:{57+2*i}], v[{52+2*i}:{53+2*i}] neg_lo:[0,0,1] neg_hi:[0,0,1]")
        for i in range(4): k(f"v_cvt_pk_bf16_f32 v{u+8+i}, v{u+2*i}, v{u+2*i+1}")
        k(f"global_store_dwordx4 v5, v[{u+8}:{u+11}], s[48:49]")
        if ch < 9: k(f"v_add_u32 v5, 0x40000, v5")
    k("s_endpgm")

def gen_mod(k):
    k(f"""
    s_load_dwordx4 s[32:35], s[0:1], 96
    s_load_dwordx2 s[48:49], s[0:1], 128
    s_lshr_b32 s22, s20, 4
    s_lshl_b32 s22, s22, 4
    s_and_b32 s23, s20, 7
    s_lshl_b32 s23, s23, 1
    s_add_u32 s22, s22, s23
    s_bfe_u32 s23, s20, 0x10003
    s_add_u32 s22, s22, s23
    s_cmp_ge_u32 s20, 112
    s_cselect_b32 s22, s20, s22
    s_mul_i32 s26, s21, 10240
    s_mul_i32 s23, s21, {160*7680}
    s_lshl_b32 s24, s22, 6
    s_add_u32 s23, s23, s24
    v_lshrrev_b32 v2, 2, v1
    v_mul_u32_u24 v2, 7680, v2
    v_and_b32 v3, 3, v1
    v_lshl_add_u32 v2, v3, 4, v2
    v_add_u32 v2, s23, v2
    s_mul_i32 s23, s21, 320
    v_lshl_add_u32 v4, v1, 2, s23
    v_and_b32 v5, 15, v1
    v_lshl_add_u32 v5, v5, 2, s23
    s_mov_b32 m0, s26
    s_waitcnt lgkmcnt(0)
    global_load_dword v8, v4, s[32:33]
    global_load_dword v9, v5, s[32:33] offset:256
    """)
    for i in range(10):
        k(f"global_load_lds_dwordx4 v2, s[34:35]")
        if i < 9: k(f"s_add_u32 m0, m0, 1024\nv_add_u32 v2, {16*7680}, v2")
    k(f"""
    v_bfe_u32 v4, v1, 2, 2
    v_lshrrev_b32 v5, 4, v1
    v_lshl_add_u32 v4, v5, 3, v4
    v_lshlrev_b32 v4, 6, v4
    v_lshl_add_u32 v4, v3, 3, v4
    v_add_u32 v4, s26, v4
    v_lshlrev_b32 v5, 4, v5
    s_mov_b32 s28, {LOG2E + 0x80000000}
    s_waitcnt vmcnt(10)
    v_lshlrev_b32 v12, 16, v8
    v_and_b32 v13, 0xffff0000, v8
    v_lshlrev_b32 v14, 16, v9
    v_and_b32 v15, 0xffff0000, v9
    """)
    for i in range(4): k(f"v_mul_f32 v{16+i}, s28, v{12+i}")
    for i in range(4): k(f"v_exp_f32 v{16+i}, v{16+i}")
    for i in range(4): k(f"v_add_f32 v{16+i}, 1.0, v{16+i}")
    for i in range(4): k(f"v_rcp_f32 v{16+i}, v{16+i}")
    for i in range(4): k(f"v_mul_f32 v{12+i}, v{12+i}, v{16+i}")
    k("v_cvt_pk_bf16_f32 v8, v12, v13\nv_cvt_pk_bf16_f32 v9, v14, v15")
    for ks in range(5):
        for q in range(4):
            k(f"ds_bpermute_b32 v{20+4*ks+q}, v5, v{8 if ks < 4 else 9} offset:{4*((16*ks if ks < 4 else 0) + q)}")
        if ks == 2: k("s_waitcnt lgkmcnt(8)")
    for ks in range(5):
        k(f"s_waitcnt vmcnt({8 - 2*ks})")
        for ct in range(2):
            for h in range(2):
                r = 48 + 8 * (ks & 1) + 4 * ct + 2 * h
                k(f"ds_read_b64_tr_b16 v[{r}:{r+1}], v4 offset:{2048*ks + 256*h + 32*ct}")
        k("s_waitcnt lgkmcnt(0)")
        for ct in range(2):
            r = 48 + 8 * (ks & 1) + 4 * ct
            c = '0' if ks == 0 else f'v[{40+4*ct}:{43+4*ct}]'
            k(f"v_mfma_f32_16x16x32_bf16 v[{40+4*ct}:{43+4*ct}], v[{20+4*ks}:{23+4*ks}], v[{r}:{r+3}], {c}")
    k(f"""
    v_and_b32 v5, 15, v1
    v_lshl_add_u32 v5, v5, 2, s26
    ds_write_b32 v5, v40
    ds_write_b32 v5, v44 offset:64
    s_waitcnt lgkmcnt(0)
    s_barrier
    s_cmp_lg_u32 s21, 0
    s_cbranch_scc1 LA_end
    v_and_b32 v5, 31, v1
    v_lshlrev_b32 v5, 2, v5
    ds_read_b32 v8, v5
    ds_read_b32 v9, v5 offset:10240
    ds_read_b32 v10, v5 offset:20480
    ds_read_b32 v11, v5 offset:30720
    s_lshl_b32 s23, s22, 7
    v_add_u32 v5, s23, v5
    s_waitcnt lgkmcnt(0)
    v_add_f32 v8, v8, v9
    v_add_f32 v10, v10, v11
    v_add_f32 v8, v8, v10
    v_cvt_pk_bf16_f32 v8, v8, v8
    v_lshlrev_b32 v8, 16, v8
    global_store_dword v5, v8, s[48:49]
    s_endpgm
    """)

def gen_A(order='KLM'):
    k = Asm('A')
    k("""
    v_lshrrev_b32 v1, 6, v0
    v_readfirstlane_b32 s21, v1
    v_and_b32 v1, 63, v0
    """)
    cnt = {'K': NK, 'L': NL, 'M': NM}
    base = 0
    for r in order:
        k(f"s_sub_u32 s20, s2, {base}\ns_cmp_lt_u32 s20, {cnt[r]}\ns_cbranch_scc1 LA_{r}")
        base += cnt[r]
    k("LA_end:\ns_endpgm")
    gens = {'K': gen_kgen, 'L': gen_ln, 'M': gen_mod}
    for r in 'KLM':
        k(f"LA_{r}:")
        gens[r](k)
    return k.finish()

if __name__ == '__main__':
    print(gen_A())
```

```python
from asmlib import *
from layout import *

NCONV, NSIDE = 160, 96
B_GRID = NCONV + NSIDE
B_VGPR = 232
OH = 480
O3 = 4584; O5 = O3 + 4128; O7 = O5 + 4128; O9 = O7 + 2080
OT = O9 + 2072; TCS = 2112
CHS = (OT + 3 * TCS + 2048 + 80 + 127) // 128 * 128
OU = 4 * CHS
B_LDS = (OU + 16384 + 1279) // 1280 * 1280
assert O3 % 16 == 8 and O5 % 16 == 8 and O7 % 16 == 8 and O9 % 16 == 8 and OT % 16 == 0

P0 = 16
NW = 48
TA0 = 72
RING = 144; NRING = 8
ACC = 176
UAC = 192
IDF = 208
T2 = 72
vWH, vWC, vRD, vTA, vT2, vT3, vDA, vDB, vD3, vRU, vST = 2, 3, 4, 5, 6, 7, 8, 9, 10, 11, 12
G_LO, G_HI, S_, GL_LO, GL_HI, SL = 212, 213, 214, 215, 216, 217

def mf(acc, a, b, first):
    c = '0' if first else f'v[{acc}:{acc+3}]'
    return f"v_mfma_f32_16x16x32_bf16 v[{acc}:{acc+3}], v[{a}:{a+3}], v[{b}:{b+3}], {c}"

def window_ops(full):
    ops = []
    top = 15 if full else 13
    for x in range(1, top + 1):
        ops.append(f"v_pk_add_f32 v[{P0+2*x}:{P0+2*x+1}], v[{P0+2*x}:{P0+2*x+1}], v[{P0+2*x-2}:{P0+2*x-1}]")
    arrs = [(1, O3), (2, O5)] + ([(3, O7), (4, O9)] if full else [])
    for hw, off in arrs:
        for i in range(8):
            x = i + 4; hi_, lo_ = x + hw, x - hw - 1
            d = NW + 2 * i
            if lo_ < 0: ops.append(f"v_pk_mul_f32 v[{d}:{d+1}], v[{P0+2*hi_}:{P0+2*hi_+1}], 1.0 op_sel_hi:[1,0]")
            else: ops.append(f"v_pk_add_f32 v[{d}:{d+1}], v[{P0+2*hi_}:{P0+2*hi_+1}], v[{P0+2*lo_}:{P0+2*lo_+1}] neg_lo:[0,1] neg_hi:[0,1]")
        for half in range(2):
            for i in range(4): ops.append(f"v_cvt_pk_bf16_f32 v{NW+16+4*half+i}, v{NW+4*i+half}, v{NW+4*i+2+half}")
            ops.append(f"ds_write_b128 v{vWC}, v[{NW+16+4*half}:{NW+19+4*half}] offset:{off + 24 + 16*half}")
    return ops

def stream(k, tiles, full, tag):
    acc = {T: ACC + 4 * i for i, T in enumerate(tiles)}
    started = set()
    def M(T, a, b):
        s = mf(acc[T], a, b, T not in started); started.add(T); return s
    ps = sorted({8 * T - m for T in tiles for m in range(17) if 8 * T - m >= -7} | {8 * T - 32 for T in tiles if T >= 4}, reverse=True)
    if tiles[0] == 0:
        ps = [p for p in ps if p <= 8] + [p for p in ps if p > 8]
    steps = []
    for p in ps:
        u = [(T, 8 * T - p) for T in tiles if 0 <= 8 * T - p <= 16]
        u += [(T, 17) for T in tiles if T >= 4 and 8 * T - p == 32]
        steps.append((p, u))
    loaded = set()
    def reads_for(si):
        p, u = steps[si]
        out = []
        r = RING + 4 * (si % NRING)
        out.append(f"ds_read_b128 v[{r}:{r+3}], v{vRD} offset:{64 * (p + 7)}")
        for (T, m) in u:
            if m not in loaded:
                loaded.add(m)
                for h in range(2): out.append(f"ds_read_b64_tr_b16 v[{TA0+4*m+2*h}:{TA0+4*m+2*h+1}], v{vTA} offset:{64*m - 8*h + 8}")
        return out
    LOOK = 4
    fill = window_ops(full)
    nm = sum(len(u) for _, u in steps)
    per = len(fill) / (nm - 6)
    k("AUTO")
    for si in range(min(LOOK, len(steps))):
        for r in reads_for(si): k(r)
    done, fi = 0, 0
    for si, (p, u) in enumerate(steps):
        if si + LOOK < len(steps):
            for r in reads_for(si + LOOK): k(r)
        for (T, m) in u:
            k(M(T, TA0 + 4 * m, RING + 4 * (si % NRING)))
            done += 1
            while fi < len(fill) and fi < per * done: k(fill[fi]); fi += 1
    while fi < len(fill): k(fill[fi]); fi += 1
    k("MANUAL")
    k("s_waitcnt vmcnt(0) lgkmcnt(0)\ns_barrier")
    k("AUTO")
    items = []
    tl = set()
    def toe(kind, mu):
        key = (kind, mu)
        idx = {('A', 0): 0, ('A', 1): 1, ('A', 2): 2, ('B', 0): 3, ('B', 1): 4, ('B', 2): 5}.get(key, 6 + mu)
        r = T2 + 4 * idx
        rd = []
        if key not in tl:
            tl.add(key)
            base = {'A': B5A, 'B': B5B, 'C': B7}[kind]
            for h in range(2): rd.append(f"ds_read_b64_tr_b16 v[{r+2*h}:{r+2*h+1}], v{vT3 if kind == 'C' else vT2} offset:{2*(base-3) - 8 + 32*mu - 16*h}")
        return r, rd
    slot = 0
    for i, T in enumerate(tiles):
        r = RING + 4 * (slot % NRING); slot += 1
        items.append(([f"ds_read_b128 v[{r}:{r+3}], v{vRU} offset:{2048*T}"], [mf(UAC + 4 * i, IDF, r, True)]))
    for kind, b0, nmu, va in (('C', 4, 4, vD3), ('A', 2, 3, vDA), ('B', 2, 3, vDB)):
        Ps = sorted({T - b0 - mu for T in tiles for mu in range(nmu) if T - b0 - mu >= 0}, reverse=True)
        for P in Ps:
            r = RING + 4 * (slot % NRING); slot += 1
            rd = [f"ds_read_b64_tr_b16 v[{r+2*h}:{r+2*h+1}], v{va} offset:{512*P + 256*h}" for h in range(2)]
            ms = []
            for T in tiles:
                mu = T - b0 - P
                if 0 <= mu < nmu:
                    tr, x = toe(kind, mu); rd += x
                    ms.append(M(T, r, tr))
            items.append((rd, ms))
    LK = 3
    for i in range(min(LK, len(items))):
        for r in items[i][0]: k(r)
    for i, (rd, ms) in enumerate(items):
        if i + LK < len(items):
            for r in items[i + LK][0]: k(r)
        for m in ms: k(m)
    for pr in range(2):
        for i in (2 * pr, 2 * pr + 1):
            for h in range(2):
                a = ACC + 4 * i + 2 * h; u = UAC + 4 * i + 2 * h
                k(f"v_pk_fma_f32 v[{a}:{a+1}], v[{a}:{a+1}], s[60:61], v[{u}:{u+1}]")
        o = P0 + 4 * pr
        for q in range(4): k(f"v_cvt_pk_bf16_f32 v{o+q}, v{ACC+8*pr+2*q}, v{ACC+8*pr+2*q+1}")
        k(f"global_store_dwordx4 v{vST}, v[{o}:{o+3}], s[56:57] offset:{1024 * (tiles[2*pr] >> 1)} {STORE_MOD}")
    k("MANUAL")
    k("s_endpgm")

STORE_MOD = ''

def gen_conv(k):
    k(f"""
    s_load_dwordx2 s[48:49], s[0:1], 128
    s_and_b32 s22, s21, 3
    s_lshr_b32 s23, s21, 2                ; half
    s_lshl_b32 s24, s2, 14
    v_and_b32 v14, 3, v1
    v_lshrrev_b32 v15, 2, v1
    s_lshl_b32 s25, s21, 4
    v_add_u32 v15, s25, v15               ; seg
    v_lshlrev_b32 v13, 7, v15
    v_lshl_add_u32 v13, v14, 4, v13       ; 128 seg + 16 j
    v_subrev_u32 v60, 64, v13
    v_max_i32 v60, 0, v60
    s_lshl_b32 s25, s2, 4
    v_lshl_add_u32 v61, v14, 2, s25
    s_waitcnt lgkmcnt(0)
    s_add_u32 s50, s48, s24
    s_addc_u32 s51, s49, 0
    s_add_u32 s52, s50, {WS_UT}
    s_addc_u32 s53, s51, 0
    s_add_u32 s50, s50, {WS_NT}
    s_addc_u32 s51, s51, 0
    global_load_dwordx4 v[{NW+4}:{NW+7}], v13, s[50:51]
    global_load_dwordx4 v[{NW+8}:{NW+11}], v13, s[50:51] offset:64
    global_load_dwordx4 v[{NW}:{NW+3}], v60, s[50:51]
    global_load_dword v{S_}, v61, s[48:49]
    global_load_dword v62, v61, s[48:49] offset:2560
    v_add_u32 v61, 5120, v61
    global_load_dword v63, v61, s[48:49]
    s_mul_i32 s26, s22, {CHS}
    s_and_b32 s27, s22, 1
    s_lshl_b32 s27, s27, 4
    s_add_u32 s26, s26, s27
    s_lshr_b32 s27, s22, 1
    s_lshl_b32 s27, s27, 6
    s_add_u32 s26, s26, s27
    s_lshl_b32 s27, s22, 12
    s_add_u32 s27, s27, s24
    s_add_u32 s56, s48, s27
    s_addc_u32 s57, s49, 0
    s_add_u32 s54, s56, {WS_TAPS}
    s_addc_u32 s55, s57, 0
    s_add_u32 s56, s56, {WS_X1}
    s_addc_u32 s57, s57, 0
    v_lshlrev_b32 v{vST}, 4, v1
    s_lshl_b32 s27, s23, 2
    v_add_u32 v61, s27, v{vST}            ; + 4*half
    s_mul_i32 s28, s23, {2*TCS}
    s_add_u32 s28, s28, s26
    s_add_u32 m0, s28, {OT - 2048}
    v_add_u32 v60, 4, v61
    global_load_lds_dwordx4 v61, s[54:55] offset:2048
    global_load_lds_dwordx4 v61, s[54:55] offset:3072
    s_add_u32 m0, s28, {OT + TCS}
    v_lshrrev_b32 v64, 4, v1              ; G
    global_load_lds_dwordx4 v60, s[54:55]
    global_load_lds_dwordx4 v60, s[54:55] offset:1024
    ; u image
    v_xor_b32 v65, v14, v64
    v_and_b32 v66, 0x3c, v1
    v_lshlrev_b32 v66, 4, v66
    v_lshl_add_u32 v65, v65, 4, v66
    s_lshl_b32 s28, s21, 11
    v_add_u32 v65, s28, v65
    s_add_u32 m0, s28, {OU}
    v_mul_u32_u24 v66, {CHS}, v14
    global_load_lds_dwordx4 v65, s[52:53]
    global_load_lds_dwordx4 v65, s[52:53] offset:1024
    v_and_b32 v67, 1, v14
    v_lshl_add_u32 v66, v67, 4, v66
    v_lshrrev_b32 v67, 1, v14
    v_lshl_add_u32 v66, v67, 6, v66
    v_lshl_add_u32 v{vWC}, v15, 5, v66
    v_mov_b32 v68, 0
    v_mov_b32 v69, 0
    v_mov_b32 v70, 0
    v_mov_b32 v71, 0
    s_cmp_eq_u32 s23, 0
    s_cbranch_scc0 LB_z1
    v_min_u32 v67, 29, v1
    v_lshl_add_u32 v67, v67, 4, s26
    ds_write_b128 v67, v[68:71]
    s_branch LB_z2
    LB_z1:
    v_min_u32 v67, 2, v14
    v_lshl_add_u32 v67, v67, 3, s26
    ds_write_b64 v67, v[68:69] offset:{O3}
    ds_write_b64 v67, v[68:69] offset:{O5}
    ds_write_b64 v67, v[68:69] offset:{O7}
    ds_write_b64 v67, v[68:69] offset:{O9}
    LB_z2:
    v_and_b32 v66, 15, v1
    v_lshlrev_b32 v67, 5, v66
    v_lshl_add_u32 v67, v64, 4, v67
    s_add_u32 s27, s26, {OH - 32 - 64*7}
    v_add_u32 v{vRD}, s27, v67            ; h frag: 32a + 16G
    v_bfe_u32 v68, v1, 2, 2               ; r
    v_sub_u32 v69, 3, v68
    v_mul_u32_u24 v69, {TCS}, v69
    v_lshl_add_u32 v69, v14, 3, v69
    s_add_u32 s27, s26, {OT}
    v_add_u32 v69, s27, v69
    v_lshlrev_b32 v70, 4, v64
    v_sub_u32 v70, 48, v70
    v_add_u32 v{vTA}, v69, v70
    v_and_b32 v70, 1, v64                 ; G&1
    v_lshrrev_b32 v71, 1, v64             ; G>>1
    v_lshlrev_b32 v18, 3, v70
    v_sub_u32 v69, v69, v18
    v_add_u32 v69, 8, v69
    v_mul_u32_u24 v18, {2*(B3A - B5A)}, v71
    v_add_u32 v{vT2}, v69, v18
    v_mul_u32_u24 v18, {2*(B9 - B7)}, v71
    v_add_u32 v{vT3}, v69, v18
    v_lshlrev_b32 v18, 7, v70
    v_lshl_add_u32 v18, v68, 5, v18
    v_lshl_add_u32 v18, v14, 3, v18
    v_add_u32 v18, s26, v18
    v_mul_u32_u24 v19, {O5 - O3 - 24}, v71
    v_sub_u32 v19, v18, v19
    v_add_u32 v{vDA}, {O5}, v19
    v_lshlrev_b32 v19, 5, v71
    v_sub_u32 v19, 16, v19
    v_add_u32 v{vDB}, v{vDA}, v19
    v_mul_u32_u24 v19, {O9 - O7 - 16}, v71
    v_add_u32 v19, v18, v19
    v_add_u32 v{vD3}, {O7 + 16}, v19
    v_bfe_u32 v19, v1, 1, 2
    v_xor_b32 v19, s22, v19
    v_lshlrev_b32 v19, 4, v19
    v_lshl_add_u32 v19, v66, 7, v19
    v_lshl_add_u32 v19, v70, 6, v19
    v_add_u32 v{vRU}, {OU}, v19
    v_lshlrev_b32 v18, 3, v64
    v_sub_u32 v18, v66, v18               ; e = i - 8G
    v_and_b32 v19, 1, v18
    v_lshlrev_b32 v19, 4, v19
    v_mov_b32 v20, 0x3f80
    v_lshlrev_b32 v19, v19, v20
    v_ashrrev_i32 v18, 1, v18
    v_cmp_eq_u32 s[62:63], 0, v18
    v_cmp_eq_u32 s[64:65], 1, v18
    v_cmp_eq_u32 s[66:67], 2, v18
    v_cmp_eq_u32 s[68:69], 3, v18
    v_cndmask_b32 v{IDF}, 0, v19, s[62:63]
    v_cndmask_b32 v{IDF+1}, 0, v19, s[64:65]
    v_cndmask_b32 v{IDF+2}, 0, v19, s[66:67]
    v_cndmask_b32 v{IDF+3}, 0, v19, s[68:69]
    v_cmp_ne_u32 vcc, 0, v15
    s_waitcnt vmcnt(6)
    v_add_f32 v62, 1.0, v62
    v_cvt_pk_bf16_f32 v{G_LO}, v62, 0
    v_readlane_b32 s60, v63, s22
    v_lshlrev_b32 v{G_HI}, 16, v{G_LO}
    v_cndmask_b32 v{GL_LO}, 0, v{G_LO}, vcc
    v_cndmask_b32 v{GL_HI}, 0, v{G_HI}, vcc
    v_cndmask_b32 v{SL}, 0, v{S_}, vcc
    s_mov_b32 s61, s60
    """)
    def dot(dst, x, left=False):
        w = NW + (x >> 1)
        g = (GL_HI if left else G_HI) if x & 1 else (GL_LO if left else G_LO)
        k(f"v_dot2_f32_bf16 v{dst}, v{w}, v{g}, v{SL if left else S_}")
    for x in range(8, 16): dot(P0 + 2 * x, x)
    for x in range(8, 16): dot(P0 + 2 * x + 1, x + 8)
    for x in range(8): dot(P0 + 2 * x + 1, x + 8)
    for half in range(2):
        for i in range(4): k(f"v_cvt_pk_bf16_f32 v{64+4*half+i}, v{P0+16+4*i+half}, v{P0+16+4*i+2+half}")
        k(f"ds_write_b128 v{vWC}, v[{64+4*half}:{67+4*half}] offset:{OH + 16*half}")
    for x in range(8): dot(P0 + 2 * x, x, True)
    k(f"""
    s_waitcnt vmcnt(2) lgkmcnt(0)
    s_barrier
    s_cmp_eq_u32 s23, 0
    s_cbranch_scc0 LB_Y
    """)
    stream(k, [0, 1, 6, 7], True, 'X')
    k("LB_Y:")
    stream(k, [2, 3, 4, 5], False, 'Y')

def gen_side(k):
    k(f"""
    s_load_dwordx4 s[32:35], s[0:1], 80
    s_load_dwordx2 s[48:49], s[0:1], 128
    s_lshr_b32 s22, s20, 5
    s_lshl_b32 s22, s22, 5
    s_and_b32 s23, s20, 7
    s_lshl_b32 s23, s23, 2
    s_add_u32 s22, s22, s23
    s_bfe_u32 s23, s20, 0x20003
    s_add_u32 s22, s22, s23               ; f tile
    s_lshl_b32 s26, s21, 13
    v_lshrrev_b32 v2, 1, v1
    v_mul_u32_u24 v2, 3072, v2
    v_and_b32 v3, 1, v1
    v_lshl_add_u32 v2, v3, 4, v2
    s_mul_i32 s23, s21, {32*3072}
    s_lshl_b32 s24, s22, 5
    s_add_u32 s23, s23, s24
    v_add_u32 v2, s23, v2
    v_lshrrev_b32 v4, 4, v1               ; G
    v_lshrrev_b32 v5, 1, v4
    v_and_b32 v6, 1, v4
    v_lshlrev_b32 v5, 4, v5
    v_lshl_add_u32 v5, v6, 2, v5          ; 16(G>>1) + 4(G&1)
    s_lshl_b32 s23, s21, 7
    v_lshl_add_u32 v7, v5, 2, s23
    s_mov_b32 m0, s26
    s_waitcnt lgkmcnt(0)
    s_add_u32 s50, s48, 7680
    s_addc_u32 s51, s49, 0
    """)
    k(f"""
    s_cmp_lt_u32 s21, 4
    s_cselect_b32 s27, {8*32*3072}, 0
    s_cselect_b32 s28, 1024, 0
    global_load_lds_dwordx4 v2, s[32:33]
    s_add_u32 m0, m0, 1024
    v_add_u32 v2, {8*32*3072}, v2
    global_load_lds_dwordx4 v2, s[32:33]
    s_add_u32 m0, m0, 1024
    v_add_u32 v2, s27, v2
    global_load_lds_dwordx4 v2, s[32:33]
    """)
    for i in range(3):
        for h in range(2):
            k(f"global_load_dwordx4 v[{16+16*i+4*h}:{19+16*i+4*h}], v7, s[50:51] offset:{32*h}")
            k(f"global_load_dwordx4 v[{24+16*i+4*h}:{27+16*i+4*h}], v7, s[50:51] offset:{2560+32*h}")
        if i == 0: k("v_add_u32 v7, 1024, v7")
        if i == 1: k("v_add_u32 v7, s28, v7")
    k(f"""
    s_cmp_lt_u32 s21, 3
    s_cbranch_scc1 LB_now2
    s_mul_i32 s29, s20, 5
    s_add_u32 s29, s29, s21
    s_sub_u32 s29, s29, 3                 ; job
    s_mul_hi_u32 s30, s29, 0x1999999a     ; KS
    s_mul_i32 s31, s30, 10
    s_sub_u32 s31, s29, s31               ; db
    v_lshrrev_b32 v8, 3, v1
    v_mul_u32_u24 v8, 1280, v8
    v_and_b32 v9, 7, v1
    v_lshl_add_u32 v8, v9, 4, v8
    s_mul_i32 s36, s30, {32*1280}
    s_lshl_b32 s37, s31, 7
    s_add_u32 s36, s36, s37
    v_add_u32 v8, s36, v8
    s_add_u32 m0, s26, 4096
    s_nop 0
    """)
    for i in range(4):
        k("global_load_lds_dwordx4 v8, s[34:35]")
        if i < 3: k(f"s_add_u32 m0, m0, 1024\nv_add_u32 v8, {8*1280}, v8")
    k(f"""
    LB_now2:
    v_bfe_u32 v8, v1, 2, 2                ; r
    v_and_b32 v9, 3, v1
    v_add_u32 v10, v5, v8
    v_lshlrev_b32 v10, 5, v10
    v_lshl_add_u32 v10, v9, 3, v10
    v_add_u32 v10, s26, v10
    v_lshl_add_u32 v11, v4, 2, v8
    v_lshlrev_b32 v11, 7, v11
    v_lshl_add_u32 v11, v9, 3, v11
    v_add_u32 v11, s26, v11
    v_lshlrev_b32 v12, 4, v1
    ; W1F destination
    s_mul_hi_u32 s36, s22, 0x55555556     ; ft/3 = j*4+w
    s_mul_i32 s37, s36, 3
    s_sub_u32 s37, s22, s37               ; idx
    s_add_u32 s38, s37, 2
    s_cmp_ge_u32 s38, 3
    s_cselect_b32 s39, 3, 0
    s_sub_u32 s38, s38, s39               ; (idx+2)%3
    s_bitcmp1_b32 s36, 0
    s_cselect_b32 s37, s38, s37           ; pass
    s_mul_i32 s36, s36, 60
    s_lshl_b32 s38, s21, 1
    s_add_u32 s38, s38, s37
    s_add_u32 s39, s21, 40
    s_cmp_lt_u32 s37, 2
    s_cselect_b32 s38, s38, s39
    s_cselect_b32 s40, 2, 1
    s_lshl_b32 s40, s40, 13
    s_add_u32 s36, s36, s38
    s_lshl_b32 s36, s36, 10
    s_add_u32 s36, s36, {WS_W1F}
    s_add_u32 s52, s48, s36
    s_addc_u32 s53, s49, 0
    v_mov_b32 v64, 0x3f803f80
    v_mov_b32 v65, 0x3f803f80
    v_mov_b32 v66, 0x3f803f80
    v_mov_b32 v67, 0x3f803f80
    """)
    def piece(i, first):
        b = 16 + 16 * i
        k(f"ds_read_b64_tr_b16 v[68:69], v10 offset:{1024*i}\nds_read_b64_tr_b16 v[70:71], v10 offset:{1024*i + 256}")
        for q in range(4): k(f"v_pk_add_f32 v[{b+8+2*q}:{b+9+2*q}], v[{b+8+2*q}:{b+9+2*q}], 1.0 op_sel_hi:[1,0]")
        for q in range(4): k(f"v_cvt_pk_bf16_f32 v{72+q}, v{b+8+2*q}, v{b+9+2*q}")
        for q in range(4): k(f"v_cvt_pk_bf16_f32 v{76+q}, v{b+2*q}, v{b+1+2*q}")
        for q in range(4): k(f"v_lshlrev_b32 v{b+8+2*q}, 16, v{72+q}\nv_and_b32 v{b+9+2*q}, 0xffff0000, v{72+q}")
        k("s_waitcnt lgkmcnt(0)")
        k(mf(84, 68, 76, first))
        for q in range(4): k(f"v_lshlrev_b32 v{b+2*q}, 16, v{68+q}\nv_and_b32 v{b+1+2*q}, 0xffff0000, v{68+q}")
        for q in range(4): k(f"v_pk_mul_f32 v[{b+2*q}:{b+1+2*q}], v[{b+2*q}:{b+1+2*q}], v[{b+8+2*q}:{b+9+2*q}]")
        for q in range(4): k(f"v_cvt_pk_bf16_f32 v{b+8+q}, v{b+2*q}, v{b+1+2*q}")
        k(mf(80, b + 8, 64, first))
        k(f"global_store_dwordx4 v12, v[{b+8}:{b+11}], s[52:53] {STORE_MOD}")
    k("s_waitcnt vmcnt(0)")
    piece(0, True)
    k("s_add_u32 s52, s52, s40\ns_addc_u32 s53, s53, 0")
    piece(1, False)
    k("s_cmp_lt_u32 s21, 4\ns_cbranch_scc0 LB_no3\ns_add_u32 s52, s52, s40\ns_addc_u32 s53, s53, 0")
    piece(2, False)
    k(f"""
    LB_no3:
    s_mov_b32 s42, {KORD & 0xffffffff}
    s_mov_b32 s43, {KORD >> 32}
    s_cmp_lt_u32 s21, 3
    s_cbranch_scc1 LB_now2b
    s_mul_hi_u32 s36, s30, 0x15555556     ; w = KS/12
    s_mul_i32 s37, s36, 12
    s_sub_u32 s37, s30, s37               ; ks
    s_lshl_b32 s37, s37, 2
    s_lshr_b64 s[38:39], s[42:43], s37
    s_and_b32 s37, s38, 15
    s_mul_i32 s36, s36, 60
    s_mul_i32 s37, s37, 5
    s_add_u32 s36, s36, s37
    s_lshl_b32 s31, s31, 2
    """)
    for i in range(4):
        for h in range(2): k(f"ds_read_b64_tr_b16 v[{16+4*i+2*h}:{17+4*i+2*h}], v11 offset:{4096 + 2048*h + 32*i}")
    for i in range(4):
        k(f"""
        s_add_u32 s38, s31, {i}
        s_mul_hi_u32 s39, s38, 0x33333334
        s_mul_i32 s39, s39, 235
        s_add_u32 s39, s39, s38
        s_add_u32 s39, s39, s36
        s_lshl_b32 s39, s39, 10
        s_add_u32 s39, s39, {WS_W2F}
        s_add_u32 s54, s48, s39
        s_addc_u32 s55, s49, 0
        s_waitcnt lgkmcnt({6 - 2*i})
        global_store_dwordx4 v12, v[{16+4*i}:{19+4*i}], s[54:55] {STORE_MOD}
        """)
    k(f"""
    LB_now2b:
    s_lshl_b32 s27, s21, 7
    v_lshl_add_u32 v13, v4, 4, s27
    s_nop 7
    ds_write_b128 v13, v[80:83] offset:4096
    ds_write_b128 v13, v[84:87] offset:4160
    s_waitcnt lgkmcnt(0)
    s_barrier
    s_cmp_lg_u32 s21, 0
    s_cbranch_scc1 LB_end
    v_and_b32 v13, 31, v1
    v_lshlrev_b32 v13, 2, v13
    """)
    for w in range(8): k(f"ds_read_b32 v{16+w}, v13 offset:{4096 + 128*w}")
    k(f"""
    v_bfe_u32 v14, v1, 4, 1
    v_mul_u32_u24 v14, 6144, v14
    v_and_b32 v15, 15, v1
    v_lshl_add_u32 v14, v15, 2, v14
    s_lshl_b32 s27, s22, 6
    s_add_u32 s27, s27, {WS_V12}
    v_add_u32 v14, s27, v14
    v_mov_b32 v28, 0
    v_mov_b32 v29, 0
    v_mov_b32 v30, 0
    v_mov_b32 v31, 0
    s_waitcnt lgkmcnt(0)
    v_add_f32 v16, v16, v17
    v_add_f32 v18, v18, v19
    v_add_f32 v20, v20, v21
    v_add_f32 v22, v22, v23
    v_add_f32 v16, v16, v18
    v_add_f32 v20, v20, v22
    v_add_f32 v16, v16, v20
    global_store_dword v14, v16, s[48:49]
    s_cmp_lt_u32 s20, 4
    s_cbranch_scc0 LB_end
    s_lshl_b32 s27, s20, 10
    s_add_u32 s27, s27, {WS_FLAGS}
    v_add_u32 v12, s27, v12
    global_store_dwordx4 v12, v[28:31], s[48:49]
    s_endpgm
    """)

def gen_B(opts={}):
    global STORE_MOD
    STORE_MOD = opts.get('bst', '')
    k = Asm('B')
    k(f"""
    v_lshrrev_b32 v1, 6, v0
    v_readfirstlane_b32 s21, v1
    v_and_b32 v1, 63, v0
    s_cmp_lt_u32 s2, {NCONV}
    s_cbranch_scc1 LB_conv
    s_sub_u32 s20, s2, {NCONV}
    s_cmp_lt_u32 s20, {NSIDE}
    s_cbranch_scc1 LB_side
    LB_end:
    s_endpgm
    LB_conv:
    """)
    gen_conv(k)
    k("LB_side:")
    gen_side(k)
    return k.finish()

if __name__ == '__main__':
    print(CHS, OU, B_LDS)
    print(gen_B())
```

```python
from asmlib import *
from layout import *

C_GRID = 256
RED = 81920
STAT = RED + 61440
C_LDS = STAT + 1280
vL16, vL8 = 2, 3
XA = 4
ST = 16
V12 = 24
ACA, ACB = 48, 80
BF = 96
TMP = 144
PKD = 176
AC2 = 24; RING = 104; NRK = 8; GB = 232

def mf(acc, a, b, first):
    c = '0' if first else f'v[{acc}:{acc+3}]'
    return f"v_mfma_f32_16x16x32_bf16 v[{acc}:{acc+3}], {a}, v[{b}:{b+3}], {c}"

class Loader:
    def __init__(self, k): self.k = k; self.n1 = 0; self.n2 = 0
    def w1(self):
        n = self.n1; self.n1 += 1
        if n % 4 == 0: self.k(f"s_mov_b32 s28, {n * 1024}")
        self.k(f"buffer_load_dwordx4 a[{4*n}:{4*n+3}], v{vL16}, s[32:35], s28 offen offset:{(n % 4) * 1024}")
    def w2(self):
        n = self.n2; self.n2 += 1
        if n % 4 == 0: self.k(f"s_mov_b32 s29, {n * 1024}")
        self.k(f"buffer_load_dwordx4 a[{4*n}:{4*n+3}], v{vL16}, s[36:39], s29 offen offset:{(n % 4) * 1024}")
    def next(self, free):
        if self.n1 < 60: self.w1()
        elif self.n2 < min(free, 60): self.w2()

def breads(k, ks):
    b = BF + 16 * (ks % 3)
    for s in range(4):
        for h in range(2):
            k(f"ds_read_b64_tr_b16 v[{b+4*s+2*h}:{b+4*s+2*h+1}], v{XA + s + (4 if ks >= 10 else 0)} offset:{4096*(ks % 10) + 1024*h}")

def epilogue(k, acc, p, dst, dstep):
    v1, v2 = V12 + 8 * p, V12 + 8 * p + 4
    for s in range(4):
        for h in range(2):
            a = acc + 4 * s + 2 * h
            k(f"v_pk_fma_f32 v[{a}:{a+1}], v[{v1+2*h}:{v1+2*h+1}], v[{ST+2*s}:{ST+2*s+1}], v[{a}:{a+1}] op_sel_hi:[1,0,1] neg_lo:[1,0,0] neg_hi:[1,0,0]")
    for s in range(4):
        for h in range(2):
            a = acc + 4 * s + 2 * h
            k(f"v_pk_fma_f32 v[{a}:{a+1}], v[{a}:{a+1}], v[{ST+2*s}:{ST+2*s+1}], v[{v2+2*h}:{v2+2*h+1}] op_sel:[0,1,0] op_sel_hi:[1,1,1]")
    for i in range(16): k(f"v_exp_f32 v{TMP+i}, v{acc+i}")
    for i in range(8): k(f"v_pk_add_f32 v[{TMP+2*i}:{TMP+2*i+1}], v[{TMP+2*i}:{TMP+2*i+1}], 1.0 op_sel_hi:[1,0]")
    for i in range(16): k(f"v_rcp_f32 v{TMP+i}, v{TMP+i}")
    for i in range(8): k(f"v_pk_mul_f32 v[{acc+2*i}:{acc+2*i+1}], v[{acc+2*i}:{acc+2*i+1}], v[{TMP+2*i}:{TMP+2*i+1}]")
    for s in range(4):
        for h in range(2): k(f"v_cvt_pk_bf16_f32 v{dst + dstep*s + h}, v{acc+4*s+2*h}, v{acc+4*s+2*h+1}")

def poll(k, tag, level, first_wait):
    k(f"""
    s_waitcnt vmcnt({first_wait})
    v_cmp_gt_u32 vcc, {level}, v12
    s_cbranch_vccnz LC_spin{tag}
    LC_go{tag}:
    """)

def spin(k, tag, level):
    k(f"""
    LC_spin{tag}:
    s_mov_b32 s30, 100000
    LC_spinl{tag}:
    global_load_dword v12, v13, s[48:49] sc1
    s_waitcnt vmcnt(0)
    v_cmp_gt_u32 vcc, {level}, v12
    s_cbranch_vccz LC_go{tag}
    s_sub_u32 s30, s30, 1
    s_cmp_lg_u32 s30, 0
    s_cbranch_scc1 LC_spinl{tag}
    s_branch LC_go{tag}
    """)

def gen_C(opts={}):
    k = Asm('C')
    W2EARLY = int(opts.get('w2early', 40))
    DELAY = int(opts.get('pdelay', 12))
    REST1 = int(opts.get('rest1', 10))
    k(f"""
    s_cmp_ge_u32 s2, {C_GRID}
    s_cbranch_scc1 LC_end
    s_load_dwordx2 s[48:49], s[0:1], 128
    s_load_dwordx2 s[44:45], s[0:1], 112
    v_lshrrev_b32 v1, 6, v0
    v_readfirstlane_b32 s21, v1
    v_and_b32 v1, 63, v0
    s_and_b32 s24, s2, 7
    s_lshr_b32 s25, s2, 3
    s_lshr_b32 s22, s24, 1
    s_lshl_b32 s22, s22, 3
    s_lshr_b32 s26, s25, 2
    s_add_u32 s22, s22, s26               ; rb
    s_and_b32 s23, s24, 1
    s_lshl_b32 s23, s23, 2
    s_and_b32 s26, s25, 3
    s_add_u32 s23, s23, s26               ; j
    v_lshrrev_b32 v12, 3, v1
    v_and_b32 v13, 6, v12
    v_and_b32 v14, 7, v1
    v_xor_b32 v13, v13, v14
    v_lshlrev_b32 v12, 12, v12
    v_lshl_add_u32 v12, v13, 4, v12
    s_mul_i32 s26, s21, {160*4096}
    s_lshl_b32 s27, s22, 7
    s_add_u32 s26, s26, s27
    s_add_u32 s26, s26, {WS_X1}
    s_mul_i32 s27, s21, 20480
    s_mov_b32 m0, s27
    v_lshlrev_b32 v{vL16}, 4, v1
    v_lshlrev_b32 v{vL8}, 3, v1
    s_lshl_b32 s27, s23, 2
    s_add_u32 s27, s27, s21
    s_mul_i32 s27, s27, 61440
    s_waitcnt lgkmcnt(0)
    s_add_u32 s50, s48, s26
    s_addc_u32 s51, s49, 0
    """)
    for i in range(20):
        k(f"global_load_lds_dwordx4 v12, s[50:51]")
        if i < 19: k("s_add_u32 m0, m0, 1024\nv_add_u32 v12, 0x8000, v12")
    k(f"""
    s_add_u32 s32, s48, s27
    s_addc_u32 s33, s49, 0
    s_add_u32 s36, s32, {WS_W2F}
    s_addc_u32 s37, s33, 0
    s_add_u32 s32, s32, {WS_W1F}
    s_addc_u32 s33, s33, 0
    s_mov_b32 s34, 61440
    s_mov_b32 s35, 0x20000
    s_mov_b32 s38, 61440
    s_mov_b32 s39, 0x20000
    s_mul_i32 s26, s22, 196608
    s_add_u32 s26, s26, {WS_H}
    s_add_u32 s40, s48, s26
    s_addc_u32 s41, s49, 0
    s_mov_b32 s42, 196608
    s_mov_b32 s43, 0x20000
    s_mov_b32 s46, {L*D*2}
    s_mov_b32 s47, 0x20000
    v_lshrrev_b32 v14, 4, v1              ; G
    s_and_b32 s26, s21, 1
    s_mul_i32 s27, s21, 3
    s_add_u32 s27, s27, s26
    s_mul_i32 s30, s23, 12
    s_add_u32 s27, s27, s30
    s_lshl_b32 s27, s27, 6
    s_add_u32 s27, s27, {WS_V12}
    v_lshl_add_u32 v12, v14, 4, s27
    s_mul_i32 s26, s26, 192
    s_sub_u32 s26, 128, s26
    v_add_u32 v13, s26, v12
    s_add_u32 s50, s48, 6144
    s_addc_u32 s51, s49, 0
    global_load_dwordx4 v[{V12}:{V12+3}], v12, s[48:49]
    global_load_dwordx4 v[{V12+4}:{V12+7}], v12, s[50:51]
    global_load_dwordx4 v[{V12+8}:{V12+11}], v12, s[48:49] offset:64
    global_load_dwordx4 v[{V12+12}:{V12+15}], v12, s[50:51] offset:64
    global_load_dwordx4 v[{V12+16}:{V12+19}], v13, s[48:49]
    global_load_dwordx4 v[{V12+20}:{V12+23}], v13, s[50:51]
    """)
    ld = Loader(k)
    for i in range(37): ld.w1()
    k(f"""
    v_bfe_u32 v12, v1, 2, 2               ; r
    v_and_b32 v13, 1, v14                 ; G&1
    v_lshl_add_u32 v15, v13, 2, v12       ; 4(G&1)+r
    v_lshrrev_b32 v13, 1, v14
    v_lshl_add_u32 v13, v13, 4, v15
    v_lshlrev_b32 v13, 7, v13
    v_and_b32 v12, 1, v1
    v_lshl_add_u32 v13, v12, 3, v13
    v_bfe_u32 v12, v1, 1, 1
    v_lshl_add_u32 v13, v12, 4, v13
    v_and_b32 v15, 6, v15
    """)
    for s in range(4):
        k(f"""
        s_xor_b32 s26, s21, {s}
        s_lshl_b32 s26, s26, 1
        v_xor_b32 v12, s26, v15
        v_lshl_add_u32 v{XA+s}, v12, 4, v13
        v_add_u32 v{XA+4+s}, 40960, v{XA+s}
        """)
    k(f"""
    s_mov_b32 s31, 0x3f803f80
    v_mov_b32 v12, 0
    v_mov_b32 v13, 0
    v_mov_b32 v14, 0
    v_mov_b32 v15, 0
    s_waitcnt vmcnt(43)
    s_barrier
    AUTO
    """)
    breads(k, 0); breads(k, 1)
    for ks in range(20):
        if ks + 2 < 20: breads(k, ks + 2)
        else: pass
        ld.next(2 * ks); ld.next(2 * ks)
        b = BF + 16 * (ks % 3)
        for s in range(4):
            for p in range(2):
                n = 2 * ks + p
                k(mf(ACA + 16 * p + 4 * s, f"a[{4*n}:{4*n+3}]", b + 4 * s, ks == 0))
            k(f"v_dot2c_f32_bf16 v{12 + (s & 1)}, s31, v{b + s}")
            k(f"v_dot2c_f32_bf16 v{14 + (s & 1)}, v{b + s}, v{b + s}")
    breads(k, 0); breads(k, 1)
    k(f"""
    v_add_f32 v12, v12, v13
    v_add_f32 v14, v14, v15
    v_mov_b32 v13, v12
    v_mov_b32 v15, v14
    v_permlane32_swap_b32 v12, v13
    v_permlane32_swap_b32 v14, v15
    v_add_f32 v12, v12, v13
    v_add_f32 v14, v14, v15
    v_mov_b32 v13, v12
    v_mov_b32 v15, v14
    v_permlane16_swap_b32 v12, v13
    v_permlane16_swap_b32 v14, v15
    v_add_f32 v12, v12, v13
    v_add_f32 v14, v14, v15
    v_mul_f32 v12, {f2u(1/640)}, v12
    v_mul_f32 v14, {f2u(1/640)}, v14
    v_fma_f32 v14, -v12, v12, v14
    v_max_f32 v14, 0, v14
    v_cvt_pk_bf16_f32 v14, v14, v12
    v_and_b32 v{ST}, 0xffff0000, v14
    v_lshlrev_b32 v14, 16, v14
    v_add_f32 v14, {f2u(1e-5)}, v14
    v_cvt_pk_bf16_f32 v14, v14, v14
    v_lshlrev_b32 v14, 16, v14
    v_sqrt_f32 v14, v14
    v_and_b32 v13, 15, v1
    v_cvt_pk_bf16_f32 v14, v14, v14
    v_lshlrev_b32 v14, 16, v14
    v_rcp_f32 v14, v14
    v_lshlrev_b32 v13, 3, v13
    v_mul_f32 v{ST+1}, {LOG2E + 0x80000000}, v14
    s_lshl_b32 s26, s21, 7
    s_add_u32 s26, s26, {STAT}
    v_add_u32 v12, s26, v13
    ds_write_b64 v12, v[{ST}:{ST+1}]
    """)
    for p in range(3):
        for h in range(2):
            a = V12 + 8 * p + 4 + 2 * h
            k(f"v_mul_f32 v{a}, {LOG2E + 0x80000000}, v{a}\nv_mul_f32 v{a+1}, {LOG2E + 0x80000000}, v{a+1}")
    k("s_waitcnt lgkmcnt(0)\ns_barrier")
    for s in range(1, 4):
        k(f"v_xor_b32 v13, {128*s}, v12\nds_read_b64 v[{ST+2*s}:{ST+2*s+1}], v13")
    k(f"""
    s_mul_i32 s26, s21, 3
    s_add_u32 s26, s26, 1
    s_lshr_b32 s26, s26, 1
    s_mul_i32 s27, s23, 6
    s_add_u32 s26, s26, s27
    s_lshl_b32 s26, s26, 12
    s_lshr_b32 s30, s21, 1
    s_mul_i32 s30, s30, 3
    s_add_u32 s30, s30, 1
    s_add_u32 s27, s27, s30
    s_lshl_b32 s27, s27, 12
    s_and_b32 s30, s21, 1
    s_lshl_b32 s30, s30, 9
    s_add_u32 s27, s27, s30
    """)
    for s in range(4):
        k(f"s_xor_b32 s30, s21, {s}\ns_lshl_b32 s30, s30, 10\ns_add_u32 s{52+s}, s30, s26\ns_add_u32 s{56+s}, s30, s27\ns_mov_b32 s{60+s}, s30")
    epilogue(k, ACA, 0, PKD, 4)
    for i in range(4): ld.next(W2EARLY)
    epilogue(k, ACA + 16, 1, PKD + 2, 4)
    for s in range(4): k(f"buffer_store_dwordx4 v[{PKD+4*s}:{PKD+4*s+3}], v{vL16}, s[40:43], s{52+s} offen sc1")
    after_pair = 0
    for ks in range(20):
        if ks + 2 < 20: breads(k, ks + 2)
        n0 = ld.n2; ld.next(W2EARLY); after_pair += ld.n2 - n0
        b = BF + 16 * (ks % 3)
        n = 40 + ks
        for s in range(4): k(mf(ACB + 4 * s, f"a[{4*n}:{4*n+3}]", b + 4 * s, ks == 0))
    epilogue(k, ACB, 2, PKD, 2)
    for s in range(4): k(f"buffer_store_dwordx2 v[{PKD+2*s}:{PKD+2*s+1}], v{vL8}, s[40:43], s{56+s} offen sc1")
    k("MANUAL")
    k(f"""
    s_lshl_b32 s26, s22, 7
    s_add_u32 s26, s26, {WS_FLAGS}
    s_lshl_b32 s27, s23, 4
    s_lshl_b32 s30, s21, 2
    s_add_u32 s27, s27, s30
    s_add_u32 s27, s27, s26
    v_mov_b32 v14, s27
    s_lshl_b32 s30, s21, 5
    s_add_u32 s26, s26, s30
    v_and_b32 v13, 7, v1
    v_lshl_add_u32 v13, v13, 2, s26
    v_mov_b32 v15, 1
    v_mov_b32 v16, 2
    s_waitcnt vmcnt({after_pair + 4})
    s_mov_b64 exec, 1
    global_store_dword v14, v15, s[48:49] sc1
    s_mov_b64 exec, -1
    """)
    k(f"""
    v_lshrrev_b32 v17, 4, v1
    s_mul_i32 s26, s23, 320
    s_add_u32 s26, s26, 12800
    v_lshl_add_u32 v17, v17, 4, s26
    """)
    for s in range(4): k(f"v_add_u32 v{XA+s}, s{60+s}, v{vL16}\nv_add_u32 v{XA+4+s}, s{60+s}, v{vL8}")
    k(f"s_mul_i32 s52, s21, {12*4096}")
    k(f"s_waitcnt vmcnt({DELAY})")
    k(f"global_load_dword v12, v13, s[48:49] sc1")
    for dt in range(5): k(f"global_load_dwordx4 v[{GB+4*dt}:{GB+4*dt+3}], v17, s[48:49] offset:{64*dt}")
    n0 = ld.n2
    while ld.n2 < min(60, W2EARLY + REST1): ld.w2()
    younger = 5 + ld.n2 - n0
    k(f"""
    s_waitcnt vmcnt({younger})
    s_mov_b64 exec, 1
    global_store_dword v14, v16, s[48:49] sc1
    s_mov_b64 exec, -1
    """)
    poll(k, 1, 1, younger + 1)
    def hload(i):
        ks = KSEQ[i]; r = RING + 16 * (i % NRK)
        k(f"s_add_u32 s53, s52, {ks * 4096}")
        for s in range(4):
            if i < 8: k(f"buffer_load_dwordx4 v[{r+4*s}:{r+4*s+3}], v{XA+s}, s[40:43], s53 offen sc1")
            else:
                k(f"buffer_load_dwordx2 v[{r+4*s}:{r+4*s+1}], v{XA+4+s}, s[40:43], s53 offen sc1")
                k(f"buffer_load_dwordx2 v[{r+4*s+2}:{r+4*s+3}], v{XA+4+s}, s[40:43], s53 offen offset:512 sc1")
    def gemm2(i):
        r = RING + 16 * (i % NRK)
        for dt in range(5):
            for s in range(4):
                m = 5 * i + dt
                k(mf(AC2 + 20 * s + 4 * dt, f"a[{4*m}:{4*m+3}]", r + 4 * s, i == 0))
    for i in range(4): hload(i)
    k(f"global_load_dword v12, v13, s[48:49] sc1")
    for i in range(4, 8): hload(i)
    n0 = ld.n2
    while ld.n2 < 60: ld.w2()
    younger = 16 + ld.n2 - n0
    k("AUTO")
    for i in range(2): gemm2(i)
    k("MANUAL")
    poll(k, 2, 2, younger)
    k("AUTO")
    hload(8); hload(9)
    gemm2(2); hload(10)
    gemm2(3); hload(11)
    k(f"""
    s_lshl_b32 s26, s21, 1
    v_lshrrev_b32 v14, 4, v1              ; G
    v_bfe_u32 v15, v1, 2, 2
    v_lshl_add_u32 v15, v14, 2, v15       ; 4G + r
    v_and_b32 v16, 6, v15
    v_xor_b32 v16, s26, v16
    v_bfe_u32 v17, v1, 1, 1
    v_add_u32 v16, v16, v17
    v_lshlrev_b32 v16, 4, v16
    v_lshl_add_u32 v16, v15, 7, v16
    v_and_b32 v17, 1, v1
    v_lshl_add_u32 v16, v17, 3, v16
    s_mul_i32 s26, s23, {80*128}
    v_add_u32 v16, s26, v16
    s_mul_i32 s54, s21, 15360
    s_add_u32 s54, s54, {RED}
    v_and_b32 v17, 15, v1
    v_mul_u32_u24 v17, 176, v17
    v_lshl_add_u32 v17, v14, 3, v17
    v_add_u32 v17, s54, v17
    v_add_u32 v18, s54, v{vL16}
    s_lshr_b32 s26, s22, 3
    s_lshl_b32 s26, s26, 9
    s_and_b32 s27, s22, 1
    s_lshl_b32 s27, s27, 7
    s_add_u32 s26, s26, s27
    s_bfe_u32 s27, s22, 0x20001
    s_lshl_b32 s27, s27, 2
    s_add_u32 s26, s26, s27
    s_lshl_b32 s27, s21, 5
    s_add_u32 s26, s26, s27
    s_mul_i32 s26, s26, 1280
    s_mul_i32 s27, s23, 160
    s_add_u32 s55, s26, s27
    """)
    for i in range(4, 12): gemm2(i)
    for s in range(1, 4):
        k(f"s_xor_b32 s26, s21, {s}\ns_mul_i32 s26, s26, 15360\ns_add_u32 s26, s26, {RED + 5120*(s-1)}\nv_add_u32 v12, s26, v{vL16}")
        for dt in range(5): k(f"ds_write_b128 v12, v[{AC2+20*s+4*dt}:{AC2+20*s+4*dt+3}] offset:{1024*dt}")
    for i in range(3):
        k(f"""
        v_add_u32 v12, {64*i}, v1
        v_mul_u32_u24 v13, 6554, v12
        v_lshrrev_b32 v13, 16, v13            ; row
        v_mul_u32_u24 v14, 10, v13
        v_sub_u32 v12, v12, v14               ; col
        v_mul_u32_u24 v14, 176, v13
        v_lshl_add_u32 v14, v12, 4, v14
        v_add_u32 v{19+i}, s54, v14
        v_bfe_u32 v14, v13, 2, 1
        v_lshlrev_b32 v14, 8, v14
        v_bfe_u32 v15, v13, 3, 1
        v_lshl_add_u32 v14, v15, 4, v14
        v_and_b32 v15, 3, v13
        v_add_u32 v14, v14, v15
        v_mul_u32_u24 v14, 1280, v14
        v_lshl_add_u32 v{XA+i}, v12, 4, v14
        """)
    k(f"""
    v_lshrrev_b32 v13, 5, v1
    v_lshlrev_b32 v13, 30, v13
    v_add_u32 v{XA+2}, v{XA+2}, v13
    """)
    for q in range(10): k(f"v_mul_f32 v{GB+2*q}, {LN2 + 0x80000000}, v{GB+2*q}\nv_mul_f32 v{GB+2*q+1}, {LN2 + 0x80000000}, v{GB+2*q+1}")
    for dt in range(5): k(f"ds_read_b64_tr_b16 v[{RING+60+2*dt}:{RING+61+2*dt}], v16 offset:{2048*dt}")
    k("s_waitcnt lgkmcnt(0)\ns_barrier")
    for s in range(3):
        for dt in range(5): k(f"ds_read_b128 v[{RING+20*s+4*dt}:{RING+20*s+4*dt+3}], v18 offset:{5120*s + 1024*dt}")
    U = RING + 72
    for dt in range(5):
        for h in range(2):
            k(f"v_lshlrev_b32 v{U+4*dt+2*h}, 16, v{RING+60+2*dt+h}\nv_and_b32 v{U+4*dt+2*h+1}, 0xffff0000, v{RING+60+2*dt+h}")
    for s in range(3):
        for q in range(10): k(f"v_pk_add_f32 v[{AC2+2*q}:{AC2+2*q+1}], v[{AC2+2*q}:{AC2+2*q+1}], v[{RING+20*s+2*q}:{RING+20*s+2*q+1}]")
    for q in range(10): k(f"v_pk_fma_f32 v[{AC2+2*q}:{AC2+2*q+1}], v[{AC2+2*q}:{AC2+2*q+1}], v[{GB+2*q}:{GB+2*q+1}], v[{U+2*q}:{U+2*q+1}]")
    for dt in range(5):
        k(f"v_cvt_pk_bf16_f32 v{U+2*dt}, v{AC2+4*dt}, v{AC2+4*dt+1}\nv_cvt_pk_bf16_f32 v{U+2*dt+1}, v{AC2+4*dt+2}, v{AC2+4*dt+3}")
        k(f"ds_write_b64 v17, v[{U+2*dt}:{U+2*dt+1}] offset:{32*dt}")
    for i in range(3): k(f"ds_read_b128 v[{RING+4*i}:{RING+4*i+3}], v{19+i}")
    for i in range(3): k(f"buffer_store_dwordx4 v[{RING+4*i}:{RING+4*i+3}], v{XA+i}, s[44:47], s55 offen")
    k("MANUAL\nLC_end:\ns_endpgm")
    spin(k, 1, 1); spin(k, 2, 2)
    return k.finish()

if __name__ == '__main__':
    print(gen_C())
```

```python
L, D, N, F = 2048, 640, 192, 1536
WS_MOD   = 0x0
WS_V12   = 0x4000
WS_FLAGS = 0x8000
WS_NT    = 0x100000
WS_UT    = 0x400000
WS_TAPS  = 0x700000
WS_X1    = 0xA00000
WS_W1F   = 0xD00000
WS_W2F   = 0xF00000
WS_H     = 0x1100000
WS_END   = 0x1800000
BA, BC, B5A, B5B, B3A, B3B, B7, B9 = 15, 559, 591, 639, 687, 735, 783, 863
MSET = [0,1,2,3,4,5,6,7, 256,256,258,260,260,260,262,264, 512,512,512,516,516,516,520,520, 768,1024,1536,2048,772,1280,1792,1024]
LOG2E = 0x3fb8aa3b; LOG2E_LO = 0x32a57060; LN2 = 0x3f317218; INV2PI = 0x3e22f983
import struct
def f2u(x): return struct.unpack('<I', struct.pack('<f', x))[0]

KSEQ = [0, 2, 3, 5, 6, 8, 9, 11, 1, 4, 7, 10]
KORD = sum(KSEQ.index(ks) << (4 * ks) for ks in range(12))
```

```python
import sys, importlib
from asmlib import *
import kA
REF = 'adaLN_cond__ssm_conv_s4__dense_activation_silu__prompt.s.ref'
def build(kernels):
    hdr = open(REF).read().split('; Override launch')[0]
    s = hdr
    for (n, grid, block, lds, vg, ag, body) in kernels:
        s += f"; @launch kernel={n} grid=({grid},1,1) block=({block},1,1) lds={lds}\n"
    s += '.amdgcn_target "amdgcn-amd-amdhsa--gfx950"\n.text\n'
    for (n, grid, block, lds, vg, ag, body) in kernels: s += kernel_text(n, body)
    s += '.section .rodata,"a"\n'
    for (n, grid, block, lds, vg, ag, body) in kernels: s += descriptor(n, vg, ag)
    return s
def main():
    out = sys.argv[1]
    opts = dict(a.split('=') for a in sys.argv[2:])
    stages = opts.get('stages', 'ABC')
    ks = []
    if 'A' in stages: ks.append(('pre_kernel', kA.A_GRID, 256, kA.A_LDS, 128, 0, kA.gen_A(opts.get('order', 'KLM'))))
    if 'B' in stages:
        import kB
        ks.append(('conv_kernel', kB.B_GRID, 512, kB.B_LDS, kB.B_VGPR, 0, kB.gen_B(opts)))
    if 'C' in stages:
        import kC
        ks.append(('mlp_kernel', kC.C_GRID, 256, kC.C_LDS, 256, 256, kC.gen_C(opts)))
    open(out, 'w').write(build(ks))
main()
```

```python
import re

REG_RE = re.compile(r'(?<![\w.])([vas])(?:(\d+)|\[(\d+):(\d+)\])(?![\w])')
TRANS = ('v_exp_f32', 'v_log_f32', 'v_rcp_f32', 'v_rsq_f32', 'v_sqrt_f32', 'v_sin_f32', 'v_cos_f32', 'v_rcp_iflag_f32')

def regs_of(tok):
    out = []
    for m in REG_RE.finditer(tok):
        k = m.group(1)
        if m.group(2) is not None: out.append((k, int(m.group(2))))
        else: out += [(k, i) for i in range(int(m.group(3)), int(m.group(4)) + 1)]
    if re.search(r'\bvcc\b', tok): out += [('s', 'vcc')]
    if re.search(r'\bexec\b', tok): out += [('s', 'exec')]
    if re.search(r'\bm0\b', tok): out += [('s', 'm0')]
    return out

class Ins:
    def __init__(self, text):
        self.text = text
        t = text.split(';')[0].strip()
        self.label = t.endswith(':')
        self.mn = '' if self.label or not t else t.split()[0]
        rest = t[len(self.mn):].strip() if self.mn else ''
        ops, depth, cur = [], 0, ''
        for ch in rest:
            if ch in '[(': depth += 1
            if ch in '])': depth -= 1
            if ch == ',' and depth == 0: ops.append(cur.strip()); cur = ''
            else: cur += ch
        if cur.strip(): ops.append(cur.strip())
        self.mods = ''
        if ops:
            last = ops[-1]
            m = re.match(r'^(\S+(?:\([^)]*\))?)\s*(.*)$', last)
            if not self.mn.startswith('s_waitcnt'):
                ops[-1], self.mods = m.group(1), m.group(2)
        self.ops = ops
        mn = self.mn
        base = re.sub(r'_(e32|e64|dpp|sdwa)$', '', mn)
        self.base = base
        self.cls = 'other'; self.w = []; self.r = []
        self.dpp = mn.endswith('_dpp') or 'row_' in self.mods or 'quad_perm' in self.mods or 'wave_' in self.mods
        R = lambda idxs: [x for i in idxs if i < len(ops) for x in regs_of(ops[i])]
        n = len(ops)
        if mn.startswith('v_mfma'):
            self.cls = 'mfma'; self.w = R([0]); self.r = R([1, 2, 3]); self.ab = R([1, 2]); self.c = R([3])
            self.passes = 8 if '32x32x16' in mn else 4 if '16x16x32' in mn else None
            assert self.passes, mn
        elif mn.startswith('v_'):
            self.cls = 'valu'; self.trans = base in TRANS
            if base.startswith('v_cmp'): self.w = R([0]); self.r = R(range(1, n))
            elif base in ('v_add_co_u32', 'v_sub_co_u32', 'v_addc_co_u32'): self.w = R([0, 1]); self.r = R(range(2, n))
            elif 'permlane' in base and 'swap' in base: self.w = R([0, 1]); self.r = R([0, 1])
            else:
                self.w = R([0]); self.r = R(range(1, n))
                if base in ('v_fmac_f32', 'v_dot2c_f32_bf16', 'v_pk_fmac_f16', 'v_writelane_b32') or self.dpp: self.r += R([0])
                if base == 'v_cndmask_b32' and n == 3: self.r += [('s', 'vcc')]
        elif mn.startswith('s_load') or mn.startswith('s_memtime') or mn.startswith('s_memrealtime') or mn.startswith('s_atomic'):
            self.cls = 'smem'; self.w = R([0]); self.r = R(range(1, n))
        elif mn.startswith('s_'):
            self.cls = 'salu'
            if mn.startswith(('s_cmp', 's_cbranch', 's_branch', 's_waitcnt', 's_nop', 's_barrier', 's_endpgm', 's_setprio', 's_sleep', 's_bitcmp')):
                self.r = R(range(n))
            else:
                self.w = R([0]); self.r = R(range(1, n))
                if 'saveexec' in mn: self.w += [('s', 'exec')]; self.r += [('s', 'exec')]
                if mn in ('s_addk_i32', 's_mulk_i32'): self.r += R([0])
        elif mn.startswith('ds_'):
            self.cls = 'ds'
            if mn.startswith(('ds_read', 'ds_bpermute', 'ds_permute', 'ds_swizzle')) or '_rtn' in mn: self.w = R([0]); self.r = R(range(1, n))
            else: self.r = R(range(n))
        elif mn.startswith(('buffer_', 'global_')):
            self.cls = 'vmem'
            self.lds = ' lds' in (' ' + self.mods) or '_lds_' in mn
            self.store = 'store' in mn or ('atomic' in mn and 'sc0' not in self.mods)
            if self.lds: self.r = R(range(n)) + [('s', 'm0')]
            elif self.store: self.r = R(range(n))
            else:
                self.w = R([0]); self.r = R(range(1, n))
                if 'd16' in mn: self.r += R([0])
            self.wide = self.store and ('x4' in mn or 'x3' in mn)
            if self.wide: self.data = R([0]) if mn.startswith('buffer_') else R([1])

_old_init = Ins.__init__
def _init(self, text):
    _old_init(self, text)
    for kind, name in re.findall(r'@([wr]):(\w+)', text):
        (self.w if kind == 'w' else self.r).append(('x', name))
Ins.__init__ = _init

def nstates(ins):
    if ins.label or not ins.mn: return 0
    if ins.mn == 's_nop': return int(ins.ops[0], 0) + 1
    return 1

def need(p, c):
    n = 0
    pw, pr, cw, cr = set(p.w), set(p.r), set(c.w), set(c.r)
    vec = lambda s: {x for x in s if x[0] in 'va'}
    sca = lambda s: {x for x in s if x[0] == 's'}
    if p.cls == 'valu':
        if c.cls == 'mfma' and vec(pw) & cr: n = max(n, 2)
        if c.cls == 'mfma' and ('s', 'exec') in pw: n = max(n, 4)
        if p.trans and c.cls == 'valu' and vec(pw) & cr: n = max(n, 1)
        if sca(pw) & cr:
            if c.cls == 'valu': n = max(n, 4 if c.base in ('v_readlane_b32', 'v_writelane_b32') else 2)
            if c.cls == 'vmem': n = max(n, 5)
            if c.cls in ('salu', 'smem'): n = max(n, 1)
        if c.cls == 'valu' and vec(pw) & cr:
            if c.base in ('v_readlane_b32', 'v_readfirstlane_b32'): n = max(n, 1)
            if c.dpp or 'permlane' in c.base: n = max(n, 2)
        if ('s', 'exec') in pw and c.cls == 'valu':
            if c.dpp: n = max(n, 5)
            if c.base in ('v_readlane_b32', 'v_readfirstlane_b32', 'v_writelane_b32') or 'permlane' in c.base: n = max(n, 4)
    if p.cls == 'valu' and p.base.startswith('v_dot') and c.cls in ('valu', 'mfma', 'vmem', 'ds') and pw & (cr | cw):
        same_acc = c.base == p.base and (set(regs_of(c.ops[1])) | set(regs_of(c.ops[2]))).isdisjoint(pw)
        if not same_acc: n = max(n, 3)
    if p.cls == 'mfma':
        big = {4: 8, 8: 12}[p.passes]
        if c.cls == 'mfma':
            if pw & set(c.ab): n = max(n, big)
            if pw & set(c.c) and not (p.w == c.c and p.passes == c.passes): n = max(n, {4: 6, 8: 10}[p.passes])
            elif pw & cw and not (p.w == c.c and p.passes == c.passes): n = max(n, big)
        elif c.cls in ('valu', 'vmem', 'ds'):
            if pw & (cr | cw): n = max(n, big)
            if c.cls == 'valu' and set(p.c) & cw: n = max(n, {4: 3, 8: 7}[p.passes])
    if p.cls == 'salu' and ('s', 'm0') in pw and c.cls == 'vmem' and c.lds: n = max(n, 1)
    if p.cls == 'vmem' and getattr(p, 'wide', False) and set(p.data) & cw: n = max(n, 2 if c.cls in ('valu', 'mfma') else 1)
    return n

STAMPS = False
WS_STAMP = 0x2000000
class Asm:
    def __init__(self, name):
        self.name = name; self.lines = []
    def stamp(self, i):
        if not STAMPS: return
        if i == 0:
            self("s_memrealtime s[100:101]\ns_waitcnt lgkmcnt(0)\ns_mov_b32 s87, s100")
            for j in range(1, 12): self(f"s_mov_b32 s{88+j}, 0")
        self(f"s_memtime s[100:101]\ns_waitcnt lgkmcnt(0)\ns_mov_b32 s{88+i}, s100")
    def end(self, kidx):
        if STAMPS:
            self(f"""
            s_waitcnt vmcnt(0) lgkmcnt(0)
            s_memtime s[100:101]
            s_memrealtime s[4:5]
            s_load_dwordx2 s[6:7], s[0:1], 128
            s_lshl_b32 s86, s2, 4
            s_add_u32 s86, s86, s21
            s_lshl_b32 s86, s86, 6
            s_add_u32 s86, s86, {WS_STAMP + (kidx << 21)}
            s_waitcnt lgkmcnt(0)
            s_mov_b64 exec, 1
            v_mov_b32 v0, s86
            v_mov_b32 v4, s87
            v_mov_b32 v5, s4
            v_mov_b32 v6, s100""")
            for j in range(12): self(f"v_mov_b32 v{8+j}, s{88+j}")
            self("""v_mov_b32 v7, 0x5717
            global_store_dwordx4 v0, v[4:7], s[6:7]
            global_store_dwordx4 v0, v[8:11], s[6:7] offset:16
            global_store_dwordx4 v0, v[12:15], s[6:7] offset:32
            global_store_dwordx4 v0, v[16:19], s[6:7] offset:48""")
        self("s_endpgm")
    def __call__(self, text):
        for l in text.split('\n'):
            l = l.strip()
            if l and not l.startswith(';'): self.lines.append(l)
    def autowait(self, ins):
        out, vm, lg, on = [], [], [], False
        for c in ins:
            if c.mn == 'AUTO': on = True; continue
            if c.mn == 'MANUAL': on = False; continue
            if c.label or not c.mn: out.append(c); continue
            if c.mn == 's_waitcnt':
                m = re.search(r'vmcnt\((\d+)\)', c.text)
                if m: k = int(m.group(1)); vm = vm[max(0, len(vm) - k):] if k else []
                m = re.search(r'lgkmcnt\((\d+)\)', c.text)
                if m:
                    k = int(m.group(1))
                    if k == 0: lg = []
                    elif not any(x[1] for x in lg): lg = lg[max(0, len(lg) - k):]
                out.append(c); continue
            if c.mn in ('s_endpgm', 's_branch'): vm, lg = [], []; out.append(c); continue
            if on:
                w = []
                for q, nm, same, cap in ((vm, 'vmcnt', 'vmem', 63), (lg, 'lgkmcnt', 'ds', 15)):
                    t = set(c.r) if c.cls == same else set(c.r) | set(c.w)
                    last = max([i for i, x in enumerate(q) if x[0] & t], default=-1)
                    if last >= 0:
                        n = len(q) - 1 - last
                        if q is lg and any(x[1] for x in q): n = 0
                        n = min(n, cap)
                        w.append(f'{nm}({n})')
                        del q[:len(q) - n]
                if w: out.append(Ins('s_waitcnt ' + ' '.join(w)))
            if c.cls == 'vmem': vm.append((set(c.w), False))
            elif c.cls == 'ds': lg.append((set(c.w), False))
            elif c.cls == 'smem': lg.append((set(c.w), True))
            out.append(c)
        return out
    def finish(self, check=True):
        ins = self.autowait([Ins(l) for l in self.lines])
        out = []
        for c in ins:
            if c.mn and c.mn != 's_nop':
                dist, req = 0, 0
                for p in reversed(out):
                    if dist >= 20: break
                    if p.mn:
                        k = need(p, c)
                        if k - dist > req: req = k - dist
                    dist += nstates(p)
                while req > 0:
                    k = min(req, 16); out.append(Ins(f's_nop {k-1}')); req -= k
            out.append(c)
        if check: self.check_counters(out)
        return '\n'.join(('' if i.label else '    ') + i.text for i in out) + '\n'
    def check_counters(self, ins):
        vm, lg = [], []
        for c in ins:
            if c.label or not c.mn: continue
            if c.mn == 's_waitcnt':
                t = c.text
                m = re.search(r'vmcnt\((\d+)\)', t)
                if m:
                    k = int(m.group(1)); assert k <= 63, t
                    vm = vm[len(vm) - k:] if k < len(vm) and k > 0 else ([] if k == 0 else vm)
                m = re.search(r'lgkmcnt\((\d+)\)', t)
                if m:
                    k = int(m.group(1)); assert k <= 15, t
                    if k == 0: lg = []
                    elif not any(x[2] for x in lg): lg = lg[len(lg) - k:] if k < len(lg) else lg
                continue
            if c.mn in ('s_endpgm', 's_branch'): vm, lg = [], []; continue
            touched = set(c.r) | set(c.w)
            for q in (vm, lg):
                for (rs, tx, _) in q:
                    if rs & touched and not (c.cls == 'vmem' and q is vm and not (rs & set(c.r))) and not (c.cls == 'ds' and q is lg and not (rs & set(c.r))):
                        raise SystemExit(f'[{self.name}] unwaited load: "{tx}" used by "{c.text}"')
            if c.cls == 'vmem': vm.append((set(c.w), c.text, False))
            elif c.cls == 'ds': lg.append((set(c.w), c.text, False))
            elif c.cls == 'smem': lg.append((set(c.w), c.text, True))

def kernel_text(name, body):
    return f".globl {name}\n.p2align 8\n.type {name},@function\n{name}:\n{body}"

def descriptor(name, vgpr, agpr=0, sgpr=None):
    sgpr = sgpr or (102 if STAMPS else 88)
    acc = (vgpr + 3) // 4 * 4
    nfv = acc + agpr if agpr else vgpr
    return f""".p2align 6
.amdhsa_kernel {name}
  .amdhsa_next_free_vgpr {nfv}
  .amdhsa_next_free_sgpr {sgpr}
  .amdhsa_accum_offset {acc}
  .amdhsa_group_segment_fixed_size 0
  .amdhsa_kernarg_size 136
  .amdhsa_user_sgpr_count 2
  .amdhsa_user_sgpr_kernarg_segment_ptr 1
  .amdhsa_system_sgpr_workgroup_id_x 1
.end_amdhsa_kernel
"""
```

```python
from asmlib import *
from layout import *

NK, NL, NM = 640, 64, 120
A_GRID = NK + NL + NM
A_LDS = 40960

def cmul(k, z, a, b, t):
    k(f"v_pk_mul_f32 v[{t}:{t+1}], v[{a}:{a+1}], v[{b}:{b+1}] op_sel_hi:[1,0]")
    return f"v_pk_fma_f32 v[{z}:{z+1}], v[{a}:{a+1}], v[{b}:{b+1}], v[{t}:{t+1}] op_sel:[1,1,0] op_sel_hi:[0,1,1] neg_lo:[1,0,0]"

def cmuls(k, lst, tmp):
    second = [cmul(k, z, a, b, tmp + 2 * i) for i, (z, a, b) in enumerate(lst)]
    for s in second: k(s)

def gen_kgen(k):
    k(f"""
    s_load_dwordx16 s[32:47], s[0:1], 8
    s_load_dwordx2 s[48:49], s[0:1], 128
    s_cmp_eq_u32 s21, 3
    s_cbranch_scc1 LA_end
    s_lshr_b32 s22, s20, 5
    s_lshl_b32 s22, s22, 5
    s_and_b32 s23, s20, 7
    s_lshl_b32 s23, s23, 2
    s_add_u32 s22, s22, s23
    s_bfe_u32 s23, s20, 0x20003
    s_add_u32 s22, s22, s23              ; d
    s_mul_i32 s24, s22, 384
    s_lshl_b32 s25, s21, 7
    s_add_u32 s24, s24, s25
    v_lshl_add_u32 v2, v1, 1, s24
    s_lshl_b32 s25, s22, 1
    v_mov_b32 v3, s25
    v_mov_b32 v4, 0
    v_mov_b32 v5, 0
    v_mov_b32 v6, 0
    v_mov_b32 v7, 0
    v_mov_b32 v8, 0
    v_mov_b32 v9, 0
    v_mov_b32 v10, 0
    v_mov_b32 v124, 0
    s_waitcnt lgkmcnt(0)
    global_load_short_d16_hi v10, v3, s[44:45]
    global_load_short_d16_hi v4, v2, s[32:33]
    global_load_short_d16_hi v5, v2, s[34:35]
    global_load_short_d16_hi v6, v2, s[36:37]
    global_load_short_d16_hi v7, v2, s[38:39]
    global_load_short_d16_hi v8, v2, s[40:41]
    global_load_short_d16_hi v9, v2, s[42:43]
    global_load_short_d16_hi v124, v3, s[46:47]
    """)
    k(f"""
    s_mul_i32 s26, s21, 10240
    s_movk_i32 s27, 144
    v_mad_u32_u24 v12, v1, s27, 0
    v_add_u32 v12, s26, v12
    v_bfe_u32 v14, v1, 2, 2               ; r
    v_lshrrev_b32 v15, 5, v1              ; hi
    v_lshlrev_b32 v14, 1, v14
    v_add_u32 v14, v14, v15
    v_mul_u32_u24 v14, 288, v14           ; (4r+2hi)*144
    v_bfe_u32 v16, v1, 4, 1
    v_lshlrev_b32 v16, 5, v16
    v_and_b32 v17, 3, v1
    v_lshlrev_b32 v17, 3, v17
    v_add3_u32 v13, v14, v16, v17
    v_add_u32 v13, s26, v13
    """)
    TB = 30720
    DUM = TB + 2 * 1010
    k(f"""
    s_cmp_lg_u32 s21, 0
    s_cbranch_scc1 LA_k1
    v_mov_b32 v100, 0
    v_mov_b32 v101, 0
    v_mov_b32 v102, 0
    v_mov_b32 v103, 0
    v_lshlrev_b32 v110, 4, v1
    ds_write_b128 v110, v[100:103] offset:{TB}
    ds_write_b128 v110, v[100:103] offset:{TB+1024}
    ds_write_b32 v110, v100 offset:{TB+2048}
    v_and_b32 v104, 1, v1                 ; odd
    v_bfe_u32 v105, v1, 1, 4              ; kappa'
    v_or_b32 v106, v104, v15
    v_mul_u32_u24 v107, 48, v104
    v_mul_u32_u24 v108, 96, v15
    v_add3_u32 v106, v106, v107, v108
    v_add_u32 v106, v106, v105
    v_lshlrev_b32 v106, 1, v106
    v_add_u32 v112, {TB + 2*(B5A - 1 + 1)}, v106
    v_mov_b32 v109, {DUM}
    v_cmp_eq_u32 vcc, 0, v105
    v_cndmask_b32 v113, v112, v109, vcc
    v_mul_u32_u24 v107, {B9 - 1 - B7}, v104
    v_lshlrev_b32 v108, 4, v15
    v_add_u32 v108, v108, v105
    v_sub_u32 v108, v108, v107
    v_lshlrev_b32 v108, 1, v108
    v_add_u32 v114, {TB + 2*(B9 - 1 + 1)}, v108
    v_mov_b32 v107, {TB + 2*(BC + 3 + 1)}
    v_cmp_eq_u32 vcc, 0, v1
    v_cndmask_b32 v115, v114, v107, vcc
    v_mov_b32 v107, {TB + 2*(BC + 4 + 1)}
    v_cndmask_b32 v116, v109, v107, vcc
    v_mov_b32 v107, {TB + 2*(B9 + 63 + 1)}
    v_cndmask_b32 v117, v109, v107, vcc
    v_mov_b32 v107, {TB + 2*(B5A + 31 + 1)}
    v_cmp_eq_u32 vcc, 32, v1
    v_cndmask_b32 v117, v117, v107, vcc
    v_and_b32 v107, 31, v1
    v_lshlrev_b32 v107, 4, v107
    v_lshl_add_u32 v118, v15, 3, v107                     ; 16n + 8hi
    v_and_b32 v107, 30, v1
    v_cmp_eq_u32 vcc, 0, v107
    v_mov_b32 v107, {2*1016 - 2*(BA+1+512)}
    v_cndmask_b32 v119, v107, v118, vcc
    LA_k1:
    """)
    AR, AI, BR, BI, CR, CI, DT, DS = 4, 5, 6, 7, 8, 9, 10, 124
    TMP = 14
    LR = 22
    k(f"""
    s_mov_b32 s28, {LOG2E}
    s_mov_b32 s29, {INV2PI}
    s_waitcnt vmcnt(7)
    v_mul_f32 v14, s28, v{DT}
    v_fma_f32 v15, v{DT}, s28, -v14
    v_fmac_f32 v15, {LOG2E_LO}, v{DT}
    v_exp_f32 v14, v14
    v_mul_f32 v15, {LN2}, v15
    v_fmac_f32 v14, v14, v15
    v_cvt_pk_bf16_f32 v14, v14, v14
    v_lshlrev_b32 v{DT}, 16, v14
    s_waitcnt vmcnt(5)
    v_mul_f32 v{LR}, v{AR}, v{DT}
    v_mul_f32 v{LR+1}, v{AI}, v{DT}
    v_mul_f32 v{LR}, s28, v{LR}
    v_mul_f32 v{LR+1}, s29, v{LR+1}
    """)
    k.stamp(1)
    W = {1: 24, 8: 26, 256: 28, 2: 30, 3: 32, 4: 34, 5: 36, 6: 38, 7: 40, 16: 42, 32: 44,
         258: 46, 260: 48, 262: 50, 264: 52, 512: 54}
    for i, (p, r) in enumerate(((1, 24), (8, 26), (256, 28))):
        t = TMP + 2 * i
        if p == 1: k(f"v_fract_f32 v{t+1}, v{LR+1}\nv_exp_f32 v{t}, v{LR}")
        else:
            k(f"s_mov_b32 s30, {f2u(float(p))}\nv_mul_f32 v{t}, s30, v{LR}\nv_mul_f32 v{t+1}, s30, v{LR+1}\nv_exp_f32 v{t}, v{t}\nv_fract_f32 v{t+1}, v{t+1}")
        k(f"v_cos_f32 v{r}, v{t+1}\nv_sin_f32 v{r+1}, v{t+1}")
    for i, (p, r) in enumerate(((1, 24), (8, 26), (256, 28))):
        t = TMP + 2 * i
        k(f"v_pk_mul_f32 v[{r}:{r+1}], v[{r}:{r+1}], v[{t}:{t+1}] op_sel_hi:[1,0]")
    Z = [56 + 2 * i for i in range(8)]
    k("s_waitcnt vmcnt(1)")
    cmuls(k, [(Z[0], CR, BR), (W[2], W[1], W[1]), (W[16], W[8], W[8]), (W[512], W[256], W[256])], TMP)
    k(f"v_pk_mul_f32 v[{Z[0]}:{Z[0]+1}], v[{Z[0]}:{Z[0]+1}], v[{DT}:{DT+1}] op_sel_hi:[1,0]")
    cmuls(k, [(W[3], W[2], W[1]), (W[4], W[2], W[2]), (W[32], W[16], W[16]), (W[258], W[256], W[2])], TMP)
    cmuls(k, [(Z[1], Z[0], W[8]), (Z[2], Z[0], W[16]), (W[5], W[4], W[1]), (W[6], W[4], W[2])], TMP)
    cmuls(k, [(Z[3], Z[1], W[16]), (W[7], W[4], W[3]), (W[260], W[256], W[4]), (W[264], W[256], W[8])], TMP)
    IM = 72
    state = {'g': 0}
    def put(grp, vals, neg):
        state['g'] += 1
        for i in range(4):
            a, b = vals[2 * i], vals[2 * i + 1]
            ra = '1.0' if a is None else f'v{a}'
            k(f"v_cvt_pk_bf16_f32 v{PK[state['g'] & 1] + i}, {ra}, v{b}")
        k(f"ds_write_b128 v12, v[{PK[state['g'] & 1]}:{PK[state['g'] & 1]+3}] offset:{16*grp}")
        for i in range(4):
            a, b = vals[2 * i], vals[2 * i + 1]
            s = '-' if neg else ''
            ia = '0' if a is None else f'{s}v{a+1}'
            k(f"v_cvt_pk_bf16_f32 v{IM + 4*grp + i}, {ia}, {s}v{b+1}")
    PK = [4, 120]
    cmuls(k, [(W[262], W[256], W[6]), (Z[4], Z[0], W[32]), (Z[5], Z[1], W[32]), (Z[6], Z[2], W[32])], TMP)
    put(0, [None, W[1], W[2], W[3], W[4], W[5], W[6], W[7]], True)
    X = {516: W[1], 520: W[3], 768: W[5], 1024: W[7], 772: W[2], 1280: W[6]}
    cmuls(k, [(Z[7], Z[3], W[32]), (X[516], W[512], W[4]), (X[520], W[512], W[8]), (X[768], W[512], W[256])], TMP)
    put(1, [W[256], W[256], W[258], W[260], W[260], W[260], W[262], W[264]], True)
    put(4, Z, False)
    X.update({1536: W[258], 1792: W[260], 2048: W[262]})
    cmuls(k, [(Z[0], Z[4], W[32]), (Z[1], Z[5], W[32]), (Z[2], Z[6], W[32]), (Z[3], Z[7], W[32])], TMP)
    cmuls(k, [(X[1024], W[512], W[512]), (X[772], X[768], W[4]), (Z[4], Z[0], W[32]), (Z[5], Z[1], W[32])], TMP)
    put(2, [W[512], W[512], W[512], X[516], X[516], X[516], X[520], X[520]], True)
    cmuls(k, [(Z[6], Z[2], W[32]), (Z[7], Z[3], W[32]), (X[1280], X[1024], W[256]), (X[1536], X[1024], W[512])], TMP)
    cmuls(k, [(X[1792], X[1024], X[768]), (X[2048], X[1024], X[1024])], TMP)
    put(5, Z, False)
    cmuls(k, [(Z[0], Z[4], W[32]), (Z[1], Z[5], W[32]), (Z[2], Z[6], W[32]), (Z[3], Z[7], W[32])], TMP)
    put(3, [X[768], X[1024], X[1536], X[2048], X[772], X[1280], X[1792], X[1024]], True)
    cmuls(k, [(Z[4], Z[0], W[32]), (Z[5], Z[1], W[32]), (Z[6], Z[2], W[32]), (Z[7], Z[3], W[32])], TMP)
    put(6, Z, False)
    cmuls(k, [(Z[0], Z[4], W[32]), (Z[1], Z[5], W[32]), (Z[2], Z[6], W[32]), (Z[3], Z[7], W[32])], TMP)
    cmuls(k, [(Z[4], Z[0], W[32]), (Z[5], Z[1], W[32]), (Z[6], Z[2], W[32]), (Z[7], Z[3], W[32])], TMP)
    put(7, Z, False)
    k.stamp(2)
    FR, ACC = 24, 56
    def reads():
        for s in range(4):
            for tb in range(2):
                for h in range(2):
                    r = FR + 8 * s + 4 * tb + 2 * h
                    k(f"ds_read_b64_tr_b16 v[{r}:{r+1}], v13 offset:{(16*s + h)*144 + 64*tb}")
    def mfmas(first, pend):
        for s in range(4):
            k(f"s_waitcnt lgkmcnt({min(15, pend + 12 - 4*s)})")
            c = '0' if first and s == 0 else f'v[{ACC}:{ACC+15}]'
            k(f"v_mfma_f32_32x32x16_bf16 v[{ACC}:{ACC+15}], v[{FR+8*s}:{FR+8*s+3}], v[{FR+8*s+4}:{FR+8*s+7}], {c}")
    reads()
    mfmas(True, 0)
    for g in range(8): k(f"ds_write_b128 v12, v[{IM+4*g}:{IM+4*g+3}] offset:{16*g}")
    reads()
    mfmas(False, 0)
    k(f"""
    v_lshlrev_b32 v14, 4, v1
    s_cmp_eq_u32 s21, 0
    s_cbranch_scc1 LA_k2
    v_add_u32 v14, s26, v14
    """)
    for q in range(4): k(f"ds_write_b128 v14, v[{ACC+4*q}:{ACC+4*q+3}] offset:{1024*q}")
    k("s_waitcnt lgkmcnt(0)")
    k.stamp(3)
    k("s_barrier")
    k.end(0)
    k("LA_k2:")
    k.stamp(3)
    k("s_barrier")
    k.stamp(4)
    for w in range(2):
        for q in range(4): k(f"ds_read_b128 v[{24+16*w+4*q}:{27+16*w+4*q}], v14 offset:{10240*(w+1) + 1024*q}")
    k(f"""
    v_cmp_eq_u32 vcc, 0, v1
    s_waitcnt vmcnt(0)
    v_cndmask_b32 v{DS}, 0, v{DS}, vcc
    v_cmp_ne_u32 vcc, 33, v1
    s_mul_i32 s24, s22, 4096
    s_add_u32 s48, s48, {WS_TAPS}
    s_addc_u32 s49, s49, 0
    s_add_u32 s48, s48, s24
    s_addc_u32 s49, s49, 0
    s_waitcnt lgkmcnt(4)
    """)
    for i in range(8): k(f"v_pk_add_f32 v[{ACC+2*i}:{ACC+2*i+1}], v[{ACC+2*i}:{ACC+2*i+1}], v[{24+2*i}:{25+2*i}]")
    k("s_waitcnt lgkmcnt(0)")
    for i in range(8): k(f"v_pk_add_f32 v[{ACC+2*i}:{ACC+2*i+1}], v[{ACC+2*i}:{ACC+2*i+1}], v[{40+2*i}:{41+2*i}]")
    P = TB + 2 * (BA + 1)
    k(f"""
    v_add_f32 v{ACC}, v{ACC}, v{DS}
    v_cvt_pk_bf16_f32 v24, v{ACC}, v{ACC+1}
    v_cvt_pk_bf16_f32 v25, v{ACC+2}, v{ACC+3}
    v_cvt_pk_bf16_f32 v26, v{ACC+4}, v{ACC+5}
    v_cvt_pk_bf16_f32 v27, v{ACC+6}, v{ACC+7}
    v_cvt_pk_bf16_f32 v28, v{ACC+8}, v{ACC+9}
    v_cvt_pk_bf16_f32 v29, v{ACC+10}, v{ACC+11}
    v_cvt_pk_bf16_f32 v30, v{ACC+8}, v{ACC+12}
    v_cvt_pk_bf16_f32 v31, v{ACC+13}, v{ACC+14}
    v_cvt_pk_bf16_f32 v32, v{ACC+15}, v{ACC+15}
    v_cndmask_b32 v29, 0, v29, vcc
    ds_write_b64 v118, v[24:25] offset:{P}
    ds_write_b64 v118, v[26:27] offset:{P + 512}
    ds_write_b64 v119, v[28:29] offset:{P + 1024}
    ds_write_b16 v113, v30
    ds_write_b16_d16_hi v112, v30 offset:32
    ds_write_b16 v115, v31
    ds_write_b16 v116, v31
    ds_write_b16_d16_hi v114, v31 offset:64
    ds_write_b16 v117, v32
    ds_read_b128 v[24:27], v14 offset:{TB}
    ds_read_b32 v28, v14 offset:{TB + 16}
    ds_read_b128 v[32:35], v14 offset:{TB + 1024}
    ds_read_b32 v36, v14 offset:{TB + 1024 + 16}
    s_waitcnt lgkmcnt(2)
    global_store_dwordx4 v14, v[24:27], s[48:49]
    v_alignbit_b32 v40, v25, v24, 16
    v_alignbit_b32 v41, v26, v25, 16
    v_alignbit_b32 v42, v27, v26, 16
    v_alignbit_b32 v43, v28, v27, 16
    global_store_dwordx4 v14, v[40:43], s[48:49] offset:2048
    s_waitcnt lgkmcnt(0)
    global_store_dwordx4 v14, v[32:35], s[48:49] offset:1024
    v_alignbit_b32 v44, v33, v32, 16
    v_alignbit_b32 v45, v34, v33, 16
    v_alignbit_b32 v46, v35, v34, 16
    v_alignbit_b32 v47, v36, v35, 16
    global_store_dwordx4 v14, v[44:47], s[48:49] offset:3072
    """)
    k.stamp(5)
    k.end(0)

def gen_ln(k):
    k(f"""
    s_load_dwordx2 s[32:33], s[0:1], 0
    s_load_dwordx2 s[48:49], s[0:1], 128
    s_lshl_b32 s22, s20, 2
    s_add_u32 s22, s22, s21               ; t-oct
    v_lshrrev_b32 v2, 3, v1
    v_mul_u32_u24 v2, 1280, v2
    v_and_b32 v3, 7, v1
    v_lshl_add_u32 v2, v3, 4, v2          ; r*1280 + 16c
    s_mul_i32 s23, s22, 10240
    v_add_u32 v3, s23, v2
    s_mul_i32 s26, s21, 10240
    v_add_u32 v2, s26, v2
    s_waitcnt lgkmcnt(0)
    """)
    for q in range(10): k(f"global_load_dwordx4 v[{12+4*q}:{15+4*q}], v3, s[32:33] offset:{128*q}")
    k(f"""
    v_bfe_u32 v4, v1, 2, 2
    v_mul_u32_u24 v4, 1280, v4
    v_lshrrev_b32 v5, 4, v1
    v_lshl_add_u32 v4, v5, 5, v4
    v_and_b32 v5, 3, v1
    v_lshl_add_u32 v4, v5, 3, v4
    v_add_u32 v4, s26, v4
    v_lshrrev_b32 v6, 2, v1
    v_lshlrev_b32 v6, 14, v6
    v_lshl_add_u32 v5, v5, 4, v6
    s_lshl_b32 s23, s22, 6
    v_add_u32 v5, s23, v5
    s_add_u32 s50, s48, {WS_UT}
    s_addc_u32 s51, s49, 0
    s_add_u32 s48, s48, {WS_NT}
    s_addc_u32 s49, s49, 0
    s_mov_b32 s24, 0x3f803f80
    v_mov_b32 v8, 0
    v_mov_b32 v9, 0
    v_mov_b32 v10, 0
    v_mov_b32 v11, 0
    """)
    for q in range(10):
        k(f"s_waitcnt vmcnt({9-q})")
        if q in (0, 9): k.stamp(1 + q // 9)
        k(f"ds_write_b128 v2, v[{12+4*q}:{15+4*q}] offset:{128*q}")
        for i in range(4):
            r = 12 + 4 * q + i
            k(f"v_dot2c_f32_bf16 v{8 + (i&1)}, s24, v{r}")
            k(f"v_dot2c_f32_bf16 v{10 + (i&1)}, v{r}, v{r}")
    k(f"""
    s_nop 2
    v_add_f32 v8, v8, v9
    v_add_f32 v10, v10, v11
    v_add_f32_dpp v8, v8, v8 quad_perm:[1,0,3,2] row_mask:0xf bank_mask:0xf
    v_add_f32_dpp v10, v10, v10 quad_perm:[1,0,3,2] row_mask:0xf bank_mask:0xf
    v_add_f32_dpp v8, v8, v8 quad_perm:[2,3,0,1] row_mask:0xf bank_mask:0xf
    v_add_f32_dpp v10, v10, v10 quad_perm:[2,3,0,1] row_mask:0xf bank_mask:0xf
    v_add_f32_dpp v8, v8, v8 row_half_mirror row_mask:0xf bank_mask:0xf
    v_add_f32_dpp v10, v10, v10 row_half_mirror row_mask:0xf bank_mask:0xf
    v_mul_f32 v8, {f2u(1/640)}, v8
    v_mul_f32 v10, {f2u(1/640)}, v10
    v_fma_f32 v10, -v8, v8, v10
    v_max_f32 v10, 0, v10
    v_cvt_pk_bf16_f32 v10, v10, v8
    v_and_b32 v8, 0xffff0000, v10
    v_lshlrev_b32 v10, 16, v10
    v_add_f32 v10, {f2u(1e-5)}, v10
    v_cvt_pk_bf16_f32 v10, v10, v10
    v_lshlrev_b32 v10, 16, v10
    v_sqrt_f32 v10, v10
    v_cvt_pk_bf16_f32 v10, v10, v10
    v_lshlrev_b32 v10, 16, v10
    v_rcp_f32 v10, v10
    v_mul_f32 v8, v8, v10
    """)
    for r in range(8): k(f"v_readlane_b32 s{56+r}, v10, {8*r}")
    for r in range(8): k(f"v_readlane_b32 s{64+r}, v8, {8*r}")
    for r in range(8): k(f"v_mov_b32 v{52+r}, s{64+r}")
    def rd(ch):
        b = 12 + 4 * (ch % 3)
        k(f"ds_read_b64_tr_b16 v[{b}:{b+1}], v4 offset:{128*ch}")
        k(f"ds_read_b64_tr_b16 v[{b+2}:{b+3}], v4 offset:{128*ch + 5120}")
    k.stamp(3)
    rd(0); rd(1)
    for ch in range(10):
        b = 12 + 4 * (ch % 3)
        u = 24 + 12 * (ch & 1)
        k(f"s_waitcnt lgkmcnt({2 if ch < 9 else 0})")
        k(f"global_store_dwordx4 v5, v[{b}:{b+3}], s[50:51]")
        for i in range(4):
            k(f"v_lshlrev_b32 v{u+2*i}, 16, v{b+i}")
            k(f"v_and_b32 v{u+2*i+1}, 0xffff0000, v{b+i}")
        if ch + 2 < 10: rd(ch + 2)
        for i in range(4):
            k(f"v_pk_fma_f32 v[{u+2*i}:{u+2*i+1}], v[{u+2*i}:{u+2*i+1}], s[{56+2*i}:{57+2*i}], v[{52+2*i}:{53+2*i}] neg_lo:[0,0,1] neg_hi:[0,0,1]")
        for i in range(4): k(f"v_cvt_pk_bf16_f32 v{u+8+i}, v{u+2*i}, v{u+2*i+1}")
        k(f"global_store_dwordx4 v5, v[{u+8}:{u+11}], s[48:49]")
        if ch < 9: k(f"v_add_u32 v5, 0x40000, v5")
    k.stamp(4)
    k.end(0)

def gen_mod(k):
    k(f"""
    s_load_dwordx4 s[32:35], s[0:1], 96
    s_load_dwordx2 s[48:49], s[0:1], 128
    s_lshr_b32 s22, s20, 4
    s_lshl_b32 s22, s22, 4
    s_and_b32 s23, s20, 7
    s_lshl_b32 s23, s23, 1
    s_add_u32 s22, s22, s23
    s_bfe_u32 s23, s20, 0x10003
    s_add_u32 s22, s22, s23
    s_cmp_ge_u32 s20, 112
    s_cselect_b32 s22, s20, s22
    s_mul_i32 s26, s21, 10240
    s_mul_i32 s23, s21, {160*7680}
    s_lshl_b32 s24, s22, 6
    s_add_u32 s23, s23, s24
    v_lshrrev_b32 v2, 2, v1
    v_mul_u32_u24 v2, 7680, v2
    v_and_b32 v3, 3, v1
    v_lshl_add_u32 v2, v3, 4, v2
    v_add_u32 v2, s23, v2
    s_mul_i32 s23, s21, 320
    v_lshl_add_u32 v4, v1, 2, s23
    v_and_b32 v5, 15, v1
    v_lshl_add_u32 v5, v5, 2, s23
    s_mov_b32 m0, s26
    s_waitcnt lgkmcnt(0)
    global_load_dword v8, v4, s[32:33]
    global_load_dword v9, v5, s[32:33] offset:256
    """)
    for i in range(10):
        k(f"global_load_lds_dwordx4 v2, s[34:35]")
        if i < 9: k(f"s_add_u32 m0, m0, 1024\nv_add_u32 v2, {16*7680}, v2")
    k(f"""
    v_bfe_u32 v4, v1, 2, 2
    v_lshrrev_b32 v5, 4, v1
    v_lshl_add_u32 v4, v5, 3, v4
    v_lshlrev_b32 v4, 6, v4
    v_lshl_add_u32 v4, v3, 3, v4
    v_add_u32 v4, s26, v4
    v_lshlrev_b32 v5, 4, v5
    s_mov_b32 s28, {LOG2E + 0x80000000}
    s_waitcnt vmcnt(10)
    v_lshlrev_b32 v12, 16, v8
    v_and_b32 v13, 0xffff0000, v8
    v_lshlrev_b32 v14, 16, v9
    v_and_b32 v15, 0xffff0000, v9
    """)
    for i in range(4): k(f"v_mul_f32 v{16+i}, s28, v{12+i}")
    for i in range(4): k(f"v_exp_f32 v{16+i}, v{16+i}")
    for i in range(4): k(f"v_add_f32 v{16+i}, 1.0, v{16+i}")
    for i in range(4): k(f"v_rcp_f32 v{16+i}, v{16+i}")
    for i in range(4): k(f"v_mul_f32 v{12+i}, v{12+i}, v{16+i}")
    k("v_cvt_pk_bf16_f32 v8, v12, v13\nv_cvt_pk_bf16_f32 v9, v14, v15")
    for ks in range(5):
        for q in range(4):
            k(f"ds_bpermute_b32 v{20+4*ks+q}, v5, v{8 if ks < 4 else 9} offset:{4*((16*ks if ks < 4 else 0) + q)}")
        if ks == 2: k("s_waitcnt lgkmcnt(8)")
    for ks in range(5):
        k(f"s_waitcnt vmcnt({8 - 2*ks})")
        if ks in (0, 4): k.stamp(1 + ks // 4)
        for ct in range(2):
            for h in range(2):
                r = 48 + 8 * (ks & 1) + 4 * ct + 2 * h
                k(f"ds_read_b64_tr_b16 v[{r}:{r+1}], v4 offset:{2048*ks + 256*h + 32*ct}")
        k("s_waitcnt lgkmcnt(0)")
        for ct in range(2):
            r = 48 + 8 * (ks & 1) + 4 * ct
            c = '0' if ks == 0 else f'v[{40+4*ct}:{43+4*ct}]'
            k(f"v_mfma_f32_16x16x32_bf16 v[{40+4*ct}:{43+4*ct}], v[{20+4*ks}:{23+4*ks}], v[{r}:{r+3}], {c}")
    k(f"""
    v_and_b32 v5, 15, v1
    v_lshl_add_u32 v5, v5, 2, s26
    ds_write_b32 v5, v40
    ds_write_b32 v5, v44 offset:64
    s_waitcnt lgkmcnt(0)
    s_barrier
    s_cmp_lg_u32 s21, 0
    s_cbranch_scc1 LA_end
    v_and_b32 v5, 31, v1
    v_lshlrev_b32 v5, 2, v5
    ds_read_b32 v8, v5
    ds_read_b32 v9, v5 offset:10240
    ds_read_b32 v10, v5 offset:20480
    ds_read_b32 v11, v5 offset:30720
    s_lshl_b32 s23, s22, 7
    v_add_u32 v5, s23, v5
    s_waitcnt lgkmcnt(0)
    v_add_f32 v8, v8, v9
    v_add_f32 v10, v10, v11
    v_add_f32 v8, v8, v10
    v_cvt_pk_bf16_f32 v8, v8, v8
    v_lshlrev_b32 v8, 16, v8
    global_store_dword v5, v8, s[48:49]
    """)
    k.end(0)

def gen_A(order='KLM'):
    k = Asm('A')
    k.stamp(0)
    k("""
    v_lshrrev_b32 v1, 6, v0
    v_readfirstlane_b32 s21, v1
    v_and_b32 v1, 63, v0
    """)
    cnt = {'K': NK, 'L': NL, 'M': NM}
    base = 0
    for r in order:
        k(f"s_sub_u32 s20, s2, {base}\ns_cmp_lt_u32 s20, {cnt[r]}\ns_cbranch_scc1 LA_{r}")
        base += cnt[r]
    k("LA_end:\ns_endpgm")
    gens = {'K': gen_kgen, 'L': gen_ln, 'M': gen_mod}
    for r in 'KLM':
        k(f"LA_{r}:")
        gens[r](k)
    return k.finish()

if __name__ == '__main__':
    print(gen_A())
```

```python
from asmlib import *
from layout import *

NCONV, NSIDE = 160, 96
B_GRID = NCONV + NSIDE
B_VGPR = 232
OH = 480
O3 = 4584; O5 = O3 + 4128; O7 = O5 + 4128; O9 = O7 + 2080
OT = O9 + 2072; TCS = 2112
CHS = (OT + 3 * TCS + 2048 + 80 + 127) // 128 * 128
OU = 4 * CHS
B_LDS = (OU + 16384 + 1279) // 1280 * 1280
assert O3 % 16 == 8 and O5 % 16 == 8 and O7 % 16 == 8 and O9 % 16 == 8 and OT % 16 == 0

P0 = 16
NW = 48
TA0 = 72
RING = 144; NRING = 8
ACC = 176
UAC = 192
IDF = 208
T2 = 72
vWH, vWC, vRD, vTA, vT2, vT3, vDA, vDB, vD3, vRU, vST = 2, 3, 4, 5, 6, 7, 8, 9, 10, 11, 12
G_LO, G_HI, S_, GL_LO, GL_HI, SL = 212, 213, 214, 215, 216, 217

def mf(acc, a, b, first):
    c = '0' if first else f'v[{acc}:{acc+3}]'
    return f"v_mfma_f32_16x16x32_bf16 v[{acc}:{acc+3}], v[{a}:{a+3}], v[{b}:{b+3}], {c}"

def window_ops(full):
    ops = []
    top = 15 if full else 13
    for x in range(1, top + 1):
        ops.append(f"v_pk_add_f32 v[{P0+2*x}:{P0+2*x+1}], v[{P0+2*x}:{P0+2*x+1}], v[{P0+2*x-2}:{P0+2*x-1}]")
    arrs = [(1, O3), (2, O5)] + ([(3, O7), (4, O9)] if full else [])
    for hw, off in arrs:
        for i in range(8):
            x = i + 4; hi_, lo_ = x + hw, x - hw - 1
            d = NW + 2 * i
            if lo_ < 0: ops.append(f"v_pk_mul_f32 v[{d}:{d+1}], v[{P0+2*hi_}:{P0+2*hi_+1}], 1.0 op_sel_hi:[1,0]")
            else: ops.append(f"v_pk_add_f32 v[{d}:{d+1}], v[{P0+2*hi_}:{P0+2*hi_+1}], v[{P0+2*lo_}:{P0+2*lo_+1}] neg_lo:[0,1] neg_hi:[0,1]")
        for half in range(2):
            for i in range(4): ops.append(f"v_cvt_pk_bf16_f32 v{NW+16+4*half+i}, v{NW+4*i+half}, v{NW+4*i+2+half}")
            ops.append(f"ds_write_b128 v{vWC}, v[{NW+16+4*half}:{NW+19+4*half}] offset:{off + 24 + 16*half}")
    return ops

def stream(k, tiles, full, tag):
    acc = {T: ACC + 4 * i for i, T in enumerate(tiles)}
    started = set()
    def M(T, a, b):
        s = mf(acc[T], a, b, T not in started); started.add(T); return s
    ps = sorted({8 * T - m for T in tiles for m in range(17) if 8 * T - m >= -7} | {8 * T - 32 for T in tiles if T >= 4}, reverse=True)
    if tiles[0] == 0:
        ps = [p for p in ps if p <= 8] + [p for p in ps if p > 8]
    steps = []
    for p in ps:
        u = [(T, 8 * T - p) for T in tiles if 0 <= 8 * T - p <= 16]
        u += [(T, 17) for T in tiles if T >= 4 and 8 * T - p == 32]
        steps.append((p, u))
    loaded = set()
    def reads_for(si):
        p, u = steps[si]
        out = []
        r = RING + 4 * (si % NRING)
        out.append(f"ds_read_b128 v[{r}:{r+3}], v{vRD} offset:{64 * (p + 7)}")
        for (T, m) in u:
            if m not in loaded:
                loaded.add(m)
                for h in range(2): out.append(f"ds_read_b64_tr_b16 v[{TA0+4*m+2*h}:{TA0+4*m+2*h+1}], v{vTA} offset:{64*m - 8*h + 8}")
        return out
    LOOK = 4
    fill = window_ops(full)
    nm = sum(len(u) for _, u in steps)
    per = len(fill) / (nm - 6)
    k("AUTO")
    for si in range(min(LOOK, len(steps))):
        for r in reads_for(si): k(r)
    done, fi = 0, 0
    for si, (p, u) in enumerate(steps):
        if si + LOOK < len(steps):
            for r in reads_for(si + LOOK): k(r)
        for (T, m) in u:
            k(M(T, TA0 + 4 * m, RING + 4 * (si % NRING)))
            done += 1
            while fi < len(fill) and fi < per * done: k(fill[fi]); fi += 1
    while fi < len(fill): k(fill[fi]); fi += 1
    k("MANUAL")
    k.stamp(5)
    k("s_waitcnt vmcnt(0) lgkmcnt(0)\ns_barrier")
    k.stamp(6)
    k("AUTO")
    items = []
    tl = set()
    def toe(kind, mu):
        key = (kind, mu)
        idx = {('A', 0): 0, ('A', 1): 1, ('A', 2): 2, ('B', 0): 3, ('B', 1): 4, ('B', 2): 5}.get(key, 6 + mu)
        r = T2 + 4 * idx
        rd = []
        if key not in tl:
            tl.add(key)
            base = {'A': B5A, 'B': B5B, 'C': B7}[kind]
            for h in range(2): rd.append(f"ds_read_b64_tr_b16 v[{r+2*h}:{r+2*h+1}], v{vT3 if kind == 'C' else vT2} offset:{2*(base-3) - 8 + 32*mu - 16*h}")
        return r, rd
    slot = 0
    for i, T in enumerate(tiles):
        r = RING + 4 * (slot % NRING); slot += 1
        items.append(([f"ds_read_b128 v[{r}:{r+3}], v{vRU} offset:{2048*T}"], [mf(UAC + 4 * i, IDF, r, True)]))
    for kind, b0, nmu, va in (('C', 4, 4, vD3), ('A', 2, 3, vDA), ('B', 2, 3, vDB)):
        Ps = sorted({T - b0 - mu for T in tiles for mu in range(nmu) if T - b0 - mu >= 0}, reverse=True)
        for P in Ps:
            r = RING + 4 * (slot % NRING); slot += 1
            rd = [f"ds_read_b64_tr_b16 v[{r+2*h}:{r+2*h+1}], v{va} offset:{512*P + 256*h}" for h in range(2)]
            ms = []
            for T in tiles:
                mu = T - b0 - P
                if 0 <= mu < nmu:
                    tr, x = toe(kind, mu); rd += x
                    ms.append(M(T, r, tr))
            items.append((rd, ms))
    LK = 3
    for i in range(min(LK, len(items))):
        for r in items[i][0]: k(r)
    for i, (rd, ms) in enumerate(items):
        if i + LK < len(items):
            for r in items[i + LK][0]: k(r)
        for m in ms: k(m)
    for pr in range(2):
        for i in (2 * pr, 2 * pr + 1):
            for h in range(2):
                a = ACC + 4 * i + 2 * h; u = UAC + 4 * i + 2 * h
                k(f"v_pk_fma_f32 v[{a}:{a+1}], v[{a}:{a+1}], s[60:61], v[{u}:{u+1}]")
        o = P0 + 4 * pr
        for q in range(4): k(f"v_cvt_pk_bf16_f32 v{o+q}, v{ACC+8*pr+2*q}, v{ACC+8*pr+2*q+1}")
        k(f"global_store_dwordx4 v{vST}, v[{o}:{o+3}], s[56:57] offset:{1024 * (tiles[2*pr] >> 1)} {STORE_MOD}")
    k("MANUAL")
    k.stamp(7)
    k.end(1)

STORE_MOD = ''

def gen_conv(k):
    k(f"""
    s_load_dwordx2 s[48:49], s[0:1], 128
    s_and_b32 s22, s21, 3
    s_lshr_b32 s23, s21, 2                ; half
    s_lshl_b32 s24, s2, 14
    v_and_b32 v14, 3, v1
    v_lshrrev_b32 v15, 2, v1
    s_lshl_b32 s25, s21, 4
    v_add_u32 v15, s25, v15               ; seg
    v_lshlrev_b32 v13, 7, v15
    v_lshl_add_u32 v13, v14, 4, v13       ; 128 seg + 16 j
    v_subrev_u32 v60, 64, v13
    v_max_i32 v60, 0, v60
    s_lshl_b32 s25, s2, 4
    v_lshl_add_u32 v61, v14, 2, s25
    s_waitcnt lgkmcnt(0)
    s_add_u32 s50, s48, s24
    s_addc_u32 s51, s49, 0
    s_add_u32 s52, s50, {WS_UT}
    s_addc_u32 s53, s51, 0
    s_add_u32 s50, s50, {WS_NT}
    s_addc_u32 s51, s51, 0
    global_load_dwordx4 v[{NW+4}:{NW+7}], v13, s[50:51]
    global_load_dwordx4 v[{NW+8}:{NW+11}], v13, s[50:51] offset:64
    global_load_dwordx4 v[{NW}:{NW+3}], v60, s[50:51]
    global_load_dword v{S_}, v61, s[48:49]
    global_load_dword v62, v61, s[48:49] offset:2560
    v_add_u32 v61, 5120, v61
    global_load_dword v63, v61, s[48:49]
    s_mul_i32 s26, s22, {CHS}
    s_and_b32 s27, s22, 1
    s_lshl_b32 s27, s27, 4
    s_add_u32 s26, s26, s27
    s_lshr_b32 s27, s22, 1
    s_lshl_b32 s27, s27, 6
    s_add_u32 s26, s26, s27
    s_lshl_b32 s27, s22, 12
    s_add_u32 s27, s27, s24
    s_add_u32 s56, s48, s27
    s_addc_u32 s57, s49, 0
    s_add_u32 s54, s56, {WS_TAPS}
    s_addc_u32 s55, s57, 0
    s_add_u32 s56, s56, {WS_X1}
    s_addc_u32 s57, s57, 0
    v_lshlrev_b32 v{vST}, 4, v1
    s_lshl_b32 s27, s23, 2
    v_add_u32 v61, s27, v{vST}            ; + 4*half
    s_mul_i32 s28, s23, {2*TCS}
    s_add_u32 s28, s28, s26
    s_add_u32 m0, s28, {OT - 2048}
    v_add_u32 v60, 4, v61
    global_load_lds_dwordx4 v61, s[54:55] offset:2048
    global_load_lds_dwordx4 v61, s[54:55] offset:3072
    s_add_u32 m0, s28, {OT + TCS}
    v_lshrrev_b32 v64, 4, v1              ; G
    global_load_lds_dwordx4 v60, s[54:55]
    global_load_lds_dwordx4 v60, s[54:55] offset:1024
    ; u image
    v_xor_b32 v65, v14, v64
    v_and_b32 v66, 0x3c, v1
    v_lshlrev_b32 v66, 4, v66
    v_lshl_add_u32 v65, v65, 4, v66
    s_lshl_b32 s28, s21, 11
    v_add_u32 v65, s28, v65
    s_add_u32 m0, s28, {OU}
    v_mul_u32_u24 v66, {CHS}, v14
    global_load_lds_dwordx4 v65, s[52:53]
    global_load_lds_dwordx4 v65, s[52:53] offset:1024
    v_and_b32 v67, 1, v14
    v_lshl_add_u32 v66, v67, 4, v66
    v_lshrrev_b32 v67, 1, v14
    v_lshl_add_u32 v66, v67, 6, v66
    v_lshl_add_u32 v{vWC}, v15, 5, v66
    v_mov_b32 v68, 0
    v_mov_b32 v69, 0
    v_mov_b32 v70, 0
    v_mov_b32 v71, 0
    s_cmp_eq_u32 s23, 0
    s_cbranch_scc0 LB_z1
    v_min_u32 v67, 29, v1
    v_lshl_add_u32 v67, v67, 4, s26
    ds_write_b128 v67, v[68:71]
    s_branch LB_z2
    LB_z1:
    v_min_u32 v67, 2, v14
    v_lshl_add_u32 v67, v67, 3, s26
    ds_write_b64 v67, v[68:69] offset:{O3}
    ds_write_b64 v67, v[68:69] offset:{O5}
    ds_write_b64 v67, v[68:69] offset:{O7}
    ds_write_b64 v67, v[68:69] offset:{O9}
    LB_z2:
    v_and_b32 v66, 15, v1
    v_lshlrev_b32 v67, 5, v66
    v_lshl_add_u32 v67, v64, 4, v67
    s_add_u32 s27, s26, {OH - 32 - 64*7}
    v_add_u32 v{vRD}, s27, v67            ; h frag: 32a + 16G
    v_bfe_u32 v68, v1, 2, 2               ; r
    v_sub_u32 v69, 3, v68
    v_mul_u32_u24 v69, {TCS}, v69
    v_lshl_add_u32 v69, v14, 3, v69
    s_add_u32 s27, s26, {OT}
    v_add_u32 v69, s27, v69
    v_lshlrev_b32 v70, 4, v64
    v_sub_u32 v70, 48, v70
    v_add_u32 v{vTA}, v69, v70
    v_and_b32 v70, 1, v64                 ; G&1
    v_lshrrev_b32 v71, 1, v64             ; G>>1
    v_lshlrev_b32 v18, 3, v70
    v_sub_u32 v69, v69, v18
    v_add_u32 v69, 8, v69
    v_mul_u32_u24 v18, {2*(B3A - B5A)}, v71
    v_add_u32 v{vT2}, v69, v18
    v_mul_u32_u24 v18, {2*(B9 - B7)}, v71
    v_add_u32 v{vT3}, v69, v18
    v_lshlrev_b32 v18, 7, v70
    v_lshl_add_u32 v18, v68, 5, v18
    v_lshl_add_u32 v18, v14, 3, v18
    v_add_u32 v18, s26, v18
    v_mul_u32_u24 v19, {O5 - O3 - 24}, v71
    v_sub_u32 v19, v18, v19
    v_add_u32 v{vDA}, {O5}, v19
    v_lshlrev_b32 v19, 5, v71
    v_sub_u32 v19, 16, v19
    v_add_u32 v{vDB}, v{vDA}, v19
    v_mul_u32_u24 v19, {O9 - O7 - 16}, v71
    v_add_u32 v19, v18, v19
    v_add_u32 v{vD3}, {O7 + 16}, v19
    v_bfe_u32 v19, v1, 1, 2
    v_xor_b32 v19, s22, v19
    v_lshlrev_b32 v19, 4, v19
    v_lshl_add_u32 v19, v66, 7, v19
    v_lshl_add_u32 v19, v70, 6, v19
    v_add_u32 v{vRU}, {OU}, v19
    v_lshlrev_b32 v18, 3, v64
    v_sub_u32 v18, v66, v18               ; e = i - 8G
    v_and_b32 v19, 1, v18
    v_lshlrev_b32 v19, 4, v19
    v_mov_b32 v20, 0x3f80
    v_lshlrev_b32 v19, v19, v20
    v_ashrrev_i32 v18, 1, v18
    v_cmp_eq_u32 s[62:63], 0, v18
    v_cmp_eq_u32 s[64:65], 1, v18
    v_cmp_eq_u32 s[66:67], 2, v18
    v_cmp_eq_u32 s[68:69], 3, v18
    v_cndmask_b32 v{IDF}, 0, v19, s[62:63]
    v_cndmask_b32 v{IDF+1}, 0, v19, s[64:65]
    v_cndmask_b32 v{IDF+2}, 0, v19, s[66:67]
    v_cndmask_b32 v{IDF+3}, 0, v19, s[68:69]
    v_cmp_ne_u32 vcc, 0, v15
    s_waitcnt vmcnt(6)
    v_add_f32 v62, 1.0, v62
    v_cvt_pk_bf16_f32 v{G_LO}, v62, 0
    v_readlane_b32 s60, v63, s22
    v_lshlrev_b32 v{G_HI}, 16, v{G_LO}
    v_cndmask_b32 v{GL_LO}, 0, v{G_LO}, vcc
    v_cndmask_b32 v{GL_HI}, 0, v{G_HI}, vcc
    v_cndmask_b32 v{SL}, 0, v{S_}, vcc
    s_mov_b32 s61, s60
    """)
    k.stamp(1)
    def dot(dst, x, left=False):
        w = NW + (x >> 1)
        g = (GL_HI if left else G_HI) if x & 1 else (GL_LO if left else G_LO)
        k(f"v_dot2_f32_bf16 v{dst}, v{w}, v{g}, v{SL if left else S_}")
    for x in range(8, 16): dot(P0 + 2 * x, x)
    for x in range(8, 16): dot(P0 + 2 * x + 1, x + 8)
    for x in range(8): dot(P0 + 2 * x + 1, x + 8)
    for half in range(2):
        for i in range(4): k(f"v_cvt_pk_bf16_f32 v{64+4*half+i}, v{P0+16+4*i+half}, v{P0+16+4*i+2+half}")
        k(f"ds_write_b128 v{vWC}, v[{64+4*half}:{67+4*half}] offset:{OH + 16*half}")
    for x in range(8): dot(P0 + 2 * x, x, True)
    k.stamp(2)
    k("s_waitcnt vmcnt(2) lgkmcnt(0)")
    k.stamp(3)
    k("s_barrier")
    k.stamp(4)
    k(f"""
    s_cmp_eq_u32 s23, 0
    s_cbranch_scc0 LB_Y
    """)
    stream(k, [0, 1, 6, 7], True, 'X')
    k("LB_Y:")
    stream(k, [2, 3, 4, 5], False, 'Y')

def gen_side(k):
    k(f"""
    s_load_dwordx4 s[32:35], s[0:1], 80
    s_load_dwordx2 s[48:49], s[0:1], 128
    s_lshr_b32 s22, s20, 5
    s_lshl_b32 s22, s22, 5
    s_and_b32 s23, s20, 7
    s_lshl_b32 s23, s23, 2
    s_add_u32 s22, s22, s23
    s_bfe_u32 s23, s20, 0x20003
    s_add_u32 s22, s22, s23               ; f tile
    s_lshl_b32 s26, s21, 13
    v_lshrrev_b32 v2, 1, v1
    v_mul_u32_u24 v2, 3072, v2
    v_and_b32 v3, 1, v1
    v_lshl_add_u32 v2, v3, 4, v2
    s_mul_i32 s23, s21, {32*3072}
    s_lshl_b32 s24, s22, 5
    s_add_u32 s23, s23, s24
    v_add_u32 v2, s23, v2
    v_lshrrev_b32 v4, 4, v1               ; G
    v_lshrrev_b32 v5, 1, v4
    v_and_b32 v6, 1, v4
    v_lshlrev_b32 v5, 4, v5
    v_lshl_add_u32 v5, v6, 2, v5          ; 16(G>>1) + 4(G&1)
    s_lshl_b32 s23, s21, 7
    v_lshl_add_u32 v7, v5, 2, s23
    s_mov_b32 m0, s26
    s_waitcnt lgkmcnt(0)
    s_add_u32 s50, s48, 7680
    s_addc_u32 s51, s49, 0
    """)
    k(f"""
    s_cmp_lt_u32 s21, 4
    s_cselect_b32 s27, {8*32*3072}, 0
    s_cselect_b32 s28, 1024, 0
    global_load_lds_dwordx4 v2, s[32:33]
    s_add_u32 m0, m0, 1024
    v_add_u32 v2, {8*32*3072}, v2
    global_load_lds_dwordx4 v2, s[32:33]
    s_add_u32 m0, m0, 1024
    v_add_u32 v2, s27, v2
    global_load_lds_dwordx4 v2, s[32:33]
    """)
    for i in range(3):
        for h in range(2):
            k(f"global_load_dwordx4 v[{16+16*i+4*h}:{19+16*i+4*h}], v7, s[50:51] offset:{32*h}")
            k(f"global_load_dwordx4 v[{24+16*i+4*h}:{27+16*i+4*h}], v7, s[50:51] offset:{2560+32*h}")
        if i == 0: k("v_add_u32 v7, 1024, v7")
        if i == 1: k("v_add_u32 v7, s28, v7")
    k(f"""
    s_cmp_lt_u32 s21, 3
    s_cbranch_scc1 LB_now2
    s_mul_i32 s29, s20, 5
    s_add_u32 s29, s29, s21
    s_sub_u32 s29, s29, 3                 ; job
    s_mul_hi_u32 s30, s29, 0x1999999a     ; KS
    s_mul_i32 s31, s30, 10
    s_sub_u32 s31, s29, s31               ; db
    v_lshrrev_b32 v8, 3, v1
    v_mul_u32_u24 v8, 1280, v8
    v_and_b32 v9, 7, v1
    v_lshl_add_u32 v8, v9, 4, v8
    s_mul_i32 s36, s30, {32*1280}
    s_lshl_b32 s37, s31, 7
    s_add_u32 s36, s36, s37
    v_add_u32 v8, s36, v8
    s_add_u32 m0, s26, 4096
    s_nop 0
    """)
    for i in range(4):
        k("global_load_lds_dwordx4 v8, s[34:35]")
        if i < 3: k(f"s_add_u32 m0, m0, 1024\nv_add_u32 v8, {8*1280}, v8")
    k(f"""
    LB_now2:
    v_bfe_u32 v8, v1, 2, 2                ; r
    v_and_b32 v9, 3, v1
    v_add_u32 v10, v5, v8
    v_lshlrev_b32 v10, 5, v10
    v_lshl_add_u32 v10, v9, 3, v10
    v_add_u32 v10, s26, v10
    v_lshl_add_u32 v11, v4, 2, v8
    v_lshlrev_b32 v11, 7, v11
    v_lshl_add_u32 v11, v9, 3, v11
    v_add_u32 v11, s26, v11
    v_lshlrev_b32 v12, 4, v1
    ; W1F destination
    s_mul_hi_u32 s36, s22, 0x55555556     ; ft/3 = j*4+w
    s_mul_i32 s37, s36, 3
    s_sub_u32 s37, s22, s37               ; idx
    s_add_u32 s38, s37, 2
    s_cmp_ge_u32 s38, 3
    s_cselect_b32 s39, 3, 0
    s_sub_u32 s38, s38, s39               ; (idx+2)%3
    s_bitcmp1_b32 s36, 0
    s_cselect_b32 s37, s38, s37           ; pass
    s_mul_i32 s36, s36, 60
    s_lshl_b32 s38, s21, 1
    s_add_u32 s38, s38, s37
    s_add_u32 s39, s21, 40
    s_cmp_lt_u32 s37, 2
    s_cselect_b32 s38, s38, s39
    s_cselect_b32 s40, 2, 1
    s_lshl_b32 s40, s40, 13
    s_add_u32 s36, s36, s38
    s_lshl_b32 s36, s36, 10
    s_add_u32 s36, s36, {WS_W1F}
    s_add_u32 s52, s48, s36
    s_addc_u32 s53, s49, 0
    v_mov_b32 v64, 0x3f803f80
    v_mov_b32 v65, 0x3f803f80
    v_mov_b32 v66, 0x3f803f80
    v_mov_b32 v67, 0x3f803f80
    """)
    def piece(i, first):
        b = 16 + 16 * i
        k(f"ds_read_b64_tr_b16 v[68:69], v10 offset:{1024*i}\nds_read_b64_tr_b16 v[70:71], v10 offset:{1024*i + 256}")
        for q in range(4): k(f"v_pk_add_f32 v[{b+8+2*q}:{b+9+2*q}], v[{b+8+2*q}:{b+9+2*q}], 1.0 op_sel_hi:[1,0]")
        for q in range(4): k(f"v_cvt_pk_bf16_f32 v{72+q}, v{b+8+2*q}, v{b+9+2*q}")
        for q in range(4): k(f"v_cvt_pk_bf16_f32 v{76+q}, v{b+2*q}, v{b+1+2*q}")
        for q in range(4): k(f"v_lshlrev_b32 v{b+8+2*q}, 16, v{72+q}\nv_and_b32 v{b+9+2*q}, 0xffff0000, v{72+q}")
        k("s_waitcnt lgkmcnt(0)")
        k(mf(84, 68, 76, first))
        for q in range(4): k(f"v_lshlrev_b32 v{b+2*q}, 16, v{68+q}\nv_and_b32 v{b+1+2*q}, 0xffff0000, v{68+q}")
        for q in range(4): k(f"v_pk_mul_f32 v[{b+2*q}:{b+1+2*q}], v[{b+2*q}:{b+1+2*q}], v[{b+8+2*q}:{b+9+2*q}]")
        for q in range(4): k(f"v_cvt_pk_bf16_f32 v{b+8+q}, v{b+2*q}, v{b+1+2*q}")
        k(mf(80, b + 8, 64, first))
        k(f"global_store_dwordx4 v12, v[{b+8}:{b+11}], s[52:53] {STORE_MOD}")
    k.stamp(1)
    k("s_waitcnt vmcnt(0)")
    k.stamp(2)
    piece(0, True)
    k("s_add_u32 s52, s52, s40\ns_addc_u32 s53, s53, 0")
    piece(1, False)
    k("s_cmp_lt_u32 s21, 4\ns_cbranch_scc0 LB_no3\ns_add_u32 s52, s52, s40\ns_addc_u32 s53, s53, 0")
    piece(2, False)
    k(f"""
    LB_no3:
    s_mov_b32 s42, {KORD & 0xffffffff}
    s_mov_b32 s43, {KORD >> 32}
    s_cmp_lt_u32 s21, 3
    s_cbranch_scc1 LB_now2b
    s_mul_hi_u32 s36, s30, 0x15555556     ; w = KS/12
    s_mul_i32 s37, s36, 12
    s_sub_u32 s37, s30, s37               ; ks
    s_lshl_b32 s37, s37, 2
    s_lshr_b64 s[38:39], s[42:43], s37
    s_and_b32 s37, s38, 15
    s_mul_i32 s36, s36, 60
    s_mul_i32 s37, s37, 5
    s_add_u32 s36, s36, s37
    s_lshl_b32 s31, s31, 2
    """)
    for i in range(4):
        for h in range(2): k(f"ds_read_b64_tr_b16 v[{16+4*i+2*h}:{17+4*i+2*h}], v11 offset:{4096 + 2048*h + 32*i}")
    for i in range(4):
        k(f"""
        s_add_u32 s38, s31, {i}
        s_mul_hi_u32 s39, s38, 0x33333334
        s_mul_i32 s39, s39, 235
        s_add_u32 s39, s39, s38
        s_add_u32 s39, s39, s36
        s_lshl_b32 s39, s39, 10
        s_add_u32 s39, s39, {WS_W2F}
        s_add_u32 s54, s48, s39
        s_addc_u32 s55, s49, 0
        s_waitcnt lgkmcnt({6 - 2*i})
        global_store_dwordx4 v12, v[{16+4*i}:{19+4*i}], s[54:55] {STORE_MOD}
        """)
    k(f"""
    LB_now2b:
    s_lshl_b32 s27, s21, 7
    v_lshl_add_u32 v13, v4, 4, s27
    s_nop 7
    ds_write_b128 v13, v[80:83] offset:4096
    ds_write_b128 v13, v[84:87] offset:4160
    s_waitcnt lgkmcnt(0)
    s_barrier
    s_cmp_lg_u32 s21, 0
    s_cbranch_scc1 LB_end
    v_and_b32 v13, 31, v1
    v_lshlrev_b32 v13, 2, v13
    """)
    for w in range(8): k(f"ds_read_b32 v{16+w}, v13 offset:{4096 + 128*w}")
    k(f"""
    v_bfe_u32 v14, v1, 4, 1
    v_mul_u32_u24 v14, 6144, v14
    v_and_b32 v15, 15, v1
    v_lshl_add_u32 v14, v15, 2, v14
    s_lshl_b32 s27, s22, 6
    s_add_u32 s27, s27, {WS_V12}
    v_add_u32 v14, s27, v14
    v_mov_b32 v28, 0
    v_mov_b32 v29, 0
    v_mov_b32 v30, 0
    v_mov_b32 v31, 0
    s_waitcnt lgkmcnt(0)
    v_add_f32 v16, v16, v17
    v_add_f32 v18, v18, v19
    v_add_f32 v20, v20, v21
    v_add_f32 v22, v22, v23
    v_add_f32 v16, v16, v18
    v_add_f32 v20, v20, v22
    v_add_f32 v16, v16, v20
    global_store_dword v14, v16, s[48:49]
    s_cmp_lt_u32 s20, 4
    s_cbranch_scc0 LB_end2
    s_lshl_b32 s27, s20, 10
    s_add_u32 s27, s27, {WS_FLAGS}
    v_add_u32 v12, s27, v12
    global_store_dwordx4 v12, v[28:31], s[48:49]
    LB_end2:
    """)
    k.end(1)

def gen_B(opts={}):
    global STORE_MOD
    STORE_MOD = opts.get('bst', '')
    k = Asm('B')
    k.stamp(0)
    k(f"""
    v_lshrrev_b32 v1, 6, v0
    v_readfirstlane_b32 s21, v1
    v_and_b32 v1, 63, v0
    s_cmp_lt_u32 s2, {NCONV}
    s_cbranch_scc1 LB_conv
    s_sub_u32 s20, s2, {NCONV}
    s_cmp_lt_u32 s20, {NSIDE}
    s_cbranch_scc1 LB_side
    LB_end:
    s_endpgm
    LB_conv:
    """)
    gen_conv(k)
    k("LB_side:")
    gen_side(k)
    return k.finish()

if __name__ == '__main__':
    print(CHS, OU, B_LDS)
    print(gen_B())
```

```python
from asmlib import *
from layout import *

C_GRID = 256
RED = 81920
STAT = RED + 61440
C_LDS = STAT + 1280
vL16, vL8 = 2, 3
XA = 4
ST = 16
V12 = 24
ACA, ACB = 48, 80
BF = 96
TMP = 144
PKD = 176
AC2 = 24; RING = 104; NRK = 8; GB = 232

def mf(acc, a, b, first):
    c = '0' if first else f'v[{acc}:{acc+3}]'
    return f"v_mfma_f32_16x16x32_bf16 v[{acc}:{acc+3}], {a}, v[{b}:{b+3}], {c}"

class Loader:
    def __init__(self, k): self.k = k; self.n1 = 0; self.n2 = 0
    def w1(self):
        n = self.n1; self.n1 += 1
        if n % 4 == 0: self.k(f"s_mov_b32 s28, {n * 1024}")
        self.k(f"buffer_load_dwordx4 a[{4*n}:{4*n+3}], v{vL16}, s[32:35], s28 offen offset:{(n % 4) * 1024}")
    def w2(self):
        n = self.n2; self.n2 += 1
        if n % 4 == 0: self.k(f"s_mov_b32 s29, {n * 1024}")
        self.k(f"buffer_load_dwordx4 a[{4*n}:{4*n+3}], v{vL16}, s[36:39], s29 offen offset:{(n % 4) * 1024}")
    def next(self, free):
        if self.n1 < 60: self.w1()
        elif self.n2 < min(free, 60): self.w2()

def breads(k, ks):
    b = BF + 16 * (ks % 3)
    for s in range(4):
        for h in range(2):
            k(f"ds_read_b64_tr_b16 v[{b+4*s+2*h}:{b+4*s+2*h+1}], v{XA + s + (4 if ks >= 10 else 0)} offset:{4096*(ks % 10) + 1024*h}")

def epilogue(k, acc, p, dst, dstep):
    v1, v2 = V12 + 8 * p, V12 + 8 * p + 4
    for s in range(4):
        for h in range(2):
            a = acc + 4 * s + 2 * h
            k(f"v_pk_fma_f32 v[{a}:{a+1}], v[{v1+2*h}:{v1+2*h+1}], v[{ST+2*s}:{ST+2*s+1}], v[{a}:{a+1}] op_sel_hi:[1,0,1] neg_lo:[1,0,0] neg_hi:[1,0,0]")
    for s in range(4):
        for h in range(2):
            a = acc + 4 * s + 2 * h
            k(f"v_pk_fma_f32 v[{a}:{a+1}], v[{a}:{a+1}], v[{ST+2*s}:{ST+2*s+1}], v[{v2+2*h}:{v2+2*h+1}] op_sel:[0,1,0] op_sel_hi:[1,1,1]")
    for i in range(16): k(f"v_exp_f32 v{TMP+i}, v{acc+i}")
    for i in range(8): k(f"v_pk_add_f32 v[{TMP+2*i}:{TMP+2*i+1}], v[{TMP+2*i}:{TMP+2*i+1}], 1.0 op_sel_hi:[1,0]")
    for i in range(16): k(f"v_rcp_f32 v{TMP+i}, v{TMP+i}")
    for i in range(8): k(f"v_pk_mul_f32 v[{acc+2*i}:{acc+2*i+1}], v[{acc+2*i}:{acc+2*i+1}], v[{TMP+2*i}:{TMP+2*i+1}]")
    for s in range(4):
        for h in range(2): k(f"v_cvt_pk_bf16_f32 v{dst + dstep*s + h}, v{acc+4*s+2*h}, v{acc+4*s+2*h+1}")

def poll(k, tag, level, first_wait):
    k(f"""
    s_waitcnt vmcnt({first_wait})
    v_cmp_gt_u32 vcc, {level}, v12
    s_cbranch_vccnz LC_spin{tag}
    LC_go{tag}:
    """)

def spin(k, tag, level):
    k(f"""
    LC_spin{tag}:
    s_mov_b32 s30, 100000
    LC_spinl{tag}:
    global_load_dword v12, v13, s[48:49] sc1
    s_waitcnt vmcnt(0)
    v_cmp_gt_u32 vcc, {level}, v12
    s_cbranch_vccz LC_go{tag}
    s_sub_u32 s30, s30, 1
    s_cmp_lg_u32 s30, 0
    s_cbranch_scc1 LC_spinl{tag}
    s_branch LC_go{tag}
    """)

def gen_C(opts={}):
    k = Asm('C')
    k.stamp(0)
    W2EARLY = int(opts.get('w2early', 40))
    DELAY = int(opts.get('pdelay', 12))
    REST1 = int(opts.get('rest1', 10))
    k(f"""
    s_cmp_ge_u32 s2, {C_GRID}
    s_cbranch_scc1 LC_end
    s_load_dwordx2 s[48:49], s[0:1], 128
    s_load_dwordx2 s[44:45], s[0:1], 112
    v_lshrrev_b32 v1, 6, v0
    v_readfirstlane_b32 s21, v1
    v_and_b32 v1, 63, v0
    s_and_b32 s24, s2, 7
    s_lshr_b32 s25, s2, 3
    s_lshr_b32 s22, s24, 1
    s_lshl_b32 s22, s22, 3
    s_lshr_b32 s26, s25, 2
    s_add_u32 s22, s22, s26               ; rb
    s_and_b32 s23, s24, 1
    s_lshl_b32 s23, s23, 2
    s_and_b32 s26, s25, 3
    s_add_u32 s23, s23, s26               ; j
    v_lshrrev_b32 v12, 3, v1
    v_and_b32 v13, 6, v12
    v_and_b32 v14, 7, v1
    v_xor_b32 v13, v13, v14
    v_lshlrev_b32 v12, 12, v12
    v_lshl_add_u32 v12, v13, 4, v12
    s_mul_i32 s26, s21, {160*4096}
    s_lshl_b32 s27, s22, 7
    s_add_u32 s26, s26, s27
    s_add_u32 s26, s26, {WS_X1}
    s_mul_i32 s27, s21, 20480
    s_mov_b32 m0, s27
    v_lshlrev_b32 v{vL16}, 4, v1
    v_lshlrev_b32 v{vL8}, 3, v1
    s_lshl_b32 s27, s23, 2
    s_add_u32 s27, s27, s21
    s_mul_i32 s27, s27, 61440
    s_waitcnt lgkmcnt(0)
    s_add_u32 s50, s48, s26
    s_addc_u32 s51, s49, 0
    """)
    for i in range(20):
        k(f"global_load_lds_dwordx4 v12, s[50:51]")
        if i < 19: k("s_add_u32 m0, m0, 1024\nv_add_u32 v12, 0x8000, v12")
    k(f"""
    s_add_u32 s32, s48, s27
    s_addc_u32 s33, s49, 0
    s_add_u32 s36, s32, {WS_W2F}
    s_addc_u32 s37, s33, 0
    s_add_u32 s32, s32, {WS_W1F}
    s_addc_u32 s33, s33, 0
    s_mov_b32 s34, 61440
    s_mov_b32 s35, 0x20000
    s_mov_b32 s38, 61440
    s_mov_b32 s39, 0x20000
    s_mul_i32 s26, s22, 196608
    s_add_u32 s26, s26, {WS_H}
    s_add_u32 s40, s48, s26
    s_addc_u32 s41, s49, 0
    s_mov_b32 s42, 196608
    s_mov_b32 s43, 0x20000
    s_mov_b32 s46, {L*D*2}
    s_mov_b32 s47, 0x20000
    v_lshrrev_b32 v14, 4, v1              ; G
    s_and_b32 s26, s21, 1
    s_mul_i32 s27, s21, 3
    s_add_u32 s27, s27, s26
    s_mul_i32 s30, s23, 12
    s_add_u32 s27, s27, s30
    s_lshl_b32 s27, s27, 6
    s_add_u32 s27, s27, {WS_V12}
    v_lshl_add_u32 v12, v14, 4, s27
    s_mul_i32 s26, s26, 192
    s_sub_u32 s26, 128, s26
    v_add_u32 v13, s26, v12
    s_add_u32 s50, s48, 6144
    s_addc_u32 s51, s49, 0
    global_load_dwordx4 v[{V12}:{V12+3}], v12, s[48:49]
    global_load_dwordx4 v[{V12+4}:{V12+7}], v12, s[50:51]
    global_load_dwordx4 v[{V12+8}:{V12+11}], v12, s[48:49] offset:64
    global_load_dwordx4 v[{V12+12}:{V12+15}], v12, s[50:51] offset:64
    global_load_dwordx4 v[{V12+16}:{V12+19}], v13, s[48:49]
    global_load_dwordx4 v[{V12+20}:{V12+23}], v13, s[50:51]
    """)
    ld = Loader(k)
    for i in range(37): ld.w1()
    k(f"""
    v_bfe_u32 v12, v1, 2, 2               ; r
    v_and_b32 v13, 1, v14                 ; G&1
    v_lshl_add_u32 v15, v13, 2, v12       ; 4(G&1)+r
    v_lshrrev_b32 v13, 1, v14
    v_lshl_add_u32 v13, v13, 4, v15
    v_lshlrev_b32 v13, 7, v13
    v_and_b32 v12, 1, v1
    v_lshl_add_u32 v13, v12, 3, v13
    v_bfe_u32 v12, v1, 1, 1
    v_lshl_add_u32 v13, v12, 4, v13
    v_and_b32 v15, 6, v15
    """)
    for s in range(4):
        k(f"""
        s_xor_b32 s26, s21, {s}
        s_lshl_b32 s26, s26, 1
        v_xor_b32 v12, s26, v15
        v_lshl_add_u32 v{XA+s}, v12, 4, v13
        v_add_u32 v{XA+4+s}, 40960, v{XA+s}
        """)
    k(f"""
    s_mov_b32 s31, 0x3f803f80
    v_mov_b32 v12, 0
    v_mov_b32 v13, 0
    v_mov_b32 v14, 0
    v_mov_b32 v15, 0
    """)
    k.stamp(1)
    k("s_waitcnt vmcnt(43)\ns_barrier")
    k.stamp(2)
    k("AUTO")
    breads(k, 0); breads(k, 1)
    for ks in range(20):
        if ks + 2 < 20: breads(k, ks + 2)
        else: pass
        ld.next(2 * ks); ld.next(2 * ks)
        b = BF + 16 * (ks % 3)
        for s in range(4):
            for p in range(2):
                n = 2 * ks + p
                k(mf(ACA + 16 * p + 4 * s, f"a[{4*n}:{4*n+3}]", b + 4 * s, ks == 0))
            k(f"v_dot2c_f32_bf16 v{12 + (s & 1)}, s31, v{b + s}")
            k(f"v_dot2c_f32_bf16 v{14 + (s & 1)}, v{b + s}, v{b + s}")
    k.stamp(3)
    breads(k, 0); breads(k, 1)
    k(f"""
    v_add_f32 v12, v12, v13
    v_add_f32 v14, v14, v15
    v_mov_b32 v13, v12
    v_mov_b32 v15, v14
    v_permlane32_swap_b32 v12, v13
    v_permlane32_swap_b32 v14, v15
    v_add_f32 v12, v12, v13
    v_add_f32 v14, v14, v15
    v_mov_b32 v13, v12
    v_mov_b32 v15, v14
    v_permlane16_swap_b32 v12, v13
    v_permlane16_swap_b32 v14, v15
    v_add_f32 v12, v12, v13
    v_add_f32 v14, v14, v15
    v_mul_f32 v12, {f2u(1/640)}, v12
    v_mul_f32 v14, {f2u(1/640)}, v14
    v_fma_f32 v14, -v12, v12, v14
    v_max_f32 v14, 0, v14
    v_cvt_pk_bf16_f32 v14, v14, v12
    v_and_b32 v{ST}, 0xffff0000, v14
    v_lshlrev_b32 v14, 16, v14
    v_add_f32 v14, {f2u(1e-5)}, v14
    v_cvt_pk_bf16_f32 v14, v14, v14
    v_lshlrev_b32 v14, 16, v14
    v_sqrt_f32 v14, v14
    v_and_b32 v13, 15, v1
    v_cvt_pk_bf16_f32 v14, v14, v14
    v_lshlrev_b32 v14, 16, v14
    v_rcp_f32 v14, v14
    v_lshlrev_b32 v13, 3, v13
    v_mul_f32 v{ST+1}, {LOG2E + 0x80000000}, v14
    s_lshl_b32 s26, s21, 7
    s_add_u32 s26, s26, {STAT}
    v_add_u32 v12, s26, v13
    ds_write_b64 v12, v[{ST}:{ST+1}]
    """)
    for p in range(3):
        for h in range(2):
            a = V12 + 8 * p + 4 + 2 * h
            k(f"v_mul_f32 v{a}, {LOG2E + 0x80000000}, v{a}\nv_mul_f32 v{a+1}, {LOG2E + 0x80000000}, v{a+1}")
    k("s_waitcnt lgkmcnt(0)\ns_barrier")
    for s in range(1, 4):
        k(f"v_xor_b32 v13, {128*s}, v12\nds_read_b64 v[{ST+2*s}:{ST+2*s+1}], v13")
    k(f"""
    s_mul_i32 s26, s21, 3
    s_add_u32 s26, s26, 1
    s_lshr_b32 s26, s26, 1
    s_mul_i32 s27, s23, 6
    s_add_u32 s26, s26, s27
    s_lshl_b32 s26, s26, 12
    s_lshr_b32 s30, s21, 1
    s_mul_i32 s30, s30, 3
    s_add_u32 s30, s30, 1
    s_add_u32 s27, s27, s30
    s_lshl_b32 s27, s27, 12
    s_and_b32 s30, s21, 1
    s_lshl_b32 s30, s30, 9
    s_add_u32 s27, s27, s30
    """)
    for s in range(4):
        k(f"s_xor_b32 s30, s21, {s}\ns_lshl_b32 s30, s30, 10\ns_add_u32 s{52+s}, s30, s26\ns_add_u32 s{56+s}, s30, s27\ns_mov_b32 s{60+s}, s30")
    epilogue(k, ACA, 0, PKD, 4)
    for i in range(4): ld.next(W2EARLY)
    epilogue(k, ACA + 16, 1, PKD + 2, 4)
    for s in range(4): k(f"buffer_store_dwordx4 v[{PKD+4*s}:{PKD+4*s+3}], v{vL16}, s[40:43], s{52+s} offen sc1")
    after_pair = 0
    k.stamp(4)
    for ks in range(20):
        if ks + 2 < 20: breads(k, ks + 2)
        n0 = ld.n2; ld.next(W2EARLY); after_pair += ld.n2 - n0
        b = BF + 16 * (ks % 3)
        n = 40 + ks
        for s in range(4): k(mf(ACB + 4 * s, f"a[{4*n}:{4*n+3}]", b + 4 * s, ks == 0))
    k.stamp(5)
    epilogue(k, ACB, 2, PKD, 2)
    for s in range(4): k(f"buffer_store_dwordx2 v[{PKD+2*s}:{PKD+2*s+1}], v{vL8}, s[40:43], s{56+s} offen sc1")
    k("MANUAL")
    k(f"""
    s_lshl_b32 s26, s22, 7
    s_add_u32 s26, s26, {WS_FLAGS}
    s_lshl_b32 s27, s23, 4
    s_lshl_b32 s30, s21, 2
    s_add_u32 s27, s27, s30
    s_add_u32 s27, s27, s26
    v_mov_b32 v14, s27
    s_lshl_b32 s30, s21, 5
    s_add_u32 s26, s26, s30
    v_and_b32 v13, 7, v1
    v_lshl_add_u32 v13, v13, 2, s26
    v_mov_b32 v15, 1
    v_mov_b32 v16, 2
    s_waitcnt vmcnt({after_pair + 4})
    s_mov_b64 exec, 1
    global_store_dword v14, v15, s[48:49] sc1
    s_mov_b64 exec, -1
    """)
    k.stamp(6)
    k(f"""
    v_lshrrev_b32 v17, 4, v1
    s_mul_i32 s26, s23, 320
    s_add_u32 s26, s26, 12800
    v_lshl_add_u32 v17, v17, 4, s26
    """)
    for s in range(4): k(f"v_add_u32 v{XA+s}, s{60+s}, v{vL16}\nv_add_u32 v{XA+4+s}, s{60+s}, v{vL8}")
    k(f"s_mul_i32 s52, s21, {12*4096}")
    k(f"s_waitcnt vmcnt({DELAY})")
    k(f"global_load_dword v12, v13, s[48:49] sc1")
    for dt in range(5): k(f"global_load_dwordx4 v[{GB+4*dt}:{GB+4*dt+3}], v17, s[48:49] offset:{64*dt}")
    n0 = ld.n2
    while ld.n2 < min(60, W2EARLY + REST1): ld.w2()
    younger = 5 + ld.n2 - n0
    k(f"""
    s_waitcnt vmcnt({younger})
    s_mov_b64 exec, 1
    global_store_dword v14, v16, s[48:49] sc1
    s_mov_b64 exec, -1
    """)
    poll(k, 1, 1, younger + 1)
    k.stamp(7)
    def hload(i):
        ks = KSEQ[i]; r = RING + 16 * (i % NRK)
        k(f"s_add_u32 s53, s52, {ks * 4096}")
        for s in range(4):
            if i < 8: k(f"buffer_load_dwordx4 v[{r+4*s}:{r+4*s+3}], v{XA+s}, s[40:43], s53 offen sc1")
            else:
                k(f"buffer_load_dwordx2 v[{r+4*s}:{r+4*s+1}], v{XA+4+s}, s[40:43], s53 offen sc1")
                k(f"buffer_load_dwordx2 v[{r+4*s+2}:{r+4*s+3}], v{XA+4+s}, s[40:43], s53 offen offset:512 sc1")
    def gemm2(i):
        r = RING + 16 * (i % NRK)
        for dt in range(5):
            for s in range(4):
                m = 5 * i + dt
                k(mf(AC2 + 20 * s + 4 * dt, f"a[{4*m}:{4*m+3}]", r + 4 * s, i == 0))
    for i in range(4): hload(i)
    k(f"global_load_dword v12, v13, s[48:49] sc1")
    for i in range(4, 8): hload(i)
    n0 = ld.n2
    while ld.n2 < 60: ld.w2()
    younger = 16 + ld.n2 - n0
    k("AUTO")
    for i in range(2): gemm2(i)
    k("MANUAL")
    poll(k, 2, 2, younger)
    k.stamp(8)
    k("AUTO")
    hload(8); hload(9)
    gemm2(2); hload(10)
    gemm2(3); hload(11)
    k(f"""
    s_lshl_b32 s26, s21, 1
    v_lshrrev_b32 v14, 4, v1              ; G
    v_bfe_u32 v15, v1, 2, 2
    v_lshl_add_u32 v15, v14, 2, v15       ; 4G + r
    v_and_b32 v16, 6, v15
    v_xor_b32 v16, s26, v16
    v_bfe_u32 v17, v1, 1, 1
    v_add_u32 v16, v16, v17
    v_lshlrev_b32 v16, 4, v16
    v_lshl_add_u32 v16, v15, 7, v16
    v_and_b32 v17, 1, v1
    v_lshl_add_u32 v16, v17, 3, v16
    s_mul_i32 s26, s23, {80*128}
    v_add_u32 v16, s26, v16
    s_mul_i32 s54, s21, 15360
    s_add_u32 s54, s54, {RED}
    v_and_b32 v17, 15, v1
    v_mul_u32_u24 v17, 176, v17
    v_lshl_add_u32 v17, v14, 3, v17
    v_add_u32 v17, s54, v17
    v_add_u32 v18, s54, v{vL16}
    s_lshr_b32 s26, s22, 3
    s_lshl_b32 s26, s26, 9
    s_and_b32 s27, s22, 1
    s_lshl_b32 s27, s27, 7
    s_add_u32 s26, s26, s27
    s_bfe_u32 s27, s22, 0x20001
    s_lshl_b32 s27, s27, 2
    s_add_u32 s26, s26, s27
    s_lshl_b32 s27, s21, 5
    s_add_u32 s26, s26, s27
    s_mul_i32 s26, s26, 1280
    s_mul_i32 s27, s23, 160
    s_add_u32 s55, s26, s27
    """)
    for i in range(4, 12): gemm2(i)
    k.stamp(9)
    for s in range(1, 4):
        k(f"s_xor_b32 s26, s21, {s}\ns_mul_i32 s26, s26, 15360\ns_add_u32 s26, s26, {RED + 5120*(s-1)}\nv_add_u32 v12, s26, v{vL16}")
        for dt in range(5): k(f"ds_write_b128 v12, v[{AC2+20*s+4*dt}:{AC2+20*s+4*dt+3}] offset:{1024*dt}")
    for i in range(3):
        k(f"""
        v_add_u32 v12, {64*i}, v1
        v_mul_u32_u24 v13, 6554, v12
        v_lshrrev_b32 v13, 16, v13            ; row
        v_mul_u32_u24 v14, 10, v13
        v_sub_u32 v12, v12, v14               ; col
        v_mul_u32_u24 v14, 176, v13
        v_lshl_add_u32 v14, v12, 4, v14
        v_add_u32 v{19+i}, s54, v14
        v_bfe_u32 v14, v13, 2, 1
        v_lshlrev_b32 v14, 8, v14
        v_bfe_u32 v15, v13, 3, 1
        v_lshl_add_u32 v14, v15, 4, v14
        v_and_b32 v15, 3, v13
        v_add_u32 v14, v14, v15
        v_mul_u32_u24 v14, 1280, v14
        v_lshl_add_u32 v{XA+i}, v12, 4, v14
        """)
    k(f"""
    v_lshrrev_b32 v13, 5, v1
    v_lshlrev_b32 v13, 30, v13
    v_add_u32 v{XA+2}, v{XA+2}, v13
    """)
    for q in range(10): k(f"v_mul_f32 v{GB+2*q}, {LN2 + 0x80000000}, v{GB+2*q}\nv_mul_f32 v{GB+2*q+1}, {LN2 + 0x80000000}, v{GB+2*q+1}")
    for dt in range(5): k(f"ds_read_b64_tr_b16 v[{RING+60+2*dt}:{RING+61+2*dt}], v16 offset:{2048*dt}")
    k("s_waitcnt lgkmcnt(0)\ns_barrier")
    for s in range(3):
        for dt in range(5): k(f"ds_read_b128 v[{RING+20*s+4*dt}:{RING+20*s+4*dt+3}], v18 offset:{5120*s + 1024*dt}")
    U = RING + 72
    for dt in range(5):
        for h in range(2):
            k(f"v_lshlrev_b32 v{U+4*dt+2*h}, 16, v{RING+60+2*dt+h}\nv_and_b32 v{U+4*dt+2*h+1}, 0xffff0000, v{RING+60+2*dt+h}")
    for s in range(3):
        for q in range(10): k(f"v_pk_add_f32 v[{AC2+2*q}:{AC2+2*q+1}], v[{AC2+2*q}:{AC2+2*q+1}], v[{RING+20*s+2*q}:{RING+20*s+2*q+1}]")
    for q in range(10): k(f"v_pk_fma_f32 v[{AC2+2*q}:{AC2+2*q+1}], v[{AC2+2*q}:{AC2+2*q+1}], v[{GB+2*q}:{GB+2*q+1}], v[{U+2*q}:{U+2*q+1}]")
    for dt in range(5):
        k(f"v_cvt_pk_bf16_f32 v{U+2*dt}, v{AC2+4*dt}, v{AC2+4*dt+1}\nv_cvt_pk_bf16_f32 v{U+2*dt+1}, v{AC2+4*dt+2}, v{AC2+4*dt+3}")
        k(f"ds_write_b64 v17, v[{U+2*dt}:{U+2*dt+1}] offset:{32*dt}")
    for i in range(3): k(f"ds_read_b128 v[{RING+4*i}:{RING+4*i+3}], v{19+i}")
    for i in range(3): k(f"buffer_store_dwordx4 v[{RING+4*i}:{RING+4*i+3}], v{XA+i}, s[44:47], s55 offen")
    k("MANUAL")
    k.stamp(10)
    k.end(2)
    k("LC_end:\ns_endpgm")
    spin(k, 1, 1); spin(k, 2, 2)
    return k.finish()

if __name__ == '__main__':
    print(gen_C())
```

```python
from asmlib import *
from layoutF import *

F_GRID = 256
NCONV = 160
LNB, LNS = 0, 1600
STATP = 12800
MODB = 13312
KT = 33792; KTS = 18432
TAPS = 107520; TCS = 2112; TAPCH = 4 * TCS
STG = TAPS + 4 * TAPCH; STGS = 2112
F_LDS = 149760
OH = 480
O3 = 4576 + 16; O5 = O3 + 3072 + 16; O7 = O5 + 3072 + 16; O9 = O7 + 2048 + 16
CHS = (O9 + 2048 + 127) // 128 * 128 + 16
OU = 4 * CHS
W1R = KT; W2R = KT + 20480; VRED = W2R + 20480
RED = 81920; STAT = RED + 61440
assert OU + 16384 <= TAPS and STG + 4 * STGS <= F_LDS and STAT + 512 <= F_LDS
pU, pAR, pAI, pBR, pBI, pCR, pCI, pLD, pDS, pW1, pW2, pC, pWM, pOUT, pDBG, pWS = 36, 38, 40, 42, 44, 46, 48, 50, 52, 56, 58, 60, 62, 64, 66, 68
def P(p): return f"s[{p}:{p+1}]"
SC = 'sc1'

def srd(k, r, base, off, size):
    k(f"s_add_u32 s{r}, s{base}, {off}\ns_addc_u32 s{r+1}, s{base+1}, 0\ns_mov_b32 s{r+2}, {size}\ns_mov_b32 s{r+3}, 0x20000")

def mf(acc, a, b, first):
    c = '0' if first else f'v[{acc}:{acc+3}]'
    return f"v_mfma_f32_16x16x32_bf16 v[{acc}:{acc+3}], {a}, {b}, {c}"
V4 = lambda r: f"v[{r}:{r+3}]"
A4 = lambda r: f"a[{r}:{r+3}]"

SPINS = []
def wait_flags(k, tag, vdata, vaddr, target, nwait):
    if nwait is not None: k(f"s_waitcnt vmcnt({nwait})")
    k(f"v_cmp_gt_u32 vcc, {target}, v{vdata}\ns_cbranch_vccnz LF_spin{tag}\nLF_go{tag}:")
    SPINS.append(f"""
    LF_spin{tag}:
    s_mov_b32 s30, 40000
    LF_spinl{tag}:
    global_load_dword v{vdata}, v{vaddr}, {P(pDBG if tag.startswith('init') else pWS)} sc1
    s_waitcnt vmcnt(0)
    v_cmp_gt_u32 vcc, {target}, v{vdata}
    s_cbranch_vccz LF_go{tag}
    s_sub_u32 s30, s30, 1
    s_cmp_lg_u32 s30, 0
    s_cbranch_scc1 LF_spinl{tag}
    s_branch LF_go{tag}
    """)

def arrive(k, off, va, vb):
    k(f"""
    s_bfe_u32 s26, s2, 0x40003
    s_lshl_b32 s26, s26, 7
    s_add_u32 s26, s26, {WS_SYNC + off}
    v_lshl_add_u32 v{va}, v1, 11, s26
    v_mov_b32 v{vb}, 1
    s_mov_b64 exec, 0xff
    global_atomic_add v{va}, v{vb}, {P(pWS)} sc1
    s_mov_b64 exec, -1
    """)

def poll_addr(k, off, va):
    k(f"""
    s_and_b32 s26, s2, 7
    s_lshl_b32 s26, s26, 11
    s_add_u32 s26, s26, {WS_SYNC + off}
    v_and_b32 v{va}, 15, v1
    v_lshl_add_u32 v{va}, v{va}, 7, s26
    """)

def rstd_chain(k, m, q, lo, extra=''):
    k(f"""
    v_fma_f32 v{q}, -v{m}, v{m}, v{q}
    v_max_f32 v{q}, 0, v{q}
    v_cvt_pk_bf16_f32 v{q}, v{q}, v{m}
    v_and_b32 v{m}, 0xffff0000, v{q}
    v_lshlrev_b32 v{q}, 16, v{q}
    v_add_f32 v{q}, {f2u(1e-5)}, v{q}
    v_cvt_pk_bf16_f32 v{q}, v{q}, v{q}
    v_lshlrev_b32 v{q}, 16, v{q}
    v_sqrt_f32 v{q}, v{q}
    v_cvt_pk_bf16_f32 v{q}, v{q}, v{q}
    v_lshlrev_b32 v{q}, 16, v{q}
    v_rcp_f32 v{q}, v{q}
    """)

def phase_a(k):
    k(f"""
    s_load_dwordx16 s[36:51], s[0:1], 0
    s_load_dwordx4 s[60:63], s[0:1], 96
    s_load_dwordx2 s[68:69], s[0:1], 128
    s_load_dwordx2 s[52:53], s[0:1], 64
    s_load_dwordx4 s[56:59], s[0:1], 80
    s_load_dwordx4 s[64:67], s[0:1], 112
    v_lshrrev_b32 v1, 6, v0
    v_readfirstlane_b32 s21, v1
    v_and_b32 v1, 63, v0
    v_lshrrev_b32 v4, 3, v1               ; r
    v_and_b32 v5, 7, v1
    v_lshlrev_b32 v5, 4, v5               ; 16c
    v_mul_u32_u24 v2, 1280, v4
    v_add_u32 v2, v2, v5                  ; u voffset
    v_mul_u32_u24 v3, 7680, v4
    v_add_u32 v3, v3, v5
    s_mul_i32 s22, s2, 10240
    s_lshl_b32 s23, s21, 7
    s_add_u32 s22, s22, s23
    s_add_u32 s24, s22, 1024
    s_cmp_lt_u32 s21, 2
    s_cselect_b32 s24, s24, 0x40000000
    s_mul_hi_u32 s25, s2, {(1 << 32) // 60 + 1}       ; kq
    s_mul_i32 s26, s25, 60
    s_sub_u32 s26, s2, s26
    s_mul_i32 s27, s25, 160
    s_mul_i32 s28, s21, 40
    s_add_u32 s28, s28, s27
    s_mul_i32 s28, s28, 7680
    s_lshl_b32 s29, s26, 7
    s_add_u32 s28, s28, s29
    v_add_u32 v3, s28, v3
    s_lshl_b32 s27, s27, 1
    v_lshl_add_u32 v6, v1, 2, s27
    v_and_b32 v7, 15, v1
    v_lshl_add_u32 v7, v7, 2, s27
    s_mul_i32 s29, s21, 5120
    s_add_u32 m0, s29, {MODB}
    s_mov_b32 s6, {L*D*2}
    s_mov_b32 s7, 0x20000
    s_waitcnt lgkmcnt(0)
    s_mov_b32 s4, s36
    s_mov_b32 s5, s37
    buffer_load_dwordx4 v[12:15], v2, s[4:7], s22 offen
    buffer_load_dwordx4 v[16:19], v2, s[4:7], s22 offen offset:512
    buffer_load_dwordx4 v[20:23], v2, s[4:7], s24 offen
    s_cmp_lt_u32 s2, 240
    s_cbranch_scc0 LF_nomodld
    global_load_dword v24, v6, {P(pC)}
    global_load_dword v25, v7, {P(pC)} offset:256
    """)
    for i in range(5):
        k(f"global_load_lds_dwordx4 v3, {P(pWM)}")
        if i < 4: k(f"s_add_u32 m0, m0, 1024\nv_add_u32 v3, {8*7680}, v3")
    k("s_branch LF_ld2\nLF_nomodld:")
    k(f"""
    s_cmp_eq_u32 s2, 255
    s_cbranch_scc0 LF_pad7
    s_cmp_eq_u32 s21, 3
    s_cbranch_scc0 LF_pad7
    v_mov_b32 v26, 0
    v_mov_b32 v27, 0
    v_mov_b32 v28, 0
    v_mov_b32 v29, 0
    v_lshlrev_b32 v30, 7, v1
    v_add_u32 v30, {WS_SYNC}, v30
    """)
    for i in range(4): k(f"global_store_dword v30, v26, {P(pWS)} sc1\nv_add_u32 v30, 8192, v30")
    k(f"v_lshlrev_b32 v30, 4, v1\nv_add_u32 v30, {WS_SYNC + F1_OFF}, v30")
    for i in range(8): k(f"global_store_dwordx4 v30, v[26:29], {P(pWS)} sc1\nv_add_u32 v30, 1024, v30")
    k(f"""
    v_mov_b32 v27, 1
    s_waitcnt vmcnt(0)
    s_mov_b64 exec, 1
    global_store_dword v26, v27, {P(pDBG)} sc1
    s_mov_b64 exec, -1
    LF_pad7:
    s_waitcnt vmcnt(0)
    LF_ld2:
    """)

def phase_a2(k, nyoung):
    k(f"""
    v_mul_u32_u24 v6, {LNS}, v4
    v_add_u32 v6, v6, v5
    v_add_u32 v6, s23, v6
    v_bfe_u32 v8, v1, 2, 2
    v_lshrrev_b32 v9, 4, v1               ; G
    v_and_b32 v10, 3, v1
    v_mul_u32_u24 v7, {LNS}, v8
    v_lshl_add_u32 v7, v9, 5, v7
    v_lshl_add_u32 v7, v10, 3, v7
    v_add_u32 v7, s23, v7
    v_lshl_add_u32 v11, v9, 3, v8
    v_lshlrev_b32 v11, 7, v11
    v_lshl_add_u32 v11, v10, 3, v11
    s_lshl_b32 s27, s21, 5
    s_add_u32 s27, s27, {MODB}
    v_add_u32 v11, s27, v11
    v_lshrrev_b32 v8, 2, v1
    v_lshlrev_b32 v8, 14, v8
    v_lshl_add_u32 v8, v10, 4, v8
    v_lshlrev_b32 v9, 4, v9
    s_lshl_b32 s27, s21, 3
    v_lshl_add_u32 v10, v4, 5, s27
    v_lshlrev_b32 v4, 5, v4
    s_lshl_b32 s22, s21, 18
    s_lshl_b32 s27, s2, 6
    s_add_u32 s22, s22, s27
    """)
    srd(k, 8, pWS, WS_NT, 160 * 16384)
    srd(k, 12, pWS, WS_UT, 160 * 16384)
    k(f"""
    s_mov_b32 s24, 0x3f803f80
    v_mov_b32 v26, 0
    v_mov_b32 v27, 0
    v_mov_b32 v28, 0
    v_mov_b32 v29, 0
    """)
    for q in range(3):
        k(f"s_waitcnt vmcnt({nyoung + 7 + 2 - q})")
        if q == 0: k.stamp(1)
        k(f"ds_write_b128 v6, v[{12+4*q}:{15+4*q}] offset:{512*q}")
        for i in range(4):
            r = 12 + 4 * q + i
            k(f"v_dot2c_f32_bf16 v{26 + 2*(i&1)}, s24, v{r}\nv_dot2c_f32_bf16 v{27 + 2*(i&1)}, v{r}, v{r}")
    k(f"""
    s_mov_b32 s28, {LOG2E + 0x80000000}
    v_pk_add_f32 v[26:27], v[26:27], v[28:29]
    s_waitcnt vmcnt({nyoung + 5})
    v_lshlrev_b32 v12, 16, v24
    v_add_f32_dpp v26, v26, v26 quad_perm:[1,0,3,2] row_mask:0xf bank_mask:0xf
    v_add_f32_dpp v27, v27, v27 quad_perm:[1,0,3,2] row_mask:0xf bank_mask:0xf
    v_and_b32 v13, 0xffff0000, v24
    v_add_f32_dpp v26, v26, v26 quad_perm:[2,3,0,1] row_mask:0xf bank_mask:0xf
    v_add_f32_dpp v27, v27, v27 quad_perm:[2,3,0,1] row_mask:0xf bank_mask:0xf
    v_lshlrev_b32 v14, 16, v25
    v_add_f32_dpp v26, v26, v26 row_half_mirror row_mask:0xf bank_mask:0xf
    v_add_f32_dpp v27, v27, v27 row_half_mirror row_mask:0xf bank_mask:0xf
    v_and_b32 v15, 0xffff0000, v25
    ds_write_b64 v10, v[26:27] offset:{STATP}
    """)
    for i in range(4): k(f"v_mul_f32 v{16+i}, s28, v{12+i}")
    for i in range(4): k(f"v_exp_f32 v{16+i}, v{16+i}")
    for i in range(4): k(f"v_add_f32 v{16+i}, 1.0, v{16+i}")
    for i in range(4): k(f"v_rcp_f32 v{16+i}, v{16+i}")
    for i in range(4): k(f"v_mul_f32 v{12+i}, v{12+i}, v{16+i}")
    k(f"v_cvt_pk_bf16_f32 v24, v12, v13\nv_cvt_pk_bf16_f32 v25, v14, v15")
    k(f"s_waitcnt lgkmcnt(0)\ns_barrier")
    k("AUTO")
    k(f"ds_read_b128 v[12:15], v4 offset:{STATP}\nds_read_b128 v[16:19], v4 offset:{STATP + 16}")
    for q in range(3):
        k(f"ds_read_b64_tr_b16 v[{60+4*q}:{61+4*q}], v7 offset:{512*q}\nds_read_b64_tr_b16 v[{62+4*q}:{63+4*q}], v7 offset:{512*q + 4*LNS}")
    k(f"""
    v_pk_add_f32 v[12:13], v[12:13], v[14:15]
    v_pk_add_f32 v[16:17], v[16:17], v[18:19]
    v_pk_add_f32 v[12:13], v[12:13], v[16:17]
    v_mul_f32 v12, {f2u(1/640)}, v12
    v_mul_f32 v13, {f2u(1/640)}, v13
    """)
    for q in range(3): k(f"buffer_store_dwordx4 v[{60+4*q}:{63+4*q}], v8, s[12:15], s22 offen {SC}" + ("\ns_add_u32 s22, s22, 0x100000" if q < 2 else "\ns_sub_u32 s22, s22, 0x200000"))
    rstd_chain(k, 12, 13, 14)
    for ks in range(5):
        for q in range(4):
            k(f"ds_bpermute_b32 v{32+4*ks+q}, v9, v{24 if ks < 4 else 25} offset:{4*((16*ks if ks < 4 else 0) + q)}")
    k("v_mul_f32 v12, v12, v13")
    for r in range(8): k(f"v_readlane_b32 s{70+r}, v13, {8*r}")
    for r in range(8): k(f"v_readlane_b32 s{78+r}, v12, {8*r}")
    for r in range(8): k(f"v_mov_b32 v{52+r}, s{78+r}")
    for q in range(3):
        b = 60 + 4 * q; u = 72 + 12 * (q & 1)
        for i in range(4): k(f"v_lshlrev_b32 v{u+2*i}, 16, v{b+i}\nv_and_b32 v{u+2*i+1}, 0xffff0000, v{b+i}")
        for i in range(4): k(f"v_pk_fma_f32 v[{u+2*i}:{u+2*i+1}], v[{u+2*i}:{u+2*i+1}], s[{70+2*i}:{71+2*i}], v[{52+2*i}:{53+2*i}] neg_lo:[0,0,1] neg_hi:[0,0,1]")
        for i in range(4): k(f"v_cvt_pk_bf16_f32 v{u+8+i}, v{u+2*i}, v{u+2*i+1}")
        k(f"buffer_store_dwordx4 v[{u+8}:{u+11}], v8, s[8:11], s22 offen {SC}" + ("\ns_add_u32 s22, s22, 0x100000" if q < 2 else ""))
    k("MANUAL")
    k.stamp(2)
    k(f"s_waitcnt vmcnt({nyoung + 6})\ns_cmp_lt_u32 s2, {NCONV}\ns_cbranch_scc1 LF_a3\ns_waitcnt vmcnt(6)\nLF_a3:\ns_barrier\ns_cmp_lt_u32 s2, 240\ns_cbranch_scc0 LF_nomod\nAUTO")
    for ks in range(5):
        for h in range(2): k(f"ds_read_b64_tr_b16 v[{60+4*ks+2*h}:{61+4*ks+2*h}], v11 offset:{4096*ks + 512*h}")
    k(f"""
    s_mul_i32 s25, s25, 15360
    s_lshl_b32 s26, s26, 8
    s_add_u32 s25, s25, s26
    s_lshl_b32 s26, s21, 6
    s_add_u32 s25, s25, s26
    v_lshl_add_u32 v12, v1, 2, s25
    """)
    for ks in range(5): k(mf(16, V4(32 + 4 * ks), V4(60 + 4 * ks), ks == 0))
    k(f"""MANUAL
    s_mov_b64 exec, 0xffff
    global_store_dword v12, v16, {P(pWS)} {SC}
    s_mov_b64 exec, -1
    LF_nomod:
    """)

def cmul(k, z, a, b, t):
    k(f"v_pk_mul_f32 v[{t}:{t+1}], v[{a}:{a+1}], v[{b}:{b+1}] op_sel_hi:[1,0]")
    return f"v_pk_fma_f32 v[{z}:{z+1}], v[{a}:{a+1}], v[{b}:{b+1}], v[{t}:{t+1}] op_sel:[1,1,0] op_sel_hi:[0,1,1] neg_lo:[1,0,0]"
def cmuls(k, lst, tmp):
    for s in [cmul(k, z, a, b, tmp + 2 * i) for i, (z, a, b) in enumerate(lst)]: k(s)

PRM = 200
def kgen_loads(k):
    k(f"""
    s_lshl_b32 s20, s2, 2
    s_add_u32 s20, s20, s21               ; channel d
    s_mul_i32 s29, s20, 384
    v_lshl_add_u32 v30, v1, 1, s29
    s_lshl_b32 s29, s20, 1
    v_mov_b32 v31, s29
    """)
    for i in list(range(19)) + [20]: k(f"v_mov_b32 v{PRM+i}, 0")
    k(f"global_load_short_d16_hi v{PRM+18}, v31, {P(pLD)}")
    for p in range(3):
        for i, ptr in enumerate((pAR, pAI, pBR, pBI, pCR, pCI)):
            k(f"global_load_short_d16_hi v{PRM+6*p+i}, v30, {P(ptr)} offset:{128*p}")
    k(f"global_load_short_d16_hi v{PRM+20}, v31, {P(pDS)}")
    return 20

def kgen(k):
    AR, AI, BR, CR, DT, DS = PRM, PRM + 1, PRM + 2, PRM + 4, PRM + 18, PRM + 20
    TMP, LR = 14, 22
    ACC = 104
    k(f"""
    s_mul_i32 s26, s21, {KTS}
    s_add_u32 s26, s26, {KT}
    v_mul_u32_u24 v12, 144, v1
    v_add_u32 v12, s26, v12
    v_bfe_u32 v14, v1, 2, 2
    v_lshrrev_b32 v15, 5, v1              ; hi
    v_lshl_add_u32 v14, v14, 1, v15
    v_mul_u32_u24 v14, 288, v14
    v_bfe_u32 v16, v1, 4, 1
    v_lshlrev_b32 v16, 5, v16
    v_and_b32 v17, 3, v1
    v_lshlrev_b32 v17, 3, v17
    v_add3_u32 v13, v14, v16, v17
    v_add_u32 v13, s26, v13
    s_mov_b32 s28, {LOG2E}
    s_mov_b32 s29, {INV2PI}
    s_mov_b32 s31, 0
    s_waitcnt vmcnt(8)
    v_mul_f32 v14, s28, v{DT}
    v_fma_f32 v15, v{DT}, s28, -v14
    v_fmac_f32 v15, {LOG2E_LO}, v{DT}
    v_exp_f32 v14, v14
    v_mul_f32 v15, {LN2}, v15
    v_fmac_f32 v14, v14, v15
    v_cvt_pk_bf16_f32 v14, v14, v14
    v_lshlrev_b32 v{DT}, 16, v14
    """)
    for i in range(16): k(f"v_mov_b32 v{ACC+i}, 0")
    k(f"""
    LF_kpass:
    v_pk_mul_f32 v[{LR}:{LR+1}], v[{AR}:{AR+1}], v[{DT}:{DT+1}] op_sel_hi:[1,0]
    v_pk_mul_f32 v[{LR}:{LR+1}], v[{LR}:{LR+1}], s[28:29]
    """)
    W = {1: 24, 8: 26, 256: 28, 2: 30, 3: 32, 4: 34, 5: 36, 6: 38, 7: 40, 16: 42, 32: 44, 258: 46, 260: 48, 262: 50, 264: 52, 512: 54}
    k(f"""
    v_mul_f32 v16, {f2u(8.0)}, v{LR}
    v_mul_f32 v17, {f2u(8.0)}, v{LR+1}
    v_mul_f32 v18, {f2u(256.0)}, v{LR}
    v_mul_f32 v19, {f2u(256.0)}, v{LR+1}
    v_fract_f32 v15, v{LR+1}
    v_fract_f32 v17, v17
    v_fract_f32 v19, v19
    v_exp_f32 v14, v{LR}
    v_exp_f32 v16, v16
    v_exp_f32 v18, v18
    """)
    for i, r in enumerate((24, 26, 28)): k(f"v_cos_f32 v{r}, v{15+2*i}\nv_sin_f32 v{r+1}, v{15+2*i}")
    for i, r in enumerate((24, 26, 28)): k(f"v_pk_mul_f32 v[{r}:{r+1}], v[{r}:{r+1}], v[{14+2*i}:{15+2*i}] op_sel_hi:[1,0]")
    Z = [56 + 2 * i for i in range(8)]
    cmuls(k, [(Z[0], CR, BR), (W[2], W[1], W[1]), (W[16], W[8], W[8]), (W[512], W[256], W[256])], TMP)
    k(f"v_pk_mul_f32 v[{Z[0]}:{Z[0]+1}], v[{Z[0]}:{Z[0]+1}], v[{DT}:{DT+1}] op_sel_hi:[1,0]")
    for i in range(12): k(f"v_mov_b32 v{PRM+i}, v{PRM+6+i}")
    cmuls(k, [(W[3], W[2], W[1]), (W[4], W[2], W[2]), (W[32], W[16], W[16]), (W[258], W[256], W[2])], TMP)
    cmuls(k, [(Z[1], Z[0], W[8]), (Z[2], Z[0], W[16]), (W[5], W[4], W[1]), (W[6], W[4], W[2])], TMP)
    cmuls(k, [(Z[3], Z[1], W[16]), (W[7], W[4], W[3]), (W[260], W[256], W[4]), (W[264], W[256], W[8])], TMP)
    st = {'g': 0}
    def put(grp, vals, neg):
        for part in range(2):
            pk = 72 + 4 * (st['g'] % 4); st['g'] += 1
            s = '-' if neg and part else ''
            for i in range(4):
                a, b = vals[2 * i], vals[2 * i + 1]
                ra = ('0' if part else '1.0') if a is None else f'{s}v{a+part}'
                k(f"v_cvt_pk_bf16_f32 v{pk+i}, {ra}, {s}v{b+part}")
            k(f"ds_write_b128 v12, v[{pk}:{pk+3}] offset:{16*grp + 9216*part}")
    cmuls(k, [(W[262], W[256], W[6]), (Z[4], Z[0], W[32]), (Z[5], Z[1], W[32]), (Z[6], Z[2], W[32])], TMP)
    put(0, [None, W[1], W[2], W[3], W[4], W[5], W[6], W[7]], True)
    X = {516: W[1], 520: W[3], 768: W[5], 1024: W[7], 772: W[2], 1280: W[6]}
    cmuls(k, [(Z[7], Z[3], W[32]), (X[516], W[512], W[4]), (X[520], W[512], W[8]), (X[768], W[512], W[256])], TMP)
    put(1, [W[256], W[256], W[258], W[260], W[260], W[260], W[262], W[264]], True)
    X.update({1536: W[258], 1792: W[260], 2048: W[262]})
    cmuls(k, [(X[1024], W[512], W[512]), (X[772], X[768], W[4])], TMP)
    put(4, Z, False)
    cmuls(k, [(Z[0], Z[4], W[32]), (Z[1], Z[5], W[32]), (Z[2], Z[6], W[32]), (Z[3], Z[7], W[32])], TMP)
    put(2, [W[512], W[512], W[512], X[516], X[516], X[516], X[520], X[520]], True)
    k(f"""
    s_cmp_eq_u32 s31, 1
    s_cbranch_scc0 LF_noarr1
    s_waitcnt vmcnt(0)
    s_barrier
    s_cmp_eq_u32 s21, 0
    s_cbranch_scc0 LF_noarr1
    """)
    wait_flags(k, 'init', 120, 121, 1, 0)
    arrive(k, S1_OFF, 122, 123)
    k("LF_noarr1:")
    cmuls(k, [(Z[4], Z[0], W[32]), (Z[5], Z[1], W[32]), (Z[6], Z[2], W[32]), (Z[7], Z[3], W[32])], TMP)
    cmuls(k, [(X[1280], X[1024], W[256]), (X[1536], X[1024], W[512]), (X[1792], X[1024], X[768]), (X[2048], X[1024], X[1024])], TMP)
    put(5, Z, False)
    cmuls(k, [(Z[0], Z[4], W[32]), (Z[1], Z[5], W[32]), (Z[2], Z[6], W[32]), (Z[3], Z[7], W[32])], TMP)
    put(3, [X[768], X[1024], X[1536], X[2048], X[772], X[1280], X[1792], X[1024]], True)
    cmuls(k, [(Z[4], Z[0], W[32]), (Z[5], Z[1], W[32]), (Z[6], Z[2], W[32]), (Z[7], Z[3], W[32])], TMP)
    put(6, Z, False)
    cmuls(k, [(Z[0], Z[4], W[32]), (Z[1], Z[5], W[32]), (Z[2], Z[6], W[32]), (Z[3], Z[7], W[32])], TMP)
    cmuls(k, [(Z[4], Z[0], W[32]), (Z[5], Z[1], W[32]), (Z[6], Z[2], W[32]), (Z[7], Z[3], W[32])], TMP)
    put(7, Z, False)
    FR = 24
    def rd(s):
        for tb in range(2):
            for h in range(2):
                r = FR + 8 * (s % 4) + 4 * tb + 2 * h
                k(f"ds_read_b64_tr_b16 v[{r}:{r+1}], v13 offset:{(16*(s % 4) + h)*144 + 64*tb + 9216*(s // 4)}")
    k("AUTO")
    for s in range(3): rd(s)
    for s in range(8):
        r = FR + 8 * (s % 4)
        k(f"v_mfma_f32_32x32x16_bf16 v[{ACC}:{ACC+15}], v[{r}:{r+3}], v[{r+4}:{r+7}], v[{ACC}:{ACC+15}]")
        if s + 3 < 8: rd(s + 3)
    k(f"""MANUAL
    s_add_u32 s31, s31, 1
    s_cmp_lt_u32 s31, 3
    s_cbranch_scc1 LF_kpass
    """)
    k.stamp(3)
    poll_addr(k, S1_OFF, 121)
    k(f"global_load_dword v120, v121, {P(pWS)} sc1")
    DUM = 2 * 1010
    k(f"""
    s_mul_i32 s26, s21, {STGS}
    s_add_u32 s26, s26, {STG}
    v_mov_b32 v24, 0
    v_mov_b32 v25, 0
    v_mov_b32 v26, 0
    v_mov_b32 v27, 0
    v_lshl_add_u32 v14, v1, 4, s26
    ds_write_b128 v14, v[24:27]
    ds_write_b128 v14, v[24:27] offset:1024
    v_mov_b32 v28, s26
    ds_write_b128 v28, v[24:27] offset:2048
    v_lshrrev_b32 v15, 5, v1              ; hi
    v_and_b32 v34, 1, v1                  ; odd
    v_bfe_u32 v35, v1, 1, 4               ; kappa'
    v_or_b32 v36, v34, v15
    v_mul_u32_u24 v37, 48, v34
    v_mul_u32_u24 v38, 96, v15
    v_add3_u32 v36, v36, v37, v38
    v_add_u32 v36, v36, v35
    v_lshl_add_u32 v42, v36, 1, s26
    v_add_u32 v39, {DUM}, v28
    v_add_u32 v36, {2*B5A}, v42
    v_cmp_eq_u32 vcc, 0, v35
    v_mul_u32_u24 v37, {B9 - 1 - B7}, v34
    v_lshl_add_u32 v38, v15, 4, v35
    v_cndmask_b32 v43, v36, v39, vcc
    v_sub_u32 v38, v38, v37
    v_add_u32 v38, {B9}, v38
    v_lshl_add_u32 v44, v38, 1, s26
    v_add_u32 v37, {2*(BC + 4)}, v28
    v_cmp_eq_u32 vcc, 0, v1
    v_add_u32 v40, {2*(BC + 5)}, v28
    v_add_u32 v41, {2*(B9 + 64)}, v28
    v_cndmask_b32 v45, v44, v37, vcc
    v_cndmask_b32 v46, v39, v40, vcc
    v_cndmask_b32 v47, v39, v41, vcc
    v_cndmask_b32 v{DS}, 0, v{DS}, vcc
    v_add_u32 v37, {2*(B5A + 32)}, v28
    v_cmp_eq_u32 vcc, 32, v1
    v_and_b32 v38, 31, v1
    v_lshlrev_b32 v38, 4, v38
    v_cndmask_b32 v47, v47, v37, vcc
    v_lshl_add_u32 v38, v15, 3, v38
    v_add_u32 v48, s26, v38               ; 16n + 8hi
    v_and_b32 v37, 30, v1
    v_cmp_eq_u32 vcc, 0, v37
    v_add_u32 v37, {2*1016 - 2*(BA+1+512)}, v28
    v_add_f32 v{ACC}, v{ACC}, v{DS}
    v_cndmask_b32 v49, v37, v48, vcc
    v_cmp_ne_u32 vcc, 33, v1
    v_cvt_pk_bf16_f32 v24, v{ACC}, v{ACC+1}
    v_cvt_pk_bf16_f32 v25, v{ACC+2}, v{ACC+3}
    v_cvt_pk_bf16_f32 v26, v{ACC+4}, v{ACC+5}
    v_cvt_pk_bf16_f32 v27, v{ACC+6}, v{ACC+7}
    v_cvt_pk_bf16_f32 v28, v{ACC+8}, v{ACC+9}
    v_cvt_pk_bf16_f32 v29, v{ACC+10}, v{ACC+11}
    v_cvt_pk_bf16_f32 v30, v{ACC+8}, v{ACC+12}
    v_cvt_pk_bf16_f32 v31, v{ACC+13}, v{ACC+14}
    v_cvt_pk_bf16_f32 v32, v{ACC+15}, v{ACC+15}
    v_cndmask_b32 v29, 0, v29, vcc
    ds_write_b64 v48, v[24:25] offset:{2*(BA+1)}
    ds_write_b64 v48, v[26:27] offset:{2*(BA+1) + 512}
    ds_write_b64 v49, v[28:29] offset:{2*(BA+1) + 1024}
    ds_write_b16 v43, v30
    ds_write_b16_d16_hi v42, v30 offset:{2*B5A + 32}
    ds_write_b16 v45, v31
    ds_write_b16 v46, v31
    ds_write_b16_d16_hi v44, v31 offset:64
    ds_write_b16 v47, v32
    AUTO
    ds_read_b128 v[24:27], v14
    ds_read_b64 v[28:29], v14 offset:16
    ds_read_b128 v[48:51], v14 offset:1024
    ds_read_b64 v[52:53], v14 offset:1040
    s_mul_i32 s26, s21, {TAPCH}
    s_add_u32 s26, s26, {TAPS}
    v_lshl_add_u32 v14, v1, 4, s26
    """)
    for q, b in enumerate((24, 48)):
        for i in range(4): k(f"v_alignbit_b32 v{b+8+i}, v{b+i+1}, v{b+i}, 16")
        k(f"ds_write_b128 v14, v[{b+8}:{b+11}] offset:{1024*q}")
        k(f"ds_write_b128 v14, v[{b+2}:{b+5}] offset:{1024*q + 3*TCS}")
        for i in range(4): k(f"v_mov_b32 v{b+12+i}, v{b+i+1}")
        k(f"ds_write_b128 v14, v[{b+12}:{b+15}] offset:{1024*q + TCS}")
        for i in range(4): k(f"v_alignbit_b32 v{b+16+i}, v{b+i+2}, v{b+i+1}, 16")
        k(f"ds_write_b128 v14, v[{b+16}:{b+19}] offset:{1024*q + 2*TCS}")
    k("MANUAL")

TA0 = 128
T20 = 200
vRD, vDA, vD3, vRU, vWU, vWH, vST = 2, 3, 4, 5, 6, 7, 8
BAND = 16
CACC = 40
CU_ = 72
RING = 104; NRING = 6
WTMP = 128
DEC = 152
NREG = 216

def conv_setup(k):
    k(f"""
    v_and_b32 v10, 3, v1                  ; cc / j
    v_bfe_u32 v11, v1, 2, 2               ; r
    v_lshrrev_b32 v12, 4, v1              ; G
    v_and_b32 v13, 15, v1                 ; a / i
    v_sub_u32 v14, 3, v11
    v_mul_u32_u24 v14, {TCS}, v14
    v_lshl_add_u32 v14, v10, 3, v14
    v_add_u32 v14, s26, v14
    v_lshlrev_b32 v15, 4, v12
    v_sub_u32 v15, 48, v15
    v_add_u32 v36, v14, v15               ; direct
    v_and_b32 v15, 1, v12                 ; G&1
    v_lshrrev_b32 v9, 1, v12              ; G>>1
    v_lshlrev_b32 v37, 3, v15
    v_sub_u32 v14, v14, v37
    v_add_u32 v14, 8, v14
    v_mul_u32_u24 v37, {2*(B3A - B5A)}, v9
    v_add_u32 v37, v14, v37
    v_mul_u32_u24 v38, {2*(B9 - B7)}, v9
    v_add_u32 v38, v14, v38
    """)
    for m in range(18):
        for h in range(2): k(f"ds_read_b64_tr_b16 a[{TA0+4*m+2*h}:{TA0+4*m+2*h+1}], v36 offset:{64*m - 8*h + 8}")
    for idx, (base, mu, va) in enumerate([(B5A, 0, 37), (B5A, 1, 37), (B5A, 2, 37), (B5B, 0, 37), (B5B, 1, 37), (B5B, 2, 37)] + [(B7, mu, 38) for mu in range(4)]):
        for h in range(2): k(f"ds_read_b64_tr_b16 a[{T20+4*idx+2*h}:{T20+4*idx+2*h+1}], v{va} offset:{2*(base-3) - 8 + 32*mu - 16*h}")
    k(f"""
    s_mul_i32 s27, s21, {CHS}
    v_lshlrev_b32 v14, 5, v13
    v_lshl_add_u32 v39, v12, 4, v14
    v_add_u32 v{vRD}, s27, v39            ; h frag: 32a + 16G
    v_lshl_add_u32 v39, v12, 3, v14
    v_add_u32 v{vWU}, s27, v39
    v_lshlrev_b32 v14, 7, v15
    v_lshl_add_u32 v14, v11, 5, v14
    v_lshl_add_u32 v14, v10, 3, v14
    v_add_u32 v14, s27, v14               ; 128(G&1) + 32r + 8cc
    v_mul_u32_u24 v39, {O5 - 16 - O3}, v9
    v_sub_u32 v39, v14, v39
    v_add_u32 v{vDA}, {O5 - 16}, v39
    v_lshlrev_b32 v39, 5, v9
    v_sub_u32 v39, 16, v39
    v_add_u32 v9, v{vDA}, v39
    v_lshrrev_b32 v39, 1, v12
    v_mul_u32_u24 v39, {O9 - 16 - O7}, v39
    v_add_u32 v39, v14, v39
    v_add_u32 v{vD3}, {O7}, v39
    v_bfe_u32 v39, v1, 1, 2
    v_xor_b32 v39, s21, v39
    v_lshlrev_b32 v39, 4, v39
    v_lshl_add_u32 v39, v13, 7, v39
    v_lshl_add_u32 v39, v15, 6, v39
    v_add_u32 v{vRU}, {OU}, v39
    v_mul_u32_u24 v39, {CHS}, v10
    v_lshrrev_b32 v14, 2, v1
    s_lshl_b32 s28, s21, 4
    v_add_u32 v14, s28, v14               ; segment 0..63
    v_lshl_add_u32 v{vWH}, v14, 6, v39
    v_lshlrev_b32 v14, 8, v14
    v_lshl_add_u32 v36, v10, 4, v14       ; n voffset
    v_xor_b32 v37, v10, v12
    v_and_b32 v38, 0x3c, v1
    v_lshlrev_b32 v38, 4, v38
    v_lshl_add_u32 v37, v37, 4, v38
    s_lshl_b32 s28, s21, 12
    v_add_u32 v37, s28, v37               ; u voffset
    v_min_u32 v38, 2, v12
    v_mul_u32_u24 v38, 2560, v38
    v_mul_u32_u24 v39, 15360, v11
    v_add_u32 v38, v38, v39
    v_lshl_add_u32 v38, v10, 2, v38
    s_lshl_b32 s29, s2, 4
    v_add_u32 v38, s29, v38
    v_lshlrev_b32 v{vST}, 4, v1
    s_lshl_b32 s29, s2, 14
    s_add_u32 s4, s68, s29
    s_addc_u32 s5, s69, 0
    s_add_u32 s6, s4, {WS_UT}
    s_addc_u32 s7, s5, 0
    s_add_u32 s34, s4, s28
    s_addc_u32 s35, s5, 0
    s_add_u32 s34, s34, {WS_X1}
    s_addc_u32 s35, s35, 0
    s_add_u32 s4, s4, {WS_NT}
    s_addc_u32 s5, s5, 0
    s_add_u32 m0, s28, {OU}
    """)
    k(f"v_lshlrev_b32 v14, 3, v12\nv_sub_u32 v14, v14, v13")
    for fi, (lo, hi_) in enumerate(((0, 0), (11, 13), (6, 10), (5, 11), (4, 12))):
        n = hi_ - lo + 1
        Wv = ((1 << n) - 1) << (lo + 15)
        k(f"""
        v_add_u32 v39, 15, v14
        v_mov_b32 v40, {Wv & 0xffffffff}
        v_lshrrev_b32 v40, v39, v40
        v_cmp_gt_u32 vcc, 32, v39
        v_cndmask_b32 v40, 0, v40, vcc
        """)
        if fi == 0: k("v_cmp_gt_u32 vcc, 2, v12\nv_cndmask_b32 v40, 0, v40, vcc")
        for q in range(4):
            k(f"""
            v_bfe_u32 v41, v40, {2*q}, 1
            v_bfe_u32 v42, v40, {2*q+1}, 1
            v_lshl_or_b32 v41, v42, 16, v41
            v_mul_u32_u24 v{BAND+4*fi+q}, 0x3f80, v41
            """)

def conv(k):
    k.stamp(4)
    k(f"s_cmp_eq_u32 s21, 0\ns_cbranch_scc0 LF_s1w")
    wait_flags(k, 's1', 120, 121, 16, 0)
    k(f"""
    LF_s1w:
    s_waitcnt lgkmcnt(0)
    s_barrier
    """)
    k.stamp(5)
    for q in range(4): k(f"global_load_dwordx4 v[{NREG+4*q}:{NREG+4*q+3}], v36, s[4:5] offset:{64*q} {SC}")
    k(f"global_load_dword v40, v38, {P(pWS)} {SC}")
    for q in range(4): k(f"global_load_lds_dwordx4 v37, s[6:7] offset:{1024*q} {SC}")
    k(f"""
    v_mov_b32 v44, 0
    v_mov_b32 v45, 0
    v_mov_b32 v46, 0
    v_mov_b32 v47, 0
    v_min_u32 v41, 29, v1
    v_lshl_add_u32 v41, v41, 4, s27
    ds_write_b128 v41, v[44:47]
    v_mov_b32 v41, s27
    ds_write_b128 v41, v[44:47] offset:{O3 - 16}
    ds_write_b128 v41, v[44:47] offset:{O5 - 16}
    ds_write_b128 v41, v[44:47] offset:{O9 - 16}
    v_lshlrev_b32 v41, 2, v10
    """)
    mlp_setup(k)
    k(f"""
    s_add_u32 s28, s21, 32
    s_waitcnt vmcnt(4)
    v_add_f32_dpp v40, v40, v40 row_ror:4 row_mask:0xf bank_mask:0xf
    v_add_f32_dpp v40, v40, v40 row_ror:8 row_mask:0xf bank_mask:0xf
    v_cvt_pk_bf16_f32 v40, v40, v40
    v_lshlrev_b32 v40, 16, v40
    ds_bpermute_b32 v42, v41, v40
    ds_bpermute_b32 v43, v41, v40 offset:64
    v_readlane_b32 s70, v40, s28
    s_waitcnt lgkmcnt(0)
    v_add_f32 v43, 1.0, v43
    v_cvt_pk_bf16_f32 v43, v43, 0
    v_lshlrev_b32 v44, 16, v43
    """)
    k.stamp(6)
    HT = 152
    for q in range(4):
        for x in range(8): k(f"v_dot2_f32_bf16 v{HT+8*q+x}, v{NREG+4*q+(x>>1)}, v{44 if x & 1 else 43}, v42")
        if q > 0:
            for i in range(4): k(f"v_cvt_pk_bf16_f32 v{HT+32+4*(q-1)+i}, v{HT+8*(q-1)+2*i}, v{HT+8*(q-1)+2*i+1}")
            k(f"ds_write_b128 v{vWH}, {V4(HT+32+4*(q-1))} offset:{OH + 16*(q-1)}")
    for i in range(4): k(f"v_cvt_pk_bf16_f32 v{HT+44+i}, v{HT+24+2*i}, v{HT+24+2*i+1}")
    k(f"ds_write_b128 v{vWH}, {V4(HT+44)} offset:{OH + 48}")
    k("s_waitcnt vmcnt(0) lgkmcnt(0)\ns_barrier")
    k.stamp(7)
    started = set()
    def M(T, a, b):
        s = mf(CACC + 4 * T, a, b, T not in started); started.add(T); return s
    slots, items = [], []
    def item(e, kind, text, deps=()):
        items.append(dict(id=len(items), e=e, kind=kind, text=text, deps=list(deps))); return len(items) - 1
    ps = list(range(-7, 57))
    LOOK = NRING - 2
    rdtxt = lambda i: f"ds_read_b128 {V4(RING + 4*(i % NRING))}, v{vRD} offset:{64*(ps[i] + 7)}"
    ring = {}
    lastw, wwrite, ures = {}, {}, {}
    for i, p in enumerate(ps):
        if i + LOOK < len(ps): ring[i + LOOK] = item(len(slots), 'ring', rdtxt(i + LOOK))
        b = V4(RING + 4 * (i % NRING)); dep = [ring[i]] if i in ring else []
        for T in range(8):
            m = 8 * T - p
            if 0 <= m <= 16: slots.append((M(T, A4(TA0 + 4 * m), b), dep))
            if T >= 4 and m == 32: slots.append((M(T, A4(TA0 + 68), b), dep))
        if p % 8 == 0 and 0 <= p <= 40:
            T = p // 8
            for wi, off in enumerate((O3, O5, O7, O9)):
                if wi >= 2 and T >= 4: continue
                t = WTMP + 4 * wi
                slots.append((mf(t, V4(BAND + 4 + 4 * wi), b, True), dep + lastw.get(wi, [])))
                e = len(slots) + 3
                c0 = item(e, 'va', f"v_cvt_pk_bf16_f32 v{WTMP+16+2*wi}, v{t}, v{t+1}")
                c1 = item(e, 'va', f"v_cvt_pk_bf16_f32 v{WTMP+17+2*wi}, v{t+2}, v{t+3}")
                w = item(e, 'ds', f"ds_write_b64 v{vWU}, v[{WTMP+16+2*wi}:{WTMP+17+2*wi}] offset:{off + 512*T}", [c0, c1])
                lastw[wi] = [w]; wwrite.setdefault(T, []).append(w)
            for kind in 'CAB':
                if kind == 'C' and T > 3: continue
                va = {'A': vDA, 'B': 9, 'C': vD3}[kind]
                r = DEC + 4 * ({'C': 0, 'A': 4, 'B': 10}[kind] + T)
                lastw[(kind, T)] = [item(len(slots) + 4, 'ds', f"ds_read_b64_tr_b16 v[{r+2*h}:{r+2*h+1}], v{va} offset:{512*T + 256*h}", wwrite[T]) for h in range(2)]
        if (p >= 0 and p % 8 == 4) or p == 56:
            T = p // 8
            ures[T] = item(len(slots) - 2, 'ds', f"ds_read_b128 {V4(CU_ + 4*T)}, v{vRU} offset:{2048*T}")
    f1 = item(len(slots) - 6, 'va', f"global_load_dword v{vF1D}, v{vF1A}, {P(pWS)} sc1")
    fm = {}
    for T in range(8):
        slots.append((f"v_mfma_f32_16x16x32_bf16 {V4(NREG + 4*(T % 4))}, {V4(BAND)}, {V4(CU_ + 4*T)}, 0", [ures[T]] + fm.get(T - 4, [])))
        for kind, b0, nmu, t0 in (('C', 4, 4, 6), ('A', 2, 3, 0), ('B', 2, 3, 3)):
            for mu in range(nmu):
                P_ = T - b0 - mu
                if P_ >= 0: slots.append((M(T, V4(DEC + 4 * ({'C': 0, 'A': 4, 'B': 10}[kind] + P_)), A4(T20 + 4 * (t0 + mu))), lastw[(kind, P_)]))
        e = len(slots) + 3
        fm[T] = [item(e, 'va', f"v_fma_f32 v{CACC+4*T+r}, v{CACC+4*T+r}, s70, v{NREG+4*(T % 4)+r}") for r in range(4)]
        o = WTMP + 4 * (T >> 1) + 2 * (T & 1)
        allw = [w for ws_ in wwrite.values() for w in ws_]
        c = [item(e, 'va', f"v_cvt_pk_bf16_f32 v{o+h}, v{CACC+4*T+2*h}, v{CACC+4*T+2*h+1}", fm[T] + allw) for h in range(2)]
        fm[('c', T)] = c
        if T & 1: item(e, 'va', f"global_store_dwordx4 v{vST}, {V4(WTMP + 4*(T >> 1))}, s[34:35] offset:{1024*(T >> 1)} {SC}", c + fm[('c', T - 1)] + [f1])
    k("AUTO")
    for i in range(LOOK): k(rdtxt(i))
    done = set()
    def emit(n):
        if n in done: return
        for d in items[n]['deps']: emit(d)
        done.add(n); k(items[n]['text'])
    def pick(kinds, i):
        for it in items:
            if it['id'] not in done and it['kind'] in kinds and it['e'] <= i and all(d in done for d in it['deps']): return it['id']
        return None
    forced = 0
    for i, (m, deps) in enumerate(slots):
        for d in deps:
            if d not in done: forced += 1; emit(d)
        k(m)
        n = pick(('ring',), i)
        if n is None: n = pick(('ds',), i)
        if n is not None: emit(n)
        for _ in range(1 if n is not None else 2):
            n2 = pick(('va',), i)
            if n2 is not None: emit(n2)
    for it in items: emit(it['id'])
    k("MANUAL")
    k.stamp(8)

def side_loads(k):
    k(f"""
    v_mov_b32 v121, 0
    global_load_dword v120, v121, {P(pDBG)} sc1
    s_sub_u32 s20, s2, {NCONV}
    s_lshr_b32 s22, s20, 5
    s_lshl_b32 s22, s22, 5
    s_and_b32 s23, s20, 7
    s_lshl_b32 s23, s23, 2
    s_add_u32 s22, s22, s23
    s_bfe_u32 s23, s20, 0x20003
    s_add_u32 s22, s22, s23               ; f tile
    v_lshrrev_b32 v2, 1, v1
    v_mul_u32_u24 v2, 3072, v2
    v_and_b32 v3, 1, v1
    v_lshl_add_u32 v2, v3, 4, v2
    s_mul_i32 s23, s21, {160*3072}
    s_lshl_b32 s24, s22, 5
    s_add_u32 s23, s23, s24
    v_add_u32 v2, s23, v2
    s_lshr_b32 s24, s20, 1
    s_and_b32 s25, s20, 1                 ; half
    s_mul_i32 s23, s24, {32*1280}
    s_mul_i32 s26, s25, 640
    s_add_u32 s23, s23, s26
    s_mul_i32 s26, s21, 5120
    s_add_u32 m0, s26, {W2R}
    s_mul_i32 s27, s21, 320
    """)
    for i in range(5):
        k(f"""
        v_add_u32 v3, {64*i}, v1
        v_add_u32 v3, s27, v3
        v_mul_u32_u24 v4, 1639, v3
        v_lshrrev_b32 v4, 16, v4
        v_mul_u32_u24 v4, 640, v4
        v_lshl_add_u32 v3, v3, 4, v4
        v_add_u32 v3, s23, v3
        global_load_lds_dwordx4 v3, {P(pW2)}
        """)
        k(f"s_add_u32 m0, m0, 1024" if i < 4 else f"s_add_u32 m0, s26, {W1R}")
    for i in range(5):
        k(f"global_load_lds_dwordx4 v2, {P(pW1)}")
        if i < 4: k(f"s_add_u32 m0, m0, 1024\nv_add_u32 v2, {32*3072}, v2")

def side(k):
    k(f"s_waitcnt vmcnt(10)\ns_barrier\ns_cmp_eq_u32 s21, 0\ns_cbranch_scc0 LF_sd1")
    wait_flags(k, 'init2', 120, 121, 1, None)
    arrive(k, S1_OFF, 122, 123)
    k(f"""
    LF_sd1:
    v_lshrrev_b32 v4, 4, v1               ; G
    v_bfe_u32 v8, v1, 2, 2                ; r
    v_and_b32 v9, 3, v1
    v_lshl_add_u32 v11, v4, 2, v8
    v_mul_u32_u24 v11, 640, v11
    v_lshl_add_u32 v11, v9, 3, v11
    s_mul_i32 s26, s21, 160
    s_add_u32 s26, s26, {W2R}
    v_add_u32 v11, s26, v11
    v_lshrrev_b32 v5, 1, v4
    v_and_b32 v6, 1, v4
    v_lshlrev_b32 v5, 4, v5
    v_lshl_add_u32 v5, v6, 2, v5          ; 16(G>>1) + 4(G&1)
    v_add_u32 v10, v5, v8
    v_lshlrev_b32 v10, 5, v10
    v_lshl_add_u32 v10, v9, 3, v10
    s_mul_i32 s26, s21, 5120
    s_add_u32 s26, s26, {W1R}
    v_add_u32 v10, s26, v10
    v_lshlrev_b32 v12, 4, v1
    ; W2F destination: ((j*4 + KS/12)*12 + order(KS%12))*5 KB, j = 4*half + wave
    s_mul_hi_u32 s26, s24, 0x15555556
    s_mul_i32 s27, s26, 12
    s_sub_u32 s27, s24, s27
    s_lshl_b32 s27, s27, 2
    s_mov_b32 s28, {KORD & 0xffffffff}
    s_mov_b32 s29, {KORD >> 32}
    s_lshr_b64 s[28:29], s[28:29], s27
    s_and_b32 s27, s28, 15
    s_lshl_b32 s28, s25, 2
    s_add_u32 s28, s28, s21
    s_lshl_b32 s28, s28, 2
    s_add_u32 s26, s26, s28
    s_mul_i32 s26, s26, 12
    s_add_u32 s26, s26, s27
    s_mul_i32 s26, s26, 5120
    s_add_u32 s26, s26, {WS_W2F}
    v_add_u32 v13, s26, v12
    s_waitcnt vmcnt(0)
    s_barrier
    AUTO
    """)
    for dt in range(5):
        for h in range(2): k(f"ds_read_b64_tr_b16 v[{16+4*dt+2*h}:{17+4*dt+2*h}], v11 offset:{10240*h + 32*dt}")
    for i in range(5):
        for h in range(2): k(f"ds_read_b64_tr_b16 v[{40+4*i+2*h}:{41+4*i+2*h}], v10 offset:{1024*i + 256*h}")
    for dt in range(5):
        k(f"global_store_dwordx4 v13, {V4(16+4*dt)}, {P(pWS)} {SC}" + ("\nv_add_u32 v13, 1024, v13" if dt < 4 else ""))
    k("MANUAL")
    poll_addr(k, S1_OFF, 121)
    k(f"""
    global_load_dword v120, v121, {P(pWS)} sc1
    s_mul_i32 s26, s21, 640
    s_add_u32 s26, s26, 7680
    v_lshl_add_u32 v14, v1, 2, s26
    v_and_b32 v15, 31, v1
    v_lshl_add_u32 v15, v15, 2, s26
    ; W1F destination
    s_mul_hi_u32 s26, s22, 0x55555556
    s_mul_i32 s27, s26, 3
    s_sub_u32 s27, s22, s27
    s_add_u32 s28, s27, 2
    s_cmp_ge_u32 s28, 3
    s_cselect_b32 s29, 3, 0
    s_sub_u32 s28, s28, s29
    s_bitcmp1_b32 s26, 0
    s_cselect_b32 s27, s28, s27           ; pass
    s_mul_i32 s26, s26, 60
    s_mul_i32 s28, s21, 10
    s_add_u32 s28, s28, s27
    s_mul_i32 s29, s21, 5
    s_add_u32 s29, s29, 40
    s_cmp_lt_u32 s27, 2
    s_cselect_b32 s28, s28, s29
    s_cselect_b32 s33, 2, 1
    s_lshl_b32 s33, s33, 10
    s_add_u32 s26, s26, s28
    s_lshl_b32 s26, s26, 10
    s_add_u32 s26, s26, {WS_W1F}
    v_add_u32 v13, s26, v12
    s_lshl_b32 s26, s21, 10
    s_add_u32 s26, s26, {VRED + 512}
    v_lshl_add_u32 v6, v1, 2, s26
    v_and_b32 v7, 31, v1
    v_lshl_add_u32 v8, v7, 1, s26
    v_lshl_add_u32 v7, v7, 2, s26
    v_lshl_add_u32 v9, v1, 1, s26
    v_lshl_add_u32 v3, v5, 1, s26
    v_lshl_add_u32 v5, v5, 2, s26
    v_mov_b32 v100, 0x3f803f80
    v_mov_b32 v101, 0x3f803f80
    v_mov_b32 v102, 0x3f803f80
    v_mov_b32 v103, 0x3f803f80
    s_cmp_eq_u32 s21, 0
    s_cbranch_scc0 LF_sd2
    """)
    wait_flags(k, 's1b', 120, 121, 16, 0)
    k("LF_sd2:\ns_barrier")
    k.stamp(5)
    k("AUTO")
    for kq in range(4):
        for wh in range(2):
            for c in range(3):
                k(f"global_load_dword v{60 + 6*kq + 3*wh + c}, v{14 if c < 2 else 15}, {P(pWS)} offset:{2560*wh + 256*c} {SC}")
        if kq < 3: k("v_add_u32 v14, 15360, v14\nv_add_u32 v15, 15360, v15")
    for i in range(6): k(f"v_add_f32 v{60+i}, v{60+i}, v{66+i}\nv_add_f32 v{72+i}, v{72+i}, v{78+i}")
    for i in range(6): k(f"v_add_f32 v{60+i}, v{60+i}, v{72+i}")
    for i in range(6): k(f"v_cvt_pk_bf16_f32 v{60+i}, v{60+i}, v{60+i}\nv_lshlrev_b32 v{60+i}, 16, v{60+i}")
    for i in range(3, 6): k(f"v_add_f32 v{60+i}, 1.0, v{60+i}\nv_cvt_pk_bf16_f32 v{60+i}, v{60+i}, v{60+i}\nv_lshlrev_b32 v{60+i}, 16, v{60+i}")
    for c in range(3):
        k(f"ds_write_b32 v{6 if c < 2 else 7}, v{63+c} offset:{256*c}\nds_write_b16_d16_hi v{9 if c < 2 else 8}, v{60+c} offset:{640 + 128*c}")
    k.stamp(6)
    for i in range(5):
        g = 68 + 16 * (i & 1)
        for h in range(2): k(f"ds_read_b128 {V4(g+4*h)}, v5 offset:{128*i + 32*h}")
        for h in range(2): k(f"ds_read_b64 v[{g+8+2*h}:{g+9+2*h}], v3 offset:{640 + 64*i + 16*h}")
        w = 40 + 4 * i
        for q in range(4): k(f"v_lshlrev_b32 v{104+2*q}, 16, v{w+q}\nv_and_b32 v{105+2*q}, 0xffff0000, v{w+q}")
        for q in range(4): k(f"v_pk_mul_f32 v[{104+2*q}:{105+2*q}], v[{104+2*q}:{105+2*q}], v[{g+2*q}:{g+2*q+1}]")
        o4 = 16 + 4 * i
        for q in range(4): k(f"v_cvt_pk_bf16_f32 v{o4+q}, v{104+2*q}, v{105+2*q}")
        k(f"global_store_dwordx4 v13, {V4(o4)}, {P(pWS)} {SC}" + ("\nv_add_u32 v13, s33, v13" if i < 4 else ""))
        k(mf(112, V4(o4), V4(100), i == 0))
        k(mf(116, V4(w), V4(g + 8), i == 0))
    k(f"""
    s_lshl_b32 s27, s21, 7
    s_add_u32 s27, s27, {VRED}
    v_lshl_add_u32 v13, v4, 4, s27
    ds_write_b128 v13, v[112:115]
    ds_write_b128 v13, v[116:119] offset:64
    MANUAL
    s_waitcnt lgkmcnt(0)
    s_barrier
    s_cmp_eq_u32 s21, 0
    s_cbranch_scc0 LF_sd3
    v_and_b32 v13, 31, v1
    v_lshlrev_b32 v13, 2, v13
    v_add_u32 v13, {VRED}, v13
    ds_read_b32 v16, v13
    ds_read_b32 v17, v13 offset:128
    ds_read_b32 v18, v13 offset:256
    ds_read_b32 v19, v13 offset:384
    v_bfe_u32 v14, v1, 4, 1
    v_mul_u32_u24 v14, 6144, v14
    v_and_b32 v15, 15, v1
    v_lshl_add_u32 v14, v15, 2, v14
    s_lshl_b32 s27, s22, 6
    s_add_u32 s27, s27, {WS_V12}
    v_add_u32 v14, s27, v14
    s_waitcnt lgkmcnt(0)
    v_add_f32 v16, v16, v17
    v_add_f32 v18, v18, v19
    v_add_f32 v16, v16, v18
    global_store_dword v14, v16, {P(pWS)} {SC}
    LF_sd3:
    s_waitcnt vmcnt(0)
    s_barrier
    s_cmp_eq_u32 s21, 0
    s_cbranch_scc0 LF_sd4
    s_lshl_b32 s27, s22, 2
    s_add_u32 s27, s27, {WS_SYNC + F1_OFF}
    v_mov_b32 v14, s27
    v_mov_b32 v15, 1
    s_mov_b64 exec, 1
    global_store_dword v14, v15, {P(pWS)} sc1
    s_mov_b64 exec, -1
    """)
    arrive(k, S2_OFF, 122, 123)
    k("LF_sd4:")
    k.stamp(8)

vL16 = 8
XA = 204; ST = 16; V12 = 24; ACA, ACB = 48, 80; BF = 96; TMP = 144; PKD = 176; SQ, SM = 192, 196
AC2 = 24; HR = 104; NRK = 8; GB = 232; HA = 4

class Loader:
    def __init__(self, k): self.k = k; self.n1 = 0; self.n2 = 0
    def txt(self, n, srd_, sreg):
        t = f"s_mov_b32 s{sreg}, {n * 1024}\n" if n % 4 == 0 else ""
        return t + f"buffer_load_dwordx4 a[{4*n}:{4*n+3}], v{vL16}, s[{srd_}:{srd_+3}], s{sreg} offen offset:{(n % 4) * 1024} {SC}"
    def w1(self): self.n1 += 1; return self.txt(self.n1 - 1, 4, 28)
    def w2(self): self.n2 += 1; return self.txt(self.n2 - 1, 8, 29)
    def next(self, free):
        if self.n1 < 60: return self.w1()
        if self.n2 < min(free, 60): return self.w2()
        return None

def breads(ks):
    b = BF + 16 * (ks % 3)
    return [f"ds_read_b64_tr_b16 v[{b+4*s+2*h}:{b+4*s+2*h+1}], v{XA + s + (4 if ks >= 10 else 0)} offset:{4096*(ks % 10) + 1024*h}" for s in range(4) for h in range(2)]

def epilogue(k, acc, p, dst, dstep):
    v1, v2 = V12 + 8 * p, V12 + 8 * p + 4
    for s in range(4):
        for h in range(2):
            a = acc + 4 * s + 2 * h
            k(f"v_pk_fma_f32 v[{a}:{a+1}], v[{v1+2*h}:{v1+2*h+1}], v[{ST+2*s}:{ST+2*s+1}], v[{a}:{a+1}] op_sel_hi:[1,0,1] neg_lo:[1,0,0] neg_hi:[1,0,0]")
    for s in range(4):
        for h in range(2):
            a = acc + 4 * s + 2 * h
            k(f"v_pk_fma_f32 v[{a}:{a+1}], v[{a}:{a+1}], v[{ST+2*s}:{ST+2*s+1}], v[{v2+2*h}:{v2+2*h+1}] op_sel:[0,1,0] op_sel_hi:[1,1,1]")
    for i in range(16): k(f"v_exp_f32 v{TMP+i}, v{acc+i}")
    for i in range(8): k(f"v_pk_add_f32 v[{TMP+2*i}:{TMP+2*i+1}], v[{TMP+2*i}:{TMP+2*i+1}], 1.0 op_sel_hi:[1,0]")
    for i in range(16): k(f"v_rcp_f32 v{TMP+i}, v{TMP+i}")
    for i in range(8): k(f"v_pk_mul_f32 v[{acc+2*i}:{acc+2*i+1}], v[{acc+2*i}:{acc+2*i+1}], v[{TMP+2*i}:{TMP+2*i+1}]")
    for s in range(4):
        for h in range(2): k(f"v_cvt_pk_bf16_f32 v{dst + dstep*s + h}, v{acc+4*s+2*h}, v{acc+4*s+2*h+1}")

vF1D, vF1A, vVA = 250, 251, 244
GBL = STAT + 512
def mlp_setup(k):
    k(f"""
    s_and_b32 s24, s2, 7
    s_lshr_b32 s25, s2, 3
    s_lshr_b32 s22, s24, 1
    s_lshl_b32 s22, s22, 3
    s_lshr_b32 s26, s25, 2
    s_add_u32 s22, s22, s26               ; rb
    s_and_b32 s23, s24, 1
    s_lshl_b32 s23, s23, 2
    s_and_b32 s26, s25, 3
    s_add_u32 s23, s23, s26               ; j
    s_mul_i32 s26, s23, 12
    s_mul_i32 s25, s21, 3
    s_add_u32 s25, s26, s25
    s_lshl_b32 s26, s25, 2
    s_add_u32 s26, s26, {WS_SYNC + F1_OFF}
    v_min_u32 v{vF1A}, 2, v1
    v_lshl_add_u32 v{vF1A}, v{vF1A}, 2, s26
    s_lshl_b32 s24, s23, 2
    s_add_u32 s24, s24, s21
    s_mul_i32 s24, s24, 61440
    s_add_u32 s26, s24, {WS_W1F}
    """)
    srd(k, 4, pWS, 's26', 61440)
    k(f"s_add_u32 s26, s24, {WS_W2F}")
    srd(k, 8, pWS, 's26', 61440)
    k(f"s_mul_i32 s26, s22, 196608\ns_add_u32 s26, s26, {WS_H}")
    srd(k, 12, pWS, 's26', 196608)
    srd(k, 16, pOUT, 0, L * D * 2)
    k(f"""
    v_lshrrev_b32 v{vVA+4}, 4, v1
    s_and_b32 s26, s21, 1
    s_add_u32 s25, s25, s26
    s_lshl_b32 s25, s25, 6
    s_add_u32 s25, s25, {WS_V12}
    v_lshl_add_u32 v{vVA}, v{vVA+4}, 4, s25
    s_mul_i32 s26, s26, 192
    s_sub_u32 s26, 128, s26
    v_add_u32 v{vVA+1}, s26, v{vVA}
    v_add_u32 v{vVA+2}, 6144, v{vVA}
    v_add_u32 v{vVA+3}, 6144, v{vVA+1}
    s_mul_i32 s26, s23, 320
    s_add_u32 s26, s26, 12800
    v_lshl_add_u32 v{vVA+4}, v1, 2, s26
    v_and_b32 v{vVA+5}, 15, v1
    v_lshl_add_u32 v{vVA+5}, v{vVA+5}, 2, s26
    """)

def mlp(k, opts):
    PRE1 = int(opts.get('pre1', 6)); PRE2 = int(opts.get('pre2', 42))
    W2A = int(opts.get('w2a', 40))
    ld = Loader(k)
    wait_flags(k, 'f1', vF1D, vF1A, 1, 4)
    for kq in range(4):
        k(f"global_load_dword v{48+2*kq}, v{vVA+4}, {P(pWS)} {SC}\nglobal_load_dword v{49+2*kq}, v{vVA+5}, {P(pWS)} offset:256 {SC}")
        if kq < 3: k(f"v_add_u32 v{vVA+4}, 15360, v{vVA+4}\nv_add_u32 v{vVA+5}, 15360, v{vVA+5}")
    for i, (va, off) in enumerate(((0, 0), (2, 0), (0, 64), (2, 64), (1, 0), (3, 0))):
        k(f"global_load_dwordx4 {V4(V12 + 4*i)}, v{vVA+va}, {P(pWS)} offset:{off} {SC}")
    for i in range(PRE1): k(ld.w1())
    k(f"s_waitcnt vmcnt({14 + PRE1})\ns_barrier\ns_cmp_lt_u32 s2, {NCONV}\ns_cbranch_scc0 LF_m1\ns_cmp_eq_u32 s21, 0\ns_cbranch_scc0 LF_m1")
    arrive(k, S2_OFF, 12, 13)
    k("LF_m1:")
    k.stamp(9)
    k(f"""
    s_mul_i32 s26, s21, 320
    s_add_u32 s26, s26, {GBL}
    v_lshl_add_u32 v12, v1, 2, s26
    v_and_b32 v13, 15, v1
    v_lshl_add_u32 v13, v13, 2, s26
    s_waitcnt vmcnt({6 + PRE1})
    v_pk_add_f32 v[48:49], v[48:49], v[50:51]
    v_pk_add_f32 v[52:53], v[52:53], v[54:55]
    v_pk_add_f32 v[48:49], v[48:49], v[52:53]
    v_cvt_pk_bf16_f32 v48, v48, v49
    v_and_b32 v49, 0xffff0000, v48
    v_lshlrev_b32 v48, 16, v48
    v_mul_f32 v48, {LN2 + 0x80000000}, v48
    v_mul_f32 v49, {LN2 + 0x80000000}, v49
    ds_write_b32 v12, v48
    ds_write_b32 v13, v49 offset:256
    v_lshrrev_b32 v14, 4, v1              ; G
    """)
    for i in range(PRE2 - PRE1): k(ld.w1())
    k(f"""
    v_bfe_u32 v12, v1, 2, 2               ; r
    v_and_b32 v13, 1, v14
    v_lshl_add_u32 v15, v13, 2, v12
    v_lshrrev_b32 v13, 1, v14
    v_lshl_add_u32 v13, v13, 4, v15
    v_lshlrev_b32 v13, 7, v13
    v_and_b32 v12, 1, v1
    v_lshl_add_u32 v13, v12, 3, v13
    v_bfe_u32 v12, v1, 1, 1
    v_lshl_add_u32 v13, v12, 4, v13
    v_and_b32 v15, 6, v15
    """)
    for s in range(4):
        k(f"s_xor_b32 s26, s21, {s}\ns_lshl_b32 s26, s26, 1\nv_xor_b32 v12, s26, v15\nv_lshl_add_u32 v{XA+s}, v12, 4, v13\nv_add_u32 v{XA+4+s}, 40960, v{XA+s}")
    k(f"""
    v_lshrrev_b32 v12, 3, v1
    v_and_b32 v13, 6, v12
    v_and_b32 v15, 7, v1
    v_xor_b32 v13, v13, v15
    v_lshlrev_b32 v12, 12, v12
    v_lshl_add_u32 v3, v13, 4, v12
    s_lshl_b32 s26, s21, 15
    s_lshl_b32 s27, s22, 7
    s_add_u32 s26, s26, s27
    s_add_u32 s26, s26, {WS_X1}
    v_add_u32 v3, s26, v3
    s_lshl_b32 s26, s21, 10
    s_mov_b32 m0, s26
    v_mov_b32 v200, 0x3f803f80
    v_mov_b32 v201, 0x3f803f80
    v_mov_b32 v202, 0x3f803f80
    v_mov_b32 v203, 0x3f803f80
    s_cmp_eq_u32 s21, 0
    s_cbranch_scc0 LF_m2
    """)
    poll_addr(k, S2_OFF, 13)
    k(f"global_load_dword v12, v13, {P(pWS)} sc1")
    wait_flags(k, 's2', 12, 13, 16, 0)
    k("LF_m2:\ns_barrier")
    k.stamp(10)
    k("AUTO")
    def xdma(i): return f"global_load_lds_dwordx4 v3, {P(pWS)} {SC} ; @w:X{i // 4}" + ("\ns_add_u32 m0, m0, 4096\nv_add_u32 v3, 0x20000, v3" if i < 19 else "")
    XI = int(opts.get('xi', 8))
    for i in range(XI): k(xdma(i))
    xq = [xdma(i) for i in range(XI, 20)]
    k("s_barrier ; @r:X0")
    for r in breads(0) + breads(1): k(r)
    for ks in range(20):
        if ks % 4 == 2 and ks < 18: k(f"s_barrier ; @r:X{ks // 4 + 1}")
        rs = breads(ks + 2) if ks + 2 < 20 else breads(ks + 2 - 20)
        if ks + 2 >= 20:
            b2 = BF + 16 * ((ks + 2) % 3); b0 = BF + 16 * ((ks + 2 - 20) % 3)
            rs = [re.sub(r'v\[(\d+):(\d+)\]', lambda m: f"v[{int(m.group(1)) - b0 + b2}:{int(m.group(2)) - b0 + b2}]", r, 1) for r in rs]
        lds = [t for t in ((xq.pop(0) if xq else ld.next(min(2 * ks, W2A))) for _ in range(2)) if t]
        b = BF + 16 * (ks % 3)
        ms = [mf(ACA + 16 * p + 4 * s, A4(4 * (2 * ks + p)), V4(b + 4 * s), ks == 0) for s in range(4) for p in range(2)]
        ms = ms[:2] + [mf(SQ, V4(b), V4(b), ks == 0), mf(SM, V4(200), V4(b), ks == 0)] + ms[2:]
        for i, m in enumerate(ms):
            k(m)
            if i >= 2 and rs: k(rs.pop(0))
            elif lds: k(lds.pop(0))
    k(f"""
    v_and_b32 v13, 3, v1
    v_cmp_eq_u32 vcc, 1, v13
    v_cmp_eq_u32 s[30:31], 2, v13
    v_cmp_eq_u32 s[32:33], 3, v13
    v_bfe_u32 v15, v1, 2, 2
    v_cndmask_b32 v13, v{SQ}, v{SQ+1}, vcc
    v_cndmask_b32 v13, v13, v{SQ+2}, s[30:31]
    v_cndmask_b32 v13, v13, v{SQ+3}, s[32:33]
    v_mul_f32 v12, {f2u(1/640)}, v{SM}
    v_mul_f32 v13, {f2u(1/640)}, v13
    v_cmp_eq_u32 vcc, v14, v15
    """)
    rstd_chain(k, 12, 13, 15)
    k(f"""
    v_and_b32 v15, 15, v1
    v_lshlrev_b32 v15, 3, v15
    v_mul_f32 v13, {LOG2E + 0x80000000}, v13
    s_lshl_b32 s26, s21, 7
    s_add_u32 s26, s26, {STAT}
    v_add_u32 v15, s26, v15
    s_mov_b64 exec, vcc
    ds_write_b64 v15, v[12:13]
    s_mov_b64 exec, -1
    """)
    for p in range(3):
        for i in range(4): k(f"v_mul_f32 v{V12+8*p+4+i}, {LOG2E + 0x80000000}, v{V12+8*p+4+i}")
    k("s_waitcnt lgkmcnt(0)\ns_barrier")
    for s in range(4): k(f"v_xor_b32 v13, {128*s}, v15\nds_read_b64 v[{ST+2*s}:{ST+2*s+1}], v13")
    k(f"""
    s_mul_i32 s26, s21, 3
    s_add_u32 s26, s26, 1
    s_lshr_b32 s26, s26, 1
    s_mul_i32 s27, s23, 6
    s_add_u32 s26, s26, s27
    s_lshl_b32 s26, s26, 12
    s_lshr_b32 s30, s21, 1
    s_mul_i32 s31, s30, 3
    s_add_u32 s31, s31, 1
    s_add_u32 s27, s27, s31
    s_lshl_b32 s27, s27, 12
    s_lshl_b32 s30, s30, 12
    s_add_u32 s30, s30, {RED}
    s_and_b32 s31, s21, 1
    s_lshl_b32 s31, s31, 3
    v_add_u32 v212, s30, v{vL16}
    v_add_u32 v213, s31, v212
    """)
    for s in range(4):
        k(f"s_xor_b32 s30, s21, {s}\ns_lshl_b32 s{80+s}, s30, 10\ns_add_u32 s{72+s}, s{80+s}, s26\ns_add_u32 s{76+s}, s{80+s}, s27")
    epilogue(k, ACA, 0, PKD, 4)
    epilogue(k, ACA + 16, 1, PKD + 2, 4)
    for s in range(4): k(f"buffer_store_dwordx4 {V4(PKD+4*s)}, v{vL16}, s[12:15], s{72+s} offen {SC} ; @w:HP")
    k.stamp(11) if False else None
    for ks in range(20):
        kk = ks + 20
        rs = []
        if ks + 2 < 20:
            b2 = BF + 16 * ((kk + 2) % 3); b0 = BF + 16 * ((ks + 2) % 3)
            rs = [re.sub(r'v\[(\d+):(\d+)\]', lambda m: f"v[{int(m.group(1)) - b0 + b2}:{int(m.group(2)) - b0 + b2}]", r, 1) for r in breads(ks + 2)]
        t = ld.next(W2A)
        b = BF + 16 * (kk % 3)
        for s in range(4):
            k(mf(ACB + 4 * s, A4(4 * (40 + ks)), V4(b + 4 * s), ks == 0))
            for _ in range(2):
                if rs: k(rs.pop(0))
        if t: k(t)
    epilogue(k, ACB, 2, PKD, 2)
    for s in range(4): k(f"v_add_u32 v12, s{80+s}, v213\nds_write_b64 v12, v[{PKD+2*s}:{PKD+2*s+1}]")
    k(f"""
    s_lshl_b32 s26, s22, 7
    s_add_u32 s26, s26, {WS_SYNC + F3_OFF}
    s_lshl_b32 s27, s23, 4
    s_lshl_b32 s30, s21, 2
    s_add_u32 s27, s27, s30
    s_add_u32 s27, s27, s26
    v_mov_b32 v14, s27
    s_lshl_b32 s30, s21, 5
    s_add_u32 s26, s26, s30
    v_and_b32 v13, 7, v1
    v_lshl_add_u32 v13, v13, 2, s26
    v_mov_b32 v15, 1
    v_mov_b32 v16, 2
    v_add_u32 v22, s80, v212
    v_add_u32 v23, s82, v212
    s_waitcnt lgkmcnt(0)
    s_barrier
    ds_read_b128 {V4(PKD)}, v22
    ds_read_b128 {V4(PKD+4)}, v23
    s_mov_b64 exec, 1 ; @r:HP
    global_store_dword v14, v15, {P(pWS)} sc1
    s_mov_b64 exec, -1
    buffer_store_dwordx4 {V4(PKD)}, v{vL16}, s[12:15], s76 offen {SC} ; @w:HS
    buffer_store_dwordx4 {V4(PKD+4)}, v{vL16}, s[12:15], s78 offen {SC} ; @w:HS
    s_mul_i32 s72, s21, {12*4096}
    """)
    for s in range(4): k(f"v_add_u32 v{HA+s}, s{80+s}, v{vL16}")
    n0 = ld.n2
    REST1 = int(opts.get('rest1', 8))
    while ld.n2 < min(60, n0 + REST1): k(ld.w2())
    k(f"s_mov_b64 exec, 1 ; @r:HS\nglobal_store_dword v14, v16, {P(pWS)} sc1\ns_mov_b64 exec, -1")
    k(f"global_load_dword v12, v13, {P(pWS)} sc1")
    k("MANUAL")
    n0 = ld.n2
    REST2 = int(opts.get('rest2', 4))
    while ld.n2 < min(60, n0 + REST2): k(ld.w2())
    wait_flags(k, 'h1', 12, 13, 1, ld.n2 - n0)
    k.stamp(11)
    def hload(i, slots=range(4)):
        r = HR + 16 * (i % NRK)
        return [f"s_add_u32 s73, s72, {KSEQ[i] * 4096}\nbuffer_load_dwordx4 {V4(r+4*s)}, v{HA+s}, s[12:15], s73 offen {SC}" for s in slots]
    def g2(i, s): return [mf(AC2 + 20 * s + 4 * dt, A4(4 * (5 * i + dt)), V4(HR + 16 * (i % NRK) + 4 * s), i == 0) for dt in range(5)]
    k("AUTO")
    AH = int(opts.get('ahead', 3))
    for i in range(AH):
        for t in hload(i): k(t)
    for i in range(8):
        q = hload(i + AH) if i + AH < 8 else []
        for _ in range(-(-(60 - ld.n2) // (8 - i))): q.append(ld.w2())
        assert ld.n2 >= min(60, 5 * i + 10)
        if i == 3: q.append(f"global_load_dword v12, v13, {P(pWS)} sc1")
        if i == 5:
            wait_flags(k, 'h2', 12, 13, 2, None)
            order = [(i2, s) for s in (1, 2, 3, 0) for i2 in range(8, 12)]
            late = [hload(i2, [s])[0] for i2, s in order]
        if i >= 5:
            q += late[:5]; late = late[5:]
        for s in range(4):
            for n, m in enumerate(g2(i, s)):
                k(m)
                if q and n in (0, 2, 4): k(q.pop(0))
        for t in q: k(t)
    for t in late: k(t)
    tail_addr = f"""
    s_lshl_b32 s26, s21, 1
    v_lshrrev_b32 v14, 4, v1
    v_bfe_u32 v15, v1, 2, 2
    v_lshl_add_u32 v15, v14, 2, v15
    v_and_b32 v16, 6, v15
    v_xor_b32 v16, s26, v16
    v_bfe_u32 v17, v1, 1, 1
    v_add_u32 v16, v16, v17
    v_lshlrev_b32 v16, 4, v16
    v_lshl_add_u32 v16, v15, 7, v16
    v_and_b32 v17, 1, v1
    v_lshl_add_u32 v16, v17, 3, v16
    s_mul_i32 s26, s23, {80*128}
    v_add_u32 v16, s26, v16
    s_mul_i32 s74, s21, 15360
    s_add_u32 s74, s74, {RED}
    v_and_b32 v17, 15, v1
    v_mul_u32_u24 v17, 176, v17
    v_lshl_add_u32 v17, v14, 3, v17
    v_add_u32 v17, s74, v17
    v_add_u32 v18, s74, v{vL16}
    s_lshr_b32 s26, s22, 3
    s_lshl_b32 s26, s26, 9
    s_and_b32 s27, s22, 1
    s_lshl_b32 s27, s27, 7
    s_add_u32 s26, s26, s27
    s_bfe_u32 s27, s22, 0x20001
    s_lshl_b32 s27, s27, 2
    s_add_u32 s26, s26, s27
    s_lshl_b32 s27, s21, 5
    s_add_u32 s26, s26, s27
    s_mul_i32 s26, s26, 1280
    s_mul_i32 s27, s23, 160
    s_add_u32 s75, s26, s27
    """
    for i in range(3):
        tail_addr += f"""
        v_add_u32 v12, {64*i}, v1
        v_mul_u32_u24 v13, 6554, v12
        v_lshrrev_b32 v13, 16, v13
        v_mul_u32_u24 v14, 10, v13
        v_sub_u32 v12, v12, v14
        v_mul_u32_u24 v14, 176, v13
        v_lshl_add_u32 v14, v12, 4, v14
        v_add_u32 v{19+i}, s74, v14
        v_bfe_u32 v14, v13, 2, 1
        v_lshlrev_b32 v14, 8, v14
        v_bfe_u32 v15, v13, 3, 1
        v_lshl_add_u32 v14, v15, 4, v14
        v_and_b32 v15, 3, v13
        v_add_u32 v14, v14, v15
        v_mul_u32_u24 v14, 1280, v14
        v_lshl_add_u32 v{9+i}, v12, 4, v14
        """
    tail_addr += "v_lshrrev_b32 v13, 5, v1\nv_lshlrev_b32 v13, 30, v13\nv_add_u32 v11, v11, v13\n"
    tail_addr += f"s_mul_i32 s26, s21, 320\ns_add_u32 s26, s26, {GBL}\nv_lshrrev_b32 v14, 4, v1\nv_lshl_add_u32 v22, v14, 4, s26\n"
    for s in range(1, 4): tail_addr += f"s_xor_b32 s26, s21, {s}\ns_mul_i32 s26, s26, 15360\ns_add_u32 s26, s26, {RED + 5120*(s-1)}\nv_add_u32 v{4+s}, s26, v{vL16}\n"
    fill = [l.strip() for l in tail_addr.split('\n') if l.strip()]
    pend = []
    for s in (1, 2, 3, 0):
        for i in range(8, 12):
            for m in g2(i, s):
                k(m)
                if pend and pend[0][0] <= 0: k(pend.pop(0)[1])
                elif fill:
                    k(fill.pop(0))
                    if fill: k(fill.pop(0))
                pend = [(a - 1, t) for a, t in pend]
        if s == 1:
            for t in fill: k(t)
            fill = []
        assert not pend or s == 0
        if s: pend = [(3 + 3 * dt, f"ds_write_b128 v{4+s}, {V4(AC2+20*s+4*dt)} offset:{1024*dt}") for dt in range(5)]
    for dt in range(5): k(f"ds_read_b64_tr_b16 v[{HR+2*dt}:{HR+2*dt+1}], v16 offset:{2048*dt}")
    assert not pend
    for dt in range(5): k(f"ds_read_b128 {V4(GB+4*dt)}, v22 offset:{64*dt}")
    k("s_waitcnt lgkmcnt(0)\ns_barrier")
    R0 = 44
    for s in range(3):
        for dt in range(5): k(f"ds_read_b128 {V4(R0+20*s+4*dt)}, v18 offset:{5120*s + 1024*dt}")
    U = HR + 16
    for dt in range(5):
        for h in range(2): k(f"v_lshlrev_b32 v{U+4*dt+2*h}, 16, v{HR+2*dt+h}\nv_and_b32 v{U+4*dt+2*h+1}, 0xffff0000, v{HR+2*dt+h}")
    for s in range(3):
        for q in range(10): k(f"v_pk_add_f32 v[{AC2+2*q}:{AC2+2*q+1}], v[{AC2+2*q}:{AC2+2*q+1}], v[{R0+20*s+2*q}:{R0+20*s+2*q+1}]")
    for q in range(10): k(f"v_pk_fma_f32 v[{AC2+2*q}:{AC2+2*q+1}], v[{AC2+2*q}:{AC2+2*q+1}], v[{GB+2*q}:{GB+2*q+1}], v[{U+2*q}:{U+2*q+1}]")
    for dt in range(5):
        k(f"v_cvt_pk_bf16_f32 v{U+2*dt}, v{AC2+4*dt}, v{AC2+4*dt+1}\nv_cvt_pk_bf16_f32 v{U+2*dt+1}, v{AC2+4*dt+2}, v{AC2+4*dt+3}")
        k(f"ds_write_b64 v17, v[{U+2*dt}:{U+2*dt+1}] offset:{32*dt}")
    for i in range(3): k(f"ds_read_b128 {V4(R0+4*i)}, v{19+i}")
    for i in range(3): k(f"buffer_store_dwordx4 {V4(R0+4*i)}, v{9+i}, s[16:19], s75 offen")
    k("MANUAL")

def gen_F(opts={}):
    SPINS.clear()
    k = Asm('F')
    k(f"s_cmp_ge_u32 s2, {F_GRID}\ns_cbranch_scc1 LF_end")
    k.stamp(0)
    phase_a(k)
    k(f"s_cmp_lt_u32 s2, {NCONV}\ns_cbranch_scc0 LF_side_a")
    ny = kgen_loads(k)
    k("s_branch LF_a2\nLF_side_a:")
    k("s_waitcnt vmcnt(5)")
    k("LF_a2:")
    phase_a2(k, ny)
    k(f"s_cmp_lt_u32 s2, {NCONV}\ns_cbranch_scc0 LF_side")
    k(f"v_mov_b32 v121, 0\nglobal_load_dword v120, v121, {P(pDBG)} sc1")
    kgen(k)
    conv_setup(k)
    conv(k)
    k("s_branch LF_mlp\nLF_side:")
    side_loads(k)
    side(k)
    mlp_setup(k)
    k(f"v_lshlrev_b32 v{vL16}, 4, v1\nglobal_load_dword v{vF1D}, v{vF1A}, {P(pWS)} sc1\ns_waitcnt vmcnt(0)")
    k("LF_mlp:")
    mlp(k, opts)
    k.end(0)
    k("LF_end:\ns_endpgm")
    for s in SPINS: k(s)
    return k.finish()

if __name__ == '__main__':
    print(gen_F())
```

```python
import sys, importlib
from asmlib import *
import kA
REF = 'adaLN_cond__ssm_conv_s4__dense_activation_silu__prompt.s.ref'
def build(kernels):
    hdr = open(REF).read().split('; Override launch')[0]
    s = hdr
    for (n, grid, block, lds, vg, ag, body) in kernels:
        s += f"; @launch kernel={n} grid=({grid},1,1) block=({block},1,1) lds={lds}\n"
    s += '.amdgcn_target "amdgcn-amd-amdhsa--gfx950"\n.text\n'
    for (n, grid, block, lds, vg, ag, body) in kernels: s += kernel_text(n, body)
    s += '.section .rodata,"a"\n'
    for (n, grid, block, lds, vg, ag, body) in kernels: s += descriptor(n, vg, ag)
    return s
def main():
    out = sys.argv[1]
    opts = dict(a.split('=') for a in sys.argv[2:])
    import asmlib
    asmlib.STAMPS = bool(int(opts.get('stamps', 0)))
    if 'dbgst' in opts: asmlib.DBGST = opts['dbgst'].split(',')
    asmlib.DELAYS = opts.get('dly', '').split(',')
    stages = opts.get('stages', 'ABC')
    ks = []
    if 'A' in stages: ks.append(('pre_kernel', kA.A_GRID, 256, kA.A_LDS, 128, 0, kA.gen_A(opts.get('order', 'KLM'))))
    if 'B' in stages:
        import kB
        ks.append(('conv_kernel', kB.B_GRID, 512, kB.B_LDS, kB.B_VGPR, 0, kB.gen_B(opts)))
    if 'C' in stages:
        import kC
        ks.append(('mlp_kernel', kC.C_GRID, 256, kC.C_LDS, 256, 256, kC.gen_C(opts)))
    if stages == 'F':
        import kF
        NAME = 'adaLN_cond__ssm_conv_s4__dense_activation_silu__prompt_kernel'
        s = build([(NAME, kF.F_GRID, 256, kF.F_LDS, 256, 256, kF.gen_F(opts))])
        if not int(opts.get('list', 0)): s = s.replace(f'; @launch kernel={NAME} ', '; @launch ')
        open(out, 'w').write(s); return
    open(out, 'w').write(build(ks))
main()
```

```python
import re

REG_RE = re.compile(r'(?<![\w.])([vas])(?:(\d+)|\[(\d+):(\d+)\])(?![\w])')
TRANS = ('v_exp_f32', 'v_log_f32', 'v_rcp_f32', 'v_rsq_f32', 'v_sqrt_f32', 'v_sin_f32', 'v_cos_f32', 'v_rcp_iflag_f32')

def regs_of(tok):
    out = []
    for m in REG_RE.finditer(tok):
        k = m.group(1)
        if m.group(2) is not None: out.append((k, int(m.group(2))))
        else: out += [(k, i) for i in range(int(m.group(3)), int(m.group(4)) + 1)]
    if re.search(r'\bvcc\b', tok): out += [('s', 'vcc')]
    if re.search(r'\bexec\b', tok): out += [('s', 'exec')]
    if re.search(r'\bm0\b', tok): out += [('s', 'm0')]
    return out

class Ins:
    def __init__(self, text):
        self.text = text
        t = text.split(';')[0].strip()
        self.label = t.endswith(':')
        self.mn = '' if self.label or not t else t.split()[0]
        rest = t[len(self.mn):].strip() if self.mn else ''
        ops, depth, cur = [], 0, ''
        for ch in rest:
            if ch in '[(': depth += 1
            if ch in '])': depth -= 1
            if ch == ',' and depth == 0: ops.append(cur.strip()); cur = ''
            else: cur += ch
        if cur.strip(): ops.append(cur.strip())
        self.mods = ''
        if ops:
            last = ops[-1]
            m = re.match(r'^(\S+(?:\([^)]*\))?)\s*(.*)$', last)
            if not self.mn.startswith('s_waitcnt'):
                ops[-1], self.mods = m.group(1), m.group(2)
        self.ops = ops
        mn = self.mn
        base = re.sub(r'_(e32|e64|dpp|sdwa)$', '', mn)
        self.base = base
        self.cls = 'other'; self.w = []; self.r = []
        self.dpp = mn.endswith('_dpp') or 'row_' in self.mods or 'quad_perm' in self.mods or 'wave_' in self.mods
        R = lambda idxs: [x for i in idxs if i < len(ops) for x in regs_of(ops[i])]
        n = len(ops)
        if mn.startswith('v_mfma'):
            self.cls = 'mfma'; self.w = R([0]); self.r = R([1, 2, 3]); self.ab = R([1, 2]); self.c = R([3])
            self.passes = 8 if '32x32x16' in mn else 4 if '16x16x32' in mn else None
            assert self.passes, mn
        elif mn.startswith('v_'):
            self.cls = 'valu'; self.trans = base in TRANS
            if base.startswith('v_cmp'): self.w = R([0]); self.r = R(range(1, n))
            elif base in ('v_add_co_u32', 'v_sub_co_u32', 'v_addc_co_u32'): self.w = R([0, 1]); self.r = R(range(2, n))
            elif 'permlane' in base and 'swap' in base: self.w = R([0, 1]); self.r = R([0, 1])
            else:
                self.w = R([0]); self.r = R(range(1, n))
                if base in ('v_fmac_f32', 'v_dot2c_f32_bf16', 'v_pk_fmac_f16', 'v_writelane_b32') or self.dpp: self.r += R([0])
                if base == 'v_cndmask_b32' and n == 3: self.r += [('s', 'vcc')]
        elif mn.startswith('s_load') or mn.startswith('s_memtime') or mn.startswith('s_memrealtime') or mn.startswith('s_atomic'):
            self.cls = 'smem'; self.w = R([0]); self.r = R(range(1, n))
        elif mn.startswith('s_'):
            self.cls = 'salu'
            if mn.startswith(('s_cmp', 's_cbranch', 's_branch', 's_waitcnt', 's_nop', 's_barrier', 's_endpgm', 's_setprio', 's_sleep', 's_bitcmp')):
                self.r = R(range(n))
            else:
                self.w = R([0]); self.r = R(range(1, n))
                if 'saveexec' in mn: self.w += [('s', 'exec')]; self.r += [('s', 'exec')]
                if mn in ('s_addk_i32', 's_mulk_i32'): self.r += R([0])
        elif mn.startswith('ds_'):
            self.cls = 'ds'
            if mn.startswith(('ds_read', 'ds_bpermute', 'ds_permute', 'ds_swizzle')) or '_rtn' in mn: self.w = R([0]); self.r = R(range(1, n))
            else: self.r = R(range(n))
        elif mn.startswith(('buffer_', 'global_')):
            self.cls = 'vmem'
            self.lds = ' lds' in (' ' + self.mods) or '_lds_' in mn
            self.store = 'store' in mn or ('atomic' in mn and 'sc0' not in self.mods)
            if self.lds: self.r = R(range(n)) + [('s', 'm0')]
            elif self.store: self.r = R(range(n))
            else:
                self.w = R([0]); self.r = R(range(1, n))
                if 'd16' in mn: self.r += R([0])
            self.wide = self.store and ('x4' in mn or 'x3' in mn)
            if self.wide: self.data = R([0]) if mn.startswith('buffer_') else R([1])

_old_init = Ins.__init__
def _init(self, text):
    _old_init(self, text)
    for kind, name in re.findall(r'@([wr]):(\w+)', text):
        (self.w if kind == 'w' else self.r).append(('x', name))
Ins.__init__ = _init

def nstates(ins):
    if ins.label or not ins.mn: return 0
    if ins.mn == 's_nop': return int(ins.ops[0], 0) + 1
    return 1

def need(p, c):
    n = 0
    pw, pr, cw, cr = set(p.w), set(p.r), set(c.w), set(c.r)
    vec = lambda s: {x for x in s if x[0] in 'va'}
    sca = lambda s: {x for x in s if x[0] == 's'}
    if p.cls == 'valu':
        if c.cls == 'mfma' and vec(pw) & cr: n = max(n, 2)
        if c.cls == 'mfma' and ('s', 'exec') in pw: n = max(n, 4)
        if p.trans and c.cls == 'valu' and vec(pw) & cr: n = max(n, 1)
        if sca(pw) & cr:
            if c.cls == 'valu': n = max(n, 4 if c.base in ('v_readlane_b32', 'v_writelane_b32') else 2)
            if c.cls == 'vmem': n = max(n, 5)
            if c.cls in ('salu', 'smem'): n = max(n, 1)
        if c.cls == 'valu' and vec(pw) & cr:
            if c.base in ('v_readlane_b32', 'v_readfirstlane_b32'): n = max(n, 1)
            if c.dpp or 'permlane' in c.base: n = max(n, 2)
        if ('s', 'exec') in pw and c.cls == 'valu':
            if c.dpp: n = max(n, 5)
            if c.base in ('v_readlane_b32', 'v_readfirstlane_b32', 'v_writelane_b32') or 'permlane' in c.base: n = max(n, 4)
    if p.cls == 'valu' and p.base.startswith('v_dot') and c.cls in ('valu', 'mfma', 'vmem', 'ds') and pw & (cr | cw):
        same_acc = c.base == p.base and (set(regs_of(c.ops[1])) | set(regs_of(c.ops[2]))).isdisjoint(pw)
        if not same_acc: n = max(n, 3)
    if p.cls == 'mfma':
        big = {4: 8, 8: 12}[p.passes]
        if c.cls == 'mfma':
            if pw & set(c.ab): n = max(n, big)
            if pw & set(c.c) and not (p.w == c.c and p.passes == c.passes): n = max(n, {4: 6, 8: 10}[p.passes])
            elif pw & cw and not (p.w == c.c and p.passes == c.passes): n = max(n, big)
        elif c.cls in ('valu', 'vmem', 'ds'):
            if pw & (cr | cw): n = max(n, big)
            if c.cls == 'valu' and set(p.c) & cw: n = max(n, {4: 3, 8: 7}[p.passes])
    if p.cls == 'salu' and ('s', 'm0') in pw and c.cls == 'vmem' and c.lds: n = max(n, 1)
    if p.cls == 'vmem' and getattr(p, 'wide', False) and set(p.data) & cw: n = max(n, 2 if c.cls in ('valu', 'mfma') else 1)
    return n

STAMPS = False
DBGST = None
DELAYS = []
WS_STAMP = 0x2000000
class Asm:
    def __init__(self, name):
        self.name = name; self.lines = []; self.names = []
    def stamp(self, name):
        if name in DELAYS: self("s_sleep 31")
        if not STAMPS: return
        if not self.names:
            self("v_mov_b32 v255, 0\ns_memrealtime s[100:101]\ns_waitcnt lgkmcnt(0)\nv_writelane_b32 v255, s100, 0")
            self.names += ['rt0', 'rt1']
        if name not in self.names: self.names.append(name)
        self(f"s_memtime s[100:101]\ns_waitcnt lgkmcnt(0)\nv_writelane_b32 v255, s100, {self.names.index(name)}")
    def end(self, kidx):
        if STAMPS:
            self("s_waitcnt vmcnt(0) lgkmcnt(0)")
            self.stamp('end')
            self(f"""
            s_memrealtime s[100:101]
            s_load_dwordx2 s[6:7], s[0:1], 128
            s_lshl_b32 s8, s2, 2
            s_add_u32 s8, s8, s21
            s_lshl_b32 s8, s8, 8
            s_add_u32 s8, s8, {WS_STAMP}
            s_waitcnt lgkmcnt(0)
            v_writelane_b32 v255, s100, 1
            v_lshl_add_u32 v0, v1, 2, s8
            global_store_dword v0, v255, s[6:7]""")
            if DBGST:
                self(f"""
                s_cmp_eq_u32 s2, {DBGST[0]}
                s_cbranch_scc0 LF_nodbg
                s_cmp_eq_u32 s21, 0
                s_cbranch_scc0 LF_nodbg
                s_load_dwordx2 s[6:7], s[0:1], 120
                v_readlane_b32 s8, v255, 2
                v_mov_b32 v4, 0""")
                for i, n in enumerate(DBGST[1:]):
                    self(f"v_readlane_b32 s9, v255, {self.names.index(n)}\ns_nop 3\ns_sub_u32 s9, s9, s8\ns_nop 3\nv_writelane_b32 v4, s9, {i + 1}")
                self("""v_readlane_b32 s9, v255, 0
                s_nop 3
                s_sub_u32 s9, s100, s9
                s_nop 3
                v_writelane_b32 v4, s9, 15
                v_lshlrev_b32 v0, 2, v1
                s_waitcnt lgkmcnt(0)
                s_mov_b64 exec, 0xfffe
                global_store_dword v0, v4, s[6:7]
                LF_nodbg:""")
            open('stamp_names.txt', 'w').write(' '.join(str(n) for n in self.names))
        self("s_endpgm")
    def __call__(self, text):
        for l in text.split('\n'):
            l = l.strip()
            if l and not l.startswith(';'): self.lines.append(l)
    def autowait(self, ins):
        out, vm, lg, on = [], [], [], False
        for c in ins:
            if c.mn == 'AUTO': on = True; continue
            if c.mn == 'MANUAL': on = False; continue
            if c.label or not c.mn: out.append(c); continue
            if c.mn == 's_waitcnt':
                m = re.search(r'vmcnt\((\d+)\)', c.text)
                if m: k = int(m.group(1)); vm = vm[max(0, len(vm) - k):] if k else []
                m = re.search(r'lgkmcnt\((\d+)\)', c.text)
                if m:
                    k = int(m.group(1))
                    if k == 0: lg = []
                    elif not any(x[1] for x in lg): lg = lg[max(0, len(lg) - k):]
                out.append(c); continue
            if c.mn in ('s_endpgm', 's_branch'): vm, lg = [], []; out.append(c); continue
            if on:
                w = []
                for q, nm, same, cap in ((vm, 'vmcnt', 'vmem', 63), (lg, 'lgkmcnt', 'ds', 15)):
                    t = set(c.r) if c.cls == same else set(c.r) | set(c.w)
                    last = max([i for i, x in enumerate(q) if x[0] & t], default=-1)
                    if last >= 0:
                        n = len(q) - 1 - last
                        if q is vm and not q[last][1]:
                            n_eff = sum(1 for x in q[last + 1:] if not x[1])
                            w.append(f'{nm}({min(n_eff, cap)})'); del q[:last + 1]; continue
                        if q is lg and any(x[1] for x in q): n = 0
                        n = min(n, cap)
                        w.append(f'{nm}({n})')
                        del q[:len(q) - n]
                if w: out.append(Ins('s_waitcnt ' + ' '.join(w)))
            if c.cls == 'vmem':
                if '@skip' not in c.text: vm.append((set(c.w), '@ghost' in c.text))
            elif c.cls == 'ds': lg.append((set(c.w), False))
            elif c.cls == 'smem': lg.append((set(c.w), True))
            out.append(c)
        return out
    def finish(self, check=True):
        ins = self.autowait([Ins(l) for l in self.lines])
        out = []
        for c in ins:
            if c.mn and c.mn != 's_nop':
                dist, req = 0, 0
                for p in reversed(out):
                    if dist >= 20: break
                    if p.mn:
                        k = need(p, c)
                        if k - dist > req: req = k - dist
                    dist += nstates(p)
                while req > 0:
                    k = min(req, 16); out.append(Ins(f's_nop {k-1}')); req -= k
            out.append(c)
        if check: self.check_counters(out)
        return '\n'.join(('' if i.label else '    ') + i.text for i in out) + '\n'
    def check_counters(self, ins):
        vm, lg = [], []
        for c in ins:
            if c.label or not c.mn: continue
            if c.mn == 's_waitcnt':
                t = c.text
                m = re.search(r'vmcnt\((\d+)\)', t)
                if m:
                    k = int(m.group(1)); assert k <= 63, t
                    vm = vm[len(vm) - k:] if k < len(vm) and k > 0 else ([] if k == 0 else vm)
                m = re.search(r'lgkmcnt\((\d+)\)', t)
                if m:
                    k = int(m.group(1)); assert k <= 15, t
                    if k == 0: lg = []
                    elif not any(x[2] for x in lg): lg = lg[len(lg) - k:] if k < len(lg) else lg
                continue
            if c.mn in ('s_endpgm', 's_branch'): vm, lg = [], []; continue
            touched = set(c.r) | set(c.w)
            for q in (vm, lg):
                for (rs, tx, _) in q:
                    if rs & touched and not (c.cls == 'vmem' and q is vm and not (rs & set(c.r))) and not (c.cls == 'ds' and q is lg and not (rs & set(c.r))):
                        raise SystemExit(f'[{self.name}] unwaited load: "{tx}" used by "{c.text}"')
            if c.cls == 'vmem':
                if '@skip' not in c.text: vm.append((set() if '@nocheck' in c.text else set(c.w), c.text, False))
            elif c.cls == 'ds': lg.append((set(c.w), c.text, False))
            elif c.cls == 'smem': lg.append((set(c.w), c.text, True))

def kernel_text(name, body):
    return f".globl {name}\n.p2align 8\n.type {name},@function\n{name}:\n{body}"

def descriptor(name, vgpr, agpr=0, sgpr=None):
    sgpr = sgpr or (102 if STAMPS else 100)
    acc = (vgpr + 3) // 4 * 4
    nfv = acc + agpr if agpr else vgpr
    return f""".p2align 6
.amdhsa_kernel {name}
  .amdhsa_next_free_vgpr {nfv}
  .amdhsa_next_free_sgpr {sgpr}
  .amdhsa_accum_offset {acc}
  .amdhsa_group_segment_fixed_size 0
  .amdhsa_kernarg_size 136
  .amdhsa_user_sgpr_count 2
  .amdhsa_user_sgpr_kernarg_segment_ptr 1
  .amdhsa_system_sgpr_workgroup_id_x 1
.end_amdhsa_kernel
"""
```

```python
from asmlib import *
from layoutF import *

F_GRID = 256
NCONV = 160
LNS = 1600
STATP = 12800
MODB = 13312
KT = 33792; KTS = 18432
TAPS = 107520; TCS = 2112; TAPCH = 4 * TCS
STG = TAPS + 4 * TAPCH; STGS = 2112
F_LDS = 149760
OH = 480
UD = 3088
O3 = 4576 + 16; O5 = O3 + UD; O7 = O5 + UD; O9 = O7 + UD
CHS = (O9 + 2048 + 127) // 128 * 128 + 16
OU = 4 * CHS; OS = OU + 16384
W1R = 102400; W2R = W1R + 20480; VRED = W2R + 20480
RED = 81920; STAT = RED + 61440; GBL = STAT + 512
assert OS + 16384 <= TAPS and STG + 4 * STGS <= F_LDS and GBL + 1280 <= F_LDS
pU, pAR, pAI, pBR, pBI, pCR, pCI, pLD, pDS, pW1, pW2, pC, pWM, pOUT, pDBG, pWS = 36, 38, 40, 42, 44, 46, 48, 50, 52, 56, 58, 60, 62, 64, 66, 68
def P(p): return f"s[{p}:{p+1}]"
SC = 'sc1'
vL16 = 8
BAND = 210
vRD, vDA, vDB, vD3, vRU, vWU, vWH, vNO, vUO, vMO, vTA, vT2, vT3, vBP = range(230, 244)
vVA, vF1D, vF1A = 244, 250, 251
vSA = 252
vKW, vKR, vPD, vPA, vPT = 120, 121, 122, 123, 133
KACC = 104; SCT = 124; PRM = 134
CDAT = 156; LA = 158; NR = 180

def srd(k, r, base, off, size):
    k(f"s_add_u32 s{r}, s{base}, {off}\ns_addc_u32 s{r+1}, s{base+1}, 0\ns_mov_b32 s{r+2}, {size}\ns_mov_b32 s{r+3}, 0x20000")
def mf(acc, a, b, first):
    c = '0' if first else f'v[{acc}:{acc+3}]'
    return f"v_mfma_f32_16x16x32_bf16 v[{acc}:{acc+3}], {a}, {b}, {c}"
V4 = lambda r: f"v[{r}:{r+3}]"
A4 = lambda r: f"a[{r}:{r+3}]"

SPINS = []
def wait_flags(k, tag, vdata, vaddr, target, nwait):
    if nwait is not None: k(f"s_waitcnt vmcnt({nwait})")
    k(f"v_cmp_gt_u32 vcc, {target}, v{vdata}\ns_cbranch_vccnz LF_spin{tag}\nLF_go{tag}:")
    SPINS.append(f"""
    LF_spin{tag}:
    s_mov_b32 s30, 40000
    LF_spinl{tag}:
    global_load_dword v{vdata}, v{vaddr}, {P(pDBG if tag.startswith('init') else pWS)} sc1
    s_waitcnt vmcnt(0)
    v_cmp_gt_u32 vcc, {target}, v{vdata}
    s_cbranch_vccz LF_go{tag}
    s_sub_u32 s30, s30, 1
    s_cmp_lg_u32 s30, 0
    s_cbranch_scc1 LF_spinl{tag}
    s_branch LF_go{tag}
    """)

def arrive(k, off, va, vb):
    k(f"""
    s_bfe_u32 s26, s2, 0x40003
    s_lshl_b32 s26, s26, 7
    s_add_u32 s26, s26, {WS_SYNC + off}
    v_lshl_add_u32 v{va}, v1, 11, s26
    v_mov_b32 v{vb}, 1
    s_mov_b64 exec, 0xff
    global_atomic_add v{va}, v{vb}, {P(pWS)} sc1
    s_mov_b64 exec, -1
    """)

def poll_addr(k, off, va):
    lo = 0
    k(f"""
    s_and_b32 s26, s2, 7
    s_lshl_b32 s26, s26, 11
    s_add_u32 s26, s26, {WS_SYNC + off + 128 * lo}
    v_min_u32 v{va}, {15 - lo}, v1
    v_lshl_add_u32 v{va}, v{va}, 7, s26
    """)

def rstd_chain(m, q, r=None):
    return f"""v_fma_f32 v{q}, -v{m}, v{m}, v{q}
    v_max_f32 v{q}, 0, v{q}
    v_cvt_pk_bf16_f32 v{q}, v{q}, v{m}
    v_and_b32 v{m}, 0xffff0000, v{q}
    v_lshlrev_b32 v{q}, 16, v{q}
    v_add_f32 v{q}, {f2u(1e-5)}, v{q}
    v_cvt_pk_bf16_f32 v{q}, v{q}, v{q}
    v_lshlrev_b32 v{q}, 16, v{q}
    v_sqrt_f32 v{q}, v{q}
    v_cvt_pk_bf16_f32 v{q}, v{q}, v{q}
    v_lshlrev_b32 v{q}, 16, v{q}
    v_rcp_f32 v{r or q}, v{q}"""

JOBS = 12800
def prologue(k, opts):
    k(f"""
    s_load_dwordx16 s[36:51], s[0:1], 0
    s_load_dwordx2 s[52:53], s[0:1], 64
    s_load_dwordx4 s[60:63], s[0:1], 96
    s_load_dwordx2 s[68:69], s[0:1], 128
    s_load_dwordx4 s[56:59], s[0:1], 80
    s_load_dwordx4 s[64:67], s[0:1], 112
    v_lshrrev_b32 v1, 6, v0
    v_readfirstlane_b32 s21, v1
    v_and_b32 v1, 63, v0
    """)
    if int(opts.get('cpf', 1)):
        k(f"""
        s_getpc_b64 s[24:25]
        LF_pc:
        s_lshr_b32 s26, s2, 3
        s_lshl_b32 s26, s26, 2
        s_add_u32 s26, s26, s21
        s_mul_i32 s26, s26, 384
        s_min_u32 s26, s26, LF_codeend-LF_pc-384
        s_add_u32 s24, s24, s26
        s_addc_u32 s25, s25, 0
        v_min_u32 v2, 2, v1
        v_lshlrev_b32 v2, 7, v2
        v_mov_b32 v3, s25
        v_add_co_u32 v2, vcc, s24, v2
        v_addc_co_u32 v3, vcc, 0, v3, vcc
        global_load_dword v254, v[2:3], off ; @nocheck
        """)
    k(f"""
    v_lshlrev_b32 v{vL16}, 4, v1
    s_cmp_lt_u32 s2, {NCONV}
    s_cbranch_scc0 LF_side
    s_lshl_b32 s20, s2, 2
    s_add_u32 s20, s20, s21               ; channel d
    s_mul_i32 s29, s20, 384
    v_lshl_add_u32 v10, v1, 1, s29
    s_lshl_b32 s29, s20, 1
    v_mov_b32 v11, s29
    v_mov_b32 v{vPA}, 0
    """)
    for i in list(range(19)) + [20]: k(f"v_mov_b32 v{PRM+i}, 0")
    k(f"s_waitcnt lgkmcnt(0)\nglobal_load_short_d16_hi v{PRM+18}, v11, {P(pLD)}")
    for p in range(3):
        for i, ptr in enumerate((pAR, pAI, pBR, pBI, pCR, pCI)):
            k(f"global_load_short_d16_hi v{PRM+6*p+i}, v10, {P(ptr)} offset:{128*p}")
    k(f"global_load_short_d16_hi v{PRM+20}, v11, {P(pDS)}")
    lane_consts(k)
    k(f"""
    s_mul_hi_u32 s25, s2, {(1 << 32) // 60 + 1}       ; kq
    s_mul_i32 s26, s25, 60
    s_sub_u32 s26, s2, s26
    s_mul_i32 s27, s25, 320
    v_lshl_add_u32 v6, v1, 2, s27
    v_lshl_add_u32 v7, v13, 2, s27
    global_load_dword v{CDAT}, v6, {P(pC)} ; @nocheck
    global_load_dword v{CDAT+1}, v7, {P(pC)} offset:256 ; @nocheck
    v_lshrrev_b32 v4, 3, v1
    v_and_b32 v5, 7, v1
    v_mul_u32_u24 v3, 7680, v4
    v_lshl_add_u32 v3, v5, 4, v3
    s_mul_i32 s27, s25, 160
    s_mul_i32 s28, s21, 40
    s_add_u32 s28, s28, s27
    s_mul_i32 s28, s28, 7680
    s_lshl_b32 s29, s26, 7
    s_add_u32 s28, s28, s29
    v_add_u32 v3, s28, v3
    s_mul_i32 s29, s21, 5120
    s_add_u32 m0, s29, {MODB}
    s_mul_i32 s25, s25, 15360
    """)
    for i in range(5):
        k(f"global_load_lds_dwordx4 v3, {P(pWM)}")
        if i < 4: k(f"s_add_u32 m0, m0, 1024\nv_add_u32 v3, {8*7680}, v3")
    k(f"""
    s_lshl_b32 s26, s26, 8
    s_add_u32 s25, s25, s26
    s_lshl_b32 s26, s21, 6
    s_add_u32 s25, s25, s26
    v_lshl_add_u32 v{LA}, v1, 2, s25
    v_lshl_add_u32 v7, v12, 3, v11
    v_lshlrev_b32 v7, 7, v7
    v_lshl_add_u32 v7, v10, 3, v7
    s_lshl_b32 s27, s21, 5
    s_add_u32 s27, s27, {MODB}
    v_add_u32 v{LA+1}, s27, v7
    v_lshlrev_b32 v{LA+2}, 4, v12
    """)

def silu_frags(k, c0, vbp):
    k(f"""
    s_mov_b32 s24, {LOG2E + 0x80000000}
    v_lshlrev_b32 v16, 16, v{c0}
    v_and_b32 v17, 0xffff0000, v{c0}
    v_lshlrev_b32 v18, 16, v{c0+1}
    v_and_b32 v19, 0xffff0000, v{c0+1}
    """)
    for i in range(4): k(f"v_mul_f32 v{20+i}, s24, v{16+i}")
    for i in range(4): k(f"v_exp_f32 v{20+i}, v{20+i}")
    for i in range(4): k(f"v_add_f32 v{20+i}, 1.0, v{20+i}")
    for i in range(4): k(f"v_rcp_f32 v{20+i}, v{20+i}")
    for i in range(4): k(f"v_mul_f32 v{16+i}, v{16+i}, v{20+i}")
    k(f"v_cvt_pk_bf16_f32 v16, v16, v17\nv_cvt_pk_bf16_f32 v17, v18, v19")
    for ks in range(5):
        for q in range(4): k(f"ds_bpermute_b32 v{24+4*ks+q}, v{vbp}, v{16 if ks < 4 else 17} offset:{4*((16*ks if ks < 4 else 0) + q)}")

def conv_mod(k):
    k("LF_cmod:\ns_waitcnt vmcnt(5)")
    silu_frags(k, CDAT, LA + 2)
    k("s_waitcnt vmcnt(0)\ns_barrier\nAUTO")
    for ks in range(5):
        for h in range(2): k(f"ds_read_b64_tr_b16 v[{60+4*ks+2*h}:{61+4*ks+2*h}], v{LA+1} offset:{4096*ks + 512*h}")
    for ks in range(5): k(mf(16, V4(24 + 4 * ks), V4(60 + 4 * ks), ks == 0))
    k(f"""MANUAL
    s_mov_b64 exec, 0xffff
    global_store_dword v{LA}, v16, {P(pWS)} {SC}
    s_mov_b64 exec, -1
    global_load_dword v{vPD}, v{vPA}, {P(pDBG)} sc1 ; @nocheck
    """)
    k.stamp('modst')
    k("s_branch LF_kpass")

def lane_consts(k):
    k("""
    v_bfe_u32 v11, v1, 2, 2               ; r
    v_lshrrev_b32 v12, 4, v1              ; G
    v_and_b32 v10, 3, v1                  ; cc / j
    v_and_b32 v13, 15, v1                 ; a / i
    """)

def mod_issue(k, sj, lds, c0):
    k(f"""
    s_mul_hi_u32 s25, {sj}, {(1 << 32) // 120 + 1}      ; kq
    s_mul_i32 s26, s25, 120
    s_sub_u32 s26, {sj}, s26
    s_mul_i32 s27, s25, {160*7680}
    s_lshl_b32 s28, s26, 6
    s_add_u32 s27, s27, s28
    v_add_u32 v14, s27, v4
    s_mul_i32 s27, s25, 320
    v_lshl_add_u32 v15, v1, 2, s27
    v_lshl_add_u32 v16, v13, 2, s27
    s_mov_b32 m0, {lds}
    global_load_dword v{c0}, v15, {P(pC)}
    global_load_dword v{c0+1}, v16, {P(pC)} offset:256
    s_mul_i32 s25, s25, 15360
    s_lshl_b32 s26, s26, 7
    s_add_u32 s25, s25, s26
    v_lshl_add_u32 v{c0+2}, v13, 2, s25
    """)
    for i in range(10):
        k(f"global_load_lds_dwordx4 v14, {P(pWM)}")
        if i < 9: k(f"s_add_u32 m0, m0, 1024\nv_add_u32 v14, {16*7680}, v14")

def mod_compute(k, lds, c0, young):
    k(f"v_add_u32 v14, {lds}, v5")
    if young is not None: k(f"s_waitcnt vmcnt({10 + young})")
    silu_frags(k, c0, 6)
    k(("" if young is None else f"s_waitcnt vmcnt({young})\n") + "AUTO")
    for ks in range(5):
        for ct in range(2):
            for h in range(2): k(f"ds_read_b64_tr_b16 v[{44+8*ks+4*ct+2*h}:{45+8*ks+4*ct+2*h}], v14 offset:{2048*ks + 256*h + 32*ct}")
    for ks in range(5):
        for ct in range(2): k(mf(16 + 4 * ct, V4(24 + 4 * ks), V4(44 + 8 * ks + 4 * ct), ks == 0))
    k(f"""MANUAL
    s_mov_b64 exec, 0xffff
    global_store_dword v{c0+2}, v16, {P(pWS)} {SC}
    global_store_dword v{c0+2}, v20, {P(pWS)} offset:64 {SC}
    s_mov_b64 exec, -1
    """)

def side_a(k):
    UD_ = 100
    k(f"""
    s_sub_u32 s20, s2, {NCONV}
    s_mul_i32 s33, s21, {2*JOBS}
    s_add_u32 s34, s33, {JOBS}
    """)
    lane_consts(k)
    k(f"""
    v_lshrrev_b32 v4, 2, v1
    v_mul_u32_u24 v4, 7680, v4
    v_lshl_add_u32 v4, v10, 4, v4
    v_lshl_add_u32 v5, v12, 3, v11
    v_lshlrev_b32 v5, 6, v5
    v_lshl_add_u32 v5, v10, 3, v5
    v_lshlrev_b32 v6, 4, v12
    s_mul_i32 s31, s21, 96
    s_add_u32 s31, s31, s20
    s_cmp_lt_u32 s31, 256
    s_waitcnt lgkmcnt(0)
    s_cbranch_scc0 LF_sa_mod
    v_lshrrev_b32 v2, 3, v1
    v_and_b32 v3, 7, v1
    v_lshlrev_b32 v3, 4, v3
    v_mul_u32_u24 v7, 1280, v2
    v_add_u32 v7, v7, v3
    s_mul_i32 s24, s31, 10240
    v_add_u32 v7, s24, v7
    """)
    for q in range(10): k(f"global_load_dwordx4 {V4(UD_+4*q)}, v7, {P(pU)} offset:{128*q}")
    k(f"""
    v_mul_u32_u24 v7, {LNS - 256}, v2
    v_add3_u32 v7, v7, v3, s33
    v_mul_u32_u24 v9, {LNS - 256}, v11
    v_lshl_add_u32 v9, v12, 5, v9
    v_lshl_add_u32 v9, v10, 3, v9
    v_add_u32 v9, s33, v9
    v_lshrrev_b32 v2, 2, v1
    v_lshlrev_b32 v2, 14, v2
    v_lshl_add_u32 v2, v10, 4, v2
    s_lshl_b32 s24, s31, 6
    s_add_u32 s24, s24, {WS_NT}
    v_add_u32 v2, s24, v2
    s_lshr_b32 s24, s31, 5
    s_lshl_b32 s24, s24, 11
    s_bfe_u32 s25, s31, 0x40001
    s_lshl_b32 s25, s25, 4
    s_add_u32 s24, s24, s25
    s_and_b32 s25, s31, 1
    s_lshl_b32 s25, s25, 9
    s_add_u32 s24, s24, s25
    s_add_u32 s24, s24, {WS_ST}
    v_lshrrev_b32 v3, 5, v1
    v_lshlrev_b32 v3, 8, v3
    v_bfe_u32 v14, v1, 4, 1
    v_lshl_add_u32 v3, v14, 10, v3
    v_bfe_u32 v14, v1, 3, 1
    v_lshl_add_u32 v3, v14, 3, v3
    v_add_u32 v3, s24, v3
    s_mov_b32 s24, 0x3f803f80
    v_mov_b32 v140, 0
    v_mov_b32 v141, 0
    v_mov_b32 v142, 0
    v_mov_b32 v143, 0
    """)
    for q in range(10):
        k(f"s_waitcnt vmcnt({9 - q})")
        if q == 0: k.stamp('u0')
        k(f"ds_write_b128 v7, {V4(UD_+4*q)} offset:{128*q}")
        for i in range(4):
            r = UD_ + 4 * q + i
            k(f"v_dot2c_f32_bf16 v{140 + 2*(i&1)}, s24, v{r}\nv_dot2c_f32_bf16 v{141 + 2*(i&1)}, v{r}, v{r}")
    k(f"""
    v_pk_add_f32 v[140:141], v[140:141], v[142:143]
    v_add_f32_dpp v140, v140, v140 quad_perm:[1,0,3,2] row_mask:0xf bank_mask:0xf
    v_add_f32_dpp v141, v141, v141 quad_perm:[1,0,3,2] row_mask:0xf bank_mask:0xf
    v_add_f32_dpp v140, v140, v140 quad_perm:[2,3,0,1] row_mask:0xf bank_mask:0xf
    v_add_f32_dpp v141, v141, v141 quad_perm:[2,3,0,1] row_mask:0xf bank_mask:0xf
    v_add_f32_dpp v140, v140, v140 row_half_mirror row_mask:0xf bank_mask:0xf
    v_add_f32_dpp v141, v141, v141 row_half_mirror row_mask:0xf bank_mask:0xf
    v_mul_f32 v140, {f2u(1/640)}, v140
    v_mul_f32 v141, {f2u(1/640)}, v141
    AUTO
    """)
    for ch in range(10):
        k(f"ds_read_b64_tr_b16 v[{UD_+4*ch}:{UD_+4*ch+1}], v9 offset:{128*ch}\nds_read_b64_tr_b16 v[{UD_+4*ch+2}:{UD_+4*ch+3}], v9 offset:{128*ch + 4*(LNS - 256)}")
        if ch == 4: k(rstd_chain(140, 141, 144) + f"\nv_mov_b32 v142, v141\nv_mov_b32 v143, v140\nv_mul_f32 v140, v140, v144\ns_mov_b32 exec_lo, 0x01010101\ns_mov_b32 exec_hi, 0x01010101\nglobal_store_dwordx2 v3, v[142:143], {P(pWS)} {SC}\ns_mov_b64 exec, -1")
    for r in range(8): k(f"v_readlane_b32 s{70+r}, v144, {8*r}")
    for r in range(8): k(f"v_readlane_b32 s{78+r}, v140, {8*r}")
    for r in range(8): k(f"v_mov_b32 v{16+r}, s{78+r}")
    for ch in range(10):
        b = UD_ + 4 * ch; u = 24 + 12 * (ch % 3)
        for i in range(4): k(f"v_lshlrev_b32 v{u+2*i}, 16, v{b+i}\nv_and_b32 v{u+2*i+1}, 0xffff0000, v{b+i}")
        for i in range(4): k(f"v_pk_fma_f32 v[{u+2*i}:{u+2*i+1}], v[{u+2*i}:{u+2*i+1}], s[{70+2*i}:{71+2*i}], v[{16+2*i}:{17+2*i}] neg_lo:[0,0,1] neg_hi:[0,0,1]")
        for i in range(4): k(f"v_cvt_pk_bf16_f32 v{u+8+i}, v{u+2*i}, v{u+2*i+1}")
        k(f"global_store_dwordx4 v2, {V4(u+8)}, {P(pWS)} {SC}")
        if ch < 9: k("v_add_u32 v2, 0x40000, v2")
    k("MANUAL")
    k.stamp('lnst')
    k(f"""
    s_branch LF_sa_end
    LF_sa_mod:
    s_cmp_eq_u32 s2, 255
    s_cbranch_scc1 LF_init
    LF_initd:
    s_cmp_eq_u32 s21, 3
    s_cbranch_scc0 LF_sa_end
    s_cmp_lt_u32 s20, 80
    s_cbranch_scc0 LF_sa_end
    s_lshl_b32 s31, s2, 1
    s_add_u32 s32, s31, 1
    """)
    mod_issue(k, 's31', 's33', 154)
    mod_issue(k, 's32', 's34', 150)
    mod_compute(k, 's33', 154, 12)
    mod_compute(k, 's34', 150, 2)
    k("LF_sa_end:")
    k(f"v_mov_b32 v{vPA}, 0\nglobal_load_dword v{vPD}, v{vPA}, {P(pDBG)} sc1 ; @nocheck")
    k.stamp('modst')
    SPINS.append(f"""
    LF_init:
    s_cmp_eq_u32 s21, 3
    s_cbranch_scc0 LF_initd
    v_mov_b32 v26, 0
    v_mov_b32 v27, 0
    v_mov_b32 v28, 0
    v_mov_b32 v29, 0
    v_lshlrev_b32 v30, 7, v1
    v_add_u32 v30, {WS_SYNC}, v30
    """ + "".join(f"global_store_dword v30, v26, {P(pWS)} sc1\nv_add_u32 v30, 8192, v30\n" for i in range(4))
    + f"v_add_u32 v30, {WS_SYNC + F1_OFF}, v{vL16}\n"
    + "".join(f"global_store_dwordx4 v30, v[26:29], {P(pWS)} sc1\nv_add_u32 v30, 1024, v30\n" for i in range(8)) + f"""
    v_mov_b32 v27, 1
    s_waitcnt vmcnt(0)
    s_mov_b64 exec, 1
    global_store_dword v26, v27, {P(pDBG)} sc1
    s_mov_b64 exec, -1
    s_branch LF_initd
    """)

def mlp_setup(k, opts):
    if opts.get('arr', '8x4') == '8x4':
        k("""
        s_and_b32 s24, s2, 7
        s_lshr_b32 s25, s2, 3
        s_lshr_b32 s22, s24, 1
        s_lshl_b32 s22, s22, 3
        s_lshr_b32 s26, s25, 2
        s_add_u32 s22, s22, s26               ; rb
        s_and_b32 s23, s24, 1
        s_lshl_b32 s23, s23, 2
        s_and_b32 s26, s25, 3
        s_add_u32 s23, s23, s26               ; j
        """)
    else:
        k("""
        s_and_b32 s22, s2, 7
        s_lshl_b32 s22, s22, 2
        s_lshr_b32 s26, s2, 6
        s_add_u32 s22, s22, s26               ; rb
        s_bfe_u32 s23, s2, 0x30003            ; j
        """)
    k(f"""
    s_mul_i32 s26, s23, 12
    s_mul_i32 s25, s21, 3
    s_add_u32 s25, s26, s25
    s_lshl_b32 s26, s25, 2
    s_add_u32 s26, s26, {WS_SYNC + F1_OFF}
    v_min_u32 v{vF1A}, 2, v1
    v_lshl_add_u32 v{vF1A}, v{vF1A}, 2, s26
    s_lshl_b32 s24, s23, 2
    s_add_u32 s24, s24, s21
    s_mul_i32 s24, s24, 61440
    s_add_u32 s26, s24, {WS_W1F}
    """)
    srd(k, 4, pWS, 's26', 61440)
    k(f"s_add_u32 s26, s24, {WS_W2F}")
    srd(k, 8, pWS, 's26', 61440)
    k(f"s_mul_i32 s26, s22, 196608\ns_add_u32 s26, s26, {WS_H}")
    srd(k, 12, pWS, 's26', 196608)
    srd(k, 16, pOUT, 0, L * D * 2)
    k(f"""
    s_and_b32 s26, s21, 1
    s_add_u32 s25, s25, s26
    s_lshl_b32 s25, s25, 6
    s_add_u32 s25, s25, {WS_V12}
    v_lshl_add_u32 v{vVA}, v12, 4, s25
    s_mul_i32 s26, s26, 192
    s_sub_u32 s26, 128, s26
    v_add_u32 v{vVA+1}, s26, v{vVA}
    v_add_u32 v{vVA+2}, 6144, v{vVA}
    v_add_u32 v{vVA+3}, 6144, v{vVA+1}
    s_mul_i32 s26, s23, 320
    s_add_u32 s26, s26, 12800
    v_lshl_add_u32 v{vVA+4}, v1, 2, s26
    v_lshl_add_u32 v{vVA+5}, v13, 2, s26
    """)

def conv_setup(k):
    k(f"""
    s_mul_i32 s26, s21, {TAPCH}
    s_add_u32 s26, s26, {TAPS}
    v_sub_u32 v14, 3, v11
    v_mul_u32_u24 v14, {TCS}, v14
    v_lshl_add_u32 v14, v10, 3, v14
    v_add_u32 v14, s26, v14
    v_lshlrev_b32 v15, 4, v12
    v_sub_u32 v15, 48, v15
    v_add_u32 v{vTA}, v14, v15
    v_and_b32 v15, 1, v12                 ; G&1
    v_lshrrev_b32 v9, 1, v12              ; G>>1
    v_lshlrev_b32 v16, 3, v15
    v_sub_u32 v14, v14, v16
    v_add_u32 v14, 8, v14
    v_mul_u32_u24 v16, {2*(B3A - B5A)}, v9
    v_add_u32 v{vT2}, v14, v16
    v_mul_u32_u24 v16, {2*(B9 - B7)}, v9
    v_add_u32 v{vT3}, v14, v16
    s_mul_i32 s27, s21, {CHS}
    v_lshlrev_b32 v14, 5, v13
    v_add_u32 v14, s27, v14
    v_lshl_add_u32 v{vRD}, v12, 4, v14    ; h frag: 32a + 16G
    v_lshl_add_u32 v14, v9, 4, v14
    v_mul_u32_u24 v16, {UD}, v15
    v_add_u32 v{vWU}, v14, v16
    v_lshlrev_b32 v14, 7, v15
    v_lshl_add_u32 v14, v11, 5, v14
    v_lshl_add_u32 v14, v10, 3, v14
    v_add_u32 v14, s27, v14               ; 128(G&1) + 32r + 8cc
    v_mul_u32_u24 v16, {UD - 16}, v9
    v_sub_u32 v17, v14, v16
    v_add_u32 v{vDA}, {O5 - 16}, v17
    v_add_u32 v17, v14, v16
    v_add_u32 v{vD3}, {O7}, v17
    v_lshlrev_b32 v16, 5, v9
    v_sub_u32 v16, 16, v16
    v_add_u32 v{vDB}, v{vDA}, v16
    v_bfe_u32 v16, v1, 1, 2
    v_xor_b32 v16, s21, v16
    v_lshlrev_b32 v16, 4, v16
    v_lshl_add_u32 v16, v13, 7, v16
    v_lshl_add_u32 v16, v15, 6, v16
    v_add_u32 v{vRU}, {OU}, v16
    v_mul_u32_u24 v16, {CHS}, v10
    v_lshrrev_b32 v14, 2, v1
    s_lshl_b32 s28, s21, 4
    v_add_u32 v14, s28, v14               ; segment 0..63
    v_lshl_add_u32 v{vWH}, v14, 6, v16
    v_lshlrev_b32 v14, 8, v14
    v_lshl_add_u32 v14, v10, 4, v14
    s_lshl_b32 s29, s2, 14
    s_add_u32 s28, s29, {WS_NT}
    v_add_u32 v{vNO}, s28, v14
    v_xor_b32 v14, v10, v12
    v_and_b32 v16, 0x3c, v1
    v_lshlrev_b32 v16, 4, v16
    v_lshl_add_u32 v14, v14, 4, v16
    s_lshl_b32 s28, s21, 12
    s_add_u32 s29, s29, s28
    s_add_u32 s28, s29, {WS_NT}
    v_add_u32 v{vUO}, s28, v14
    v_min_u32 v14, 2, v12
    v_mul_u32_u24 v14, 2560, v14
    v_mul_u32_u24 v16, 15360, v11
    v_add_u32 v14, v14, v16
    v_lshl_add_u32 v14, v10, 2, v14
    s_lshl_b32 s29, s2, 4
    v_add_u32 v{vMO}, s29, v14
    v_lshlrev_b32 v{vBP}, 2, v10
    v_add_u32 v{vSA}, {OS}, v{vL16}
    v_lshlrev_b32 v14, 3, v12
    v_sub_u32 v14, v14, v13
    v_add_u32 v14, 15, v14                ; 8G - i + 15
    v_cmp_gt_u32 vcc, 32, v14
    """)
    for fi, (lo, hi_) in enumerate(((0, 0), (11, 13), (6, 10), (5, 11), (4, 12))):
        Wv = ((1 << (hi_ - lo + 1)) - 1) << (lo + 15)
        k(f"v_mov_b32 v16, {Wv}\nv_lshrrev_b32 v16, v14, v16\nv_cndmask_b32 v16, 0, v16, vcc")
        for q in range(4):
            k(f"v_bfe_u32 v17, v16, {2*q}, 1\nv_bfe_u32 v18, v16, {2*q+1}, 1\nv_lshl_or_b32 v17, v18, 16, v17\nv_mul_u32_u24 v{BAND+4*fi+q}, 0x3f80, v17")
    DUM = 2 * 1010
    S = SCT
    k(f"""
    s_mul_i32 s26, s21, {KTS}
    s_add_u32 s26, s26, {KT}
    v_mul_u32_u24 v14, 144, v1
    v_add_u32 v{vKW}, s26, v14
    v_lshrrev_b32 v15, 5, v1              ; hi
    v_lshl_add_u32 v14, v11, 1, v15
    v_mul_u32_u24 v14, 288, v14
    v_bfe_u32 v16, v1, 4, 1
    v_lshl_add_u32 v14, v16, 5, v14
    v_lshl_add_u32 v14, v10, 3, v14
    v_add_u32 v{vKR}, s26, v14
    s_mul_i32 s26, s21, {STGS}
    s_add_u32 s26, s26, {STG}
    v_mov_b32 v24, 0
    v_mov_b32 v25, 0
    v_mov_b32 v26, 0
    v_mov_b32 v27, 0
    v_add_u32 v{S+8}, s26, v{vL16}
    ds_write_b128 v{S+8}, v[24:27]
    ds_write_b128 v{S+8}, v[24:27] offset:1024
    v_mov_b32 v28, s26
    ds_write_b128 v28, v[24:27] offset:2048
    v_and_b32 v34, 1, v1                  ; odd
    v_bfe_u32 v35, v1, 1, 4               ; kappa'
    v_or_b32 v36, v34, v15
    v_mul_u32_u24 v37, 48, v34
    v_mul_u32_u24 v38, 96, v15
    v_add3_u32 v36, v36, v37, v38
    v_add_u32 v36, v36, v35
    v_lshl_add_u32 v{S}, v36, 1, s26
    v_add_u32 v39, {DUM}, v28
    v_add_u32 v36, {2*B5A}, v{S}
    v_cmp_eq_u32 vcc, 0, v35
    v_mul_u32_u24 v37, {B9 - 1 - B7}, v34
    v_lshl_add_u32 v38, v15, 4, v35
    v_cndmask_b32 v{S+1}, v36, v39, vcc
    v_sub_u32 v38, v38, v37
    v_add_u32 v38, {B9}, v38
    v_lshl_add_u32 v{S+2}, v38, 1, s26
    v_add_u32 v37, {2*(BC + 4)}, v28
    v_cmp_eq_u32 vcc, 0, v1
    v_add_u32 v40, {2*(BC + 5)}, v28
    v_add_u32 v41, {2*(B9 + 64)}, v28
    v_cndmask_b32 v{S+3}, v{S+2}, v37, vcc
    v_cndmask_b32 v{S+4}, v39, v40, vcc
    v_cndmask_b32 v{S+5}, v39, v41, vcc
    v_add_u32 v37, {2*(B5A + 32)}, v28
    v_cmp_eq_u32 vcc, 32, v1
    v_and_b32 v38, 31, v1
    v_lshlrev_b32 v38, 4, v38
    v_cndmask_b32 v{S+5}, v{S+5}, v37, vcc
    v_lshl_add_u32 v38, v15, 3, v38
    v_add_u32 v{S+6}, s26, v38            ; 16n + 8hi
    v_and_b32 v37, 30, v1
    v_cmp_eq_u32 vcc, 0, v37
    v_add_u32 v37, {2*1016 - 2*(BA+1+512)}, v28
    v_cndmask_b32 v{S+7}, v37, v{S+6}, vcc
    """)
    for i in range(16): k(f"v_mov_b32 v{KACC+i}, 0")

def cmul(k, z, a, b, t):
    k(f"v_pk_mul_f32 v[{t}:{t+1}], v[{a}:{a+1}], v[{b}:{b+1}] op_sel_hi:[1,0]")
    return f"v_pk_fma_f32 v[{z}:{z+1}], v[{a}:{a+1}], v[{b}:{b+1}], v[{t}:{t+1}] op_sel:[1,1,0] op_sel_hi:[0,1,1] neg_lo:[1,0,0]"
def cmuls(k, lst, tmp):
    for s in [cmul(k, z, a, b, tmp + 2 * i) for i, (z, a, b) in enumerate(lst)]: k(s)

def kgen(k, opts):
    AR, BR, CR, DT, DS = PRM, PRM + 2, PRM + 4, PRM + 18, PRM + 20
    TMP, LR, ACC = 14, 22, KACC
    k(f"""
    s_mov_b32 s86, {LOG2E}
    s_mov_b32 s87, {INV2PI}
    s_mov_b32 s3, 0
    s_waitcnt vmcnt(7)
    v_mul_f32 v14, s86, v{DT}
    v_fma_f32 v15, v{DT}, s86, -v14
    v_fmac_f32 v15, {LOG2E_LO}, v{DT}
    v_exp_f32 v14, v14
    v_mul_f32 v15, {LN2}, v15
    v_fmac_f32 v14, v14, v15
    v_cmp_eq_u32 vcc, 0, v1
    v_cvt_pk_bf16_f32 v14, v14, v14
    v_lshlrev_b32 v{DT}, 16, v14
    v_cndmask_b32 v{ACC}, 0, v{DS}, vcc
    """)
    k.stamp('kparam')
    k(f"""
    LF_kpass:
    v_pk_mul_f32 v[{LR}:{LR+1}], v[{AR}:{AR+1}], v[{DT}:{DT+1}] op_sel_hi:[1,0]
    v_pk_mul_f32 v[{LR}:{LR+1}], v[{LR}:{LR+1}], s[86:87]
    """)
    W = {1: 24, 8: 26, 256: 28, 2: 30, 3: 32, 4: 34, 5: 36, 6: 38, 7: 40, 16: 42, 32: 44, 258: 46, 260: 48, 262: 50, 264: 52, 512: 54}
    Z = [56 + 2 * i for i in range(8)]
    k(f"""
    v_pk_mul_f32 v[20:21], v[{CR}:{CR+1}], v[{BR}:{BR+1}] op_sel_hi:[1,0]
    v_mul_f32 v16, {f2u(8.0)}, v{LR}
    v_mul_f32 v17, {f2u(8.0)}, v{LR+1}
    v_mul_f32 v18, {f2u(256.0)}, v{LR}
    v_mul_f32 v19, {f2u(256.0)}, v{LR+1}
    v_fract_f32 v15, v{LR+1}
    v_fract_f32 v17, v17
    v_fract_f32 v19, v19
    v_exp_f32 v14, v{LR}
    v_exp_f32 v16, v16
    v_exp_f32 v18, v18
    v_pk_fma_f32 v[{Z[0]}:{Z[0]+1}], v[{CR}:{CR+1}], v[{BR}:{BR+1}], v[20:21] op_sel:[1,1,0] op_sel_hi:[0,1,1] neg_lo:[1,0,0]
    """)
    for i, r in enumerate((24, 26, 28)): k(f"v_cos_f32 v{r}, v{15+2*i}\nv_sin_f32 v{r+1}, v{15+2*i}")
    k(f"v_pk_mul_f32 v[{Z[0]}:{Z[0]+1}], v[{Z[0]}:{Z[0]+1}], v[{DT}:{DT+1}] op_sel_hi:[1,0]")
    for i, r in enumerate((24, 26, 28)): k(f"v_pk_mul_f32 v[{r}:{r+1}], v[{r}:{r+1}], v[{14+2*i}:{15+2*i}] op_sel_hi:[1,0]")
    for i in range(6): k(f"v_pk_mov_b32 v[{PRM+2*i}:{PRM+2*i+1}], v[{PRM+6+2*i}:{PRM+7+2*i}], v[{PRM+6+2*i}:{PRM+7+2*i}] op_sel:[0,1]")
    cmuls(k, [(W[2], W[1], W[1]), (W[16], W[8], W[8]), (W[512], W[256], W[256]), (Z[1], Z[0], W[8])], TMP)
    cmuls(k, [(W[3], W[2], W[1]), (W[4], W[2], W[2]), (W[32], W[16], W[16]), (W[258], W[256], W[2])], TMP)
    cmuls(k, [(Z[2], Z[0], W[16]), (Z[3], Z[1], W[16]), (W[5], W[4], W[1]), (W[6], W[4], W[2])], TMP)
    cmuls(k, [(W[7], W[4], W[3]), (W[260], W[256], W[4]), (W[264], W[256], W[8]), (Z[4], Z[0], W[32])], TMP)
    st = {'g': 0}
    NOW = int(opts.get('nokw', 0))
    def half(grp, vals, neg, part):
        pk = 72 + 4 * (st['g'] % 4); st['g'] += 1
        s = '-' if neg and part else ''
        for i in range(4):
            a, b = vals[2 * i], vals[2 * i + 1]
            ra = ('0' if part else '1.0') if a is None else f'{s}v{a+part}'
            k(f"v_cvt_pk_bf16_f32 v{pk+i}, {ra}, {s}v{b+part}")
        if not NOW: k(f"ds_write_b128 v{vKW}, v[{pk}:{pk+3}] offset:{16*grp + 9216*part}")
    def put(grp, vals, neg, between=None):
        half(grp, vals, neg, 0)
        if between: cmuls(k, between, TMP)
        half(grp, vals, neg, 1)
    X = {516: 88, 520: 90, 768: 92, 1024: 94, 772: 96, 1280: 98, 1536: 100, 1792: 102, 2048: W[1]}
    Y = [W[258], W[260], W[262], W[264], W[2], W[3], W[5], W[7]]
    cmuls(k, [(W[262], W[256], W[6]), (Z[5], Z[1], W[32]), (Z[6], Z[2], W[32]), (Z[7], Z[3], W[32])], TMP)
    put(0, [None, W[1], W[2], W[3], W[4], W[5], W[6], W[7]], True, [(X[516], W[512], W[4]), (X[520], W[512], W[8]), (X[768], W[512], W[256]), (X[1024], W[512], W[512])])
    put(1, [W[256], W[256], W[258], W[260], W[260], W[260], W[262], W[264]], True, [(X[772], X[768], W[4]), (X[1280], X[1024], W[256]), (X[1536], X[1024], W[512]), (X[1792], X[1024], X[768])])
    put(4, Z, False, [(Y[0], Z[4], W[32]), (Y[1], Z[5], W[32]), (Y[2], Z[6], W[32]), (Y[3], Z[7], W[32])])
    put(2, [W[512], W[512], W[512], X[516], X[516], X[516], X[520], X[520]], True, [(Y[4], Y[0], W[32]), (Y[5], Y[1], W[32]), (Y[6], Y[2], W[32]), (Y[7], Y[3], W[32])])
    k("s_cmp_eq_u32 s3, 1\ns_cbranch_scc1 LF_arr1\nLF_noarr1:")
    a = Asm('x'); a.names = k.names
    a("LF_arr1:\ns_waitcnt vmcnt(0)")
    wait_flags(a, 'init', vPD, vPA, 1, None)
    a("s_barrier\ns_cmp_eq_u32 s21, 0\ns_cbranch_scc0 LF_arr1b")
    arrive(a, S1_OFF, vPD, vPT)
    a("LF_arr1b:")
    poll_addr(a, S1_OFF, vPA)
    a.stamp('arr1')
    a("s_branch LF_noarr1")
    SPINS.append('\n'.join(a.lines))
    cmuls(k, [(X[2048], X[1024], X[1024]), (Z[0], Y[4], W[32]), (Z[1], Y[5], W[32]), (Z[2], Y[6], W[32])], TMP)
    put(5, Y, False, [(Z[3], Y[7], W[32]), (Z[4], Z[0], W[32]), (Z[5], Z[1], W[32]), (Z[6], Z[2], W[32])])
    put(3, [X[768], X[1024], X[1536], X[2048], X[772], X[1280], X[1792], X[1024]], True, [(Z[7], Z[3], W[32]), (Y[0], Z[4], W[32]), (Y[1], Z[5], W[32]), (Y[2], Z[6], W[32])])
    put(6, Z, False, [(Y[3], Z[7], W[32]), (Y[4], Y[0], W[32]), (Y[5], Y[1], W[32]), (Y[6], Y[2], W[32])])
    cmuls(k, [(Y[7], Y[3], W[32])], TMP)
    put(7, Y, False)
    k.stamp('ktab_last')
    k(f"s_cmp_eq_u32 s3, 2\ns_cbranch_scc0 LF_nopoll1\nglobal_load_dword v{vPD}, v{vPA}, {P(pWS)} sc1\nLF_nopoll1:")
    FR = 56
    order = [0, 1, 2, 3, 4, 5, 6, 7]
    def rd(s):
        return [f"ds_read_b64_tr_b16 v[{FR + 8*(s % 4) + 4*tb + 2*h}:{FR + 8*(s % 4) + 4*tb + 2*h + 1}], v{vKR} offset:{(16*(s % 4) + h)*144 + 64*tb + 9216*(s // 4)}" for tb in range(2) for h in range(2)]
    k("AUTO")
    for s in range(3):
        for t in rd(s): k(t)
    for s in range(8):
        r = FR + 8 * (s % 4)
        k(f"v_mfma_f32_32x32x16_bf16 v[{ACC}:{ACC+15}], v[{r}:{r+3}], v[{r+4}:{r+7}], v[{ACC}:{ACC+15}]")
        if s + 3 < 8:
            for t in rd(s + 3): k(t)
    k(f"""MANUAL
    s_add_u32 s3, s3, 1
    s_cmp_eq_u32 s3, 1
    s_cbranch_scc1 LF_cmod
    s_cmp_eq_u32 s3, 2
    s_cbranch_scc1 LF_kpass
    """)
    k.stamp('kg3')
    wait_flags(k, 's1', vPD, vPA, 16, 0)
    k.stamp('s1')
    for q in range(4): k(f"global_load_dwordx4 {V4(NR+4*q)}, v{vNO}, {P(pWS)} offset:{64*q} {SC}")
    k(f"global_load_dword v{NR+16}, v{vMO}, {P(pWS)} {SC}")
    S = SCT
    k(f"""
    v_cmp_ne_u32 vcc, 33, v1
    s_mul_i32 s26, s21, {TAPCH}
    s_add_u32 s26, s26, {TAPS}
    v_add_u32 v14, s26, v{vL16}
    v_cvt_pk_bf16_f32 v24, v{ACC}, v{ACC+1}
    v_cvt_pk_bf16_f32 v25, v{ACC+2}, v{ACC+3}
    v_cvt_pk_bf16_f32 v26, v{ACC+4}, v{ACC+5}
    v_cvt_pk_bf16_f32 v27, v{ACC+6}, v{ACC+7}
    ds_write_b64 v{S+6}, v[24:25] offset:{2*(BA+1)}
    v_cvt_pk_bf16_f32 v28, v{ACC+8}, v{ACC+9}
    v_cvt_pk_bf16_f32 v29, v{ACC+10}, v{ACC+11}
    ds_write_b64 v{S+6}, v[26:27] offset:{2*(BA+1) + 512}
    v_cvt_pk_bf16_f32 v30, v{ACC+8}, v{ACC+12}
    v_cndmask_b32 v29, 0, v29, vcc
    ds_write_b16 v{S+1}, v30
    v_cvt_pk_bf16_f32 v31, v{ACC+13}, v{ACC+14}
    ds_write_b64 v{S+7}, v[28:29] offset:{2*(BA+1) + 1024}
    v_cvt_pk_bf16_f32 v32, v{ACC+15}, v{ACC+15}
    ds_write_b16_d16_hi v{S}, v30 offset:{2*B5A + 32}
    ds_write_b16 v{S+3}, v31
    ds_write_b16 v{S+4}, v31
    ds_write_b16_d16_hi v{S+2}, v31 offset:64
    ds_write_b16 v{S+5}, v32
    AUTO
    ds_read_b128 v[24:27], v{S+8}
    ds_read_b64 v[28:29], v{S+8} offset:16
    ds_read_b128 v[48:51], v{S+8} offset:1024
    ds_read_b64 v[52:53], v{S+8} offset:1040
    """)
    for q, b in enumerate((24, 48)):
        k(f"ds_write_b128 v14, v[{b+2}:{b+5}] offset:{1024*q + 3*TCS}")
        for i in range(4): k(f"v_alignbit_b32 v{b+8+i}, v{b+i+1}, v{b+i}, 16")
        k(f"ds_write_b128 v14, v[{b+8}:{b+11}] offset:{1024*q}")
        for i in range(4): k(f"v_mov_b32 v{b+12+i}, v{b+i+1}")
        k(f"ds_write_b128 v14, v[{b+12}:{b+15}] offset:{1024*q + TCS}")
        for i in range(4): k(f"v_alignbit_b32 v{b+16+i}, v{b+i+2}, v{b+i+1}, 16")
        k(f"ds_write_b128 v14, v[{b+16}:{b+19}] offset:{1024*q + 2*TCS}")
    k("MANUAL")
    k.stamp('kout')

TA0 = 128; T20 = 200
CACC = 12; CU_ = 44; RING = 76; NRING = 8; WTMP = 108; DEC = 132

def conv(k, opts):
    tfr = [f"ds_read_b64_tr_b16 a[{TA0+4*m+2*h}:{TA0+4*m+2*h+1}], v{vTA} offset:{64*m - 8*h + 8}" for m in range(18) for h in range(2)]
    for idx, (base, mu, va) in enumerate([(B5A, 0, vT2), (B5A, 1, vT2), (B5A, 2, vT2), (B5B, 0, vT2), (B5B, 1, vT2), (B5B, 2, vT2)] + [(B7, mu, vT3) for mu in range(4)]):
        tfr += [f"ds_read_b64_tr_b16 a[{T20+4*idx+2*h}:{T20+4*idx+2*h+1}], v{va} offset:{2*(base-3) - 8 + 32*mu - 16*h}" for h in range(2)]
    k(f"""
    s_lshl_b32 s28, s21, 12
    s_add_u32 m0, s28, {OU}
    s_add_u32 s28, s28, {WS_ST}
    v_add_u32 v14, s28, v{vL16}
    s_barrier
    """)
    for q in range(4): k(f"global_load_lds_dwordx4 v{vUO}, {P(pWS)} offset:{1024*q} {SC} ; @w:U")
    k("s_add_u32 m0, m0, 16384")
    for q in range(4): k(f"global_load_lds_dwordx4 v14, {P(pWS)} offset:{1024*q} {SC} ; @w:U")
    k(f"""
    s_lshl_b32 s29, s20, 12
    s_add_u32 s29, s29, {WS_X1}
    s_add_u32 s34, s68, s29
    s_addc_u32 s35, s69, 0
    s_mul_i32 s27, s21, {CHS}
    v_mov_b32 v12, 0
    v_mov_b32 v13, 0
    v_mov_b32 v14, 0
    v_mov_b32 v15, 0
    v_min_u32 v41, 29, v1
    v_lshl_add_u32 v41, v41, 4, s27
    ds_write_b128 v41, v[12:15]
    v_min_u32 v41, 3, v1
    v_mul_u32_u24 v41, {UD}, v41
    v_add_u32 v41, s27, v41
    ds_write_b128 v41, v[12:15] offset:{O3 - 16}
    """)
    for t in tfr: k(t)
    k(f"""
    s_add_u32 s28, s21, 32
    s_waitcnt vmcnt(8)
    v_add_f32_dpp v40, v{NR+16}, v{NR+16} row_ror:4 row_mask:0xf bank_mask:0xf
    v_add_f32_dpp v40, v40, v40 row_ror:8 row_mask:0xf bank_mask:0xf
    v_cvt_pk_bf16_f32 v40, v40, v40
    v_lshlrev_b32 v40, 16, v40
    ds_bpermute_b32 v42, v{vBP}, v40
    ds_bpermute_b32 v43, v{vBP}, v40 offset:64
    v_readlane_b32 s70, v40, s28
    s_waitcnt lgkmcnt(0)
    v_add_f32 v43, 1.0, v43
    v_cvt_pk_bf16_f32 v43, v43, 0
    v_lshlrev_b32 v41, 16, v43
    """)
    k.stamp('ndata')
    HT = DEC
    for q in range(5):
        if q < 4:
            for x in range(8): k(f"v_dot2_f32_bf16 v{HT+8*q+x}, v{NR+4*q+(x>>1)}, v{41 if x & 1 else 43}, v42")
        if q > 0:
            for i in range(4): k(f"v_cvt_pk_bf16_f32 v{HT+32+4*(q-1)+i}, v{HT+8*(q-1)+2*i}, v{HT+8*(q-1)+2*i+1}")
            k(f"ds_write_b128 v{vWH}, {V4(HT+32+4*(q-1))} offset:{OH + 16*(q-1)}")
    k("s_waitcnt lgkmcnt(0)\ns_barrier")
    k.stamp('prep')
    started = set()
    def M(T, a, b):
        s = mf(CACC + 4 * T, a, b, T not in started); started.add(T); return s
    slots, items = [], []
    def item(e, kind, text, deps=()):
        items.append(dict(id=len(items), e=e, kind=kind, text=text, deps=list(deps))); return len(items) - 1
    ps = list(range(-7, 57))
    LOOK = NRING - 2
    rdtxt = lambda i: f"ds_read_b128 {V4(RING + 4*(i % NRING))}, v{vRD} offset:{64*(ps[i] + 7)}"
    ring, lastw, wwrite, ures = {}, {}, {}, {}
    DI = {'C': 0, 'A': 4, 'B': 10}
    ubar = None
    for i, p in enumerate(ps):
        if i + LOOK < len(ps): ring[i + LOOK] = item(len(slots), 'ring', rdtxt(i + LOOK))
        b = V4(RING + 4 * (i % NRING)); dep = [ring[i]] if i in ring else []
        for T in range(8):
            m = 8 * T - p
            if 0 <= m <= 16: slots.append((M(T, A4(TA0 + 4 * m), b), dep))
            if T >= 4 and m == 32: slots.append((M(T, A4(TA0 + 68), b), dep))
        if p % 8 == 0 and 0 <= p <= 40:
            T = p // 8
            for pr, off in enumerate((O3, O7)):
                if pr == 1 and T >= 4: continue
                t = WTMP + 8 * pr; o = WTMP + 16 + 4 * pr
                for wi in range(2): slots.append((mf(t + 4 * wi, V4(BAND + 4 + 8 * pr + 4 * wi), b, True), dep + lastw.get(pr, [])))
                e = len(slots) + 3
                c = [item(e, 'va', f"v_cvt_pk_bf16_f32 v{o+q}, v{t+2*q}, v{t+2*q+1}") for q in range(4)]
                s0 = item(e + 3, 'va', f"v_permlane16_swap_b32 v{o}, v{o+2}", c)
                s1 = item(e + 3, 'va', f"v_permlane16_swap_b32 v{o+1}, v{o+3}", c)
                w = item(e + 4, 'ds', f"ds_write_b128 v{vWU}, {V4(o)} offset:{off + 512*T}", [s0, s1])
                lastw[pr] = [w]; wwrite.setdefault(T, []).append(w)
            for kind in 'CAB':
                if kind == 'C' and T > 3: continue
                va = {'A': vDA, 'B': vDB, 'C': vD3}[kind]
                r = DEC + 4 * (DI[kind] + T)
                lastw[(kind, T)] = [item(len(slots) + 4, 'ds', f"ds_read_b64_tr_b16 v[{r+2*h}:{r+2*h+1}], v{va} offset:{512*T + 256*h}", wwrite[T]) for h in range(2)]
        if p == 20: ubar = item(len(slots), 'va', "s_barrier ; @r:U")
        if p in (22, 26, 30, 34, 38, 44, 48, 52):
            T = (22, 26, 30, 34, 38, 44, 48, 52).index(p)
            ures[T] = item(len(slots), 'ds', f"ds_read_b128 {V4(CU_ + 4*T)}, v{vRU} offset:{2048*T}", [ubar])
    f1 = item(len(slots) - 6, 'va', f"global_load_dword v{vF1D}, v{vF1A}, {P(pWS)} sc1")
    fm = {}; ndirect = len(slots)
    allw = [w for ws_ in wwrite.values() for w in ws_]
    for T in range(8):
        idr = RING + 4 * (T % 4)
        slots.append((f"v_mfma_f32_16x16x32_bf16 {V4(idr)}, {V4(BAND)}, {V4(CU_ + 4*T)}, 0", [ures[T]] + fm.get(T - 4, [])))
        e0 = len(slots) + 3
        for kind, b0, nmu, t0 in (('C', 4, 4, 6), ('A', 2, 3, 0), ('B', 2, 3, 3)):
            for mu in range(nmu):
                P_ = T - b0 - mu
                if P_ >= 0: slots.append((M(T, V4(DEC + 4 * (DI[kind] + P_)), A4(T20 + 4 * (t0 + mu))), lastw[(kind, P_)]))
        e = len(slots) + 3
        sr = (198, 92, 100)[T % 3]
        sd = [item(ndirect - (8 if T == 0 else 0), 'ds', f"ds_read_b128 {V4(sr+4*h)}, v{vSA} offset:{2048*T + 1024*h}", [ubar] + fm.get(T - 3, [])) for h in range(2)]
        f0 = [item(e0, 'va', f"v_fma_f32 v{idr+r}, v{idr+r}, v{sr+2*r}, v{sr+2*r+1}", sd) for r in range(4)]
        fm[T] = [item(e, 'va', f"v_fma_f32 v{CACC+4*T+r}, v{CACC+4*T+r}, s70, v{idr+r}", f0) for r in range(4)]
        o = WTMP + 4 * (T >> 1) + 2 * (T & 1)
        fm[('c', T)] = [item(e, 'va', f"v_cvt_pk_bf16_f32 v{o+h}, v{CACC+4*T+2*h}, v{CACC+4*T+2*h+1}", fm[T] + allw) for h in range(2)]
        if T & 1: item(e, 'va', f"global_store_dwordx4 v{vL16}, {V4(WTMP + 4*(T >> 1))}, s[34:35] offset:{1024*(T >> 1)} {SC}", fm[('c', T)] + fm[('c', T - 1)] + [f1])
    k("AUTO")
    for i in range(LOOK): k(rdtxt(i))
    weave(k, slots, items)
    k("MANUAL")
    k.stamp('convend')

def weave(k, slots, items):
    done = set()
    def emit(n):
        if n in done: return
        for d in items[n]['deps']: emit(d)
        done.add(n); k(items[n]['text'])
    def pick(kinds, i):
        for it in items:
            if it['id'] not in done and it['kind'] in kinds and it['e'] <= i and all(d in done for d in it['deps']): return it['id']
        return None
    for i, (m, deps) in enumerate(slots):
        for d in deps: emit(d)
        k(m)
        n = pick(('ring',), i)
        if n is None: n = pick(('ds',), i)
        if n is not None: emit(n)
        for _ in range(1 if n is not None else 2):
            n2 = pick(('va',), i)
            if n2 is not None: emit(n2)
    for it in items: emit(it['id'])

def side(k):
    k(f"s_waitcnt vmcnt(0)\ns_barrier\ns_cmp_eq_u32 s21, 0\ns_cbranch_scc0 LF_sd1")
    wait_flags(k, 'init2', vPD, vPA, 1, None)
    arrive(k, S1_OFF, vPD, vPT)
    k.stamp('arr1')
    k("LF_sd1:")
    k(f"""
    s_lshr_b32 s32, s20, 5
    s_lshl_b32 s32, s32, 5
    s_and_b32 s33, s20, 7
    s_lshl_b32 s33, s33, 2
    s_add_u32 s32, s32, s33
    s_bfe_u32 s33, s20, 0x20003
    s_add_u32 s32, s32, s33               ; f tile
    v_lshrrev_b32 v2, 1, v1
    v_mul_u32_u24 v2, 3072, v2
    v_and_b32 v3, 1, v1
    v_lshl_add_u32 v2, v3, 4, v2
    s_mul_i32 s33, s21, {160*3072}
    s_lshl_b32 s24, s32, 5
    s_add_u32 s33, s33, s24
    v_add_u32 v2, s33, v2
    s_lshr_b32 s24, s20, 1
    s_and_b32 s25, s20, 1                 ; half
    s_mul_i32 s33, s24, {32*1280}
    s_mul_i32 s26, s25, 640
    s_add_u32 s33, s33, s26
    s_mul_i32 s26, s21, 5120
    s_add_u32 m0, s26, {W2R}
    s_mul_i32 s27, s21, 320
    """)
    for i in range(5):
        k(f"""
        v_add_u32 v3, {64*i}, v1
        v_add_u32 v3, s27, v3
        v_mul_u32_u24 v4, 1639, v3
        v_lshrrev_b32 v4, 16, v4
        v_mul_u32_u24 v4, 640, v4
        v_lshl_add_u32 v3, v3, 4, v4
        v_add_u32 v3, s33, v3
        global_load_lds_dwordx4 v3, {P(pW2)}
        """)
        k(f"s_add_u32 m0, m0, 1024" if i < 4 else f"s_add_u32 m0, s26, {W1R}")
    for i in range(5):
        k(f"global_load_lds_dwordx4 v2, {P(pW1)}")
        if i < 4: k(f"s_add_u32 m0, m0, 1024\nv_add_u32 v2, {32*3072}, v2")
    k(f"""
    v_lshrrev_b32 v4, 4, v1               ; G
    v_bfe_u32 v2, v1, 2, 2                ; r
    v_and_b32 v9, 3, v1
    v_lshl_add_u32 v11, v4, 2, v2
    v_mul_u32_u24 v11, 640, v11
    v_lshl_add_u32 v11, v9, 3, v11
    s_mul_i32 s26, s21, 160
    s_add_u32 s26, s26, {W2R}
    v_add_u32 v11, s26, v11
    v_lshrrev_b32 v5, 1, v4
    v_and_b32 v6, 1, v4
    v_lshlrev_b32 v5, 4, v5
    v_lshl_add_u32 v5, v6, 2, v5          ; 16(G>>1) + 4(G&1)
    v_add_u32 v10, v5, v2
    v_lshlrev_b32 v10, 5, v10
    v_lshl_add_u32 v10, v9, 3, v10
    s_mul_i32 s26, s21, 5120
    s_add_u32 s26, s26, {W1R}
    v_add_u32 v10, s26, v10
    ; W2F destination: ((j*4 + KS/12)*12 + order(KS%12))*5 KB, j = 4*half + wave
    s_mul_hi_u32 s26, s24, 0x15555556
    s_mul_i32 s27, s26, 12
    s_sub_u32 s27, s24, s27
    s_lshl_b32 s27, s27, 2
    s_mov_b32 s28, {KORD & 0xffffffff}
    s_mov_b32 s29, {KORD >> 32}
    s_lshr_b64 s[28:29], s[28:29], s27
    s_and_b32 s27, s28, 15
    s_lshl_b32 s28, s25, 2
    s_add_u32 s28, s28, s21
    s_lshl_b32 s28, s28, 2
    s_add_u32 s26, s26, s28
    s_mul_i32 s26, s26, 12
    s_add_u32 s26, s26, s27
    s_mul_i32 s26, s26, 5120
    s_add_u32 s26, s26, {WS_W2F}
    v_add_u32 v13, s26, v{vL16}
    s_waitcnt vmcnt(0)
    s_barrier
    AUTO
    """)
    for dt in range(5):
        for h in range(2): k(f"ds_read_b64_tr_b16 v[{16+4*dt+2*h}:{17+4*dt+2*h}], v11 offset:{10240*h + 32*dt}")
    for i in range(5):
        for h in range(2): k(f"ds_read_b64_tr_b16 v[{40+4*i+2*h}:{41+4*i+2*h}], v10 offset:{1024*i + 256*h}")
    for dt in range(5):
        k(f"global_store_dwordx4 v13, {V4(16+4*dt)}, {P(pWS)} {SC}" + ("\nv_add_u32 v13, 1024, v13" if dt < 4 else ""))
    k("MANUAL")
    poll_addr(k, S1_OFF, vPA)
    k(f"""
    global_load_dword v{vPD}, v{vPA}, {P(pWS)} sc1
    s_mul_i32 s26, s21, 640
    s_add_u32 s26, s26, 7680
    v_lshl_add_u32 v14, v1, 2, s26
    v_and_b32 v15, 31, v1
    v_lshl_add_u32 v15, v15, 2, s26
    ; W1F destination
    s_mul_hi_u32 s26, s32, 0x55555556
    s_mul_i32 s27, s26, 3
    s_sub_u32 s27, s32, s27
    s_add_u32 s28, s27, 2
    s_cmp_ge_u32 s28, 3
    s_cselect_b32 s29, 3, 0
    s_sub_u32 s28, s28, s29
    s_bitcmp1_b32 s26, 0
    s_cselect_b32 s27, s28, s27           ; pass
    s_mul_i32 s26, s26, 60
    s_mul_i32 s28, s21, 10
    s_add_u32 s28, s28, s27
    s_mul_i32 s29, s21, 5
    s_add_u32 s29, s29, 40
    s_cmp_lt_u32 s27, 2
    s_cselect_b32 s28, s28, s29
    s_cselect_b32 s33, 2, 1
    s_lshl_b32 s33, s33, 10
    s_add_u32 s26, s26, s28
    s_lshl_b32 s26, s26, 10
    s_add_u32 s26, s26, {WS_W1F}
    v_add_u32 v13, s26, v{vL16}
    s_lshl_b32 s26, s21, 10
    s_add_u32 s26, s26, {VRED + 512}
    v_lshl_add_u32 v6, v1, 2, s26
    v_and_b32 v7, 31, v1
    v_lshl_add_u32 v2, v7, 1, s26
    v_lshl_add_u32 v7, v7, 2, s26
    v_lshl_add_u32 v9, v1, 1, s26
    v_lshl_add_u32 v3, v5, 1, s26
    v_lshl_add_u32 v5, v5, 2, s26
    v_mov_b32 v100, 0x3f803f80
    v_mov_b32 v101, 0x3f803f80
    v_mov_b32 v102, 0x3f803f80
    v_mov_b32 v103, 0x3f803f80
    s_waitcnt lgkmcnt(0)
    """)
    for i in range(5):
        for q in range(4): k(f"v_lshlrev_b32 v{136+8*i+2*q}, 16, v{40+4*i+q}\nv_and_b32 v{137+8*i+2*q}, 0xffff0000, v{40+4*i+q}")
    k("s_cmp_eq_u32 s21, 0\ns_cbranch_scc0 LF_sd2")
    wait_flags(k, 's1b', vPD, vPA, 16, 0)
    k("LF_sd2:\ns_barrier")
    k.stamp('s1')
    k("AUTO")
    for kq in range(4):
        for wh in range(2):
            for c in range(3):
                k(f"global_load_dword v{60 + 6*kq + 3*wh + c}, v{14 if c < 2 else 15}, {P(pWS)} offset:{2560*wh + 256*c} {SC}")
        if kq < 3: k("v_add_u32 v14, 15360, v14\nv_add_u32 v15, 15360, v15")
    for i in range(3): k(f"v_pk_add_f32 v[{60+2*i}:{61+2*i}], v[{60+2*i}:{61+2*i}], v[{66+2*i}:{67+2*i}]")
    for i in range(3): k(f"v_pk_add_f32 v[{72+2*i}:{73+2*i}], v[{72+2*i}:{73+2*i}], v[{78+2*i}:{79+2*i}]")
    for i in range(3): k(f"v_pk_add_f32 v[{60+2*i}:{61+2*i}], v[{60+2*i}:{61+2*i}], v[{72+2*i}:{73+2*i}]")
    for c in range(3): k(f"v_cvt_pk_bf16_f32 v{60+c}, v{63+c}, v{60+c}")
    for c in range(3): k(f"v_lshlrev_b32 v{63+c}, 16, v{60+c}\nds_write_b16_d16_hi v{9 if c < 2 else 2}, v{60+c} offset:{640 + 128*c}")
    for c in range(3): k(f"v_add_f32 v{63+c}, 1.0, v{63+c}")
    for c in range(3): k(f"v_cvt_pk_bf16_f32 v{63+c}, v{63+c}, v{63+c}")
    for c in range(3): k(f"v_lshlrev_b32 v{63+c}, 16, v{63+c}\nds_write_b32 v{6 if c < 2 else 7}, v{63+c} offset:{256*c}")
    k.stamp('ndata')
    for i in range(5):
        g = 180 + 12 * i
        for h in range(2): k(f"ds_read_b128 {V4(g+4*h)}, v5 offset:{128*i + 32*h}")
        for h in range(2): k(f"ds_read_b64 v[{g+8+2*h}:{g+9+2*h}], v3 offset:{640 + 64*i + 16*h}")
    for i in range(5):
        g = 180 + 12 * i; u = 136 + 8 * i; o4 = 16 + 4 * i
        for q in range(4): k(f"v_pk_mul_f32 v[{u+2*q}:{u+2*q+1}], v[{u+2*q}:{u+2*q+1}], v[{g+2*q}:{g+2*q+1}]")
        for q in range(4): k(f"v_cvt_pk_bf16_f32 v{o4+q}, v{u+2*q}, v{u+2*q+1}")
        k(f"global_store_dwordx4 v13, {V4(o4)}, {P(pWS)} {SC}" + ("\nv_add_u32 v13, s33, v13" if i < 4 else ""))
    for i in range(5):
        k(mf(112, V4(16 + 4 * i), V4(100), i == 0))
        k(mf(116, V4(40 + 4 * i), V4(188 + 12 * i), i == 0))
    k(f"""
    s_lshl_b32 s27, s21, 7
    s_add_u32 s27, s27, {VRED}
    v_lshl_add_u32 v13, v4, 4, s27
    ds_write_b128 v13, v[112:115]
    ds_write_b128 v13, v[116:119] offset:64
    MANUAL
    s_waitcnt lgkmcnt(0)
    s_barrier
    s_cmp_eq_u32 s21, 0
    s_cbranch_scc0 LF_sd3
    v_and_b32 v13, 31, v1
    v_lshlrev_b32 v13, 2, v13
    v_add_u32 v13, {VRED}, v13
    ds_read_b32 v16, v13
    ds_read_b32 v17, v13 offset:128
    ds_read_b32 v18, v13 offset:256
    ds_read_b32 v19, v13 offset:384
    v_bfe_u32 v14, v1, 4, 1
    v_mul_u32_u24 v14, 6144, v14
    v_and_b32 v15, 15, v1
    v_lshl_add_u32 v14, v15, 2, v14
    s_lshl_b32 s27, s32, 6
    s_add_u32 s27, s27, {WS_V12}
    v_add_u32 v14, s27, v14
    s_waitcnt lgkmcnt(0)
    v_add_f32 v16, v16, v17
    v_add_f32 v18, v18, v19
    v_add_f32 v16, v16, v18
    global_store_dword v14, v16, {P(pWS)} {SC}
    LF_sd3:
    s_waitcnt vmcnt(0)
    s_barrier
    s_cmp_eq_u32 s21, 0
    s_cbranch_scc0 LF_sd4
    s_lshl_b32 s27, s32, 2
    s_add_u32 s27, s27, {WS_SYNC + F1_OFF}
    v_mov_b32 v14, s27
    v_mov_b32 v15, 1
    s_mov_b64 exec, 1
    global_store_dword v14, v15, {P(pWS)} sc1
    s_mov_b64 exec, -1
    """)
    arrive(k, S2_OFF, vPD, vPT)
    k("LF_sd4:")
    k.stamp('convend')

ST = 16; V12 = 24; ACA, ACB = 48, 80; BF = 96; NBF = 6; TMP = 192; PKD = 208; SQ, SM, ONES = 224, 228, 232; XA = 236
AC2 = 24; HR = 104; NRK = 8; GB = 232; HA = 4
BORD = list(range(20 - NBF, 20)) + list(range(20 - NBF))
W2SLOT = list(range(40)) + [40 + ks for ks in BORD]

class Loader:
    def __init__(self): self.n1 = 0; self.n2 = 0
    def txt(self, n, slot, srd_, sreg):
        t = f"s_mov_b32 s{sreg}, {n * 1024}\n" if n % 4 == 0 else ""
        return t + f"buffer_load_dwordx4 a[{4*slot}:{4*slot+3}], v{vL16}, s[{srd_}:{srd_+3}], s{sreg} offen offset:{(n % 4) * 1024} {SC}"
    def w1(self): self.n1 += 1; return self.txt(self.n1 - 1, self.n1 - 1, 4, 28)
    def w2(self): self.n2 += 1; return self.txt(self.n2 - 1, W2SLOT[self.n2 - 1], 8, 29)
    def next(self, free):
        if self.n1 < 60: return self.w1()
        if self.n2 < min(free, 60): return self.w2()
        return None

def breads(ks, buf):
    b = BF + 16 * (buf % NBF)
    return [f"ds_read_b64_tr_b16 v[{b+4*s+2*h}:{b+4*s+2*h+1}], v{XA + s + (4 if ks >= 10 else 0)} offset:{4096*(ks % 10) + 1024*h}" for s in range(4) for h in range(2)]

def epilogue(acc, p, dst, dstep):
    v1, v2 = V12 + 8 * p, V12 + 8 * p + 4
    o = []
    for s in range(4):
        for h in range(2):
            a = acc + 4 * s + 2 * h
            o.append(f"v_pk_fma_f32 v[{a}:{a+1}], v[{v1+2*h}:{v1+2*h+1}], v[{ST+2*s}:{ST+2*s+1}], v[{a}:{a+1}] op_sel_hi:[1,0,1] neg_lo:[1,0,0] neg_hi:[1,0,0]")
    for s in range(4):
        for h in range(2):
            a = acc + 4 * s + 2 * h
            o.append(f"v_pk_fma_f32 v[{a}:{a+1}], v[{a}:{a+1}], v[{ST+2*s}:{ST+2*s+1}], v[{v2+2*h}:{v2+2*h+1}] op_sel:[0,1,0] op_sel_hi:[1,1,1]")
    o += [f"v_exp_f32 v{TMP+i}, v{acc+i}" for i in range(16)]
    o += [f"v_pk_add_f32 v[{TMP+2*i}:{TMP+2*i+1}], v[{TMP+2*i}:{TMP+2*i+1}], 1.0 op_sel_hi:[1,0]" for i in range(8)]
    o += [f"v_rcp_f32 v{TMP+i}, v{TMP+i}" for i in range(16)]
    o += [f"v_pk_mul_f32 v[{acc+2*i}:{acc+2*i+1}], v[{acc+2*i}:{acc+2*i+1}], v[{TMP+2*i}:{TMP+2*i+1}]" for i in range(8)]
    o += [f"v_cvt_pk_bf16_f32 v{dst + dstep*s + h}, v{acc+4*s+2*h}, v{acc+4*s+2*h+1}" for s in range(4) for h in range(2)]
    return o

def sprinkle(k, ops, extra):
    extra = [e for e in extra if e]
    step = len(ops) / (len(extra) + 1); nxt = step
    for i, o in enumerate(ops):
        k(o)
        while extra and i + 1 >= nxt: k(extra.pop(0)); nxt += step
    for e in extra: k(e)

def mlp(k, opts):
    PRE1 = int(opts.get('pre1', 4)); PB = int(opts.get('pb', 32))
    ld = Loader()
    wait_flags(k, 'f1', vF1D, vF1A, 1, 4)
    for i in range(PRE1): k(ld.w1())
    k(f"s_waitcnt vmcnt({PRE1})\ns_barrier\ns_cmp_lt_u32 s2, {NCONV}\ns_cbranch_scc0 LF_m1\ns_cmp_eq_u32 s21, 0\ns_cbranch_scc0 LF_m1")
    arrive(k, S2_OFF, 12, 13)
    k("LF_m1:")
    k.stamp('arr2')
    for kq in range(4):
        k(f"global_load_dword v{48+2*kq}, v{vVA+4}, {P(pWS)} {SC}\nglobal_load_dword v{49+2*kq}, v{vVA+5}, {P(pWS)} offset:256 {SC}")
        if kq < 3: k(f"v_add_u32 v{vVA+4}, 15360, v{vVA+4}\nv_add_u32 v{vVA+5}, 15360, v{vVA+5}")
    for i, (va, off) in enumerate(((0, 0), (2, 0), (0, 64), (2, 64), (1, 0), (3, 0))):
        k(f"global_load_dwordx4 {V4(V12 + 4*i)}, v{vVA+va}, {P(pWS)} offset:{off} {SC}")
    for i in range(PB - PRE1): k(ld.w1())
    k(f"""
    s_mul_i32 s26, s21, 320
    s_add_u32 s26, s26, {GBL}
    v_lshl_add_u32 v12, v1, 2, s26
    v_and_b32 v13, 15, v1
    v_lshl_add_u32 v13, v13, 2, s26
    s_waitcnt vmcnt({6 + PB - PRE1})
    v_pk_add_f32 v[48:49], v[48:49], v[50:51]
    v_pk_add_f32 v[52:53], v[52:53], v[54:55]
    v_pk_add_f32 v[48:49], v[48:49], v[52:53]
    v_cvt_pk_bf16_f32 v48, v48, v49
    v_and_b32 v49, 0xffff0000, v48
    v_lshlrev_b32 v48, 16, v48
    v_mul_f32 v48, {LN2 + 0x80000000}, v48
    v_mul_f32 v49, {LN2 + 0x80000000}, v49
    ds_write_b32 v12, v48
    ds_write_b32 v13, v49 offset:256
    v_lshrrev_b32 v14, 4, v1              ; G
    v_bfe_u32 v12, v1, 2, 2               ; r
    v_and_b32 v13, 1, v14
    v_lshl_add_u32 v15, v13, 2, v12
    v_lshrrev_b32 v13, 1, v14
    v_lshl_add_u32 v13, v13, 4, v15
    v_lshlrev_b32 v13, 7, v13
    v_and_b32 v12, 1, v1
    v_lshl_add_u32 v13, v12, 3, v13
    v_bfe_u32 v12, v1, 1, 1
    v_lshl_add_u32 v13, v12, 4, v13
    v_and_b32 v15, 6, v15
    """)
    for s in range(4):
        k(f"s_xor_b32 s26, s21, {s}\ns_lshl_b32 s{80+s}, s26, 10\ns_lshl_b32 s26, s26, 1\nv_xor_b32 v12, s26, v15\nv_lshl_add_u32 v{XA+s}, v12, 4, v13\nv_add_u32 v{XA+4+s}, 40960, v{XA+s}")
    k(f"""
    v_lshrrev_b32 v12, 3, v1
    v_and_b32 v13, 6, v12
    v_and_b32 v15, 7, v1
    v_xor_b32 v13, v13, v15
    v_lshlrev_b32 v12, 12, v12
    v_lshl_add_u32 v3, v13, 4, v12
    s_lshl_b32 s26, s21, 15
    s_lshl_b32 s27, s22, 7
    s_add_u32 s26, s26, s27
    s_add_u32 s26, s26, {WS_X1}
    v_add_u32 v3, s26, v3
    s_lshl_b32 s26, s21, 10
    s_mov_b32 m0, s26
    v_mov_b32 v{ONES}, 0x3f803f80
    v_mov_b32 v{ONES+1}, 0x3f803f80
    v_mov_b32 v{ONES+2}, 0x3f803f80
    v_mov_b32 v{ONES+3}, 0x3f803f80
    s_mul_i32 s26, s21, 3
    s_add_u32 s26, s26, 1
    s_lshr_b32 s26, s26, 1
    s_mul_i32 s27, s23, 6
    s_add_u32 s26, s26, s27
    s_lshl_b32 s26, s26, 12
    s_lshr_b32 s30, s21, 1
    s_mul_i32 s31, s30, 3
    s_add_u32 s31, s31, 1
    s_add_u32 s27, s27, s31
    s_lshl_b32 s27, s27, 12
    s_add_u32 s72, s80, s26
    s_add_u32 s73, s81, s26
    s_add_u32 s74, s82, s26
    s_add_u32 s75, s83, s26
    s_add_u32 s76, s80, s27
    s_add_u32 s77, s82, s27
    s_lshl_b32 s30, s30, 12
    s_add_u32 s30, s30, {RED}
    s_and_b32 s31, s21, 1
    s_lshl_b32 s31, s31, 3
    v_add_u32 v244, s30, v{vL16}
    v_add_u32 v245, s31, v244
    s_lshl_b32 s26, s22, 7
    s_add_u32 s26, s26, {WS_SYNC + F3_OFF}
    s_lshl_b32 s27, s23, 4
    s_lshl_b32 s30, s21, 2
    s_add_u32 s27, s27, s30
    s_add_u32 s27, s27, s26
    v_mov_b32 v10, s27
    s_lshl_b32 s30, s21, 5
    s_add_u32 s26, s26, s30
    v_and_b32 v11, 7, v1
    v_lshl_add_u32 v11, v11, 2, s26
    s_mul_i32 s78, s21, {12*4096}
    v_and_b32 v9, 15, v1
    v_lshlrev_b32 v9, 3, v9
    s_lshl_b32 s26, s21, 7
    s_add_u32 s26, s26, {STAT}
    v_add_u32 v9, s26, v9
    v_and_b32 v13, 3, v1
    v_cmp_eq_u32 s[84:85], 1, v13
    v_cmp_eq_u32 s[86:87], 2, v13
    v_cmp_eq_u32 s[88:89], 3, v13
    v_bfe_u32 v15, v1, 2, 2
    v_cmp_eq_u32 s[90:91], v14, v15
    """)
    for s in range(4): k(f"v_add_u32 v{HA+s}, s{80+s}, v{vL16}")
    k.stamp('w1iss')
    k("s_cmp_eq_u32 s21, 0\ns_cbranch_scc0 LF_m2")
    poll_addr(k, S2_OFF, 13)
    k(f"global_load_dword v12, v13, {P(pWS)} sc1")
    wait_flags(k, 's2', 12, 13, 16, 0)
    k("LF_m2:\ns_barrier")
    k.stamp('s2')
    k("AUTO")
    def xdma(i): return f"global_load_lds_dwordx4 v3, {P(pWS)} {SC} ; @w:X{i // 4}" + ("\ns_add_u32 m0, m0, 4096\nv_add_u32 v3, 0x20000, v3" if i < 19 else "")
    XI = int(opts.get('xi', 8))
    for i in range(XI): k(xdma(i))
    xq = [xdma(i) for i in range(XI, 20)]
    for p in range(3):
        for i in range(4): k(f"v_mul_f32 v{V12+8*p+4+i}, {LOG2E + 0x80000000}, v{V12+8*p+4+i}")
    k("s_barrier ; @r:X0")
    k.stamp('x0')
    for r in breads(0, 0) + breads(1, 1): k(r)
    for ks in range(20):
        if ks % 4 == 2 and ks < 18: k(f"s_barrier ; @r:X{ks // 4 + 1}")
        rs = breads(ks + 2, ks + 2) if ks + 2 < 20 else []
        lds = []
        for _ in range(3 if ks < 6 else 2):
            dx = 4 * ((20 - len(xq)) // 4) - 2 if xq else 99
            dw = ld.n1 // 2 if ld.n1 < 40 else 98
            t = xq.pop(0) if xq and dx <= dw else ld.next(2 * ks)
            if t: lds.append(t)
        b = BF + 16 * (ks % NBF)
        ms = [mf(ACA + 16 * p + 4 * s, A4(4 * (2 * ks + p)), V4(b + 4 * s), ks == 0) for s in range(4) for p in range(2)]
        ms = [mf(SQ, V4(b), V4(b), ks == 0), mf(SM, V4(ONES), V4(b), ks == 0)] + ms
        for i, m in enumerate(ms):
            k(m)
            if i >= 2 and rs: k(rs.pop(0))
            elif lds: k(lds.pop(0))
        for t in lds: k(t)
    k.stamp('passA')
    stat = f"""v_cndmask_b32 v13, v{SQ}, v{SQ+1}, s[84:85]
    v_mul_f32 v12, {f2u(1/640)}, v{SM}
    v_cndmask_b32 v13, v13, v{SQ+2}, s[86:87]
    v_cndmask_b32 v13, v13, v{SQ+3}, s[88:89]
    v_mul_f32 v13, {f2u(1/640)}, v13
    {rstd_chain(12, 13)}
    v_mul_f32 v13, {LOG2E + 0x80000000}, v13"""
    stat = [l.strip() for l in stat.split('\n')]
    stat += [f"s_mov_b64 exec, s[90:91]\nds_write_b64 v9, v[12:13]\ns_mov_b64 exec, -1", "s_waitcnt lgkmcnt(0)\ns_barrier"]
    stat += [f"v_xor_b32 v13, {128*s}, v9\nds_read_b64 v[{ST+2*s}:{ST+2*s+1}], v13" for s in range(4)]
    nb = 0
    def passB(n, rsq, fill):
        ks = BORD[n]; b = BF + 16 * ((14 + n) % NBF)
        t = [x for x in (ld.next(40 + n), ld.next(40 + n)) if x]
        for s in range(4):
            k(mf(ACB + 4 * s, A4(4 * (40 + ks)), V4(b + 4 * s), n == 0))
            for _ in range(2):
                if fill: k(fill.pop(0))
                elif rsq: k(rsq.pop(0))
            if t and s & 1: k(t.pop(0))
    for n in range(4): passB(n, [], stat)
    for t in stat: k(t)
    rq = breads(BORD[6], 14 + 6) + breads(BORD[7], 14 + 7)
    passB(4, rq, []); passB(5, rq, [])
    k.stamp('stats')
    NE = int(opts.get('ne', 4))
    sprinkle(k, epilogue(ACA, 0, PKD, 4) + epilogue(ACA + 16, 1, PKD + 2, 4), [ld.next(46) for _ in range(NE)])
    for s in range(4): k(f"buffer_store_dwordx4 {V4(PKD+4*s)}, v{vL16}, s[12:15], s{72+s} offen {SC} ; @w:HP")
    k.stamp('pairst')
    for n in range(6, 20): passB(n, breads(BORD[n + 2], 14 + n + 2) if n + 2 < 20 else [], [])
    k.stamp('passB')
    k(f"""
    v_mov_b32 v14, 1
    v_mov_b32 v15, 2
    s_mov_b64 exec, 1 ; @r:HP
    global_store_dword v10, v14, {P(pWS)} sc1
    s_mov_b64 exec, -1
    """)
    ep = epilogue(ACB, 2, PKD, 2)
    PP = int(opts.get('pp', 56))
    for t in ep[:PP]: k(t)
    k(f"global_load_dword v12, v11, {P(pWS)} sc1")
    for t in ep[PP:]: k(t)
    for s in range(4): k(f"v_add_u32 v13, s{80+s}, v245\nds_write_b64 v13, v[{PKD+2*s}:{PKD+2*s+1}]")
    k(f"""
    v_add_u32 v22, s80, v244
    v_add_u32 v23, s82, v244
    s_waitcnt lgkmcnt(0)
    s_barrier
    ds_read_b128 v[244:247], v22
    ds_read_b128 v[248:251], v23
    """)
    wait_flags(k, 'h1', 12, 11, 1, None)
    k.stamp('h1')
    def hload(i, slots=range(4)):
        r = HR + 16 * (i % NRK)
        return [(f"s_add_u32 s79, s78, {KSEQ[i] * 4096}\n" if s == slots[0] else "") + f"buffer_load_dwordx4 {V4(r+4*s)}, v{HA+s}, s[12:15], s79 offen {SC}" for s in slots]
    def g2(i, s): return [mf(AC2 + 20 * s + 4 * dt, A4(4 * W2SLOT[5 * i + dt]), V4(HR + 16 * (i % NRK) + 4 * s), i == 0) for dt in range(5)]
    AH = int(opts.get('ahead', 3)); AH0 = int(opts.get('ah0', 2))
    for i in range(AH0):
        for t in hload(i): k(t)
    k(f"buffer_store_dwordx4 v[244:247], v{vL16}, s[12:15], s76 offen {SC} ; @w:HS\nbuffer_store_dwordx4 v[248:251], v{vL16}, s[12:15], s77 offen {SC} ; @w:HS")
    k.stamp('singst')
    for i in range(AH0, AH):
        for t in hload(i): k(t)
    PI = int(opts.get('pi', 4))
    for i in range(8):
        q = hload(i + AH) if i + AH < 8 else []
        for _ in range(-(-(60 - ld.n2) // (8 - i))): q.append(ld.w2())
        assert ld.n2 >= min(60, 5 * i + 10)
        if i == AH0: k(f"s_mov_b64 exec, 1 ; @r:HS\nglobal_store_dword v10, v15, {P(pWS)} sc1\ns_mov_b64 exec, -1")
        if i == PI: q.append(f"global_load_dword v12, v11, {P(pWS)} sc1")
        if i == PI + 2:
            wait_flags(k, 'h2', 12, 11, 2, None)
            late = [hload(i2, [s])[0] for s in (1, 2, 3, 0) for i2 in range(8, 12)]
        if i >= PI + 2:
            nl = -(-len(late) // (8 - i)); q += late[:nl]; late = late[nl:]
        for s in range(4):
            for n, m in enumerate(g2(i, s)):
                k(m)
                if q and n in (0, 2, 4): k(q.pop(0))
        for t in q: k(t)
    k.stamp('g2a')
    tail_addr = f"""
    s_lshl_b32 s26, s21, 1
    v_lshrrev_b32 v14, 4, v1
    v_bfe_u32 v15, v1, 2, 2
    v_lshl_add_u32 v15, v14, 2, v15
    v_and_b32 v16, 6, v15
    v_xor_b32 v16, s26, v16
    v_bfe_u32 v17, v1, 1, 1
    v_add_u32 v16, v16, v17
    v_lshlrev_b32 v16, 4, v16
    v_lshl_add_u32 v16, v15, 7, v16
    v_and_b32 v17, 1, v1
    v_lshl_add_u32 v16, v17, 3, v16
    s_mul_i32 s26, s23, {80*128}
    v_add_u32 v16, s26, v16
    s_mul_i32 s74, s21, 15360
    s_add_u32 s74, s74, {RED}
    v_and_b32 v17, 15, v1
    v_mul_u32_u24 v17, 176, v17
    v_lshl_add_u32 v17, v14, 3, v17
    v_add_u32 v17, s74, v17
    v_add_u32 v18, s74, v{vL16}
    s_mul_i32 s26, s21, 320
    s_add_u32 s26, s26, {GBL}
    v_lshl_add_u32 v22, v14, 4, s26
    s_lshr_b32 s26, s22, 3
    s_lshl_b32 s26, s26, 9
    s_and_b32 s27, s22, 1
    s_lshl_b32 s27, s27, 7
    s_add_u32 s26, s26, s27
    s_bfe_u32 s27, s22, 0x20001
    s_lshl_b32 s27, s27, 2
    s_add_u32 s26, s26, s27
    s_lshl_b32 s27, s21, 5
    s_add_u32 s26, s26, s27
    s_mul_i32 s26, s26, 1280
    s_mul_i32 s27, s23, 160
    s_add_u32 s75, s26, s27
    """
    first = ""
    for s in range(1, 4): first += f"s_xor_b32 s26, s21, {s}\ns_mul_i32 s26, s26, 15360\ns_add_u32 s26, s26, {RED + 5120*(s-1)}\nv_add_u32 v{4+s}, s26, v{vL16}\n"
    for i in range(3):
        tail_addr += f"""
        v_add_u32 v12, {64*i}, v1
        v_mul_u32_u24 v13, 6554, v12
        v_lshrrev_b32 v13, 16, v13
        v_mul_u32_u24 v14, 10, v13
        v_sub_u32 v12, v12, v14
        v_mul_u32_u24 v14, 176, v13
        v_lshl_add_u32 v14, v12, 4, v14
        v_add_u32 v{19+i}, s74, v14
        v_bfe_u32 v14, v13, 2, 1
        v_lshlrev_b32 v14, 8, v14
        v_bfe_u32 v15, v13, 3, 1
        v_lshl_add_u32 v14, v15, 4, v14
        v_and_b32 v15, 3, v13
        v_add_u32 v14, v14, v15
        v_mul_u32_u24 v14, 1280, v14
        v_lshl_add_u32 v{9+i}, v12, 4, v14
        """
    tail_addr += "v_lshrrev_b32 v13, 5, v1\nv_lshlrev_b32 v13, 30, v13\nv_add_u32 v11, v11, v13\n"
    U = HR + 64
    tail_addr += "".join(f"ds_read_b64_tr_b16 v[{U+24+2*dt}:{U+25+2*dt}], v16 offset:{2048*dt}\n" for dt in range(5))
    tail_addr += "".join(f"ds_read_b128 {V4(GB+4*dt)}, v22 offset:{64*dt}\n" for dt in range(5))
    tail_addr += "".join(f"v_lshlrev_b32 v{U+4*dt+2*h}, 16, v{U+24+2*dt+h}\nv_and_b32 v{U+4*dt+2*h+1}, 0xffff0000, v{U+24+2*dt+h}\n" for dt in range(5) for h in range(2))
    fill = [l.strip() for l in (first + tail_addr).split('\n') if l.strip()]
    pend = []
    for s in (1, 2, 3, 0):
        for i in range(8, 12):
            for m in g2(i, s):
                k(m)
                if pend and pend[0][0] <= 0: k(pend.pop(0)[1])
                else:
                    for _ in range(2):
                        if fill: k(fill.pop(0))
                pend = [(a - 1, t) for a, t in pend]
        assert not pend
        if s: pend = [(3 + 3 * dt, f"ds_write_b128 v{4+s}, {V4(AC2+20*s+4*dt)} offset:{1024*dt}") for dt in range(5)]
    for t in fill: k(t)
    k.stamp('g2b')
    k("s_waitcnt lgkmcnt(0)\ns_barrier")
    R0 = 44
    for dt in range(5):
        for s in range(3): k(f"ds_read_b128 {V4(R0+20*s+4*dt)}, v18 offset:{5120*s + 1024*dt}")
    for dt in range(5):
        for h in range(2):
            q = 2 * dt + h
            k(f"v_pk_add_f32 v[{AC2+2*q}:{AC2+2*q+1}], v[{AC2+2*q}:{AC2+2*q+1}], v[{R0+2*q}:{R0+2*q+1}]")
            k(f"v_pk_add_f32 v[{R0+20+2*q}:{R0+21+2*q}], v[{R0+20+2*q}:{R0+21+2*q}], v[{R0+40+2*q}:{R0+41+2*q}]")
        for h in range(2):
            q = 2 * dt + h
            k(f"v_pk_add_f32 v[{AC2+2*q}:{AC2+2*q+1}], v[{AC2+2*q}:{AC2+2*q+1}], v[{R0+20+2*q}:{R0+21+2*q}]")
        for h in range(2):
            q = 2 * dt + h
            k(f"v_pk_fma_f32 v[{AC2+2*q}:{AC2+2*q+1}], v[{AC2+2*q}:{AC2+2*q+1}], v[{GB+2*q}:{GB+2*q+1}], v[{U+2*q}:{U+2*q+1}]")
        k(f"v_cvt_pk_bf16_f32 v{HR+2*dt}, v{AC2+4*dt}, v{AC2+4*dt+1}\nv_cvt_pk_bf16_f32 v{HR+2*dt+1}, v{AC2+4*dt+2}, v{AC2+4*dt+3}")
    for dt in range(5): k(f"ds_write_b64 v17, v[{HR+2*dt}:{HR+2*dt+1}] offset:{32*dt}")
    for i in range(3): k(f"ds_read_b128 {V4(R0+4*i)}, v{19+i}")
    for i in range(3): k(f"buffer_store_dwordx4 {V4(R0+4*i)}, v{9+i}, s[16:19], s75 offen")
    k("MANUAL")

def gen_F(opts={}):
    SPINS.clear()
    k = Asm('F')
    k(f"s_cmp_ge_u32 s2, {F_GRID}\ns_cbranch_scc1 LF_end")
    k.stamp('start')
    prologue(k, opts)
    mlp_setup(k, opts)
    conv_setup(k)
    kgen(k, opts)
    conv(k, opts)
    k("s_branch LF_mlp")
    conv_mod(k)
    k("LF_side:")
    side_a(k)
    side(k)
    lane_consts(k)
    mlp_setup(k, opts)
    k(f"global_load_dword v{vF1D}, v{vF1A}, {P(pWS)} sc1\ns_waitcnt vmcnt(0)")
    k("LF_mlp:")
    mlp(k, opts)
    k.end(0)
    k("LF_end:\ns_endpgm")
    for s in SPINS: k(s)
    k("LF_codeend:")
    return k.finish()

if __name__ == '__main__':
    print(gen_F())
```

```python
from asmlib import *
from layoutF import *

F_GRID = 256
NCONV = 160
LNS = 1600
STATP = 12800
MODB = 13312
KT = 33792; KTS = 18432
TAPS = 107520; TCS = 2112; TAPCH = 4 * TCS
STG = TAPS + 4 * TAPCH; STGS = 2112
F_LDS = 149760
OH = 480
UD = 3088
O3 = 4576 + 16; O5 = O3 + UD; O7 = O5 + UD; O9 = O7 + UD
CHS = (O9 + 2048 + 127) // 128 * 128 + 16
OU = 4 * CHS; OS = OU + 16384
W1R = 102400; W2R = W1R + 20480; VRED = W2R + 20480
RED = 81920; STAT = RED + 61440; GBL = STAT + 512
assert OS + 16384 <= TAPS and STG + 4 * STGS <= F_LDS and GBL + 1280 <= F_LDS
pU, pAR, pAI, pBR, pBI, pCR, pCI, pLD, pDS, pW1, pW2, pC, pWM, pOUT, pDBG, pWS = 36, 38, 40, 42, 44, 46, 48, 50, 52, 56, 58, 60, 62, 64, 66, 68
def P(p): return f"s[{p}:{p+1}]"
SC = 'sc1'
vL16 = 8
BAND = 210
vRD, vDA, vDB, vD3, vRU, vWU, vWH, vNO, vUO, vMO, vTA, vT2, vT3, vBP = range(230, 244)
vVA, vF1D, vF1A = 244, 250, 251
vSA = 252
vKW, vKR, vPD, vPA, vPT = 120, 121, 122, 123, 133
KACC = 104; SCT = 124; PRM = 134
CDAT = 156; LA = 158; MFR = 164; NR = 184

def srd(k, r, base, off, size):
    k(f"s_add_u32 s{r}, s{base}, {off}\ns_addc_u32 s{r+1}, s{base+1}, 0\ns_mov_b32 s{r+2}, {size}\ns_mov_b32 s{r+3}, 0x20000")
def mf(acc, a, b, first):
    c = '0' if first else f'v[{acc}:{acc+3}]'
    return f"v_mfma_f32_16x16x32_bf16 v[{acc}:{acc+3}], {a}, {b}, {c}"
V4 = lambda r: f"v[{r}:{r+3}]"
A4 = lambda r: f"a[{r}:{r+3}]"

SPINS = []
def wait_flags(k, tag, vdata, vaddr, target, nwait):
    if nwait is not None: k(f"s_waitcnt vmcnt({nwait})")
    k(f"v_cmp_gt_u32 vcc, {target}, v{vdata}\ns_cbranch_vccnz LF_spin{tag}\nLF_go{tag}:")
    SPINS.append(f"""
    LF_spin{tag}:
    s_mov_b32 s30, 40000
    LF_spinl{tag}:
    global_load_dword v{vdata}, v{vaddr}, {P(pDBG if tag.startswith('init') else pWS)} sc1
    s_waitcnt vmcnt(0)
    v_cmp_gt_u32 vcc, {target}, v{vdata}
    s_cbranch_vccz LF_go{tag}
    s_sleep 2
    s_sub_u32 s30, s30, 1
    s_cmp_lg_u32 s30, 0
    s_cbranch_scc1 LF_spinl{tag}
    s_branch LF_go{tag}
    """)

def arrive(k, off, va, vb):
    k(f"""
    s_bfe_u32 s26, s2, 0x40003
    s_lshl_b32 s26, s26, 7
    s_add_u32 s26, s26, {WS_SYNC + off}
    v_lshl_add_u32 v{va}, v1, 11, s26
    v_mov_b32 v{vb}, 1
    s_mov_b64 exec, 0xff
    global_atomic_add v{va}, v{vb}, {P(pWS)} sc1
    s_mov_b64 exec, -1
    """)

def poll_addr(k, off, va):
    lo = 0
    k(f"""
    s_and_b32 s26, s2, 7
    s_lshl_b32 s26, s26, 11
    s_add_u32 s26, s26, {WS_SYNC + off + 128 * lo}
    v_min_u32 v{va}, {15 - lo}, v1
    v_lshl_add_u32 v{va}, v{va}, 7, s26
    """)

def rstd_chain(m, q, r=None):
    return f"""v_fma_f32 v{q}, -v{m}, v{m}, v{q}
    v_max_f32 v{q}, 0, v{q}
    v_cvt_pk_bf16_f32 v{q}, v{q}, v{m}
    v_and_b32 v{m}, 0xffff0000, v{q}
    v_lshlrev_b32 v{q}, 16, v{q}
    v_add_f32 v{q}, {f2u(1e-5)}, v{q}
    v_cvt_pk_bf16_f32 v{q}, v{q}, v{q}
    v_lshlrev_b32 v{q}, 16, v{q}
    v_sqrt_f32 v{q}, v{q}
    v_cvt_pk_bf16_f32 v{q}, v{q}, v{q}
    v_lshlrev_b32 v{q}, 16, v{q}
    v_rcp_f32 v{r or q}, v{q}"""

JOBS = 12800
def prologue(k, opts):
    k(f"""
    s_load_dwordx16 s[36:51], s[0:1], 0
    s_load_dwordx2 s[52:53], s[0:1], 64
    s_load_dwordx4 s[60:63], s[0:1], 96
    s_load_dwordx2 s[68:69], s[0:1], 128
    s_load_dwordx4 s[56:59], s[0:1], 80
    s_load_dwordx4 s[64:67], s[0:1], 112
    v_lshrrev_b32 v1, 6, v0
    v_readfirstlane_b32 s21, v1
    v_and_b32 v1, 63, v0
    """)
    if int(opts.get('cpf', 1)):
        k(f"""
        s_getpc_b64 s[24:25]
        LF_pc:
        s_lshr_b32 s26, s2, 3
        s_lshl_b32 s26, s26, 2
        s_add_u32 s26, s26, s21
        s_mul_i32 s26, s26, 384
        s_min_u32 s26, s26, LF_codeend-LF_pc-384
        s_add_u32 s24, s24, s26
        s_addc_u32 s25, s25, 0
        v_min_u32 v2, 2, v1
        v_lshlrev_b32 v2, 7, v2
        v_mov_b32 v3, s25
        v_add_co_u32 v2, vcc, s24, v2
        v_addc_co_u32 v3, vcc, 0, v3, vcc
        global_load_dword v254, v[2:3], off ; @nocheck
        """)
    k(f"""
    v_lshlrev_b32 v{vL16}, 4, v1
    s_cmp_lt_u32 s2, {NCONV}
    s_cbranch_scc0 LF_side
    s_lshl_b32 s20, s2, 2
    s_add_u32 s20, s20, s21               ; channel d
    s_mul_i32 s29, s20, 384
    v_lshl_add_u32 v10, v1, 1, s29
    s_lshl_b32 s29, s20, 1
    v_mov_b32 v11, s29
    v_mov_b32 v{vPA}, 0
    """)
    for i in list(range(19)) + [20]: k(f"v_mov_b32 v{PRM+i}, 0")
    k(f"""
    s_mul_hi_u32 s25, s2, {(1 << 32) // 60 + 1}       ; kq
    s_mul_i32 s26, s25, 60
    s_sub_u32 s26, s2, s26
    s_mul_i32 s27, s25, 320
    v_lshl_add_u32 v6, v1, 2, s27
    v_and_b32 v7, 15, v1
    v_lshl_add_u32 v7, v7, 2, s27
    s_waitcnt lgkmcnt(0)
    global_load_dword v{CDAT}, v6, {P(pC)}
    global_load_dword v{CDAT+1}, v7, {P(pC)} offset:256
    global_load_short_d16_hi v{PRM+18}, v11, {P(pLD)}""")
    for p in range(3):
        for i, ptr in enumerate((pAR, pAI, pBR, pBI, pCR, pCI)):
            k(f"global_load_short_d16_hi v{PRM+6*p+i}, v10, {P(ptr)} offset:{128*p}")
    k(f"global_load_short_d16_hi v{PRM+20}, v11, {P(pDS)}")
    lane_consts(k)
    k(f"""
    v_lshrrev_b32 v4, 3, v1
    v_and_b32 v5, 7, v1
    v_mul_u32_u24 v3, 7680, v4
    v_lshl_add_u32 v3, v5, 4, v3
    s_mul_i32 s27, s25, 160
    s_mul_i32 s28, s21, 40
    s_add_u32 s28, s28, s27
    s_mul_i32 s28, s28, 7680
    s_lshl_b32 s29, s26, 7
    s_add_u32 s28, s28, s29
    v_add_u32 v3, s28, v3
    s_mul_i32 s29, s21, 5120
    s_add_u32 m0, s29, {MODB}
    s_mul_i32 s25, s25, 15360
    """)
    if not int(opts.get('modlate', 1)): mod_dma(k, 3)
    else: k(f"v_mov_b32 v{LA+5}, v3")
    k(f"""
    s_lshl_b32 s26, s26, 8
    s_add_u32 s25, s25, s26
    s_lshl_b32 s26, s21, 6
    s_add_u32 s25, s25, s26
    v_lshl_add_u32 v{LA}, v1, 2, s25
    v_lshl_add_u32 v7, v12, 3, v11
    v_lshlrev_b32 v7, 7, v7
    v_lshl_add_u32 v7, v10, 3, v7
    s_lshl_b32 s27, s21, 5
    s_add_u32 s27, s27, {MODB}
    v_add_u32 v{LA+1}, s27, v7
    s_mul_i32 s27, s21, 320
    v_lshl_add_u32 v{LA+2}, v1, 2, s27
    v_lshl_add_u32 v{LA+3}, v13, 2, s27
    v_lshl_add_u32 v{LA+4}, v12, 4, s27
    """)

def silu_frags(k, c0, vbp, dst=24):
    k(f"""
    s_mov_b32 s24, {LOG2E + 0x80000000}
    v_lshlrev_b32 v16, 16, v{c0}
    v_and_b32 v17, 0xffff0000, v{c0}
    v_lshlrev_b32 v18, 16, v{c0+1}
    v_and_b32 v19, 0xffff0000, v{c0+1}
    """)
    for i in range(4): k(f"v_mul_f32 v{20+i}, s24, v{16+i}")
    for i in range(4): k(f"v_exp_f32 v{20+i}, v{20+i}")
    for i in range(4): k(f"v_add_f32 v{20+i}, 1.0, v{20+i}")
    for i in range(4): k(f"v_rcp_f32 v{20+i}, v{20+i}")
    for i in range(4): k(f"v_mul_f32 v{16+i}, v{16+i}, v{20+i}")
    k(f"v_cvt_pk_bf16_f32 v16, v16, v17\nv_cvt_pk_bf16_f32 v17, v18, v19")
    k(f"ds_write_b32 v{vbp}, v16\nds_write_b32 v{vbp+1}, v17 offset:256")
    for ks in range(5): k(f"ds_read_b128 {V4(dst+4*ks)}, v{vbp+2} offset:{64*ks}")

def conv_mod(k):
    k("LF_cmod:\ns_waitcnt vmcnt(0) lgkmcnt(0)\ns_barrier\nAUTO")
    for ks in range(5):
        for h in range(2): k(f"ds_read_b64_tr_b16 v[{60+4*ks+2*h}:{61+4*ks+2*h}], v{LA+1} offset:{4096*ks + 512*h}")
    for ks in range(5): k(mf(16, V4(MFR + 4 * ks), V4(60 + 4 * ks), ks == 0))
    k(f"""MANUAL
    s_mov_b64 exec, 0xffff
    global_store_dword v{LA}, v16, {P(pWS)} {SC}
    s_mov_b64 exec, -1
    global_load_dword v{vPD}, v{vPA}, {P(pDBG)} sc1 ; @nocheck
    """)
    k.stamp('modst')
    k("s_branch LF_kpass")

def mod_dma(k, v):
    for i in range(5):
        k(f"global_load_lds_dwordx4 v{v}, {P(pWM)}")
        if i < 4: k(f"s_add_u32 m0, m0, 1024\nv_add_u32 v{v}, {8*7680}, v{v}")

def lane_consts(k):
    k("""
    v_bfe_u32 v11, v1, 2, 2               ; r
    v_lshrrev_b32 v12, 4, v1              ; G
    v_and_b32 v10, 3, v1                  ; cc / j
    v_and_b32 v13, 15, v1                 ; a / i
    """)

def side_mod(k):
    k(f"""
    s_mul_hi_u32 s25, s2, {(1 << 32) // 60 + 1}       ; kq
    s_mul_i32 s26, s25, 60
    s_sub_u32 s26, s2, s26
    s_mul_i32 s27, s25, 320
    v_lshl_add_u32 v15, v1, 2, s27
    v_lshl_add_u32 v16, v13, 2, s27
    global_load_dword v150, v15, {P(pC)}
    global_load_dword v151, v16, {P(pC)} offset:256
    v_lshrrev_b32 v4, 3, v1
    v_and_b32 v5, 7, v1
    v_mul_u32_u24 v4, 7680, v4
    v_lshl_add_u32 v4, v5, 4, v4
    s_mul_i32 s27, s25, {160*7680}
    s_lshl_b32 s28, s26, 7
    s_add_u32 s27, s27, s28
    v_add_u32 v14, s27, v4
    s_mov_b32 m0, s33
    s_mul_i32 s25, s25, 15360
    s_lshl_b32 s26, s26, 8
    s_add_u32 s25, s25, s26
    v_lshl_add_u32 v152, v13, 2, s25
    """)
    for i in range(20):
        k(f"global_load_lds_dwordx4 v14, {P(pWM)}")
        if i < 19: k(f"s_add_u32 m0, m0, 1024\nv_add_u32 v14, {8*7680}, v14")
    k(f"""
    v_lshl_add_u32 v5, v12, 3, v11
    v_lshlrev_b32 v5, 7, v5
    v_lshl_add_u32 v5, v10, 3, v5
    v_add_u32 v5, s33, v5
    s_add_u32 s27, s33, 20480
    v_lshl_add_u32 v158, v1, 2, s27
    v_lshl_add_u32 v159, v13, 2, s27
    v_lshl_add_u32 v160, v12, 4, s27
    s_waitcnt vmcnt(20)
    """)
    silu_frags(k, 150, 158)
    k("AUTO")
    for ks in range(5):
        k(f"s_waitcnt vmcnt({16 - 4*ks})")
        for ct in range(4):
            for h in range(2): k(f"ds_read_b64_tr_b16 v[{60+16*(ks&1)+4*ct+2*h}:{61+16*(ks&1)+4*ct+2*h}], v5 offset:{4096*ks + 512*h + 32*ct}")
        for ct in range(4): k(mf(44 + 4 * ct, V4(24 + 4 * ks), V4(60 + 16 * (ks & 1) + 4 * ct), ks == 0))
    k("MANUAL\ns_mov_b64 exec, 0xffff")
    for ct in range(4): k(f"global_store_dword v152, v{44+4*ct}, {P(pWS)} offset:{64*ct} {SC}")
    k("s_mov_b64 exec, -1")

def side_a(k):
    UD_ = 100
    k(f"""
    s_sub_u32 s20, s2, {NCONV}
    s_mul_i32 s33, s21, {2*JOBS}
    s_add_u32 s34, s33, {JOBS}
    """)
    lane_consts(k)
    k(f"""
    s_mul_i32 s31, s21, 96
    s_add_u32 s31, s31, s20
    s_cmp_lt_u32 s31, 256
    s_waitcnt lgkmcnt(0)
    s_cbranch_scc0 LF_sa_mod
    v_lshrrev_b32 v2, 3, v1
    v_and_b32 v3, 7, v1
    v_lshlrev_b32 v3, 4, v3
    v_mul_u32_u24 v7, 1280, v2
    v_add_u32 v7, v7, v3
    s_mul_i32 s24, s31, 10240
    v_add_u32 v7, s24, v7
    """)
    for q in range(10): k(f"global_load_dwordx4 {V4(UD_+4*q)}, v7, {P(pU)} offset:{128*q}")
    k(f"""
    v_mul_u32_u24 v7, {LNS - 256}, v2
    v_add3_u32 v7, v7, v3, s33
    v_mul_u32_u24 v9, {LNS - 256}, v11
    v_lshl_add_u32 v9, v12, 5, v9
    v_lshl_add_u32 v9, v10, 3, v9
    v_add_u32 v9, s33, v9
    v_lshrrev_b32 v2, 2, v1
    v_lshlrev_b32 v2, 14, v2
    v_lshl_add_u32 v2, v10, 4, v2
    s_lshl_b32 s24, s31, 6
    s_add_u32 s24, s24, {WS_NT}
    v_add_u32 v2, s24, v2
    s_lshr_b32 s24, s31, 5
    s_lshl_b32 s24, s24, 11
    s_bfe_u32 s25, s31, 0x40001
    s_lshl_b32 s25, s25, 4
    s_add_u32 s24, s24, s25
    s_and_b32 s25, s31, 1
    s_lshl_b32 s25, s25, 9
    s_add_u32 s24, s24, s25
    s_add_u32 s24, s24, {WS_ST}
    v_lshrrev_b32 v3, 5, v1
    v_lshlrev_b32 v3, 8, v3
    v_bfe_u32 v14, v1, 4, 1
    v_lshl_add_u32 v3, v14, 10, v3
    v_bfe_u32 v14, v1, 3, 1
    v_lshl_add_u32 v3, v14, 3, v3
    v_add_u32 v3, s24, v3
    s_mov_b32 s24, 0x3f803f80
    v_mov_b32 v140, 0
    v_mov_b32 v141, 0
    v_mov_b32 v142, 0
    v_mov_b32 v143, 0
    """)
    for q in range(10):
        k(f"s_waitcnt vmcnt({9 - q})")
        if q == 0: k.stamp('u0')
        k(f"ds_write_b128 v7, {V4(UD_+4*q)} offset:{128*q}")
        for i in range(4):
            r = UD_ + 4 * q + i
            k(f"v_dot2c_f32_bf16 v{140 + 2*(i&1)}, s24, v{r}\nv_dot2c_f32_bf16 v{141 + 2*(i&1)}, v{r}, v{r}")
    k(f"""
    v_pk_add_f32 v[140:141], v[140:141], v[142:143]
    v_add_f32_dpp v140, v140, v140 quad_perm:[1,0,3,2] row_mask:0xf bank_mask:0xf
    v_add_f32_dpp v141, v141, v141 quad_perm:[1,0,3,2] row_mask:0xf bank_mask:0xf
    v_add_f32_dpp v140, v140, v140 quad_perm:[2,3,0,1] row_mask:0xf bank_mask:0xf
    v_add_f32_dpp v141, v141, v141 quad_perm:[2,3,0,1] row_mask:0xf bank_mask:0xf
    v_add_f32_dpp v140, v140, v140 row_half_mirror row_mask:0xf bank_mask:0xf
    v_add_f32_dpp v141, v141, v141 row_half_mirror row_mask:0xf bank_mask:0xf
    v_mul_f32 v140, {f2u(1/640)}, v140
    v_mul_f32 v141, {f2u(1/640)}, v141
    AUTO
    """)
    for ch in range(10):
        k(f"ds_read_b64_tr_b16 v[{UD_+4*ch}:{UD_+4*ch+1}], v9 offset:{128*ch}\nds_read_b64_tr_b16 v[{UD_+4*ch+2}:{UD_+4*ch+3}], v9 offset:{128*ch + 4*(LNS - 256)}")
        if ch == 4: k(rstd_chain(140, 141, 144) + f"\nv_mov_b32 v142, v141\nv_mov_b32 v143, v140\nv_mul_f32 v140, v140, v144\ns_mov_b32 exec_lo, 0x01010101\ns_mov_b32 exec_hi, 0x01010101\nglobal_store_dwordx2 v3, v[142:143], {P(pWS)} {SC}\ns_mov_b64 exec, -1")
    for r in range(8): k(f"v_readlane_b32 s{70+r}, v144, {8*r}")
    for r in range(8): k(f"v_readlane_b32 s{78+r}, v140, {8*r}")
    for r in range(8): k(f"v_mov_b32 v{16+r}, s{78+r}")
    for ch in range(10):
        b = UD_ + 4 * ch; u = 24 + 12 * (ch % 3)
        for i in range(4): k(f"v_lshlrev_b32 v{u+2*i}, 16, v{b+i}\nv_and_b32 v{u+2*i+1}, 0xffff0000, v{b+i}")
        for i in range(4): k(f"v_pk_fma_f32 v[{u+2*i}:{u+2*i+1}], v[{u+2*i}:{u+2*i+1}], s[{70+2*i}:{71+2*i}], v[{16+2*i}:{17+2*i}] neg_lo:[0,0,1] neg_hi:[0,0,1]")
        for i in range(4): k(f"v_cvt_pk_bf16_f32 v{u+8+i}, v{u+2*i}, v{u+2*i+1}")
        k(f"global_store_dwordx4 v2, {V4(u+8)}, {P(pWS)} {SC}")
        if ch < 9: k("v_add_u32 v2, 0x40000, v2")
    k("MANUAL")
    k.stamp('lnst')
    k(f"""
    s_branch LF_sa_end
    LF_sa_mod:
    s_cmp_lt_u32 s20, 80
    s_cbranch_scc0 LF_init
    s_cmp_eq_u32 s21, 3
    s_cbranch_scc0 LF_sa_end
    """)
    side_mod(k)
    k("LF_sa_end:")
    k(f"v_mov_b32 v{vPA}, 0\nglobal_load_dword v{vPD}, v{vPA}, {P(pDBG)} sc1 ; @nocheck")
    k.stamp('modst')
    SPINS.append(f"""
    LF_init:
    s_sub_u32 s24, s20, 80
    s_lshl_b32 s24, s24, 1
    s_add_u32 s24, s24, s21
    s_sub_u32 s24, s24, 2
    s_lshl_b32 s24, s24, 11
    s_add_u32 s24, s24, {WS_SYNC}
    v_add_u32 v30, s24, v{vL16}
    v_mov_b32 v26, 0
    v_mov_b32 v27, 0
    v_mov_b32 v28, 0
    v_mov_b32 v29, 0
    global_store_dwordx4 v30, v[26:29], {P(pWS)} sc1
    global_store_dwordx4 v30, v[26:29], {P(pWS)} offset:1024 sc1
    v_mov_b32 v31, 1
    s_waitcnt vmcnt(0)
    s_mov_b64 exec, 1
    global_atomic_add v26, v31, {P(pDBG)} sc1
    s_mov_b64 exec, -1
    s_branch LF_sa_end
    """)

def mlp_setup(k, opts):
    if opts.get('arr', '8x4') == '8x4':
        k("""
        s_and_b32 s24, s2, 7
        s_lshr_b32 s25, s2, 3
        s_lshr_b32 s22, s24, 1
        s_lshl_b32 s22, s22, 3
        s_lshr_b32 s26, s25, 2
        s_add_u32 s22, s22, s26               ; rb
        s_and_b32 s23, s24, 1
        s_lshl_b32 s23, s23, 2
        s_and_b32 s26, s25, 3
        s_add_u32 s23, s23, s26               ; j
        """)
    else:
        k("""
        s_and_b32 s22, s2, 7
        s_lshl_b32 s22, s22, 2
        s_lshr_b32 s26, s2, 6
        s_add_u32 s22, s22, s26               ; rb
        s_bfe_u32 s23, s2, 0x30003            ; j
        """)
    k(f"""
    s_mul_i32 s26, s23, 12
    s_mul_i32 s25, s21, 3
    s_add_u32 s25, s26, s25
    s_lshl_b32 s26, s25, 7
    s_add_u32 s26, s26, {WS_SYNC + F1_OFF}
    v_min_u32 v{vF1A}, 2, v1
    v_lshl_add_u32 v{vF1A}, v{vF1A}, 7, s26
    s_lshl_b32 s24, s23, 2
    s_add_u32 s24, s24, s21
    s_mul_i32 s24, s24, 61440
    s_add_u32 s26, s24, {WS_W1F}
    """)
    srd(k, 4, pWS, 's26', 61440)
    k(f"s_add_u32 s26, s24, {WS_W2F}")
    srd(k, 8, pWS, 's26', 61440)
    k(f"s_mul_i32 s26, s22, 196608\ns_add_u32 s26, s26, {WS_H}")
    srd(k, 12, pWS, 's26', 196608)
    srd(k, 16, pOUT, 0, L * D * 2)
    k(f"""
    s_and_b32 s26, s21, 1
    s_add_u32 s25, s25, s26
    s_lshl_b32 s25, s25, 6
    s_add_u32 s25, s25, {WS_V12}
    v_lshl_add_u32 v{vVA}, v12, 4, s25
    s_mul_i32 s26, s26, 192
    s_sub_u32 s26, 128, s26
    v_add_u32 v{vVA+1}, s26, v{vVA}
    v_add_u32 v{vVA+2}, 6144, v{vVA}
    v_add_u32 v{vVA+3}, 6144, v{vVA+1}
    s_mul_i32 s26, s23, 320
    s_add_u32 s26, s26, 12800
    v_lshl_add_u32 v{vVA+4}, v1, 2, s26
    v_lshl_add_u32 v{vVA+5}, v13, 2, s26
    """)

def conv_setup(k):
    k(f"""
    s_mul_i32 s26, s21, {TAPCH}
    s_add_u32 s26, s26, {TAPS}
    v_sub_u32 v14, 3, v11
    v_mul_u32_u24 v14, {TCS}, v14
    v_lshl_add_u32 v14, v10, 3, v14
    v_add_u32 v14, s26, v14
    v_lshlrev_b32 v15, 4, v12
    v_sub_u32 v15, 48, v15
    v_add_u32 v{vTA}, v14, v15
    v_and_b32 v15, 1, v12                 ; G&1
    v_lshrrev_b32 v9, 1, v12              ; G>>1
    v_lshlrev_b32 v16, 3, v15
    v_sub_u32 v14, v14, v16
    v_add_u32 v14, 8, v14
    v_mul_u32_u24 v16, {2*(B3A - B5A)}, v9
    v_add_u32 v{vT2}, v14, v16
    v_mul_u32_u24 v16, {2*(B9 - B7)}, v9
    v_add_u32 v{vT3}, v14, v16
    s_mul_i32 s27, s21, {CHS}
    v_lshlrev_b32 v14, 5, v13
    v_add_u32 v14, s27, v14
    v_lshl_add_u32 v{vRD}, v12, 4, v14    ; h frag: 32a + 16G
    v_lshl_add_u32 v14, v9, 4, v14
    v_mul_u32_u24 v16, {UD}, v15
    v_add_u32 v{vWU}, v14, v16
    v_lshlrev_b32 v14, 7, v15
    v_lshl_add_u32 v14, v11, 5, v14
    v_lshl_add_u32 v14, v10, 3, v14
    v_add_u32 v14, s27, v14               ; 128(G&1) + 32r + 8cc
    v_mul_u32_u24 v16, {UD - 16}, v9
    v_sub_u32 v17, v14, v16
    v_add_u32 v{vDA}, {O5 - 16}, v17
    v_add_u32 v17, v14, v16
    v_add_u32 v{vD3}, {O7}, v17
    v_lshlrev_b32 v16, 5, v9
    v_sub_u32 v16, 16, v16
    v_add_u32 v{vDB}, v{vDA}, v16
    v_bfe_u32 v16, v1, 1, 2
    v_xor_b32 v16, s21, v16
    v_lshlrev_b32 v16, 4, v16
    v_lshl_add_u32 v16, v13, 7, v16
    v_lshl_add_u32 v16, v15, 6, v16
    v_add_u32 v{vRU}, {OU}, v16
    v_mul_u32_u24 v16, {CHS}, v10
    v_lshrrev_b32 v14, 2, v1
    s_lshl_b32 s28, s21, 4
    v_add_u32 v14, s28, v14               ; segment 0..63
    v_lshl_add_u32 v{vWH}, v14, 6, v16
    v_lshlrev_b32 v14, 8, v14
    v_lshl_add_u32 v14, v10, 4, v14
    s_lshl_b32 s29, s2, 14
    s_add_u32 s28, s29, {WS_NT}
    v_add_u32 v{vNO}, s28, v14
    v_xor_b32 v14, v10, v12
    v_and_b32 v16, 0x3c, v1
    v_lshlrev_b32 v16, 4, v16
    v_lshl_add_u32 v14, v14, 4, v16
    s_lshl_b32 s28, s21, 12
    s_add_u32 s29, s29, s28
    s_add_u32 s28, s29, {WS_NT}
    v_add_u32 v{vUO}, s28, v14
    v_min_u32 v14, 2, v12
    v_mul_u32_u24 v14, 2560, v14
    v_mul_u32_u24 v16, 15360, v11
    v_add_u32 v14, v14, v16
    v_lshl_add_u32 v14, v10, 2, v14
    s_lshl_b32 s29, s2, 4
    v_add_u32 v{vMO}, s29, v14
    v_lshlrev_b32 v{vBP}, 2, v10
    v_add_u32 v{vSA}, {OS}, v{vL16}
    v_lshlrev_b32 v14, 3, v12
    v_sub_u32 v14, v14, v13
    v_add_u32 v14, 15, v14                ; 8G - i + 15
    v_cmp_gt_u32 vcc, 32, v14
    """)
    for fi, (lo, hi_) in enumerate(((0, 0), (11, 13), (6, 10), (5, 11), (4, 12))):
        Wv = ((1 << (hi_ - lo + 1)) - 1) << (lo + 15)
        k(f"v_mov_b32 v16, {Wv}\nv_lshrrev_b32 v16, v14, v16\nv_cndmask_b32 v16, 0, v16, vcc")
        for q in range(4):
            k(f"v_bfe_u32 v17, v16, {2*q}, 1\nv_bfe_u32 v18, v16, {2*q+1}, 1\nv_lshl_or_b32 v17, v18, 16, v17\nv_mul_u32_u24 v{BAND+4*fi+q}, 0x3f80, v17")
    DUM = 2 * 1010
    S = SCT
    k(f"""
    s_mul_i32 s26, s21, {KTS}
    s_add_u32 s26, s26, {KT}
    v_mul_u32_u24 v14, 144, v1
    v_add_u32 v{vKW}, s26, v14
    v_lshrrev_b32 v15, 5, v1              ; hi
    v_lshl_add_u32 v14, v11, 1, v15
    v_mul_u32_u24 v14, 288, v14
    v_bfe_u32 v16, v1, 4, 1
    v_lshl_add_u32 v14, v16, 5, v14
    v_lshl_add_u32 v14, v10, 3, v14
    v_add_u32 v{vKR}, s26, v14
    s_mul_i32 s26, s21, {STGS}
    s_add_u32 s26, s26, {STG}
    v_mov_b32 v24, 0
    v_mov_b32 v25, 0
    v_mov_b32 v26, 0
    v_mov_b32 v27, 0
    v_add_u32 v{S+8}, s26, v{vL16}
    ds_write_b128 v{S+8}, v[24:27]
    ds_write_b128 v{S+8}, v[24:27] offset:1024
    v_mov_b32 v28, s26
    ds_write_b128 v28, v[24:27] offset:2048
    v_and_b32 v34, 1, v1                  ; odd
    v_bfe_u32 v35, v1, 1, 4               ; kappa'
    v_or_b32 v36, v34, v15
    v_mul_u32_u24 v37, 48, v34
    v_mul_u32_u24 v38, 96, v15
    v_add3_u32 v36, v36, v37, v38
    v_add_u32 v36, v36, v35
    v_lshl_add_u32 v{S}, v36, 1, s26
    v_add_u32 v39, {DUM}, v28
    v_add_u32 v36, {2*B5A}, v{S}
    v_cmp_eq_u32 vcc, 0, v35
    v_mul_u32_u24 v37, {B9 - 1 - B7}, v34
    v_lshl_add_u32 v38, v15, 4, v35
    v_cndmask_b32 v{S+1}, v36, v39, vcc
    v_sub_u32 v38, v38, v37
    v_add_u32 v38, {B9}, v38
    v_lshl_add_u32 v{S+2}, v38, 1, s26
    v_add_u32 v37, {2*(BC + 4)}, v28
    v_cmp_eq_u32 vcc, 0, v1
    v_add_u32 v40, {2*(BC + 5)}, v28
    v_add_u32 v41, {2*(B9 + 64)}, v28
    v_cndmask_b32 v{S+3}, v{S+2}, v37, vcc
    v_cndmask_b32 v{S+4}, v39, v40, vcc
    v_cndmask_b32 v{S+5}, v39, v41, vcc
    v_add_u32 v37, {2*(B5A + 32)}, v28
    v_cmp_eq_u32 vcc, 32, v1
    v_and_b32 v38, 31, v1
    v_lshlrev_b32 v38, 4, v38
    v_cndmask_b32 v{S+5}, v{S+5}, v37, vcc
    v_lshl_add_u32 v38, v15, 3, v38
    v_add_u32 v{S+6}, s26, v38            ; 16n + 8hi
    v_and_b32 v37, 30, v1
    v_cmp_eq_u32 vcc, 0, v37
    v_add_u32 v37, {2*1016 - 2*(BA+1+512)}, v28
    v_cndmask_b32 v{S+7}, v37, v{S+6}, vcc
    """)
    for i in range(16): k(f"v_mov_b32 v{KACC+i}, 0")

def cmul(k, z, a, b, t):
    k(f"v_pk_mul_f32 v[{t}:{t+1}], v[{a}:{a+1}], v[{b}:{b+1}] op_sel_hi:[1,0]")
    return f"v_pk_fma_f32 v[{z}:{z+1}], v[{a}:{a+1}], v[{b}:{b+1}], v[{t}:{t+1}] op_sel:[1,1,0] op_sel_hi:[0,1,1] neg_lo:[1,0,0]"
def cmuls(k, lst, tmp):
    for s in [cmul(k, z, a, b, tmp + 2 * i) for i, (z, a, b) in enumerate(lst)]: k(s)

def kgen(k, opts):
    AR, BR, CR, DT, DS = PRM, PRM + 2, PRM + 4, PRM + 18, PRM + 20
    TMP, LR, ACC = 14, 22, KACC
    ML = int(opts.get('modlate', 1))
    k(f"""
    s_mov_b32 s86, {LOG2E}
    s_mov_b32 s87, {INV2PI}
    s_mov_b32 s3, 0
    s_waitcnt vmcnt({20 if ML else 25})
    """)
    silu_frags(k, CDAT, LA + 2, MFR)
    k(f"s_waitcnt vmcnt({0 if ML else 5})")
    if ML: mod_dma(k, LA + 5)
    k(f"""
    v_mul_f32 v14, s86, v{DT}
    v_fma_f32 v15, v{DT}, s86, -v14
    v_fmac_f32 v15, {LOG2E_LO}, v{DT}
    v_exp_f32 v14, v14
    v_mul_f32 v15, {LN2}, v15
    v_fmac_f32 v14, v14, v15
    v_cmp_eq_u32 vcc, 0, v1
    v_cvt_pk_bf16_f32 v14, v14, v14
    v_lshlrev_b32 v{DT}, 16, v14
    v_cndmask_b32 v{ACC}, 0, v{DS}, vcc
    """)
    k.stamp('kparam')
    k(f"""
    LF_kpass:
    v_pk_mul_f32 v[{LR}:{LR+1}], v[{AR}:{AR+1}], v[{DT}:{DT+1}] op_sel_hi:[1,0]
    v_pk_mul_f32 v[{LR}:{LR+1}], v[{LR}:{LR+1}], s[86:87]
    """)
    W = {1: 24, 8: 26, 256: 28, 2: 30, 3: 32, 4: 34, 5: 36, 6: 38, 7: 40, 16: 42, 32: 44, 258: 46, 260: 48, 262: 50, 264: 52, 512: 54}
    Z = [56 + 2 * i for i in range(8)]
    k(f"""
    v_pk_mul_f32 v[20:21], v[{CR}:{CR+1}], v[{BR}:{BR+1}] op_sel_hi:[1,0]
    v_mul_f32 v16, {f2u(8.0)}, v{LR}
    v_mul_f32 v17, {f2u(8.0)}, v{LR+1}
    v_mul_f32 v18, {f2u(256.0)}, v{LR}
    v_mul_f32 v19, {f2u(256.0)}, v{LR+1}
    v_fract_f32 v15, v{LR+1}
    v_fract_f32 v17, v17
    v_fract_f32 v19, v19
    v_exp_f32 v14, v{LR}
    v_exp_f32 v16, v16
    v_exp_f32 v18, v18
    v_pk_fma_f32 v[{Z[0]}:{Z[0]+1}], v[{CR}:{CR+1}], v[{BR}:{BR+1}], v[20:21] op_sel:[1,1,0] op_sel_hi:[0,1,1] neg_lo:[1,0,0]
    """)
    for i, r in enumerate((24, 26, 28)): k(f"v_cos_f32 v{r}, v{15+2*i}\nv_sin_f32 v{r+1}, v{15+2*i}")
    k(f"v_pk_mul_f32 v[{Z[0]}:{Z[0]+1}], v[{Z[0]}:{Z[0]+1}], v[{DT}:{DT+1}] op_sel_hi:[1,0]")
    for i, r in enumerate((24, 26, 28)): k(f"v_pk_mul_f32 v[{r}:{r+1}], v[{r}:{r+1}], v[{14+2*i}:{15+2*i}] op_sel_hi:[1,0]")
    for i in range(6): k(f"v_pk_mov_b32 v[{PRM+2*i}:{PRM+2*i+1}], v[{PRM+6+2*i}:{PRM+7+2*i}], v[{PRM+6+2*i}:{PRM+7+2*i}] op_sel:[0,1]")
    cmuls(k, [(W[2], W[1], W[1]), (W[16], W[8], W[8]), (W[512], W[256], W[256]), (Z[1], Z[0], W[8])], TMP)
    cmuls(k, [(W[3], W[2], W[1]), (W[4], W[2], W[2]), (W[32], W[16], W[16]), (W[258], W[256], W[2])], TMP)
    cmuls(k, [(Z[2], Z[0], W[16]), (Z[3], Z[1], W[16]), (W[5], W[4], W[1]), (W[6], W[4], W[2])], TMP)
    cmuls(k, [(W[7], W[4], W[3]), (W[260], W[256], W[4]), (W[264], W[256], W[8]), (Z[4], Z[0], W[32])], TMP)
    st = {'g': 0}
    NOW = int(opts.get('nokw', 0))
    def half(grp, vals, neg, part):
        pk = 72 + 4 * (st['g'] % 4); st['g'] += 1
        s = '-' if neg and part else ''
        for i in range(4):
            a, b = vals[2 * i], vals[2 * i + 1]
            ra = ('0' if part else '1.0') if a is None else f'{s}v{a+part}'
            k(f"v_cvt_pk_bf16_f32 v{pk+i}, {ra}, {s}v{b+part}")
        if not NOW: k(f"ds_write_b128 v{vKW}, v[{pk}:{pk+3}] offset:{16*grp + 9216*part}")
    def put(grp, vals, neg, between=None):
        half(grp, vals, neg, 0)
        if between: cmuls(k, between, TMP)
        half(grp, vals, neg, 1)
    X = {516: 88, 520: 90, 768: 92, 1024: 94, 772: 96, 1280: 98, 1536: 100, 1792: 102, 2048: W[1]}
    Y = [W[258], W[260], W[262], W[264], W[2], W[3], W[5], W[7]]
    cmuls(k, [(W[262], W[256], W[6]), (Z[5], Z[1], W[32]), (Z[6], Z[2], W[32]), (Z[7], Z[3], W[32])], TMP)
    put(0, [None, W[1], W[2], W[3], W[4], W[5], W[6], W[7]], True, [(X[516], W[512], W[4]), (X[520], W[512], W[8]), (X[768], W[512], W[256]), (X[1024], W[512], W[512])])
    put(1, [W[256], W[256], W[258], W[260], W[260], W[260], W[262], W[264]], True, [(X[772], X[768], W[4]), (X[1280], X[1024], W[256]), (X[1536], X[1024], W[512]), (X[1792], X[1024], X[768])])
    put(4, Z, False, [(Y[0], Z[4], W[32]), (Y[1], Z[5], W[32]), (Y[2], Z[6], W[32]), (Y[3], Z[7], W[32])])
    put(2, [W[512], W[512], W[512], X[516], X[516], X[516], X[520], X[520]], True, [(Y[4], Y[0], W[32]), (Y[5], Y[1], W[32]), (Y[6], Y[2], W[32]), (Y[7], Y[3], W[32])])
    k("s_cmp_eq_u32 s3, 1\ns_cbranch_scc1 LF_arr1\ns_cmp_eq_u32 s3, 2\ns_cbranch_scc1 LF_pol1\nLF_noarr1:")
    SPINS.append(f"LF_pol1:\nglobal_load_dword v{vPD}, v{vPA}, {P(pWS)} sc1\ns_branch LF_noarr1")
    a = Asm('x'); a.names = k.names
    a("LF_arr1:\ns_waitcnt vmcnt(0)")
    wait_flags(a, 'init', vPD, vPA, 32, None)
    a("s_barrier\ns_cmp_eq_u32 s21, 0\ns_cbranch_scc0 LF_arr1b")
    arrive(a, S1_OFF, vPD, vPT)
    a("LF_arr1b:")
    poll_addr(a, S1_OFF, vPA)
    a.stamp('arr1')
    a("s_branch LF_noarr1")
    SPINS.append('\n'.join(a.lines))
    cmuls(k, [(X[2048], X[1024], X[1024]), (Z[0], Y[4], W[32]), (Z[1], Y[5], W[32]), (Z[2], Y[6], W[32])], TMP)
    put(5, Y, False, [(Z[3], Y[7], W[32]), (Z[4], Z[0], W[32]), (Z[5], Z[1], W[32]), (Z[6], Z[2], W[32])])
    put(3, [X[768], X[1024], X[1536], X[2048], X[772], X[1280], X[1792], X[1024]], True, [(Z[7], Z[3], W[32]), (Y[0], Z[4], W[32]), (Y[1], Z[5], W[32]), (Y[2], Z[6], W[32])])
    put(6, Z, False, [(Y[3], Z[7], W[32]), (Y[4], Y[0], W[32]), (Y[5], Y[1], W[32]), (Y[6], Y[2], W[32])])
    cmuls(k, [(Y[7], Y[3], W[32])], TMP)
    put(7, Y, False)
    k.stamp('ktab_last')
    nld = "".join(f"global_load_dwordx4 {V4(NR+4*q)}, v{vNO}, {P(pWS)} offset:{64*q} {SC} ; @nocheck\n" for q in range(4)) + f"global_load_dword v{NR+16}, v{vMO}, {P(pWS)} {SC} ; @nocheck\n"
    k("s_cmp_eq_u32 s3, 2\ns_cbranch_scc1 LF_pol2\nLF_nopoll1:")
    SPINS.append(f"""
    LF_pol2:
    s_waitcnt vmcnt(0)
    v_cmp_gt_u32 vcc, 16, v{vPD}
    s_mov_b32 s71, 0
    s_cbranch_vccnz LF_pol3
    s_mov_b32 s71, 1
    {nld}s_branch LF_nopoll1
    LF_pol3:
    global_load_dword v{vPD}, v{vPA}, {P(pWS)} sc1
    s_branch LF_nopoll1
    """)
    FR = 56
    order = [0, 1, 2, 3, 4, 5, 6, 7]
    def rd(s):
        return [f"ds_read_b64_tr_b16 v[{FR + 8*(s % 4) + 4*tb + 2*h}:{FR + 8*(s % 4) + 4*tb + 2*h + 1}], v{vKR} offset:{(16*(s % 4) + h)*144 + 64*tb + 9216*(s // 4)}" for tb in range(2) for h in range(2)]
    k("AUTO")
    for s in range(3):
        for t in rd(s): k(t)
    for s in range(8):
        r = FR + 8 * (s % 4)
        k(f"v_mfma_f32_32x32x16_bf16 v[{ACC}:{ACC+15}], v[{r}:{r+3}], v[{r+4}:{r+7}], v[{ACC}:{ACC+15}]")
        if s + 3 < 8:
            for t in rd(s + 3): k(t)
    k(f"""MANUAL
    s_add_u32 s3, s3, 1
    s_cmp_eq_u32 s3, 1
    s_cbranch_scc1 LF_cmod
    s_cmp_eq_u32 s3, 2
    s_cbranch_scc1 LF_kpass
    """)
    k.stamp('kg3')
    k("s_cmp_eq_u32 s71, 1\ns_cbranch_scc1 LF_haven")
    wait_flags(k, 's1', vPD, vPA, 16, 0)
    k(nld + "LF_haven:")
    k.stamp('s1')
    S = SCT
    k(f"""
    v_cmp_ne_u32 vcc, 33, v1
    s_mul_i32 s26, s21, {TAPCH}
    s_add_u32 s26, s26, {TAPS}
    v_add_u32 v14, s26, v{vL16}
    v_cvt_pk_bf16_f32 v24, v{ACC}, v{ACC+1}
    v_cvt_pk_bf16_f32 v25, v{ACC+2}, v{ACC+3}
    v_cvt_pk_bf16_f32 v26, v{ACC+4}, v{ACC+5}
    v_cvt_pk_bf16_f32 v27, v{ACC+6}, v{ACC+7}
    ds_write_b64 v{S+6}, v[24:25] offset:{2*(BA+1)}
    v_cvt_pk_bf16_f32 v28, v{ACC+8}, v{ACC+9}
    v_cvt_pk_bf16_f32 v29, v{ACC+10}, v{ACC+11}
    ds_write_b64 v{S+6}, v[26:27] offset:{2*(BA+1) + 512}
    v_cvt_pk_bf16_f32 v30, v{ACC+8}, v{ACC+12}
    v_cndmask_b32 v29, 0, v29, vcc
    ds_write_b16 v{S+1}, v30
    v_cvt_pk_bf16_f32 v31, v{ACC+13}, v{ACC+14}
    ds_write_b64 v{S+7}, v[28:29] offset:{2*(BA+1) + 1024}
    v_cvt_pk_bf16_f32 v32, v{ACC+15}, v{ACC+15}
    ds_write_b16_d16_hi v{S}, v30 offset:{2*B5A + 32}
    ds_write_b16 v{S+3}, v31
    ds_write_b16 v{S+4}, v31
    ds_write_b16_d16_hi v{S+2}, v31 offset:64
    ds_write_b16 v{S+5}, v32
    AUTO
    ds_read_b128 v[24:27], v{S+8}
    ds_read_b64 v[28:29], v{S+8} offset:16
    ds_read_b128 v[48:51], v{S+8} offset:1024
    ds_read_b64 v[52:53], v{S+8} offset:1040
    """)
    for q, b in enumerate((24, 48)):
        k(f"ds_write_b128 v14, v[{b+2}:{b+5}] offset:{1024*q + 3*TCS}")
        for i in range(4): k(f"v_alignbit_b32 v{b+8+i}, v{b+i+1}, v{b+i}, 16")
        k(f"ds_write_b128 v14, v[{b+8}:{b+11}] offset:{1024*q}")
        for i in range(4): k(f"v_mov_b32 v{b+12+i}, v{b+i+1}")
        k(f"ds_write_b128 v14, v[{b+12}:{b+15}] offset:{1024*q + TCS}")
        for i in range(4): k(f"v_alignbit_b32 v{b+16+i}, v{b+i+2}, v{b+i+1}, 16")
        k(f"ds_write_b128 v14, v[{b+16}:{b+19}] offset:{1024*q + 2*TCS}")
    k("MANUAL")
    k.stamp('kout')

TA0 = 128; T20 = 200
CACC = 12; CU_ = 44; RING = 76; NRING = 8; WTMP = 108; DEC = 132

def conv(k, opts):
    tfr = [f"ds_read_b64_tr_b16 a[{TA0+4*m+2*h}:{TA0+4*m+2*h+1}], v{vTA} offset:{64*m - 8*h + 8}" for m in range(18) for h in range(2)]
    for idx, (base, mu, va) in enumerate([(B5A, 0, vT2), (B5A, 1, vT2), (B5A, 2, vT2), (B5B, 0, vT2), (B5B, 1, vT2), (B5B, 2, vT2)] + [(B7, mu, vT3) for mu in range(4)]):
        tfr += [f"ds_read_b64_tr_b16 a[{T20+4*idx+2*h}:{T20+4*idx+2*h+1}], v{va} offset:{2*(base-3) - 8 + 32*mu - 16*h}" for h in range(2)]
    for t in tfr: k(t)
    k(f"""
    s_lshl_b32 s29, s20, 12
    s_add_u32 s29, s29, {WS_X1}
    s_add_u32 s34, s68, s29
    s_addc_u32 s35, s69, 0
    s_lshl_b32 s28, s21, 12
    s_add_u32 m0, s28, {OU}
    s_add_u32 s28, s28, {WS_ST}
    v_add_u32 v16, s28, v{vL16}
    s_mul_i32 s27, s21, {CHS}
    v_mov_b32 v12, 0
    v_mov_b32 v13, 0
    v_mov_b32 v14, 0
    v_mov_b32 v15, 0
    v_min_u32 v17, 29, v1
    v_lshl_add_u32 v17, v17, 4, s27
    v_min_u32 v18, 3, v1
    v_mul_u32_u24 v18, {UD}, v18
    v_add_u32 v18, s27, v18
    s_add_u32 s28, s21, 32
    s_waitcnt vmcnt(0)
    v_add_f32_dpp v40, v{NR+16}, v{NR+16} row_ror:4 row_mask:0xf bank_mask:0xf
    v_add_f32_dpp v40, v40, v40 row_ror:8 row_mask:0xf bank_mask:0xf
    v_cvt_pk_bf16_f32 v40, v40, v40
    v_lshlrev_b32 v40, 16, v40
    ds_bpermute_b32 v42, v{vBP}, v40
    ds_bpermute_b32 v43, v{vBP}, v40 offset:64
    v_readlane_b32 s70, v40, s28
    s_waitcnt lgkmcnt(0)
    s_barrier
    v_add_f32 v43, 1.0, v43
    v_cvt_pk_bf16_f32 v43, v43, 0
    v_lshlrev_b32 v41, 16, v43
    """)
    k.stamp('ndata')
    HT = DEC
    dma = [f"global_load_lds_dwordx4 v{vUO}, {P(pWS)} offset:{1024*q} {SC} ; @w:U" for q in range(4)]
    dma[3] += "\ns_add_u32 m0, m0, 16384"
    dma += [f"global_load_lds_dwordx4 v16, {P(pWS)} offset:{1024*q} {SC} ; @w:U" for q in range(4)]
    k(f"ds_write_b128 v17, v[12:15]\nds_write_b128 v18, v[12:15] offset:{O3 - 16}")
    for q in range(5):
        if q < 4:
            for x in range(8): k(f"v_dot2_f32_bf16 v{HT+8*q+x}, v{NR+4*q+(x>>1)}, v{41 if x & 1 else 43}, v42")
        if q > 0:
            for i in range(4): k(f"v_cvt_pk_bf16_f32 v{HT+32+4*(q-1)+i}, v{HT+8*(q-1)+2*i}, v{HT+8*(q-1)+2*i+1}")
            k(f"ds_write_b128 v{vWH}, {V4(HT+32+4*(q-1))} offset:{OH + 16*(q-1)}")
    k("s_waitcnt lgkmcnt(0)\ns_barrier")
    for t in dma: k(t)
    k.stamp('prep')
    started = set()
    def M(T, a, b):
        s = mf(CACC + 4 * T, a, b, T not in started); started.add(T); return s
    slots, items = [], []
    def item(e, kind, text, deps=()):
        items.append(dict(id=len(items), e=e, kind=kind, text=text, deps=list(deps))); return len(items) - 1
    ps = list(range(-7, 57))
    LOOK = NRING - 2
    rdtxt = lambda i: f"ds_read_b128 {V4(RING + 4*(i % NRING))}, v{vRD} offset:{64*(ps[i] + 7)}"
    ring, lastw, wwrite, ures = {}, {}, {}, {}
    DI = {'C': 0, 'A': 4, 'B': 10}
    ubar = None
    for i, p in enumerate(ps):
        if i + LOOK < len(ps): ring[i + LOOK] = item(len(slots), 'ring', rdtxt(i + LOOK))
        b = V4(RING + 4 * (i % NRING)); dep = [ring[i]] if i in ring else []
        for T in range(8):
            m = 8 * T - p
            if 0 <= m <= 16: slots.append((M(T, A4(TA0 + 4 * m), b), dep))
            if T >= 4 and m == 32: slots.append((M(T, A4(TA0 + 68), b), dep))
        if p % 8 == 0 and 0 <= p <= 40:
            T = p // 8
            for pr, off in enumerate((O3, O7)):
                if pr == 1 and T >= 4: continue
                t = WTMP + 8 * pr; o = WTMP + 16 + 4 * pr
                for wi in range(2): slots.append((mf(t + 4 * wi, V4(BAND + 4 + 8 * pr + 4 * wi), b, True), dep + lastw.get(pr, [])))
                e = len(slots) + 3
                c = [item(e, 'va', f"v_cvt_pk_bf16_f32 v{o+q}, v{t+2*q}, v{t+2*q+1}") for q in range(4)]
                s0 = item(e + 3, 'va', f"v_permlane16_swap_b32 v{o}, v{o+2}", c)
                s1 = item(e + 3, 'va', f"v_permlane16_swap_b32 v{o+1}, v{o+3}", c)
                w = item(e + 4, 'ds', f"ds_write_b128 v{vWU}, {V4(o)} offset:{off + 512*T}", [s0, s1])
                lastw[pr] = [w]; wwrite.setdefault(T, []).append(w)
            for kind in 'CAB':
                if kind == 'C' and T > 3: continue
                va = {'A': vDA, 'B': vDB, 'C': vD3}[kind]
                r = DEC + 4 * (DI[kind] + T)
                lastw[(kind, T)] = [item(len(slots) + 4, 'ds', f"ds_read_b64_tr_b16 v[{r+2*h}:{r+2*h+1}], v{va} offset:{512*T + 256*h}", wwrite[T]) for h in range(2)]
        if p == 24: ubar = item(len(slots), 'va', "s_barrier ; @r:U")
        if p in (26, 29, 33, 36, 39, 44, 48, 52):
            T = (26, 29, 33, 36, 39, 44, 48, 52).index(p)
            ures[T] = item(len(slots), 'ds', f"ds_read_b128 {V4(CU_ + 4*T)}, v{vRU} offset:{2048*T}", [ubar])
    E0 = int(opts.get('e0', 70)); NE1 = int(opts.get('ne1', 16))
    f0_ = item(E0, 'va', f"global_load_dword v{vF1D}, v{vF1A}, {P(pWS)} sc1")
    f1 = item(E0 + 45, 'va', f"v_cmp_gt_u32 vcc, 1, v{vF1D}\ns_cmp_eq_u64 vcc, 0\ns_cselect_b32 s6, 61440, 0", [f0_])
    ld = Loader(); prev = f1
    for i in range(NE1): prev = item(E0 + 47 + i * (198 - E0 - 52) // NE1, 'va', ld.w1(), [prev])
    fm = {}; ndirect = len(slots)
    allw = [w for ws_ in wwrite.values() for w in ws_]
    for T in range(8):
        idr = RING + 4 * (T % 4)
        slots.append((f"v_mfma_f32_16x16x32_bf16 {V4(idr)}, {V4(BAND)}, {V4(CU_ + 4*T)}, 0", [ures[T]] + fm.get(T - 4, [])))
        e0 = len(slots) + 3
        for kind, b0, nmu, t0 in (('C', 4, 4, 6), ('A', 2, 3, 0), ('B', 2, 3, 3)):
            for mu in range(nmu):
                P_ = T - b0 - mu
                if P_ >= 0: slots.append((M(T, V4(DEC + 4 * (DI[kind] + P_)), A4(T20 + 4 * (t0 + mu))), lastw[(kind, P_)]))
        e = len(slots) + 3
        sr = (202, 92, 100)[T % 3]
        sd = [item(ndirect - (8 if T == 0 else 0), 'ds', f"ds_read_b128 {V4(sr+4*h)}, v{vSA} offset:{2048*T + 1024*h}", [ubar] + fm.get(T - 3, [])) for h in range(2)]
        f0 = [item(e0, 'va', f"v_fma_f32 v{idr+r}, v{idr+r}, v{sr+2*r}, v{sr+2*r+1}", sd) for r in range(4)]
        fm[T] = [item(e, 'va', f"v_fma_f32 v{CACC+4*T+r}, v{CACC+4*T+r}, s70, v{idr+r}", f0) for r in range(4)]
        o = WTMP + 4 * (T >> 1) + 2 * (T & 1)
        fm[('c', T)] = [item(e, 'va', f"v_cvt_pk_bf16_f32 v{o+h}, v{CACC+4*T+2*h}, v{CACC+4*T+2*h+1}", fm[T] + allw) for h in range(2)]
        if T & 1: item(e, 'va', f"global_store_dwordx4 v{vL16}, {V4(WTMP + 4*(T >> 1))}, s[34:35] offset:{1024*(T >> 1)} {SC}", fm[('c', T)] + fm[('c', T - 1)] + [f1])
    k("AUTO")
    for i in range(LOOK): k(rdtxt(i))
    weave(k, slots, items)
    k("MANUAL")
    k.stamp('convend')

def weave(k, slots, items):
    done = set()
    def emit(n):
        if n in done: return
        for d in items[n]['deps']: emit(d)
        done.add(n); k(items[n]['text'])
    def pick(kinds, i):
        for it in items:
            if it['id'] not in done and it['kind'] in kinds and it['e'] <= i and all(d in done for d in it['deps']): return it['id']
        return None
    for i, (m, deps) in enumerate(slots):
        for d in deps: emit(d)
        k(m)
        n = pick(('ring',), i)
        if n is None: n = pick(('ds',), i)
        if n is not None: emit(n)
        for _ in range(1 if n is not None else 2):
            n2 = pick(('va',), i)
            if n2 is not None: emit(n2)
    for it in items: emit(it['id'])

def side(k):
    k(f"s_waitcnt vmcnt(0)\ns_barrier\ns_cmp_eq_u32 s21, 0\ns_cbranch_scc0 LF_sd1")
    wait_flags(k, 'init2', vPD, vPA, 32, None)
    arrive(k, S1_OFF, vPD, vPT)
    k.stamp('arr1')
    k("LF_sd1:")
    k(f"""
    s_lshr_b32 s32, s20, 5
    s_lshl_b32 s32, s32, 5
    s_and_b32 s33, s20, 7
    s_lshl_b32 s33, s33, 2
    s_add_u32 s32, s32, s33
    s_bfe_u32 s33, s20, 0x20003
    s_add_u32 s32, s32, s33               ; f tile
    v_lshrrev_b32 v2, 1, v1
    v_mul_u32_u24 v2, 3072, v2
    v_and_b32 v3, 1, v1
    v_lshl_add_u32 v2, v3, 4, v2
    s_mul_i32 s33, s21, {160*3072}
    s_lshl_b32 s24, s32, 5
    s_add_u32 s33, s33, s24
    v_add_u32 v2, s33, v2
    s_mul_i32 s26, s21, 5120
    s_add_u32 m0, s26, {W1R}
    s_lshr_b32 s24, s20, 1
    s_and_b32 s25, s20, 1                 ; half
    """)
    for i in range(5):
        k(f"global_load_lds_dwordx4 v2, {P(pW1)}")
        if i < 4: k(f"s_add_u32 m0, m0, 1024\nv_add_u32 v2, {32*3072}, v2")
    k(f"""
    s_mul_i32 s33, s24, {32*1280}
    s_mul_i32 s26, s25, 640
    s_add_u32 s33, s33, s26
    s_mul_i32 s27, s21, 320
    """)
    for i in range(5):
        k(f"""
        v_add_u32 v3, {64*i}, v1
        v_add_u32 v3, s27, v3
        v_mul_u32_u24 v4, 1639, v3
        v_lshrrev_b32 v4, 16, v4
        v_mul_u32_u24 v4, 640, v4
        v_lshl_add_u32 v3, v3, 4, v4
        v_add_u32 v{124+i}, s33, v3
        """)
    k(f"""
    v_lshrrev_b32 v4, 4, v1               ; G
    v_bfe_u32 v2, v1, 2, 2                ; r
    v_and_b32 v9, 3, v1
    v_lshl_add_u32 v11, v4, 2, v2
    v_mul_u32_u24 v11, 640, v11
    v_lshl_add_u32 v11, v9, 3, v11
    s_mul_i32 s26, s21, 160
    s_add_u32 s26, s26, {W2R}
    v_add_u32 v11, s26, v11
    v_lshrrev_b32 v5, 1, v4
    v_and_b32 v6, 1, v4
    v_lshlrev_b32 v5, 4, v5
    v_lshl_add_u32 v5, v6, 2, v5          ; 16(G>>1) + 4(G&1)
    v_add_u32 v10, v5, v2
    v_lshlrev_b32 v10, 5, v10
    v_lshl_add_u32 v10, v9, 3, v10
    s_mul_i32 s26, s21, 5120
    s_add_u32 s26, s26, {W1R}
    v_add_u32 v10, s26, v10
    ; W2F destination: ((j*4 + KS/12)*12 + order(KS%12))*5 KB, j = 4*half + wave
    s_mul_hi_u32 s26, s24, 0x15555556
    s_mul_i32 s27, s26, 12
    s_sub_u32 s27, s24, s27
    s_lshl_b32 s27, s27, 2
    s_mov_b32 s28, {KORD & 0xffffffff}
    s_mov_b32 s29, {KORD >> 32}
    s_lshr_b64 s[28:29], s[28:29], s27
    s_and_b32 s27, s28, 15
    s_lshl_b32 s28, s25, 2
    s_add_u32 s28, s28, s21
    s_lshl_b32 s28, s28, 2
    s_add_u32 s26, s26, s28
    s_mul_i32 s26, s26, 12
    s_add_u32 s26, s26, s27
    s_mul_i32 s26, s26, 5120
    s_add_u32 s26, s26, {WS_W2F}
    v_add_u32 v129, s26, v{vL16}
    s_waitcnt vmcnt(0)
    """)
    for i in range(5):
        for h in range(2): k(f"ds_read_b64_tr_b16 v[{40+4*i+2*h}:{41+4*i+2*h}], v10 offset:{1024*i + 256*h}")
    poll_addr(k, S1_OFF, vPA)
    k(f"""
    global_load_dword v{vPD}, v{vPA}, {P(pWS)} sc1
    s_mul_i32 s26, s21, 640
    s_add_u32 s26, s26, 7680
    v_lshl_add_u32 v14, v1, 2, s26
    v_and_b32 v15, 31, v1
    v_lshl_add_u32 v15, v15, 2, s26
    ; W1F destination
    s_mul_hi_u32 s26, s32, 0x55555556
    s_mul_i32 s27, s26, 3
    s_sub_u32 s27, s32, s27
    s_add_u32 s28, s27, 2
    s_cmp_ge_u32 s28, 3
    s_cselect_b32 s29, 3, 0
    s_sub_u32 s28, s28, s29
    s_bitcmp1_b32 s26, 0
    s_cselect_b32 s27, s28, s27           ; pass
    s_mul_i32 s26, s26, 60
    s_mul_i32 s28, s21, 10
    s_add_u32 s28, s28, s27
    s_mul_i32 s29, s21, 5
    s_add_u32 s29, s29, 40
    s_cmp_lt_u32 s27, 2
    s_cselect_b32 s28, s28, s29
    s_cselect_b32 s33, 2, 1
    s_lshl_b32 s33, s33, 10
    s_add_u32 s26, s26, s28
    s_lshl_b32 s26, s26, 10
    s_add_u32 s26, s26, {WS_W1F}
    v_add_u32 v13, s26, v{vL16}
    s_lshl_b32 s26, s21, 10
    s_add_u32 s26, s26, {VRED + 512}
    v_lshl_add_u32 v6, v1, 2, s26
    v_and_b32 v7, 31, v1
    v_lshl_add_u32 v2, v7, 1, s26
    v_lshl_add_u32 v7, v7, 2, s26
    v_lshl_add_u32 v9, v1, 1, s26
    v_lshl_add_u32 v3, v5, 1, s26
    v_lshl_add_u32 v5, v5, 2, s26
    v_mov_b32 v100, 0x3f803f80
    v_mov_b32 v101, 0x3f803f80
    v_mov_b32 v102, 0x3f803f80
    v_mov_b32 v103, 0x3f803f80
    s_waitcnt lgkmcnt(0)
    """)
    for i in range(5):
        for q in range(4): k(f"v_lshlrev_b32 v{136+8*i+2*q}, 16, v{40+4*i+q}\nv_and_b32 v{137+8*i+2*q}, 0xffff0000, v{40+4*i+q}")
    k("s_cmp_eq_u32 s21, 0\ns_cbranch_scc0 LF_sd2")
    wait_flags(k, 's1b', vPD, vPA, 16, 0)
    k("LF_sd2:\ns_barrier")
    k.stamp('s1')
    k("AUTO")
    for kq in range(4):
        for wh in range(2):
            for c in range(3):
                k(f"global_load_dword v{60 + 6*kq + 3*wh + c}, v{14 if c < 2 else 15}, {P(pWS)} offset:{2560*wh + 256*c} {SC}")
        if kq < 3: k("v_add_u32 v14, 15360, v14\nv_add_u32 v15, 15360, v15")
    for i in range(3): k(f"v_pk_add_f32 v[{60+2*i}:{61+2*i}], v[{60+2*i}:{61+2*i}], v[{66+2*i}:{67+2*i}]")
    for i in range(3): k(f"v_pk_add_f32 v[{72+2*i}:{73+2*i}], v[{72+2*i}:{73+2*i}], v[{78+2*i}:{79+2*i}]")
    for i in range(3): k(f"v_pk_add_f32 v[{60+2*i}:{61+2*i}], v[{60+2*i}:{61+2*i}], v[{72+2*i}:{73+2*i}]")
    for c in range(3): k(f"v_cvt_pk_bf16_f32 v{60+c}, v{63+c}, v{60+c}")
    for c in range(3): k(f"v_lshlrev_b32 v{63+c}, 16, v{60+c}\nds_write_b16_d16_hi v{9 if c < 2 else 2}, v{60+c} offset:{640 + 128*c}")
    for c in range(3): k(f"v_add_f32 v{63+c}, 1.0, v{63+c}")
    for c in range(3): k(f"v_cvt_pk_bf16_f32 v{63+c}, v{63+c}, v{63+c}")
    for c in range(3): k(f"v_lshlrev_b32 v{63+c}, 16, v{63+c}\nds_write_b32 v{6 if c < 2 else 7}, v{63+c} offset:{256*c}")
    k.stamp('ndata')
    for i in range(5):
        g = 180 + 12 * i
        for h in range(2): k(f"ds_read_b128 {V4(g+4*h)}, v5 offset:{128*i + 32*h}")
        for h in range(2): k(f"ds_read_b64 v[{g+8+2*h}:{g+9+2*h}], v3 offset:{640 + 64*i + 16*h}")
    for i in range(5):
        g = 180 + 12 * i; u = 136 + 8 * i; o4 = 16 + 4 * i
        for q in range(4): k(f"v_pk_mul_f32 v[{u+2*q}:{u+2*q+1}], v[{u+2*q}:{u+2*q+1}], v[{g+2*q}:{g+2*q+1}]")
        for q in range(4): k(f"v_cvt_pk_bf16_f32 v{o4+q}, v{u+2*q}, v{u+2*q+1}")
        k(f"global_store_dwordx4 v13, {V4(o4)}, {P(pWS)} {SC}" + ("\nv_add_u32 v13, s33, v13" if i < 4 else ""))
    for i in range(5):
        k(mf(112, V4(16 + 4 * i), V4(100), i == 0))
        k(mf(116, V4(40 + 4 * i), V4(188 + 12 * i), i == 0))
    k(f"""
    s_lshl_b32 s27, s21, 7
    s_add_u32 s27, s27, {VRED}
    v_lshl_add_u32 v13, v4, 4, s27
    ds_write_b128 v13, v[112:115]
    ds_write_b128 v13, v[116:119] offset:64
    MANUAL
    s_waitcnt lgkmcnt(0)
    s_barrier
    s_cmp_eq_u32 s21, 0
    s_cbranch_scc0 LF_sd3
    v_and_b32 v13, 31, v1
    v_lshlrev_b32 v13, 2, v13
    v_add_u32 v13, {VRED}, v13
    ds_read_b32 v16, v13
    ds_read_b32 v17, v13 offset:128
    ds_read_b32 v18, v13 offset:256
    ds_read_b32 v19, v13 offset:384
    v_bfe_u32 v14, v1, 4, 1
    v_mul_u32_u24 v14, 6144, v14
    v_and_b32 v15, 15, v1
    v_lshl_add_u32 v14, v15, 2, v14
    s_lshl_b32 s27, s32, 6
    s_add_u32 s27, s27, {WS_V12}
    v_add_u32 v14, s27, v14
    s_waitcnt lgkmcnt(0)
    v_add_f32 v16, v16, v17
    v_add_f32 v18, v18, v19
    v_add_f32 v16, v16, v18
    global_store_dword v14, v16, {P(pWS)} {SC}
    LF_sd3:
    s_mul_i32 s26, s21, 5120
    s_add_u32 m0, s26, {W2R}
    s_nop 0
    """)
    for i in range(5): k(f"global_load_lds_dwordx4 v{124+i}, {P(pW2)}" + ("\ns_add_u32 m0, m0, 1024" if i < 4 else ""))
    k(f"""
    s_waitcnt vmcnt(5)
    s_barrier
    s_cmp_eq_u32 s21, 0
    s_cbranch_scc0 LF_sd4
    s_lshl_b32 s27, s32, 7
    s_add_u32 s27, s27, {WS_SYNC + F1_OFF}
    v_mov_b32 v14, s27
    v_mov_b32 v15, 1
    s_mov_b64 exec, 1
    global_store_dword v14, v15, {P(pWS)} sc1
    s_mov_b64 exec, -1
    LF_sd4:
    """)
    k.stamp('f1pub')
    k("s_waitcnt vmcnt(0)\ns_barrier\nAUTO")
    for dt in range(5):
        for h in range(2): k(f"ds_read_b64_tr_b16 v[{16+4*dt+2*h}:{17+4*dt+2*h}], v11 offset:{10240*h + 32*dt}")
    for dt in range(5):
        k(f"global_store_dwordx4 v129, {V4(16+4*dt)}, {P(pWS)} {SC}" + ("\nv_add_u32 v129, 1024, v129" if dt < 4 else ""))
    k("MANUAL")
    k.stamp('convend')

ST = 16; V12 = 24; ACA, ACB = 48, 80; BF = 96; NBF = 6; TMP = 192; PKD = 208; SQ, SM, ONES = 224, 228, 232; XA = 236
AC2 = 24; HR = 104; NRK = 8; GB = 232; HA = 4
BORD = list(range(20 - NBF, 20)) + list(range(20 - NBF))
W2SLOT = list(range(40)) + [40 + ks for ks in BORD]

class Loader:
    def __init__(self): self.n1 = 0; self.n2 = 0
    def txt(self, n, slot, srd_, sreg):
        t = f"s_mov_b32 s{sreg}, {n * 1024}\n" if n % 4 == 0 else ""
        return t + f"buffer_load_dwordx4 a[{4*slot}:{4*slot+3}], v{vL16}, s[{srd_}:{srd_+3}], s{sreg} offen offset:{(n % 4) * 1024} {SC}"
    def w1(self): self.n1 += 1; return self.txt(self.n1 - 1, self.n1 - 1, 4, 28)
    def w2(self): self.n2 += 1; return self.txt(self.n2 - 1, W2SLOT[self.n2 - 1], 8, 29)
    def next(self, free):
        if self.n1 < 60: return self.w1()
        if self.n2 < min(free, 60): return self.w2()
        return None

def breads(ks, buf):
    b = BF + 16 * (buf % NBF)
    return [f"ds_read_b64_tr_b16 v[{b+4*s+2*h}:{b+4*s+2*h+1}], v{XA + s + (4 if ks >= 10 else 0)} offset:{4096*(ks % 10) + 1024*h}" for s in range(4) for h in range(2)]

def epilogue(acc, p, dst, dstep):
    v1, v2 = V12 + 8 * p, V12 + 8 * p + 4
    o = []
    for s in range(4):
        for h in range(2):
            a = acc + 4 * s + 2 * h
            o.append(f"v_pk_fma_f32 v[{a}:{a+1}], v[{v1+2*h}:{v1+2*h+1}], v[{ST+2*s}:{ST+2*s+1}], v[{a}:{a+1}] op_sel_hi:[1,0,1] neg_lo:[1,0,0] neg_hi:[1,0,0]")
    for s in range(4):
        for h in range(2):
            a = acc + 4 * s + 2 * h
            o.append(f"v_pk_fma_f32 v[{a}:{a+1}], v[{a}:{a+1}], v[{ST+2*s}:{ST+2*s+1}], v[{v2+2*h}:{v2+2*h+1}] op_sel:[0,1,0] op_sel_hi:[1,1,1]")
    o += [f"v_exp_f32 v{TMP+i}, v{acc+i}" for i in range(16)]
    o += [f"v_pk_add_f32 v[{TMP+2*i}:{TMP+2*i+1}], v[{TMP+2*i}:{TMP+2*i+1}], 1.0 op_sel_hi:[1,0]" for i in range(8)]
    o += [f"v_rcp_f32 v{TMP+i}, v{TMP+i}" for i in range(16)]
    o += [f"v_pk_mul_f32 v[{acc+2*i}:{acc+2*i+1}], v[{acc+2*i}:{acc+2*i+1}], v[{TMP+2*i}:{TMP+2*i+1}]" for i in range(8)]
    o += [f"v_cvt_pk_bf16_f32 v{dst + dstep*s + h}, v{acc+4*s+2*h}, v{acc+4*s+2*h+1}" for s in range(4) for h in range(2)]
    return o

def sprinkle(k, ops, extra):
    extra = [e for e in extra if e]
    step = len(ops) / (len(extra) + 1); nxt = step
    for i, o in enumerate(ops):
        k(o)
        while extra and i + 1 >= nxt: k(extra.pop(0)); nxt += step
    for e in extra: k(e)

def mlp(k, opts):
    PRE1 = int(opts.get('pre1', 4)); PB = int(opts.get('pb', 40))
    ld = Loader()
    ld.n1 = int(opts.get('ne1', 16))
    for i in range(PRE1): k(ld.w1() + " ; @skip")
    k(f"s_waitcnt vmcnt({PRE1})\ns_barrier\ns_cmp_eq_u32 s21, 0\ns_cbranch_scc0 LF_m1")
    arrive(k, S2_OFF, 12, 13)
    k("LF_m1:")
    k.stamp('arr2')
    k(f"s_cmp_eq_u32 s6, 0\ns_cbranch_scc0 LF_w1ok\nglobal_load_dword v{vF1D}, v{vF1A}, {P(pWS)} sc1")
    wait_flags(k, 'f1', vF1D, vF1A, 1, 0)
    k("s_mov_b32 s6, 61440")
    l2 = Loader()
    while l2.n1 < ld.n1: k(l2.w1())
    k("LF_w1ok:")
    k.stamp('w1ok')
    for kq in range(4):
        k(f"global_load_dword v{48+2*kq}, v{vVA+4}, {P(pWS)} {SC}\nglobal_load_dword v{49+2*kq}, v{vVA+5}, {P(pWS)} offset:256 {SC}")
        if kq < 3: k(f"v_add_u32 v{vVA+4}, 15360, v{vVA+4}\nv_add_u32 v{vVA+5}, 15360, v{vVA+5}")
    for i, (va, off) in enumerate(((0, 0), (2, 0), (0, 64), (2, 64), (1, 0), (3, 0))):
        k(f"global_load_dwordx4 {V4(V12 + 4*i)}, v{vVA+va}, {P(pWS)} offset:{off} {SC}")
    n0 = ld.n1
    while ld.n1 < PB: k(ld.w1())
    k(f"""
    s_mul_i32 s26, s21, 320
    s_add_u32 s26, s26, {GBL}
    v_lshl_add_u32 v12, v1, 2, s26
    v_and_b32 v13, 15, v1
    v_lshl_add_u32 v13, v13, 2, s26
    s_waitcnt vmcnt({6 + PB - n0})
    v_pk_add_f32 v[48:49], v[48:49], v[50:51]
    v_pk_add_f32 v[52:53], v[52:53], v[54:55]
    v_pk_add_f32 v[48:49], v[48:49], v[52:53]
    v_cvt_pk_bf16_f32 v48, v48, v49
    v_and_b32 v49, 0xffff0000, v48
    v_lshlrev_b32 v48, 16, v48
    v_mul_f32 v48, {LN2 + 0x80000000}, v48
    v_mul_f32 v49, {LN2 + 0x80000000}, v49
    ds_write_b32 v12, v48
    ds_write_b32 v13, v49 offset:256
    v_lshrrev_b32 v14, 4, v1              ; G
    v_bfe_u32 v12, v1, 2, 2               ; r
    v_and_b32 v13, 1, v14
    v_lshl_add_u32 v15, v13, 2, v12
    v_lshrrev_b32 v13, 1, v14
    v_lshl_add_u32 v13, v13, 4, v15
    v_lshlrev_b32 v13, 7, v13
    v_and_b32 v12, 1, v1
    v_lshl_add_u32 v13, v12, 3, v13
    v_bfe_u32 v12, v1, 1, 1
    v_lshl_add_u32 v13, v12, 4, v13
    v_and_b32 v15, 6, v15
    """)
    for s in range(4):
        k(f"s_xor_b32 s26, s21, {s}\ns_lshl_b32 s{80+s}, s26, 10\ns_lshl_b32 s26, s26, 1\nv_xor_b32 v12, s26, v15\nv_lshl_add_u32 v{XA+s}, v12, 4, v13\nv_add_u32 v{XA+4+s}, 40960, v{XA+s}")
    k(f"""
    v_lshrrev_b32 v12, 3, v1
    v_and_b32 v13, 6, v12
    v_and_b32 v15, 7, v1
    v_xor_b32 v13, v13, v15
    v_lshlrev_b32 v12, 12, v12
    v_lshl_add_u32 v3, v13, 4, v12
    s_lshl_b32 s26, s21, 15
    s_lshl_b32 s27, s22, 7
    s_add_u32 s26, s26, s27
    s_add_u32 s26, s26, {WS_X1}
    v_add_u32 v3, s26, v3
    s_lshl_b32 s26, s21, 10
    s_mov_b32 m0, s26
    v_mov_b32 v{ONES}, 0x3f803f80
    v_mov_b32 v{ONES+1}, 0x3f803f80
    v_mov_b32 v{ONES+2}, 0x3f803f80
    v_mov_b32 v{ONES+3}, 0x3f803f80
    s_mul_i32 s26, s21, 3
    s_add_u32 s26, s26, 1
    s_lshr_b32 s26, s26, 1
    s_mul_i32 s27, s23, 6
    s_add_u32 s26, s26, s27
    s_lshl_b32 s26, s26, 12
    s_lshr_b32 s30, s21, 1
    s_mul_i32 s31, s30, 3
    s_add_u32 s31, s31, 1
    s_add_u32 s27, s27, s31
    s_lshl_b32 s27, s27, 12
    s_add_u32 s72, s80, s26
    s_add_u32 s73, s81, s26
    s_add_u32 s74, s82, s26
    s_add_u32 s75, s83, s26
    s_add_u32 s76, s80, s27
    s_add_u32 s77, s82, s27
    s_lshl_b32 s30, s30, 12
    s_add_u32 s30, s30, {RED}
    s_and_b32 s31, s21, 1
    s_lshl_b32 s31, s31, 3
    v_add_u32 v244, s30, v{vL16}
    v_add_u32 v245, s31, v244
    s_lshl_b32 s26, s22, 9
    s_add_u32 s26, s26, {WS_SYNC + F3_OFF}
    s_lshr_b32 s27, s23, 1
    s_lshl_b32 s27, s27, 7
    s_and_b32 s30, s23, 1
    s_lshl_b32 s30, s30, 4
    s_add_u32 s27, s27, s30
    s_lshl_b32 s30, s21, 2
    s_add_u32 s27, s27, s30
    s_add_u32 s27, s27, s26
    v_mov_b32 v10, s27
    s_lshl_b32 s30, s21, 7
    s_add_u32 s26, s26, s30
    v_and_b32 v11, 7, v1
    v_lshl_add_u32 v11, v11, 2, s26
    s_mul_i32 s78, s21, {12*4096}
    v_and_b32 v9, 15, v1
    v_lshlrev_b32 v9, 3, v9
    s_lshl_b32 s26, s21, 7
    s_add_u32 s26, s26, {STAT}
    v_add_u32 v9, s26, v9
    v_and_b32 v13, 3, v1
    v_cmp_eq_u32 s[84:85], 1, v13
    v_cmp_eq_u32 s[86:87], 2, v13
    v_cmp_eq_u32 s[88:89], 3, v13
    v_bfe_u32 v15, v1, 2, 2
    v_cmp_eq_u32 s[90:91], v14, v15
    """)
    for s in range(4): k(f"v_add_u32 v{HA+s}, s{80+s}, v{vL16}")
    if int(opts.get('w2t', 0)):
        k(f"""
        s_cmp_lt_u32 s2, {NCONV}
        s_cbranch_scc1 LF_now2t
        s_lshr_b32 s26, s2, 5
        s_sub_u32 s26, s26, 5
        s_mul_i32 s26, s26, 20480
        v_lshlrev_b32 v12, 7, v1
        buffer_load_dword v13, v12, s[8:11], s26 offen ; @skip
        s_add_u32 s26, s26, 8192
        buffer_load_dword v13, v12, s[8:11], s26 offen ; @skip
        v_min_u32 v12, 3968, v12
        s_add_u32 s26, s26, 8192
        buffer_load_dword v13, v12, s[8:11], s26 offen ; @skip
        s_waitcnt vmcnt(0)
        LF_now2t:
        """)
    k.stamp('w1iss')
    k("s_cmp_eq_u32 s21, 0\ns_cbranch_scc0 LF_m2")
    poll_addr(k, S2_OFF, 13)
    k(f"global_load_dword v12, v13, {P(pWS)} sc1")
    wait_flags(k, 's2', 12, 13, 16, 0)
    k("LF_m2:\ns_barrier")
    k.stamp('s2')
    k("AUTO")
    def xdma(i): return f"global_load_lds_dwordx4 v3, {P(pWS)} {SC} ; @w:X{i // 4}" + ("\ns_add_u32 m0, m0, 4096\nv_add_u32 v3, 0x20000, v3" if i < 19 else "")
    XI = int(opts.get('xi', 8))
    for i in range(XI): k(xdma(i))
    xq = [xdma(i) for i in range(XI, 20)]
    for p in range(3):
        for i in range(4): k(f"v_mul_f32 v{V12+8*p+4+i}, {LOG2E + 0x80000000}, v{V12+8*p+4+i}")
    k("s_barrier ; @r:X0")
    k.stamp('x0')
    for r in breads(0, 0) + breads(1, 1): k(r)
    LA0, LA1, LA2 = (int(x) for x in opts.get('la', '3,2,0').split(','))
    for ks in range(20):
        if ks % 4 == 2 and ks < 18: k(f"s_barrier ; @r:X{ks // 4 + 1}")
        rs = breads(ks + 2, ks + 2) if ks + 2 < 20 else []
        lds = []
        for _ in range(LA0 if ks < 6 else LA1 + (ks & 1) * LA2):
            dx = 4 * ((20 - len(xq)) // 4) - 2 if xq else 99
            dw = ld.n1 // 2 if ld.n1 < 40 else 98
            t = xq.pop(0) if xq and dx <= dw else ld.next(2 * ks)
            if t: lds.append(t)
        b = BF + 16 * (ks % NBF)
        ms = [mf(ACA + 16 * p + 4 * s, A4(4 * (2 * ks + p)), V4(b + 4 * s), ks == 0) for s in range(4) for p in range(2)]
        ms = [mf(SQ, V4(b), V4(b), ks == 0), mf(SM, V4(ONES), V4(b), ks == 0)] + ms
        for i, m in enumerate(ms):
            k(m)
            if i >= 2 and rs: k(rs.pop(0))
            elif lds: k(lds.pop(0))
        for t in lds: k(t)
    k.stamp('passA')
    stat = f"""v_cndmask_b32 v13, v{SQ}, v{SQ+1}, s[84:85]
    v_mul_f32 v12, {f2u(1/640)}, v{SM}
    v_cndmask_b32 v13, v13, v{SQ+2}, s[86:87]
    v_cndmask_b32 v13, v13, v{SQ+3}, s[88:89]
    v_mul_f32 v13, {f2u(1/640)}, v13
    {rstd_chain(12, 13)}
    v_mul_f32 v13, {LOG2E + 0x80000000}, v13"""
    stat = [l.strip() for l in stat.split('\n')]
    stat += [f"s_mov_b64 exec, s[90:91]\nds_write_b64 v9, v[12:13]\ns_mov_b64 exec, -1", "s_waitcnt lgkmcnt(0)\ns_barrier"]
    stat += [f"v_xor_b32 v13, {128*s}, v9\nds_read_b64 v[{ST+2*s}:{ST+2*s+1}], v13" for s in range(4)]
    NB = int(opts.get('nb', 1))
    def passB(n, rsq, fill):
        ks = BORD[n]; b = BF + 16 * ((14 + n) % NBF)
        t = [x for x in [ld.next(40 + n) for _ in range(NB)] if x]
        for s in range(4):
            k(mf(ACB + 4 * s, A4(4 * (40 + ks)), V4(b + 4 * s), n == 0))
            for _ in range(2):
                if fill: k(fill.pop(0))
                elif rsq: k(rsq.pop(0))
            if t and s & 1: k(t.pop(0))
    for n in range(4): passB(n, [], stat)
    for t in stat: k(t)
    rq = breads(BORD[6], 14 + 6) + breads(BORD[7], 14 + 7)
    passB(4, rq, []); passB(5, rq, [])
    k.stamp('stats')
    NE = int(opts.get('ne', 10))
    sprinkle(k, epilogue(ACA, 0, PKD, 4) + epilogue(ACA + 16, 1, PKD + 2, 4), [ld.next(46) for _ in range(NE)])
    for s in range(4): k(f"buffer_store_dwordx4 {V4(PKD+4*s)}, v{vL16}, s[12:15], s{72+s} offen {SC} ; @w:HP")
    k.stamp('pairst')
    for n in range(6, 20): passB(n, breads(BORD[n + 2], 14 + n + 2) if n + 2 < 20 else [], [])
    k.stamp('passB')
    k(f"""
    v_mov_b32 v14, 1
    v_mov_b32 v15, 2
    s_mov_b64 exec, 1 ; @r:HP
    global_store_dword v10, v14, {P(pWS)} sc1
    s_mov_b64 exec, -1
    """)
    k.stamp('pub1')
    ep = epilogue(ACB, 2, PKD, 2)
    PP = int(opts.get('pp', 56))
    sprinkle(k, ep[:PP], [ld.next(60) for _ in range(int(opts.get('ns', 8)))])
    k(f"global_load_dword v12, v11, {P(pWS)} sc1")
    for t in ep[PP:]: k(t)
    for s in range(4): k(f"v_add_u32 v13, s{80+s}, v245\nds_write_b64 v13, v[{PKD+2*s}:{PKD+2*s+1}]")
    k(f"""
    v_add_u32 v22, s80, v244
    v_add_u32 v23, s82, v244
    s_waitcnt lgkmcnt(0)
    s_barrier
    ds_read_b128 v[244:247], v22
    ds_read_b128 v[248:251], v23
    """)
    k.stamp('h1a')
    HSS = f"buffer_store_dwordx4 v[244:247], v{vL16}, s[12:15], s76 offen {SC} ; @w:HS\nbuffer_store_dwordx4 v[248:251], v{vL16}, s[12:15], s77 offen {SC} ; @w:HS"
    if not int(opts.get('ah0', 0)): k(HSS)
    wait_flags(k, 'h1', 12, 11, 1, None)
    k.stamp('h1')
    def hload(i, slots=range(4)):
        r = HR + 16 * (i % NRK)
        return [(f"s_add_u32 s79, s78, {KSEQ[i] * 4096}\n" if s == slots[0] else "") + f"buffer_load_dwordx4 {V4(r+4*s)}, v{HA+s}, s[12:15], s79 offen {SC}" for s in slots]
    def g2(i, s): return [mf(AC2 + 20 * s + 4 * dt, A4(4 * W2SLOT[5 * i + dt]), V4(HR + 16 * (i % NRK) + 4 * s), i == 0) for dt in range(5)]
    AH = int(opts.get('ahead', 3)); AH0 = int(opts.get('ah0', 0))
    for i in range(AH0):
        for t in hload(i): k(t)
    if AH0: k(HSS)
    k.stamp('singst')
    for i in range(AH0, AH):
        for t in hload(i): k(t)
    PI = int(opts.get('pi', 3))
    for i in range(8):
        q = hload(i + AH) if i + AH < 8 else []
        while ld.n2 < min(60, 5 * i + 15): k(ld.w2())
        for _ in range(-(-(60 - ld.n2) // (8 - i))): q.append(ld.w2())
        if i == AH0: k(f"s_mov_b64 exec, 1 ; @r:HS\nglobal_store_dword v10, v15, {P(pWS)} sc1\ns_mov_b64 exec, -1")
        if i == PI: q.append(f"global_load_dword v12, v11, {P(pWS)} sc1")
        if i in (1, 2, 4): k.stamp(f'g2_{i}')
        if i == PI + 2:
            k.stamp('h2a')
            wait_flags(k, 'h2', 12, 11, 2, None)
            k.stamp('h2b')
            late = [hload(i2, [s])[0] for s in (1, 2, 3, 0) for i2 in range(8, 12)]
        if i >= PI + 2:
            nl = -(-len(late) // (8 - i)); q += late[:nl]; late = late[nl:]
        for s in range(4):
            for n, m in enumerate(g2(i, s)):
                k(m)
                if q and n in (0, 2, 4): k(q.pop(0))
        for t in q: k(t)
    k.stamp('g2a')
    tail_addr = f"""
    s_lshl_b32 s26, s21, 1
    v_lshrrev_b32 v14, 4, v1
    v_bfe_u32 v15, v1, 2, 2
    v_lshl_add_u32 v15, v14, 2, v15
    v_and_b32 v16, 6, v15
    v_xor_b32 v16, s26, v16
    v_bfe_u32 v17, v1, 1, 1
    v_add_u32 v16, v16, v17
    v_lshlrev_b32 v16, 4, v16
    v_lshl_add_u32 v16, v15, 7, v16
    v_and_b32 v17, 1, v1
    v_lshl_add_u32 v16, v17, 3, v16
    s_mul_i32 s26, s23, {80*128}
    v_add_u32 v16, s26, v16
    s_mul_i32 s74, s21, 15360
    s_add_u32 s74, s74, {RED}
    v_and_b32 v17, 15, v1
    v_mul_u32_u24 v17, 176, v17
    v_lshl_add_u32 v17, v14, 3, v17
    v_add_u32 v17, s74, v17
    v_add_u32 v18, s74, v{vL16}
    s_mul_i32 s26, s21, 320
    s_add_u32 s26, s26, {GBL}
    v_lshl_add_u32 v22, v14, 4, s26
    s_lshr_b32 s26, s22, 3
    s_lshl_b32 s26, s26, 9
    s_and_b32 s27, s22, 1
    s_lshl_b32 s27, s27, 7
    s_add_u32 s26, s26, s27
    s_bfe_u32 s27, s22, 0x20001
    s_lshl_b32 s27, s27, 2
    s_add_u32 s26, s26, s27
    s_lshl_b32 s27, s21, 5
    s_add_u32 s26, s26, s27
    s_mul_i32 s26, s26, 1280
    s_mul_i32 s27, s23, 160
    s_add_u32 s75, s26, s27
    """
    first = ""
    for s in range(1, 4): first += f"s_xor_b32 s26, s21, {s}\ns_mul_i32 s26, s26, 15360\ns_add_u32 s26, s26, {RED + 5120*(s-1)}\nv_add_u32 v{4+s}, s26, v{vL16}\n"
    for i in range(3):
        tail_addr += f"""
        v_add_u32 v12, {64*i}, v1
        v_mul_u32_u24 v13, 6554, v12
        v_lshrrev_b32 v13, 16, v13
        v_mul_u32_u24 v14, 10, v13
        v_sub_u32 v12, v12, v14
        v_mul_u32_u24 v14, 176, v13
        v_lshl_add_u32 v14, v12, 4, v14
        v_add_u32 v{19+i}, s74, v14
        v_bfe_u32 v14, v13, 2, 1
        v_lshlrev_b32 v14, 8, v14
        v_bfe_u32 v15, v13, 3, 1
        v_lshl_add_u32 v14, v15, 4, v14
        v_and_b32 v15, 3, v13
        v_add_u32 v14, v14, v15
        v_mul_u32_u24 v14, 1280, v14
        v_lshl_add_u32 v{9+i}, v12, 4, v14
        """
    tail_addr += "v_lshrrev_b32 v13, 5, v1\nv_lshlrev_b32 v13, 30, v13\nv_add_u32 v11, v11, v13\n"
    U = HR + 64
    tail_addr += "".join(f"ds_read_b64_tr_b16 v[{U+24+2*dt}:{U+25+2*dt}], v16 offset:{2048*dt}\n" for dt in range(5))
    tail_addr += "".join(f"ds_read_b128 {V4(GB+4*dt)}, v22 offset:{64*dt}\n" for dt in range(5))
    tail_addr += "".join(f"v_lshlrev_b32 v{U+4*dt+2*h}, 16, v{U+24+2*dt+h}\nv_and_b32 v{U+4*dt+2*h+1}, 0xffff0000, v{U+24+2*dt+h}\n" for dt in range(5) for h in range(2))
    fill = [l.strip() for l in (first + tail_addr).split('\n') if l.strip()]
    pend = []
    for s in (1, 2, 3, 0):
        for i in range(8, 12):
            for m in g2(i, s):
                k(m)
                if pend and pend[0][0] <= 0: k(pend.pop(0)[1])
                else:
                    for _ in range(2):
                        if fill: k(fill.pop(0))
                pend = [(a - 1, t) for a, t in pend]
        assert not pend
        if s: pend = [(3 + 3 * dt, f"ds_write_b128 v{4+s}, {V4(AC2+20*s+4*dt)} offset:{1024*dt}") for dt in range(5)]
    for t in fill: k(t)
    k.stamp('g2b')
    k("s_waitcnt lgkmcnt(0)\ns_barrier")
    R0 = 44
    for dt in range(5):
        for s in range(3): k(f"ds_read_b128 {V4(R0+20*s+4*dt)}, v18 offset:{5120*s + 1024*dt}")
    for dt in range(5):
        for h in range(2):
            q = 2 * dt + h
            k(f"v_pk_add_f32 v[{AC2+2*q}:{AC2+2*q+1}], v[{AC2+2*q}:{AC2+2*q+1}], v[{R0+2*q}:{R0+2*q+1}]")
            k(f"v_pk_add_f32 v[{R0+20+2*q}:{R0+21+2*q}], v[{R0+20+2*q}:{R0+21+2*q}], v[{R0+40+2*q}:{R0+41+2*q}]")
        for h in range(2):
            q = 2 * dt + h
            k(f"v_pk_add_f32 v[{AC2+2*q}:{AC2+2*q+1}], v[{AC2+2*q}:{AC2+2*q+1}], v[{R0+20+2*q}:{R0+21+2*q}]")
        for h in range(2):
            q = 2 * dt + h
            k(f"v_pk_fma_f32 v[{AC2+2*q}:{AC2+2*q+1}], v[{AC2+2*q}:{AC2+2*q+1}], v[{GB+2*q}:{GB+2*q+1}], v[{U+2*q}:{U+2*q+1}]")
        k(f"v_cvt_pk_bf16_f32 v{HR+2*dt}, v{AC2+4*dt}, v{AC2+4*dt+1}\nv_cvt_pk_bf16_f32 v{HR+2*dt+1}, v{AC2+4*dt+2}, v{AC2+4*dt+3}")
    for dt in range(5): k(f"ds_write_b64 v17, v[{HR+2*dt}:{HR+2*dt+1}] offset:{32*dt}")
    for i in range(3): k(f"ds_read_b128 {V4(R0+4*i)}, v{19+i}")
    for i in range(3): k(f"buffer_store_dwordx4 {V4(R0+4*i)}, v{9+i}, s[16:19], s75 offen")
    k("MANUAL")

def gen_F(opts={}):
    SPINS.clear()
    k = Asm('F')
    k(f"s_cmp_ge_u32 s2, {F_GRID}\ns_cbranch_scc1 LF_end")
    k.stamp('start')
    prologue(k, opts)
    mlp_setup(k, opts)
    conv_setup(k)
    kgen(k, opts)
    conv(k, opts)
    k("s_branch LF_mlp")
    conv_mod(k)
    k("LF_side:")
    side_a(k)
    side(k)
    lane_consts(k)
    mlp_setup(k, opts)
    k("s_mov_b32 s6, 0")
    k("LF_mlp:")
    mlp(k, opts)
    k.end(0)
    k("LF_end:\ns_endpgm")
    for s in SPINS: k(s)
    k("LF_codeend:")
    return k.finish()

if __name__ == '__main__':
    print(gen_F())
```

```python
from asmlib import *
from layoutF import *

F_GRID = 256
NCONV = 160
LNS = 1600
STATP = 12800
MODB = 13312
KT = 33792; KTS = 18432
TAPS = 107520; TCS = 2112; TAPCH = 4 * TCS
STG = TAPS + 4 * TAPCH; STGS = 2112
F_LDS = 149760
OH = 480
UD = 3088
O3 = 4576 + 16; O5 = O3 + UD; O7 = O5 + UD; O9 = O7 + UD
CHS = (O9 + 2048 + 127) // 128 * 128 + 16
OU = 4 * CHS; OS = OU + 16384
W1R = 102400; W2R = W1R + 20480; VRED = W2R + 20480
RED = 81920; STAT = RED + 61440; GBL = STAT + 512
assert OS + 16384 <= TAPS and STG + 4 * STGS <= F_LDS and GBL + 1280 <= F_LDS
pU, pAR, pAI, pBR, pBI, pCR, pCI, pLD, pDS, pW1, pW2, pC, pWM, pOUT, pDBG, pWS = 36, 38, 40, 42, 44, 46, 48, 50, 52, 56, 58, 60, 62, 64, 66, 68
def P(p): return f"s[{p}:{p+1}]"
SC = 'sc1'
vL16 = 8
BAND = 210
vRD, vDA, vDB, vD3, vRU, vWU, vWH, vNO, vUO, vMO, vTA, vT2, vT3, vBP = range(230, 244)
vVA, vF1D, vF1A = 244, 250, 251
vSA = 252
vKW, vKR, vPD, vPA, vPT = 120, 121, 122, 123, 133
KACC = 104; SCT = 124; PRM = 134
CDAT = 156; LA = 158; MFR = 164; NR = 184

def srd(k, r, base, off, size):
    k(f"s_add_u32 s{r}, s{base}, {off}\ns_addc_u32 s{r+1}, s{base+1}, 0\ns_mov_b32 s{r+2}, {size}\ns_mov_b32 s{r+3}, 0x20000")
def mf(acc, a, b, first):
    c = '0' if first else f'v[{acc}:{acc+3}]'
    return f"v_mfma_f32_16x16x32_bf16 v[{acc}:{acc+3}], {a}, {b}, {c}"
V4 = lambda r: f"v[{r}:{r+3}]"
A4 = lambda r: f"a[{r}:{r+3}]"

SPINS = []
def wait_flags(k, tag, vdata, vaddr, target, nwait):
    if nwait is not None: k(f"s_waitcnt vmcnt({nwait})")
    k(f"v_cmp_gt_u32 vcc, {target}, v{vdata}\ns_cbranch_vccnz LF_spin{tag}\nLF_go{tag}:")
    SPINS.append(f"""
    LF_spin{tag}:
    s_mov_b32 s30, 40000
    LF_spinl{tag}:
    global_load_dword v{vdata}, v{vaddr}, {P(pDBG if tag.startswith('init') else pWS)} sc1
    s_waitcnt vmcnt(0)
    v_cmp_gt_u32 vcc, {target}, v{vdata}
    s_cbranch_vccz LF_go{tag}
    s_sleep 2
    s_sub_u32 s30, s30, 1
    s_cmp_lg_u32 s30, 0
    s_cbranch_scc1 LF_spinl{tag}
    s_branch LF_go{tag}
    """)

def arrive(k, off, va, vb):
    k(f"""
    s_bfe_u32 s26, s2, 0x40003
    s_lshl_b32 s26, s26, 7
    s_add_u32 s26, s26, {WS_SYNC + off}
    v_lshl_add_u32 v{va}, v1, 11, s26
    v_mov_b32 v{vb}, 1
    s_mov_b64 exec, 0xff
    global_atomic_add v{va}, v{vb}, {P(pWS)} sc1
    s_mov_b64 exec, -1
    """)

def poll_addr(k, off, va):
    lo = 0
    k(f"""
    s_and_b32 s26, s2, 7
    s_lshl_b32 s26, s26, 11
    s_add_u32 s26, s26, {WS_SYNC + off + 128 * lo}
    v_min_u32 v{va}, {15 - lo}, v1
    v_lshl_add_u32 v{va}, v{va}, 7, s26
    """)

def rstd_chain(m, q, r=None):
    return f"""v_fma_f32 v{q}, -v{m}, v{m}, v{q}
    v_max_f32 v{q}, 0, v{q}
    v_cvt_pk_bf16_f32 v{q}, v{q}, v{m}
    v_and_b32 v{m}, 0xffff0000, v{q}
    v_lshlrev_b32 v{q}, 16, v{q}
    v_add_f32 v{q}, {f2u(1e-5)}, v{q}
    v_cvt_pk_bf16_f32 v{q}, v{q}, v{q}
    v_lshlrev_b32 v{q}, 16, v{q}
    v_sqrt_f32 v{q}, v{q}
    v_cvt_pk_bf16_f32 v{q}, v{q}, v{q}
    v_lshlrev_b32 v{q}, 16, v{q}
    v_rcp_f32 v{r or q}, v{q}"""

JOBS = 12800
def prologue(k, opts):
    k(f"""
    s_load_dwordx16 s[36:51], s[0:1], 0
    s_load_dwordx2 s[52:53], s[0:1], 64
    s_load_dwordx4 s[60:63], s[0:1], 96
    s_load_dwordx2 s[68:69], s[0:1], 128
    s_load_dwordx4 s[56:59], s[0:1], 80
    s_load_dwordx4 s[64:67], s[0:1], 112
    v_lshrrev_b32 v1, 6, v0
    v_readfirstlane_b32 s21, v1
    v_and_b32 v1, 63, v0
    """)
    if int(opts.get('cpf', 1)):
        k(f"""
        s_getpc_b64 s[24:25]
        LF_pc:
        s_lshr_b32 s26, s2, 3
        s_lshl_b32 s26, s26, 2
        s_add_u32 s26, s26, s21
        s_mul_i32 s26, s26, 384
        s_min_u32 s26, s26, LF_codeend-LF_pc-384
        s_add_u32 s24, s24, s26
        s_addc_u32 s25, s25, 0
        v_min_u32 v2, 2, v1
        v_lshlrev_b32 v2, 7, v2
        v_mov_b32 v3, s25
        v_add_co_u32 v2, vcc, s24, v2
        v_addc_co_u32 v3, vcc, 0, v3, vcc
        global_load_dword v254, v[2:3], off ; @nocheck
        """)
    k(f"""
    v_lshlrev_b32 v{vL16}, 4, v1
    s_cmp_lt_u32 s2, {NCONV}
    s_cbranch_scc0 LF_side
    s_lshl_b32 s20, s2, 2
    s_add_u32 s20, s20, s21               ; channel d
    s_mul_i32 s29, s20, 384
    v_lshl_add_u32 v10, v1, 1, s29
    s_lshl_b32 s29, s20, 1
    v_mov_b32 v11, s29
    v_mov_b32 v{vPA}, 0
    """)
    for i in list(range(19)) + [20]: k(f"v_mov_b32 v{PRM+i}, 0")
    k(f"""
    s_mul_hi_u32 s25, s2, {(1 << 32) // 60 + 1}       ; kq
    s_mul_i32 s26, s25, 60
    s_sub_u32 s26, s2, s26
    s_mul_i32 s27, s25, 320
    v_lshl_add_u32 v6, v1, 2, s27
    v_and_b32 v7, 15, v1
    v_lshl_add_u32 v7, v7, 2, s27
    s_waitcnt lgkmcnt(0)
    global_load_dword v{CDAT}, v6, {P(pC)}
    global_load_dword v{CDAT+1}, v7, {P(pC)} offset:256
    global_load_short_d16_hi v{PRM+18}, v11, {P(pLD)}""")
    for p in range(3):
        for i, ptr in enumerate((pAR, pAI, pBR, pBI, pCR, pCI)):
            k(f"global_load_short_d16_hi v{PRM+6*p+i}, v10, {P(ptr)} offset:{128*p}")
    k(f"global_load_short_d16_hi v{PRM+20}, v11, {P(pDS)}")
    lane_consts(k)
    if int(opts.get('tlb', 0)):
        k(f"""
        s_cmp_eq_u32 s21, 1
        s_cbranch_scc0 LF_notlb
        v_min_u32 v2, 11, v1
        v_lshlrev_b32 v2, 21, v2
        v_and_b32 v3, 1, v1
        v_lshlrev_b32 v3, 21, v3
        global_load_dword v253, v2, {P(pWS)} ; @skip
        global_load_dword v253, v3, {P(pOUT)} ; @skip
        s_waitcnt vmcnt(0)
        LF_notlb:
        """)
    k(f"""
    v_lshrrev_b32 v4, 3, v1
    v_and_b32 v5, 7, v1
    v_mul_u32_u24 v3, 7680, v4
    v_lshl_add_u32 v3, v5, 4, v3
    s_mul_i32 s27, s25, 160
    s_mul_i32 s28, s21, 40
    s_add_u32 s28, s28, s27
    s_mul_i32 s28, s28, 7680
    s_lshl_b32 s29, s26, 7
    s_add_u32 s28, s28, s29
    v_add_u32 v3, s28, v3
    s_mul_i32 s29, s21, 5120
    s_add_u32 m0, s29, {MODB}
    s_mul_i32 s25, s25, 15360
    """)
    if not int(opts.get('modlate', 1)): mod_dma(k, 3)
    else: k(f"v_mov_b32 v{LA+5}, v3")
    k(f"""
    s_lshl_b32 s26, s26, 8
    s_add_u32 s25, s25, s26
    s_lshl_b32 s26, s21, 6
    s_add_u32 s25, s25, s26
    v_lshl_add_u32 v{LA}, v1, 2, s25
    v_lshl_add_u32 v7, v12, 3, v11
    v_lshlrev_b32 v7, 7, v7
    v_lshl_add_u32 v7, v10, 3, v7
    s_lshl_b32 s27, s21, 5
    s_add_u32 s27, s27, {MODB}
    v_add_u32 v{LA+1}, s27, v7
    s_mul_i32 s27, s21, 320
    v_lshl_add_u32 v{LA+2}, v1, 2, s27
    v_lshl_add_u32 v{LA+3}, v13, 2, s27
    v_lshl_add_u32 v{LA+4}, v12, 4, s27
    """)

def silu_frags(k, c0, vbp, dst=24):
    k(f"""
    s_mov_b32 s24, {LOG2E + 0x80000000}
    v_lshlrev_b32 v16, 16, v{c0}
    v_and_b32 v17, 0xffff0000, v{c0}
    v_lshlrev_b32 v18, 16, v{c0+1}
    v_and_b32 v19, 0xffff0000, v{c0+1}
    """)
    for i in range(4): k(f"v_mul_f32 v{20+i}, s24, v{16+i}")
    for i in range(4): k(f"v_exp_f32 v{20+i}, v{20+i}")
    for i in range(4): k(f"v_add_f32 v{20+i}, 1.0, v{20+i}")
    for i in range(4): k(f"v_rcp_f32 v{20+i}, v{20+i}")
    for i in range(4): k(f"v_mul_f32 v{16+i}, v{16+i}, v{20+i}")
    k(f"v_cvt_pk_bf16_f32 v16, v16, v17\nv_cvt_pk_bf16_f32 v17, v18, v19")
    k(f"ds_write_b32 v{vbp}, v16\nds_write_b32 v{vbp+1}, v17 offset:256")
    for ks in range(5): k(f"ds_read_b128 {V4(dst+4*ks)}, v{vbp+2} offset:{64*ks}")

def conv_mod(k):
    k("LF_cmod:\ns_waitcnt vmcnt(0) lgkmcnt(0)\ns_barrier\nAUTO")
    for ks in range(5):
        for h in range(2): k(f"ds_read_b64_tr_b16 v[{60+4*ks+2*h}:{61+4*ks+2*h}], v{LA+1} offset:{4096*ks + 512*h}")
    for ks in range(5): k(mf(16, V4(MFR + 4 * ks), V4(60 + 4 * ks), ks == 0))
    k(f"""MANUAL
    s_mov_b64 exec, 0xffff
    global_store_dword v{LA}, v16, {P(pWS)} {SC}
    s_mov_b64 exec, -1
    global_load_dword v{vPD}, v{vPA}, {P(pDBG)} sc1 ; @nocheck
    """)
    k.stamp('modst')
    k("s_branch LF_kpass")

def mod_dma(k, v):
    for i in range(5):
        k(f"global_load_lds_dwordx4 v{v}, {P(pWM)}")
        if i < 4: k(f"s_add_u32 m0, m0, 1024\nv_add_u32 v{v}, {8*7680}, v{v}")

def lane_consts(k):
    k("""
    v_bfe_u32 v11, v1, 2, 2               ; r
    v_lshrrev_b32 v12, 4, v1              ; G
    v_and_b32 v10, 3, v1                  ; cc / j
    v_and_b32 v13, 15, v1                 ; a / i
    """)

def side_mod(k):
    k(f"""
    s_mul_hi_u32 s25, s2, {(1 << 32) // 60 + 1}       ; kq
    s_mul_i32 s26, s25, 60
    s_sub_u32 s26, s2, s26
    s_mul_i32 s27, s25, 320
    v_lshl_add_u32 v15, v1, 2, s27
    v_lshl_add_u32 v16, v13, 2, s27
    global_load_dword v150, v15, {P(pC)}
    global_load_dword v151, v16, {P(pC)} offset:256
    v_lshrrev_b32 v4, 3, v1
    v_and_b32 v5, 7, v1
    v_mul_u32_u24 v4, 7680, v4
    v_lshl_add_u32 v4, v5, 4, v4
    s_mul_i32 s27, s25, {160*7680}
    s_lshl_b32 s28, s26, 7
    s_add_u32 s27, s27, s28
    v_add_u32 v14, s27, v4
    s_mov_b32 m0, s33
    s_mul_i32 s25, s25, 15360
    s_lshl_b32 s26, s26, 8
    s_add_u32 s25, s25, s26
    v_lshl_add_u32 v152, v13, 2, s25
    """)
    for i in range(20):
        k(f"global_load_lds_dwordx4 v14, {P(pWM)}")
        if i < 19: k(f"s_add_u32 m0, m0, 1024\nv_add_u32 v14, {8*7680}, v14")
    k(f"""
    v_lshl_add_u32 v5, v12, 3, v11
    v_lshlrev_b32 v5, 7, v5
    v_lshl_add_u32 v5, v10, 3, v5
    v_add_u32 v5, s33, v5
    s_add_u32 s27, s33, 20480
    v_lshl_add_u32 v158, v1, 2, s27
    v_lshl_add_u32 v159, v13, 2, s27
    v_lshl_add_u32 v160, v12, 4, s27
    s_waitcnt vmcnt(20)
    """)
    silu_frags(k, 150, 158)
    k("AUTO")
    for ks in range(5):
        k(f"s_waitcnt vmcnt({16 - 4*ks})")
        for ct in range(4):
            for h in range(2): k(f"ds_read_b64_tr_b16 v[{60+16*(ks&1)+4*ct+2*h}:{61+16*(ks&1)+4*ct+2*h}], v5 offset:{4096*ks + 512*h + 32*ct}")
        for ct in range(4): k(mf(44 + 4 * ct, V4(24 + 4 * ks), V4(60 + 16 * (ks & 1) + 4 * ct), ks == 0))
    k("MANUAL\ns_mov_b64 exec, 0xffff")
    for ct in range(4): k(f"global_store_dword v152, v{44+4*ct}, {P(pWS)} offset:{64*ct} {SC}")
    k("s_mov_b64 exec, -1")

def side_a(k):
    UD_ = 100
    k(f"""
    s_sub_u32 s20, s2, {NCONV}
    s_mul_i32 s33, s21, {2*JOBS}
    s_add_u32 s34, s33, {JOBS}
    """)
    lane_consts(k)
    k(f"""
    s_mul_i32 s31, s21, 96
    s_add_u32 s31, s31, s20
    s_cmp_lt_u32 s31, 256
    s_waitcnt lgkmcnt(0)
    s_cbranch_scc0 LF_sa_mod
    v_lshrrev_b32 v2, 3, v1
    v_and_b32 v3, 7, v1
    v_lshlrev_b32 v3, 4, v3
    v_mul_u32_u24 v7, 1280, v2
    v_add_u32 v7, v7, v3
    s_mul_i32 s24, s31, 10240
    v_add_u32 v7, s24, v7
    """)
    for q in range(10): k(f"global_load_dwordx4 {V4(UD_+4*q)}, v7, {P(pU)} offset:{128*q}")
    k(f"""
    v_mul_u32_u24 v7, {LNS - 256}, v2
    v_add3_u32 v7, v7, v3, s33
    v_mul_u32_u24 v9, {LNS - 256}, v11
    v_lshl_add_u32 v9, v12, 5, v9
    v_lshl_add_u32 v9, v10, 3, v9
    v_add_u32 v9, s33, v9
    v_lshrrev_b32 v2, 2, v1
    v_lshlrev_b32 v2, 14, v2
    v_lshl_add_u32 v2, v10, 4, v2
    s_lshl_b32 s24, s31, 6
    s_add_u32 s24, s24, {WS_NT}
    v_add_u32 v2, s24, v2
    s_lshr_b32 s24, s31, 5
    s_lshl_b32 s24, s24, 11
    s_bfe_u32 s25, s31, 0x40001
    s_lshl_b32 s25, s25, 4
    s_add_u32 s24, s24, s25
    s_and_b32 s25, s31, 1
    s_lshl_b32 s25, s25, 9
    s_add_u32 s24, s24, s25
    s_add_u32 s24, s24, {WS_ST}
    v_lshrrev_b32 v3, 5, v1
    v_lshlrev_b32 v3, 8, v3
    v_bfe_u32 v14, v1, 4, 1
    v_lshl_add_u32 v3, v14, 10, v3
    v_bfe_u32 v14, v1, 3, 1
    v_lshl_add_u32 v3, v14, 3, v3
    v_add_u32 v3, s24, v3
    s_mov_b32 s24, 0x3f803f80
    v_mov_b32 v140, 0
    v_mov_b32 v141, 0
    v_mov_b32 v142, 0
    v_mov_b32 v143, 0
    """)
    for q in range(10):
        k(f"s_waitcnt vmcnt({9 - q})")
        if q == 0: k.stamp('u0')
        k(f"ds_write_b128 v7, {V4(UD_+4*q)} offset:{128*q}")
        for i in range(4):
            r = UD_ + 4 * q + i
            k(f"v_dot2c_f32_bf16 v{140 + 2*(i&1)}, s24, v{r}\nv_dot2c_f32_bf16 v{141 + 2*(i&1)}, v{r}, v{r}")
    k(f"""
    v_pk_add_f32 v[140:141], v[140:141], v[142:143]
    v_add_f32_dpp v140, v140, v140 quad_perm:[1,0,3,2] row_mask:0xf bank_mask:0xf
    v_add_f32_dpp v141, v141, v141 quad_perm:[1,0,3,2] row_mask:0xf bank_mask:0xf
    v_add_f32_dpp v140, v140, v140 quad_perm:[2,3,0,1] row_mask:0xf bank_mask:0xf
    v_add_f32_dpp v141, v141, v141 quad_perm:[2,3,0,1] row_mask:0xf bank_mask:0xf
    v_add_f32_dpp v140, v140, v140 row_half_mirror row_mask:0xf bank_mask:0xf
    v_add_f32_dpp v141, v141, v141 row_half_mirror row_mask:0xf bank_mask:0xf
    v_mul_f32 v140, {f2u(1/640)}, v140
    v_mul_f32 v141, {f2u(1/640)}, v141
    AUTO
    """)
    for ch in range(10):
        k(f"ds_read_b64_tr_b16 v[{UD_+4*ch}:{UD_+4*ch+1}], v9 offset:{128*ch}\nds_read_b64_tr_b16 v[{UD_+4*ch+2}:{UD_+4*ch+3}], v9 offset:{128*ch + 4*(LNS - 256)}")
        if ch == 4: k(rstd_chain(140, 141, 144) + f"\nv_mov_b32 v142, v141\nv_mov_b32 v143, v140\nv_mul_f32 v140, v140, v144\ns_mov_b32 exec_lo, 0x01010101\ns_mov_b32 exec_hi, 0x01010101\nglobal_store_dwordx2 v3, v[142:143], {P(pWS)} {SC}\ns_mov_b64 exec, -1")
    for r in range(8): k(f"v_readlane_b32 s{70+r}, v144, {8*r}")
    for r in range(8): k(f"v_readlane_b32 s{78+r}, v140, {8*r}")
    for r in range(8): k(f"v_mov_b32 v{16+r}, s{78+r}")
    for ch in range(10):
        b = UD_ + 4 * ch; u = 24 + 12 * (ch % 3)
        for i in range(4): k(f"v_lshlrev_b32 v{u+2*i}, 16, v{b+i}\nv_and_b32 v{u+2*i+1}, 0xffff0000, v{b+i}")
        for i in range(4): k(f"v_pk_fma_f32 v[{u+2*i}:{u+2*i+1}], v[{u+2*i}:{u+2*i+1}], s[{70+2*i}:{71+2*i}], v[{16+2*i}:{17+2*i}] neg_lo:[0,0,1] neg_hi:[0,0,1]")
        for i in range(4): k(f"v_cvt_pk_bf16_f32 v{u+8+i}, v{u+2*i}, v{u+2*i+1}")
        k(f"global_store_dwordx4 v2, {V4(u+8)}, {P(pWS)} {SC}")
        if ch < 9: k("v_add_u32 v2, 0x40000, v2")
    k("MANUAL")
    k.stamp('lnst')
    k(f"""
    s_branch LF_sa_end
    LF_sa_mod:
    s_cmp_lt_u32 s20, 80
    s_cbranch_scc0 LF_init
    s_cmp_eq_u32 s21, 3
    s_cbranch_scc0 LF_sa_end
    """)
    side_mod(k)
    k("LF_sa_end:")
    k(f"v_mov_b32 v{vPA}, 0\nglobal_load_dword v{vPD}, v{vPA}, {P(pDBG)} sc1 ; @nocheck")
    k.stamp('modst')
    SPINS.append(f"""
    LF_init:
    s_sub_u32 s24, s20, 80
    s_lshl_b32 s24, s24, 1
    s_add_u32 s24, s24, s21
    s_sub_u32 s24, s24, 2
    s_lshl_b32 s24, s24, 11
    s_add_u32 s24, s24, {WS_SYNC}
    v_add_u32 v30, s24, v{vL16}
    v_mov_b32 v26, 0
    v_mov_b32 v27, 0
    v_mov_b32 v28, 0
    v_mov_b32 v29, 0
    global_store_dwordx4 v30, v[26:29], {P(pWS)} sc1
    global_store_dwordx4 v30, v[26:29], {P(pWS)} offset:1024 sc1
    v_mov_b32 v31, 1
    s_waitcnt vmcnt(0)
    s_mov_b64 exec, 1
    global_atomic_add v26, v31, {P(pDBG)} sc1
    s_mov_b64 exec, -1
    s_branch LF_sa_end
    """)

def mlp_setup(k, opts):
    if opts.get('arr', '8x4') == '8x4':
        k("""
        s_and_b32 s24, s2, 7
        s_lshr_b32 s25, s2, 3
        s_lshr_b32 s22, s24, 1
        s_lshl_b32 s22, s22, 3
        s_lshr_b32 s26, s25, 2
        s_add_u32 s22, s22, s26               ; rb
        s_and_b32 s23, s24, 1
        s_lshl_b32 s23, s23, 2
        s_and_b32 s26, s25, 3
        s_add_u32 s23, s23, s26               ; j
        """)
    else:
        k("""
        s_and_b32 s22, s2, 7
        s_lshl_b32 s22, s22, 2
        s_lshr_b32 s26, s2, 6
        s_add_u32 s22, s22, s26               ; rb
        s_bfe_u32 s23, s2, 0x30003            ; j
        """)
    k(f"""
    s_mul_i32 s26, s23, 12
    s_mul_i32 s25, s21, 3
    s_add_u32 s25, s26, s25
    s_lshl_b32 s26, s25, 7
    s_add_u32 s26, s26, {WS_SYNC + F1_OFF}
    v_min_u32 v{vF1A}, 2, v1
    v_lshl_add_u32 v{vF1A}, v{vF1A}, 7, s26
    s_lshl_b32 s24, s23, 2
    s_add_u32 s24, s24, s21
    s_mul_i32 s24, s24, 61440
    s_add_u32 s26, s24, {WS_W1F}
    """)
    srd(k, 4, pWS, 's26', 61440)
    k(f"s_add_u32 s26, s24, {WS_W2F}")
    srd(k, 8, pWS, 's26', 61440)
    k(f"s_mul_i32 s26, s22, 196608\ns_add_u32 s26, s26, {WS_H}")
    srd(k, 12, pWS, 's26', 196608)
    srd(k, 16, pOUT, 0, L * D * 2)
    k(f"""
    s_and_b32 s26, s21, 1
    s_add_u32 s25, s25, s26
    s_lshl_b32 s25, s25, 6
    s_add_u32 s25, s25, {WS_V12}
    v_lshl_add_u32 v{vVA}, v12, 4, s25
    s_mul_i32 s26, s26, 192
    s_sub_u32 s26, 128, s26
    v_add_u32 v{vVA+1}, s26, v{vVA}
    v_add_u32 v{vVA+2}, 6144, v{vVA}
    v_add_u32 v{vVA+3}, 6144, v{vVA+1}
    s_mul_i32 s26, s23, 320
    s_add_u32 s26, s26, 12800
    v_lshl_add_u32 v{vVA+4}, v1, 2, s26
    v_lshl_add_u32 v{vVA+5}, v13, 2, s26
    """)

def conv_setup(k):
    k(f"""
    s_mul_i32 s26, s21, {TAPCH}
    s_add_u32 s26, s26, {TAPS}
    v_sub_u32 v14, 3, v11
    v_mul_u32_u24 v14, {TCS}, v14
    v_lshl_add_u32 v14, v10, 3, v14
    v_add_u32 v14, s26, v14
    v_lshlrev_b32 v15, 4, v12
    v_sub_u32 v15, 48, v15
    v_add_u32 v{vTA}, v14, v15
    v_and_b32 v15, 1, v12                 ; G&1
    v_lshrrev_b32 v9, 1, v12              ; G>>1
    v_lshlrev_b32 v16, 3, v15
    v_sub_u32 v14, v14, v16
    v_add_u32 v14, 8, v14
    v_mul_u32_u24 v16, {2*(B3A - B5A)}, v9
    v_add_u32 v{vT2}, v14, v16
    v_mul_u32_u24 v16, {2*(B9 - B7)}, v9
    v_add_u32 v{vT3}, v14, v16
    s_mul_i32 s27, s21, {CHS}
    v_lshlrev_b32 v14, 5, v13
    v_add_u32 v14, s27, v14
    v_lshl_add_u32 v{vRD}, v12, 4, v14    ; h frag: 32a + 16G
    v_lshl_add_u32 v14, v9, 4, v14
    v_mul_u32_u24 v16, {UD}, v15
    v_add_u32 v{vWU}, v14, v16
    v_lshlrev_b32 v14, 7, v15
    v_lshl_add_u32 v14, v11, 5, v14
    v_lshl_add_u32 v14, v10, 3, v14
    v_add_u32 v14, s27, v14               ; 128(G&1) + 32r + 8cc
    v_mul_u32_u24 v16, {UD - 16}, v9
    v_sub_u32 v17, v14, v16
    v_add_u32 v{vDA}, {O5 - 16}, v17
    v_add_u32 v17, v14, v16
    v_add_u32 v{vD3}, {O7}, v17
    v_lshlrev_b32 v16, 5, v9
    v_sub_u32 v16, 16, v16
    v_add_u32 v{vDB}, v{vDA}, v16
    v_bfe_u32 v16, v1, 1, 2
    v_xor_b32 v16, s21, v16
    v_lshlrev_b32 v16, 4, v16
    v_lshl_add_u32 v16, v13, 7, v16
    v_lshl_add_u32 v16, v15, 6, v16
    v_add_u32 v{vRU}, {OU}, v16
    v_mul_u32_u24 v16, {CHS}, v10
    v_lshrrev_b32 v14, 2, v1
    s_lshl_b32 s28, s21, 4
    v_add_u32 v14, s28, v14               ; segment 0..63
    v_lshl_add_u32 v{vWH}, v14, 6, v16
    v_lshlrev_b32 v14, 8, v14
    v_lshl_add_u32 v14, v10, 4, v14
    s_lshl_b32 s29, s2, 14
    s_add_u32 s28, s29, {WS_NT}
    v_add_u32 v{vNO}, s28, v14
    v_xor_b32 v14, v10, v12
    v_and_b32 v16, 0x3c, v1
    v_lshlrev_b32 v16, 4, v16
    v_lshl_add_u32 v14, v14, 4, v16
    s_lshl_b32 s28, s21, 12
    s_add_u32 s29, s29, s28
    s_add_u32 s28, s29, {WS_NT}
    v_add_u32 v{vUO}, s28, v14
    v_min_u32 v14, 2, v12
    v_mul_u32_u24 v14, 2560, v14
    v_mul_u32_u24 v16, 15360, v11
    v_add_u32 v14, v14, v16
    v_lshl_add_u32 v14, v10, 2, v14
    s_lshl_b32 s29, s2, 4
    v_add_u32 v{vMO}, s29, v14
    v_lshlrev_b32 v{vBP}, 2, v10
    v_add_u32 v{vSA}, {OS}, v{vL16}
    v_lshlrev_b32 v14, 3, v12
    v_sub_u32 v14, v14, v13
    v_add_u32 v14, 15, v14                ; 8G - i + 15
    v_cmp_gt_u32 vcc, 32, v14
    """)
    for fi, (lo, hi_) in enumerate(((0, 0), (11, 13), (6, 10), (5, 11), (4, 12))):
        Wv = ((1 << (hi_ - lo + 1)) - 1) << (lo + 15)
        k(f"v_mov_b32 v16, {Wv}\nv_lshrrev_b32 v16, v14, v16\nv_cndmask_b32 v16, 0, v16, vcc")
        for q in range(4):
            k(f"v_bfe_u32 v17, v16, {2*q}, 1\nv_bfe_u32 v18, v16, {2*q+1}, 1\nv_lshl_or_b32 v17, v18, 16, v17\nv_mul_u32_u24 v{BAND+4*fi+q}, 0x3f80, v17")
    DUM = 2 * 1010
    S = SCT
    k(f"""
    s_mul_i32 s26, s21, {KTS}
    s_add_u32 s26, s26, {KT}
    v_mul_u32_u24 v14, 144, v1
    v_add_u32 v{vKW}, s26, v14
    v_lshrrev_b32 v15, 5, v1              ; hi
    v_lshl_add_u32 v14, v11, 1, v15
    v_mul_u32_u24 v14, 288, v14
    v_bfe_u32 v16, v1, 4, 1
    v_lshl_add_u32 v14, v16, 5, v14
    v_lshl_add_u32 v14, v10, 3, v14
    v_add_u32 v{vKR}, s26, v14
    s_mul_i32 s26, s21, {STGS}
    s_add_u32 s26, s26, {STG}
    v_mov_b32 v24, 0
    v_mov_b32 v25, 0
    v_mov_b32 v26, 0
    v_mov_b32 v27, 0
    v_add_u32 v{S+8}, s26, v{vL16}
    ds_write_b128 v{S+8}, v[24:27]
    ds_write_b128 v{S+8}, v[24:27] offset:1024
    v_mov_b32 v28, s26
    ds_write_b128 v28, v[24:27] offset:2048
    v_and_b32 v34, 1, v1                  ; odd
    v_bfe_u32 v35, v1, 1, 4               ; kappa'
    v_or_b32 v36, v34, v15
    v_mul_u32_u24 v37, 48, v34
    v_mul_u32_u24 v38, 96, v15
    v_add3_u32 v36, v36, v37, v38
    v_add_u32 v36, v36, v35
    v_lshl_add_u32 v{S}, v36, 1, s26
    v_add_u32 v39, {DUM}, v28
    v_add_u32 v36, {2*B5A}, v{S}
    v_cmp_eq_u32 vcc, 0, v35
    v_mul_u32_u24 v37, {B9 - 1 - B7}, v34
    v_lshl_add_u32 v38, v15, 4, v35
    v_cndmask_b32 v{S+1}, v36, v39, vcc
    v_sub_u32 v38, v38, v37
    v_add_u32 v38, {B9}, v38
    v_lshl_add_u32 v{S+2}, v38, 1, s26
    v_add_u32 v37, {2*(BC + 4)}, v28
    v_cmp_eq_u32 vcc, 0, v1
    v_add_u32 v40, {2*(BC + 5)}, v28
    v_add_u32 v41, {2*(B9 + 64)}, v28
    v_cndmask_b32 v{S+3}, v{S+2}, v37, vcc
    v_cndmask_b32 v{S+4}, v39, v40, vcc
    v_cndmask_b32 v{S+5}, v39, v41, vcc
    v_add_u32 v37, {2*(B5A + 32)}, v28
    v_cmp_eq_u32 vcc, 32, v1
    v_and_b32 v38, 31, v1
    v_lshlrev_b32 v38, 4, v38
    v_cndmask_b32 v{S+5}, v{S+5}, v37, vcc
    v_lshl_add_u32 v38, v15, 3, v38
    v_add_u32 v{S+6}, s26, v38            ; 16n + 8hi
    v_and_b32 v37, 30, v1
    v_cmp_eq_u32 vcc, 0, v37
    v_add_u32 v37, {2*1016 - 2*(BA+1+512)}, v28
    v_cndmask_b32 v{S+7}, v37, v{S+6}, vcc
    """)
    for i in range(16): k(f"v_mov_b32 v{KACC+i}, 0")

def cmul(k, z, a, b, t):
    k(f"v_pk_mul_f32 v[{t}:{t+1}], v[{a}:{a+1}], v[{b}:{b+1}] op_sel_hi:[1,0]")
    return f"v_pk_fma_f32 v[{z}:{z+1}], v[{a}:{a+1}], v[{b}:{b+1}], v[{t}:{t+1}] op_sel:[1,1,0] op_sel_hi:[0,1,1] neg_lo:[1,0,0]"
def cmuls(k, lst, tmp):
    for s in [cmul(k, z, a, b, tmp + 2 * i) for i, (z, a, b) in enumerate(lst)]: k(s)

def kgen(k, opts):
    AR, BR, CR, DT, DS = PRM, PRM + 2, PRM + 4, PRM + 18, PRM + 20
    TMP, LR, ACC = 14, 22, KACC
    ML = int(opts.get('modlate', 1))
    k(f"""
    s_mov_b32 s86, {LOG2E}
    s_mov_b32 s87, {INV2PI}
    s_mov_b32 s3, 0
    s_waitcnt vmcnt({20 if ML else 25})
    """)
    silu_frags(k, CDAT, LA + 2, MFR)
    k(f"s_waitcnt vmcnt({0 if ML else 5})")
    if ML: mod_dma(k, LA + 5)
    k(f"""
    v_mul_f32 v14, s86, v{DT}
    v_fma_f32 v15, v{DT}, s86, -v14
    v_fmac_f32 v15, {LOG2E_LO}, v{DT}
    v_exp_f32 v14, v14
    v_mul_f32 v15, {LN2}, v15
    v_fmac_f32 v14, v14, v15
    v_cmp_eq_u32 vcc, 0, v1
    v_cvt_pk_bf16_f32 v14, v14, v14
    v_lshlrev_b32 v{DT}, 16, v14
    v_cndmask_b32 v{ACC}, 0, v{DS}, vcc
    """)
    k.stamp('kparam')
    k(f"""
    LF_kpass:
    v_pk_mul_f32 v[{LR}:{LR+1}], v[{AR}:{AR+1}], v[{DT}:{DT+1}] op_sel_hi:[1,0]
    v_pk_mul_f32 v[{LR}:{LR+1}], v[{LR}:{LR+1}], s[86:87]
    """)
    W = {1: 24, 8: 26, 256: 28, 2: 30, 3: 32, 4: 34, 5: 36, 6: 38, 7: 40, 16: 42, 32: 44, 258: 46, 260: 48, 262: 50, 264: 52, 512: 54}
    Z = [56 + 2 * i for i in range(8)]
    k(f"""
    v_pk_mul_f32 v[20:21], v[{CR}:{CR+1}], v[{BR}:{BR+1}] op_sel_hi:[1,0]
    v_mul_f32 v16, {f2u(8.0)}, v{LR}
    v_mul_f32 v17, {f2u(8.0)}, v{LR+1}
    v_mul_f32 v18, {f2u(256.0)}, v{LR}
    v_mul_f32 v19, {f2u(256.0)}, v{LR+1}
    v_fract_f32 v15, v{LR+1}
    v_fract_f32 v17, v17
    v_fract_f32 v19, v19
    v_exp_f32 v14, v{LR}
    v_exp_f32 v16, v16
    v_exp_f32 v18, v18
    v_pk_fma_f32 v[{Z[0]}:{Z[0]+1}], v[{CR}:{CR+1}], v[{BR}:{BR+1}], v[20:21] op_sel:[1,1,0] op_sel_hi:[0,1,1] neg_lo:[1,0,0]
    """)
    for i, r in enumerate((24, 26, 28)): k(f"v_cos_f32 v{r}, v{15+2*i}\nv_sin_f32 v{r+1}, v{15+2*i}")
    k(f"v_pk_mul_f32 v[{Z[0]}:{Z[0]+1}], v[{Z[0]}:{Z[0]+1}], v[{DT}:{DT+1}] op_sel_hi:[1,0]")
    for i, r in enumerate((24, 26, 28)): k(f"v_pk_mul_f32 v[{r}:{r+1}], v[{r}:{r+1}], v[{14+2*i}:{15+2*i}] op_sel_hi:[1,0]")
    for i in range(6): k(f"v_pk_mov_b32 v[{PRM+2*i}:{PRM+2*i+1}], v[{PRM+6+2*i}:{PRM+7+2*i}], v[{PRM+6+2*i}:{PRM+7+2*i}] op_sel:[0,1]")
    cmuls(k, [(W[2], W[1], W[1]), (W[16], W[8], W[8]), (W[512], W[256], W[256]), (Z[1], Z[0], W[8])], TMP)
    cmuls(k, [(W[3], W[2], W[1]), (W[4], W[2], W[2]), (W[32], W[16], W[16]), (W[258], W[256], W[2])], TMP)
    cmuls(k, [(Z[2], Z[0], W[16]), (Z[3], Z[1], W[16]), (W[5], W[4], W[1]), (W[6], W[4], W[2])], TMP)
    cmuls(k, [(W[7], W[4], W[3]), (W[260], W[256], W[4]), (W[264], W[256], W[8]), (Z[4], Z[0], W[32])], TMP)
    st = {'g': 0}
    NOW = int(opts.get('nokw', 0))
    def half(grp, vals, neg, part):
        pk = 72 + 4 * (st['g'] % 4); st['g'] += 1
        s = '-' if neg and part else ''
        for i in range(4):
            a, b = vals[2 * i], vals[2 * i + 1]
            ra = ('0' if part else '1.0') if a is None else f'{s}v{a+part}'
            k(f"v_cvt_pk_bf16_f32 v{pk+i}, {ra}, {s}v{b+part}")
        if not NOW: k(f"ds_write_b128 v{vKW}, v[{pk}:{pk+3}] offset:{16*grp + 9216*part}")
    def put(grp, vals, neg, between=None):
        half(grp, vals, neg, 0)
        if between: cmuls(k, between, TMP)
        half(grp, vals, neg, 1)
    X = {516: 88, 520: 90, 768: 92, 1024: 94, 772: 96, 1280: 98, 1536: 100, 1792: 102, 2048: W[1]}
    Y = [W[258], W[260], W[262], W[264], W[2], W[3], W[5], W[7]]
    cmuls(k, [(W[262], W[256], W[6]), (Z[5], Z[1], W[32]), (Z[6], Z[2], W[32]), (Z[7], Z[3], W[32])], TMP)
    put(0, [None, W[1], W[2], W[3], W[4], W[5], W[6], W[7]], True, [(X[516], W[512], W[4]), (X[520], W[512], W[8]), (X[768], W[512], W[256]), (X[1024], W[512], W[512])])
    put(1, [W[256], W[256], W[258], W[260], W[260], W[260], W[262], W[264]], True, [(X[772], X[768], W[4]), (X[1280], X[1024], W[256]), (X[1536], X[1024], W[512]), (X[1792], X[1024], X[768])])
    put(4, Z, False, [(Y[0], Z[4], W[32]), (Y[1], Z[5], W[32]), (Y[2], Z[6], W[32]), (Y[3], Z[7], W[32])])
    put(2, [W[512], W[512], W[512], X[516], X[516], X[516], X[520], X[520]], True, [(Y[4], Y[0], W[32]), (Y[5], Y[1], W[32]), (Y[6], Y[2], W[32]), (Y[7], Y[3], W[32])])
    k("s_cmp_eq_u32 s3, 1\ns_cbranch_scc1 LF_arr1\ns_cmp_eq_u32 s3, 2\ns_cbranch_scc1 LF_pol1\nLF_noarr1:")
    SPINS.append(f"LF_pol1:\nglobal_load_dword v{vPD}, v{vPA}, {P(pWS)} sc1\ns_branch LF_noarr1")
    a = Asm('x'); a.names = k.names
    a("LF_arr1:\ns_waitcnt vmcnt(0)")
    wait_flags(a, 'init', vPD, vPA, 32, None)
    a("s_barrier\ns_cmp_eq_u32 s21, 0\ns_cbranch_scc0 LF_arr1b")
    arrive(a, S1_OFF, vPD, vPT)
    a("LF_arr1b:")
    poll_addr(a, S1_OFF, vPA)
    a.stamp('arr1')
    a("s_branch LF_noarr1")
    SPINS.append('\n'.join(a.lines))
    cmuls(k, [(X[2048], X[1024], X[1024]), (Z[0], Y[4], W[32]), (Z[1], Y[5], W[32]), (Z[2], Y[6], W[32])], TMP)
    put(5, Y, False, [(Z[3], Y[7], W[32]), (Z[4], Z[0], W[32]), (Z[5], Z[1], W[32]), (Z[6], Z[2], W[32])])
    put(3, [X[768], X[1024], X[1536], X[2048], X[772], X[1280], X[1792], X[1024]], True, [(Z[7], Z[3], W[32]), (Y[0], Z[4], W[32]), (Y[1], Z[5], W[32]), (Y[2], Z[6], W[32])])
    put(6, Z, False, [(Y[3], Z[7], W[32]), (Y[4], Y[0], W[32]), (Y[5], Y[1], W[32]), (Y[6], Y[2], W[32])])
    cmuls(k, [(Y[7], Y[3], W[32])], TMP)
    put(7, Y, False)
    k.stamp('ktab_last')
    nld = "".join(f"global_load_dwordx4 {V4(NR+4*q)}, v{vNO}, {P(pWS)} offset:{64*q} {SC} ; @nocheck\n" for q in range(4)) + f"global_load_dword v{NR+16}, v{vMO}, {P(pWS)} {SC} ; @nocheck\n"
    k("s_cmp_eq_u32 s3, 2\ns_cbranch_scc1 LF_pol2\nLF_nopoll1:")
    SPINS.append(f"""
    LF_pol2:
    s_waitcnt vmcnt(0)
    v_cmp_gt_u32 vcc, 16, v{vPD}
    s_mov_b32 s71, 0
    s_cbranch_vccnz LF_pol3
    s_mov_b32 s71, 1
    {nld}s_branch LF_nopoll1
    LF_pol3:
    global_load_dword v{vPD}, v{vPA}, {P(pWS)} sc1
    s_branch LF_nopoll1
    """)
    FR = 56
    order = [0, 1, 2, 3, 4, 5, 6, 7]
    def rd(s):
        return [f"ds_read_b64_tr_b16 v[{FR + 8*(s % 4) + 4*tb + 2*h}:{FR + 8*(s % 4) + 4*tb + 2*h + 1}], v{vKR} offset:{(16*(s % 4) + h)*144 + 64*tb + 9216*(s // 4)}" for tb in range(2) for h in range(2)]
    k("AUTO")
    for s in range(3):
        for t in rd(s): k(t)
    for s in range(8):
        r = FR + 8 * (s % 4)
        k(f"v_mfma_f32_32x32x16_bf16 v[{ACC}:{ACC+15}], v[{r}:{r+3}], v[{r+4}:{r+7}], v[{ACC}:{ACC+15}]")
        if s + 3 < 8:
            for t in rd(s + 3): k(t)
    k(f"""MANUAL
    s_add_u32 s3, s3, 1
    s_cmp_eq_u32 s3, 1
    s_cbranch_scc1 LF_cmod
    s_cmp_eq_u32 s3, 2
    s_cbranch_scc1 LF_kpass
    """)
    k.stamp('kg3')
    k("s_cmp_eq_u32 s71, 1\ns_cbranch_scc1 LF_haven")
    wait_flags(k, 's1', vPD, vPA, 16, 0)
    k(nld + "LF_haven:")
    k.stamp('s1')
    S = SCT
    k(f"""
    v_cmp_ne_u32 vcc, 33, v1
    s_mul_i32 s26, s21, {TAPCH}
    s_add_u32 s26, s26, {TAPS}
    v_add_u32 v14, s26, v{vL16}
    v_cvt_pk_bf16_f32 v24, v{ACC}, v{ACC+1}
    v_cvt_pk_bf16_f32 v25, v{ACC+2}, v{ACC+3}
    v_cvt_pk_bf16_f32 v26, v{ACC+4}, v{ACC+5}
    v_cvt_pk_bf16_f32 v27, v{ACC+6}, v{ACC+7}
    ds_write_b64 v{S+6}, v[24:25] offset:{2*(BA+1)}
    v_cvt_pk_bf16_f32 v28, v{ACC+8}, v{ACC+9}
    v_cvt_pk_bf16_f32 v29, v{ACC+10}, v{ACC+11}
    ds_write_b64 v{S+6}, v[26:27] offset:{2*(BA+1) + 512}
    v_cvt_pk_bf16_f32 v30, v{ACC+8}, v{ACC+12}
    v_cndmask_b32 v29, 0, v29, vcc
    ds_write_b16 v{S+1}, v30
    v_cvt_pk_bf16_f32 v31, v{ACC+13}, v{ACC+14}
    ds_write_b64 v{S+7}, v[28:29] offset:{2*(BA+1) + 1024}
    v_cvt_pk_bf16_f32 v32, v{ACC+15}, v{ACC+15}
    ds_write_b16_d16_hi v{S}, v30 offset:{2*B5A + 32}
    ds_write_b16 v{S+3}, v31
    ds_write_b16 v{S+4}, v31
    ds_write_b16_d16_hi v{S+2}, v31 offset:64
    ds_write_b16 v{S+5}, v32
    AUTO
    ds_read_b128 v[24:27], v{S+8}
    ds_read_b64 v[28:29], v{S+8} offset:16
    ds_read_b128 v[48:51], v{S+8} offset:1024
    ds_read_b64 v[52:53], v{S+8} offset:1040
    """)
    for q, b in enumerate((24, 48)):
        k(f"ds_write_b128 v14, v[{b+2}:{b+5}] offset:{1024*q + 3*TCS}")
        for i in range(4): k(f"v_alignbit_b32 v{b+8+i}, v{b+i+1}, v{b+i}, 16")
        k(f"ds_write_b128 v14, v[{b+8}:{b+11}] offset:{1024*q}")
        for i in range(4): k(f"v_mov_b32 v{b+12+i}, v{b+i+1}")
        k(f"ds_write_b128 v14, v[{b+12}:{b+15}] offset:{1024*q + TCS}")
        for i in range(4): k(f"v_alignbit_b32 v{b+16+i}, v{b+i+2}, v{b+i+1}, 16")
        k(f"ds_write_b128 v14, v[{b+16}:{b+19}] offset:{1024*q + 2*TCS}")
    k("MANUAL")
    k.stamp('kout')

TA0 = 128; T20 = 200
CACC = 12; CU_ = 44; RING = 76; NRING = 8; WTMP = 108; DEC = 132

def conv(k, opts):
    tfr = [f"ds_read_b64_tr_b16 a[{TA0+4*m+2*h}:{TA0+4*m+2*h+1}], v{vTA} offset:{64*m - 8*h + 8}" for m in range(18) for h in range(2)]
    for idx, (base, mu, va) in enumerate([(B5A, 0, vT2), (B5A, 1, vT2), (B5A, 2, vT2), (B5B, 0, vT2), (B5B, 1, vT2), (B5B, 2, vT2)] + [(B7, mu, vT3) for mu in range(4)]):
        tfr += [f"ds_read_b64_tr_b16 a[{T20+4*idx+2*h}:{T20+4*idx+2*h+1}], v{va} offset:{2*(base-3) - 8 + 32*mu - 16*h}" for h in range(2)]
    for t in tfr: k(t)
    k(f"""
    s_lshl_b32 s29, s20, 12
    s_add_u32 s29, s29, {WS_X1}
    s_add_u32 s34, s68, s29
    s_addc_u32 s35, s69, 0
    s_lshl_b32 s28, s21, 12
    s_add_u32 m0, s28, {OU}
    s_add_u32 s28, s28, {WS_ST}
    v_add_u32 v16, s28, v{vL16}
    s_mul_i32 s27, s21, {CHS}
    v_mov_b32 v12, 0
    v_mov_b32 v13, 0
    v_mov_b32 v14, 0
    v_mov_b32 v15, 0
    v_min_u32 v17, 29, v1
    v_lshl_add_u32 v17, v17, 4, s27
    v_min_u32 v18, 3, v1
    v_mul_u32_u24 v18, {UD}, v18
    v_add_u32 v18, s27, v18
    s_add_u32 s28, s21, 32
    s_waitcnt vmcnt(0)
    v_add_f32_dpp v40, v{NR+16}, v{NR+16} row_ror:4 row_mask:0xf bank_mask:0xf
    v_add_f32_dpp v40, v40, v40 row_ror:8 row_mask:0xf bank_mask:0xf
    v_cvt_pk_bf16_f32 v40, v40, v40
    v_lshlrev_b32 v40, 16, v40
    ds_bpermute_b32 v42, v{vBP}, v40
    ds_bpermute_b32 v43, v{vBP}, v40 offset:64
    v_readlane_b32 s70, v40, s28
    s_waitcnt lgkmcnt(0)
    s_barrier
    v_add_f32 v43, 1.0, v43
    v_cvt_pk_bf16_f32 v43, v43, 0
    v_lshlrev_b32 v41, 16, v43
    """)
    k.stamp('ndata')
    HT = DEC
    dma = [f"global_load_lds_dwordx4 v{vUO}, {P(pWS)} offset:{1024*q} {SC} ; @w:U" for q in range(4)]
    dma[3] += "\ns_add_u32 m0, m0, 16384"
    dma += [f"global_load_lds_dwordx4 v16, {P(pWS)} offset:{1024*q} {SC} ; @w:U" for q in range(4)]
    k(f"ds_write_b128 v17, v[12:15]\nds_write_b128 v18, v[12:15] offset:{O3 - 16}")
    for q in range(5):
        if q < 4:
            for x in range(8): k(f"v_dot2_f32_bf16 v{HT+8*q+x}, v{NR+4*q+(x>>1)}, v{41 if x & 1 else 43}, v42")
        if q > 0:
            for i in range(4): k(f"v_cvt_pk_bf16_f32 v{HT+32+4*(q-1)+i}, v{HT+8*(q-1)+2*i}, v{HT+8*(q-1)+2*i+1}")
            k(f"ds_write_b128 v{vWH}, {V4(HT+32+4*(q-1))} offset:{OH + 16*(q-1)}")
    k("s_waitcnt lgkmcnt(0)\ns_barrier")
    for t in dma: k(t)
    k.stamp('prep')
    started = set()
    def M(T, a, b):
        s = mf(CACC + 4 * T, a, b, T not in started); started.add(T); return s
    slots, items = [], []
    def item(e, kind, text, deps=()):
        items.append(dict(id=len(items), e=e, kind=kind, text=text, deps=list(deps))); return len(items) - 1
    ps = list(range(-7, 57))
    LOOK = NRING - 2
    rdtxt = lambda i: f"ds_read_b128 {V4(RING + 4*(i % NRING))}, v{vRD} offset:{64*(ps[i] + 7)}"
    ring, lastw, wwrite, ures = {}, {}, {}, {}
    DI = {'C': 0, 'A': 4, 'B': 10}
    ubar = None
    for i, p in enumerate(ps):
        if i + LOOK < len(ps): ring[i + LOOK] = item(len(slots), 'ring', rdtxt(i + LOOK))
        b = V4(RING + 4 * (i % NRING)); dep = [ring[i]] if i in ring else []
        for T in range(8):
            m = 8 * T - p
            if 0 <= m <= 16: slots.append((M(T, A4(TA0 + 4 * m), b), dep))
            if T >= 4 and m == 32: slots.append((M(T, A4(TA0 + 68), b), dep))
        if p % 8 == 0 and 0 <= p <= 40:
            T = p // 8
            for pr, off in enumerate((O3, O7)):
                if pr == 1 and T >= 4: continue
                t = WTMP + 8 * pr; o = WTMP + 16 + 4 * pr
                for wi in range(2): slots.append((mf(t + 4 * wi, V4(BAND + 4 + 8 * pr + 4 * wi), b, True), dep + lastw.get(pr, [])))
                e = len(slots) + 3
                c = [item(e, 'va', f"v_cvt_pk_bf16_f32 v{o+q}, v{t+2*q}, v{t+2*q+1}") for q in range(4)]
                s0 = item(e + 3, 'va', f"v_permlane16_swap_b32 v{o}, v{o+2}", c)
                s1 = item(e + 3, 'va', f"v_permlane16_swap_b32 v{o+1}, v{o+3}", c)
                w = item(e + 4, 'ds', f"ds_write_b128 v{vWU}, {V4(o)} offset:{off + 512*T}", [s0, s1])
                lastw[pr] = [w]; wwrite.setdefault(T, []).append(w)
            for kind in 'CAB':
                if kind == 'C' and T > 3: continue
                va = {'A': vDA, 'B': vDB, 'C': vD3}[kind]
                r = DEC + 4 * (DI[kind] + T)
                lastw[(kind, T)] = [item(len(slots) + 4, 'ds', f"ds_read_b64_tr_b16 v[{r+2*h}:{r+2*h+1}], v{va} offset:{512*T + 256*h}", wwrite[T]) for h in range(2)]
        if p == 24: ubar = item(len(slots), 'va', "s_barrier ; @r:U")
        if p in (26, 29, 33, 36, 39, 44, 48, 52):
            T = (26, 29, 33, 36, 39, 44, 48, 52).index(p)
            ures[T] = item(len(slots), 'ds', f"ds_read_b128 {V4(CU_ + 4*T)}, v{vRU} offset:{2048*T}", [ubar])
    E0 = int(opts.get('e0', 70)); NE1 = int(opts.get('ne1', 16))
    f0_ = item(E0, 'va', f"global_load_dword v{vF1D}, v{vF1A}, {P(pWS)} sc1")
    f1 = item(E0 + 45, 'va', f"v_cmp_gt_u32 vcc, 1, v{vF1D}\ns_cmp_eq_u64 vcc, 0\ns_cselect_b32 s6, 61440, 0", [f0_])
    ld = Loader(); prev = f1
    for i in range(NE1): prev = item(E0 + 47 + i * (198 - E0 - 52) // NE1, 'va', ld.w1(), [prev])
    fm = {}; ndirect = len(slots)
    allw = [w for ws_ in wwrite.values() for w in ws_]
    for T in range(8):
        idr = RING + 4 * (T % 4)
        slots.append((f"v_mfma_f32_16x16x32_bf16 {V4(idr)}, {V4(BAND)}, {V4(CU_ + 4*T)}, 0", [ures[T]] + fm.get(T - 4, [])))
        e0 = len(slots) + 3
        for kind, b0, nmu, t0 in (('C', 4, 4, 6), ('A', 2, 3, 0), ('B', 2, 3, 3)):
            for mu in range(nmu):
                P_ = T - b0 - mu
                if P_ >= 0: slots.append((M(T, V4(DEC + 4 * (DI[kind] + P_)), A4(T20 + 4 * (t0 + mu))), lastw[(kind, P_)]))
        e = len(slots) + 3
        sr = (202, 92, 100)[T % 3]
        sd = [item(ndirect - (8 if T == 0 else 0), 'ds', f"ds_read_b128 {V4(sr+4*h)}, v{vSA} offset:{2048*T + 1024*h}", [ubar] + fm.get(T - 3, [])) for h in range(2)]
        f0 = [item(e0, 'va', f"v_fma_f32 v{idr+r}, v{idr+r}, v{sr+2*r}, v{sr+2*r+1}", sd) for r in range(4)]
        fm[T] = [item(e, 'va', f"v_fma_f32 v{CACC+4*T+r}, v{CACC+4*T+r}, s70, v{idr+r}", f0) for r in range(4)]
        o = WTMP + 4 * (T >> 1) + 2 * (T & 1)
        fm[('c', T)] = [item(e, 'va', f"v_cvt_pk_bf16_f32 v{o+h}, v{CACC+4*T+2*h}, v{CACC+4*T+2*h+1}", fm[T] + allw) for h in range(2)]
        if T & 1: item(e, 'va', f"global_store_dwordx4 v{vL16}, {V4(WTMP + 4*(T >> 1))}, s[34:35] offset:{1024*(T >> 1)} {SC}", fm[('c', T)] + fm[('c', T - 1)] + [f1])
    k("AUTO")
    for i in range(LOOK): k(rdtxt(i))
    weave(k, slots, items)
    k("MANUAL")
    k.stamp('convend')

def weave(k, slots, items):
    done = set()
    def emit(n):
        if n in done: return
        for d in items[n]['deps']: emit(d)
        done.add(n); k(items[n]['text'])
    def pick(kinds, i):
        for it in items:
            if it['id'] not in done and it['kind'] in kinds and it['e'] <= i and all(d in done for d in it['deps']): return it['id']
        return None
    for i, (m, deps) in enumerate(slots):
        for d in deps: emit(d)
        k(m)
        n = pick(('ring',), i)
        if n is None: n = pick(('ds',), i)
        if n is not None: emit(n)
        for _ in range(1 if n is not None else 2):
            n2 = pick(('va',), i)
            if n2 is not None: emit(n2)
    for it in items: emit(it['id'])

def side(k):
    k(f"s_waitcnt vmcnt(0)\ns_barrier\ns_cmp_eq_u32 s21, 0\ns_cbranch_scc0 LF_sd1")
    wait_flags(k, 'init2', vPD, vPA, 32, None)
    arrive(k, S1_OFF, vPD, vPT)
    k.stamp('arr1')
    k("LF_sd1:")
    k(f"""
    s_lshr_b32 s32, s20, 5
    s_lshl_b32 s32, s32, 5
    s_and_b32 s33, s20, 7
    s_lshl_b32 s33, s33, 2
    s_add_u32 s32, s32, s33
    s_bfe_u32 s33, s20, 0x20003
    s_add_u32 s32, s32, s33               ; f tile
    v_lshrrev_b32 v2, 1, v1
    v_mul_u32_u24 v2, 3072, v2
    v_and_b32 v3, 1, v1
    v_lshl_add_u32 v2, v3, 4, v2
    s_mul_i32 s33, s21, {160*3072}
    s_lshl_b32 s24, s32, 5
    s_add_u32 s33, s33, s24
    v_add_u32 v2, s33, v2
    s_mul_i32 s26, s21, 5120
    s_add_u32 m0, s26, {W1R}
    s_lshr_b32 s24, s20, 1
    s_and_b32 s25, s20, 1                 ; half
    """)
    for i in range(5):
        k(f"global_load_lds_dwordx4 v2, {P(pW1)}")
        if i < 4: k(f"s_add_u32 m0, m0, 1024\nv_add_u32 v2, {32*3072}, v2")
    k(f"""
    s_mul_i32 s33, s24, {32*1280}
    s_mul_i32 s26, s25, 640
    s_add_u32 s33, s33, s26
    s_mul_i32 s27, s21, 320
    """)
    for i in range(5):
        k(f"""
        v_add_u32 v3, {64*i}, v1
        v_add_u32 v3, s27, v3
        v_mul_u32_u24 v4, 1639, v3
        v_lshrrev_b32 v4, 16, v4
        v_mul_u32_u24 v4, 640, v4
        v_lshl_add_u32 v3, v3, 4, v4
        v_add_u32 v{124+i}, s33, v3
        """)
    k(f"""
    v_lshrrev_b32 v4, 4, v1               ; G
    v_bfe_u32 v2, v1, 2, 2                ; r
    v_and_b32 v9, 3, v1
    v_lshl_add_u32 v11, v4, 2, v2
    v_mul_u32_u24 v11, 640, v11
    v_lshl_add_u32 v11, v9, 3, v11
    s_mul_i32 s26, s21, 160
    s_add_u32 s26, s26, {W2R}
    v_add_u32 v11, s26, v11
    v_lshrrev_b32 v5, 1, v4
    v_and_b32 v6, 1, v4
    v_lshlrev_b32 v5, 4, v5
    v_lshl_add_u32 v5, v6, 2, v5          ; 16(G>>1) + 4(G&1)
    v_add_u32 v10, v5, v2
    v_lshlrev_b32 v10, 5, v10
    v_lshl_add_u32 v10, v9, 3, v10
    s_mul_i32 s26, s21, 5120
    s_add_u32 s26, s26, {W1R}
    v_add_u32 v10, s26, v10
    ; W2F destination: ((j*4 + KS/12)*12 + order(KS%12))*5 KB, j = 4*half + wave
    s_mul_hi_u32 s26, s24, 0x15555556
    s_mul_i32 s27, s26, 12
    s_sub_u32 s27, s24, s27
    s_lshl_b32 s27, s27, 2
    s_mov_b32 s28, {KORD & 0xffffffff}
    s_mov_b32 s29, {KORD >> 32}
    s_lshr_b64 s[28:29], s[28:29], s27
    s_and_b32 s27, s28, 15
    s_lshl_b32 s28, s25, 2
    s_add_u32 s28, s28, s21
    s_lshl_b32 s28, s28, 2
    s_add_u32 s26, s26, s28
    s_mul_i32 s26, s26, 12
    s_add_u32 s26, s26, s27
    s_mul_i32 s26, s26, 5120
    s_add_u32 s26, s26, {WS_W2F}
    v_add_u32 v129, s26, v{vL16}
    s_waitcnt vmcnt(0)
    """)
    for i in range(5):
        for h in range(2): k(f"ds_read_b64_tr_b16 v[{40+4*i+2*h}:{41+4*i+2*h}], v10 offset:{1024*i + 256*h}")
    poll_addr(k, S1_OFF, vPA)
    k(f"""
    global_load_dword v{vPD}, v{vPA}, {P(pWS)} sc1
    s_mul_i32 s26, s21, 640
    s_add_u32 s26, s26, 7680
    v_lshl_add_u32 v14, v1, 2, s26
    v_and_b32 v15, 31, v1
    v_lshl_add_u32 v15, v15, 2, s26
    ; W1F destination
    s_mul_hi_u32 s26, s32, 0x55555556
    s_mul_i32 s27, s26, 3
    s_sub_u32 s27, s32, s27
    s_add_u32 s28, s27, 2
    s_cmp_ge_u32 s28, 3
    s_cselect_b32 s29, 3, 0
    s_sub_u32 s28, s28, s29
    s_bitcmp1_b32 s26, 0
    s_cselect_b32 s27, s28, s27           ; pass
    s_mul_i32 s26, s26, 60
    s_mul_i32 s28, s21, 10
    s_add_u32 s28, s28, s27
    s_mul_i32 s29, s21, 5
    s_add_u32 s29, s29, 40
    s_cmp_lt_u32 s27, 2
    s_cselect_b32 s28, s28, s29
    s_cselect_b32 s33, 2, 1
    s_lshl_b32 s33, s33, 10
    s_add_u32 s26, s26, s28
    s_lshl_b32 s26, s26, 10
    s_add_u32 s26, s26, {WS_W1F}
    v_add_u32 v13, s26, v{vL16}
    s_lshl_b32 s26, s21, 10
    s_add_u32 s26, s26, {VRED + 512}
    v_lshl_add_u32 v6, v1, 2, s26
    v_and_b32 v7, 31, v1
    v_lshl_add_u32 v2, v7, 1, s26
    v_lshl_add_u32 v7, v7, 2, s26
    v_lshl_add_u32 v9, v1, 1, s26
    v_lshl_add_u32 v3, v5, 1, s26
    v_lshl_add_u32 v5, v5, 2, s26
    v_mov_b32 v100, 0x3f803f80
    v_mov_b32 v101, 0x3f803f80
    v_mov_b32 v102, 0x3f803f80
    v_mov_b32 v103, 0x3f803f80
    s_waitcnt lgkmcnt(0)
    """)
    for i in range(5):
        for q in range(4): k(f"v_lshlrev_b32 v{136+8*i+2*q}, 16, v{40+4*i+q}\nv_and_b32 v{137+8*i+2*q}, 0xffff0000, v{40+4*i+q}")
    k("s_cmp_eq_u32 s21, 0\ns_cbranch_scc0 LF_sd2")
    wait_flags(k, 's1b', vPD, vPA, 16, 0)
    k("LF_sd2:\ns_barrier")
    k.stamp('s1')
    k("AUTO")
    for kq in range(4):
        for wh in range(2):
            for c in range(3):
                k(f"global_load_dword v{60 + 6*kq + 3*wh + c}, v{14 if c < 2 else 15}, {P(pWS)} offset:{2560*wh + 256*c} {SC}")
        if kq < 3: k("v_add_u32 v14, 15360, v14\nv_add_u32 v15, 15360, v15")
    for i in range(3): k(f"v_pk_add_f32 v[{60+2*i}:{61+2*i}], v[{60+2*i}:{61+2*i}], v[{66+2*i}:{67+2*i}]")
    for i in range(3): k(f"v_pk_add_f32 v[{72+2*i}:{73+2*i}], v[{72+2*i}:{73+2*i}], v[{78+2*i}:{79+2*i}]")
    for i in range(3): k(f"v_pk_add_f32 v[{60+2*i}:{61+2*i}], v[{60+2*i}:{61+2*i}], v[{72+2*i}:{73+2*i}]")
    for c in range(3): k(f"v_cvt_pk_bf16_f32 v{60+c}, v{63+c}, v{60+c}")
    for c in range(3): k(f"v_lshlrev_b32 v{63+c}, 16, v{60+c}\nds_write_b16_d16_hi v{9 if c < 2 else 2}, v{60+c} offset:{640 + 128*c}")
    for c in range(3): k(f"v_add_f32 v{63+c}, 1.0, v{63+c}")
    for c in range(3): k(f"v_cvt_pk_bf16_f32 v{63+c}, v{63+c}, v{63+c}")
    for c in range(3): k(f"v_lshlrev_b32 v{63+c}, 16, v{63+c}\nds_write_b32 v{6 if c < 2 else 7}, v{63+c} offset:{256*c}")
    k.stamp('ndata')
    for i in range(5):
        g = 180 + 12 * i
        for h in range(2): k(f"ds_read_b128 {V4(g+4*h)}, v5 offset:{128*i + 32*h}")
        for h in range(2): k(f"ds_read_b64 v[{g+8+2*h}:{g+9+2*h}], v3 offset:{640 + 64*i + 16*h}")
    for i in range(5):
        g = 180 + 12 * i; u = 136 + 8 * i; o4 = 16 + 4 * i
        for q in range(4): k(f"v_pk_mul_f32 v[{u+2*q}:{u+2*q+1}], v[{u+2*q}:{u+2*q+1}], v[{g+2*q}:{g+2*q+1}]")
        for q in range(4): k(f"v_cvt_pk_bf16_f32 v{o4+q}, v{u+2*q}, v{u+2*q+1}")
        k(f"global_store_dwordx4 v13, {V4(o4)}, {P(pWS)} {SC}" + ("\nv_add_u32 v13, s33, v13" if i < 4 else ""))
    for i in range(5):
        k(mf(112, V4(16 + 4 * i), V4(100), i == 0))
        k(mf(116, V4(40 + 4 * i), V4(188 + 12 * i), i == 0))
    k(f"""
    s_lshl_b32 s27, s21, 7
    s_add_u32 s27, s27, {VRED}
    v_lshl_add_u32 v13, v4, 4, s27
    ds_write_b128 v13, v[112:115]
    ds_write_b128 v13, v[116:119] offset:64
    MANUAL
    s_waitcnt lgkmcnt(0)
    s_barrier
    s_cmp_eq_u32 s21, 0
    s_cbranch_scc0 LF_sd3
    v_and_b32 v13, 31, v1
    v_lshlrev_b32 v13, 2, v13
    v_add_u32 v13, {VRED}, v13
    ds_read_b32 v16, v13
    ds_read_b32 v17, v13 offset:128
    ds_read_b32 v18, v13 offset:256
    ds_read_b32 v19, v13 offset:384
    v_bfe_u32 v14, v1, 4, 1
    v_mul_u32_u24 v14, 6144, v14
    v_and_b32 v15, 15, v1
    v_lshl_add_u32 v14, v15, 2, v14
    s_lshl_b32 s27, s32, 6
    s_add_u32 s27, s27, {WS_V12}
    v_add_u32 v14, s27, v14
    s_waitcnt lgkmcnt(0)
    v_add_f32 v16, v16, v17
    v_add_f32 v18, v18, v19
    v_add_f32 v16, v16, v18
    global_store_dword v14, v16, {P(pWS)} {SC}
    LF_sd3:
    s_mul_i32 s26, s21, 5120
    s_add_u32 m0, s26, {W2R}
    s_nop 0
    """)
    for i in range(5): k(f"global_load_lds_dwordx4 v{124+i}, {P(pW2)}" + ("\ns_add_u32 m0, m0, 1024" if i < 4 else ""))
    k(f"""
    s_waitcnt vmcnt(5)
    s_barrier
    s_cmp_eq_u32 s21, 0
    s_cbranch_scc0 LF_sd4
    s_lshl_b32 s27, s32, 7
    s_add_u32 s27, s27, {WS_SYNC + F1_OFF}
    v_mov_b32 v14, s27
    v_mov_b32 v15, 1
    s_mov_b64 exec, 1
    global_store_dword v14, v15, {P(pWS)} sc1
    s_mov_b64 exec, -1
    LF_sd4:
    """)
    k.stamp('f1pub')
    k("s_waitcnt vmcnt(0)\ns_barrier\nAUTO")
    for dt in range(5):
        for h in range(2): k(f"ds_read_b64_tr_b16 v[{16+4*dt+2*h}:{17+4*dt+2*h}], v11 offset:{10240*h + 32*dt}")
    for dt in range(5):
        k(f"global_store_dwordx4 v129, {V4(16+4*dt)}, {P(pWS)} {SC}" + ("\nv_add_u32 v129, 1024, v129" if dt < 4 else ""))
    k("MANUAL")
    k.stamp('convend')

ST = 16; V12 = 24; ACA, ACB = 48, 80; BF = 96; NBF = 6; TMP = 192; PKD = 208; SQ, SM, ONES = 224, 228, 232; XA = 236
AC2 = 24; HR = 104; NRK = 8; GB = 232; HA = 4
BORD = list(range(20 - NBF, 20)) + list(range(20 - NBF))
W2SLOT = list(range(40)) + [40 + ks for ks in BORD]

class Loader:
    def __init__(self): self.n1 = 0; self.n2 = 0; self.blk = {}
    def txt(self, n, slot, srd_, sreg):
        t = ""
        if self.blk.get(sreg) != n // 4: t = f"s_mov_b32 s{sreg}, {n // 4 * 4096}\n"; self.blk[sreg] = n // 4
        return t + f"buffer_load_dwordx4 a[{4*slot}:{4*slot+3}], v{vL16}, s[{srd_}:{srd_+3}], s{sreg} offen offset:{(n % 4) * 1024} {SC}"
    def w1(self): self.n1 += 1; return self.txt(W2SLOT[self.n1 - 1], W2SLOT[self.n1 - 1], 4, 28)
    def w2(self): self.n2 += 1; return self.txt(self.n2 - 1, W2SLOT[self.n2 - 1], 8, 29)
    def next(self, free):
        if self.n1 < 60: return self.w1()
        if self.n2 < min(free, 60): return self.w2()
        return None

def breads(ks, buf):
    b = BF + 16 * (buf % NBF)
    return [f"ds_read_b64_tr_b16 v[{b+4*s+2*h}:{b+4*s+2*h+1}], v{XA + s + (4 if ks >= 10 else 0)} offset:{4096*(ks % 10) + 1024*h}" for s in range(4) for h in range(2)]

def epilogue(acc, p, dst, dstep):
    v1, v2 = V12 + 8 * p, V12 + 8 * p + 4
    o = []
    for s in range(4):
        for h in range(2):
            a = acc + 4 * s + 2 * h
            o.append(f"v_pk_fma_f32 v[{a}:{a+1}], v[{v1+2*h}:{v1+2*h+1}], v[{ST+2*s}:{ST+2*s+1}], v[{a}:{a+1}] op_sel_hi:[1,0,1] neg_lo:[1,0,0] neg_hi:[1,0,0]")
    for s in range(4):
        for h in range(2):
            a = acc + 4 * s + 2 * h
            o.append(f"v_pk_fma_f32 v[{a}:{a+1}], v[{a}:{a+1}], v[{ST+2*s}:{ST+2*s+1}], v[{v2+2*h}:{v2+2*h+1}] op_sel:[0,1,0] op_sel_hi:[1,1,1]")
    o += [f"v_exp_f32 v{TMP+i}, v{acc+i}" for i in range(16)]
    o += [f"v_pk_add_f32 v[{TMP+2*i}:{TMP+2*i+1}], v[{TMP+2*i}:{TMP+2*i+1}], 1.0 op_sel_hi:[1,0]" for i in range(8)]
    o += [f"v_rcp_f32 v{TMP+i}, v{TMP+i}" for i in range(16)]
    o += [f"v_pk_mul_f32 v[{acc+2*i}:{acc+2*i+1}], v[{acc+2*i}:{acc+2*i+1}], v[{TMP+2*i}:{TMP+2*i+1}]" for i in range(8)]
    o += [f"v_cvt_pk_bf16_f32 v{dst + dstep*s + h}, v{acc+4*s+2*h}, v{acc+4*s+2*h+1}" for s in range(4) for h in range(2)]
    return o

def sprinkle(k, ops, extra):
    extra = [e for e in extra if e]
    step = len(ops) / (len(extra) + 1); nxt = step
    for i, o in enumerate(ops):
        k(o)
        while extra and i + 1 >= nxt: k(extra.pop(0)); nxt += step
    for e in extra: k(e)

def mlp(k, opts):
    PRE1 = int(opts.get('pre1', 4)); PB = int(opts.get('pb', 40))
    ld = Loader()
    ld.n1 = int(opts.get('ne1', 16))
    for i in range(PRE1): k(ld.w1() + " ; @skip")
    k(f"s_waitcnt vmcnt({PRE1})\ns_barrier\ns_cmp_eq_u32 s21, 0\ns_cbranch_scc0 LF_m1")
    arrive(k, S2_OFF, 12, 13)
    k("LF_m1:")
    k.stamp('arr2')
    k(f"s_cmp_eq_u32 s6, 0\ns_cbranch_scc0 LF_w1ok\nglobal_load_dword v{vF1D}, v{vF1A}, {P(pWS)} sc1")
    wait_flags(k, 'f1', vF1D, vF1A, 1, 0)
    k("s_mov_b32 s6, 61440")
    l2 = Loader()
    while l2.n1 < ld.n1: k(l2.w1())
    k("LF_w1ok:"); ld.blk = {}
    k.stamp('w1ok')
    for kq in range(4):
        k(f"global_load_dword v{48+2*kq}, v{vVA+4}, {P(pWS)} {SC}\nglobal_load_dword v{49+2*kq}, v{vVA+5}, {P(pWS)} offset:256 {SC}")
        if kq < 3: k(f"v_add_u32 v{vVA+4}, 15360, v{vVA+4}\nv_add_u32 v{vVA+5}, 15360, v{vVA+5}")
    for i, (va, off) in enumerate(((0, 0), (2, 0), (0, 64), (2, 64), (1, 0), (3, 0))):
        k(f"global_load_dwordx4 {V4(V12 + 4*i)}, v{vVA+va}, {P(pWS)} offset:{off} {SC}")
    n0 = ld.n1
    while ld.n1 < PB: k(ld.w1())
    k(f"""
    s_mul_i32 s26, s21, 320
    s_add_u32 s26, s26, {GBL}
    v_lshl_add_u32 v12, v1, 2, s26
    v_and_b32 v13, 15, v1
    v_lshl_add_u32 v13, v13, 2, s26
    s_waitcnt vmcnt({6 + PB - n0})
    v_pk_add_f32 v[48:49], v[48:49], v[50:51]
    v_pk_add_f32 v[52:53], v[52:53], v[54:55]
    v_pk_add_f32 v[48:49], v[48:49], v[52:53]
    v_cvt_pk_bf16_f32 v48, v48, v49
    v_and_b32 v49, 0xffff0000, v48
    v_lshlrev_b32 v48, 16, v48
    v_mul_f32 v48, {LN2 + 0x80000000}, v48
    v_mul_f32 v49, {LN2 + 0x80000000}, v49
    ds_write_b32 v12, v48
    ds_write_b32 v13, v49 offset:256
    v_lshrrev_b32 v14, 4, v1              ; G
    v_bfe_u32 v12, v1, 2, 2               ; r
    v_and_b32 v13, 1, v14
    v_lshl_add_u32 v15, v13, 2, v12
    v_lshrrev_b32 v13, 1, v14
    v_lshl_add_u32 v13, v13, 4, v15
    v_lshlrev_b32 v13, 7, v13
    v_and_b32 v12, 1, v1
    v_lshl_add_u32 v13, v12, 3, v13
    v_bfe_u32 v12, v1, 1, 1
    v_lshl_add_u32 v13, v12, 4, v13
    v_and_b32 v15, 6, v15
    """)
    for s in range(4):
        k(f"s_xor_b32 s26, s21, {s}\ns_lshl_b32 s{80+s}, s26, 10\ns_lshl_b32 s26, s26, 1\nv_xor_b32 v12, s26, v15\nv_lshl_add_u32 v{XA+s}, v12, 4, v13\nv_add_u32 v{XA+4+s}, 40960, v{XA+s}")
    k(f"""
    v_lshrrev_b32 v12, 3, v1
    v_and_b32 v13, 6, v12
    v_and_b32 v15, 7, v1
    v_xor_b32 v13, v13, v15
    v_lshlrev_b32 v12, 12, v12
    v_lshl_add_u32 v3, v13, 4, v12
    s_lshl_b32 s26, s21, 15
    s_lshl_b32 s27, s22, 7
    s_add_u32 s26, s26, s27
    s_add_u32 s26, s26, {WS_X1}
    v_add_u32 v3, s26, v3
    s_lshl_b32 s26, s21, 10
    s_mov_b32 m0, s26
    v_mov_b32 v{ONES}, 0x3f803f80
    v_mov_b32 v{ONES+1}, 0x3f803f80
    v_mov_b32 v{ONES+2}, 0x3f803f80
    v_mov_b32 v{ONES+3}, 0x3f803f80
    s_mul_i32 s26, s21, 3
    s_add_u32 s26, s26, 1
    s_lshr_b32 s26, s26, 1
    s_mul_i32 s27, s23, 6
    s_add_u32 s26, s26, s27
    s_lshl_b32 s26, s26, 12
    s_lshr_b32 s30, s21, 1
    s_mul_i32 s31, s30, 3
    s_add_u32 s31, s31, 1
    s_add_u32 s27, s27, s31
    s_lshl_b32 s27, s27, 12
    s_add_u32 s72, s80, s26
    s_add_u32 s73, s81, s26
    s_add_u32 s74, s82, s26
    s_add_u32 s75, s83, s26
    s_add_u32 s76, s80, s27
    s_add_u32 s77, s82, s27
    s_lshl_b32 s30, s30, 12
    s_add_u32 s30, s30, {RED}
    s_and_b32 s31, s21, 1
    s_lshl_b32 s31, s31, 3
    v_add_u32 v244, s30, v{vL16}
    v_add_u32 v245, s31, v244
    s_lshl_b32 s26, s22, 9
    s_add_u32 s26, s26, {WS_SYNC + F3_OFF}
    s_lshr_b32 s27, s23, 1
    s_lshl_b32 s27, s27, 7
    s_and_b32 s30, s23, 1
    s_lshl_b32 s30, s30, 4
    s_add_u32 s27, s27, s30
    s_lshl_b32 s30, s21, 2
    s_add_u32 s27, s27, s30
    s_add_u32 s27, s27, s26
    v_mov_b32 v10, s27
    s_lshl_b32 s30, s21, 7
    s_add_u32 s26, s26, s30
    v_and_b32 v11, 7, v1
    v_lshl_add_u32 v11, v11, 2, s26
    s_mul_i32 s78, s21, {12*4096}
    v_and_b32 v9, 15, v1
    v_lshlrev_b32 v9, 3, v9
    s_lshl_b32 s26, s21, 7
    s_add_u32 s26, s26, {STAT}
    v_add_u32 v9, s26, v9
    v_and_b32 v13, 3, v1
    v_cmp_eq_u32 s[84:85], 1, v13
    v_cmp_eq_u32 s[86:87], 2, v13
    v_cmp_eq_u32 s[88:89], 3, v13
    v_bfe_u32 v15, v1, 2, 2
    v_cmp_eq_u32 s[90:91], v14, v15
    """)
    for s in range(4): k(f"v_add_u32 v{HA+s}, s{80+s}, v{vL16}")
    if int(opts.get('w2t', 0)):
        k(f"""
        s_cmp_lt_u32 s2, {NCONV}
        s_cbranch_scc1 LF_now2t
        s_lshr_b32 s26, s2, 5
        s_sub_u32 s26, s26, 5
        s_mul_i32 s26, s26, 20480
        v_lshlrev_b32 v12, 7, v1
        buffer_load_dword v13, v12, s[8:11], s26 offen ; @skip
        s_add_u32 s26, s26, 8192
        buffer_load_dword v13, v12, s[8:11], s26 offen ; @skip
        v_min_u32 v12, 3968, v12
        s_add_u32 s26, s26, 8192
        buffer_load_dword v13, v12, s[8:11], s26 offen ; @skip
        s_waitcnt vmcnt(0)
        LF_now2t:
        """)
    k.stamp('w1iss')
    k("s_cmp_eq_u32 s21, 0\ns_cbranch_scc0 LF_m2")
    poll_addr(k, S2_OFF, 13)
    k(f"global_load_dword v12, v13, {P(pWS)} sc1")
    wait_flags(k, 's2', 12, 13, 16, 0)
    k("LF_m2:\ns_barrier")
    k.stamp('s2')
    k("AUTO")
    def xdma(i): return f"global_load_lds_dwordx4 v3, {P(pWS)} {SC} ; @w:X{i // 4}" + ("\ns_add_u32 m0, m0, 4096\nv_add_u32 v3, 0x20000, v3" if i < 19 else "")
    XI = int(opts.get('xi', 8))
    for i in range(XI): k(xdma(i))
    xq = [xdma(i) for i in range(XI, 20)]
    for p in range(3):
        for i in range(4): k(f"v_mul_f32 v{V12+8*p+4+i}, {LOG2E + 0x80000000}, v{V12+8*p+4+i}")
    k("s_barrier ; @r:X0")
    k.stamp('x0')
    for r in breads(0, 0) + breads(1, 1): k(r)
    LA0, LA1, LA2 = (int(x) for x in opts.get('la', '3,2,0').split(','))
    for ks in range(20):
        if ks % 4 == 2 and ks < 18: k(f"s_barrier ; @r:X{ks // 4 + 1}")
        rs = breads(ks + 2, ks + 2) if ks + 2 < 20 else []
        lds = []
        for _ in range(LA0 if ks < 6 else LA1 + (ks & 1) * LA2):
            dx = 4 * ((20 - len(xq)) // 4) - 2 if xq else 99
            dw = ld.n1 // 2 if ld.n1 < 40 else 98
            t = xq.pop(0) if xq and dx <= dw else ld.next(2 * ks)
            if t: lds.append(t)
        b = BF + 16 * (ks % NBF)
        ms = [mf(ACA + 16 * p + 4 * s, A4(4 * (2 * ks + p)), V4(b + 4 * s), ks == 0) for s in range(4) for p in range(2)]
        ms = [mf(SQ, V4(b), V4(b), ks == 0), mf(SM, V4(ONES), V4(b), ks == 0)] + ms
        for i, m in enumerate(ms):
            k(m)
            if i >= 2 and rs: k(rs.pop(0))
            elif lds: k(lds.pop(0))
        for t in lds: k(t)
    k.stamp('passA')
    stat = f"""v_cndmask_b32 v13, v{SQ}, v{SQ+1}, s[84:85]
    v_mul_f32 v12, {f2u(1/640)}, v{SM}
    v_cndmask_b32 v13, v13, v{SQ+2}, s[86:87]
    v_cndmask_b32 v13, v13, v{SQ+3}, s[88:89]
    v_mul_f32 v13, {f2u(1/640)}, v13
    {rstd_chain(12, 13)}
    v_mul_f32 v13, {LOG2E + 0x80000000}, v13"""
    stat = [l.strip() for l in stat.split('\n')]
    stat += [f"s_mov_b64 exec, s[90:91]\nds_write_b64 v9, v[12:13]\ns_mov_b64 exec, -1", "s_waitcnt lgkmcnt(0)\ns_barrier"]
    stat += [f"v_xor_b32 v13, {128*s}, v9\nds_read_b64 v[{ST+2*s}:{ST+2*s+1}], v13" for s in range(4)]
    NB = int(opts.get('nb', 1))
    def passB(n, rsq, fill):
        ks = BORD[n]; b = BF + 16 * ((14 + n) % NBF)
        t = [x for x in [ld.next(40 + n) for _ in range(NB)] if x]
        for s in range(4):
            k(mf(ACB + 4 * s, A4(4 * (40 + ks)), V4(b + 4 * s), n == 0))
            for _ in range(2):
                if fill: k(fill.pop(0))
                elif rsq: k(rsq.pop(0))
            if t and s & 1: k(t.pop(0))
    for n in range(4): passB(n, [], stat)
    for t in stat: k(t)
    rq = breads(BORD[6], 14 + 6) + breads(BORD[7], 14 + 7)
    passB(4, rq, []); passB(5, rq, [])
    k.stamp('stats')
    NE = int(opts.get('ne', 10))
    sprinkle(k, epilogue(ACA, 0, PKD, 4) + epilogue(ACA + 16, 1, PKD + 2, 4), [ld.next(46) for _ in range(NE)])
    for s in range(4): k(f"buffer_store_dwordx4 {V4(PKD+4*s)}, v{vL16}, s[12:15], s{72+s} offen {SC} ; @w:HP")
    k.stamp('pairst')
    for n in range(6, 20): passB(n, breads(BORD[n + 2], 14 + n + 2) if n + 2 < 20 else [], [])
    k.stamp('passB')
    k(f"""
    v_mov_b32 v14, 1
    v_mov_b32 v15, 2
    s_mov_b64 exec, 1 ; @r:HP
    global_store_dword v10, v14, {P(pWS)} sc1
    s_mov_b64 exec, -1
    """)
    k.stamp('pub1')
    ep = epilogue(ACB, 2, PKD, 2)
    PP = int(opts.get('pp', 56))
    sprinkle(k, ep[:PP], [ld.next(60) for _ in range(int(opts.get('ns', 8)))])
    k(f"global_load_dword v12, v11, {P(pWS)} sc1")
    for t in ep[PP:]: k(t)
    for s in range(4): k(f"v_add_u32 v13, s{80+s}, v245\nds_write_b64 v13, v[{PKD+2*s}:{PKD+2*s+1}]")
    k(f"""
    v_add_u32 v22, s80, v244
    v_add_u32 v23, s82, v244
    s_waitcnt lgkmcnt(0)
    s_barrier
    ds_read_b128 v[244:247], v22
    ds_read_b128 v[248:251], v23
    """)
    k.stamp('h1a')
    HSS = f"buffer_store_dwordx4 v[244:247], v{vL16}, s[12:15], s76 offen {SC} ; @w:HS\nbuffer_store_dwordx4 v[248:251], v{vL16}, s[12:15], s77 offen {SC} ; @w:HS"
    if not int(opts.get('ah0', 0)): k(HSS)
    tail_addr = f"""
    s_lshl_b32 s26, s21, 1
    v_lshrrev_b32 v3, 4, v1
    v_bfe_u32 v0, v1, 2, 2
    v_lshl_add_u32 v0, v3, 2, v0
    v_and_b32 v16, 6, v0
    v_xor_b32 v16, s26, v16
    v_bfe_u32 v17, v1, 1, 1
    v_add_u32 v16, v16, v17
    v_lshlrev_b32 v16, 4, v16
    v_lshl_add_u32 v16, v0, 7, v16
    v_and_b32 v17, 1, v1
    v_lshl_add_u32 v16, v17, 3, v16
    s_mul_i32 s26, s23, {80*128}
    v_add_u32 v16, s26, v16
    s_mul_i32 s74, s21, 15360
    s_add_u32 s74, s74, {RED}
    v_and_b32 v17, 15, v1
    v_mul_u32_u24 v17, 176, v17
    v_lshl_add_u32 v17, v3, 3, v17
    v_add_u32 v17, s74, v17
    v_add_u32 v18, s74, v{vL16}
    s_mul_i32 s26, s21, 320
    s_add_u32 s26, s26, {GBL}
    v_lshl_add_u32 v22, v3, 4, s26
    s_lshr_b32 s26, s22, 3
    s_lshl_b32 s26, s26, 9
    s_and_b32 s27, s22, 1
    s_lshl_b32 s27, s27, 7
    s_add_u32 s26, s26, s27
    s_bfe_u32 s27, s22, 0x20001
    s_lshl_b32 s27, s27, 2
    s_add_u32 s26, s26, s27
    s_lshl_b32 s27, s21, 5
    s_add_u32 s26, s26, s27
    s_mul_i32 s26, s26, 1280
    s_mul_i32 s27, s23, 160
    s_add_u32 s75, s26, s27
    """
    first = ""
    for s in range(1, 4): first += f"s_xor_b32 s26, s21, {s}\ns_mul_i32 s26, s26, 15360\ns_add_u32 s26, s26, {RED + 5120*(s-1)}\nv_add_u32 v{4+s}, s26, v{vL16}\n"
    for i in range(3):
        tail_addr += f"""
        v_add_u32 v23, {64*i}, v1
        v_mul_u32_u24 v2, 6554, v23
        v_lshrrev_b32 v2, 16, v2
        v_mul_u32_u24 v3, 10, v2
        v_sub_u32 v23, v23, v3
        v_mul_u32_u24 v3, 176, v2
        v_lshl_add_u32 v3, v23, 4, v3
        v_add_u32 v{19+i}, s74, v3
        v_bfe_u32 v3, v2, 2, 1
        v_lshlrev_b32 v3, 8, v3
        v_bfe_u32 v0, v2, 3, 1
        v_lshl_add_u32 v3, v0, 4, v3
        v_and_b32 v0, 3, v2
        v_add_u32 v3, v3, v0
        v_mul_u32_u24 v3, 1280, v3
        v_lshl_add_u32 v{252+i}, v23, 4, v3
        """
    tail_addr += "v_lshrrev_b32 v2, 5, v1\nv_lshlrev_b32 v2, 30, v2\nv_add_u32 v254, v254, v2\n"
    k(tail_addr); tail_addr = ""
    wait_flags(k, 'h1', 12, 11, 1, None)
    k.stamp('h1')
    def hload(i, slots=range(4)):
        r = HR + 16 * (i % NRK)
        return [(f"s_add_u32 s79, s78, {KSEQ[i] * 4096}\n" if s == slots[0] else "") + f"buffer_load_dwordx4 {V4(r+4*s)}, v{HA+s}, s[12:15], s79 offen {SC}" for s in slots]
    def g2(i, s): return [mf(AC2 + 20 * s + 4 * dt, A4(4 * W2SLOT[5 * i + dt]), V4(HR + 16 * (i % NRK) + 4 * s), i == 0) for dt in range(5)]
    AH = int(opts.get('ahead', 3)); AH0 = int(opts.get('ah0', 0))
    for i in range(AH0):
        for t in hload(i): k(t)
    if AH0: k(HSS)
    k.stamp('singst')
    for i in range(AH0, AH):
        for t in hload(i): k(t)
    PI = int(opts.get('pi', 3))
    for i in range(8):
        q = hload(i + AH) if i + AH < 8 else []
        while ld.n2 < min(60, 5 * i + 15): k(ld.w2())
        for _ in range(-(-(60 - ld.n2) // (8 - i))): q.append(ld.w2())
        if i == AH0: k(f"s_mov_b64 exec, 1 ; @r:HS\nglobal_store_dword v10, v15, {P(pWS)} sc1\ns_mov_b64 exec, -1")
        if i == PI: q.append(f"global_load_dword v12, v11, {P(pWS)} sc1")
        if i in (1, 2, 4): k.stamp(f'g2_{i}')
        if i == PI + 2:
            k.stamp('h2a')
            wait_flags(k, 'h2', 12, 11, 2, None)
            k.stamp('h2b')
            late = [hload(i2, [s])[0] for s in (1, 2, 3, 0) for i2 in range(8, 12)]
        if i >= PI + 2:
            nl = -(-len(late) // (8 - i)); q += late[:nl]; late = late[nl:]
        for s in range(4):
            for n, m in enumerate(g2(i, s)):
                k(m)
                if q and n in (0, 2, 4): k(q.pop(0))
        for t in q: k(t)
    k.stamp('g2a')
    U = HR + 64
    tail_addr += "".join(f"ds_read_b64_tr_b16 v[{U+24+2*dt}:{U+25+2*dt}], v16 offset:{2048*dt}\n" for dt in range(5))
    tail_addr += "".join(f"ds_read_b128 {V4(GB+4*dt)}, v22 offset:{64*dt}\n" for dt in range(5))
    tail_addr += "".join(f"v_lshlrev_b32 v{U+4*dt+2*h}, 16, v{U+24+2*dt+h}\nv_and_b32 v{U+4*dt+2*h+1}, 0xffff0000, v{U+24+2*dt+h}\n" for dt in range(5) for h in range(2))
    fill = [l.strip() for l in (first + tail_addr).split('\n') if l.strip()]
    pend = []
    for s in (1, 2, 3, 0):
        for i in range(8, 12):
            for m in g2(i, s):
                k(m)
                if pend and pend[0][0] <= 0: k(pend.pop(0)[1])
                else:
                    for _ in range(2):
                        if fill: k(fill.pop(0))
                pend = [(a - 1, t) for a, t in pend]
        assert not pend
        if s: pend = [(3 + 3 * dt, f"ds_write_b128 v{4+s}, {V4(AC2+20*s+4*dt)} offset:{1024*dt}") for dt in range(5)]
    for t in fill: k(t)
    k.stamp('g2b')
    k("s_waitcnt lgkmcnt(0)\ns_barrier")
    R0 = 44
    for dt in range(5):
        for s in range(3): k(f"ds_read_b128 {V4(R0+20*s+4*dt)}, v18 offset:{5120*s + 1024*dt}")
    for dt in range(5):
        for h in range(2):
            q = 2 * dt + h
            k(f"v_pk_add_f32 v[{AC2+2*q}:{AC2+2*q+1}], v[{AC2+2*q}:{AC2+2*q+1}], v[{R0+2*q}:{R0+2*q+1}]")
            k(f"v_pk_add_f32 v[{R0+20+2*q}:{R0+21+2*q}], v[{R0+20+2*q}:{R0+21+2*q}], v[{R0+40+2*q}:{R0+41+2*q}]")
        for h in range(2):
            q = 2 * dt + h
            k(f"v_pk_add_f32 v[{AC2+2*q}:{AC2+2*q+1}], v[{AC2+2*q}:{AC2+2*q+1}], v[{R0+20+2*q}:{R0+21+2*q}]")
        for h in range(2):
            q = 2 * dt + h
            k(f"v_pk_fma_f32 v[{AC2+2*q}:{AC2+2*q+1}], v[{AC2+2*q}:{AC2+2*q+1}], v[{GB+2*q}:{GB+2*q+1}], v[{U+2*q}:{U+2*q+1}]")
        k(f"v_cvt_pk_bf16_f32 v{HR+2*dt}, v{AC2+4*dt}, v{AC2+4*dt+1}\nv_cvt_pk_bf16_f32 v{HR+2*dt+1}, v{AC2+4*dt+2}, v{AC2+4*dt+3}")
    for dt in range(5): k(f"ds_write_b64 v17, v[{HR+2*dt}:{HR+2*dt+1}] offset:{32*dt}")
    for i in range(3): k(f"ds_read_b128 {V4(R0+4*i)}, v{19+i}")
    for i in range(3): k(f"buffer_store_dwordx4 {V4(R0+4*i)}, v{252+i}, s[16:19], s75 offen")
    k("MANUAL")

def gen_F(opts={}):
    SPINS.clear()
    k = Asm('F')
    k(f"s_cmp_ge_u32 s2, {F_GRID}\ns_cbranch_scc1 LF_end")
    k.stamp('start')
    prologue(k, opts)
    mlp_setup(k, opts)
    conv_setup(k)
    kgen(k, opts)
    conv(k, opts)
    k("s_branch LF_mlp")
    conv_mod(k)
    k("LF_side:")
    side_a(k)
    side(k)
    lane_consts(k)
    mlp_setup(k, opts)
    k("s_mov_b32 s6, 0")
    k("LF_mlp:")
    mlp(k, opts)
    k.end(0)
    k("LF_end:\ns_endpgm")
    for s in SPINS: k(s)
    k("LF_codeend:")
    return k.finish()

if __name__ == '__main__':
    print(gen_F())
```

```python
from asmlib import *
from layoutF import *

F_GRID = 256
NCONV = 160
LNS = 1600
STATP = 12800
MODB = 13312
KT = 33792; KTS = 18432
TAPS = 107520; TCS = 2112; TAPCH = 4 * TCS
STG = TAPS + 4 * TAPCH; STGS = 2112
F_LDS = 149760
OH = 480
UD = 3088
O3 = 4576 + 16; O5 = O3 + UD; O7 = O5 + UD; O9 = O7 + UD
CHS = (O9 + 2048 + 127) // 128 * 128 + 16
OU = 4 * CHS; OS = OU + 16384
W1R = 102400; W2R = W1R + 20480; VRED = W2R + 20480
RED = 81920; STAT = RED + 61440; GBL = STAT + 512
assert OS + 16384 <= TAPS and STG + 4 * STGS <= F_LDS and GBL + 1280 <= F_LDS
pU, pAR, pAI, pBR, pBI, pCR, pCI, pLD, pDS, pW1, pW2, pC, pWM, pOUT, pDBG, pWS = 36, 38, 40, 42, 44, 46, 48, 50, 52, 56, 58, 60, 62, 64, 66, 68
def P(p): return f"s[{p}:{p+1}]"
SC = 'sc1'
vL16 = 8
BAND = 210
vRD, vDA, vDB, vD3, vRU, vWU, vWH, vNO, vUO, vMO, vTA, vT2, vT3, vBP = range(230, 244)
vVA, vF1D, vF1A = 244, 250, 251
vSA = 252
vKW, vKR, vPD, vPA, vPT = 120, 121, 122, 123, 133
KACC = 104; SCT = 124; PRM = 134
CDAT = 156; LA = 158; MFR = 164; NR = 184

def srd(k, r, base, off, size):
    k(f"s_add_u32 s{r}, s{base}, {off}\ns_addc_u32 s{r+1}, s{base+1}, 0\ns_mov_b32 s{r+2}, {size}\ns_mov_b32 s{r+3}, 0x20000")
def mf(acc, a, b, first):
    c = '0' if first else f'v[{acc}:{acc+3}]'
    return f"v_mfma_f32_16x16x32_bf16 v[{acc}:{acc+3}], {a}, {b}, {c}"
V4 = lambda r: f"v[{r}:{r+3}]"
A4 = lambda r: f"a[{r}:{r+3}]"

SPINS = []
def wait_flags(k, tag, vdata, vaddr, target, nwait):
    if nwait is not None: k(f"s_waitcnt vmcnt({nwait})")
    k(f"v_cmp_gt_u32 vcc, {target}, v{vdata}\ns_cbranch_vccnz LF_spin{tag}\nLF_go{tag}:")
    SPINS.append(f"""
    LF_spin{tag}:
    s_mov_b32 s30, 40000
    LF_spinl{tag}:
    global_load_dword v{vdata}, v{vaddr}, {P(pDBG if tag.startswith('init') else pWS)} sc1
    s_waitcnt vmcnt(0)
    v_cmp_gt_u32 vcc, {target}, v{vdata}
    s_cbranch_vccz LF_go{tag}
    s_sleep 2
    s_sub_u32 s30, s30, 1
    s_cmp_lg_u32 s30, 0
    s_cbranch_scc1 LF_spinl{tag}
    s_branch LF_go{tag}
    """)

def arrive(k, off, va, vb):
    k(f"""
    s_bfe_u32 s26, s2, 0x40003
    s_lshl_b32 s26, s26, 7
    s_add_u32 s26, s26, {WS_SYNC + off}
    v_lshl_add_u32 v{va}, v1, 11, s26
    v_mov_b32 v{vb}, 1
    s_mov_b64 exec, 0xff
    global_atomic_add v{va}, v{vb}, {P(pWS)} sc1
    s_mov_b64 exec, -1
    """)

def poll_addr(k, off, va):
    lo = 0
    k(f"""
    s_and_b32 s26, s2, 7
    s_lshl_b32 s26, s26, 11
    s_add_u32 s26, s26, {WS_SYNC + off + 128 * lo}
    v_min_u32 v{va}, {15 - lo}, v1
    v_lshl_add_u32 v{va}, v{va}, 7, s26
    """)

def rstd_chain(m, q, r=None):
    return f"""v_fma_f32 v{q}, -v{m}, v{m}, v{q}
    v_max_f32 v{q}, 0, v{q}
    v_cvt_pk_bf16_f32 v{q}, v{q}, v{m}
    v_and_b32 v{m}, 0xffff0000, v{q}
    v_lshlrev_b32 v{q}, 16, v{q}
    v_add_f32 v{q}, {f2u(1e-5)}, v{q}
    v_cvt_pk_bf16_f32 v{q}, v{q}, v{q}
    v_lshlrev_b32 v{q}, 16, v{q}
    v_sqrt_f32 v{q}, v{q}
    v_cvt_pk_bf16_f32 v{q}, v{q}, v{q}
    v_lshlrev_b32 v{q}, 16, v{q}
    v_rcp_f32 v{r or q}, v{q}"""

JOBS = 12800
def prologue(k, opts):
    k(f"""
    s_load_dwordx16 s[36:51], s[0:1], 0
    s_load_dwordx2 s[52:53], s[0:1], 64
    s_load_dwordx4 s[60:63], s[0:1], 96
    s_load_dwordx2 s[68:69], s[0:1], 128
    s_load_dwordx4 s[56:59], s[0:1], 80
    s_load_dwordx4 s[64:67], s[0:1], 112
    v_lshrrev_b32 v1, 6, v0
    v_readfirstlane_b32 s21, v1
    v_and_b32 v1, 63, v0
    """)
    if int(opts.get('cpf', 1)):
        k(f"""
        s_getpc_b64 s[24:25]
        LF_pc:
        s_lshr_b32 s26, s2, 3
        s_lshl_b32 s26, s26, 2
        s_add_u32 s26, s26, s21
        s_mul_i32 s26, s26, 384
        s_min_u32 s26, s26, LF_codeend-LF_pc-384
        s_add_u32 s24, s24, s26
        s_addc_u32 s25, s25, 0
        v_min_u32 v2, 2, v1
        v_lshlrev_b32 v2, 7, v2
        v_mov_b32 v3, s25
        v_add_co_u32 v2, vcc, s24, v2
        v_addc_co_u32 v3, vcc, 0, v3, vcc
        global_load_dword v254, v[2:3], off ; @nocheck
        """)
    k(f"""
    v_lshlrev_b32 v{vL16}, 4, v1
    s_cmp_lt_u32 s2, {NCONV}
    s_cbranch_scc0 LF_side
    s_lshl_b32 s20, s2, 2
    s_add_u32 s20, s20, s21               ; channel d
    s_mul_i32 s29, s20, 384
    v_lshl_add_u32 v10, v1, 1, s29
    s_lshl_b32 s29, s20, 1
    v_mov_b32 v11, s29
    v_mov_b32 v{vPA}, 0
    """)
    for i in list(range(19)) + [20]: k(f"v_mov_b32 v{PRM+i}, 0")
    k(f"""
    s_mul_hi_u32 s25, s2, {(1 << 32) // 60 + 1}       ; kq
    s_mul_i32 s26, s25, 60
    s_sub_u32 s26, s2, s26
    s_mul_i32 s27, s25, 320
    v_lshl_add_u32 v6, v1, 2, s27
    v_and_b32 v7, 15, v1
    v_lshl_add_u32 v7, v7, 2, s27
    s_waitcnt lgkmcnt(0)
    global_load_dword v{CDAT}, v6, {P(pC)}
    global_load_dword v{CDAT+1}, v7, {P(pC)} offset:256
    global_load_short_d16_hi v{PRM+18}, v11, {P(pLD)}""")
    for p in range(3):
        for i, ptr in enumerate((pAR, pAI, pBR, pBI, pCR, pCI)):
            k(f"global_load_short_d16_hi v{PRM+6*p+i}, v10, {P(ptr)} offset:{128*p}")
    k(f"global_load_short_d16_hi v{PRM+20}, v11, {P(pDS)}")
    k.stamp('ldiss')
    lane_consts(k)
    if int(opts.get('tlb', 0)):
        k(f"""
        s_cmp_eq_u32 s21, 1
        s_cbranch_scc0 LF_notlb
        v_min_u32 v2, 11, v1
        v_lshlrev_b32 v2, 21, v2
        v_and_b32 v3, 1, v1
        v_lshlrev_b32 v3, 21, v3
        global_load_dword v253, v2, {P(pWS)} ; @skip
        global_load_dword v253, v3, {P(pOUT)} ; @skip
        s_waitcnt vmcnt(0)
        LF_notlb:
        """)
    k(f"""
    v_lshrrev_b32 v4, 3, v1
    v_and_b32 v5, 7, v1
    v_mul_u32_u24 v3, 7680, v4
    v_lshl_add_u32 v3, v5, 4, v3
    s_mul_i32 s27, s25, 160
    s_mul_i32 s28, s21, 40
    s_add_u32 s28, s28, s27
    s_mul_i32 s28, s28, 7680
    s_lshl_b32 s29, s26, 7
    s_add_u32 s28, s28, s29
    v_add_u32 v3, s28, v3
    s_mul_i32 s29, s21, 5120
    s_add_u32 m0, s29, {MODB}
    s_mul_i32 s25, s25, 15360
    """)
    if not int(opts.get('modlate', 1)): mod_dma(k, 3)
    else: k(f"v_mov_b32 v{LA+5}, v3")
    k(f"""
    s_lshl_b32 s26, s26, 8
    s_add_u32 s25, s25, s26
    s_lshl_b32 s26, s21, 6
    s_add_u32 s25, s25, s26
    v_lshl_add_u32 v{LA}, v1, 2, s25
    v_lshl_add_u32 v7, v12, 3, v11
    v_lshlrev_b32 v7, 7, v7
    v_lshl_add_u32 v7, v10, 3, v7
    s_lshl_b32 s27, s21, 5
    s_add_u32 s27, s27, {MODB}
    v_add_u32 v{LA+1}, s27, v7
    s_mul_i32 s27, s21, 320
    v_lshl_add_u32 v{LA+2}, v1, 2, s27
    v_lshl_add_u32 v{LA+3}, v13, 2, s27
    v_lshl_add_u32 v{LA+4}, v12, 4, s27
    """)

def silu_frags(k, c0, vbp, dst=24):
    k(f"""
    s_mov_b32 s24, {LOG2E + 0x80000000}
    v_lshlrev_b32 v16, 16, v{c0}
    v_and_b32 v17, 0xffff0000, v{c0}
    v_lshlrev_b32 v18, 16, v{c0+1}
    v_and_b32 v19, 0xffff0000, v{c0+1}
    """)
    for i in range(4): k(f"v_mul_f32 v{20+i}, s24, v{16+i}")
    for i in range(4): k(f"v_exp_f32 v{20+i}, v{20+i}")
    for i in range(4): k(f"v_add_f32 v{20+i}, 1.0, v{20+i}")
    for i in range(4): k(f"v_rcp_f32 v{20+i}, v{20+i}")
    for i in range(4): k(f"v_mul_f32 v{16+i}, v{16+i}, v{20+i}")
    k(f"v_cvt_pk_bf16_f32 v16, v16, v17\nv_cvt_pk_bf16_f32 v17, v18, v19")
    k(f"ds_write_b32 v{vbp}, v16\nds_write_b32 v{vbp+1}, v17 offset:256")
    for ks in range(5): k(f"ds_read_b128 {V4(dst+4*ks)}, v{vbp+2} offset:{64*ks}")

def conv_mod(k):
    k("LF_cmod:\ns_waitcnt vmcnt(0) lgkmcnt(0)\ns_barrier\nAUTO")
    for ks in range(5):
        for h in range(2): k(f"ds_read_b64_tr_b16 v[{60+4*ks+2*h}:{61+4*ks+2*h}], v{LA+1} offset:{4096*ks + 512*h}")
    for ks in range(5): k(mf(16, V4(MFR + 4 * ks), V4(60 + 4 * ks), ks == 0))
    k(f"""MANUAL
    s_mov_b64 exec, 0xffff
    global_store_dword v{LA}, v16, {P(pWS)} {SC}
    s_mov_b64 exec, -1
    global_load_dword v{vPD}, v{vPA}, {P(pDBG)} sc1 ; @nocheck
    """)
    k.stamp('modst')
    k("s_branch LF_kpass")

def mod_dma(k, v):
    for i in range(5):
        k(f"global_load_lds_dwordx4 v{v}, {P(pWM)}")
        if i < 4: k(f"s_add_u32 m0, m0, 1024\nv_add_u32 v{v}, {8*7680}, v{v}")

def lane_consts(k):
    k("""
    v_bfe_u32 v11, v1, 2, 2               ; r
    v_lshrrev_b32 v12, 4, v1              ; G
    v_and_b32 v10, 3, v1                  ; cc / j
    v_and_b32 v13, 15, v1                 ; a / i
    """)

def side_mod(k):
    k(f"""
    s_mul_hi_u32 s25, s2, {(1 << 32) // 60 + 1}       ; kq
    s_mul_i32 s26, s25, 60
    s_sub_u32 s26, s2, s26
    s_mul_i32 s27, s25, 320
    v_lshl_add_u32 v15, v1, 2, s27
    v_lshl_add_u32 v16, v13, 2, s27
    global_load_dword v150, v15, {P(pC)}
    global_load_dword v151, v16, {P(pC)} offset:256
    v_lshrrev_b32 v4, 3, v1
    v_and_b32 v5, 7, v1
    v_mul_u32_u24 v4, 7680, v4
    v_lshl_add_u32 v4, v5, 4, v4
    s_mul_i32 s27, s25, {160*7680}
    s_lshl_b32 s28, s26, 7
    s_add_u32 s27, s27, s28
    v_add_u32 v14, s27, v4
    s_mov_b32 m0, s33
    s_mul_i32 s25, s25, 15360
    s_lshl_b32 s26, s26, 8
    s_add_u32 s25, s25, s26
    v_lshl_add_u32 v152, v13, 2, s25
    """)
    for i in range(20):
        k(f"global_load_lds_dwordx4 v14, {P(pWM)}")
        if i < 19: k(f"s_add_u32 m0, m0, 1024\nv_add_u32 v14, {8*7680}, v14")
    k(f"""
    v_lshl_add_u32 v5, v12, 3, v11
    v_lshlrev_b32 v5, 7, v5
    v_lshl_add_u32 v5, v10, 3, v5
    v_add_u32 v5, s33, v5
    s_add_u32 s27, s33, 20480
    v_lshl_add_u32 v158, v1, 2, s27
    v_lshl_add_u32 v159, v13, 2, s27
    v_lshl_add_u32 v160, v12, 4, s27
    s_waitcnt vmcnt(20)
    """)
    silu_frags(k, 150, 158)
    k("AUTO")
    for ks in range(5):
        k(f"s_waitcnt vmcnt({16 - 4*ks})")
        for ct in range(4):
            for h in range(2): k(f"ds_read_b64_tr_b16 v[{60+16*(ks&1)+4*ct+2*h}:{61+16*(ks&1)+4*ct+2*h}], v5 offset:{4096*ks + 512*h + 32*ct}")
        for ct in range(4): k(mf(44 + 4 * ct, V4(24 + 4 * ks), V4(60 + 16 * (ks & 1) + 4 * ct), ks == 0))
    k("MANUAL\ns_mov_b64 exec, 0xffff")
    for ct in range(4): k(f"global_store_dword v152, v{44+4*ct}, {P(pWS)} offset:{64*ct} {SC}")
    k("s_mov_b64 exec, -1")

def side_a(k):
    UD_ = 100
    k(f"""
    s_sub_u32 s20, s2, {NCONV}
    s_mul_i32 s33, s21, {2*JOBS}
    s_add_u32 s34, s33, {JOBS}
    """)
    lane_consts(k)
    k(f"""
    s_mul_i32 s31, s21, 96
    s_add_u32 s31, s31, s20
    s_cmp_lt_u32 s31, 256
    s_waitcnt lgkmcnt(0)
    s_cbranch_scc0 LF_sa_mod
    v_lshrrev_b32 v2, 3, v1
    v_and_b32 v3, 7, v1
    v_lshlrev_b32 v3, 4, v3
    v_mul_u32_u24 v7, 1280, v2
    v_add_u32 v7, v7, v3
    s_mul_i32 s24, s31, 10240
    v_add_u32 v7, s24, v7
    """)
    for q in range(10): k(f"global_load_dwordx4 {V4(UD_+4*q)}, v7, {P(pU)} offset:{128*q}")
    k.stamp('ldiss')
    k(f"""
    v_mul_u32_u24 v7, {LNS - 256}, v2
    v_add3_u32 v7, v7, v3, s33
    v_mul_u32_u24 v9, {LNS - 256}, v11
    v_lshl_add_u32 v9, v12, 5, v9
    v_lshl_add_u32 v9, v10, 3, v9
    v_add_u32 v9, s33, v9
    v_lshrrev_b32 v2, 2, v1
    v_lshlrev_b32 v2, 14, v2
    v_lshl_add_u32 v2, v10, 4, v2
    s_lshl_b32 s24, s31, 6
    s_add_u32 s24, s24, {WS_NT}
    v_add_u32 v2, s24, v2
    s_lshr_b32 s24, s31, 5
    s_lshl_b32 s24, s24, 11
    s_bfe_u32 s25, s31, 0x40001
    s_lshl_b32 s25, s25, 4
    s_add_u32 s24, s24, s25
    s_and_b32 s25, s31, 1
    s_lshl_b32 s25, s25, 9
    s_add_u32 s24, s24, s25
    s_add_u32 s24, s24, {WS_ST}
    v_lshrrev_b32 v3, 5, v1
    v_lshlrev_b32 v3, 8, v3
    v_bfe_u32 v14, v1, 4, 1
    v_lshl_add_u32 v3, v14, 10, v3
    v_bfe_u32 v14, v1, 3, 1
    v_lshl_add_u32 v3, v14, 3, v3
    v_add_u32 v3, s24, v3
    s_mov_b32 s24, 0x3f803f80
    v_mov_b32 v140, 0
    v_mov_b32 v141, 0
    v_mov_b32 v142, 0
    v_mov_b32 v143, 0
    """)
    for q in range(10):
        k(f"s_waitcnt vmcnt({9 - q})")
        if q == 0: k.stamp('u0')
        k(f"ds_write_b128 v7, {V4(UD_+4*q)} offset:{128*q}")
        for i in range(4):
            r = UD_ + 4 * q + i
            k(f"v_dot2c_f32_bf16 v{140 + 2*(i&1)}, s24, v{r}\nv_dot2c_f32_bf16 v{141 + 2*(i&1)}, v{r}, v{r}")
    k(f"""
    v_pk_add_f32 v[140:141], v[140:141], v[142:143]
    v_add_f32_dpp v140, v140, v140 quad_perm:[1,0,3,2] row_mask:0xf bank_mask:0xf
    v_add_f32_dpp v141, v141, v141 quad_perm:[1,0,3,2] row_mask:0xf bank_mask:0xf
    v_add_f32_dpp v140, v140, v140 quad_perm:[2,3,0,1] row_mask:0xf bank_mask:0xf
    v_add_f32_dpp v141, v141, v141 quad_perm:[2,3,0,1] row_mask:0xf bank_mask:0xf
    v_add_f32_dpp v140, v140, v140 row_half_mirror row_mask:0xf bank_mask:0xf
    v_add_f32_dpp v141, v141, v141 row_half_mirror row_mask:0xf bank_mask:0xf
    v_mul_f32 v140, {f2u(1/640)}, v140
    v_mul_f32 v141, {f2u(1/640)}, v141
    AUTO
    """)
    for ch in range(10):
        k(f"ds_read_b64_tr_b16 v[{UD_+4*ch}:{UD_+4*ch+1}], v9 offset:{128*ch}\nds_read_b64_tr_b16 v[{UD_+4*ch+2}:{UD_+4*ch+3}], v9 offset:{128*ch + 4*(LNS - 256)}")
        if ch == 4: k(rstd_chain(140, 141, 144) + f"\nv_mov_b32 v142, v141\nv_mov_b32 v143, v140\nv_mul_f32 v140, v140, v144\ns_mov_b32 exec_lo, 0x01010101\ns_mov_b32 exec_hi, 0x01010101\nglobal_store_dwordx2 v3, v[142:143], {P(pWS)} {SC}\ns_mov_b64 exec, -1")
    for r in range(8): k(f"v_readlane_b32 s{70+r}, v144, {8*r}")
    for r in range(8): k(f"v_readlane_b32 s{78+r}, v140, {8*r}")
    for r in range(8): k(f"v_mov_b32 v{16+r}, s{78+r}")
    for ch in range(10):
        b = UD_ + 4 * ch; u = 24 + 12 * (ch % 3)
        for i in range(4): k(f"v_lshlrev_b32 v{u+2*i}, 16, v{b+i}\nv_and_b32 v{u+2*i+1}, 0xffff0000, v{b+i}")
        for i in range(4): k(f"v_pk_fma_f32 v[{u+2*i}:{u+2*i+1}], v[{u+2*i}:{u+2*i+1}], s[{70+2*i}:{71+2*i}], v[{16+2*i}:{17+2*i}] neg_lo:[0,0,1] neg_hi:[0,0,1]")
        for i in range(4): k(f"v_cvt_pk_bf16_f32 v{u+8+i}, v{u+2*i}, v{u+2*i+1}")
        k(f"global_store_dwordx4 v2, {V4(u+8)}, {P(pWS)} {SC}")
        if ch < 9: k("v_add_u32 v2, 0x40000, v2")
    k("MANUAL")
    k.stamp('lnst')
    k(f"""
    s_branch LF_sa_end
    LF_sa_mod:
    s_cmp_lt_u32 s20, 80
    s_cbranch_scc0 LF_init
    s_cmp_eq_u32 s21, 3
    s_cbranch_scc0 LF_sa_end
    """)
    side_mod(k)
    k("LF_sa_end:")
    k(f"v_mov_b32 v{vPA}, 0\nglobal_load_dword v{vPD}, v{vPA}, {P(pDBG)} sc1 ; @nocheck")
    k.stamp('modst')
    SPINS.append(f"""
    LF_init:
    s_sub_u32 s24, s20, 80
    s_lshl_b32 s24, s24, 1
    s_add_u32 s24, s24, s21
    s_sub_u32 s24, s24, 2
    s_lshl_b32 s24, s24, 11
    s_add_u32 s24, s24, {WS_SYNC}
    v_add_u32 v30, s24, v{vL16}
    v_mov_b32 v26, 0
    v_mov_b32 v27, 0
    v_mov_b32 v28, 0
    v_mov_b32 v29, 0
    global_store_dwordx4 v30, v[26:29], {P(pWS)} sc1
    global_store_dwordx4 v30, v[26:29], {P(pWS)} offset:1024 sc1
    v_mov_b32 v31, 1
    s_waitcnt vmcnt(0)
    s_mov_b64 exec, 1
    global_atomic_add v26, v31, {P(pDBG)} sc1
    s_mov_b64 exec, -1
    s_branch LF_sa_end
    """)

def mlp_setup(k, opts):
    if opts.get('arr', '8x4') == '8x4':
        k("""
        s_and_b32 s24, s2, 7
        s_lshr_b32 s25, s2, 3
        s_lshr_b32 s22, s24, 1
        s_lshl_b32 s22, s22, 3
        s_lshr_b32 s26, s25, 2
        s_add_u32 s22, s22, s26               ; rb
        s_and_b32 s23, s24, 1
        s_lshl_b32 s23, s23, 2
        s_and_b32 s26, s25, 3
        s_add_u32 s23, s23, s26               ; j
        """)
    else:
        k("""
        s_and_b32 s22, s2, 7
        s_lshl_b32 s22, s22, 2
        s_lshr_b32 s26, s2, 6
        s_add_u32 s22, s22, s26               ; rb
        s_bfe_u32 s23, s2, 0x30003            ; j
        """)
    k(f"""
    s_mul_i32 s26, s23, 12
    s_mul_i32 s25, s21, 3
    s_add_u32 s25, s26, s25
    s_lshl_b32 s26, s25, 7
    s_add_u32 s26, s26, {WS_SYNC + F1_OFF}
    v_min_u32 v{vF1A}, 2, v1
    v_lshl_add_u32 v{vF1A}, v{vF1A}, 7, s26
    s_lshl_b32 s24, s23, 2
    s_add_u32 s24, s24, s21
    s_mul_i32 s24, s24, 61440
    s_add_u32 s26, s24, {WS_W1F}
    """)
    srd(k, 4, pWS, 's26', 61440)
    k(f"s_add_u32 s26, s24, {WS_W2F}")
    srd(k, 8, pWS, 's26', 61440)
    k(f"s_mul_i32 s26, s22, 196608\ns_add_u32 s26, s26, {WS_H}")
    srd(k, 12, pWS, 's26', 196608)
    srd(k, 16, pOUT, 0, L * D * 2)
    k(f"""
    s_and_b32 s26, s21, 1
    s_add_u32 s25, s25, s26
    s_lshl_b32 s25, s25, 6
    s_add_u32 s25, s25, {WS_V12}
    v_lshl_add_u32 v{vVA}, v12, 4, s25
    s_mul_i32 s26, s26, 192
    s_sub_u32 s26, 128, s26
    v_add_u32 v{vVA+1}, s26, v{vVA}
    v_add_u32 v{vVA+2}, 6144, v{vVA}
    v_add_u32 v{vVA+3}, 6144, v{vVA+1}
    s_mul_i32 s26, s23, 320
    s_add_u32 s26, s26, 12800
    v_lshl_add_u32 v{vVA+4}, v1, 2, s26
    v_lshl_add_u32 v{vVA+5}, v13, 2, s26
    """)

def conv_setup(k):
    k(f"""
    s_mul_i32 s26, s21, {TAPCH}
    s_add_u32 s26, s26, {TAPS}
    v_sub_u32 v14, 3, v11
    v_mul_u32_u24 v14, {TCS}, v14
    v_lshl_add_u32 v14, v10, 3, v14
    v_add_u32 v14, s26, v14
    v_lshlrev_b32 v15, 4, v12
    v_sub_u32 v15, 48, v15
    v_add_u32 v{vTA}, v14, v15
    v_and_b32 v15, 1, v12                 ; G&1
    v_lshrrev_b32 v9, 1, v12              ; G>>1
    v_lshlrev_b32 v16, 3, v15
    v_sub_u32 v14, v14, v16
    v_add_u32 v14, 8, v14
    v_mul_u32_u24 v16, {2*(B3A - B5A)}, v9
    v_add_u32 v{vT2}, v14, v16
    v_mul_u32_u24 v16, {2*(B9 - B7)}, v9
    v_add_u32 v{vT3}, v14, v16
    s_mul_i32 s27, s21, {CHS}
    v_lshlrev_b32 v14, 5, v13
    v_add_u32 v14, s27, v14
    v_lshl_add_u32 v{vRD}, v12, 4, v14    ; h frag: 32a + 16G
    v_lshl_add_u32 v14, v9, 4, v14
    v_mul_u32_u24 v16, {UD}, v15
    v_add_u32 v{vWU}, v14, v16
    v_lshlrev_b32 v14, 7, v15
    v_lshl_add_u32 v14, v11, 5, v14
    v_lshl_add_u32 v14, v10, 3, v14
    v_add_u32 v14, s27, v14               ; 128(G&1) + 32r + 8cc
    v_mul_u32_u24 v16, {UD - 16}, v9
    v_sub_u32 v17, v14, v16
    v_add_u32 v{vDA}, {O5 - 16}, v17
    v_add_u32 v17, v14, v16
    v_add_u32 v{vD3}, {O7}, v17
    v_lshlrev_b32 v16, 5, v9
    v_sub_u32 v16, 16, v16
    v_add_u32 v{vDB}, v{vDA}, v16
    v_bfe_u32 v16, v1, 1, 2
    v_xor_b32 v16, s21, v16
    v_lshlrev_b32 v16, 4, v16
    v_lshl_add_u32 v16, v13, 7, v16
    v_lshl_add_u32 v16, v15, 6, v16
    v_add_u32 v{vRU}, {OU}, v16
    v_mul_u32_u24 v16, {CHS}, v10
    v_lshrrev_b32 v14, 2, v1
    s_lshl_b32 s28, s21, 4
    v_add_u32 v14, s28, v14               ; segment 0..63
    v_lshl_add_u32 v{vWH}, v14, 6, v16
    v_lshlrev_b32 v14, 8, v14
    v_lshl_add_u32 v14, v10, 4, v14
    s_lshl_b32 s29, s2, 14
    s_add_u32 s28, s29, {WS_NT}
    v_add_u32 v{vNO}, s28, v14
    v_xor_b32 v14, v10, v12
    v_and_b32 v16, 0x3c, v1
    v_lshlrev_b32 v16, 4, v16
    v_lshl_add_u32 v14, v14, 4, v16
    s_lshl_b32 s28, s21, 12
    s_add_u32 s29, s29, s28
    s_add_u32 s28, s29, {WS_NT}
    v_add_u32 v{vUO}, s28, v14
    v_min_u32 v14, 2, v12
    v_mul_u32_u24 v14, 2560, v14
    v_mul_u32_u24 v16, 15360, v11
    v_add_u32 v14, v14, v16
    v_lshl_add_u32 v14, v10, 2, v14
    s_lshl_b32 s29, s2, 4
    v_add_u32 v{vMO}, s29, v14
    v_lshlrev_b32 v{vBP}, 2, v10
    v_add_u32 v{vSA}, {OS}, v{vL16}
    v_lshlrev_b32 v14, 3, v12
    v_sub_u32 v14, v14, v13
    v_add_u32 v14, 15, v14                ; 8G - i + 15
    v_cmp_gt_u32 vcc, 32, v14
    """)
    for fi, (lo, hi_) in enumerate(((0, 0), (11, 13), (6, 10), (5, 11), (4, 12))):
        Wv = ((1 << (hi_ - lo + 1)) - 1) << (lo + 15)
        k(f"v_mov_b32 v16, {Wv}\nv_lshrrev_b32 v16, v14, v16\nv_cndmask_b32 v16, 0, v16, vcc")
        for q in range(4):
            k(f"v_bfe_u32 v17, v16, {2*q}, 1\nv_bfe_u32 v18, v16, {2*q+1}, 1\nv_lshl_or_b32 v17, v18, 16, v17\nv_mul_u32_u24 v{BAND+4*fi+q}, 0x3f80, v17")
    DUM = 2 * 1010
    S = SCT
    k(f"""
    s_mul_i32 s26, s21, {KTS}
    s_add_u32 s26, s26, {KT}
    v_mul_u32_u24 v14, 144, v1
    v_add_u32 v{vKW}, s26, v14
    v_lshrrev_b32 v15, 5, v1              ; hi
    v_lshl_add_u32 v14, v11, 1, v15
    v_mul_u32_u24 v14, 288, v14
    v_bfe_u32 v16, v1, 4, 1
    v_lshl_add_u32 v14, v16, 5, v14
    v_lshl_add_u32 v14, v10, 3, v14
    v_add_u32 v{vKR}, s26, v14
    s_mul_i32 s26, s21, {STGS}
    s_add_u32 s26, s26, {STG}
    v_mov_b32 v24, 0
    v_mov_b32 v25, 0
    v_mov_b32 v26, 0
    v_mov_b32 v27, 0
    v_add_u32 v{S+8}, s26, v{vL16}
    ds_write_b128 v{S+8}, v[24:27]
    ds_write_b128 v{S+8}, v[24:27] offset:1024
    v_mov_b32 v28, s26
    ds_write_b128 v28, v[24:27] offset:2048
    v_and_b32 v34, 1, v1                  ; odd
    v_bfe_u32 v35, v1, 1, 4               ; kappa'
    v_or_b32 v36, v34, v15
    v_mul_u32_u24 v37, 48, v34
    v_mul_u32_u24 v38, 96, v15
    v_add3_u32 v36, v36, v37, v38
    v_add_u32 v36, v36, v35
    v_lshl_add_u32 v{S}, v36, 1, s26
    v_add_u32 v39, {DUM}, v28
    v_add_u32 v36, {2*B5A}, v{S}
    v_cmp_eq_u32 vcc, 0, v35
    v_mul_u32_u24 v37, {B9 - 1 - B7}, v34
    v_lshl_add_u32 v38, v15, 4, v35
    v_cndmask_b32 v{S+1}, v36, v39, vcc
    v_sub_u32 v38, v38, v37
    v_add_u32 v38, {B9}, v38
    v_lshl_add_u32 v{S+2}, v38, 1, s26
    v_add_u32 v37, {2*(BC + 4)}, v28
    v_cmp_eq_u32 vcc, 0, v1
    v_add_u32 v40, {2*(BC + 5)}, v28
    v_add_u32 v41, {2*(B9 + 64)}, v28
    v_cndmask_b32 v{S+3}, v{S+2}, v37, vcc
    v_cndmask_b32 v{S+4}, v39, v40, vcc
    v_cndmask_b32 v{S+5}, v39, v41, vcc
    v_add_u32 v37, {2*(B5A + 32)}, v28
    v_cmp_eq_u32 vcc, 32, v1
    v_and_b32 v38, 31, v1
    v_lshlrev_b32 v38, 4, v38
    v_cndmask_b32 v{S+5}, v{S+5}, v37, vcc
    v_lshl_add_u32 v38, v15, 3, v38
    v_add_u32 v{S+6}, s26, v38            ; 16n + 8hi
    v_and_b32 v37, 30, v1
    v_cmp_eq_u32 vcc, 0, v37
    v_add_u32 v37, {2*1016 - 2*(BA+1+512)}, v28
    v_cndmask_b32 v{S+7}, v37, v{S+6}, vcc
    """)
    for i in range(16): k(f"v_mov_b32 v{KACC+i}, 0")

def cmul(k, z, a, b, t):
    k(f"v_pk_mul_f32 v[{t}:{t+1}], v[{a}:{a+1}], v[{b}:{b+1}] op_sel_hi:[1,0]")
    return f"v_pk_fma_f32 v[{z}:{z+1}], v[{a}:{a+1}], v[{b}:{b+1}], v[{t}:{t+1}] op_sel:[1,1,0] op_sel_hi:[0,1,1] neg_lo:[1,0,0]"
def cmuls(k, lst, tmp):
    for s in [cmul(k, z, a, b, tmp + 2 * i) for i, (z, a, b) in enumerate(lst)]: k(s)

def kgen(k, opts):
    AR, BR, CR, DT, DS = PRM, PRM + 2, PRM + 4, PRM + 18, PRM + 20
    TMP, LR, ACC = 14, 22, KACC
    ML = int(opts.get('modlate', 1))
    k(f"""
    s_mov_b32 s86, {LOG2E}
    s_mov_b32 s87, {INV2PI}
    s_mov_b32 s3, 0
    s_waitcnt vmcnt({20 if ML else 25})
    """)
    silu_frags(k, CDAT, LA + 2, MFR)
    k(f"s_waitcnt vmcnt({0 if ML else 5})")
    if ML: mod_dma(k, LA + 5)
    k(f"""
    v_mul_f32 v14, s86, v{DT}
    v_fma_f32 v15, v{DT}, s86, -v14
    v_fmac_f32 v15, {LOG2E_LO}, v{DT}
    v_exp_f32 v14, v14
    v_mul_f32 v15, {LN2}, v15
    v_fmac_f32 v14, v14, v15
    v_cmp_eq_u32 vcc, 0, v1
    v_cvt_pk_bf16_f32 v14, v14, v14
    v_lshlrev_b32 v{DT}, 16, v14
    v_cndmask_b32 v{ACC}, 0, v{DS}, vcc
    """)
    k.stamp('kparam')
    k(f"""
    LF_kpass:
    v_pk_mul_f32 v[{LR}:{LR+1}], v[{AR}:{AR+1}], v[{DT}:{DT+1}] op_sel_hi:[1,0]
    v_pk_mul_f32 v[{LR}:{LR+1}], v[{LR}:{LR+1}], s[86:87]
    """)
    W = {1: 24, 8: 26, 256: 28, 2: 30, 3: 32, 4: 34, 5: 36, 6: 38, 7: 40, 16: 42, 32: 44, 258: 46, 260: 48, 262: 50, 264: 52, 512: 54}
    Z = [56 + 2 * i for i in range(8)]
    k(f"""
    v_pk_mul_f32 v[20:21], v[{CR}:{CR+1}], v[{BR}:{BR+1}] op_sel_hi:[1,0]
    v_mul_f32 v16, {f2u(8.0)}, v{LR}
    v_mul_f32 v17, {f2u(8.0)}, v{LR+1}
    v_mul_f32 v18, {f2u(256.0)}, v{LR}
    v_mul_f32 v19, {f2u(256.0)}, v{LR+1}
    v_fract_f32 v15, v{LR+1}
    v_fract_f32 v17, v17
    v_fract_f32 v19, v19
    v_exp_f32 v14, v{LR}
    v_exp_f32 v16, v16
    v_exp_f32 v18, v18
    v_pk_fma_f32 v[{Z[0]}:{Z[0]+1}], v[{CR}:{CR+1}], v[{BR}:{BR+1}], v[20:21] op_sel:[1,1,0] op_sel_hi:[0,1,1] neg_lo:[1,0,0]
    """)
    for i, r in enumerate((24, 26, 28)): k(f"v_cos_f32 v{r}, v{15+2*i}\nv_sin_f32 v{r+1}, v{15+2*i}")
    k(f"v_pk_mul_f32 v[{Z[0]}:{Z[0]+1}], v[{Z[0]}:{Z[0]+1}], v[{DT}:{DT+1}] op_sel_hi:[1,0]")
    for i, r in enumerate((24, 26, 28)): k(f"v_pk_mul_f32 v[{r}:{r+1}], v[{r}:{r+1}], v[{14+2*i}:{15+2*i}] op_sel_hi:[1,0]")
    for i in range(6): k(f"v_pk_mov_b32 v[{PRM+2*i}:{PRM+2*i+1}], v[{PRM+6+2*i}:{PRM+7+2*i}], v[{PRM+6+2*i}:{PRM+7+2*i}] op_sel:[0,1]")
    cmuls(k, [(W[2], W[1], W[1]), (W[16], W[8], W[8]), (W[512], W[256], W[256]), (Z[1], Z[0], W[8])], TMP)
    cmuls(k, [(W[3], W[2], W[1]), (W[4], W[2], W[2]), (W[32], W[16], W[16]), (W[258], W[256], W[2])], TMP)
    cmuls(k, [(Z[2], Z[0], W[16]), (Z[3], Z[1], W[16]), (W[5], W[4], W[1]), (W[6], W[4], W[2])], TMP)
    cmuls(k, [(W[7], W[4], W[3]), (W[260], W[256], W[4]), (W[264], W[256], W[8]), (Z[4], Z[0], W[32])], TMP)
    st = {'g': 0}
    NOW = int(opts.get('nokw', 0))
    def half(grp, vals, neg, part):
        pk = 72 + 4 * (st['g'] % 4); st['g'] += 1
        s = '-' if neg and part else ''
        for i in range(4):
            a, b = vals[2 * i], vals[2 * i + 1]
            ra = ('0' if part else '1.0') if a is None else f'{s}v{a+part}'
            k(f"v_cvt_pk_bf16_f32 v{pk+i}, {ra}, {s}v{b+part}")
        if not NOW: k(f"ds_write_b128 v{vKW}, v[{pk}:{pk+3}] offset:{16*grp + 9216*part}")
    def put(grp, vals, neg, between=None):
        half(grp, vals, neg, 0)
        if between: cmuls(k, between, TMP)
        half(grp, vals, neg, 1)
    X = {516: 88, 520: 90, 768: 92, 1024: 94, 772: 96, 1280: 98, 1536: 100, 1792: 102, 2048: W[1]}
    Y = [W[258], W[260], W[262], W[264], W[2], W[3], W[5], W[7]]
    cmuls(k, [(W[262], W[256], W[6]), (Z[5], Z[1], W[32]), (Z[6], Z[2], W[32]), (Z[7], Z[3], W[32])], TMP)
    put(0, [None, W[1], W[2], W[3], W[4], W[5], W[6], W[7]], True, [(X[516], W[512], W[4]), (X[520], W[512], W[8]), (X[768], W[512], W[256]), (X[1024], W[512], W[512])])
    put(1, [W[256], W[256], W[258], W[260], W[260], W[260], W[262], W[264]], True, [(X[772], X[768], W[4]), (X[1280], X[1024], W[256]), (X[1536], X[1024], W[512]), (X[1792], X[1024], X[768])])
    put(4, Z, False, [(Y[0], Z[4], W[32]), (Y[1], Z[5], W[32]), (Y[2], Z[6], W[32]), (Y[3], Z[7], W[32])])
    put(2, [W[512], W[512], W[512], X[516], X[516], X[516], X[520], X[520]], True, [(Y[4], Y[0], W[32]), (Y[5], Y[1], W[32]), (Y[6], Y[2], W[32]), (Y[7], Y[3], W[32])])
    k("s_cmp_eq_u32 s3, 1\ns_cbranch_scc1 LF_arr1\ns_cmp_eq_u32 s3, 2\ns_cbranch_scc1 LF_pol1\nLF_noarr1:")
    SPINS.append(f"LF_pol1:\nglobal_load_dword v{vPD}, v{vPA}, {P(pWS)} sc1\ns_branch LF_noarr1")
    a = Asm('x'); a.names = k.names
    a("LF_arr1:\ns_waitcnt vmcnt(0)")
    wait_flags(a, 'init', vPD, vPA, 32, None)
    a("s_barrier\ns_cmp_eq_u32 s21, 0\ns_cbranch_scc0 LF_arr1b")
    arrive(a, S1_OFF, vPD, vPT)
    a("LF_arr1b:")
    poll_addr(a, S1_OFF, vPA)
    a.stamp('arr1')
    a("s_branch LF_noarr1")
    SPINS.append('\n'.join(a.lines))
    cmuls(k, [(X[2048], X[1024], X[1024]), (Z[0], Y[4], W[32]), (Z[1], Y[5], W[32]), (Z[2], Y[6], W[32])], TMP)
    put(5, Y, False, [(Z[3], Y[7], W[32]), (Z[4], Z[0], W[32]), (Z[5], Z[1], W[32]), (Z[6], Z[2], W[32])])
    put(3, [X[768], X[1024], X[1536], X[2048], X[772], X[1280], X[1792], X[1024]], True, [(Z[7], Z[3], W[32]), (Y[0], Z[4], W[32]), (Y[1], Z[5], W[32]), (Y[2], Z[6], W[32])])
    put(6, Z, False, [(Y[3], Z[7], W[32]), (Y[4], Y[0], W[32]), (Y[5], Y[1], W[32]), (Y[6], Y[2], W[32])])
    cmuls(k, [(Y[7], Y[3], W[32])], TMP)
    put(7, Y, False)
    k.stamp('ktab_last')
    nld = "".join(f"global_load_dwordx4 {V4(NR+4*q)}, v{vNO}, {P(pWS)} offset:{64*q} {SC} ; @nocheck\n" for q in range(4)) + f"global_load_dword v{NR+16}, v{vMO}, {P(pWS)} {SC} ; @nocheck\n"
    k("s_cmp_eq_u32 s3, 2\ns_cbranch_scc1 LF_pol2\nLF_nopoll1:")
    a = Asm('y'); a.names = k.names
    a.stamp('pol2w'); s_w = '\n'.join(a.lines); a.lines = []
    a.stamp('pol2ok'); s_ok = '\n'.join(a.lines)
    SPINS.append(f"""
    LF_pol2:
    s_waitcnt vmcnt(0)
    {s_w}
    v_cmp_gt_u32 vcc, 16, v{vPD}
    s_mov_b32 s71, 0
    s_cbranch_vccnz LF_pol3
    s_mov_b32 s71, 1
    {nld}{s_ok}
    s_branch LF_nopoll1
    LF_pol3:
    global_load_dword v{vPD}, v{vPA}, {P(pWS)} sc1
    s_branch LF_nopoll1
    """)
    FR = 56
    order = [0, 1, 2, 3, 4, 5, 6, 7]
    def rd(s):
        return [f"ds_read_b64_tr_b16 v[{FR + 8*(s % 4) + 4*tb + 2*h}:{FR + 8*(s % 4) + 4*tb + 2*h + 1}], v{vKR} offset:{(16*(s % 4) + h)*144 + 64*tb + 9216*(s // 4)}" for tb in range(2) for h in range(2)]
    k("AUTO")
    for s in range(3):
        for t in rd(s): k(t)
    for s in range(8):
        r = FR + 8 * (s % 4)
        k(f"v_mfma_f32_32x32x16_bf16 v[{ACC}:{ACC+15}], v[{r}:{r+3}], v[{r+4}:{r+7}], v[{ACC}:{ACC+15}]")
        if s + 3 < 8:
            for t in rd(s + 3): k(t)
    k(f"""MANUAL
    s_add_u32 s3, s3, 1
    s_cmp_eq_u32 s3, 1
    s_cbranch_scc1 LF_cmod
    s_cmp_eq_u32 s3, 2
    s_cbranch_scc1 LF_kpass
    """)
    k.stamp('kg3')
    k("s_cmp_eq_u32 s71, 1\ns_cbranch_scc1 LF_haven")
    wait_flags(k, 's1', vPD, vPA, 16, 0)
    k(nld + "LF_haven:")
    k.stamp('s1')
    S = SCT
    k(f"""
    v_cmp_ne_u32 vcc, 33, v1
    s_mul_i32 s26, s21, {TAPCH}
    s_add_u32 s26, s26, {TAPS}
    v_add_u32 v14, s26, v{vL16}
    v_cvt_pk_bf16_f32 v24, v{ACC}, v{ACC+1}
    v_cvt_pk_bf16_f32 v25, v{ACC+2}, v{ACC+3}
    v_cvt_pk_bf16_f32 v26, v{ACC+4}, v{ACC+5}
    v_cvt_pk_bf16_f32 v27, v{ACC+6}, v{ACC+7}
    ds_write_b64 v{S+6}, v[24:25] offset:{2*(BA+1)}
    v_cvt_pk_bf16_f32 v28, v{ACC+8}, v{ACC+9}
    v_cvt_pk_bf16_f32 v29, v{ACC+10}, v{ACC+11}
    ds_write_b64 v{S+6}, v[26:27] offset:{2*(BA+1) + 512}
    v_cvt_pk_bf16_f32 v30, v{ACC+8}, v{ACC+12}
    v_cndmask_b32 v29, 0, v29, vcc
    ds_write_b16 v{S+1}, v30
    v_cvt_pk_bf16_f32 v31, v{ACC+13}, v{ACC+14}
    ds_write_b64 v{S+7}, v[28:29] offset:{2*(BA+1) + 1024}
    v_cvt_pk_bf16_f32 v32, v{ACC+15}, v{ACC+15}
    ds_write_b16_d16_hi v{S}, v30 offset:{2*B5A + 32}
    ds_write_b16 v{S+3}, v31
    ds_write_b16 v{S+4}, v31
    ds_write_b16_d16_hi v{S+2}, v31 offset:64
    ds_write_b16 v{S+5}, v32
    AUTO
    ds_read_b128 v[24:27], v{S+8}
    ds_read_b64 v[28:29], v{S+8} offset:16
    ds_read_b128 v[48:51], v{S+8} offset:1024
    ds_read_b64 v[52:53], v{S+8} offset:1040
    """)
    for q, b in enumerate((24, 48)):
        k(f"ds_write_b128 v14, v[{b+2}:{b+5}] offset:{1024*q + 3*TCS}")
        for i in range(4): k(f"v_alignbit_b32 v{b+8+i}, v{b+i+1}, v{b+i}, 16")
        k(f"ds_write_b128 v14, v[{b+8}:{b+11}] offset:{1024*q}")
        for i in range(4): k(f"v_mov_b32 v{b+12+i}, v{b+i+1}")
        k(f"ds_write_b128 v14, v[{b+12}:{b+15}] offset:{1024*q + TCS}")
        for i in range(4): k(f"v_alignbit_b32 v{b+16+i}, v{b+i+2}, v{b+i+1}, 16")
        k(f"ds_write_b128 v14, v[{b+16}:{b+19}] offset:{1024*q + 2*TCS}")
    k("MANUAL")
    k.stamp('kout')

TA0 = 128; T20 = 200
CACC = 12; CU_ = 44; RING = 76; NRING = 8; WTMP = 108; DEC = 132

def conv(k, opts):
    tfr = [f"ds_read_b64_tr_b16 a[{TA0+4*m+2*h}:{TA0+4*m+2*h+1}], v{vTA} offset:{64*m - 8*h + 8}" for m in range(18) for h in range(2)]
    for idx, (base, mu, va) in enumerate([(B5A, 0, vT2), (B5A, 1, vT2), (B5A, 2, vT2), (B5B, 0, vT2), (B5B, 1, vT2), (B5B, 2, vT2)] + [(B7, mu, vT3) for mu in range(4)]):
        tfr += [f"ds_read_b64_tr_b16 a[{T20+4*idx+2*h}:{T20+4*idx+2*h+1}], v{va} offset:{2*(base-3) - 8 + 32*mu - 16*h}" for h in range(2)]
    for t in tfr: k(t)
    k(f"""
    s_lshl_b32 s29, s20, 12
    s_add_u32 s29, s29, {WS_X1}
    s_add_u32 s34, s68, s29
    s_addc_u32 s35, s69, 0
    s_lshl_b32 s28, s21, 12
    s_add_u32 m0, s28, {OU}
    s_add_u32 s28, s28, {WS_ST}
    v_add_u32 v16, s28, v{vL16}
    s_mul_i32 s27, s21, {CHS}
    v_mov_b32 v12, 0
    v_mov_b32 v13, 0
    v_mov_b32 v14, 0
    v_mov_b32 v15, 0
    v_min_u32 v17, 29, v1
    v_lshl_add_u32 v17, v17, 4, s27
    v_min_u32 v18, 3, v1
    v_mul_u32_u24 v18, {UD}, v18
    v_add_u32 v18, s27, v18
    s_add_u32 s28, s21, 32
    s_waitcnt vmcnt(0)
    v_add_f32_dpp v40, v{NR+16}, v{NR+16} row_ror:4 row_mask:0xf bank_mask:0xf
    v_add_f32_dpp v40, v40, v40 row_ror:8 row_mask:0xf bank_mask:0xf
    v_cvt_pk_bf16_f32 v40, v40, v40
    v_lshlrev_b32 v40, 16, v40
    ds_bpermute_b32 v42, v{vBP}, v40
    ds_bpermute_b32 v43, v{vBP}, v40 offset:64
    v_readlane_b32 s70, v40, s28
    s_waitcnt lgkmcnt(0)
    s_barrier
    v_add_f32 v43, 1.0, v43
    v_cvt_pk_bf16_f32 v43, v43, 0
    v_lshlrev_b32 v41, 16, v43
    """)
    k.stamp('ndata')
    HT = DEC
    dma = [f"global_load_lds_dwordx4 v{vUO}, {P(pWS)} offset:{1024*q} {SC} ; @w:U" for q in range(4)]
    dma[3] += "\ns_add_u32 m0, m0, 16384"
    dma += [f"global_load_lds_dwordx4 v16, {P(pWS)} offset:{1024*q} {SC} ; @w:U" for q in range(4)]
    k(f"ds_write_b128 v17, v[12:15]\nds_write_b128 v18, v[12:15] offset:{O3 - 16}")
    for q in range(5):
        if q < 4:
            for x in range(8): k(f"v_dot2_f32_bf16 v{HT+8*q+x}, v{NR+4*q+(x>>1)}, v{41 if x & 1 else 43}, v42")
        if q > 0:
            for i in range(4): k(f"v_cvt_pk_bf16_f32 v{HT+32+4*(q-1)+i}, v{HT+8*(q-1)+2*i}, v{HT+8*(q-1)+2*i+1}")
            k(f"ds_write_b128 v{vWH}, {V4(HT+32+4*(q-1))} offset:{OH + 16*(q-1)}")
    k("s_waitcnt lgkmcnt(0)\ns_barrier")
    for t in dma: k(t)
    k.stamp('prep')
    started = set()
    def M(T, a, b):
        s = mf(CACC + 4 * T, a, b, T not in started); started.add(T); return s
    slots, items = [], []
    def item(e, kind, text, deps=()):
        items.append(dict(id=len(items), e=e, kind=kind, text=text, deps=list(deps))); return len(items) - 1
    ps = list(range(-7, 57))
    LOOK = NRING - 2
    rdtxt = lambda i: f"ds_read_b128 {V4(RING + 4*(i % NRING))}, v{vRD} offset:{64*(ps[i] + 7)}"
    ring, lastw, wwrite, ures = {}, {}, {}, {}
    DI = {'C': 0, 'A': 4, 'B': 10}
    ubar = None
    for i, p in enumerate(ps):
        if i + LOOK < len(ps): ring[i + LOOK] = item(len(slots), 'ring', rdtxt(i + LOOK))
        b = V4(RING + 4 * (i % NRING)); dep = [ring[i]] if i in ring else []
        for T in range(8):
            m = 8 * T - p
            if 0 <= m <= 16: slots.append((M(T, A4(TA0 + 4 * m), b), dep))
            if T >= 4 and m == 32: slots.append((M(T, A4(TA0 + 68), b), dep))
        if p % 8 == 0 and 0 <= p <= 40:
            T = p // 8
            for pr, off in enumerate((O3, O7)):
                if pr == 1 and T >= 4: continue
                t = WTMP + 8 * pr; o = WTMP + 16 + 4 * pr
                for wi in range(2): slots.append((mf(t + 4 * wi, V4(BAND + 4 + 8 * pr + 4 * wi), b, True), dep + lastw.get(pr, [])))
                e = len(slots) + 3
                c = [item(e, 'va', f"v_cvt_pk_bf16_f32 v{o+q}, v{t+2*q}, v{t+2*q+1}") for q in range(4)]
                s0 = item(e + 3, 'va', f"v_permlane16_swap_b32 v{o}, v{o+2}", c)
                s1 = item(e + 3, 'va', f"v_permlane16_swap_b32 v{o+1}, v{o+3}", c)
                w = item(e + 4, 'ds', f"ds_write_b128 v{vWU}, {V4(o)} offset:{off + 512*T}", [s0, s1])
                lastw[pr] = [w]; wwrite.setdefault(T, []).append(w)
            for kind in 'CAB':
                if kind == 'C' and T > 3: continue
                va = {'A': vDA, 'B': vDB, 'C': vD3}[kind]
                r = DEC + 4 * (DI[kind] + T)
                lastw[(kind, T)] = [item(len(slots) + 4, 'ds', f"ds_read_b64_tr_b16 v[{r+2*h}:{r+2*h+1}], v{va} offset:{512*T + 256*h}", wwrite[T]) for h in range(2)]
        if p == 24: ubar = item(len(slots), 'va', "s_barrier ; @r:U")
        if p in (26, 29, 33, 36, 39, 44, 48, 52):
            T = (26, 29, 33, 36, 39, 44, 48, 52).index(p)
            ures[T] = item(len(slots), 'ds', f"ds_read_b128 {V4(CU_ + 4*T)}, v{vRU} offset:{2048*T}", [ubar])
    E0 = int(opts.get('e0', 70)); NE1 = int(opts.get('ne1', 16))
    f0_ = item(E0, 'va', f"global_load_dword v{vF1D}, v{vF1A}, {P(pWS)} sc1")
    f1 = item(E0 + 45, 'va', f"v_cmp_gt_u32 vcc, 1, v{vF1D}\ns_cmp_eq_u64 vcc, 0\ns_cselect_b32 s6, 61440, 0", [f0_])
    ld = Loader(); prev = f1
    for i in range(NE1): prev = item(E0 + 47 + i * (198 - E0 - 52) // NE1, 'va', ld.w1(), [prev])
    fm = {}; ndirect = len(slots)
    allw = [w for ws_ in wwrite.values() for w in ws_]
    for T in range(8):
        idr = RING + 4 * (T % 4)
        slots.append((f"v_mfma_f32_16x16x32_bf16 {V4(idr)}, {V4(BAND)}, {V4(CU_ + 4*T)}, 0", [ures[T]] + fm.get(T - 4, [])))
        e0 = len(slots) + 3
        for kind, b0, nmu, t0 in (('C', 4, 4, 6), ('A', 2, 3, 0), ('B', 2, 3, 3)):
            for mu in range(nmu):
                P_ = T - b0 - mu
                if P_ >= 0: slots.append((M(T, V4(DEC + 4 * (DI[kind] + P_)), A4(T20 + 4 * (t0 + mu))), lastw[(kind, P_)]))
        e = len(slots) + 3
        sr = (202, 92, 100)[T % 3]
        sd = [item(ndirect - (8 if T == 0 else 0), 'ds', f"ds_read_b128 {V4(sr+4*h)}, v{vSA} offset:{2048*T + 1024*h}", [ubar] + fm.get(T - 3, [])) for h in range(2)]
        f0 = [item(e0, 'va', f"v_fma_f32 v{idr+r}, v{idr+r}, v{sr+2*r}, v{sr+2*r+1}", sd) for r in range(4)]
        fm[T] = [item(e, 'va', f"v_fma_f32 v{CACC+4*T+r}, v{CACC+4*T+r}, s70, v{idr+r}", f0) for r in range(4)]
        o = WTMP + 4 * (T >> 1) + 2 * (T & 1)
        fm[('c', T)] = [item(e, 'va', f"v_cvt_pk_bf16_f32 v{o+h}, v{CACC+4*T+2*h}, v{CACC+4*T+2*h+1}", fm[T] + allw) for h in range(2)]
        if T & 1: item(e, 'va', f"global_store_dwordx4 v{vL16}, {V4(WTMP + 4*(T >> 1))}, s[34:35] offset:{1024*(T >> 1)} {SC}", fm[('c', T)] + fm[('c', T - 1)] + [f1])
    k("AUTO")
    for i in range(LOOK): k(rdtxt(i))
    weave(k, slots, items)
    k("MANUAL")
    k.stamp('convend')

def weave(k, slots, items):
    done = set()
    def emit(n):
        if n in done: return
        for d in items[n]['deps']: emit(d)
        done.add(n); k(items[n]['text'])
    def pick(kinds, i):
        for it in items:
            if it['id'] not in done and it['kind'] in kinds and it['e'] <= i and all(d in done for d in it['deps']): return it['id']
        return None
    for i, (m, deps) in enumerate(slots):
        for d in deps: emit(d)
        k(m)
        n = pick(('ring',), i)
        if n is None: n = pick(('ds',), i)
        if n is not None: emit(n)
        for _ in range(1 if n is not None else 2):
            n2 = pick(('va',), i)
            if n2 is not None: emit(n2)
    for it in items: emit(it['id'])

def side(k):
    k(f"s_waitcnt vmcnt(0)\ns_barrier\ns_cmp_eq_u32 s21, 0\ns_cbranch_scc0 LF_sd1")
    wait_flags(k, 'init2', vPD, vPA, 32, None)
    arrive(k, S1_OFF, vPD, vPT)
    k.stamp('arr1')
    k("LF_sd1:")
    k(f"""
    s_lshr_b32 s32, s20, 5
    s_lshl_b32 s32, s32, 5
    s_and_b32 s33, s20, 7
    s_lshl_b32 s33, s33, 2
    s_add_u32 s32, s32, s33
    s_bfe_u32 s33, s20, 0x20003
    s_add_u32 s32, s32, s33               ; f tile
    v_lshrrev_b32 v2, 1, v1
    v_mul_u32_u24 v2, 3072, v2
    v_and_b32 v3, 1, v1
    v_lshl_add_u32 v2, v3, 4, v2
    s_mul_i32 s33, s21, {160*3072}
    s_lshl_b32 s24, s32, 5
    s_add_u32 s33, s33, s24
    v_add_u32 v2, s33, v2
    s_mul_i32 s26, s21, 5120
    s_add_u32 m0, s26, {W1R}
    s_lshr_b32 s24, s20, 1
    s_and_b32 s25, s20, 1                 ; half
    """)
    for i in range(5):
        k(f"global_load_lds_dwordx4 v2, {P(pW1)}")
        if i < 4: k(f"s_add_u32 m0, m0, 1024\nv_add_u32 v2, {32*3072}, v2")
    k(f"""
    s_mul_i32 s33, s24, {32*1280}
    s_mul_i32 s26, s25, 640
    s_add_u32 s33, s33, s26
    s_mul_i32 s27, s21, 320
    """)
    for i in range(5):
        k(f"""
        v_add_u32 v3, {64*i}, v1
        v_add_u32 v3, s27, v3
        v_mul_u32_u24 v4, 1639, v3
        v_lshrrev_b32 v4, 16, v4
        v_mul_u32_u24 v4, 640, v4
        v_lshl_add_u32 v3, v3, 4, v4
        v_add_u32 v{124+i}, s33, v3
        """)
    k(f"""
    v_lshrrev_b32 v4, 4, v1               ; G
    v_bfe_u32 v2, v1, 2, 2                ; r
    v_and_b32 v9, 3, v1
    v_lshl_add_u32 v11, v4, 2, v2
    v_mul_u32_u24 v11, 640, v11
    v_lshl_add_u32 v11, v9, 3, v11
    s_mul_i32 s26, s21, 160
    s_add_u32 s26, s26, {W2R}
    v_add_u32 v11, s26, v11
    v_lshrrev_b32 v5, 1, v4
    v_and_b32 v6, 1, v4
    v_lshlrev_b32 v5, 4, v5
    v_lshl_add_u32 v5, v6, 2, v5          ; 16(G>>1) + 4(G&1)
    v_add_u32 v10, v5, v2
    v_lshlrev_b32 v10, 5, v10
    v_lshl_add_u32 v10, v9, 3, v10
    s_mul_i32 s26, s21, 5120
    s_add_u32 s26, s26, {W1R}
    v_add_u32 v10, s26, v10
    ; W2F destination: ((j*4 + KS/12)*12 + order(KS%12))*5 KB, j = 4*half + wave
    s_mul_hi_u32 s26, s24, 0x15555556
    s_mul_i32 s27, s26, 12
    s_sub_u32 s27, s24, s27
    s_lshl_b32 s27, s27, 2
    s_mov_b32 s28, {KORD & 0xffffffff}
    s_mov_b32 s29, {KORD >> 32}
    s_lshr_b64 s[28:29], s[28:29], s27
    s_and_b32 s27, s28, 15
    s_lshl_b32 s28, s25, 2
    s_add_u32 s28, s28, s21
    s_lshl_b32 s28, s28, 2
    s_add_u32 s26, s26, s28
    s_mul_i32 s26, s26, 12
    s_add_u32 s26, s26, s27
    s_mul_i32 s26, s26, 5120
    s_add_u32 s26, s26, {WS_W2F}
    v_add_u32 v129, s26, v{vL16}
    s_waitcnt vmcnt(0)
    """)
    for i in range(5):
        for h in range(2): k(f"ds_read_b64_tr_b16 v[{40+4*i+2*h}:{41+4*i+2*h}], v10 offset:{1024*i + 256*h}")
    poll_addr(k, S1_OFF, vPA)
    k(f"""
    global_load_dword v{vPD}, v{vPA}, {P(pWS)} sc1
    s_mul_i32 s26, s21, 640
    s_add_u32 s26, s26, 7680
    v_lshl_add_u32 v14, v1, 2, s26
    v_and_b32 v15, 31, v1
    v_lshl_add_u32 v15, v15, 2, s26
    ; W1F destination
    s_mul_hi_u32 s26, s32, 0x55555556
    s_mul_i32 s27, s26, 3
    s_sub_u32 s27, s32, s27
    s_add_u32 s28, s27, 2
    s_cmp_ge_u32 s28, 3
    s_cselect_b32 s29, 3, 0
    s_sub_u32 s28, s28, s29
    s_bitcmp1_b32 s26, 0
    s_cselect_b32 s27, s28, s27           ; pass
    s_mul_i32 s26, s26, 60
    s_mul_i32 s28, s21, 10
    s_add_u32 s28, s28, s27
    s_mul_i32 s29, s21, 5
    s_add_u32 s29, s29, 40
    s_cmp_lt_u32 s27, 2
    s_cselect_b32 s28, s28, s29
    s_cselect_b32 s33, 2, 1
    s_lshl_b32 s33, s33, 10
    s_add_u32 s26, s26, s28
    s_lshl_b32 s26, s26, 10
    s_add_u32 s26, s26, {WS_W1F}
    v_add_u32 v13, s26, v{vL16}
    s_lshl_b32 s26, s21, 10
    s_add_u32 s26, s26, {VRED + 512}
    v_lshl_add_u32 v6, v1, 2, s26
    v_and_b32 v7, 31, v1
    v_lshl_add_u32 v2, v7, 1, s26
    v_lshl_add_u32 v7, v7, 2, s26
    v_lshl_add_u32 v9, v1, 1, s26
    v_lshl_add_u32 v3, v5, 1, s26
    v_lshl_add_u32 v5, v5, 2, s26
    v_mov_b32 v100, 0x3f803f80
    v_mov_b32 v101, 0x3f803f80
    v_mov_b32 v102, 0x3f803f80
    v_mov_b32 v103, 0x3f803f80
    s_waitcnt lgkmcnt(0)
    """)
    for i in range(5):
        for q in range(4): k(f"v_lshlrev_b32 v{136+8*i+2*q}, 16, v{40+4*i+q}\nv_and_b32 v{137+8*i+2*q}, 0xffff0000, v{40+4*i+q}")
    k.stamp('w1raw')
    k("s_cmp_eq_u32 s21, 0\ns_cbranch_scc0 LF_sd2")
    wait_flags(k, 's1b', vPD, vPA, 16, 0)
    k("LF_sd2:\ns_barrier")
    k.stamp('s1')
    k("AUTO")
    for kq in range(4):
        for wh in range(2):
            for c in range(3):
                k(f"global_load_dword v{60 + 6*kq + 3*wh + c}, v{14 if c < 2 else 15}, {P(pWS)} offset:{2560*wh + 256*c} {SC}")
        if kq < 3: k("v_add_u32 v14, 15360, v14\nv_add_u32 v15, 15360, v15")
    for i in range(3): k(f"v_pk_add_f32 v[{60+2*i}:{61+2*i}], v[{60+2*i}:{61+2*i}], v[{66+2*i}:{67+2*i}]")
    for i in range(3): k(f"v_pk_add_f32 v[{72+2*i}:{73+2*i}], v[{72+2*i}:{73+2*i}], v[{78+2*i}:{79+2*i}]")
    for i in range(3): k(f"v_pk_add_f32 v[{60+2*i}:{61+2*i}], v[{60+2*i}:{61+2*i}], v[{72+2*i}:{73+2*i}]")
    for c in range(3): k(f"v_cvt_pk_bf16_f32 v{60+c}, v{63+c}, v{60+c}")
    for c in range(3): k(f"v_lshlrev_b32 v{63+c}, 16, v{60+c}\nds_write_b16_d16_hi v{9 if c < 2 else 2}, v{60+c} offset:{640 + 128*c}")
    for c in range(3): k(f"v_add_f32 v{63+c}, 1.0, v{63+c}")
    for c in range(3): k(f"v_cvt_pk_bf16_f32 v{63+c}, v{63+c}, v{63+c}")
    for c in range(3): k(f"v_lshlrev_b32 v{63+c}, 16, v{63+c}\nds_write_b32 v{6 if c < 2 else 7}, v{63+c} offset:{256*c}")
    k.stamp('ndata')
    for i in range(5):
        g = 180 + 12 * i
        for h in range(2): k(f"ds_read_b128 {V4(g+4*h)}, v5 offset:{128*i + 32*h}")
        for h in range(2): k(f"ds_read_b64 v[{g+8+2*h}:{g+9+2*h}], v3 offset:{640 + 64*i + 16*h}")
    for i in range(5):
        g = 180 + 12 * i; u = 136 + 8 * i; o4 = 16 + 4 * i
        for q in range(4): k(f"v_pk_mul_f32 v[{u+2*q}:{u+2*q+1}], v[{u+2*q}:{u+2*q+1}], v[{g+2*q}:{g+2*q+1}]")
        for q in range(4): k(f"v_cvt_pk_bf16_f32 v{o4+q}, v{u+2*q}, v{u+2*q+1}")
        k(f"global_store_dwordx4 v13, {V4(o4)}, {P(pWS)} {SC}" + ("\nv_add_u32 v13, s33, v13" if i < 4 else ""))
    for i in range(5):
        k(mf(112, V4(16 + 4 * i), V4(100), i == 0))
        k(mf(116, V4(40 + 4 * i), V4(188 + 12 * i), i == 0))
    k(f"""
    s_lshl_b32 s27, s21, 7
    s_add_u32 s27, s27, {VRED}
    v_lshl_add_u32 v13, v4, 4, s27
    ds_write_b128 v13, v[112:115]
    ds_write_b128 v13, v[116:119] offset:64
    MANUAL
    s_waitcnt lgkmcnt(0)
    s_barrier
    s_cmp_eq_u32 s21, 0
    s_cbranch_scc0 LF_sd3
    v_and_b32 v13, 31, v1
    v_lshlrev_b32 v13, 2, v13
    v_add_u32 v13, {VRED}, v13
    ds_read_b32 v16, v13
    ds_read_b32 v17, v13 offset:128
    ds_read_b32 v18, v13 offset:256
    ds_read_b32 v19, v13 offset:384
    v_bfe_u32 v14, v1, 4, 1
    v_mul_u32_u24 v14, 6144, v14
    v_and_b32 v15, 15, v1
    v_lshl_add_u32 v14, v15, 2, v14
    s_lshl_b32 s27, s32, 6
    s_add_u32 s27, s27, {WS_V12}
    v_add_u32 v14, s27, v14
    s_waitcnt lgkmcnt(0)
    v_add_f32 v16, v16, v17
    v_add_f32 v18, v18, v19
    v_add_f32 v16, v16, v18
    global_store_dword v14, v16, {P(pWS)} {SC}
    LF_sd3:
    s_mul_i32 s26, s21, 5120
    s_add_u32 m0, s26, {W2R}
    s_nop 0
    """)
    for i in range(5): k(f"global_load_lds_dwordx4 v{124+i}, {P(pW2)}" + ("\ns_add_u32 m0, m0, 1024" if i < 4 else ""))
    k(f"""
    s_waitcnt vmcnt(5)
    s_barrier
    s_cmp_eq_u32 s21, 0
    s_cbranch_scc0 LF_sd4
    s_lshl_b32 s27, s32, 7
    s_add_u32 s27, s27, {WS_SYNC + F1_OFF}
    v_mov_b32 v14, s27
    v_mov_b32 v15, 1
    s_mov_b64 exec, 1
    global_store_dword v14, v15, {P(pWS)} sc1
    s_mov_b64 exec, -1
    LF_sd4:
    """)
    k.stamp('f1pub')
    k("s_waitcnt vmcnt(0)\ns_barrier\nAUTO")
    for dt in range(5):
        for h in range(2): k(f"ds_read_b64_tr_b16 v[{16+4*dt+2*h}:{17+4*dt+2*h}], v11 offset:{10240*h + 32*dt}")
    for dt in range(5):
        k(f"global_store_dwordx4 v129, {V4(16+4*dt)}, {P(pWS)} {SC}" + ("\nv_add_u32 v129, 1024, v129" if dt < 4 else ""))
    k("MANUAL")
    k.stamp('convend')

ST = 16; V12 = 24; ACA, ACB = 48, 80; BF = 96; NBF = 6; TMP = 192; PKD = 208; SQ, SM, ONES = 224, 228, 232; XA = 236
AC2 = 24; HR = 104; NRK = 8; GB = 232; HA = 4
BORD = list(range(20 - NBF, 20)) + list(range(20 - NBF))
W2SLOT = list(range(40)) + [40 + ks for ks in BORD]

class Loader:
    def __init__(self): self.n1 = 0; self.n2 = 0; self.blk = {}
    def txt(self, n, slot, srd_, sreg):
        t = ""
        if self.blk.get(sreg) != n // 4: t = f"s_mov_b32 s{sreg}, {n // 4 * 4096}\n"; self.blk[sreg] = n // 4
        return t + f"buffer_load_dwordx4 a[{4*slot}:{4*slot+3}], v{vL16}, s[{srd_}:{srd_+3}], s{sreg} offen offset:{(n % 4) * 1024} {SC}"
    def w1(self): self.n1 += 1; return self.txt(W2SLOT[self.n1 - 1], W2SLOT[self.n1 - 1], 4, 28)
    def w2(self): self.n2 += 1; return self.txt(self.n2 - 1, W2SLOT[self.n2 - 1], 8, 29)
    def next(self, free):
        if self.n1 < 60: return self.w1()
        if self.n2 < min(free, 60): return self.w2()
        return None

def breads(ks, buf):
    b = BF + 16 * (buf % NBF)
    return [f"ds_read_b64_tr_b16 v[{b+4*s+2*h}:{b+4*s+2*h+1}], v{XA + s + (4 if ks >= 10 else 0)} offset:{4096*(ks % 10) + 1024*h}" for s in range(4) for h in range(2)]

def epilogue(acc, p, dst, dstep):
    v1, v2 = V12 + 8 * p, V12 + 8 * p + 4
    o = []
    for s in range(4):
        for h in range(2):
            a = acc + 4 * s + 2 * h
            o.append(f"v_pk_fma_f32 v[{a}:{a+1}], v[{v1+2*h}:{v1+2*h+1}], v[{ST+2*s}:{ST+2*s+1}], v[{a}:{a+1}] op_sel_hi:[1,0,1] neg_lo:[1,0,0] neg_hi:[1,0,0]")
    for s in range(4):
        for h in range(2):
            a = acc + 4 * s + 2 * h
            o.append(f"v_pk_fma_f32 v[{a}:{a+1}], v[{a}:{a+1}], v[{ST+2*s}:{ST+2*s+1}], v[{v2+2*h}:{v2+2*h+1}] op_sel:[0,1,0] op_sel_hi:[1,1,1]")
    o += [f"v_exp_f32 v{TMP+i}, v{acc+i}" for i in range(16)]
    o += [f"v_pk_add_f32 v[{TMP+2*i}:{TMP+2*i+1}], v[{TMP+2*i}:{TMP+2*i+1}], 1.0 op_sel_hi:[1,0]" for i in range(8)]
    o += [f"v_rcp_f32 v{TMP+i}, v{TMP+i}" for i in range(16)]
    o += [f"v_pk_mul_f32 v[{acc+2*i}:{acc+2*i+1}], v[{acc+2*i}:{acc+2*i+1}], v[{TMP+2*i}:{TMP+2*i+1}]" for i in range(8)]
    o += [f"v_cvt_pk_bf16_f32 v{dst + dstep*s + h}, v{acc+4*s+2*h}, v{acc+4*s+2*h+1}" for s in range(4) for h in range(2)]
    return o

def sprinkle(k, ops, extra):
    extra = [e for e in extra if e]
    step = len(ops) / (len(extra) + 1); nxt = step
    for i, o in enumerate(ops):
        k(o)
        while extra and i + 1 >= nxt: k(extra.pop(0)); nxt += step
    for e in extra: k(e)

def mlp(k, opts):
    PRE1 = int(opts.get('pre1', 4)); PB = int(opts.get('pb', 40))
    ld = Loader()
    ld.n1 = int(opts.get('ne1', 16))
    for i in range(PRE1): k(ld.w1() + " ; @skip")
    k(f"s_waitcnt vmcnt({PRE1})\ns_barrier\ns_cmp_eq_u32 s21, 0\ns_cbranch_scc0 LF_m1")
    arrive(k, S2_OFF, 12, 13)
    k("LF_m1:")
    k.stamp('arr2')
    k(f"s_cmp_eq_u32 s6, 0\ns_cbranch_scc0 LF_w1ok\nglobal_load_dword v{vF1D}, v{vF1A}, {P(pWS)} sc1")
    wait_flags(k, 'f1', vF1D, vF1A, 1, 0)
    k("s_mov_b32 s6, 61440")
    l2 = Loader()
    while l2.n1 < ld.n1: k(l2.w1())
    k("LF_w1ok:"); ld.blk = {}
    k.stamp('w1ok')
    for kq in range(4):
        k(f"global_load_dword v{48+2*kq}, v{vVA+4}, {P(pWS)} {SC}\nglobal_load_dword v{49+2*kq}, v{vVA+5}, {P(pWS)} offset:256 {SC}")
        if kq < 3: k(f"v_add_u32 v{vVA+4}, 15360, v{vVA+4}\nv_add_u32 v{vVA+5}, 15360, v{vVA+5}")
    for i, (va, off) in enumerate(((0, 0), (2, 0), (0, 64), (2, 64), (1, 0), (3, 0))):
        k(f"global_load_dwordx4 {V4(V12 + 4*i)}, v{vVA+va}, {P(pWS)} offset:{off} {SC}")
    n0 = ld.n1
    while ld.n1 < PB: k(ld.w1())
    k(f"""
    s_mul_i32 s26, s21, 320
    s_add_u32 s26, s26, {GBL}
    v_lshl_add_u32 v12, v1, 2, s26
    v_and_b32 v13, 15, v1
    v_lshl_add_u32 v13, v13, 2, s26
    s_waitcnt vmcnt({6 + PB - n0})
    v_pk_add_f32 v[48:49], v[48:49], v[50:51]
    v_pk_add_f32 v[52:53], v[52:53], v[54:55]
    v_pk_add_f32 v[48:49], v[48:49], v[52:53]
    v_cvt_pk_bf16_f32 v48, v48, v49
    v_and_b32 v49, 0xffff0000, v48
    v_lshlrev_b32 v48, 16, v48
    v_mul_f32 v48, {LN2 + 0x80000000}, v48
    v_mul_f32 v49, {LN2 + 0x80000000}, v49
    ds_write_b32 v12, v48
    ds_write_b32 v13, v49 offset:256
    v_lshrrev_b32 v14, 4, v1              ; G
    v_bfe_u32 v12, v1, 2, 2               ; r
    v_and_b32 v13, 1, v14
    v_lshl_add_u32 v15, v13, 2, v12
    v_lshrrev_b32 v13, 1, v14
    v_lshl_add_u32 v13, v13, 4, v15
    v_lshlrev_b32 v13, 7, v13
    v_and_b32 v12, 1, v1
    v_lshl_add_u32 v13, v12, 3, v13
    v_bfe_u32 v12, v1, 1, 1
    v_lshl_add_u32 v13, v12, 4, v13
    v_and_b32 v15, 6, v15
    """)
    for s in range(4):
        k(f"s_xor_b32 s26, s21, {s}\ns_lshl_b32 s{80+s}, s26, 10\ns_lshl_b32 s26, s26, 1\nv_xor_b32 v12, s26, v15\nv_lshl_add_u32 v{XA+s}, v12, 4, v13\nv_add_u32 v{XA+4+s}, 40960, v{XA+s}")
    k(f"""
    v_lshrrev_b32 v12, 3, v1
    v_and_b32 v13, 6, v12
    v_and_b32 v15, 7, v1
    v_xor_b32 v13, v13, v15
    v_lshlrev_b32 v12, 12, v12
    v_lshl_add_u32 v3, v13, 4, v12
    s_lshl_b32 s26, s21, 15
    s_lshl_b32 s27, s22, 7
    s_add_u32 s26, s26, s27
    s_add_u32 s26, s26, {WS_X1}
    v_add_u32 v3, s26, v3
    s_lshl_b32 s26, s21, 10
    s_mov_b32 m0, s26
    v_mov_b32 v{ONES}, 0x3f803f80
    v_mov_b32 v{ONES+1}, 0x3f803f80
    v_mov_b32 v{ONES+2}, 0x3f803f80
    v_mov_b32 v{ONES+3}, 0x3f803f80
    s_mul_i32 s26, s21, 3
    s_add_u32 s26, s26, 1
    s_lshr_b32 s26, s26, 1
    s_mul_i32 s27, s23, 6
    s_add_u32 s26, s26, s27
    s_lshl_b32 s26, s26, 12
    s_lshr_b32 s30, s21, 1
    s_mul_i32 s31, s30, 3
    s_add_u32 s31, s31, 1
    s_add_u32 s27, s27, s31
    s_lshl_b32 s27, s27, 12
    s_add_u32 s72, s80, s26
    s_add_u32 s73, s81, s26
    s_add_u32 s74, s82, s26
    s_add_u32 s75, s83, s26
    s_add_u32 s76, s80, s27
    s_add_u32 s77, s82, s27
    s_lshl_b32 s30, s30, 12
    s_add_u32 s30, s30, {RED}
    s_and_b32 s31, s21, 1
    s_lshl_b32 s31, s31, 3
    v_add_u32 v244, s30, v{vL16}
    v_add_u32 v245, s31, v244
    s_lshl_b32 s26, s22, 9
    s_add_u32 s26, s26, {WS_SYNC + F3_OFF}
    s_lshr_b32 s27, s23, 1
    s_lshl_b32 s27, s27, 7
    s_and_b32 s30, s23, 1
    s_lshl_b32 s30, s30, 4
    s_add_u32 s27, s27, s30
    s_lshl_b32 s30, s21, 2
    s_add_u32 s27, s27, s30
    s_add_u32 s27, s27, s26
    v_mov_b32 v10, s27
    s_lshl_b32 s30, s21, 7
    s_add_u32 s26, s26, s30
    v_and_b32 v11, 7, v1
    v_lshl_add_u32 v11, v11, 2, s26
    s_mul_i32 s78, s21, {12*4096}
    v_and_b32 v9, 15, v1
    v_lshlrev_b32 v9, 3, v9
    s_lshl_b32 s26, s21, 7
    s_add_u32 s26, s26, {STAT}
    v_add_u32 v9, s26, v9
    v_and_b32 v13, 3, v1
    v_cmp_eq_u32 s[84:85], 1, v13
    v_cmp_eq_u32 s[86:87], 2, v13
    v_cmp_eq_u32 s[88:89], 3, v13
    v_bfe_u32 v15, v1, 2, 2
    v_cmp_eq_u32 s[90:91], v14, v15
    """)
    for s in range(4): k(f"v_add_u32 v{HA+s}, s{80+s}, v{vL16}")
    if int(opts.get('w2t', 0)):
        k(f"""
        s_cmp_lt_u32 s2, {NCONV}
        s_cbranch_scc1 LF_now2t
        s_lshr_b32 s26, s2, 5
        s_sub_u32 s26, s26, 5
        s_mul_i32 s26, s26, 20480
        v_lshlrev_b32 v12, 7, v1
        buffer_load_dword v13, v12, s[8:11], s26 offen ; @skip
        s_add_u32 s26, s26, 8192
        buffer_load_dword v13, v12, s[8:11], s26 offen ; @skip
        v_min_u32 v12, 3968, v12
        s_add_u32 s26, s26, 8192
        buffer_load_dword v13, v12, s[8:11], s26 offen ; @skip
        s_waitcnt vmcnt(0)
        LF_now2t:
        """)
    k.stamp('w1iss')
    k("s_cmp_eq_u32 s21, 0\ns_cbranch_scc0 LF_m2")
    poll_addr(k, S2_OFF, 13)
    k(f"global_load_dword v12, v13, {P(pWS)} sc1")
    wait_flags(k, 's2', 12, 13, 16, 0)
    k("LF_m2:\ns_barrier")
    k.stamp('s2')
    k("AUTO")
    def xdma(i): return f"global_load_lds_dwordx4 v3, {P(pWS)} {SC} ; @w:X{i // 4}" + ("\ns_add_u32 m0, m0, 4096\nv_add_u32 v3, 0x20000, v3" if i < 19 else "")
    XI = int(opts.get('xi', 8))
    for i in range(XI): k(xdma(i))
    xq = [xdma(i) for i in range(XI, 20)]
    for p in range(3):
        for i in range(4): k(f"v_mul_f32 v{V12+8*p+4+i}, {LOG2E + 0x80000000}, v{V12+8*p+4+i}")
    k("s_barrier ; @r:X0")
    k.stamp('x0')
    for r in breads(0, 0) + breads(1, 1): k(r)
    LA0, LA1, LA2 = (int(x) for x in opts.get('la', '3,2,0').split(','))
    for ks in range(20):
        if ks % 4 == 2 and ks < 18: k(f"s_barrier ; @r:X{ks // 4 + 1}")
        rs = breads(ks + 2, ks + 2) if ks + 2 < 20 else []
        lds = []
        for _ in range(LA0 if ks < 6 else LA1 + (ks & 1) * LA2):
            dx = 4 * ((20 - len(xq)) // 4) - 2 if xq else 99
            dw = ld.n1 // 2 if ld.n1 < 40 else 98
            t = xq.pop(0) if xq and dx <= dw else ld.next(2 * ks)
            if t: lds.append(t)
        b = BF + 16 * (ks % NBF)
        ms = [mf(ACA + 16 * p + 4 * s, A4(4 * (2 * ks + p)), V4(b + 4 * s), ks == 0) for s in range(4) for p in range(2)]
        ms = [mf(SQ, V4(b), V4(b), ks == 0), mf(SM, V4(ONES), V4(b), ks == 0)] + ms
        for i, m in enumerate(ms):
            k(m)
            if i >= 2 and rs: k(rs.pop(0))
            elif lds: k(lds.pop(0))
        for t in lds: k(t)
    k.stamp('passA')
    stat = f"""v_cndmask_b32 v13, v{SQ}, v{SQ+1}, s[84:85]
    v_mul_f32 v12, {f2u(1/640)}, v{SM}
    v_cndmask_b32 v13, v13, v{SQ+2}, s[86:87]
    v_cndmask_b32 v13, v13, v{SQ+3}, s[88:89]
    v_mul_f32 v13, {f2u(1/640)}, v13
    {rstd_chain(12, 13)}
    v_mul_f32 v13, {LOG2E + 0x80000000}, v13"""
    stat = [l.strip() for l in stat.split('\n')]
    stat += [f"s_mov_b64 exec, s[90:91]\nds_write_b64 v9, v[12:13]\ns_mov_b64 exec, -1", "s_waitcnt lgkmcnt(0)\ns_barrier"]
    stat += [f"v_xor_b32 v13, {128*s}, v9\nds_read_b64 v[{ST+2*s}:{ST+2*s+1}], v13" for s in range(4)]
    NB = int(opts.get('nb', 1))
    def passB(n, rsq, fill):
        ks = BORD[n]; b = BF + 16 * ((14 + n) % NBF)
        t = [x for x in [ld.next(40 + n) for _ in range(NB)] if x]
        for s in range(4):
            k(mf(ACB + 4 * s, A4(4 * (40 + ks)), V4(b + 4 * s), n == 0))
            for _ in range(2):
                if fill: k(fill.pop(0))
                elif rsq: k(rsq.pop(0))
            if t and s & 1: k(t.pop(0))
    for n in range(4): passB(n, [], stat)
    for t in stat: k(t)
    rq = breads(BORD[6], 14 + 6) + breads(BORD[7], 14 + 7)
    passB(4, rq, []); passB(5, rq, [])
    k.stamp('stats')
    NE = int(opts.get('ne', 10))
    sprinkle(k, epilogue(ACA, 0, PKD, 4) + epilogue(ACA + 16, 1, PKD + 2, 4), [ld.next(46) for _ in range(NE)])
    for s in range(4): k(f"buffer_store_dwordx4 {V4(PKD+4*s)}, v{vL16}, s[12:15], s{72+s} offen {SC} ; @w:HP")
    k.stamp('pairst')
    for n in range(6, 20): passB(n, breads(BORD[n + 2], 14 + n + 2) if n + 2 < 20 else [], [])
    k.stamp('passB')
    k(f"""
    v_mov_b32 v14, 1
    v_mov_b32 v15, 2
    s_mov_b64 exec, 1 ; @r:HP
    global_store_dword v10, v14, {P(pWS)} sc1
    s_mov_b64 exec, -1
    """)
    k.stamp('pub1')
    ep = epilogue(ACB, 2, PKD, 2)
    PP = int(opts.get('pp', 56))
    sprinkle(k, ep[:PP], [ld.next(60) for _ in range(int(opts.get('ns', 8)))])
    k(f"global_load_dword v12, v11, {P(pWS)} sc1")
    for t in ep[PP:]: k(t)
    for s in range(4): k(f"v_add_u32 v13, s{80+s}, v245\nds_write_b64 v13, v[{PKD+2*s}:{PKD+2*s+1}]")
    k(f"""
    v_add_u32 v22, s80, v244
    v_add_u32 v23, s82, v244
    s_waitcnt lgkmcnt(0)
    s_barrier
    ds_read_b128 v[244:247], v22
    ds_read_b128 v[248:251], v23
    """)
    k.stamp('h1a')
    HSS = f"buffer_store_dwordx4 v[244:247], v{vL16}, s[12:15], s76 offen {SC} ; @w:HS\nbuffer_store_dwordx4 v[248:251], v{vL16}, s[12:15], s77 offen {SC} ; @w:HS"
    if not int(opts.get('ah0', 0)): k(HSS)
    tail_addr = f"""
    s_lshl_b32 s26, s21, 1
    v_lshrrev_b32 v3, 4, v1
    v_bfe_u32 v0, v1, 2, 2
    v_lshl_add_u32 v0, v3, 2, v0
    v_and_b32 v16, 6, v0
    v_xor_b32 v16, s26, v16
    v_bfe_u32 v17, v1, 1, 1
    v_add_u32 v16, v16, v17
    v_lshlrev_b32 v16, 4, v16
    v_lshl_add_u32 v16, v0, 7, v16
    v_and_b32 v17, 1, v1
    v_lshl_add_u32 v16, v17, 3, v16
    s_mul_i32 s26, s23, {80*128}
    v_add_u32 v16, s26, v16
    s_mul_i32 s74, s21, 15360
    s_add_u32 s74, s74, {RED}
    v_and_b32 v17, 15, v1
    v_mul_u32_u24 v17, 176, v17
    v_lshl_add_u32 v17, v3, 3, v17
    v_add_u32 v17, s74, v17
    v_add_u32 v18, s74, v{vL16}
    s_mul_i32 s26, s21, 320
    s_add_u32 s26, s26, {GBL}
    v_lshl_add_u32 v22, v3, 4, s26
    s_lshr_b32 s26, s22, 3
    s_lshl_b32 s26, s26, 9
    s_and_b32 s27, s22, 1
    s_lshl_b32 s27, s27, 7
    s_add_u32 s26, s26, s27
    s_bfe_u32 s27, s22, 0x20001
    s_lshl_b32 s27, s27, 2
    s_add_u32 s26, s26, s27
    s_lshl_b32 s27, s21, 5
    s_add_u32 s26, s26, s27
    s_mul_i32 s26, s26, 1280
    s_mul_i32 s27, s23, 160
    s_add_u32 s75, s26, s27
    """
    first = ""
    for s in range(1, 4): first += f"s_xor_b32 s26, s21, {s}\ns_mul_i32 s26, s26, 15360\ns_add_u32 s26, s26, {RED + 5120*(s-1)}\nv_add_u32 v{4+s}, s26, v{vL16}\n"
    for i in range(3):
        tail_addr += f"""
        v_add_u32 v23, {64*i}, v1
        v_mul_u32_u24 v2, 6554, v23
        v_lshrrev_b32 v2, 16, v2
        v_mul_u32_u24 v3, 10, v2
        v_sub_u32 v23, v23, v3
        v_mul_u32_u24 v3, 176, v2
        v_lshl_add_u32 v3, v23, 4, v3
        v_add_u32 v{19+i}, s74, v3
        v_bfe_u32 v3, v2, 2, 1
        v_lshlrev_b32 v3, 8, v3
        v_bfe_u32 v0, v2, 3, 1
        v_lshl_add_u32 v3, v0, 4, v3
        v_and_b32 v0, 3, v2
        v_add_u32 v3, v3, v0
        v_mul_u32_u24 v3, 1280, v3
        v_lshl_add_u32 v{252+i}, v23, 4, v3
        """
    tail_addr += "v_lshrrev_b32 v2, 5, v1\nv_lshlrev_b32 v2, 30, v2\nv_add_u32 v254, v254, v2\n"
    k(tail_addr); tail_addr = ""
    wait_flags(k, 'h1', 12, 11, 1, None)
    k.stamp('h1')
    def hload(i, slots=range(4)):
        r = HR + 16 * (i % NRK)
        return [(f"s_add_u32 s79, s78, {KSEQ[i] * 4096}\n" if s == slots[0] else "") + f"buffer_load_dwordx4 {V4(r+4*s)}, v{HA+s}, s[12:15], s79 offen {SC}" for s in slots]
    def g2(i, s): return [mf(AC2 + 20 * s + 4 * dt, A4(4 * W2SLOT[5 * i + dt]), V4(HR + 16 * (i % NRK) + 4 * s), i == 0) for dt in range(5)]
    AH = int(opts.get('ahead', 3)); AH0 = int(opts.get('ah0', 0))
    for i in range(AH0):
        for t in hload(i): k(t)
    if AH0: k(HSS)
    k.stamp('singst')
    for i in range(AH0, AH):
        for t in hload(i): k(t)
    PI = int(opts.get('pi', 3))
    for i in range(8):
        q = hload(i + AH) if i + AH < 8 else []
        while ld.n2 < min(60, 5 * i + 15): k(ld.w2())
        for _ in range(-(-(60 - ld.n2) // (8 - i))): q.append(ld.w2())
        if i == AH0: k(f"s_mov_b64 exec, 1 ; @r:HS\nglobal_store_dword v10, v15, {P(pWS)} sc1\ns_mov_b64 exec, -1")
        if i == PI: q.append(f"global_load_dword v12, v11, {P(pWS)} sc1")
        if i in (1, 2, 4): k.stamp(f'g2_{i}')
        if i == PI + 2:
            k.stamp('h2a')
            wait_flags(k, 'h2', 12, 11, 2, None)
            k.stamp('h2b')
            late = [hload(i2, [s])[0] for s in (1, 2, 3, 0) for i2 in range(8, 12)]
        if i >= PI + 2:
            nl = -(-len(late) // (8 - i)); q += late[:nl]; late = late[nl:]
        for s in range(4):
            for n, m in enumerate(g2(i, s)):
                k(m)
                if q and n in (0, 2, 4): k(q.pop(0))
        for t in q: k(t)
    k.stamp('g2a')
    U = HR + 64
    tail_addr += "".join(f"ds_read_b64_tr_b16 v[{U+24+2*dt}:{U+25+2*dt}], v16 offset:{2048*dt}\n" for dt in range(5))
    tail_addr += "".join(f"ds_read_b128 {V4(GB+4*dt)}, v22 offset:{64*dt}\n" for dt in range(5))
    tail_addr += "".join(f"v_lshlrev_b32 v{U+4*dt+2*h}, 16, v{U+24+2*dt+h}\nv_and_b32 v{U+4*dt+2*h+1}, 0xffff0000, v{U+24+2*dt+h}\n" for dt in range(5) for h in range(2))
    fill = [l.strip() for l in (first + tail_addr).split('\n') if l.strip()]
    pend = []
    for s in (1, 2, 3, 0):
        for i in range(8, 12):
            for m in g2(i, s):
                k(m)
                if pend and pend[0][0] <= 0: k(pend.pop(0)[1])
                else:
                    for _ in range(2):
                        if fill: k(fill.pop(0))
                pend = [(a - 1, t) for a, t in pend]
        assert not pend
        if s: pend = [(3 + 3 * dt, f"ds_write_b128 v{4+s}, {V4(AC2+20*s+4*dt)} offset:{1024*dt}") for dt in range(5)]
    for t in fill: k(t)
    k.stamp('g2b')
    k("s_waitcnt lgkmcnt(0)\ns_barrier")
    R0 = 44
    for dt in range(5):
        for s in range(3): k(f"ds_read_b128 {V4(R0+20*s+4*dt)}, v18 offset:{5120*s + 1024*dt}")
    for dt in range(5):
        for h in range(2):
            q = 2 * dt + h
            k(f"v_pk_add_f32 v[{AC2+2*q}:{AC2+2*q+1}], v[{AC2+2*q}:{AC2+2*q+1}], v[{R0+2*q}:{R0+2*q+1}]")
            k(f"v_pk_add_f32 v[{R0+20+2*q}:{R0+21+2*q}], v[{R0+20+2*q}:{R0+21+2*q}], v[{R0+40+2*q}:{R0+41+2*q}]")
        for h in range(2):
            q = 2 * dt + h
            k(f"v_pk_add_f32 v[{AC2+2*q}:{AC2+2*q+1}], v[{AC2+2*q}:{AC2+2*q+1}], v[{R0+20+2*q}:{R0+21+2*q}]")
        for h in range(2):
            q = 2 * dt + h
            k(f"v_pk_fma_f32 v[{AC2+2*q}:{AC2+2*q+1}], v[{AC2+2*q}:{AC2+2*q+1}], v[{GB+2*q}:{GB+2*q+1}], v[{U+2*q}:{U+2*q+1}]")
        k(f"v_cvt_pk_bf16_f32 v{HR+2*dt}, v{AC2+4*dt}, v{AC2+4*dt+1}\nv_cvt_pk_bf16_f32 v{HR+2*dt+1}, v{AC2+4*dt+2}, v{AC2+4*dt+3}")
    for dt in range(5): k(f"ds_write_b64 v17, v[{HR+2*dt}:{HR+2*dt+1}] offset:{32*dt}")
    for i in range(3): k(f"ds_read_b128 {V4(R0+4*i)}, v{19+i}")
    for i in range(3): k(f"buffer_store_dwordx4 {V4(R0+4*i)}, v{252+i}, s[16:19], s75 offen")
    k("MANUAL")

def gen_F(opts={}):
    SPINS.clear()
    k = Asm('F')
    k(f"s_cmp_ge_u32 s2, {F_GRID}\ns_cbranch_scc1 LF_end")
    k.stamp('start')
    prologue(k, opts)
    mlp_setup(k, opts)
    k.stamp('msetup')
    conv_setup(k)
    k.stamp('csetup')
    kgen(k, opts)
    conv(k, opts)
    k("s_branch LF_mlp")
    conv_mod(k)
    k("LF_side:")
    side_a(k)
    side(k)
    lane_consts(k)
    mlp_setup(k, opts)
    k("s_mov_b32 s6, 0")
    k("LF_mlp:")
    mlp(k, opts)
    k.end(0)
    k("LF_end:\ns_endpgm")
    for s in SPINS: k(s)
    k("LF_codeend:")
    return k.finish()

if __name__ == '__main__':
    print(gen_F())
```

```python
from asmlib import *
from layoutF import *

F_GRID = 256
NCONV = 160
LNS = 1600
STATP = 12800
MODB = 13312
KT = 33792; KTS = 18432
TAPS = 107520; TCS = 2112; TAPCH = 4 * TCS
STG = TAPS + 4 * TAPCH; STGS = 2112
F_LDS = 149760
OH = 480
UD = 3088
O3 = 4576 + 16; O5 = O3 + UD; O7 = O5 + UD; O9 = O7 + UD
CHS = (O9 + 2048 + 127) // 128 * 128 + 16
OU = 4 * CHS; OS = OU + 16384
W1R = 102400; W2R = W1R + 20480; VRED = W2R + 20480
RED = 81920; STAT = RED + 61440; GBL = STAT + 512
assert OS + 16384 <= TAPS and STG + 4 * STGS <= F_LDS and GBL + 1280 + 2048 <= F_LDS
pU, pAR, pAI, pBR, pBI, pCR, pCI, pLD, pDS, pW1, pW2, pC, pWM, pOUT, pDBG, pWS = 36, 38, 40, 42, 44, 46, 48, 50, 52, 56, 58, 60, 62, 64, 66, 68
def P(p): return f"s[{p}:{p+1}]"
SC = 'sc1'
vL16 = 8
BAND = 210
vRD, vDA, vDB, vD3, vRU, vWU, vWH, vNO, vUO, vMO, vTA, vT2, vT3, vBP = range(230, 244)
vVA, vF1D, vF1A = 244, 250, 251
vSA, vSG, vP2 = 252, 253, 155
vKW, vKR, vPD, vPA, vPT = 120, 121, 122, 123, 133
KACC = 104; SCT = 124; PRM = 134
CDAT = 156; LA = 158; MFR = 164; NR = 184

def srd(k, r, base, off, size):
    k(f"s_add_u32 s{r}, s{base}, {off}\ns_addc_u32 s{r+1}, s{base+1}, 0\ns_mov_b32 s{r+2}, {size}\ns_mov_b32 s{r+3}, 0x20000")
def mf(acc, a, b, first):
    c = '0' if first else f'v[{acc}:{acc+3}]'
    return f"v_mfma_f32_16x16x32_bf16 v[{acc}:{acc+3}], {a}, {b}, {c}"
V4 = lambda r: f"v[{r}:{r+3}]"
A4 = lambda r: f"a[{r}:{r+3}]"

SPINS = []
def wait_flags(k, tag, vdata, vaddr, target, nwait):
    if nwait is not None: k(f"s_waitcnt vmcnt({nwait})")
    k(f"v_cmp_gt_u32 vcc, {target}, v{vdata}\ns_cbranch_vccnz LF_spin{tag}\nLF_go{tag}:")
    SPINS.append(f"""
    LF_spin{tag}:
    s_mov_b32 s30, 40000
    LF_spinl{tag}:
    global_load_dword v{vdata}, v{vaddr}, {P(pDBG if tag.startswith('init') else pWS)} sc1
    s_waitcnt vmcnt(0)
    v_cmp_gt_u32 vcc, {target}, v{vdata}
    s_cbranch_vccz LF_go{tag}
    s_sleep 2
    s_sub_u32 s30, s30, 1
    s_cmp_lg_u32 s30, 0
    s_cbranch_scc1 LF_spinl{tag}
    s_branch LF_go{tag}
    """)

def arrive(k, off, va, vb, shard="s_bfe_u32 s26, s2, 0x40003"):
    k(f"""
    {shard}
    s_lshl_b32 s26, s26, 7
    s_add_u32 s26, s26, {WS_SYNC + off}
    v_lshl_add_u32 v{va}, v1, 11, s26
    v_mov_b32 v{vb}, 1
    s_mov_b64 exec, 0xff
    global_atomic_add v{va}, v{vb}, {P(pWS)} sc1
    s_mov_b64 exec, -1
    """)

def poll_addr(k, off, va):
    lo = 0
    k(f"""
    s_and_b32 s26, s2, 7
    s_lshl_b32 s26, s26, 11
    s_add_u32 s26, s26, {WS_SYNC + off + 128 * lo}
    v_min_u32 v{va}, {15 - lo}, v1
    v_lshl_add_u32 v{va}, v{va}, 7, s26
    """)

def rstd_chain(m, q, r=None):
    return f"""v_fma_f32 v{q}, -v{m}, v{m}, v{q}
    v_max_f32 v{q}, 0, v{q}
    v_cvt_pk_bf16_f32 v{q}, v{q}, v{m}
    v_and_b32 v{m}, 0xffff0000, v{q}
    v_lshlrev_b32 v{q}, 16, v{q}
    v_add_f32 v{q}, {f2u(1e-5)}, v{q}
    v_cvt_pk_bf16_f32 v{q}, v{q}, v{q}
    v_lshlrev_b32 v{q}, 16, v{q}
    v_sqrt_f32 v{q}, v{q}
    v_cvt_pk_bf16_f32 v{q}, v{q}, v{q}
    v_lshlrev_b32 v{q}, 16, v{q}
    v_rcp_f32 v{r or q}, v{q}"""

JOBS = 12800
def prologue(k, opts):
    k(f"""
    s_load_dwordx16 s[36:51], s[0:1], 0
    s_load_dwordx2 s[52:53], s[0:1], 64
    s_load_dwordx4 s[60:63], s[0:1], 96
    s_load_dwordx2 s[68:69], s[0:1], 128
    s_load_dwordx4 s[56:59], s[0:1], 80
    s_load_dwordx4 s[64:67], s[0:1], 112
    v_lshrrev_b32 v1, 6, v0
    v_readfirstlane_b32 s21, v1
    v_and_b32 v1, 63, v0
    """)
    if int(opts.get('cpf', 1)):
        k(f"""
        s_getpc_b64 s[24:25]
        LF_pc:
        s_lshr_b32 s26, s2, 3
        s_lshl_b32 s26, s26, 2
        s_add_u32 s26, s26, s21
        s_mul_i32 s26, s26, 384
        s_min_u32 s26, s26, LF_codeend-LF_pc-384
        s_add_u32 s24, s24, s26
        s_addc_u32 s25, s25, 0
        v_min_u32 v2, 2, v1
        v_lshlrev_b32 v2, 7, v2
        v_mov_b32 v3, s25
        v_add_co_u32 v2, vcc, s24, v2
        v_addc_co_u32 v3, vcc, 0, v3, vcc
        global_load_dword v254, v[2:3], off ; @nocheck
        """)
    k(f"""
    v_lshlrev_b32 v{vL16}, 4, v1
    s_cmp_lt_u32 s2, {NCONV}
    s_cbranch_scc0 LF_side
    s_lshl_b32 s20, s2, 2
    s_add_u32 s20, s20, s21               ; channel d
    s_mul_i32 s29, s20, 384
    v_lshl_add_u32 v10, v1, 1, s29
    s_lshl_b32 s29, s20, 1
    v_mov_b32 v11, s29
    v_mov_b32 v{vPA}, 0
    """)
    for i in list(range(19)) + [20]: k(f"v_mov_b32 v{PRM+i}, 0")
    k(f"""
    s_mul_hi_u32 s25, s2, {(1 << 32) // 60 + 1}       ; kq
    s_mul_i32 s26, s25, 60
    s_sub_u32 s26, s2, s26
    s_mul_i32 s27, s25, 320
    v_lshl_add_u32 v6, v1, 2, s27
    v_and_b32 v7, 15, v1
    v_lshl_add_u32 v7, v7, 2, s27
    s_waitcnt lgkmcnt(0)
    global_load_dword v{CDAT}, v6, {P(pC)}
    global_load_dword v{CDAT+1}, v7, {P(pC)} offset:256
    global_load_short_d16_hi v{PRM+18}, v11, {P(pLD)}""")
    for p in range(3):
        for i, ptr in enumerate((pAR, pAI, pBR, pBI, pCR, pCI)):
            k(f"global_load_short_d16_hi v{PRM+6*p+i}, v10, {P(ptr)} offset:{128*p}")
    k(f"global_load_short_d16_hi v{PRM+20}, v11, {P(pDS)}")
    k.stamp('ldiss')
    lane_consts(k)
    if int(opts.get('tlb', 0)):
        k(f"""
        s_cmp_eq_u32 s21, 1
        s_cbranch_scc0 LF_notlb
        v_min_u32 v2, 11, v1
        v_lshlrev_b32 v2, 21, v2
        v_and_b32 v3, 1, v1
        v_lshlrev_b32 v3, 21, v3
        global_load_dword v253, v2, {P(pWS)} ; @skip
        global_load_dword v253, v3, {P(pOUT)} ; @skip
        s_waitcnt vmcnt(0)
        LF_notlb:
        """)
    k(f"""
    v_lshrrev_b32 v4, 3, v1
    v_and_b32 v5, 7, v1
    v_mul_u32_u24 v3, 7680, v4
    v_lshl_add_u32 v3, v5, 4, v3
    s_mul_i32 s27, s25, 160
    s_mul_i32 s28, s21, 40
    s_add_u32 s28, s28, s27
    s_mul_i32 s28, s28, 7680
    s_lshl_b32 s29, s26, 7
    s_add_u32 s28, s28, s29
    v_add_u32 v3, s28, v3
    s_mul_i32 s29, s21, 5120
    s_add_u32 m0, s29, {MODB}
    s_mul_i32 s25, s25, 15360
    """)
    if not int(opts.get('modlate', 1)): mod_dma(k, 3)
    else: k(f"v_mov_b32 v{LA+5}, v3")
    k(f"""
    s_lshl_b32 s26, s26, 8
    s_add_u32 s25, s25, s26
    s_lshl_b32 s26, s21, 6
    s_add_u32 s25, s25, s26
    v_lshl_add_u32 v{LA}, v1, 2, s25
    v_lshl_add_u32 v7, v12, 3, v11
    v_lshlrev_b32 v7, 7, v7
    v_lshl_add_u32 v7, v10, 3, v7
    s_lshl_b32 s27, s21, 5
    s_add_u32 s27, s27, {MODB}
    v_add_u32 v{LA+1}, s27, v7
    s_mul_i32 s27, s21, 320
    v_lshl_add_u32 v{LA+2}, v1, 2, s27
    v_lshl_add_u32 v{LA+3}, v13, 2, s27
    v_lshl_add_u32 v{LA+4}, v12, 4, s27
    """)

def silu_frags(k, c0, vbp, dst=24):
    k(f"""
    s_mov_b32 s24, {LOG2E + 0x80000000}
    v_lshlrev_b32 v16, 16, v{c0}
    v_and_b32 v17, 0xffff0000, v{c0}
    v_lshlrev_b32 v18, 16, v{c0+1}
    v_and_b32 v19, 0xffff0000, v{c0+1}
    """)
    for i in range(4): k(f"v_mul_f32 v{20+i}, s24, v{16+i}")
    for i in range(4): k(f"v_exp_f32 v{20+i}, v{20+i}")
    for i in range(4): k(f"v_add_f32 v{20+i}, 1.0, v{20+i}")
    for i in range(4): k(f"v_rcp_f32 v{20+i}, v{20+i}")
    for i in range(4): k(f"v_mul_f32 v{16+i}, v{16+i}, v{20+i}")
    k(f"v_cvt_pk_bf16_f32 v16, v16, v17\nv_cvt_pk_bf16_f32 v17, v18, v19")
    k(f"ds_write_b32 v{vbp}, v16\nds_write_b32 v{vbp+1}, v17 offset:256")
    for ks in range(5): k(f"ds_read_b128 {V4(dst+4*ks)}, v{vbp+2} offset:{64*ks}")

def conv_mod(k):
    k("LF_cmod:\ns_waitcnt vmcnt(0) lgkmcnt(0)\ns_barrier\nAUTO")
    for ks in range(5):
        for h in range(2): k(f"ds_read_b64_tr_b16 v[{60+4*ks+2*h}:{61+4*ks+2*h}], v{LA+1} offset:{4096*ks + 512*h}")
    for ks in range(5): k(mf(16, V4(MFR + 4 * ks), V4(60 + 4 * ks), ks == 0))
    k(f"""MANUAL
    s_mov_b64 exec, 0xffff
    global_store_dword v{LA}, v16, {P(pWS)} {SC}
    s_mov_b64 exec, -1
    global_load_dword v{vPD}, v{vPA}, {P(pDBG)} sc1 ; @nocheck
    """)
    k.stamp('modst')
    k("s_branch LF_kpass")

def mod_dma(k, v):
    for i in range(5):
        k(f"global_load_lds_dwordx4 v{v}, {P(pWM)}")
        if i < 4: k(f"s_add_u32 m0, m0, 1024\nv_add_u32 v{v}, {8*7680}, v{v}")

def lane_consts(k):
    k("""
    v_bfe_u32 v11, v1, 2, 2               ; r
    v_lshrrev_b32 v12, 4, v1              ; G
    v_and_b32 v10, 3, v1                  ; cc / j
    v_and_b32 v13, 15, v1                 ; a / i
    """)

def side_mod(k):
    k(f"""
    s_mul_hi_u32 s25, s2, {(1 << 32) // 60 + 1}       ; kq
    s_mul_i32 s26, s25, 60
    s_sub_u32 s26, s2, s26
    s_mul_i32 s27, s25, 320
    v_lshl_add_u32 v15, v1, 2, s27
    v_lshl_add_u32 v16, v13, 2, s27
    global_load_dword v150, v15, {P(pC)}
    global_load_dword v151, v16, {P(pC)} offset:256
    v_lshrrev_b32 v4, 3, v1
    v_and_b32 v5, 7, v1
    v_mul_u32_u24 v4, 7680, v4
    v_lshl_add_u32 v4, v5, 4, v4
    s_mul_i32 s27, s25, {160*7680}
    s_lshl_b32 s28, s26, 7
    s_add_u32 s27, s27, s28
    v_add_u32 v14, s27, v4
    s_mov_b32 m0, s33
    s_mul_i32 s25, s25, 15360
    s_lshl_b32 s26, s26, 8
    s_add_u32 s25, s25, s26
    v_lshl_add_u32 v152, v13, 2, s25
    """)
    for i in range(20):
        k(f"global_load_lds_dwordx4 v14, {P(pWM)}")
        if i < 19: k(f"s_add_u32 m0, m0, 1024\nv_add_u32 v14, {8*7680}, v14")
    k(f"""
    v_lshl_add_u32 v5, v12, 3, v11
    v_lshlrev_b32 v5, 7, v5
    v_lshl_add_u32 v5, v10, 3, v5
    v_add_u32 v5, s33, v5
    s_add_u32 s27, s33, 20480
    v_lshl_add_u32 v158, v1, 2, s27
    v_lshl_add_u32 v159, v13, 2, s27
    v_lshl_add_u32 v160, v12, 4, s27
    s_waitcnt vmcnt(20)
    """)
    silu_frags(k, 150, 158)
    k("AUTO")
    for ks in range(5):
        k(f"s_waitcnt vmcnt({16 - 4*ks})")
        for ct in range(4):
            for h in range(2): k(f"ds_read_b64_tr_b16 v[{60+16*(ks&1)+4*ct+2*h}:{61+16*(ks&1)+4*ct+2*h}], v5 offset:{4096*ks + 512*h + 32*ct}")
        for ct in range(4): k(mf(44 + 4 * ct, V4(24 + 4 * ks), V4(60 + 16 * (ks & 1) + 4 * ct), ks == 0))
    k("MANUAL\ns_mov_b64 exec, 0xffff")
    for ct in range(4): k(f"global_store_dword v152, v{44+4*ct}, {P(pWS)} offset:{64*ct} {SC}")
    k("s_mov_b64 exec, -1")

def side_a(k):
    UD_ = 164
    k(f"""
    s_sub_u32 s20, s2, {NCONV}
    s_mul_i32 s33, s21, {2*JOBS}
    s_add_u32 s34, s33, {JOBS}
    """)
    lane_consts(k)
    k(f"""
    s_mul_i32 s31, s21, 96
    s_add_u32 s31, s31, s20
    s_cmp_lt_u32 s31, 256
    s_waitcnt lgkmcnt(0)
    s_cbranch_scc0 LF_sa_mod
    v_lshrrev_b32 v2, 3, v1
    v_and_b32 v3, 7, v1
    v_lshlrev_b32 v3, 4, v3
    v_mul_u32_u24 v7, 1280, v2
    v_add_u32 v7, v7, v3
    s_mul_i32 s24, s31, 10240
    v_add_u32 v7, s24, v7
    """)
    for q in range(10): k(f"global_load_dwordx4 {V4(UD_+4*q)}, v7, {P(pU)} offset:{128*q}")
    k.stamp('ldiss')
    k(f"""
    v_mul_u32_u24 v7, {LNS - 256}, v2
    v_add3_u32 v7, v7, v3, s33
    v_mul_u32_u24 v9, {LNS - 256}, v11
    v_lshl_add_u32 v9, v12, 5, v9
    v_lshl_add_u32 v9, v10, 3, v9
    v_add_u32 v9, s33, v9
    v_lshrrev_b32 v2, 2, v1
    v_lshlrev_b32 v2, 14, v2
    v_lshl_add_u32 v2, v10, 4, v2
    s_lshl_b32 s24, s31, 6
    s_add_u32 s24, s24, {WS_NT}
    v_add_u32 v2, s24, v2
    s_lshr_b32 s24, s31, 5
    s_lshl_b32 s24, s24, 11
    s_bfe_u32 s25, s31, 0x40001
    s_lshl_b32 s25, s25, 4
    s_add_u32 s24, s24, s25
    s_and_b32 s25, s31, 1
    s_lshl_b32 s25, s25, 9
    s_add_u32 s24, s24, s25
    s_add_u32 s24, s24, {WS_ST}
    v_lshrrev_b32 v3, 5, v1
    v_lshlrev_b32 v3, 8, v3
    v_bfe_u32 v14, v1, 4, 1
    v_lshl_add_u32 v3, v14, 10, v3
    v_bfe_u32 v14, v1, 3, 1
    v_lshl_add_u32 v3, v14, 3, v3
    v_add_u32 v3, s24, v3
    s_mov_b32 s24, 0x3f803f80
    v_mov_b32 v{vPA}, 0
    v_mov_b32 v140, 0
    v_mov_b32 v141, 0
    v_mov_b32 v142, 0
    v_mov_b32 v143, 0
    """)
    for q in range(10):
        k(f"s_waitcnt vmcnt({9 - q})")
        if q == 0: k.stamp('u0')
        k(f"ds_write_b128 v7, {V4(UD_+4*q)} offset:{128*q}")
        for i in range(4):
            r = UD_ + 4 * q + i
            k(f"v_dot2c_f32_bf16 v{140 + 2*(i&1)}, s24, v{r}\nv_dot2c_f32_bf16 v{141 + 2*(i&1)}, v{r}, v{r}")
    k(f"""
    v_pk_add_f32 v[140:141], v[140:141], v[142:143]
    v_add_f32_dpp v140, v140, v140 quad_perm:[1,0,3,2] row_mask:0xf bank_mask:0xf
    v_add_f32_dpp v141, v141, v141 quad_perm:[1,0,3,2] row_mask:0xf bank_mask:0xf
    v_add_f32_dpp v140, v140, v140 quad_perm:[2,3,0,1] row_mask:0xf bank_mask:0xf
    v_add_f32_dpp v141, v141, v141 quad_perm:[2,3,0,1] row_mask:0xf bank_mask:0xf
    v_add_f32_dpp v140, v140, v140 row_half_mirror row_mask:0xf bank_mask:0xf
    v_add_f32_dpp v141, v141, v141 row_half_mirror row_mask:0xf bank_mask:0xf
    v_mul_f32 v140, {f2u(1/640)}, v140
    v_mul_f32 v141, {f2u(1/640)}, v141
    AUTO
    """)
    for ch in range(10):
        k(f"ds_read_b64_tr_b16 v[{UD_+4*ch}:{UD_+4*ch+1}], v9 offset:{128*ch}\nds_read_b64_tr_b16 v[{UD_+4*ch+2}:{UD_+4*ch+3}], v9 offset:{128*ch + 4*(LNS - 256)}")
        if ch == 4: k(rstd_chain(140, 141, 144) + f"\nv_mov_b32 v142, v141\nv_mov_b32 v143, v140\nv_mul_f32 v140, v140, v144\ns_mov_b32 exec_lo, 0x01010101\ns_mov_b32 exec_hi, 0x01010101\nglobal_store_dwordx2 v3, v[142:143], {P(pWS)} {SC}\ns_mov_b64 exec, -1")
    for r in range(8): k(f"v_readlane_b32 s{70+r}, v144, {8*r}")
    for r in range(8): k(f"v_readlane_b32 s{78+r}, v140, {8*r}")
    for r in range(8): k(f"v_mov_b32 v{16+r}, s{78+r}")
    for ch in range(10):
        b = UD_ + 4 * ch; u = 24 + 12 * (ch % 3)
        for i in range(4): k(f"v_lshlrev_b32 v{u+2*i}, 16, v{b+i}\nv_and_b32 v{u+2*i+1}, 0xffff0000, v{b+i}")
        for i in range(4): k(f"v_pk_fma_f32 v[{u+2*i}:{u+2*i+1}], v[{u+2*i}:{u+2*i+1}], s[{70+2*i}:{71+2*i}], v[{16+2*i}:{17+2*i}] neg_lo:[0,0,1] neg_hi:[0,0,1]")
        for i in range(4): k(f"v_cvt_pk_bf16_f32 v{u+8+i}, v{u+2*i}, v{u+2*i+1}")
        k(f"global_store_dwordx4 v2, {V4(u+8)}, {P(pWS)} {SC}")
        if ch < 9: k("v_add_u32 v2, 0x40000, v2")
    k("MANUAL")
    k.stamp('lnst')
    k(f"global_load_dword v{vPD}, v{vPA}, {P(pDBG)} sc1")
    wait_flags(k, 'init2', vPD, vPA, 32, 0)
    arrive(k, S1_OFF, vPD, vPT, "s_and_b32 s26, s31, 15")
    k.stamp('arr1')
    k(f"""
    s_branch LF_sa_end
    LF_sa_mod:
    s_cmp_lt_u32 s20, 80
    s_cbranch_scc0 LF_init
    s_cmp_eq_u32 s21, 3
    s_cbranch_scc0 LF_sa_end
    """)
    side_mod(k)
    k(f"v_mov_b32 v{vPA}, 0\nglobal_load_dword v{vPD}, v{vPA}, {P(pDBG)} sc1")
    wait_flags(k, 'init3', vPD, vPA, 32, 0)
    arrive(k, SM_OFF, vPD, vPT, "s_and_b32 s26, s2, 15")
    k.stamp('modst')
    k("LF_sa_end:")
    SPINS.append(f"""
    LF_init:
    s_sub_u32 s24, s20, 80
    s_lshl_b32 s24, s24, 1
    s_add_u32 s24, s24, s21
    s_sub_u32 s24, s24, 2
    s_mul_i32 s24, s24, 3072
    s_add_u32 s24, s24, {WS_SYNC}
    v_add_u32 v30, s24, v{vL16}
    v_mov_b32 v26, 0
    v_mov_b32 v27, 0
    v_mov_b32 v28, 0
    v_mov_b32 v29, 0
    global_store_dwordx4 v30, v[26:29], {P(pWS)} sc1
    global_store_dwordx4 v30, v[26:29], {P(pWS)} offset:1024 sc1
    global_store_dwordx4 v30, v[26:29], {P(pWS)} offset:2048 sc1
    v_mov_b32 v31, 1
    s_waitcnt vmcnt(0)
    s_mov_b64 exec, 1
    global_atomic_add v26, v31, {P(pDBG)} sc1
    s_mov_b64 exec, -1
    s_branch LF_sa_end
    """)

def mlp_setup(k, opts):
    if opts.get('arr', '8x4') == '8x4':
        k("""
        s_and_b32 s24, s2, 7
        s_lshr_b32 s25, s2, 3
        s_lshr_b32 s22, s24, 1
        s_lshl_b32 s22, s22, 3
        s_lshr_b32 s26, s25, 2
        s_add_u32 s22, s22, s26               ; rb
        s_and_b32 s23, s24, 1
        s_lshl_b32 s23, s23, 2
        s_and_b32 s26, s25, 3
        s_add_u32 s23, s23, s26               ; j
        """)
    else:
        k("""
        s_and_b32 s22, s2, 7
        s_lshl_b32 s22, s22, 2
        s_lshr_b32 s26, s2, 6
        s_add_u32 s22, s22, s26               ; rb
        s_bfe_u32 s23, s2, 0x30003            ; j
        """)
    k(f"""
    s_mul_i32 s26, s23, 12
    s_mul_i32 s25, s21, 3
    s_add_u32 s25, s26, s25
    s_lshl_b32 s26, s25, 7
    s_add_u32 s26, s26, {WS_SYNC + F1_OFF}
    v_min_u32 v{vF1D}, 11, v1
    v_lshrrev_b32 v{vF1A}, 2, v{vF1D}
    v_lshl_add_u32 v{vF1A}, v{vF1A}, 7, s26
    v_and_b32 v{vF1D}, 3, v{vF1D}
    v_lshl_add_u32 v{vF1A}, v{vF1D}, 2, v{vF1A}
    s_lshl_b32 s24, s23, 2
    s_add_u32 s24, s24, s21
    s_mul_i32 s24, s24, 61440
    s_add_u32 s26, s24, {WS_W1F}
    """)
    srd(k, 4, pWS, 's26', 61440)
    k(f"s_add_u32 s26, s24, {WS_W2F}")
    srd(k, 8, pWS, 's26', 61440)
    k(f"s_mul_i32 s26, s22, 196608\ns_add_u32 s26, s26, {WS_H}")
    srd(k, 12, pWS, 's26', 196608)
    srd(k, 16, pOUT, 0, L * D * 2)
    k(f"""
    s_and_b32 s26, s21, 1
    s_lshl_b32 s25, s25, 6
    s_add_u32 s25, s25, {WS_V12}
    v_add_u32 v{vVA}, s26, v12
    s_xor_b32 s26, s26, 1
    s_lshl_b32 s26, s26, 1
    v_mov_b32 v{vVA+1}, s26
    v_cmp_gt_u32 vcc, 2, v12
    v_lshl_add_u32 v{vVA+2}, v13, 2, s25
    v_cndmask_b32 v{vVA}, v{vVA+1}, v{vVA}, vcc
    v_lshl_add_u32 v{vVA}, v{vVA}, 6, v{vVA+2}
    s_mul_i32 s26, s23, 320
    s_add_u32 s26, s26, 12800
    v_lshl_add_u32 v{vVA+4}, v1, 2, s26
    v_lshl_add_u32 v{vVA+5}, v13, 2, s26
    s_lshl_b32 s80, s21, 10
    s_xor_b32 s81, s80, 1024
    s_xor_b32 s82, s80, 2048
    s_xor_b32 s83, s80, 3072
    s_mul_i32 s26, s21, 3
    s_add_u32 s26, s26, 1
    s_lshr_b32 s26, s26, 1
    s_mul_i32 s27, s23, 6
    s_add_u32 s26, s26, s27
    s_lshl_b32 s26, s26, 12
    s_lshr_b32 s30, s21, 1
    s_mul_i32 s31, s30, 3
    s_add_u32 s31, s31, 1
    s_add_u32 s27, s27, s31
    s_lshl_b32 s27, s27, 12
    s_add_u32 s72, s80, s26
    s_add_u32 s73, s81, s26
    s_add_u32 s74, s82, s26
    s_add_u32 s75, s83, s26
    s_add_u32 s76, s80, s27
    s_add_u32 s77, s82, s27
    """)

def conv_setup(k):
    k(f"""
    s_mul_i32 s26, s21, {TAPCH}
    s_add_u32 s26, s26, {TAPS}
    v_sub_u32 v14, 3, v11
    v_mul_u32_u24 v14, {TCS}, v14
    v_lshl_add_u32 v14, v10, 3, v14
    v_add_u32 v14, s26, v14
    v_lshlrev_b32 v15, 4, v12
    v_sub_u32 v15, 48, v15
    v_add_u32 v{vTA}, v14, v15
    v_and_b32 v15, 1, v12                 ; G&1
    v_lshrrev_b32 v9, 1, v12              ; G>>1
    v_lshlrev_b32 v16, 3, v15
    v_sub_u32 v14, v14, v16
    v_add_u32 v14, 8, v14
    v_mul_u32_u24 v16, {2*(B3A - B5A)}, v9
    v_add_u32 v{vT2}, v14, v16
    v_mul_u32_u24 v16, {2*(B9 - B7)}, v9
    v_add_u32 v{vT3}, v14, v16
    s_mul_i32 s27, s21, {CHS}
    v_lshlrev_b32 v14, 5, v13
    v_add_u32 v14, s27, v14
    v_lshl_add_u32 v{vRD}, v12, 4, v14    ; h frag: 32a + 16G
    v_lshl_add_u32 v14, v9, 4, v14
    v_mul_u32_u24 v16, {UD}, v15
    v_add_u32 v{vWU}, v14, v16
    v_lshlrev_b32 v14, 7, v15
    v_lshl_add_u32 v14, v11, 5, v14
    v_lshl_add_u32 v14, v10, 3, v14
    v_add_u32 v14, s27, v14               ; 128(G&1) + 32r + 8cc
    v_mul_u32_u24 v16, {UD - 16}, v9
    v_sub_u32 v17, v14, v16
    v_add_u32 v{vDA}, {O5 - 16}, v17
    v_add_u32 v17, v14, v16
    v_add_u32 v{vD3}, {O7}, v17
    v_lshlrev_b32 v16, 5, v9
    v_sub_u32 v16, 16, v16
    v_add_u32 v{vDB}, v{vDA}, v16
    v_bfe_u32 v16, v1, 1, 2
    v_xor_b32 v16, s21, v16
    v_lshlrev_b32 v16, 4, v16
    v_lshl_add_u32 v16, v13, 7, v16
    v_lshl_add_u32 v16, v15, 6, v16
    v_add_u32 v{vRU}, {OU}, v16
    v_mul_u32_u24 v16, {CHS}, v10
    v_lshrrev_b32 v14, 2, v1
    s_lshl_b32 s28, s21, 4
    v_add_u32 v14, s28, v14               ; segment 0..63
    v_lshl_add_u32 v{vWH}, v14, 6, v16
    v_lshlrev_b32 v14, 8, v14
    v_lshl_add_u32 v14, v10, 4, v14
    s_lshl_b32 s29, s2, 14
    s_add_u32 s28, s29, {WS_NT}
    v_add_u32 v{vNO}, s28, v14
    v_xor_b32 v14, v10, v12
    v_and_b32 v16, 0x3c, v1
    v_lshlrev_b32 v16, 4, v16
    v_lshl_add_u32 v14, v14, 4, v16
    s_lshl_b32 s28, s21, 12
    s_add_u32 s29, s29, s28
    s_add_u32 s29, s29, {WS_NT}
    v_add_u32 v{vUO}, s29, v14
    s_add_u32 s29, s28, {WS_ST}
    v_add_u32 v{vSG}, s29, v{vL16}
    v_min_u32 v14, 2, v12
    v_mul_u32_u24 v14, 2560, v14
    v_mul_u32_u24 v16, 15360, v11
    v_add_u32 v14, v14, v16
    v_lshl_add_u32 v14, v10, 2, v14
    s_lshl_b32 s29, s2, 4
    v_add_u32 v{vMO}, s29, v14
    v_lshlrev_b32 v{vBP}, 2, v10
    v_add_u32 v{vSA}, {OS}, v{vL16}
    v_lshlrev_b32 v14, 3, v12
    v_sub_u32 v14, v14, v13
    v_add_u32 v14, 15, v14                ; 8G - i + 15
    v_cmp_gt_u32 vcc, 32, v14
    """)
    for fi, (lo, hi_) in enumerate(((0, 0), (11, 13), (6, 10), (5, 11), (4, 12))):
        Wv = ((1 << (hi_ - lo + 1)) - 1) << (lo + 15)
        k(f"v_mov_b32 v16, {Wv}\nv_lshrrev_b32 v16, v14, v16\nv_cndmask_b32 v16, 0, v16, vcc")
        for q in range(4):
            k(f"v_bfe_u32 v17, v16, {2*q}, 1\nv_bfe_u32 v18, v16, {2*q+1}, 1\nv_lshl_or_b32 v17, v18, 16, v17\nv_mul_u32_u24 v{BAND+4*fi+q}, 0x3f80, v17")
    DUM = 2 * 1010
    S = SCT
    k(f"""
    s_mul_i32 s26, s21, {KTS}
    s_add_u32 s26, s26, {KT}
    v_mul_u32_u24 v14, 144, v1
    v_add_u32 v{vKW}, s26, v14
    v_lshrrev_b32 v15, 5, v1              ; hi
    v_lshl_add_u32 v14, v11, 1, v15
    v_mul_u32_u24 v14, 288, v14
    v_bfe_u32 v16, v1, 4, 1
    v_lshl_add_u32 v14, v16, 5, v14
    v_lshl_add_u32 v14, v10, 3, v14
    v_add_u32 v{vKR}, s26, v14
    s_mul_i32 s26, s21, {STGS}
    s_add_u32 s26, s26, {STG}
    v_mov_b32 v24, 0
    v_mov_b32 v25, 0
    v_mov_b32 v26, 0
    v_mov_b32 v27, 0
    v_add_u32 v{S+8}, s26, v{vL16}
    ds_write_b128 v{S+8}, v[24:27]
    ds_write_b128 v{S+8}, v[24:27] offset:1024
    v_mov_b32 v28, s26
    ds_write_b128 v28, v[24:27] offset:2048
    v_and_b32 v34, 1, v1                  ; odd
    v_bfe_u32 v35, v1, 1, 4               ; kappa'
    v_or_b32 v36, v34, v15
    v_mul_u32_u24 v37, 48, v34
    v_mul_u32_u24 v38, 96, v15
    v_add3_u32 v36, v36, v37, v38
    v_add_u32 v36, v36, v35
    v_lshl_add_u32 v{S}, v36, 1, s26
    v_add_u32 v39, {DUM}, v28
    v_add_u32 v36, {2*B5A}, v{S}
    v_cmp_eq_u32 vcc, 0, v35
    v_mul_u32_u24 v37, {B9 - 1 - B7}, v34
    v_lshl_add_u32 v38, v15, 4, v35
    v_cndmask_b32 v{S+1}, v36, v39, vcc
    v_sub_u32 v38, v38, v37
    v_add_u32 v38, {B9}, v38
    v_lshl_add_u32 v{S+2}, v38, 1, s26
    v_add_u32 v37, {2*(BC + 4)}, v28
    v_cmp_eq_u32 vcc, 0, v1
    v_add_u32 v40, {2*(BC + 5)}, v28
    v_add_u32 v41, {2*(B9 + 64)}, v28
    v_cndmask_b32 v{S+3}, v{S+2}, v37, vcc
    v_cndmask_b32 v{S+4}, v39, v40, vcc
    v_cndmask_b32 v{S+5}, v39, v41, vcc
    v_add_u32 v37, {2*(B5A + 32)}, v28
    v_cmp_eq_u32 vcc, 32, v1
    v_and_b32 v38, 31, v1
    v_lshlrev_b32 v38, 4, v38
    v_cndmask_b32 v{S+5}, v{S+5}, v37, vcc
    v_lshl_add_u32 v38, v15, 3, v38
    v_add_u32 v{S+6}, s26, v38            ; 16n + 8hi
    v_and_b32 v37, 30, v1
    v_cmp_eq_u32 vcc, 0, v37
    v_add_u32 v37, {2*1016 - 2*(BA+1+512)}, v28
    v_cndmask_b32 v{S+7}, v37, v{S+6}, vcc
    """)
    for i in range(16): k(f"v_mov_b32 v{KACC+i}, 0")

def cmul(k, z, a, b, t):
    k(f"v_pk_mul_f32 v[{t}:{t+1}], v[{a}:{a+1}], v[{b}:{b+1}] op_sel_hi:[1,0]")
    return f"v_pk_fma_f32 v[{z}:{z+1}], v[{a}:{a+1}], v[{b}:{b+1}], v[{t}:{t+1}] op_sel:[1,1,0] op_sel_hi:[0,1,1] neg_lo:[1,0,0]"
def cmuls(k, lst, tmp):
    for s in [cmul(k, z, a, b, tmp + 2 * i) for i, (z, a, b) in enumerate(lst)]: k(s)

def nloads():
    return "".join(f"global_load_dwordx4 {V4(NR+4*q)}, v{vNO}, {P(pWS)} offset:{64*q} {SC}\n" for q in range(4)) + f"global_load_dword v{NR+16}, v{vMO}, {P(pWS)} {SC}\n"

def hfill():
    return "v_mov_b32 v16, -1\nv_mov_b32 v17, -1\nv_mov_b32 v18, -1\nv_mov_b32 v19, -1\n" + "".join(f"buffer_store_dwordx4 v[16:19], v{vL16}, s[12:15], s{72+s} offen {SC}\n" for s in range(6))

def kgen(k, opts):
    AR, BR, CR, DT, DS = PRM, PRM + 2, PRM + 4, PRM + 18, PRM + 20
    TMP, LR, ACC = 14, 22, KACC
    ML = int(opts.get('modlate', 1))
    k(f"""
    s_mov_b32 s86, {LOG2E}
    s_mov_b32 s87, {INV2PI}
    s_mov_b32 s3, 0
    s_waitcnt vmcnt({20 if ML else 25})
    """)
    silu_frags(k, CDAT, LA + 2, MFR)
    k(f"s_waitcnt vmcnt({0 if ML else 5})")
    if ML: mod_dma(k, LA + 5)
    k(f"""
    v_mul_f32 v14, s86, v{DT}
    v_fma_f32 v15, v{DT}, s86, -v14
    v_fmac_f32 v15, {LOG2E_LO}, v{DT}
    v_exp_f32 v14, v14
    v_mul_f32 v15, {LN2}, v15
    v_fmac_f32 v14, v14, v15
    v_cmp_eq_u32 vcc, 0, v1
    v_cvt_pk_bf16_f32 v14, v14, v14
    v_lshlrev_b32 v{DT}, 16, v14
    v_cndmask_b32 v{ACC}, 0, v{DS}, vcc
    """)
    k.stamp('kparam')
    k(f"""
    LF_kpass:
    v_pk_mul_f32 v[{LR}:{LR+1}], v[{AR}:{AR+1}], v[{DT}:{DT+1}] op_sel_hi:[1,0]
    v_pk_mul_f32 v[{LR}:{LR+1}], v[{LR}:{LR+1}], s[86:87]
    """)
    W = {1: 24, 8: 26, 256: 28, 2: 30, 3: 32, 4: 34, 5: 36, 6: 38, 7: 40, 16: 42, 32: 44, 258: 46, 260: 48, 262: 50, 264: 52, 512: 54}
    Z = [56 + 2 * i for i in range(8)]
    k(f"""
    v_pk_mul_f32 v[20:21], v[{CR}:{CR+1}], v[{BR}:{BR+1}] op_sel_hi:[1,0]
    v_mul_f32 v16, {f2u(8.0)}, v{LR}
    v_mul_f32 v17, {f2u(8.0)}, v{LR+1}
    v_mul_f32 v18, {f2u(256.0)}, v{LR}
    v_mul_f32 v19, {f2u(256.0)}, v{LR+1}
    v_fract_f32 v15, v{LR+1}
    v_fract_f32 v17, v17
    v_fract_f32 v19, v19
    v_exp_f32 v14, v{LR}
    v_exp_f32 v16, v16
    v_exp_f32 v18, v18
    v_pk_fma_f32 v[{Z[0]}:{Z[0]+1}], v[{CR}:{CR+1}], v[{BR}:{BR+1}], v[20:21] op_sel:[1,1,0] op_sel_hi:[0,1,1] neg_lo:[1,0,0]
    """)
    for i, r in enumerate((24, 26, 28)): k(f"v_cos_f32 v{r}, v{15+2*i}\nv_sin_f32 v{r+1}, v{15+2*i}")
    k(f"v_pk_mul_f32 v[{Z[0]}:{Z[0]+1}], v[{Z[0]}:{Z[0]+1}], v[{DT}:{DT+1}] op_sel_hi:[1,0]")
    for i, r in enumerate((24, 26, 28)): k(f"v_pk_mul_f32 v[{r}:{r+1}], v[{r}:{r+1}], v[{14+2*i}:{15+2*i}] op_sel_hi:[1,0]")
    for i in range(6): k(f"v_pk_mov_b32 v[{PRM+2*i}:{PRM+2*i+1}], v[{PRM+6+2*i}:{PRM+7+2*i}], v[{PRM+6+2*i}:{PRM+7+2*i}] op_sel:[0,1]")
    cmuls(k, [(W[2], W[1], W[1]), (W[16], W[8], W[8]), (W[512], W[256], W[256]), (Z[1], Z[0], W[8])], TMP)
    cmuls(k, [(W[3], W[2], W[1]), (W[4], W[2], W[2]), (W[32], W[16], W[16]), (W[258], W[256], W[2])], TMP)
    cmuls(k, [(Z[2], Z[0], W[16]), (Z[3], Z[1], W[16]), (W[5], W[4], W[1]), (W[6], W[4], W[2])], TMP)
    cmuls(k, [(W[7], W[4], W[3]), (W[260], W[256], W[4]), (W[264], W[256], W[8]), (Z[4], Z[0], W[32])], TMP)
    st = {'g': 0}
    NOW = int(opts.get('nokw', 0))
    def half(grp, vals, neg, part):
        pk = 72 + 4 * (st['g'] % 4); st['g'] += 1
        s = '-' if neg and part else ''
        for i in range(4):
            a, b = vals[2 * i], vals[2 * i + 1]
            ra = ('0' if part else '1.0') if a is None else f'{s}v{a+part}'
            k(f"v_cvt_pk_bf16_f32 v{pk+i}, {ra}, {s}v{b+part}")
        if not NOW: k(f"ds_write_b128 v{vKW}, v[{pk}:{pk+3}] offset:{16*grp + 9216*part}")
    def put(grp, vals, neg, between=None):
        half(grp, vals, neg, 0)
        if between: cmuls(k, between, TMP)
        half(grp, vals, neg, 1)
    X = {516: 88, 520: 90, 768: 92, 1024: 94, 772: 96, 1280: 98, 1536: 100, 1792: 102, 2048: W[1]}
    Y = [W[258], W[260], W[262], W[264], W[2], W[3], W[5], W[7]]
    cmuls(k, [(W[262], W[256], W[6]), (Z[5], Z[1], W[32]), (Z[6], Z[2], W[32]), (Z[7], Z[3], W[32])], TMP)
    put(0, [None, W[1], W[2], W[3], W[4], W[5], W[6], W[7]], True, [(X[516], W[512], W[4]), (X[520], W[512], W[8]), (X[768], W[512], W[256]), (X[1024], W[512], W[512])])
    put(1, [W[256], W[256], W[258], W[260], W[260], W[260], W[262], W[264]], True, [(X[772], X[768], W[4]), (X[1280], X[1024], W[256]), (X[1536], X[1024], W[512]), (X[1792], X[1024], X[768])])
    put(4, Z, False, [(Y[0], Z[4], W[32]), (Y[1], Z[5], W[32]), (Y[2], Z[6], W[32]), (Y[3], Z[7], W[32])])
    put(2, [W[512], W[512], W[512], X[516], X[516], X[516], X[520], X[520]], True, [(Y[4], Y[0], W[32]), (Y[5], Y[1], W[32]), (Y[6], Y[2], W[32]), (Y[7], Y[3], W[32])])
    k("s_cmp_eq_u32 s3, 1\ns_cbranch_scc1 LF_arr1\ns_cmp_eq_u32 s3, 2\ns_cbranch_scc1 LF_pol1\nLF_noarr1:")
    SPINS.append(f"LF_pol1:\nglobal_load_dword v{vPD}, v{vPA}, {P(pWS)} sc1\ns_branch LF_noarr1")
    a = Asm('x'); a.names = k.names
    a("LF_arr1:\ns_waitcnt vmcnt(0)")
    wait_flags(a, 'init', vPD, vPA, 32, None)
    a("s_barrier\ns_cmp_eq_u32 s21, 0\ns_cbranch_scc0 LF_arr1b")
    arrive(a, SM_OFF, vPD, vPT, "s_and_b32 s26, s2, 15")
    a(f"""LF_arr1b:
    s_and_b32 s26, s2, 7
    s_lshl_b32 s26, s26, 11
    s_add_u32 s26, s26, {WS_SYNC + S1_OFF}
    v_and_b32 v{vPA}, 15, v1
    v_lshl_add_u32 v{vPA}, v{vPA}, 7, s26
    v_bfe_u32 v{vPT}, v1, 4, 1
    v_lshl_add_u32 v{vPA}, v{vPT}, 15, v{vPA}
    v_sub_u32 v{vPT}, 16, v{vPT}""")
    a(hfill())
    a.stamp('arr1')
    a("s_branch LF_noarr1")
    SPINS.append('\n'.join(a.lines))
    cmuls(k, [(X[2048], X[1024], X[1024]), (Z[0], Y[4], W[32]), (Z[1], Y[5], W[32]), (Z[2], Y[6], W[32])], TMP)
    put(5, Y, False, [(Z[3], Y[7], W[32]), (Z[4], Z[0], W[32]), (Z[5], Z[1], W[32]), (Z[6], Z[2], W[32])])
    put(3, [X[768], X[1024], X[1536], X[2048], X[772], X[1280], X[1792], X[1024]], True, [(Z[7], Z[3], W[32]), (Y[0], Z[4], W[32]), (Y[1], Z[5], W[32]), (Y[2], Z[6], W[32])])
    put(6, Z, False, [(Y[3], Z[7], W[32]), (Y[4], Y[0], W[32]), (Y[5], Y[1], W[32]), (Y[6], Y[2], W[32])])
    cmuls(k, [(Y[7], Y[3], W[32])], TMP)
    put(7, Y, False)
    k.stamp('ktab_last')
    k("s_cmp_eq_u32 s3, 2\ns_cbranch_scc1 LF_pol2\nLF_nopoll1:")
    SPINS.append(f"LF_pol2:\nglobal_load_dword v{vP2}, v{vPA}, {P(pWS)} sc1\ns_branch LF_nopoll1")
    FR = 56
    order = [0, 1, 2, 3, 4, 5, 6, 7]
    def rd(s):
        return [f"ds_read_b64_tr_b16 v[{FR + 8*(s % 4) + 4*tb + 2*h}:{FR + 8*(s % 4) + 4*tb + 2*h + 1}], v{vKR} offset:{(16*(s % 4) + h)*144 + 64*tb + 9216*(s // 4)}" for tb in range(2) for h in range(2)]
    k("AUTO")
    for s in range(3):
        for t in rd(s): k(t)
    for s in range(8):
        r = FR + 8 * (s % 4)
        k(f"v_mfma_f32_32x32x16_bf16 v[{ACC}:{ACC+15}], v[{r}:{r+3}], v[{r+4}:{r+7}], v[{ACC}:{ACC+15}]")
        if s + 3 < 8:
            for t in rd(s + 3): k(t)
    k(f"""MANUAL
    s_add_u32 s3, s3, 1
    s_cmp_eq_u32 s3, 1
    s_cbranch_scc1 LF_cmod
    s_cmp_eq_u32 s3, 2
    s_cbranch_scc1 LF_kpass
    """)
    k.stamp('kg3')
    k(f"s_waitcnt vmcnt(1)\nv_cmp_gt_u32 vcc, v{vPT}, v{vPD}\ns_cbranch_vccz LF_haven\ns_waitcnt vmcnt(0)\nv_mov_b32 v{vPD}, v{vP2}")
    wait_flags(k, 's1', vPD, vPA, f"v{vPT}", None)
    k("LF_haven:\n" + nloads())
    k.stamp('s1')
    S = SCT
    k(f"""
    v_cmp_ne_u32 vcc, 33, v1
    s_mul_i32 s26, s21, {TAPCH}
    s_add_u32 s26, s26, {TAPS}
    v_add_u32 v14, s26, v{vL16}
    v_cvt_pk_bf16_f32 v24, v{ACC}, v{ACC+1}
    v_cvt_pk_bf16_f32 v25, v{ACC+2}, v{ACC+3}
    v_cvt_pk_bf16_f32 v26, v{ACC+4}, v{ACC+5}
    v_cvt_pk_bf16_f32 v27, v{ACC+6}, v{ACC+7}
    ds_write_b64 v{S+6}, v[24:25] offset:{2*(BA+1)}
    v_cvt_pk_bf16_f32 v28, v{ACC+8}, v{ACC+9}
    v_cvt_pk_bf16_f32 v29, v{ACC+10}, v{ACC+11}
    ds_write_b64 v{S+6}, v[26:27] offset:{2*(BA+1) + 512}
    v_cvt_pk_bf16_f32 v30, v{ACC+8}, v{ACC+12}
    v_cndmask_b32 v29, 0, v29, vcc
    ds_write_b16 v{S+1}, v30
    v_cvt_pk_bf16_f32 v31, v{ACC+13}, v{ACC+14}
    ds_write_b64 v{S+7}, v[28:29] offset:{2*(BA+1) + 1024}
    v_cvt_pk_bf16_f32 v32, v{ACC+15}, v{ACC+15}
    ds_write_b16_d16_hi v{S}, v30 offset:{2*B5A + 32}
    ds_write_b16 v{S+3}, v31
    ds_write_b16 v{S+4}, v31
    ds_write_b16_d16_hi v{S+2}, v31 offset:64
    ds_write_b16 v{S+5}, v32
    AUTO
    ds_read_b128 v[24:27], v{S+8}
    ds_read_b64 v[28:29], v{S+8} offset:16
    ds_read_b128 v[48:51], v{S+8} offset:1024
    ds_read_b64 v[52:53], v{S+8} offset:1040
    """)
    for q, b in enumerate((24, 48)):
        k(f"ds_write_b128 v14, v[{b+2}:{b+5}] offset:{1024*q + 3*TCS}")
        for i in range(4): k(f"v_alignbit_b32 v{b+8+i}, v{b+i+1}, v{b+i}, 16")
        k(f"ds_write_b128 v14, v[{b+8}:{b+11}] offset:{1024*q}")
        for i in range(4): k(f"v_mov_b32 v{b+12+i}, v{b+i+1}")
        k(f"ds_write_b128 v14, v[{b+12}:{b+15}] offset:{1024*q + TCS}")
        for i in range(4): k(f"v_alignbit_b32 v{b+16+i}, v{b+i+2}, v{b+i+1}, 16")
        k(f"ds_write_b128 v14, v[{b+16}:{b+19}] offset:{1024*q + 2*TCS}")
    k("MANUAL")
    k.stamp('kout')

TA0 = 128; T20 = 200
CACC = 12; CU_ = 44; RING = 76; NRING = 8; WTMP = 108; DEC = 132

def conv(k, opts):
    tfr = [f"ds_read_b64_tr_b16 a[{TA0+4*m+2*h}:{TA0+4*m+2*h+1}], v{vTA} offset:{64*m - 8*h + 8}" for m in range(18) for h in range(2)]
    for idx, (base, mu, va) in enumerate([(B5A, 0, vT2), (B5A, 1, vT2), (B5A, 2, vT2), (B5B, 0, vT2), (B5B, 1, vT2), (B5B, 2, vT2)] + [(B7, mu, vT3) for mu in range(4)]):
        tfr += [f"ds_read_b64_tr_b16 a[{T20+4*idx+2*h}:{T20+4*idx+2*h+1}], v{va} offset:{2*(base-3) - 8 + 32*mu - 16*h}" for h in range(2)]
    for t in tfr: k(t)
    k(f"""
    s_lshl_b32 s29, s20, 12
    s_add_u32 s29, s29, {WS_X1}
    s_add_u32 s34, s68, s29
    s_addc_u32 s35, s69, 0
    s_lshl_b32 s28, s21, 12
    s_add_u32 m0, s28, {OU}
    s_mul_i32 s27, s21, {CHS}
    v_mov_b32 v12, 0
    v_mov_b32 v13, 0
    v_mov_b32 v14, 0
    v_mov_b32 v15, 0
    v_min_u32 v17, 29, v1
    v_lshl_add_u32 v17, v17, 4, s27
    v_min_u32 v18, 3, v1
    v_mul_u32_u24 v18, {UD}, v18
    v_add_u32 v18, s27, v18
    s_add_u32 s28, s21, 32
    s_waitcnt vmcnt(0)
    v_add_f32_dpp v40, v{NR+16}, v{NR+16} row_ror:4 row_mask:0xf bank_mask:0xf
    v_add_f32_dpp v40, v40, v40 row_ror:8 row_mask:0xf bank_mask:0xf
    v_cvt_pk_bf16_f32 v40, v40, v40
    v_lshlrev_b32 v40, 16, v40
    ds_bpermute_b32 v42, v{vBP}, v40
    ds_bpermute_b32 v43, v{vBP}, v40 offset:64
    v_readlane_b32 s70, v40, s28
    s_waitcnt lgkmcnt(0)
    s_barrier
    v_add_f32 v43, 1.0, v43
    v_cvt_pk_bf16_f32 v43, v43, 0
    v_lshlrev_b32 v41, 16, v43
    """)
    k.stamp('ndata')
    HT = CU_
    k(f"ds_write_b128 v17, v[12:15]\nds_write_b128 v18, v[12:15] offset:{O3 - 16}")
    for q in range(5):
        if q < 4:
            for x in range(8): k(f"v_dot2_f32_bf16 v{HT+8*q+x}, v{NR+4*q+(x>>1)}, v{41 if x & 1 else 43}, v42")
        if q > 0:
            for i in range(4): k(f"v_cvt_pk_bf16_f32 v{HT+32+4*(q-1)+i}, v{HT+8*(q-1)+2*i}, v{HT+8*(q-1)+2*i+1}")
            k(f"ds_write_b128 v{vWH}, {V4(HT+32+4*(q-1))} offset:{OH + 16*(q-1)}")
    k("s_waitcnt lgkmcnt(0)\ns_barrier")
    k.stamp('prep')
    started = set()
    def M(T, a, b):
        s = mf(CACC + 4 * T, a, b, T not in started); started.add(T); return s
    slots, items = [], []
    def item(e, kind, text, deps=()):
        items.append(dict(id=len(items), e=e, kind=kind, text=text, deps=list(deps))); return len(items) - 1
    ps = list(range(-7, 57))
    LOOK = NRING - 2
    rdtxt = lambda i: f"ds_read_b128 {V4(RING + 4*(i % NRING))}, v{vRD} offset:{64*(ps[i] + 7)}"
    ring, lastw, wwrite, ures = {}, {}, {}, {}
    DI = {'C': 0, 'A': 4, 'B': 10}
    img = []
    for q in range(8):
        t = f"global_load_lds_dwordx4 v{vUO if q < 4 else vSG}, {P(pWS)} offset:{1024*(q & 3)} {SC} ; @w:U" + ("\ns_add_u32 m0, m0, 16384" if q == 3 else "")
        img.append(item(1 + 2 * q, 'va', t, img[-1:]))
    ubar = None
    for i, p in enumerate(ps):
        if i + LOOK < len(ps): ring[i + LOOK] = item(len(slots), 'ring', rdtxt(i + LOOK))
        b = V4(RING + 4 * (i % NRING)); dep = [ring[i]] if i in ring else []
        for T in range(8):
            m = 8 * T - p
            if 0 <= m <= 16: slots.append((M(T, A4(TA0 + 4 * m), b), dep))
            if T >= 4 and m == 32: slots.append((M(T, A4(TA0 + 68), b), dep))
        if p % 8 == 0 and 0 <= p <= 40:
            T = p // 8
            for pr, off in enumerate((O3, O7)):
                if pr == 1 and T >= 4: continue
                t = WTMP + 8 * pr; o = WTMP + 16 + 4 * pr
                for wi in range(2): slots.append((mf(t + 4 * wi, V4(BAND + 4 + 8 * pr + 4 * wi), b, True), dep + lastw.get(pr, [])))
                e = len(slots) + 3
                c = [item(e, 'va', f"v_cvt_pk_bf16_f32 v{o+q}, v{t+2*q}, v{t+2*q+1}") for q in range(4)]
                s0 = item(e + 3, 'va', f"v_permlane16_swap_b32 v{o}, v{o+2}", c)
                s1 = item(e + 3, 'va', f"v_permlane16_swap_b32 v{o+1}, v{o+3}", c)
                w = item(e + 4, 'ds', f"ds_write_b128 v{vWU}, {V4(o)} offset:{off + 512*T}", [s0, s1])
                lastw[pr] = [w]; wwrite.setdefault(T, []).append(w)
            for kind in 'CAB':
                if kind == 'C' and T > 3: continue
                va = {'A': vDA, 'B': vDB, 'C': vD3}[kind]
                r = DEC + 4 * (DI[kind] + T)
                lastw[(kind, T)] = [item(len(slots) + 4, 'ds', f"ds_read_b64_tr_b16 v[{r+2*h}:{r+2*h+1}], v{va} offset:{512*T + 256*h}", wwrite[T]) for h in range(2)]
        if p == 24: ubar = item(len(slots), 'va', "s_barrier ; @r:U", img)
        if p in (26, 29, 33, 36, 39, 44, 48, 52):
            T = (26, 29, 33, 36, 39, 44, 48, 52).index(p)
            ures[T] = item(len(slots), 'ds', f"ds_read_b128 {V4(CU_ + 4*T)}, v{vRU} offset:{2048*T}", [ubar])
    E0 = int(opts.get('e0', 70)); NE1 = int(opts.get('ne1', 16))
    f0_ = item(E0, 'va', f"global_load_dword v{vF1D}, v{vF1A}, {P(pWS)} sc1")
    f1 = item(E0 + 45, 'va', f"v_cmp_gt_u32 vcc, 1, v{vF1D}\ns_cmp_eq_u64 vcc, 0\ns_cselect_b32 s6, 61440, 0", [f0_])
    ld = Loader(); prev = f1
    for i in range(NE1): prev = item(E0 + 47 + i * (198 - E0 - 52) // NE1, 'va', ld.w1(), [prev])
    fm = {}; ndirect = len(slots)
    allw = [w for ws_ in wwrite.values() for w in ws_]
    for T in range(8):
        idr = RING + 4 * (T % 4)
        slots.append((f"v_mfma_f32_16x16x32_bf16 {V4(idr)}, {V4(BAND)}, {V4(CU_ + 4*T)}, 0", [ures[T]] + fm.get(T - 4, [])))
        e0 = len(slots) + 3
        for kind, b0, nmu, t0 in (('C', 4, 4, 6), ('A', 2, 3, 0), ('B', 2, 3, 3)):
            for mu in range(nmu):
                P_ = T - b0 - mu
                if P_ >= 0: slots.append((M(T, V4(DEC + 4 * (DI[kind] + P_)), A4(T20 + 4 * (t0 + mu))), lastw[(kind, P_)]))
        e = len(slots) + 3
        sr = (202, 92, 100)[T % 3]
        sd = [item(ndirect - (8 if T == 0 else 0), 'ds', f"ds_read_b128 {V4(sr+4*h)}, v{vSA} offset:{2048*T + 1024*h}", [ubar] + fm.get(T - 3, [])) for h in range(2)]
        f0 = [item(e0, 'va', f"v_fma_f32 v{idr+r}, v{idr+r}, v{sr+2*r}, v{sr+2*r+1}", sd) for r in range(4)]
        fm[T] = [item(e, 'va', f"v_fma_f32 v{CACC+4*T+r}, v{CACC+4*T+r}, s70, v{idr+r}", f0) for r in range(4)]
        o = WTMP + 4 * (T >> 1) + 2 * (T & 1)
        fm[('c', T)] = [item(e, 'va', f"v_cvt_pk_bf16_f32 v{o+h}, v{CACC+4*T+2*h}, v{CACC+4*T+2*h+1}", fm[T] + allw) for h in range(2)]
        if T & 1: item(e, 'va', f"global_store_dwordx4 v{vL16}, {V4(WTMP + 4*(T >> 1))}, s[34:35] offset:{1024*(T >> 1)} {SC}", fm[('c', T)] + fm[('c', T - 1)] + [f1])
    k("AUTO")
    for i in range(LOOK): k(rdtxt(i))
    weave(k, slots, items)
    k("MANUAL")
    k.stamp('convend')

def weave(k, slots, items):
    done = set()
    def emit(n):
        if n in done: return
        for d in items[n]['deps']: emit(d)
        done.add(n); k(items[n]['text'])
    def pick(kinds, i):
        for it in items:
            if it['id'] not in done and it['kind'] in kinds and it['e'] <= i and all(d in done for d in it['deps']): return it['id']
        return None
    for i, (m, deps) in enumerate(slots):
        for d in deps: emit(d)
        k(m)
        n = pick(('ring',), i)
        if n is None: n = pick(('ds',), i)
        if n is not None: emit(n)
        for _ in range(1 if n is not None else 2):
            n2 = pick(('va',), i)
            if n2 is not None: emit(n2)
    for it in items: emit(it['id'])

def side(k):
    k(f"""
    s_lshr_b32 s34, s20, 2
    s_and_b32 s35, s20, 3
    s_lshl_b32 s32, s34, 2
    s_add_u32 s32, s32, s21
    v_lshrrev_b32 v2, 3, v1
    v_and_b32 v3, 6, v2
    v_and_b32 v4, 7, v1
    v_xor_b32 v3, v3, v4
    v_mul_u32_u24 v2, 3072, v2
    v_lshl_add_u32 v2, v3, 4, v2
    s_mul_i32 s33, s35, 160
    s_mul_i32 s26, s21, 40
    s_add_u32 s33, s33, s26
    s_mul_i32 s33, s33, 3072
    s_lshl_b32 s26, s34, 7
    s_add_u32 s33, s33, s26
    v_add_u32 v2, s33, v2
    s_mul_i32 s26, s21, 5120
    s_add_u32 m0, s26, {W1R}
    s_lshr_b32 s24, s20, 1
    s_and_b32 s25, s20, 1                 ; half
    """)
    for i in range(5):
        k(f"global_load_lds_dwordx4 v2, {P(pW1)}")
        k(f"s_add_u32 m0, m0, 1024\nv_add_u32 v2, {8*3072}, v2" if i < 4 else f"s_add_u32 m0, s26, {W2R}")
    k(f"""
    s_mul_i32 s33, s24, {32*1280}
    s_mul_i32 s26, s25, 640
    s_add_u32 s33, s33, s26
    s_mul_i32 s27, s21, 320
    """)
    for i in range(5):
        k(f"""
        v_add_u32 v3, {64*i}, v1
        v_add_u32 v3, s27, v3
        v_mul_u32_u24 v4, 1639, v3
        v_lshrrev_b32 v4, 16, v4
        v_mul_u32_u24 v4, 640, v4
        v_lshl_add_u32 v3, v3, 4, v4
        v_add_u32 v3, s33, v3
        global_load_lds_dwordx4 v3, {P(pW2)}
        """)
        if i < 4: k("s_add_u32 m0, m0, 1024")
    lane_consts(k)
    k(f"""
    v_lshl_add_u32 v9, v12, 2, v11
    v_mul_u32_u24 v9, 640, v9
    v_lshl_add_u32 v9, v10, 3, v9
    s_mul_i32 s26, s21, 160
    s_add_u32 s26, s26, {W2R}
    v_add_u32 v9, s26, v9
    v_lshrrev_b32 v5, 1, v12
    v_and_b32 v6, 1, v12
    v_lshlrev_b32 v5, 4, v5
    v_lshl_add_u32 v5, v6, 2, v5          ; 16(G>>1) + 4(G&1)
    v_add_u32 v2, v5, v11
    v_and_b32 v3, 6, v2
    s_lshl_b32 s26, s21, 1
    v_xor_b32 v3, s26, v3
    v_lshrrev_b32 v4, 1, v10
    v_add_u32 v3, v3, v4
    v_lshlrev_b32 v3, 4, v3
    v_lshl_add_u32 v3, v2, 7, v3
    v_and_b32 v4, 1, v1
    v_lshl_add_u32 v3, v4, 3, v3
    v_add_u32 v130, {W1R}, v3
    ; W2F destination: ((j*4 + KS/12)*12 + order(KS%12))*5 KB, j = 4*half + wave
    s_mul_hi_u32 s26, s24, 0x15555556
    s_mul_i32 s27, s26, 12
    s_sub_u32 s27, s24, s27
    s_lshl_b32 s27, s27, 2
    s_mov_b32 s28, {KORD & 0xffffffff}
    s_mov_b32 s29, {KORD >> 32}
    s_lshr_b64 s[28:29], s[28:29], s27
    s_and_b32 s27, s28, 15
    s_lshl_b32 s28, s25, 2
    s_add_u32 s28, s28, s21
    s_lshl_b32 s28, s28, 2
    s_add_u32 s26, s26, s28
    s_mul_i32 s26, s26, 12
    s_add_u32 s26, s26, s27
    s_mul_i32 s26, s26, 5120
    s_add_u32 s26, s26, {WS_W2F}
    v_add_u32 v129, s26, v{vL16}
    s_mul_i32 s26, s35, 640
    s_add_u32 s26, s26, 7680
    v_lshl_add_u32 v14, v1, 2, s26
    v_and_b32 v15, 31, v1
    v_lshl_add_u32 v15, v15, 2, s26
    ; W1F destination
    s_mul_hi_u32 s26, s32, 0x55555556
    s_mul_i32 s27, s26, 3
    s_sub_u32 s27, s32, s27
    s_add_u32 s28, s27, 2
    s_cmp_ge_u32 s28, 3
    s_cselect_b32 s29, 3, 0
    s_sub_u32 s28, s28, s29
    s_bitcmp1_b32 s26, 0
    s_cselect_b32 s27, s28, s27           ; pass
    s_mul_i32 s26, s26, 60
    s_mul_i32 s28, s35, 10
    s_add_u32 s28, s28, s27
    s_mul_i32 s29, s35, 5
    s_add_u32 s29, s29, 40
    s_cmp_lt_u32 s27, 2
    s_cselect_b32 s28, s28, s29
    s_cselect_b32 s33, 2, 1
    s_lshl_b32 s33, s33, 10
    s_add_u32 s26, s26, s28
    s_lshl_b32 s26, s26, 10
    s_add_u32 s26, s26, {WS_W1F}
    v_add_u32 v128, s26, v{vL16}
    s_lshl_b32 s26, s21, 10
    s_add_u32 s26, s26, {VRED}
    v_lshl_add_u32 v6, v1, 2, s26
    v_and_b32 v7, 31, v1
    v_lshl_add_u32 v2, v7, 1, s26
    v_lshl_add_u32 v7, v7, 2, s26
    v_lshl_add_u32 v4, v1, 1, s26
    v_lshl_add_u32 v3, v5, 1, s26
    v_lshl_add_u32 v5, v5, 2, s26
    s_mul_i32 s26, s35, 12288
    s_lshl_b32 s27, s32, 6
    s_add_u32 s26, s26, s27
    s_add_u32 s26, s26, {WS_V12}
    v_lshl_add_u32 v127, v12, 4, s26
    v_add_u32 v126, 6144, v127
    s_lshl_b32 s26, s32, 7
    s_lshl_b32 s27, s35, 2
    s_add_u32 s26, s26, s27
    s_add_u32 s26, s26, {WS_SYNC + F1_OFF}
    v_mov_b32 v125, s26
    v_mov_b32 v124, 1
    v_mov_b32 v100, 0x3f803f80
    v_mov_b32 v101, 0x3f803f80
    v_mov_b32 v102, 0x3f803f80
    v_mov_b32 v103, 0x3f803f80
    """)
    poll_addr(k, SM_OFF, vPA)
    k("s_waitcnt vmcnt(0)\ns_barrier")
    k.stamp('w1raw')
    k(f"global_load_dword v{vPD}, v{vPA}, {P(pWS)} sc1\nAUTO")
    for dt in range(5):
        for h in range(2): k(f"ds_read_b64_tr_b16 v[{16+4*dt+2*h}:{17+4*dt+2*h}], v9 offset:{10240*h + 32*dt}")
    for i in range(5):
        for h in range(2): k(f"ds_read_b64_tr_b16 v[{40+4*i+2*h}:{41+4*i+2*h}], v130 offset:{4096*i + 1024*h}")
    for i in range(5):
        for q in range(4): k(f"v_lshlrev_b32 v{136+8*i+2*q}, 16, v{40+4*i+q}\nv_and_b32 v{137+8*i+2*q}, 0xffff0000, v{40+4*i+q}")
    wait_flags(k, 'sm', vPD, vPA, 15, None)
    k.stamp('s1')
    for kq in range(4):
        for wh in range(2):
            for c in range(3):
                k(f"global_load_dword v{60 + 6*kq + 3*wh + c}, v{14 if c < 2 else 15}, {P(pWS)} offset:{2560*wh + 256*c} {SC}")
        if kq < 3: k("v_add_u32 v14, 15360, v14\nv_add_u32 v15, 15360, v15")
    for i in range(3): k(f"v_pk_add_f32 v[{60+2*i}:{61+2*i}], v[{60+2*i}:{61+2*i}], v[{66+2*i}:{67+2*i}]")
    for i in range(3): k(f"v_pk_add_f32 v[{72+2*i}:{73+2*i}], v[{72+2*i}:{73+2*i}], v[{78+2*i}:{79+2*i}]")
    for i in range(3): k(f"v_pk_add_f32 v[{60+2*i}:{61+2*i}], v[{60+2*i}:{61+2*i}], v[{72+2*i}:{73+2*i}]")
    for c in range(3): k(f"v_cvt_pk_bf16_f32 v{60+c}, v{63+c}, v{60+c}")
    for c in range(3): k(f"v_lshlrev_b32 v{63+c}, 16, v{60+c}\nds_write_b16_d16_hi v{4 if c < 2 else 2}, v{60+c} offset:{640 + 128*c}")
    for c in range(3): k(f"v_add_f32 v{63+c}, 1.0, v{63+c}")
    for c in range(3): k(f"v_cvt_pk_bf16_f32 v{63+c}, v{63+c}, v{63+c}")
    for c in range(3): k(f"v_lshlrev_b32 v{63+c}, 16, v{63+c}\nds_write_b32 v{6 if c < 2 else 7}, v{63+c} offset:{256*c}")
    k.stamp('ndata')
    for i in range(5):
        g = 180 + 12 * i
        for h in range(2): k(f"ds_read_b128 {V4(g+4*h)}, v5 offset:{128*i + 32*h}")
        for h in range(2): k(f"ds_read_b64 v[{g+8+2*h}:{g+9+2*h}], v3 offset:{640 + 64*i + 16*h}")
    for i in range(5):
        g = 180 + 12 * i; u = 136 + 8 * i; o4 = 64 + 4 * i
        for q in range(4): k(f"v_pk_mul_f32 v[{u+2*q}:{u+2*q+1}], v[{u+2*q}:{u+2*q+1}], v[{g+2*q}:{g+2*q+1}]")
        for q in range(4): k(f"v_cvt_pk_bf16_f32 v{o4+q}, v{u+2*q}, v{u+2*q+1}")
        k(f"global_store_dwordx4 v128, {V4(o4)}, {P(pWS)} {SC} ; @w:W1F" + ("\nv_add_u32 v128, s33, v128" if i < 4 else ""))
    for i in range(5):
        k(mf(112, V4(64 + 4 * i), V4(100), i == 0))
        k(mf(116, V4(40 + 4 * i), V4(188 + 12 * i), i == 0))
    k(f"""
    s_mov_b32 exec_lo, 0x00010001
    s_mov_b32 exec_hi, 0x00010001
    global_store_dwordx4 v127, v[112:115], {P(pWS)} {SC} ; @w:W1F
    global_store_dwordx4 v126, v[116:119], {P(pWS)} {SC} ; @w:W1F
    s_mov_b64 exec, -1
    """)
    for dt in range(5):
        k(f"global_store_dwordx4 v129, {V4(16+4*dt)}, {P(pWS)} {SC}" + ("\nv_add_u32 v129, 1024, v129" if dt < 4 else ""))
    k(f"s_mov_b64 exec, 1 ; @r:W1F\nglobal_store_dword v125, v124, {P(pWS)} sc1\ns_mov_b64 exec, -1\nMANUAL")
    k.stamp('f1pub')

ST = 16; V12 = 24; ACA, ACB = 48, 80; BF = 96; NBF = 6; TMP = 192; PKD = 208; SQ, SM, ONES = 224, 228, 232; XA = 236
AC2 = 24; HR = 104; NRK = 8; GB = 232; HA = 4
BORD = list(range(20 - NBF, 20)) + list(range(20 - NBF))
W2SLOT = list(range(40)) + [40 + ks for ks in BORD]

class Loader:
    def __init__(self): self.n1 = 0; self.n2 = 0; self.blk = {}
    def txt(self, n, slot, srd_, sreg):
        t = ""
        if self.blk.get(sreg) != n // 4: t = f"s_mov_b32 s{sreg}, {n // 4 * 4096}\n"; self.blk[sreg] = n // 4
        return t + f"buffer_load_dwordx4 a[{4*slot}:{4*slot+3}], v{vL16}, s[{srd_}:{srd_+3}], s{sreg} offen offset:{(n % 4) * 1024} {SC}"
    def w1(self): self.n1 += 1; return self.txt(W2SLOT[self.n1 - 1], W2SLOT[self.n1 - 1], 4, 28)
    def w2(self): self.n2 += 1; return self.txt(self.n2 - 1, W2SLOT[self.n2 - 1], 8, 29)
    def next(self, free):
        if self.n1 < 60: return self.w1()
        if self.n2 < min(free, 60): return self.w2()
        return None

def breads(ks, buf):
    b = BF + 16 * (buf % NBF)
    return [f"ds_read_b64_tr_b16 v[{b+4*s+2*h}:{b+4*s+2*h+1}], v{XA + s + (4 if ks >= 10 else 0)} offset:{4096*(ks % 10) + 1024*h}" for s in range(4) for h in range(2)]

def epilogue(acc, p, dst, dstep):
    v1, v2 = V12 + 8 * p, V12 + 8 * p + 4
    o = []
    for s in range(4):
        for h in range(2):
            a = acc + 4 * s + 2 * h
            o.append(f"v_pk_fma_f32 v[{a}:{a+1}], v[{v1+2*h}:{v1+2*h+1}], v[{ST+2*s}:{ST+2*s+1}], v[{a}:{a+1}] op_sel_hi:[1,0,1] neg_lo:[1,0,0] neg_hi:[1,0,0]")
    for s in range(4):
        for h in range(2):
            a = acc + 4 * s + 2 * h
            o.append(f"v_pk_fma_f32 v[{a}:{a+1}], v[{a}:{a+1}], v[{ST+2*s}:{ST+2*s+1}], v[{v2+2*h}:{v2+2*h+1}] op_sel:[0,1,0] op_sel_hi:[1,1,1]")
    o += [f"v_exp_f32 v{TMP+i}, v{acc+i}" for i in range(16)]
    o += [f"v_pk_add_f32 v[{TMP+2*i}:{TMP+2*i+1}], v[{TMP+2*i}:{TMP+2*i+1}], 1.0 op_sel_hi:[1,0]" for i in range(8)]
    o += [f"v_rcp_f32 v{TMP+i}, v{TMP+i}" for i in range(16)]
    o += [f"v_pk_mul_f32 v[{acc+2*i}:{acc+2*i+1}], v[{acc+2*i}:{acc+2*i+1}], v[{TMP+2*i}:{TMP+2*i+1}]" for i in range(8)]
    o += [f"v_cvt_pk_bf16_f32 v{dst + dstep*s + h}, v{acc+4*s+2*h}, v{acc+4*s+2*h+1}" for s in range(4) for h in range(2)]
    return o

def sprinkle(k, ops, extra):
    extra = [e for e in extra if e]
    step = len(ops) / (len(extra) + 1); nxt = step
    for i, o in enumerate(ops):
        k(o)
        while extra and i + 1 >= nxt: k(extra.pop(0)); nxt += step
    for e in extra: k(e)

def mlp(k, opts):
    PRE1 = int(opts.get('pre1', 4)); PB = int(opts.get('pb', 40))
    ld = Loader()
    ld.n1 = int(opts.get('ne1', 16))
    for i in range(PRE1): k(ld.w1() + " ; @skip")
    k(f"s_waitcnt vmcnt({PRE1})\ns_barrier\ns_cmp_eq_u32 s21, 0\ns_cbranch_scc0 LF_m1")
    arrive(k, S2_OFF, 12, 13)
    k("LF_m1:")
    k.stamp('arr2')
    k("s_mov_b32 s92, 0")
    k(f"s_cmp_eq_u32 s6, 0\ns_cbranch_scc0 LF_w1ok\nglobal_load_dword v{vF1D}, v{vF1A}, {P(pWS)} sc1")
    wait_flags(k, 'f1', vF1D, vF1A, 1, 0)
    k("s_mov_b32 s6, 61440")
    l2 = Loader()
    while l2.n1 < ld.n1: k(l2.w1())
    k("LF_w1ok:"); ld.blk = {}
    k.stamp('w1ok')
    for kq in range(4):
        k(f"global_load_dword v{48+2*kq}, v{vVA+4}, {P(pWS)} {SC}\nglobal_load_dword v{49+2*kq}, v{vVA+5}, {P(pWS)} offset:256 {SC}")
        if kq < 3: k(f"v_add_u32 v{vVA+4}, 15360, v{vVA+4}\nv_add_u32 v{vVA+5}, 15360, v{vVA+5}")
    for i in range(8): k(f"global_load_dword v{56+i}, v{vVA}, {P(pWS)} {SC}" + (f"\nv_add_u32 v{vVA}, 6144, v{vVA}" if i < 7 else ""))
    n0 = ld.n1
    while ld.n1 < PB: k(ld.w1())
    k(f"""
    s_mul_i32 s26, s21, 320
    s_add_u32 s26, s26, {GBL}
    v_lshl_add_u32 v12, v1, 2, s26
    v_and_b32 v13, 15, v1
    v_lshl_add_u32 v13, v13, 2, s26
    s_lshl_b32 s26, s21, 9
    s_add_u32 s26, s26, {GBL + 1280}
    v_lshl_add_u32 v15, v1, 2, s26
    v_lshrrev_b32 v14, 4, v1
    v_lshl_add_u32 v14, v14, 4, s26
    s_waitcnt vmcnt({PB - n0})
    v_pk_add_f32 v[56:57], v[56:57], v[58:59]
    v_pk_add_f32 v[60:61], v[60:61], v[62:63]
    v_pk_add_f32 v[56:57], v[56:57], v[60:61]
    v_mul_f32 v57, {LOG2E + 0x80000000}, v57
    ds_write_b32 v15, v56
    ds_write_b32 v15, v57 offset:256
    ds_read_b128 {V4(V12)}, v14
    ds_read_b128 {V4(V12+4)}, v14 offset:256
    ds_read_b128 {V4(V12+8)}, v14 offset:64
    ds_read_b128 {V4(V12+12)}, v14 offset:320
    ds_read_b128 {V4(V12+16)}, v14 offset:128
    ds_read_b128 {V4(V12+20)}, v14 offset:384
    v_pk_add_f32 v[48:49], v[48:49], v[50:51]
    v_pk_add_f32 v[52:53], v[52:53], v[54:55]
    v_pk_add_f32 v[48:49], v[48:49], v[52:53]
    v_cvt_pk_bf16_f32 v48, v48, v49
    v_and_b32 v49, 0xffff0000, v48
    v_lshlrev_b32 v48, 16, v48
    v_mul_f32 v48, {LN2 + 0x80000000}, v48
    v_mul_f32 v49, {LN2 + 0x80000000}, v49
    ds_write_b32 v12, v48
    ds_write_b32 v13, v49 offset:256
    v_lshrrev_b32 v14, 4, v1              ; G
    v_bfe_u32 v12, v1, 2, 2               ; r
    v_and_b32 v13, 1, v14
    v_lshl_add_u32 v15, v13, 2, v12
    v_lshrrev_b32 v13, 1, v14
    v_lshl_add_u32 v13, v13, 4, v15
    v_lshlrev_b32 v13, 7, v13
    v_and_b32 v12, 1, v1
    v_lshl_add_u32 v13, v12, 3, v13
    v_bfe_u32 v12, v1, 1, 1
    v_lshl_add_u32 v13, v12, 4, v13
    v_and_b32 v15, 6, v15
    """)
    for s in range(4):
        k(f"s_xor_b32 s26, s21, {s}\ns_lshl_b32 s26, s26, 1\nv_xor_b32 v12, s26, v15\nv_lshl_add_u32 v{XA+s}, v12, 4, v13\nv_add_u32 v{XA+4+s}, 40960, v{XA+s}")
    k(f"""
    v_lshrrev_b32 v12, 3, v1
    v_and_b32 v13, 6, v12
    v_and_b32 v15, 7, v1
    v_xor_b32 v13, v13, v15
    v_lshlrev_b32 v12, 12, v12
    v_lshl_add_u32 v3, v13, 4, v12
    s_lshl_b32 s26, s21, 15
    s_lshl_b32 s27, s22, 7
    s_add_u32 s26, s26, s27
    s_add_u32 s26, s26, {WS_X1}
    v_add_u32 v3, s26, v3
    s_lshl_b32 s26, s21, 10
    s_mov_b32 m0, s26
    v_mov_b32 v{ONES}, 0x3f803f80
    v_mov_b32 v{ONES+1}, 0x3f803f80
    v_mov_b32 v{ONES+2}, 0x3f803f80
    v_mov_b32 v{ONES+3}, 0x3f803f80
    s_lshr_b32 s30, s21, 1
    s_lshl_b32 s30, s30, 12
    s_add_u32 s30, s30, {RED}
    s_and_b32 s31, s21, 1
    s_lshl_b32 s31, s31, 3
    v_add_u32 v244, s30, v{vL16}
    v_add_u32 v245, s31, v244
    s_lshl_b32 s26, s22, 9
    s_add_u32 s26, s26, {WS_SYNC + F3_OFF}
    s_lshr_b32 s27, s23, 1
    s_lshl_b32 s27, s27, 7
    s_and_b32 s30, s23, 1
    s_lshl_b32 s30, s30, 4
    s_add_u32 s27, s27, s30
    s_lshl_b32 s30, s21, 2
    s_add_u32 s27, s27, s30
    s_add_u32 s27, s27, s26
    v_mov_b32 v10, s27
    s_lshl_b32 s30, s21, 7
    s_add_u32 s26, s26, s30
    v_and_b32 v11, 7, v1
    v_lshl_add_u32 v11, v11, 2, s26
    s_mul_i32 s78, s21, {12*4096}
    v_and_b32 v9, 15, v1
    v_lshlrev_b32 v9, 3, v9
    s_lshl_b32 s26, s21, 7
    s_add_u32 s26, s26, {STAT}
    v_add_u32 v9, s26, v9
    v_and_b32 v13, 3, v1
    v_cmp_eq_u32 s[84:85], 1, v13
    v_cmp_eq_u32 s[86:87], 2, v13
    v_cmp_eq_u32 s[88:89], 3, v13
    v_bfe_u32 v15, v1, 2, 2
    v_cmp_eq_u32 s[90:91], v14, v15
    """)
    for s in range(4): k(f"v_add_u32 v{HA+s}, s{80+s}, v{vL16}")
    if int(opts.get('w2t', 0)):
        k(f"""
        s_cmp_lt_u32 s2, {NCONV}
        s_cbranch_scc1 LF_now2t
        s_lshr_b32 s26, s2, 5
        s_sub_u32 s26, s26, 5
        s_mul_i32 s26, s26, 20480
        v_lshlrev_b32 v12, 7, v1
        buffer_load_dword v13, v12, s[8:11], s26 offen ; @skip
        s_add_u32 s26, s26, 8192
        buffer_load_dword v13, v12, s[8:11], s26 offen ; @skip
        v_min_u32 v12, 3968, v12
        s_add_u32 s26, s26, 8192
        buffer_load_dword v13, v12, s[8:11], s26 offen ; @skip
        s_waitcnt vmcnt(0)
        LF_now2t:
        """)
    k.stamp('w1iss')
    k("s_cmp_eq_u32 s21, 0\ns_cbranch_scc0 LF_m2")
    poll_addr(k, S2_OFF, 13)
    k(f"global_load_dword v12, v13, {P(pWS)} sc1")
    wait_flags(k, 's2', 12, 13, 16, 0)
    k("LF_m2:\ns_barrier")
    k.stamp('s2')
    k("AUTO")
    def xdma(i): return f"global_load_lds_dwordx4 v3, {P(pWS)} {SC} ; @w:X{i // 4}" + ("\ns_add_u32 m0, m0, 4096\nv_add_u32 v3, 0x20000, v3" if i < 19 else "")
    XI = int(opts.get('xi', 8))
    for i in range(XI): k(xdma(i))
    xq = [xdma(i) for i in range(XI, 20)]
    k("s_barrier ; @r:X0")
    k.stamp('x0')
    for r in breads(0, 0) + breads(1, 1): k(r)
    LA0, LA1, LA2 = (int(x) for x in opts.get('la', '3,2,0').split(','))
    for ks in range(20):
        if ks % 4 == 2 and ks < 18: k(f"s_barrier ; @r:X{ks // 4 + 1}")
        rs = breads(ks + 2, ks + 2) if ks + 2 < 20 else []
        lds = []
        for _ in range(LA0 if ks < 6 else LA1 + (ks & 1) * LA2):
            dx = 4 * ((20 - len(xq)) // 4) - 2 if xq else 99
            dw = ld.n1 // 2 if ld.n1 < 40 else 98
            t = xq.pop(0) if xq and dx <= dw else ld.next(2 * ks)
            if t: lds.append(t)
        b = BF + 16 * (ks % NBF)
        ms = [mf(ACA + 16 * p + 4 * s, A4(4 * (2 * ks + p)), V4(b + 4 * s), ks == 0) for s in range(4) for p in range(2)]
        ms = [mf(SQ, V4(b), V4(b), ks == 0), mf(SM, V4(ONES), V4(b), ks == 0)] + ms
        for i, m in enumerate(ms):
            k(m)
            if i >= 2 and rs: k(rs.pop(0))
            elif lds: k(lds.pop(0))
        for t in lds: k(t)
    k.stamp('passA')
    stat = f"""v_cndmask_b32 v13, v{SQ}, v{SQ+1}, s[84:85]
    v_mul_f32 v12, {f2u(1/640)}, v{SM}
    v_cndmask_b32 v13, v13, v{SQ+2}, s[86:87]
    v_cndmask_b32 v13, v13, v{SQ+3}, s[88:89]
    v_mul_f32 v13, {f2u(1/640)}, v13
    {rstd_chain(12, 13)}
    v_mul_f32 v13, {LOG2E + 0x80000000}, v13"""
    stat = [l.strip() for l in stat.split('\n')]
    stat += [f"s_mov_b64 exec, s[90:91]\nds_write_b64 v9, v[12:13]\ns_mov_b64 exec, -1", "s_waitcnt lgkmcnt(0)\ns_barrier"]
    stat += [f"v_xor_b32 v13, {128*s}, v9\nds_read_b64 v[{ST+2*s}:{ST+2*s+1}], v13" for s in range(4)]
    NB = int(opts.get('nb', 1))
    def passB(n, rsq, fill):
        ks = BORD[n]; b = BF + 16 * ((14 + n) % NBF)
        t = [x for x in [ld.next(40 + n) for _ in range(NB)] if x]
        for s in range(4):
            k(mf(ACB + 4 * s, A4(4 * (40 + ks)), V4(b + 4 * s), n == 0))
            for _ in range(2):
                if fill: k(fill.pop(0))
                elif rsq: k(rsq.pop(0))
            if t and s & 1: k(t.pop(0))
    for n in range(4): passB(n, [], stat)
    for t in stat: k(t)
    rq = breads(BORD[6], 14 + 6) + breads(BORD[7], 14 + 7)
    passB(4, rq, []); passB(5, rq, [])
    k.stamp('stats')
    NE = int(opts.get('ne', 10))
    sprinkle(k, epilogue(ACA, 0, PKD, 4) + epilogue(ACA + 16, 1, PKD + 2, 4), [ld.next(46) for _ in range(NE)])
    k("v_mov_b32 v14, 1\nv_mov_b32 v15, 2")
    for s in range(4): k(f"buffer_store_dwordx4 {V4(PKD+4*s)}, v{vL16}, s[12:15], s{72+s} offen {SC}")
    k(f"s_mov_b64 exec, 1\nglobal_store_dword v10, v14, {P(pWS)} sc1\ns_mov_b64 exec, -1")
    k.stamp('pairst')
    PN = int(opts.get('pn', 15))
    for n in range(6, 20):
        passB(n, breads(BORD[n + 2], 14 + n + 2) if n + 2 < 20 else [], [])
        if n == PN: k(f"global_load_dword v12, v11, {P(pWS)} sc1")
    k.stamp('passB')
    def hload(i, slots=range(4)):
        r = HR + 16 * (i % NRK)
        return [(f"s_add_u32 s79, s78, {KSEQ[i] * 4096}\n" if s == slots[0] else "") + f"buffer_load_dwordx4 {V4(r+4*s)}, v{HA+s}, s[12:15], s79 offen {SC}" for s in slots]
    def g2(i, s): return [mf(AC2 + 20 * s + 4 * dt, A4(4 * W2SLOT[5 * i + dt]), V4(HR + 16 * (i % NRK) + 4 * s), i == 0) for dt in range(5)]
    AH = int(opts.get('ahead', 3))
    wait_flags(k, 'h1', 12, 11, 0 if 'h' in opts.get('force', '') else 1, None)
    k.stamp('h1')
    hfirst = [t for i in range(AH) for t in hload(i)]
    NF = int(opts.get('nf', 8))
    for t in hfirst[:NF]: k(t)
    sprinkle(k, epilogue(ACB, 2, PKD, 2), hfirst[NF:] + [ld.next(60) for _ in range(int(opts.get('ns', 0)))])
    for s in range(4): k(f"v_add_u32 v13, s{80+s}, v245\nds_write_b64 v13, v[{PKD+2*s}:{PKD+2*s+1}]")
    k(f"""
    v_add_u32 v22, s80, v244
    v_add_u32 v23, s82, v244
    s_waitcnt lgkmcnt(0)
    s_barrier
    ds_read_b128 v[244:247], v22
    ds_read_b128 v[248:251], v23
    buffer_store_dwordx4 v[244:247], v{vL16}, s[12:15], s76 offen {SC}
    buffer_store_dwordx4 v[248:251], v{vL16}, s[12:15], s77 offen {SC}
    s_mov_b64 exec, 1
    global_store_dword v10, v15, {P(pWS)} sc1
    s_mov_b64 exec, -1
    """)
    k.stamp('singst')
    tail_addr = f"""
    s_lshl_b32 s26, s21, 1
    v_lshrrev_b32 v3, 4, v1
    v_bfe_u32 v0, v1, 2, 2
    v_lshl_add_u32 v0, v3, 2, v0
    v_and_b32 v16, 6, v0
    v_xor_b32 v16, s26, v16
    v_bfe_u32 v17, v1, 1, 1
    v_add_u32 v16, v16, v17
    v_lshlrev_b32 v16, 4, v16
    v_lshl_add_u32 v16, v0, 7, v16
    v_and_b32 v17, 1, v1
    v_lshl_add_u32 v16, v17, 3, v16
    s_mul_i32 s26, s23, {80*128}
    v_add_u32 v16, s26, v16
    s_mul_i32 s74, s21, 15360
    s_add_u32 s74, s74, {RED}
    v_and_b32 v17, 15, v1
    v_mul_u32_u24 v17, 176, v17
    v_lshl_add_u32 v17, v3, 3, v17
    v_add_u32 v17, s74, v17
    v_add_u32 v18, s74, v{vL16}
    s_mul_i32 s26, s21, 320
    s_add_u32 s26, s26, {GBL}
    v_lshl_add_u32 v22, v3, 4, s26
    s_lshr_b32 s26, s22, 3
    s_lshl_b32 s26, s26, 9
    s_and_b32 s27, s22, 1
    s_lshl_b32 s27, s27, 7
    s_add_u32 s26, s26, s27
    s_bfe_u32 s27, s22, 0x20001
    s_lshl_b32 s27, s27, 2
    s_add_u32 s26, s26, s27
    s_lshl_b32 s27, s21, 5
    s_add_u32 s26, s26, s27
    s_mul_i32 s26, s26, 1280
    s_mul_i32 s27, s23, 160
    s_add_u32 s75, s26, s27
    """
    first = ""
    for s in range(1, 4): first += f"s_xor_b32 s26, s21, {s}\ns_mul_i32 s26, s26, 15360\ns_add_u32 s26, s26, {RED + 5120*(s-1)}\nv_add_u32 v{4+s}, s26, v{vL16}\n"
    for i in range(3):
        tail_addr += f"""
        v_add_u32 v23, {64*i}, v1
        v_mul_u32_u24 v2, 6554, v23
        v_lshrrev_b32 v2, 16, v2
        v_mul_u32_u24 v3, 10, v2
        v_sub_u32 v23, v23, v3
        v_mul_u32_u24 v3, 176, v2
        v_lshl_add_u32 v3, v23, 4, v3
        v_add_u32 v{19+i}, s74, v3
        v_bfe_u32 v3, v2, 2, 1
        v_lshlrev_b32 v3, 8, v3
        v_bfe_u32 v0, v2, 3, 1
        v_lshl_add_u32 v3, v0, 4, v3
        v_and_b32 v0, 3, v2
        v_add_u32 v3, v3, v0
        v_mul_u32_u24 v3, 1280, v3
        v_lshl_add_u32 v{252+i}, v23, 4, v3
        """
    tail_addr += "v_lshrrev_b32 v2, 5, v1\nv_lshlrev_b32 v2, 30, v2\nv_add_u32 v254, v254, v2\n"
    fill0 = [l.strip() for l in tail_addr.split('\n') if l.strip()]; tail_addr = ""
    a = Asm('z'); a.names = k.names; a.stamp('g2redo')
    SPINS.append("LF_g2redo:\n" + "".join(l + "\n" for l in a.lines) + "s_add_u32 s92, s92, 1\ns_waitcnt vmcnt(0) lgkmcnt(0)\ns_sleep 16\n" + "".join(f"v_add_u32 v{HA+s}, s{80+s}, v{vL16}\n" for s in range(4)) + "\n".join(hfirst) + "\ns_waitcnt vmcnt(0)\ns_branch LF_g2")
    k("LF_g2:"); ld.blk = {}
    PI = int(opts.get('pi', 2))
    for i in range(8):
        q = hload(i + AH) if i + AH < 8 else []
        while ld.n2 < min(60, 5 * i + 15): k(ld.w2())
        for _ in range(-(-(60 - ld.n2) // (8 - i))): q.append(ld.w2())
        if i == PI: q.append(f"global_load_dword v12, v11, {P(pWS)} sc1")
        if i in (1, 2, 4): k.stamp(f'g2_{i}')
        if i == PI + 2:
            k.stamp('h2a')
            wait_flags(k, 'h2', 12, 11, 2, None)
            k.stamp('h2b')
            late = [hload(i2, [s])[0] for s in (1, 2, 3, 0) for i2 in range(8, 12)]
        if i >= max(4, PI + 2):
            nl = -(-len(late) // (8 - i)); q += late[:nl]; late = late[nl:]
        for s in range(4):
            for n, m in enumerate(g2(i, s)):
                k(m)
                if q and n in (0, 2, 4): k(q.pop(0))
                elif fill0: k(fill0.pop(0))
        for t in q: k(t)
    assert not fill0
    k.stamp('g2a')
    U = HR + 64
    tail_addr += "".join(f"ds_read_b64_tr_b16 v[{U+24+2*dt}:{U+25+2*dt}], v16 offset:{2048*dt}\n" for dt in range(5))
    tail_addr += "".join(f"ds_read_b128 {V4(GB+4*dt)}, v22 offset:{64*dt}\n" for dt in range(5))
    tail_addr += "".join(f"v_lshlrev_b32 v{U+4*dt+2*h}, 16, v{U+24+2*dt+h}\nv_and_b32 v{U+4*dt+2*h+1}, 0xffff0000, v{U+24+2*dt+h}\n" for dt in range(5) for h in range(2))
    fill = [l.strip() for l in (first + tail_addr).split('\n') if l.strip()]
    pend = []
    for s in (1, 2, 3, 0):
        for i in range(8, 12):
            for m in g2(i, s):
                k(m)
                if pend and pend[0][0] <= 0: k(pend.pop(0)[1])
                else:
                    for _ in range(2):
                        if fill: k(fill.pop(0))
                pend = [(a - 1, t) for a, t in pend]
        assert not pend
        if s: pend = [(3 + 3 * dt, f"ds_write_b128 v{4+s}, {V4(AC2+20*s+4*dt)} offset:{1024*dt}") for dt in range(5)]
    for t in fill: k(t)
    k(f"""
    v_add_f32 v12, v{AC2+20}, v{AC2+40}
    v_add_f32 v12, v12, v{AC2+60}
    v_add_f32 v12, v12, v{AC2}
    s_cmp_lt_u32 s92, 3
    s_cselect_b64 s[30:31], -1, 0
    v_cmp_u_f32 vcc, v12, v12
    s_and_b64 vcc, vcc, s[30:31]
    s_cbranch_vccnz LF_g2redo
    """)
    k.stamp('g2b')
    k("s_waitcnt lgkmcnt(0)\ns_barrier")
    R0 = 44
    for dt in range(5):
        for s in range(3): k(f"ds_read_b128 {V4(R0+20*s+4*dt)}, v18 offset:{5120*s + 1024*dt}")
    for dt in range(5):
        for h in range(2):
            q = 2 * dt + h
            k(f"v_pk_add_f32 v[{AC2+2*q}:{AC2+2*q+1}], v[{AC2+2*q}:{AC2+2*q+1}], v[{R0+2*q}:{R0+2*q+1}]")
            k(f"v_pk_add_f32 v[{R0+20+2*q}:{R0+21+2*q}], v[{R0+20+2*q}:{R0+21+2*q}], v[{R0+40+2*q}:{R0+41+2*q}]")
        for h in range(2):
            q = 2 * dt + h
            k(f"v_pk_add_f32 v[{AC2+2*q}:{AC2+2*q+1}], v[{AC2+2*q}:{AC2+2*q+1}], v[{R0+20+2*q}:{R0+21+2*q}]")
        for h in range(2):
            q = 2 * dt + h
            k(f"v_pk_fma_f32 v[{AC2+2*q}:{AC2+2*q+1}], v[{AC2+2*q}:{AC2+2*q+1}], v[{GB+2*q}:{GB+2*q+1}], v[{U+2*q}:{U+2*q+1}]")
        k(f"v_cvt_pk_bf16_f32 v{HR+2*dt}, v{AC2+4*dt}, v{AC2+4*dt+1}\nv_cvt_pk_bf16_f32 v{HR+2*dt+1}, v{AC2+4*dt+2}, v{AC2+4*dt+3}")
    for dt in range(5): k(f"ds_write_b64 v17, v[{HR+2*dt}:{HR+2*dt+1}] offset:{32*dt}")
    for i in range(3): k(f"ds_read_b128 {V4(R0+4*i)}, v{19+i}")
    for i in range(3): k(f"buffer_store_dwordx4 {V4(R0+4*i)}, v{252+i}, s[16:19], s75 offen")
    k("MANUAL")

def gen_F(opts={}):
    SPINS.clear()
    k = Asm('F')
    k(f"s_cmp_ge_u32 s2, {F_GRID}\ns_cbranch_scc1 LF_end")
    k.stamp('start')
    prologue(k, opts)
    mlp_setup(k, opts)
    k.stamp('msetup')
    conv_setup(k)
    k.stamp('csetup')
    kgen(k, opts)
    conv(k, opts)
    k("s_branch LF_mlp")
    conv_mod(k)
    k("LF_side:")
    side_a(k)
    side(k)
    lane_consts(k)
    mlp_setup(k, opts)
    k("s_mov_b32 s6, 0\n" + hfill())
    k("LF_mlp:")
    mlp(k, opts)
    k.end(0)
    k("LF_end:\ns_endpgm")
    for s in SPINS: k(s)
    k("LF_codeend:")
    return k.finish()

if __name__ == '__main__':
    print(gen_F())
```

```python
from asmlib import *
from layoutF import *

F_GRID = 256
NCONV = 160
LNS = 1600
STATP = 12800
MODB = 13312
KT = 33792; KTS = 18432
TAPS = 107520; TCS = 2112; TAPCH = 4 * TCS
STG = TAPS + 4 * TAPCH; STGS = 2112
F_LDS = 149760
OH = 480
UD = 3088
O3 = 4576 + 16; O5 = O3 + UD; O7 = O5 + UD; O9 = O7 + UD
CHS = (O9 + 2048 + 127) // 128 * 128 + 16
OU = 4 * CHS; OS = OU + 16384
W1R = 102400; W2R = W1R + 20480; VRED = W2R + 20480
RED = 81920; STAT = RED + 61440; GBL = STAT + 512
assert OS + 16384 <= TAPS and STG + 4 * STGS <= F_LDS and GBL + 1280 + 2048 <= F_LDS
pU, pAR, pAI, pBR, pBI, pCR, pCI, pLD, pDS, pW1, pW2, pC, pWM, pOUT, pDBG, pWS = 36, 38, 40, 42, 44, 46, 48, 50, 52, 56, 58, 60, 62, 64, 66, 68
def P(p): return f"s[{p}:{p+1}]"
SC = 'sc1'
vL16 = 8
BAND = 210
vRD, vDA, vDB, vD3, vRU, vWU, vWH, vNO, vUO, vMO, vTA, vT2, vT3, vBP = range(230, 244)
vVA, vF1D, vF1A = 244, 250, 251
vSA, vSG, vP2 = 252, 253, 155
vKW, vKR, vPD, vPA, vPT = 120, 121, 122, 123, 133
KACC = 104; SCT = 124; PRM = 134
CDAT = 156; LA = 158; MFR = 164; NR = 184

def srd(k, r, base, off, size):
    k(f"s_add_u32 s{r}, s{base}, {off}\ns_addc_u32 s{r+1}, s{base+1}, 0\ns_mov_b32 s{r+2}, {size}\ns_mov_b32 s{r+3}, 0x20000")
def mf(acc, a, b, first):
    c = '0' if first else f'v[{acc}:{acc+3}]'
    return f"v_mfma_f32_16x16x32_bf16 v[{acc}:{acc+3}], {a}, {b}, {c}"
V4 = lambda r: f"v[{r}:{r+3}]"
A4 = lambda r: f"a[{r}:{r+3}]"

SPINS = []
def wait_flags(k, tag, vdata, vaddr, target, nwait, sleep=2):
    if nwait is not None: k(f"s_waitcnt vmcnt({nwait})")
    k(f"v_cmp_gt_u32 vcc, {target}, v{vdata}\ns_cbranch_vccnz LF_spin{tag}\nLF_go{tag}:")
    SPINS.append(f"""
    LF_spin{tag}:
    s_mov_b32 s30, 40000
    LF_spinl{tag}:
    global_load_dword v{vdata}, v{vaddr}, {P(pDBG if tag.startswith('init') else pWS)} sc1
    s_waitcnt vmcnt(0)
    v_cmp_gt_u32 vcc, {target}, v{vdata}
    s_cbranch_vccz LF_go{tag}
    s_sleep {sleep}
    s_sub_u32 s30, s30, 1
    s_cmp_lg_u32 s30, 0
    s_cbranch_scc1 LF_spinl{tag}
    s_branch LF_go{tag}
    """)

def arrive(k, off, va, vb, shard="s_lshr_b32 s26, s2, 3"):
    k(f"""
    {shard}
    s_lshl_b32 s26, s26, 7
    s_add_u32 s26, s26, {WS_SYNC + off}
    v_lshl_add_u32 v{va}, v1, 12, s26
    v_mov_b32 v{vb}, 1
    s_mov_b64 exec, 0xff
    global_atomic_add v{va}, v{vb}, {P(pWS)} sc1
    s_mov_b64 exec, -1
    """)

def poll_addr(k, off, va):
    k(f"""
    s_and_b32 s26, s2, 7
    s_lshl_b32 s26, s26, 12
    s_add_u32 s26, s26, {WS_SYNC + off}
    v_and_b32 v{va}, 31, v1
    v_lshl_add_u32 v{va}, v{va}, 7, s26
    """)

def rstd_chain(m, q, r=None):
    return f"""v_fma_f32 v{q}, -v{m}, v{m}, v{q}
    v_max_f32 v{q}, 0, v{q}
    v_cvt_pk_bf16_f32 v{q}, v{q}, v{m}
    v_and_b32 v{m}, 0xffff0000, v{q}
    v_lshlrev_b32 v{q}, 16, v{q}
    v_add_f32 v{q}, {f2u(1e-5)}, v{q}
    v_cvt_pk_bf16_f32 v{q}, v{q}, v{q}
    v_lshlrev_b32 v{q}, 16, v{q}
    v_sqrt_f32 v{q}, v{q}
    v_cvt_pk_bf16_f32 v{q}, v{q}, v{q}
    v_lshlrev_b32 v{q}, 16, v{q}
    v_rcp_f32 v{r or q}, v{q}"""

JOBS = 12800
def prologue(k, opts):
    k(f"""
    s_load_dwordx16 s[36:51], s[0:1], 0
    s_load_dwordx2 s[52:53], s[0:1], 64
    s_load_dwordx4 s[60:63], s[0:1], 96
    s_load_dwordx2 s[68:69], s[0:1], 128
    s_load_dwordx4 s[56:59], s[0:1], 80
    s_load_dwordx4 s[64:67], s[0:1], 112
    v_lshrrev_b32 v1, 6, v0
    v_readfirstlane_b32 s21, v1
    v_and_b32 v1, 63, v0
    """)
    if int(opts.get('cpf', 1)):
        k(f"""
        s_getpc_b64 s[24:25]
        LF_pc:
        s_lshr_b32 s26, s2, 3
        s_lshl_b32 s26, s26, 2
        s_add_u32 s26, s26, s21
        s_mul_i32 s26, s26, 384
        s_min_u32 s26, s26, LF_codeend-LF_pc-384
        s_add_u32 s24, s24, s26
        s_addc_u32 s25, s25, 0
        v_min_u32 v2, 2, v1
        v_lshlrev_b32 v2, 7, v2
        v_mov_b32 v3, s25
        v_add_co_u32 v2, vcc, s24, v2
        v_addc_co_u32 v3, vcc, 0, v3, vcc
        global_load_dword v254, v[2:3], off ; @nocheck
        """)
    k(f"""
    v_lshlrev_b32 v{vL16}, 4, v1
    s_cmp_lt_u32 s2, {NCONV}
    s_cbranch_scc0 LF_side
    s_lshl_b32 s20, s2, 2
    s_add_u32 s20, s20, s21               ; channel d
    s_mul_i32 s29, s20, 384
    v_lshl_add_u32 v10, v1, 1, s29
    s_lshl_b32 s29, s20, 1
    v_mov_b32 v11, s29
    v_mov_b32 v{vPA}, 0
    """)
    for i in list(range(19)) + [20]: k(f"v_mov_b32 v{PRM+i}, 0")
    k(f"""
    s_mul_hi_u32 s25, s2, {(1 << 32) // 60 + 1}       ; kq
    s_mul_i32 s26, s25, 60
    s_sub_u32 s26, s2, s26
    s_mul_i32 s27, s25, 320
    v_lshl_add_u32 v6, v1, 2, s27
    v_and_b32 v7, 15, v1
    v_lshl_add_u32 v7, v7, 2, s27
    s_waitcnt lgkmcnt(0)
    global_load_dword v{CDAT}, v6, {P(pC)}
    global_load_dword v{CDAT+1}, v7, {P(pC)} offset:256
    global_load_short_d16_hi v{PRM+18}, v11, {P(pLD)}""")
    for p in range(3):
        for i, ptr in enumerate((pAR, pAI, pBR, pBI, pCR, pCI)):
            k(f"global_load_short_d16_hi v{PRM+6*p+i}, v10, {P(ptr)} offset:{128*p}")
    k(f"global_load_short_d16_hi v{PRM+20}, v11, {P(pDS)}")
    k.stamp('ldiss')
    lane_consts(k)
    if int(opts.get('tlb', 0)):
        k(f"""
        s_cmp_eq_u32 s21, 1
        s_cbranch_scc0 LF_notlb
        v_min_u32 v2, 11, v1
        v_lshlrev_b32 v2, 21, v2
        v_and_b32 v3, 1, v1
        v_lshlrev_b32 v3, 21, v3
        global_load_dword v253, v2, {P(pWS)} ; @skip
        global_load_dword v253, v3, {P(pOUT)} ; @skip
        s_waitcnt vmcnt(0)
        LF_notlb:
        """)
    k(f"""
    v_lshrrev_b32 v4, 3, v1
    v_and_b32 v5, 7, v1
    v_mul_u32_u24 v3, 7680, v4
    v_lshl_add_u32 v3, v5, 4, v3
    s_mul_i32 s27, s25, 160
    s_mul_i32 s28, s21, 40
    s_add_u32 s28, s28, s27
    s_mul_i32 s28, s28, 7680
    s_lshl_b32 s29, s26, 7
    s_add_u32 s28, s28, s29
    v_add_u32 v3, s28, v3
    s_mul_i32 s29, s21, 5120
    s_add_u32 m0, s29, {MODB}
    s_mul_i32 s25, s25, 15360
    """)
    if not int(opts.get('modlate', 1)): mod_dma(k, 3)
    else: k(f"v_mov_b32 v{LA+5}, v3")
    k(f"""
    s_lshl_b32 s26, s26, 8
    s_add_u32 s25, s25, s26
    s_lshl_b32 s26, s21, 6
    s_add_u32 s25, s25, s26
    v_lshl_add_u32 v{LA}, v1, 2, s25
    v_lshl_add_u32 v7, v12, 3, v11
    v_lshlrev_b32 v7, 7, v7
    v_lshl_add_u32 v7, v10, 3, v7
    s_lshl_b32 s27, s21, 5
    s_add_u32 s27, s27, {MODB}
    v_add_u32 v{LA+1}, s27, v7
    s_mul_i32 s27, s21, 320
    v_lshl_add_u32 v{LA+2}, v1, 2, s27
    v_lshl_add_u32 v{LA+3}, v13, 2, s27
    v_lshl_add_u32 v{LA+4}, v12, 4, s27
    """)

def silu_frags(k, c0, vbp, dst=24):
    k(f"""
    s_mov_b32 s24, {LOG2E + 0x80000000}
    v_lshlrev_b32 v16, 16, v{c0}
    v_and_b32 v17, 0xffff0000, v{c0}
    v_lshlrev_b32 v18, 16, v{c0+1}
    v_and_b32 v19, 0xffff0000, v{c0+1}
    """)
    for i in range(4): k(f"v_mul_f32 v{20+i}, s24, v{16+i}")
    for i in range(4): k(f"v_exp_f32 v{20+i}, v{20+i}")
    for i in range(4): k(f"v_add_f32 v{20+i}, 1.0, v{20+i}")
    for i in range(4): k(f"v_rcp_f32 v{20+i}, v{20+i}")
    for i in range(4): k(f"v_mul_f32 v{16+i}, v{16+i}, v{20+i}")
    k(f"v_cvt_pk_bf16_f32 v16, v16, v17\nv_cvt_pk_bf16_f32 v17, v18, v19")
    k(f"ds_write_b32 v{vbp}, v16\nds_write_b32 v{vbp+1}, v17 offset:256")
    for ks in range(5): k(f"ds_read_b128 {V4(dst+4*ks)}, v{vbp+2} offset:{64*ks}")

def conv_mod(k):
    k("LF_cmod:\ns_mov_b32 s3, 1\ns_waitcnt vmcnt(0) lgkmcnt(0)\ns_barrier\nAUTO")
    for ks in range(5):
        for h in range(2): k(f"ds_read_b64_tr_b16 v[{60+4*ks+2*h}:{61+4*ks+2*h}], v{LA+1} offset:{4096*ks + 512*h}")
    for ks in range(5): k(mf(16, V4(MFR + 4 * ks), V4(60 + 4 * ks), ks == 0))
    k(f"""MANUAL
    s_mov_b64 exec, 0xffff
    global_store_dword v{LA}, v16, {P(pWS)} {SC}
    s_mov_b64 exec, -1
    global_load_dword v{vPD}, v{vPA}, {P(pDBG)} sc1 ; @nocheck
    """)
    k.stamp('modst')
    k("s_branch LF_kpass")

def mod_dma(k, v):
    for i in range(5):
        k(f"global_load_lds_dwordx4 v{v}, {P(pWM)}")
        if i < 4: k(f"s_add_u32 m0, m0, 1024\nv_add_u32 v{v}, {8*7680}, v{v}")

def lane_consts(k):
    k("""
    v_bfe_u32 v11, v1, 2, 2               ; r
    v_lshrrev_b32 v12, 4, v1              ; G
    v_and_b32 v10, 3, v1                  ; cc / j
    v_and_b32 v13, 15, v1                 ; a / i
    """)

def w1raw(k):
    k(f"""
    s_lshr_b32 s34, s20, 2
    s_and_b32 s35, s20, 3
    v_lshrrev_b32 v2, 3, v1
    v_and_b32 v3, 6, v2
    v_and_b32 v4, 7, v1
    v_xor_b32 v3, v3, v4
    v_mul_u32_u24 v2, 3072, v2
    v_lshl_add_u32 v2, v3, 4, v2
    s_mul_i32 s35, s35, {160*3072}
    s_lshl_b32 s34, s34, 7
    s_add_u32 s35, s35, s34
    s_mov_b32 m0, {W1R}
    v_add_u32 v2, s35, v2
    """)
    for i in range(20):
        k(f"global_load_lds_dwordx4 v2, {P(pW1)}")
        if i < 19: k(f"s_add_u32 m0, m0, 1024\nv_add_u32 v2, {8*3072}, v2")

def side_mod(k):
    k(f"""
    s_mul_hi_u32 s25, s2, {(1 << 32) // 60 + 1}       ; kq
    s_mul_i32 s26, s25, 60
    s_sub_u32 s26, s2, s26
    s_mul_i32 s27, s25, 320
    v_lshl_add_u32 v15, v1, 2, s27
    v_lshl_add_u32 v16, v13, 2, s27
    global_load_dword v150, v15, {P(pC)}
    global_load_dword v151, v16, {P(pC)} offset:256
    v_lshrrev_b32 v4, 3, v1
    v_and_b32 v5, 7, v1
    v_mul_u32_u24 v4, 7680, v4
    v_lshl_add_u32 v4, v5, 4, v4
    s_mul_i32 s27, s25, {160*7680}
    s_lshl_b32 s28, s26, 7
    s_add_u32 s27, s27, s28
    v_add_u32 v14, s27, v4
    s_mov_b32 m0, s33
    s_mul_i32 s25, s25, 15360
    s_lshl_b32 s26, s26, 8
    s_add_u32 s25, s25, s26
    v_lshl_add_u32 v152, v13, 2, s25
    """)
    for i in range(20):
        k(f"global_load_lds_dwordx4 v14, {P(pWM)}")
        if i < 19: k(f"s_add_u32 m0, m0, 1024\nv_add_u32 v14, {8*7680}, v14")
    k(f"""
    v_lshl_add_u32 v5, v12, 3, v11
    v_lshlrev_b32 v5, 7, v5
    v_lshl_add_u32 v5, v10, 3, v5
    v_add_u32 v5, s33, v5
    s_add_u32 s27, s33, 20480
    v_lshl_add_u32 v158, v1, 2, s27
    v_lshl_add_u32 v159, v13, 2, s27
    v_lshl_add_u32 v160, v12, 4, s27
    s_waitcnt vmcnt(20)
    """)
    silu_frags(k, 150, 158)
    k("AUTO")
    for ks in range(5):
        k(f"s_waitcnt vmcnt({16 - 4*ks})")
        for ct in range(4):
            for h in range(2): k(f"ds_read_b64_tr_b16 v[{60+16*(ks&1)+4*ct+2*h}:{61+16*(ks&1)+4*ct+2*h}], v5 offset:{4096*ks + 512*h + 32*ct}")
        for ct in range(4): k(mf(44 + 4 * ct, V4(24 + 4 * ks), V4(60 + 16 * (ks & 1) + 4 * ct), ks == 0))
    k("MANUAL\ns_mov_b64 exec, 0xffff")
    for ct in range(4): k(f"global_store_dword v152, v{44+4*ct}, {P(pWS)} offset:{64*ct} {SC}")
    k("s_mov_b64 exec, -1")

def side_a(k):
    UD_ = 164
    k(f"""
    s_sub_u32 s20, s2, {NCONV}
    s_mul_i32 s33, s21, {2*JOBS}
    s_add_u32 s34, s33, {JOBS}
    """)
    lane_consts(k)
    k(f"""
    s_mul_i32 s31, s21, 96
    s_add_u32 s31, s31, s20
    s_cmp_lt_u32 s31, 256
    s_waitcnt lgkmcnt(0)
    s_cbranch_scc0 LF_sa_mod
    v_lshrrev_b32 v2, 3, v1
    v_and_b32 v3, 7, v1
    v_lshlrev_b32 v3, 4, v3
    v_mul_u32_u24 v7, 1280, v2
    v_add_u32 v7, v7, v3
    s_mul_i32 s24, s31, 10240
    v_add_u32 v7, s24, v7
    """)
    for q in range(10): k(f"global_load_dwordx4 {V4(UD_+4*q)}, v7, {P(pU)} offset:{128*q}")
    k.stamp('ldiss')
    k(f"""
    v_mul_u32_u24 v7, {LNS - 256}, v2
    v_add3_u32 v7, v7, v3, s33
    v_mul_u32_u24 v9, {LNS - 256}, v11
    v_lshl_add_u32 v9, v12, 5, v9
    v_lshl_add_u32 v9, v10, 3, v9
    v_add_u32 v9, s33, v9
    v_lshrrev_b32 v2, 2, v1
    v_lshlrev_b32 v2, 14, v2
    v_lshl_add_u32 v2, v10, 4, v2
    s_lshl_b32 s24, s31, 6
    s_add_u32 s24, s24, {WS_NT}
    v_add_u32 v2, s24, v2
    s_lshr_b32 s24, s31, 5
    s_lshl_b32 s24, s24, 11
    s_bfe_u32 s25, s31, 0x40001
    s_lshl_b32 s25, s25, 4
    s_add_u32 s24, s24, s25
    s_and_b32 s25, s31, 1
    s_lshl_b32 s25, s25, 9
    s_add_u32 s24, s24, s25
    s_add_u32 s24, s24, {WS_ST}
    v_lshrrev_b32 v3, 5, v1
    v_lshlrev_b32 v3, 8, v3
    v_bfe_u32 v14, v1, 4, 1
    v_lshl_add_u32 v3, v14, 10, v3
    v_bfe_u32 v14, v1, 3, 1
    v_lshl_add_u32 v3, v14, 3, v3
    v_add_u32 v3, s24, v3
    s_mov_b32 s24, 0x3f803f80
    v_mov_b32 v{vPA}, 0
    v_mov_b32 v140, 0
    v_mov_b32 v141, 0
    v_mov_b32 v142, 0
    v_mov_b32 v143, 0
    """)
    for q in range(10):
        k(f"s_waitcnt vmcnt({9 - q})")
        if q == 0: k.stamp('u0')
        k(f"ds_write_b128 v7, {V4(UD_+4*q)} offset:{128*q}")
        for i in range(4):
            r = UD_ + 4 * q + i
            k(f"v_dot2c_f32_bf16 v{140 + 2*(i&1)}, s24, v{r}\nv_dot2c_f32_bf16 v{141 + 2*(i&1)}, v{r}, v{r}")
    k(f"""
    v_pk_add_f32 v[140:141], v[140:141], v[142:143]
    v_add_f32_dpp v140, v140, v140 quad_perm:[1,0,3,2] row_mask:0xf bank_mask:0xf
    v_add_f32_dpp v141, v141, v141 quad_perm:[1,0,3,2] row_mask:0xf bank_mask:0xf
    v_add_f32_dpp v140, v140, v140 quad_perm:[2,3,0,1] row_mask:0xf bank_mask:0xf
    v_add_f32_dpp v141, v141, v141 quad_perm:[2,3,0,1] row_mask:0xf bank_mask:0xf
    v_add_f32_dpp v140, v140, v140 row_half_mirror row_mask:0xf bank_mask:0xf
    v_add_f32_dpp v141, v141, v141 row_half_mirror row_mask:0xf bank_mask:0xf
    v_mul_f32 v140, {f2u(1/640)}, v140
    v_mul_f32 v141, {f2u(1/640)}, v141
    AUTO
    """)
    for ch in range(10):
        k(f"ds_read_b64_tr_b16 v[{UD_+4*ch}:{UD_+4*ch+1}], v9 offset:{128*ch}\nds_read_b64_tr_b16 v[{UD_+4*ch+2}:{UD_+4*ch+3}], v9 offset:{128*ch + 4*(LNS - 256)}")
        if ch == 4: k(rstd_chain(140, 141, 144) + f"\nv_mov_b32 v142, v141\nv_mov_b32 v143, v140\nv_mul_f32 v140, v140, v144\ns_mov_b32 exec_lo, 0x01010101\ns_mov_b32 exec_hi, 0x01010101\nglobal_store_dwordx2 v3, v[142:143], {P(pWS)} {SC}\ns_mov_b64 exec, -1")
    for r in range(8): k(f"v_readlane_b32 s{70+r}, v144, {8*r}")
    for r in range(8): k(f"v_readlane_b32 s{78+r}, v140, {8*r}")
    for r in range(8): k(f"v_mov_b32 v{16+r}, s{78+r}")
    for ch in range(10):
        b = UD_ + 4 * ch; u = 24 + 12 * (ch % 3)
        for i in range(4): k(f"v_lshlrev_b32 v{u+2*i}, 16, v{b+i}\nv_and_b32 v{u+2*i+1}, 0xffff0000, v{b+i}")
        for i in range(4): k(f"v_pk_fma_f32 v[{u+2*i}:{u+2*i+1}], v[{u+2*i}:{u+2*i+1}], s[{70+2*i}:{71+2*i}], v[{16+2*i}:{17+2*i}] neg_lo:[0,0,1] neg_hi:[0,0,1]")
        for i in range(4): k(f"v_cvt_pk_bf16_f32 v{u+8+i}, v{u+2*i}, v{u+2*i+1}")
        k(f"global_store_dwordx4 v2, {V4(u+8)}, {P(pWS)} {SC}")
        if ch < 9: k("v_add_u32 v2, 0x40000, v2")
    k("MANUAL")
    k.stamp('lnst')
    k(f"global_load_dword v{vPD}, v{vPA}, {P(pDBG)} sc1")
    wait_flags(k, 'init2', vPD, vPA, 32, 0)
    arrive(k, S1_OFF, vPD, vPT, "s_and_b32 s26, s31, 31")
    k.stamp('arr1')
    k(f"""
    s_branch LF_sa_end
    LF_sa_mod:
    s_cmp_lt_u32 s20, 80
    s_cbranch_scc0 LF_init
    s_cmp_eq_u32 s21, 3
    s_cbranch_scc0 LF_sa_end
    """)
    side_mod(k)
    k(f"v_mov_b32 v{vPA}, 0\nglobal_load_dword v{vPD}, v{vPA}, {P(pDBG)} sc1")
    wait_flags(k, 'init3', vPD, vPA, 32, 0)
    arrive(k, SM_OFF, vPD, vPT, "s_and_b32 s26, s2, 31")
    k.stamp('modst')
    k("LF_sa_w1:")
    w1raw(k)
    k("LF_sa_end:")
    SPINS.append(f"""
    LF_init:
    s_sub_u32 s24, s20, 80
    s_lshl_b32 s24, s24, 1
    s_add_u32 s24, s24, s21
    s_sub_u32 s24, s24, 2
    s_lshl_b32 s24, s24, 12
    s_add_u32 s24, s24, {WS_SYNC}
    v_add_u32 v30, s24, v{vL16}
    v_mov_b32 v26, 0
    v_mov_b32 v27, 0
    v_mov_b32 v28, 0
    v_mov_b32 v29, 0
    global_store_dwordx4 v30, v[26:29], {P(pWS)} sc1
    global_store_dwordx4 v30, v[26:29], {P(pWS)} offset:1024 sc1
    global_store_dwordx4 v30, v[26:29], {P(pWS)} offset:2048 sc1
    global_store_dwordx4 v30, v[26:29], {P(pWS)} offset:3072 sc1
    v_mov_b32 v31, 1
    s_waitcnt vmcnt(0)
    s_mov_b64 exec, 1
    global_atomic_add v26, v31, {P(pDBG)} sc1
    s_mov_b64 exec, -1
    s_cmp_eq_u32 s21, 3
    s_cbranch_scc1 LF_sa_w1
    s_branch LF_sa_end
    """)

def mlp_setup(k, opts):
    if opts.get('arr', '8x4') == '8x4':
        k("""
        s_and_b32 s24, s2, 7
        s_lshr_b32 s25, s2, 3
        s_lshr_b32 s22, s24, 1
        s_lshl_b32 s22, s22, 3
        s_lshr_b32 s26, s25, 2
        s_add_u32 s22, s22, s26               ; rb
        s_and_b32 s23, s24, 1
        s_lshl_b32 s23, s23, 2
        s_and_b32 s26, s25, 3
        s_add_u32 s23, s23, s26               ; j
        """)
    else:
        k("""
        s_and_b32 s22, s2, 7
        s_lshl_b32 s22, s22, 2
        s_lshr_b32 s26, s2, 6
        s_add_u32 s22, s22, s26               ; rb
        s_bfe_u32 s23, s2, 0x30003            ; j
        """)
    k(f"""
    s_mul_i32 s26, s23, 12
    s_mul_i32 s25, s21, 3
    s_add_u32 s25, s26, s25
    s_lshl_b32 s26, s25, 7
    s_add_u32 s26, s26, {WS_SYNC + F1_OFF}
    v_min_u32 v{vF1D}, 11, v1
    v_lshrrev_b32 v{vF1A}, 2, v{vF1D}
    v_lshl_add_u32 v{vF1A}, v{vF1A}, 7, s26
    v_and_b32 v{vF1D}, 3, v{vF1D}
    v_lshl_add_u32 v{vF1A}, v{vF1D}, 2, v{vF1A}
    s_lshl_b32 s24, s23, 2
    s_add_u32 s24, s24, s21
    s_mul_i32 s24, s24, 61440
    s_add_u32 s26, s24, {WS_W1F}
    """)
    srd(k, 4, pWS, 's26', 61440)
    k(f"s_add_u32 s26, s24, {WS_W2F}")
    srd(k, 8, pWS, 's26', 61440)
    k(f"s_mul_i32 s26, s22, 196608\ns_add_u32 s26, s26, {WS_H}")
    srd(k, 12, pWS, 's26', 196608)
    srd(k, 16, pOUT, 0, L * D * 2)
    k(f"""
    s_and_b32 s26, s21, 1
    s_lshl_b32 s25, s25, 6
    s_add_u32 s25, s25, {WS_V12}
    v_add_u32 v{vVA}, s26, v12
    s_xor_b32 s26, s26, 1
    s_lshl_b32 s26, s26, 1
    v_mov_b32 v{vVA+1}, s26
    v_cmp_gt_u32 vcc, 2, v12
    v_lshl_add_u32 v{vVA+2}, v13, 2, s25
    v_cndmask_b32 v{vVA}, v{vVA+1}, v{vVA}, vcc
    v_lshl_add_u32 v{vVA}, v{vVA}, 6, v{vVA+2}
    s_mul_i32 s26, s23, 320
    s_add_u32 s26, s26, 12800
    v_lshl_add_u32 v{vVA+4}, v1, 2, s26
    v_lshl_add_u32 v{vVA+5}, v13, 2, s26
    s_lshl_b32 s80, s21, 10
    s_xor_b32 s81, s80, 1024
    s_xor_b32 s82, s80, 2048
    s_xor_b32 s83, s80, 3072
    s_mul_i32 s26, s21, 3
    s_add_u32 s26, s26, 1
    s_lshr_b32 s26, s26, 1
    s_mul_i32 s27, s23, 6
    s_add_u32 s26, s26, s27
    s_lshl_b32 s26, s26, 12
    s_lshr_b32 s30, s21, 1
    s_mul_i32 s31, s30, 3
    s_add_u32 s31, s31, 1
    s_add_u32 s27, s27, s31
    s_lshl_b32 s27, s27, 12
    s_add_u32 s72, s80, s26
    s_add_u32 s73, s81, s26
    s_add_u32 s74, s82, s26
    s_add_u32 s75, s83, s26
    s_add_u32 s76, s80, s27
    s_add_u32 s77, s82, s27
    """)

def conv_setup(k):
    k(f"""
    s_mul_i32 s26, s21, {TAPCH}
    s_add_u32 s26, s26, {TAPS}
    v_sub_u32 v14, 3, v11
    v_mul_u32_u24 v14, {TCS}, v14
    v_lshl_add_u32 v14, v10, 3, v14
    v_add_u32 v14, s26, v14
    v_lshlrev_b32 v15, 4, v12
    v_sub_u32 v15, 48, v15
    v_add_u32 v{vTA}, v14, v15
    v_and_b32 v15, 1, v12                 ; G&1
    v_lshrrev_b32 v9, 1, v12              ; G>>1
    v_lshlrev_b32 v16, 3, v15
    v_sub_u32 v14, v14, v16
    v_add_u32 v14, 8, v14
    v_mul_u32_u24 v16, {2*(B3A - B5A)}, v9
    v_add_u32 v{vT2}, v14, v16
    v_mul_u32_u24 v16, {2*(B9 - B7)}, v9
    v_add_u32 v{vT3}, v14, v16
    s_mul_i32 s27, s21, {CHS}
    v_lshlrev_b32 v14, 5, v13
    v_add_u32 v14, s27, v14
    v_lshl_add_u32 v{vRD}, v12, 4, v14    ; h frag: 32a + 16G
    v_lshl_add_u32 v14, v9, 4, v14
    v_mul_u32_u24 v16, {UD}, v15
    v_add_u32 v{vWU}, v14, v16
    v_lshlrev_b32 v14, 7, v15
    v_lshl_add_u32 v14, v11, 5, v14
    v_lshl_add_u32 v14, v10, 3, v14
    v_add_u32 v14, s27, v14               ; 128(G&1) + 32r + 8cc
    v_mul_u32_u24 v16, {UD - 16}, v9
    v_sub_u32 v17, v14, v16
    v_add_u32 v{vDA}, {O5 - 16}, v17
    v_add_u32 v17, v14, v16
    v_add_u32 v{vD3}, {O7}, v17
    v_lshlrev_b32 v16, 5, v9
    v_sub_u32 v16, 16, v16
    v_add_u32 v{vDB}, v{vDA}, v16
    v_bfe_u32 v16, v1, 1, 2
    v_xor_b32 v16, s21, v16
    v_lshlrev_b32 v16, 4, v16
    v_lshl_add_u32 v16, v13, 7, v16
    v_lshl_add_u32 v16, v15, 6, v16
    v_add_u32 v{vRU}, {OU}, v16
    v_mul_u32_u24 v16, {CHS}, v10
    v_lshrrev_b32 v14, 2, v1
    s_lshl_b32 s28, s21, 4
    v_add_u32 v14, s28, v14               ; segment 0..63
    v_lshl_add_u32 v{vWH}, v14, 6, v16
    v_lshlrev_b32 v14, 8, v14
    v_lshl_add_u32 v14, v10, 4, v14
    s_lshl_b32 s29, s2, 14
    s_add_u32 s28, s29, {WS_NT}
    v_add_u32 v{vNO}, s28, v14
    v_xor_b32 v14, v10, v12
    v_and_b32 v16, 0x3c, v1
    v_lshlrev_b32 v16, 4, v16
    v_lshl_add_u32 v14, v14, 4, v16
    s_lshl_b32 s28, s21, 12
    s_add_u32 s29, s29, s28
    s_add_u32 s29, s29, {WS_NT}
    v_add_u32 v{vUO}, s29, v14
    s_add_u32 s29, s28, {WS_ST}
    v_add_u32 v{vSG}, s29, v{vL16}
    v_min_u32 v14, 2, v12
    v_mul_u32_u24 v14, 2560, v14
    v_mul_u32_u24 v16, 15360, v11
    v_add_u32 v14, v14, v16
    v_lshl_add_u32 v14, v10, 2, v14
    s_lshl_b32 s29, s2, 4
    v_add_u32 v{vMO}, s29, v14
    v_lshlrev_b32 v{vBP}, 2, v10
    v_add_u32 v{vSA}, {OS}, v{vL16}
    v_lshlrev_b32 v14, 3, v12
    v_sub_u32 v14, v14, v13
    v_add_u32 v14, 15, v14                ; 8G - i + 15
    v_cmp_gt_u32 vcc, 32, v14
    """)
    for fi, (lo, hi_) in enumerate(((0, 0), (11, 13), (6, 10), (5, 11), (4, 12))):
        Wv = ((1 << (hi_ - lo + 1)) - 1) << (lo + 15)
        k(f"v_mov_b32 v16, {Wv}\nv_lshrrev_b32 v16, v14, v16\nv_cndmask_b32 v16, 0, v16, vcc")
        for q in range(4):
            k(f"v_bfe_u32 v17, v16, {2*q}, 1\nv_bfe_u32 v18, v16, {2*q+1}, 1\nv_lshl_or_b32 v17, v18, 16, v17\nv_mul_u32_u24 v{BAND+4*fi+q}, 0x3f80, v17")
    DUM = 2 * 1010
    S = SCT
    k(f"""
    s_mul_i32 s26, s21, {KTS}
    s_add_u32 s26, s26, {KT}
    v_mul_u32_u24 v14, 144, v1
    v_add_u32 v{vKW}, s26, v14
    v_lshrrev_b32 v15, 5, v1              ; hi
    v_lshl_add_u32 v14, v11, 1, v15
    v_mul_u32_u24 v14, 288, v14
    v_bfe_u32 v16, v1, 4, 1
    v_lshl_add_u32 v14, v16, 5, v14
    v_lshl_add_u32 v14, v10, 3, v14
    v_add_u32 v{vKR}, s26, v14
    s_mul_i32 s26, s21, {STGS}
    s_add_u32 s26, s26, {STG}
    v_mov_b32 v24, 0
    v_mov_b32 v25, 0
    v_mov_b32 v26, 0
    v_mov_b32 v27, 0
    v_add_u32 v{S+8}, s26, v{vL16}
    ds_write_b128 v{S+8}, v[24:27]
    ds_write_b128 v{S+8}, v[24:27] offset:1024
    v_mov_b32 v28, s26
    ds_write_b128 v28, v[24:27] offset:2048
    v_and_b32 v34, 1, v1                  ; odd
    v_bfe_u32 v35, v1, 1, 4               ; kappa'
    v_or_b32 v36, v34, v15
    v_mul_u32_u24 v37, 48, v34
    v_mul_u32_u24 v38, 96, v15
    v_add3_u32 v36, v36, v37, v38
    v_add_u32 v36, v36, v35
    v_lshl_add_u32 v{S}, v36, 1, s26
    v_add_u32 v39, {DUM}, v28
    v_add_u32 v36, {2*B5A}, v{S}
    v_cmp_eq_u32 vcc, 0, v35
    v_mul_u32_u24 v37, {B9 - 1 - B7}, v34
    v_lshl_add_u32 v38, v15, 4, v35
    v_cndmask_b32 v{S+1}, v36, v39, vcc
    v_sub_u32 v38, v38, v37
    v_add_u32 v38, {B9}, v38
    v_lshl_add_u32 v{S+2}, v38, 1, s26
    v_add_u32 v37, {2*(BC + 4)}, v28
    v_cmp_eq_u32 vcc, 0, v1
    v_add_u32 v40, {2*(BC + 5)}, v28
    v_add_u32 v41, {2*(B9 + 64)}, v28
    v_cndmask_b32 v{S+3}, v{S+2}, v37, vcc
    v_cndmask_b32 v{S+4}, v39, v40, vcc
    v_cndmask_b32 v{S+5}, v39, v41, vcc
    v_add_u32 v37, {2*(B5A + 32)}, v28
    v_cmp_eq_u32 vcc, 32, v1
    v_and_b32 v38, 31, v1
    v_lshlrev_b32 v38, 4, v38
    v_cndmask_b32 v{S+5}, v{S+5}, v37, vcc
    v_lshl_add_u32 v38, v15, 3, v38
    v_add_u32 v{S+6}, s26, v38            ; 16n + 8hi
    v_and_b32 v37, 30, v1
    v_cmp_eq_u32 vcc, 0, v37
    v_add_u32 v37, {2*1016 - 2*(BA+1+512)}, v28
    v_cndmask_b32 v{S+7}, v37, v{S+6}, vcc
    """)
    for i in range(16): k(f"v_mov_b32 v{KACC+i}, 0")

def cmul(k, z, a, b, t):
    k(f"v_pk_mul_f32 v[{t}:{t+1}], v[{a}:{a+1}], v[{b}:{b+1}] op_sel_hi:[1,0]")
    return f"v_pk_fma_f32 v[{z}:{z+1}], v[{a}:{a+1}], v[{b}:{b+1}], v[{t}:{t+1}] op_sel:[1,1,0] op_sel_hi:[0,1,1] neg_lo:[1,0,0]"
def cmuls(k, lst, tmp):
    for s in [cmul(k, z, a, b, tmp + 2 * i) for i, (z, a, b) in enumerate(lst)]: k(s)

def nloads():
    return "".join(f"global_load_dwordx4 {V4(NR+4*q)}, v{vNO}, {P(pWS)} offset:{64*q} {SC}\n" for q in range(4)) + f"global_load_dword v{NR+16}, v{vMO}, {P(pWS)} {SC}\n"

def hfill(r=16):
    return "".join(f"v_mov_b32 v{r+i}, -1\n" for i in range(4)) + "".join(f"buffer_store_dwordx4 {V4(r)}, v{vL16}, s[12:15], s{72+s} offen {SC}\n" for s in range(6))

def kgen(k, opts):
    AR, BR, CR, DT, DS = PRM, PRM + 2, PRM + 4, PRM + 18, PRM + 20
    TMP, LR, ACC = 14, 22, KACC
    ML = int(opts.get('modlate', 1))
    k(f"""
    s_mov_b32 s86, {LOG2E}
    s_mov_b32 s87, {INV2PI}
    s_mov_b32 s3, 0
    s_waitcnt vmcnt({20 if ML else 25})
    """)
    silu_frags(k, CDAT, LA + 2, MFR)
    k(f"s_waitcnt vmcnt({0 if ML else 5})")
    if ML: mod_dma(k, LA + 5)
    k(f"""
    v_mul_f32 v14, s86, v{DT}
    v_fma_f32 v15, v{DT}, s86, -v14
    v_fmac_f32 v15, {LOG2E_LO}, v{DT}
    v_exp_f32 v14, v14
    v_mul_f32 v15, {LN2}, v15
    v_fmac_f32 v14, v14, v15
    v_cmp_eq_u32 vcc, 0, v1
    v_cvt_pk_bf16_f32 v14, v14, v14
    v_lshlrev_b32 v{DT}, 16, v14
    v_cndmask_b32 v{ACC}, 0, v{DS}, vcc
    """)
    k.stamp('kparam')
    k(f"""
    LF_kpass:
    v_pk_mul_f32 v[{LR}:{LR+1}], v[{AR}:{AR+1}], v[{DT}:{DT+1}] op_sel_hi:[1,0]
    v_pk_mul_f32 v[{LR}:{LR+1}], v[{LR}:{LR+1}], s[86:87]
    """)
    W = {1: 24, 8: 26, 256: 28, 2: 30, 3: 32, 4: 34, 5: 36, 6: 38, 7: 40, 16: 42, 32: 44, 258: 46, 260: 48, 262: 50, 264: 52, 512: 54}
    Z = [56 + 2 * i for i in range(8)]
    k(f"""
    v_pk_mul_f32 v[20:21], v[{CR}:{CR+1}], v[{BR}:{BR+1}] op_sel_hi:[1,0]
    v_mul_f32 v16, {f2u(8.0)}, v{LR}
    v_mul_f32 v17, {f2u(8.0)}, v{LR+1}
    v_mul_f32 v18, {f2u(256.0)}, v{LR}
    v_mul_f32 v19, {f2u(256.0)}, v{LR+1}
    v_fract_f32 v15, v{LR+1}
    v_fract_f32 v17, v17
    v_fract_f32 v19, v19
    v_exp_f32 v14, v{LR}
    v_exp_f32 v16, v16
    v_exp_f32 v18, v18
    v_pk_fma_f32 v[{Z[0]}:{Z[0]+1}], v[{CR}:{CR+1}], v[{BR}:{BR+1}], v[20:21] op_sel:[1,1,0] op_sel_hi:[0,1,1] neg_lo:[1,0,0]
    """)
    for i, r in enumerate((24, 26, 28)): k(f"v_cos_f32 v{r}, v{15+2*i}\nv_sin_f32 v{r+1}, v{15+2*i}")
    k(f"v_pk_mul_f32 v[{Z[0]}:{Z[0]+1}], v[{Z[0]}:{Z[0]+1}], v[{DT}:{DT+1}] op_sel_hi:[1,0]")
    for i, r in enumerate((24, 26, 28)): k(f"v_pk_mul_f32 v[{r}:{r+1}], v[{r}:{r+1}], v[{14+2*i}:{15+2*i}] op_sel_hi:[1,0]")
    for i in range(6): k(f"v_pk_mov_b32 v[{PRM+2*i}:{PRM+2*i+1}], v[{PRM+6+2*i}:{PRM+7+2*i}], v[{PRM+6+2*i}:{PRM+7+2*i}] op_sel:[0,1]")
    cmuls(k, [(W[2], W[1], W[1]), (W[16], W[8], W[8]), (W[512], W[256], W[256]), (Z[1], Z[0], W[8])], TMP)
    cmuls(k, [(W[3], W[2], W[1]), (W[4], W[2], W[2]), (W[32], W[16], W[16]), (W[258], W[256], W[2])], TMP)
    cmuls(k, [(Z[2], Z[0], W[16]), (Z[3], Z[1], W[16]), (W[5], W[4], W[1]), (W[6], W[4], W[2])], TMP)
    cmuls(k, [(W[7], W[4], W[3]), (W[260], W[256], W[4]), (W[264], W[256], W[8]), (Z[4], Z[0], W[32])], TMP)
    st = {'g': 0}
    NOW = int(opts.get('nokw', 0))
    def half(grp, vals, neg, part):
        pk = 72 + 4 * (st['g'] % 4); st['g'] += 1
        s = '-' if neg and part else ''
        for i in range(4):
            a, b = vals[2 * i], vals[2 * i + 1]
            ra = ('0' if part else '1.0') if a is None else f'{s}v{a+part}'
            k(f"v_cvt_pk_bf16_f32 v{pk+i}, {ra}, {s}v{b+part}")
        if not NOW: k(f"ds_write_b128 v{vKW}, v[{pk}:{pk+3}] offset:{16*grp + 9216*part}")
    def put(grp, vals, neg, between=None):
        half(grp, vals, neg, 0)
        if between: cmuls(k, between, TMP)
        half(grp, vals, neg, 1)
    X = {516: 88, 520: 90, 768: 92, 1024: 94, 772: 96, 1280: 98, 1536: 100, 1792: 102, 2048: W[1]}
    Y = [W[258], W[260], W[262], W[264], W[2], W[3], W[5], W[7]]
    cmuls(k, [(W[262], W[256], W[6]), (Z[5], Z[1], W[32]), (Z[6], Z[2], W[32]), (Z[7], Z[3], W[32])], TMP)
    put(0, [None, W[1], W[2], W[3], W[4], W[5], W[6], W[7]], True, [(X[516], W[512], W[4]), (X[520], W[512], W[8]), (X[768], W[512], W[256]), (X[1024], W[512], W[512])])
    put(1, [W[256], W[256], W[258], W[260], W[260], W[260], W[262], W[264]], True, [(X[772], X[768], W[4]), (X[1280], X[1024], W[256]), (X[1536], X[1024], W[512]), (X[1792], X[1024], X[768])])
    put(4, Z, False, [(Y[0], Z[4], W[32]), (Y[1], Z[5], W[32]), (Y[2], Z[6], W[32]), (Y[3], Z[7], W[32])])
    put(2, [W[512], W[512], W[512], X[516], X[516], X[516], X[520], X[520]], True, [(Y[4], Y[0], W[32]), (Y[5], Y[1], W[32]), (Y[6], Y[2], W[32]), (Y[7], Y[3], W[32])])
    k("s_cmp_eq_u32 s3, 1\ns_cbranch_scc1 LF_arr1\ns_cmp_eq_u32 s3, 2\ns_cbranch_scc1 LF_pol1\nLF_noarr1:")
    SPINS.append(f"LF_pol1:\ns_cmp_eq_u32 s21, 0\ns_cbranch_scc0 LF_noarr1\nglobal_load_dword v{vPD}, v{vPA}, {P(pWS)} sc1\ns_branch LF_noarr1")
    a = Asm('x'); a.names = k.names
    a("LF_arr1:")
    lane_consts(a); mlp_setup(a, opts)
    a("s_waitcnt vmcnt(0)")
    wait_flags(a, 'init', vPD, vPA, 32, None)
    a("s_barrier\ns_cmp_eq_u32 s21, 0\ns_cbranch_scc0 LF_arr1b")
    arrive(a, SM_OFF, vPD, vPT, "s_and_b32 s26, s2, 31")
    a("LF_arr1b:")
    poll_addr(a, S1_OFF, vPA)
    a(f"""v_lshrrev_b32 v{vPT}, 5, v1
    v_lshl_add_u32 v{vPA}, v{vPT}, 16, v{vPA}
    v_cmp_lt_u32 vcc, 47, v1
    v_cndmask_b32 v{vPT}, 8, 7, vcc""")
    a.stamp('arr1')
    a("s_branch LF_noarr1")
    SPINS.append('\n'.join(a.lines))
    cmuls(k, [(X[2048], X[1024], X[1024]), (Z[0], Y[4], W[32]), (Z[1], Y[5], W[32]), (Z[2], Y[6], W[32])], TMP)
    put(5, Y, False, [(Z[3], Y[7], W[32]), (Z[4], Z[0], W[32]), (Z[5], Z[1], W[32]), (Z[6], Z[2], W[32])])
    put(3, [X[768], X[1024], X[1536], X[2048], X[772], X[1280], X[1792], X[1024]], True, [(Z[7], Z[3], W[32]), (Y[0], Z[4], W[32]), (Y[1], Z[5], W[32]), (Y[2], Z[6], W[32])])
    put(6, Z, False, [(Y[3], Z[7], W[32]), (Y[4], Y[0], W[32]), (Y[5], Y[1], W[32]), (Y[6], Y[2], W[32])])
    cmuls(k, [(Y[7], Y[3], W[32])], TMP)
    put(7, Y, False)
    k.stamp('ktab_last')
    k("s_cmp_eq_u32 s3, 2\ns_cbranch_scc1 LF_pol2\nLF_nopoll1:")
    SPINS.append(f"LF_pol2:\ns_cmp_eq_u32 s21, 0\ns_cbranch_scc0 LF_nopoll1\nglobal_load_dword v{vP2}, v{vPA}, {P(pWS)} sc1\ns_branch LF_nopoll1")
    FR = 56
    order = [0, 1, 2, 3, 4, 5, 6, 7]
    def rd(s):
        return [f"ds_read_b64_tr_b16 v[{FR + 8*(s % 4) + 4*tb + 2*h}:{FR + 8*(s % 4) + 4*tb + 2*h + 1}], v{vKR} offset:{(16*(s % 4) + h)*144 + 64*tb + 9216*(s // 4)}" for tb in range(2) for h in range(2)]
    k("AUTO")
    for s in range(3):
        for t in rd(s): k(t)
    for s in range(8):
        r = FR + 8 * (s % 4)
        k(f"v_mfma_f32_32x32x16_bf16 v[{ACC}:{ACC+15}], v[{r}:{r+3}], v[{r+4}:{r+7}], v[{ACC}:{ACC+15}]")
        if s + 3 < 8:
            for t in rd(s + 3): k(t)
    k(f"""MANUAL
    s_cmp_eq_u32 s3, 0
    s_cbranch_scc1 LF_cmod
    s_cmp_eq_u32 s3, 1
    s_mov_b32 s3, 2
    s_cbranch_scc1 LF_kpass
    """)
    k.stamp('kg3')
    k(f"s_cmp_eq_u32 s21, 0\ns_cbranch_scc0 LF_haven\ns_waitcnt vmcnt(1)\nv_cmp_gt_u32 vcc, v{vPT}, v{vPD}\ns_cbranch_vccz LF_haven\ns_waitcnt vmcnt(0)\nv_mov_b32 v{vPD}, v{vP2}")
    wait_flags(k, 's1', vPD, vPA, f"v{vPT}", None)
    k("LF_haven:\ns_barrier\n" + nloads())
    k.stamp('s1')
    S = SCT
    k(f"""
    v_cmp_ne_u32 vcc, 33, v1
    s_mul_i32 s26, s21, {TAPCH}
    s_add_u32 s26, s26, {TAPS}
    v_add_u32 v14, s26, v{vL16}
    v_cvt_pk_bf16_f32 v24, v{ACC}, v{ACC+1}
    v_cvt_pk_bf16_f32 v25, v{ACC+2}, v{ACC+3}
    v_cvt_pk_bf16_f32 v26, v{ACC+4}, v{ACC+5}
    v_cvt_pk_bf16_f32 v27, v{ACC+6}, v{ACC+7}
    ds_write_b64 v{S+6}, v[24:25] offset:{2*(BA+1)}
    v_cvt_pk_bf16_f32 v28, v{ACC+8}, v{ACC+9}
    v_cvt_pk_bf16_f32 v29, v{ACC+10}, v{ACC+11}
    ds_write_b64 v{S+6}, v[26:27] offset:{2*(BA+1) + 512}
    v_cvt_pk_bf16_f32 v30, v{ACC+8}, v{ACC+12}
    v_cndmask_b32 v29, 0, v29, vcc
    ds_write_b16 v{S+1}, v30
    v_cvt_pk_bf16_f32 v31, v{ACC+13}, v{ACC+14}
    ds_write_b64 v{S+7}, v[28:29] offset:{2*(BA+1) + 1024}
    v_cvt_pk_bf16_f32 v32, v{ACC+15}, v{ACC+15}
    ds_write_b16_d16_hi v{S}, v30 offset:{2*B5A + 32}
    ds_write_b16 v{S+3}, v31
    ds_write_b16 v{S+4}, v31
    ds_write_b16_d16_hi v{S+2}, v31 offset:64
    ds_write_b16 v{S+5}, v32
    AUTO
    ds_read_b128 v[24:27], v{S+8}
    ds_read_b64 v[28:29], v{S+8} offset:16
    ds_read_b128 v[48:51], v{S+8} offset:1024
    ds_read_b64 v[52:53], v{S+8} offset:1040
    """)
    for q, b in enumerate((24, 48)):
        k(f"ds_write_b128 v14, v[{b+2}:{b+5}] offset:{1024*q + 3*TCS}")
        for i in range(4): k(f"v_alignbit_b32 v{b+8+i}, v{b+i+1}, v{b+i}, 16")
        k(f"ds_write_b128 v14, v[{b+8}:{b+11}] offset:{1024*q}")
        for i in range(4): k(f"v_mov_b32 v{b+12+i}, v{b+i+1}")
        k(f"ds_write_b128 v14, v[{b+12}:{b+15}] offset:{1024*q + TCS}")
        for i in range(4): k(f"v_alignbit_b32 v{b+16+i}, v{b+i+2}, v{b+i+1}, 16")
        k(f"ds_write_b128 v14, v[{b+16}:{b+19}] offset:{1024*q + 2*TCS}")
    k("MANUAL")
    k.stamp('kout')

TA0 = 128; T20 = 200
CACC = 12; CU_ = 44; RING = 76; NRING = 8; WTMP = 108; DEC = 132

def conv(k, opts):
    tfr = [f"ds_read_b64_tr_b16 a[{TA0+4*m+2*h}:{TA0+4*m+2*h+1}], v{vTA} offset:{64*m - 8*h + 8}" for m in range(18) for h in range(2)]
    for idx, (base, mu, va) in enumerate([(B5A, 0, vT2), (B5A, 1, vT2), (B5A, 2, vT2), (B5B, 0, vT2), (B5B, 1, vT2), (B5B, 2, vT2)] + [(B7, mu, vT3) for mu in range(4)]):
        tfr += [f"ds_read_b64_tr_b16 a[{T20+4*idx+2*h}:{T20+4*idx+2*h+1}], v{va} offset:{2*(base-3) - 8 + 32*mu - 16*h}" for h in range(2)]
    for t in tfr: k(t)
    k(f"""
    s_lshl_b32 s29, s20, 12
    s_add_u32 s29, s29, {WS_X1}
    s_add_u32 s34, s68, s29
    s_addc_u32 s35, s69, 0
    s_lshl_b32 s28, s21, 12
    s_add_u32 m0, s28, {OU}
    s_mul_i32 s27, s21, {CHS}
    v_mov_b32 v12, 0
    v_mov_b32 v13, 0
    v_mov_b32 v14, 0
    v_mov_b32 v15, 0
    v_min_u32 v17, 29, v1
    v_lshl_add_u32 v17, v17, 4, s27
    v_min_u32 v18, 3, v1
    v_mul_u32_u24 v18, {UD}, v18
    v_add_u32 v18, s27, v18
    s_add_u32 s28, s21, 32
    s_waitcnt vmcnt(0)
    v_add_f32_dpp v40, v{NR+16}, v{NR+16} row_ror:4 row_mask:0xf bank_mask:0xf
    v_add_f32_dpp v40, v40, v40 row_ror:8 row_mask:0xf bank_mask:0xf
    v_cvt_pk_bf16_f32 v40, v40, v40
    v_lshlrev_b32 v40, 16, v40
    ds_bpermute_b32 v42, v{vBP}, v40
    ds_bpermute_b32 v43, v{vBP}, v40 offset:64
    v_readlane_b32 s70, v40, s28
    s_waitcnt lgkmcnt(0)
    s_barrier
    v_add_f32 v43, 1.0, v43
    v_cvt_pk_bf16_f32 v43, v43, 0
    v_lshlrev_b32 v41, 16, v43
    """)
    k.stamp('ndata')
    HT = CU_
    k(f"ds_write_b128 v17, v[12:15]\nds_write_b128 v18, v[12:15] offset:{O3 - 16}")
    for q in range(5):
        if q < 4:
            for x in range(8): k(f"v_dot2_f32_bf16 v{HT+8*q+x}, v{NR+4*q+(x>>1)}, v{41 if x & 1 else 43}, v42")
        if q > 0:
            for i in range(4): k(f"v_cvt_pk_bf16_f32 v{HT+32+4*(q-1)+i}, v{HT+8*(q-1)+2*i}, v{HT+8*(q-1)+2*i+1}")
            k(f"ds_write_b128 v{vWH}, {V4(HT+32+4*(q-1))} offset:{OH + 16*(q-1)}")
    k("s_waitcnt lgkmcnt(0)\ns_barrier")
    k.stamp('prep')
    started = set()
    def M(T, a, b):
        s = mf(CACC + 4 * T, a, b, T not in started); started.add(T); return s
    slots, items = [], []
    def item(e, kind, text, deps=()):
        items.append(dict(id=len(items), e=e, kind=kind, text=text, deps=list(deps))); return len(items) - 1
    ps = list(range(-7, 57))
    LOOK = NRING - 2
    rdtxt = lambda i: f"ds_read_b128 {V4(RING + 4*(i % NRING))}, v{vRD} offset:{64*(ps[i] + 7)}"
    ring, lastw, wwrite, ures = {}, {}, {}, {}
    DI = {'C': 0, 'A': 4, 'B': 10}
    img = []
    for q in range(8):
        t = f"global_load_lds_dwordx4 v{vUO if q < 4 else vSG}, {P(pWS)} offset:{1024*(q & 3)} {SC} ; @w:U" + ("\ns_add_u32 m0, m0, 16384" if q == 3 else "")
        img.append(item(1 + 2 * q, 'va', t, img[-1:]))
    if int(opts.get('w2t', 0)):
        w2 = []
        for q, t in enumerate(["s_lshr_b32 s26, s2, 5", "s_mul_i32 s26, s26, 12288", "v_lshlrev_b32 v200, 7, v1", "buffer_load_dword v201, v200, s[8:11], s26 offen",
                               "v_min_u32 v200, 3968, v200", "s_add_u32 s26, s26, 8192", "buffer_load_dword v201, v200, s[8:11], s26 offen"]):
            w2.append(item(int(opts.get('w2t')) + 2 * q, 'va', t, w2[-1:]))
    hf = []
    for q, t in enumerate(hfill(196).strip().split('\n')): hf.append(item(20 + (q if q < 4 else int(opts.get('hs', 5)) * q), 'va', t, hf[-1:]))
    ubar = None
    for i, p in enumerate(ps):
        if i + LOOK < len(ps): ring[i + LOOK] = item(len(slots), 'ring', rdtxt(i + LOOK))
        b = V4(RING + 4 * (i % NRING)); dep = [ring[i]] if i in ring else []
        for T in range(8):
            m = 8 * T - p
            if 0 <= m <= 16: slots.append((M(T, A4(TA0 + 4 * m), b), dep))
            if T >= 4 and m == 32: slots.append((M(T, A4(TA0 + 68), b), dep))
        if p % 8 == 0 and 0 <= p <= 40:
            T = p // 8
            for pr, off in enumerate((O3, O7)):
                if pr == 1 and T >= 4: continue
                t = WTMP + 8 * pr; o = WTMP + 16 + 4 * pr
                for wi in range(2): slots.append((mf(t + 4 * wi, V4(BAND + 4 + 8 * pr + 4 * wi), b, True), dep + lastw.get(pr, [])))
                e = len(slots) + 3
                c = [item(e, 'va', f"v_cvt_pk_bf16_f32 v{o+q}, v{t+2*q}, v{t+2*q+1}") for q in range(4)]
                s0 = item(e + 3, 'va', f"v_permlane16_swap_b32 v{o}, v{o+2}", c)
                s1 = item(e + 3, 'va', f"v_permlane16_swap_b32 v{o+1}, v{o+3}", c)
                w = item(e + 4, 'ds', f"ds_write_b128 v{vWU}, {V4(o)} offset:{off + 512*T}", [s0, s1])
                lastw[pr] = [w]; wwrite.setdefault(T, []).append(w)
            for kind in 'CAB':
                if kind == 'C' and T > 3: continue
                va = {'A': vDA, 'B': vDB, 'C': vD3}[kind]
                r = DEC + 4 * (DI[kind] + T)
                lastw[(kind, T)] = [item(len(slots) + 4, 'ds', f"ds_read_b64_tr_b16 v[{r+2*h}:{r+2*h+1}], v{va} offset:{512*T + 256*h}", wwrite[T]) for h in range(2)]
        if p == 24: ubar = item(len(slots), 'va', "s_barrier ; @r:U", img)
        if p in (26, 29, 33, 36, 39, 44, 48, 52):
            T = (26, 29, 33, 36, 39, 44, 48, 52).index(p)
            ures[T] = item(len(slots), 'ds', f"ds_read_b128 {V4(CU_ + 4*T)}, v{vRU} offset:{2048*T}", [ubar])
    E0 = int(opts.get('e0', 45)); NE1 = int(opts.get('ne1', 28))
    f0_ = item(E0, 'va', f"global_load_dword v{vF1D}, v{vF1A}, {P(pWS)} sc1")
    f1 = item(E0 + 45, 'va', f"v_cmp_gt_u32 vcc, 1, v{vF1D}\ns_cmp_eq_u64 vcc, 0\ns_cselect_b32 s6, 61440, 0", [f0_])
    ld = Loader(); prev = f1
    for i in range(NE1): prev = item(E0 + 47 + i * (198 - E0 - 52) // NE1, 'va', ld.w1(), [prev])
    fm = {}; ndirect = len(slots)
    allw = [w for ws_ in wwrite.values() for w in ws_]
    for T in range(8):
        idr = RING + 4 * (T % 4)
        slots.append((f"v_mfma_f32_16x16x32_bf16 {V4(idr)}, {V4(BAND)}, {V4(CU_ + 4*T)}, 0", [ures[T]] + fm.get(T - 4, [])))
        e0 = len(slots) + 3
        for kind, b0, nmu, t0 in (('C', 4, 4, 6), ('A', 2, 3, 0), ('B', 2, 3, 3)):
            for mu in range(nmu):
                P_ = T - b0 - mu
                if P_ >= 0: slots.append((M(T, V4(DEC + 4 * (DI[kind] + P_)), A4(T20 + 4 * (t0 + mu))), lastw[(kind, P_)]))
        e = len(slots) + 3
        sr = (202, 92, 100)[T % 3]
        sd = [item(ndirect - (8 if T == 0 else 0), 'ds', f"ds_read_b128 {V4(sr+4*h)}, v{vSA} offset:{2048*T + 1024*h}", [ubar] + fm.get(T - 3, [])) for h in range(2)]
        f0 = [item(e0, 'va', f"v_fma_f32 v{idr+r}, v{idr+r}, v{sr+2*r}, v{sr+2*r+1}", sd) for r in range(4)]
        fm[T] = [item(e, 'va', f"v_fma_f32 v{CACC+4*T+r}, v{CACC+4*T+r}, s70, v{idr+r}", f0) for r in range(4)]
        o = WTMP + 4 * (T >> 1) + 2 * (T & 1)
        fm[('c', T)] = [item(e, 'va', f"v_cvt_pk_bf16_f32 v{o+h}, v{CACC+4*T+2*h}, v{CACC+4*T+2*h+1}", fm[T] + allw) for h in range(2)]
        if T & 1: item(e, 'va', f"global_store_dwordx4 v{vL16}, {V4(WTMP + 4*(T >> 1))}, s[34:35] offset:{1024*(T >> 1)} {SC}", fm[('c', T)] + fm[('c', T - 1)] + [f1])
    k("AUTO")
    for i in range(LOOK): k(rdtxt(i))
    weave(k, slots, items)
    k("MANUAL")
    k.stamp('convend')

def weave(k, slots, items):
    done = set()
    def emit(n):
        if n in done: return
        for d in items[n]['deps']: emit(d)
        done.add(n); k(items[n]['text'])
    def pick(kinds, i):
        for it in items:
            if it['id'] not in done and it['kind'] in kinds and it['e'] <= i and all(d in done for d in it['deps']): return it['id']
        return None
    for i, (m, deps) in enumerate(slots):
        for d in deps: emit(d)
        k(m)
        n = pick(('ring',), i)
        if n is None: n = pick(('ds',), i)
        if n is not None: emit(n)
        for _ in range(1 if n is not None else 2):
            n2 = pick(('va',), i)
            if n2 is not None: emit(n2)
    for it in items: emit(it['id'])

def side(k, opts):
    k(f"""
    s_lshr_b32 s34, s20, 2
    s_and_b32 s35, s20, 3
    s_lshl_b32 s32, s34, 2
    s_add_u32 s32, s32, s21
    s_mul_i32 s26, s21, 5120
    s_add_u32 m0, s26, {W2R}
    s_lshr_b32 s24, s20, 1
    s_and_b32 s25, s20, 1                 ; half
    """)
    k(f"""
    s_mul_i32 s33, s24, {32*1280}
    s_mul_i32 s26, s25, 640
    s_add_u32 s33, s33, s26
    s_mul_i32 s27, s21, 320
    """)
    for i in range(5):
        k(f"""
        v_add_u32 v3, {64*i}, v1
        v_add_u32 v3, s27, v3
        v_mul_u32_u24 v4, 1639, v3
        v_lshrrev_b32 v4, 16, v4
        v_mul_u32_u24 v4, 640, v4
        v_lshl_add_u32 v3, v3, 4, v4
        v_add_u32 v3, s33, v3
        global_load_lds_dwordx4 v3, {P(pW2)}
        """)
        if i < 4: k("s_add_u32 m0, m0, 1024")
    lane_consts(k)
    k(f"""
    v_lshl_add_u32 v9, v12, 2, v11
    v_mul_u32_u24 v9, 640, v9
    v_lshl_add_u32 v9, v10, 3, v9
    s_mul_i32 s26, s21, 160
    s_add_u32 s26, s26, {W2R}
    v_add_u32 v9, s26, v9
    v_lshrrev_b32 v5, 1, v12
    v_and_b32 v6, 1, v12
    v_lshlrev_b32 v5, 4, v5
    v_lshl_add_u32 v5, v6, 2, v5          ; 16(G>>1) + 4(G&1)
    v_add_u32 v2, v5, v11
    v_and_b32 v3, 6, v2
    s_lshl_b32 s26, s21, 1
    v_xor_b32 v3, s26, v3
    v_lshrrev_b32 v4, 1, v10
    v_add_u32 v3, v3, v4
    v_lshlrev_b32 v3, 4, v3
    v_lshl_add_u32 v3, v2, 7, v3
    v_and_b32 v4, 1, v1
    v_lshl_add_u32 v3, v4, 3, v3
    v_add_u32 v130, {W1R}, v3
    ; W2F destination: ((j*4 + KS/12)*12 + order(KS%12))*5 KB, j = 4*half + wave
    s_mul_hi_u32 s26, s24, 0x15555556
    s_mul_i32 s27, s26, 12
    s_sub_u32 s27, s24, s27
    s_lshl_b32 s27, s27, 2
    s_mov_b32 s28, {KORD & 0xffffffff}
    s_mov_b32 s29, {KORD >> 32}
    s_lshr_b64 s[28:29], s[28:29], s27
    s_and_b32 s27, s28, 15
    s_lshl_b32 s28, s25, 2
    s_add_u32 s28, s28, s21
    s_lshl_b32 s28, s28, 2
    s_add_u32 s26, s26, s28
    s_mul_i32 s26, s26, 12
    s_add_u32 s26, s26, s27
    s_mul_i32 s26, s26, 5120
    s_add_u32 s26, s26, {WS_W2F}
    v_add_u32 v129, s26, v{vL16}
    s_mul_i32 s26, s35, 640
    s_add_u32 s26, s26, 7680
    v_lshl_add_u32 v14, v1, 2, s26
    v_and_b32 v15, 31, v1
    v_lshl_add_u32 v15, v15, 2, s26
    ; W1F destination
    s_mul_hi_u32 s26, s32, 0x55555556
    s_mul_i32 s27, s26, 3
    s_sub_u32 s27, s32, s27
    s_add_u32 s28, s27, 2
    s_cmp_ge_u32 s28, 3
    s_cselect_b32 s29, 3, 0
    s_sub_u32 s28, s28, s29
    s_bitcmp1_b32 s26, 0
    s_cselect_b32 s27, s28, s27           ; pass
    s_mul_i32 s26, s26, 60
    s_mul_i32 s28, s35, 10
    s_add_u32 s28, s28, s27
    s_mul_i32 s29, s35, 5
    s_add_u32 s29, s29, 40
    s_cmp_lt_u32 s27, 2
    s_cselect_b32 s28, s28, s29
    s_cselect_b32 s33, 2, 1
    s_lshl_b32 s33, s33, 10
    s_add_u32 s26, s26, s28
    s_lshl_b32 s26, s26, 10
    s_add_u32 s26, s26, {WS_W1F}
    v_add_u32 v128, s26, v{vL16}
    s_lshl_b32 s26, s21, 10
    s_add_u32 s26, s26, {VRED}
    v_lshl_add_u32 v6, v1, 2, s26
    v_and_b32 v7, 31, v1
    v_lshl_add_u32 v2, v7, 1, s26
    v_lshl_add_u32 v7, v7, 2, s26
    v_lshl_add_u32 v4, v1, 1, s26
    v_lshl_add_u32 v3, v5, 1, s26
    v_lshl_add_u32 v5, v5, 2, s26
    s_mul_i32 s26, s35, 12288
    s_lshl_b32 s27, s32, 6
    s_add_u32 s26, s26, s27
    s_add_u32 s26, s26, {WS_V12}
    v_lshl_add_u32 v127, v12, 4, s26
    v_add_u32 v126, 6144, v127
    s_lshl_b32 s26, s32, 7
    s_lshl_b32 s27, s35, 2
    s_add_u32 s26, s26, s27
    s_add_u32 s26, s26, {WS_SYNC + F1_OFF}
    v_mov_b32 v125, s26
    v_mov_b32 v124, 1
    v_mov_b32 v100, 0x3f803f80
    v_mov_b32 v101, 0x3f803f80
    v_mov_b32 v102, 0x3f803f80
    v_mov_b32 v103, 0x3f803f80
    """)
    poll_addr(k, SM_OFF, vPA)
    k("s_waitcnt vmcnt(0)\ns_barrier")
    k.stamp('w1raw')
    k(f"v_bfe_u32 v{vPT}, v1, 4, 1\nv_sub_u32 v{vPT}, 8, v{vPT}\nAUTO")
    for dt in range(5):
        for h in range(2): k(f"ds_read_b64_tr_b16 v[{16+4*dt+2*h}:{17+4*dt+2*h}], v9 offset:{10240*h + 32*dt}")
    for i in range(5):
        for h in range(2): k(f"ds_read_b64_tr_b16 v[{40+4*i+2*h}:{41+4*i+2*h}], v130 offset:{4096*i + 1024*h}")
    for dt in range(5):
        k(f"global_store_dwordx4 v129, {V4(16+4*dt)}, {P(pWS)} {SC}" + ("\nv_add_u32 v129, 1024, v129" if dt < 4 else ""))
    for i in range(5):
        for q in range(4): k(f"v_lshlrev_b32 v{136+8*i+2*q}, 16, v{40+4*i+q}\nv_and_b32 v{137+8*i+2*q}, 0xffff0000, v{40+4*i+q}")
    k(f"s_cmp_eq_u32 s21, 0\ns_cbranch_scc0 LF_sd2\nglobal_load_dword v{vPD}, v{vPA}, {P(pWS)} sc1")
    wait_flags(k, 'sm', vPD, vPA, f"v{vPT}", None, int(opts.get('slp', 8)))
    k("LF_sd2:\ns_barrier")
    k.stamp('s1')
    for kq in range(4):
        for wh in range(2):
            for c in range(3):
                k(f"global_load_dword v{60 + 6*kq + 3*wh + c}, v{14 if c < 2 else 15}, {P(pWS)} offset:{2560*wh + 256*c} {SC}")
        if kq < 3: k("v_add_u32 v14, 15360, v14\nv_add_u32 v15, 15360, v15")
    for i in range(3): k(f"v_pk_add_f32 v[{60+2*i}:{61+2*i}], v[{60+2*i}:{61+2*i}], v[{66+2*i}:{67+2*i}]")
    for i in range(3): k(f"v_pk_add_f32 v[{72+2*i}:{73+2*i}], v[{72+2*i}:{73+2*i}], v[{78+2*i}:{79+2*i}]")
    for i in range(3): k(f"v_pk_add_f32 v[{60+2*i}:{61+2*i}], v[{60+2*i}:{61+2*i}], v[{72+2*i}:{73+2*i}]")
    for c in range(3): k(f"v_cvt_pk_bf16_f32 v{60+c}, v{63+c}, v{60+c}")
    for c in range(3): k(f"v_lshlrev_b32 v{63+c}, 16, v{60+c}\nds_write_b16_d16_hi v{4 if c < 2 else 2}, v{60+c} offset:{640 + 128*c}")
    for c in range(3): k(f"v_add_f32 v{63+c}, 1.0, v{63+c}")
    for c in range(3): k(f"v_cvt_pk_bf16_f32 v{63+c}, v{63+c}, v{63+c}")
    for c in range(3): k(f"v_lshlrev_b32 v{63+c}, 16, v{63+c}\nds_write_b32 v{6 if c < 2 else 7}, v{63+c} offset:{256*c}")
    k.stamp('ndata')
    for i in range(5):
        g = 180 + 12 * i
        for h in range(2): k(f"ds_read_b128 {V4(g+4*h)}, v5 offset:{128*i + 32*h}")
        for h in range(2): k(f"ds_read_b64 v[{g+8+2*h}:{g+9+2*h}], v3 offset:{640 + 64*i + 16*h}")
    for i in range(5):
        g = 180 + 12 * i; u = 136 + 8 * i; o4 = 64 + 4 * i
        for q in range(4): k(f"v_pk_mul_f32 v[{u+2*q}:{u+2*q+1}], v[{u+2*q}:{u+2*q+1}], v[{g+2*q}:{g+2*q+1}]")
        for q in range(4): k(f"v_cvt_pk_bf16_f32 v{o4+q}, v{u+2*q}, v{u+2*q+1}")
        k(f"global_store_dwordx4 v128, {V4(o4)}, {P(pWS)} {SC} ; @w:W1F" + ("\nv_add_u32 v128, s33, v128" if i < 4 else ""))
    for i in range(5):
        k(mf(112, V4(64 + 4 * i), V4(100), i == 0))
        k(mf(116, V4(40 + 4 * i), V4(188 + 12 * i), i == 0))
    k(f"""
    s_mov_b32 exec_lo, 0x00010001
    s_mov_b32 exec_hi, 0x00010001
    global_store_dwordx4 v127, v[112:115], {P(pWS)} {SC} ; @w:W1F
    global_store_dwordx4 v126, v[116:119], {P(pWS)} {SC} ; @w:W1F
    s_mov_b64 exec, -1
    """)
    k(f"s_mov_b64 exec, 1 ; @r:W1F\nglobal_store_dword v125, v124, {P(pWS)} sc1\ns_mov_b64 exec, -1\nMANUAL")
    k.stamp('f1pub')

ST = 16; V12 = 24; ACA, ACB = 48, 80; BF = 96; NBF = 6; TMP = 192; PKD = 208; SQ, SM, ONES = 224, 228, 232; XA = 236
AC2 = 24; HR = 104; NRK = 8; GB = 232; HA = 4
BORD = list(range(20 - NBF, 20)) + list(range(20 - NBF))
W2SLOT = list(range(40)) + [40 + ks for ks in BORD]

class Loader:
    def __init__(self): self.n1 = 0; self.n2 = 0; self.blk = {}
    def txt(self, n, slot, srd_, sreg):
        t = ""
        if self.blk.get(sreg) != n // 4: t = f"s_mov_b32 s{sreg}, {n // 4 * 4096}\n"; self.blk[sreg] = n // 4
        return t + f"buffer_load_dwordx4 a[{4*slot}:{4*slot+3}], v{vL16}, s[{srd_}:{srd_+3}], s{sreg} offen offset:{(n % 4) * 1024} {SC}"
    def w1(self): self.n1 += 1; return self.txt(W2SLOT[self.n1 - 1], W2SLOT[self.n1 - 1], 4, 28)
    def w2(self): self.n2 += 1; return self.txt(self.n2 - 1, W2SLOT[self.n2 - 1], 8, 29)
    def next(self, free):
        if self.n1 < 60: return self.w1()
        if self.n2 < min(free, 60): return self.w2()
        return None

def breads(ks, buf):
    b = BF + 16 * (buf % NBF)
    return [f"ds_read_b64_tr_b16 v[{b+4*s+2*h}:{b+4*s+2*h+1}], v{XA + s + (4 if ks >= 10 else 0)} offset:{4096*(ks % 10) + 1024*h}" for s in range(4) for h in range(2)]

def epilogue(acc, p, dst, dstep):
    v1, v2 = V12 + 8 * p, V12 + 8 * p + 4
    o = []
    for s in range(4):
        for h in range(2):
            a = acc + 4 * s + 2 * h
            o.append(f"v_pk_fma_f32 v[{a}:{a+1}], v[{v1+2*h}:{v1+2*h+1}], v[{ST+2*s}:{ST+2*s+1}], v[{a}:{a+1}] op_sel_hi:[1,0,1] neg_lo:[1,0,0] neg_hi:[1,0,0]")
    for s in range(4):
        for h in range(2):
            a = acc + 4 * s + 2 * h
            o.append(f"v_pk_fma_f32 v[{a}:{a+1}], v[{a}:{a+1}], v[{ST+2*s}:{ST+2*s+1}], v[{v2+2*h}:{v2+2*h+1}] op_sel:[0,1,0] op_sel_hi:[1,1,1]")
    o += [f"v_exp_f32 v{TMP+i}, v{acc+i}" for i in range(16)]
    o += [f"v_pk_add_f32 v[{TMP+2*i}:{TMP+2*i+1}], v[{TMP+2*i}:{TMP+2*i+1}], 1.0 op_sel_hi:[1,0]" for i in range(8)]
    o += [f"v_rcp_f32 v{TMP+i}, v{TMP+i}" for i in range(16)]
    o += [f"v_pk_mul_f32 v[{acc+2*i}:{acc+2*i+1}], v[{acc+2*i}:{acc+2*i+1}], v[{TMP+2*i}:{TMP+2*i+1}]" for i in range(8)]
    o += [f"v_cvt_pk_bf16_f32 v{dst + dstep*s + h}, v{acc+4*s+2*h}, v{acc+4*s+2*h+1}" for s in range(4) for h in range(2)]
    return o

def sprinkle(k, ops, extra):
    extra = [e for e in extra if e]
    step = len(ops) / (len(extra) + 1); nxt = step
    for i, o in enumerate(ops):
        k(o)
        while extra and i + 1 >= nxt: k(extra.pop(0)); nxt += step
    for e in extra: k(e)

def mlp(k, opts):
    PRE1 = int(opts.get('pre1', 4)); PB = int(opts.get('pb', 56))
    ld = Loader()
    ld.n1 = int(opts.get('ne1', 28))
    for i in range(PRE1): k(ld.w1() + " ; @skip")
    k(f"s_waitcnt vmcnt({PRE1})\ns_barrier\ns_cmp_eq_u32 s21, 0\ns_cbranch_scc0 LF_m1")
    arrive(k, S2_OFF, 12, 13)
    k("LF_m1:")
    k.stamp('arr2')
    k("s_mov_b32 s92, 0")
    k(f"s_cmp_eq_u32 s6, 0\ns_cbranch_scc0 LF_w1ok\nglobal_load_dword v{vF1D}, v{vF1A}, {P(pWS)} sc1")
    wait_flags(k, 'f1', vF1D, vF1A, 1, 0)
    k("s_mov_b32 s6, 61440")
    l2 = Loader()
    while l2.n1 < ld.n1: k(l2.w1())
    k("LF_w1ok:"); ld.blk = {}
    k.stamp('w1ok')
    for kq in range(4):
        k(f"global_load_dword v{48+2*kq}, v{vVA+4}, {P(pWS)} {SC}\nglobal_load_dword v{49+2*kq}, v{vVA+5}, {P(pWS)} offset:256 {SC}")
        if kq < 3: k(f"v_add_u32 v{vVA+4}, 15360, v{vVA+4}\nv_add_u32 v{vVA+5}, 15360, v{vVA+5}")
    for i in range(8): k(f"global_load_dword v{56+i}, v{vVA}, {P(pWS)} {SC}" + (f"\nv_add_u32 v{vVA}, 6144, v{vVA}" if i < 7 else ""))
    n0 = ld.n1
    while ld.n1 < PB: k(ld.w1())
    k(f"""
    s_mul_i32 s26, s21, 320
    s_add_u32 s26, s26, {GBL}
    v_lshl_add_u32 v12, v1, 2, s26
    v_and_b32 v13, 15, v1
    v_lshl_add_u32 v13, v13, 2, s26
    s_lshl_b32 s26, s21, 9
    s_add_u32 s26, s26, {GBL + 1280}
    v_lshl_add_u32 v15, v1, 2, s26
    v_lshrrev_b32 v14, 4, v1
    v_lshl_add_u32 v14, v14, 4, s26
    s_waitcnt vmcnt({PB - n0})
    v_pk_add_f32 v[56:57], v[56:57], v[58:59]
    v_pk_add_f32 v[60:61], v[60:61], v[62:63]
    v_pk_add_f32 v[56:57], v[56:57], v[60:61]
    v_mul_f32 v57, {LOG2E + 0x80000000}, v57
    ds_write_b32 v15, v56
    ds_write_b32 v15, v57 offset:256
    ds_read_b128 {V4(V12)}, v14
    ds_read_b128 {V4(V12+4)}, v14 offset:256
    ds_read_b128 {V4(V12+8)}, v14 offset:64
    ds_read_b128 {V4(V12+12)}, v14 offset:320
    ds_read_b128 {V4(V12+16)}, v14 offset:128
    ds_read_b128 {V4(V12+20)}, v14 offset:384
    v_pk_add_f32 v[48:49], v[48:49], v[50:51]
    v_pk_add_f32 v[52:53], v[52:53], v[54:55]
    v_pk_add_f32 v[48:49], v[48:49], v[52:53]
    v_cvt_pk_bf16_f32 v48, v48, v49
    v_and_b32 v49, 0xffff0000, v48
    v_lshlrev_b32 v48, 16, v48
    v_mul_f32 v48, {LN2 + 0x80000000}, v48
    v_mul_f32 v49, {LN2 + 0x80000000}, v49
    ds_write_b32 v12, v48
    ds_write_b32 v13, v49 offset:256
    v_lshrrev_b32 v14, 4, v1              ; G
    v_bfe_u32 v12, v1, 2, 2               ; r
    v_and_b32 v13, 1, v14
    v_lshl_add_u32 v15, v13, 2, v12
    v_lshrrev_b32 v13, 1, v14
    v_lshl_add_u32 v13, v13, 4, v15
    v_lshlrev_b32 v13, 7, v13
    v_and_b32 v12, 1, v1
    v_lshl_add_u32 v13, v12, 3, v13
    v_bfe_u32 v12, v1, 1, 1
    v_lshl_add_u32 v13, v12, 4, v13
    v_and_b32 v15, 6, v15
    """)
    for s in range(4):
        k(f"s_xor_b32 s26, s21, {s}\ns_lshl_b32 s26, s26, 1\nv_xor_b32 v12, s26, v15\nv_lshl_add_u32 v{XA+s}, v12, 4, v13\nv_add_u32 v{XA+4+s}, 40960, v{XA+s}")
    k(f"""
    v_lshrrev_b32 v12, 3, v1
    v_and_b32 v13, 6, v12
    v_and_b32 v15, 7, v1
    v_xor_b32 v13, v13, v15
    v_lshlrev_b32 v12, 12, v12
    v_lshl_add_u32 v3, v13, 4, v12
    s_lshl_b32 s26, s21, 15
    s_lshl_b32 s27, s22, 7
    s_add_u32 s26, s26, s27
    s_add_u32 s26, s26, {WS_X1}
    v_add_u32 v3, s26, v3
    s_lshl_b32 s26, s21, 10
    s_mov_b32 m0, s26
    v_mov_b32 v{ONES}, 0x3f803f80
    v_mov_b32 v{ONES+1}, 0x3f803f80
    v_mov_b32 v{ONES+2}, 0x3f803f80
    v_mov_b32 v{ONES+3}, 0x3f803f80
    s_lshr_b32 s30, s21, 1
    s_lshl_b32 s30, s30, 12
    s_add_u32 s30, s30, {RED}
    s_and_b32 s31, s21, 1
    s_lshl_b32 s31, s31, 3
    v_add_u32 v244, s30, v{vL16}
    v_add_u32 v245, s31, v244
    s_lshl_b32 s26, s22, 9
    s_add_u32 s26, s26, {WS_SYNC + F3_OFF}
    s_lshr_b32 s27, s23, 1
    s_lshl_b32 s27, s27, 7
    s_and_b32 s30, s23, 1
    s_lshl_b32 s30, s30, 4
    s_add_u32 s27, s27, s30
    s_lshl_b32 s30, s21, 2
    s_add_u32 s27, s27, s30
    s_add_u32 s27, s27, s26
    v_mov_b32 v10, s27
    s_lshl_b32 s30, s21, 7
    s_add_u32 s26, s26, s30
    v_and_b32 v11, 7, v1
    v_lshl_add_u32 v11, v11, 2, s26
    s_mul_i32 s78, s21, {12*4096}
    v_and_b32 v9, 15, v1
    v_lshlrev_b32 v9, 3, v9
    s_lshl_b32 s26, s21, 7
    s_add_u32 s26, s26, {STAT}
    v_add_u32 v9, s26, v9
    v_and_b32 v13, 3, v1
    v_cmp_eq_u32 s[84:85], 1, v13
    v_cmp_eq_u32 s[86:87], 2, v13
    v_cmp_eq_u32 s[88:89], 3, v13
    v_bfe_u32 v15, v1, 2, 2
    v_cmp_eq_u32 s[90:91], v14, v15
    """)
    for s in range(4): k(f"v_add_u32 v{HA+s}, s{80+s}, v{vL16}")
    k.stamp('w1iss')
    k("s_cmp_eq_u32 s21, 0\ns_cbranch_scc0 LF_m2")
    poll_addr(k, S2_OFF, 13)
    k(f"global_load_dword v12, v13, {P(pWS)} sc1")
    wait_flags(k, 's2', 12, 13, 8, 0)
    k("LF_m2:\ns_barrier")
    k.stamp('s2')
    k("AUTO")
    def xdma(i): return f"global_load_lds_dwordx4 v3, {P(pWS)} {SC} ; @w:X{i // 4}" + ("\ns_add_u32 m0, m0, 4096\nv_add_u32 v3, 0x20000, v3" if i < 19 else "")
    XI = int(opts.get('xi', 8))
    for i in range(XI): k(xdma(i))
    xq = [xdma(i) for i in range(XI, 20)]
    k("s_barrier ; @r:X0")
    k.stamp('x0')
    for r in breads(0, 0) + breads(1, 1): k(r)
    LA0, LA1, LA2 = (int(x) for x in opts.get('la', '3,2,0').split(','))
    for ks in range(20):
        if ks % 4 == 2 and ks < 18: k(f"s_barrier ; @r:X{ks // 4 + 1}")
        rs = breads(ks + 2, ks + 2) if ks + 2 < 20 else []
        lds = []
        for _ in range(LA0 if ks < 6 else LA1 + (ks & 1) * LA2):
            dx = 4 * ((20 - len(xq)) // 4) - 2 if xq else 99
            dw = ld.n1 // 2 if ld.n1 < 40 else 98
            t = xq.pop(0) if xq and dx <= dw else ld.next(2 * ks)
            if t: lds.append(t)
        b = BF + 16 * (ks % NBF)
        ms = [mf(ACA + 16 * p + 4 * s, A4(4 * (2 * ks + p)), V4(b + 4 * s), ks == 0) for s in range(4) for p in range(2)]
        ms = [mf(SQ, V4(b), V4(b), ks == 0), mf(SM, V4(ONES), V4(b), ks == 0)] + ms
        for i, m in enumerate(ms):
            k(m)
            if i >= 2 and rs: k(rs.pop(0))
            elif lds: k(lds.pop(0))
        for t in lds: k(t)
    k.stamp('passA')
    stat = f"""v_cndmask_b32 v13, v{SQ}, v{SQ+1}, s[84:85]
    v_mul_f32 v12, {f2u(1/640)}, v{SM}
    v_cndmask_b32 v13, v13, v{SQ+2}, s[86:87]
    v_cndmask_b32 v13, v13, v{SQ+3}, s[88:89]
    v_mul_f32 v13, {f2u(1/640)}, v13
    {rstd_chain(12, 13)}
    v_mul_f32 v13, {LOG2E + 0x80000000}, v13"""
    stat = [l.strip() for l in stat.split('\n')]
    stat += [f"s_mov_b64 exec, s[90:91]\nds_write_b64 v9, v[12:13]\ns_mov_b64 exec, -1", "s_waitcnt lgkmcnt(0)\ns_barrier"]
    stat += [f"v_xor_b32 v13, {128*s}, v9\nds_read_b64 v[{ST+2*s}:{ST+2*s+1}], v13" for s in range(4)]
    NB = int(opts.get('nb', 1))
    def passB(n, rsq, fill):
        ks = BORD[n]; b = BF + 16 * ((14 + n) % NBF)
        t = [x for x in [ld.next(40 + n) for _ in range(NB)] if x]
        for s in range(4):
            k(mf(ACB + 4 * s, A4(4 * (40 + ks)), V4(b + 4 * s), n == 0))
            for _ in range(2):
                if fill: k(fill.pop(0))
                elif rsq: k(rsq.pop(0))
            if t and s & 1: k(t.pop(0))
    for n in range(4): passB(n, [], stat)
    for t in stat: k(t)
    rq = breads(BORD[6], 14 + 6) + breads(BORD[7], 14 + 7)
    passB(4, rq, []); passB(5, rq, [])
    k.stamp('stats')
    NE = int(opts.get('ne', 10))
    sprinkle(k, epilogue(ACA, 0, PKD, 4) + epilogue(ACA + 16, 1, PKD + 2, 4), [ld.next(46) for _ in range(NE)])
    k("v_mov_b32 v14, 1\nv_mov_b32 v15, 2")
    for s in range(4): k(f"buffer_store_dwordx4 {V4(PKD+4*s)}, v{vL16}, s[12:15], s{72+s} offen {SC}")
    k(f"s_mov_b64 exec, 1\nglobal_store_dword v10, v14, {P(pWS)} sc1\ns_mov_b64 exec, -1")
    k.stamp('pairst')
    PN = int(opts.get('pn', 15))
    for n in range(6, 20):
        passB(n, breads(BORD[n + 2], 14 + n + 2) if n + 2 < 20 else [], [])
        if n == PN: k(f"global_load_dword v12, v11, {P(pWS)} sc1")
    k.stamp('passB')
    def hload(i, slots=range(4)):
        r = HR + 16 * (i % NRK)
        return [(f"s_add_u32 s79, s78, {KSEQ[i] * 4096}\n" if s == slots[0] else "") + f"buffer_load_dwordx4 {V4(r+4*s)}, v{HA+s}, s[12:15], s79 offen {SC}" for s in slots]
    def g2(i, s): return [mf(AC2 + 20 * s + 4 * dt, A4(4 * W2SLOT[5 * i + dt]), V4(HR + 16 * (i % NRK) + 4 * s), i == 0) for dt in range(5)]
    AH = int(opts.get('ahead', 3))
    wait_flags(k, 'h1', 12, 11, 0 if 'h' in opts.get('force', '') else 1, None)
    k.stamp('h1')
    hfirst = [t for i in range(AH) for t in hload(i)]
    NF = int(opts.get('nf', 8))
    for t in hfirst[:NF]: k(t)
    sprinkle(k, epilogue(ACB, 2, PKD, 2), hfirst[NF:] + [ld.next(60) for _ in range(int(opts.get('ns', 0)))])
    for s in range(4): k(f"v_add_u32 v13, s{80+s}, v245\nds_write_b64 v13, v[{PKD+2*s}:{PKD+2*s+1}]")
    k(f"""
    v_add_u32 v22, s80, v244
    v_add_u32 v23, s82, v244
    s_waitcnt lgkmcnt(0)
    s_barrier
    ds_read_b128 v[244:247], v22
    ds_read_b128 v[248:251], v23
    buffer_store_dwordx4 v[244:247], v{vL16}, s[12:15], s76 offen {SC}
    buffer_store_dwordx4 v[248:251], v{vL16}, s[12:15], s77 offen {SC}
    s_mov_b64 exec, 1
    global_store_dword v10, v15, {P(pWS)} sc1
    s_mov_b64 exec, -1
    """)
    k.stamp('singst')
    tail_addr = f"""
    s_lshl_b32 s26, s21, 1
    v_lshrrev_b32 v3, 4, v1
    v_bfe_u32 v0, v1, 2, 2
    v_lshl_add_u32 v0, v3, 2, v0
    v_and_b32 v16, 6, v0
    v_xor_b32 v16, s26, v16
    v_bfe_u32 v17, v1, 1, 1
    v_add_u32 v16, v16, v17
    v_lshlrev_b32 v16, 4, v16
    v_lshl_add_u32 v16, v0, 7, v16
    v_and_b32 v17, 1, v1
    v_lshl_add_u32 v16, v17, 3, v16
    s_mul_i32 s26, s23, {80*128}
    v_add_u32 v16, s26, v16
    s_mul_i32 s74, s21, 15360
    s_add_u32 s74, s74, {RED}
    v_and_b32 v17, 15, v1
    v_mul_u32_u24 v17, 176, v17
    v_lshl_add_u32 v17, v3, 3, v17
    v_add_u32 v17, s74, v17
    v_add_u32 v18, s74, v{vL16}
    s_mul_i32 s26, s21, 320
    s_add_u32 s26, s26, {GBL}
    v_lshl_add_u32 v22, v3, 4, s26
    s_lshr_b32 s26, s22, 3
    s_lshl_b32 s26, s26, 9
    s_and_b32 s27, s22, 1
    s_lshl_b32 s27, s27, 7
    s_add_u32 s26, s26, s27
    s_bfe_u32 s27, s22, 0x20001
    s_lshl_b32 s27, s27, 2
    s_add_u32 s26, s26, s27
    s_lshl_b32 s27, s21, 5
    s_add_u32 s26, s26, s27
    s_mul_i32 s26, s26, 1280
    s_mul_i32 s27, s23, 160
    s_add_u32 s75, s26, s27
    """
    first = ""
    for s in range(1, 4): first += f"s_xor_b32 s26, s21, {s}\ns_mul_i32 s26, s26, 15360\ns_add_u32 s26, s26, {RED + 5120*(s-1)}\nv_add_u32 v{4+s}, s26, v{vL16}\n"
    for i in range(3):
        tail_addr += f"""
        v_add_u32 v23, {64*i}, v1
        v_mul_u32_u24 v2, 6554, v23
        v_lshrrev_b32 v2, 16, v2
        v_mul_u32_u24 v3, 10, v2
        v_sub_u32 v23, v23, v3
        v_mul_u32_u24 v3, 176, v2
        v_lshl_add_u32 v3, v23, 4, v3
        v_add_u32 v{19+i}, s74, v3
        v_bfe_u32 v3, v2, 2, 1
        v_lshlrev_b32 v3, 8, v3
        v_bfe_u32 v0, v2, 3, 1
        v_lshl_add_u32 v3, v0, 4, v3
        v_and_b32 v0, 3, v2
        v_add_u32 v3, v3, v0
        v_mul_u32_u24 v3, 1280, v3
        v_lshl_add_u32 v{252+i}, v23, 4, v3
        """
    tail_addr += "v_lshrrev_b32 v2, 5, v1\nv_lshlrev_b32 v2, 30, v2\nv_add_u32 v254, v254, v2\n"
    fill0 = [l.strip() for l in tail_addr.split('\n') if l.strip()]; tail_addr = ""
    a = Asm('z'); a.names = k.names; a.stamp('g2redo')
    SPINS.append("LF_g2redo:\n" + "".join(l + "\n" for l in a.lines) + "s_add_u32 s92, s92, 1\ns_waitcnt vmcnt(0) lgkmcnt(0)\ns_sleep 16\n" + "".join(f"v_add_u32 v{HA+s}, s{80+s}, v{vL16}\n" for s in range(4)) + "\n".join(hfirst) + "\ns_waitcnt vmcnt(0)\ns_branch LF_g2")
    k("LF_g2:"); ld.blk = {}
    PI = int(opts.get('pi', 2))
    for i in range(8):
        q = hload(i + AH) if i + AH < 8 else []
        while ld.n2 < min(60, 5 * i + 15): k(ld.w2())
        for _ in range(-(-(60 - ld.n2) // (8 - i))): q.append(ld.w2())
        if i == PI: q.append(f"global_load_dword v12, v11, {P(pWS)} sc1")
        if i in (1, 2, 4): k.stamp(f'g2_{i}')
        if i == PI + 2:
            k.stamp('h2a')
            wait_flags(k, 'h2', 12, 11, 2, None)
            k.stamp('h2b')
            late = [hload(i2, [s])[0] for s in (1, 2, 3, 0) for i2 in range(8, 12)]
        if i >= max(4, PI + 2):
            nl = -(-len(late) // (8 - i)); q += late[:nl]; late = late[nl:]
        for s in range(4):
            for n, m in enumerate(g2(i, s)):
                k(m)
                if q and n in (0, 2, 4): k(q.pop(0))
                elif fill0: k(fill0.pop(0))
        for t in q: k(t)
    assert not fill0
    k.stamp('g2a')
    U = HR + 64
    tail_addr += "".join(f"ds_read_b64_tr_b16 v[{U+24+2*dt}:{U+25+2*dt}], v16 offset:{2048*dt}\n" for dt in range(5))
    tail_addr += "".join(f"ds_read_b128 {V4(GB+4*dt)}, v22 offset:{64*dt}\n" for dt in range(5))
    tail_addr += "".join(f"v_lshlrev_b32 v{U+4*dt+2*h}, 16, v{U+24+2*dt+h}\nv_and_b32 v{U+4*dt+2*h+1}, 0xffff0000, v{U+24+2*dt+h}\n" for dt in range(5) for h in range(2))
    fill = [l.strip() for l in (first + tail_addr).split('\n') if l.strip()]
    pend = []
    for s in (1, 2, 3, 0):
        for i in range(8, 12):
            for m in g2(i, s):
                k(m)
                if pend and pend[0][0] <= 0: k(pend.pop(0)[1])
                else:
                    for _ in range(2):
                        if fill: k(fill.pop(0))
                pend = [(a - 1, t) for a, t in pend]
        assert not pend
        if s: pend = [(3 + 3 * dt, f"ds_write_b128 v{4+s}, {V4(AC2+20*s+4*dt)} offset:{1024*dt}") for dt in range(5)]
    for t in fill: k(t)
    k(f"""
    v_add_f32 v12, v{AC2+20}, v{AC2+40}
    v_add_f32 v12, v12, v{AC2+60}
    v_add_f32 v12, v12, v{AC2}
    s_cmp_lt_u32 s92, 3
    s_cselect_b64 s[30:31], -1, 0
    v_cmp_u_f32 vcc, v12, v12
    s_and_b64 vcc, vcc, s[30:31]
    s_cbranch_vccnz LF_g2redo
    """)
    k.stamp('g2b')
    k("s_waitcnt lgkmcnt(0)\ns_barrier")
    R0 = 44
    for dt in range(5):
        for s in range(3): k(f"ds_read_b128 {V4(R0+20*s+4*dt)}, v18 offset:{5120*s + 1024*dt}")
    for dt in range(5):
        for h in range(2):
            q = 2 * dt + h
            k(f"v_pk_add_f32 v[{AC2+2*q}:{AC2+2*q+1}], v[{AC2+2*q}:{AC2+2*q+1}], v[{R0+2*q}:{R0+2*q+1}]")
            k(f"v_pk_add_f32 v[{R0+20+2*q}:{R0+21+2*q}], v[{R0+20+2*q}:{R0+21+2*q}], v[{R0+40+2*q}:{R0+41+2*q}]")
        for h in range(2):
            q = 2 * dt + h
            k(f"v_pk_add_f32 v[{AC2+2*q}:{AC2+2*q+1}], v[{AC2+2*q}:{AC2+2*q+1}], v[{R0+20+2*q}:{R0+21+2*q}]")
        for h in range(2):
            q = 2 * dt + h
            k(f"v_pk_fma_f32 v[{AC2+2*q}:{AC2+2*q+1}], v[{AC2+2*q}:{AC2+2*q+1}], v[{GB+2*q}:{GB+2*q+1}], v[{U+2*q}:{U+2*q+1}]")
        k(f"v_cvt_pk_bf16_f32 v{HR+2*dt}, v{AC2+4*dt}, v{AC2+4*dt+1}\nv_cvt_pk_bf16_f32 v{HR+2*dt+1}, v{AC2+4*dt+2}, v{AC2+4*dt+3}")
    for dt in range(5): k(f"ds_write_b64 v17, v[{HR+2*dt}:{HR+2*dt+1}] offset:{32*dt}")
    for i in range(3): k(f"ds_read_b128 {V4(R0+4*i)}, v{19+i}")
    for i in range(3): k(f"buffer_store_dwordx4 {V4(R0+4*i)}, v{252+i}, s[16:19], s75 offen")
    k("MANUAL")

def gen_F(opts={}):
    SPINS.clear()
    k = Asm('F')
    k(f"s_cmp_ge_u32 s2, {F_GRID}\ns_cbranch_scc1 LF_end")
    k.stamp('start')
    prologue(k, opts)
    k.stamp('msetup')
    conv_setup(k)
    k.stamp('csetup')
    kgen(k, opts)
    conv(k, opts)
    k("s_branch LF_mlp")
    conv_mod(k)
    k("LF_side:")
    side_a(k)
    side(k, opts)
    lane_consts(k)
    mlp_setup(k, opts)
    k("s_mov_b32 s6, 0\n" + hfill())
    k("LF_mlp:")
    mlp(k, opts)
    k.end(0)
    k("LF_end:\ns_endpgm")
    for s in SPINS: k(s)
    k("LF_codeend:")
    return k.finish()

if __name__ == '__main__':
    print(gen_F())
```

```python
import re

REG_RE = re.compile(r'(?<![\w.])([vas])(?:(\d+)|\[(\d+):(\d+)\])(?![\w])')
TRANS = ('v_exp_f32', 'v_log_f32', 'v_rcp_f32', 'v_rsq_f32', 'v_sqrt_f32', 'v_sin_f32', 'v_cos_f32', 'v_rcp_iflag_f32')

def regs_of(tok):
    out = []
    for m in REG_RE.finditer(tok):
        k = m.group(1)
        if m.group(2) is not None: out.append((k, int(m.group(2))))
        else: out += [(k, i) for i in range(int(m.group(3)), int(m.group(4)) + 1)]
    if re.search(r'\bvcc\b', tok): out += [('s', 'vcc')]
    if re.search(r'\bexec\b', tok): out += [('s', 'exec')]
    if re.search(r'\bm0\b', tok): out += [('s', 'm0')]
    return out

class Ins:
    def __init__(self, text):
        self.text = text
        t = text.split(';')[0].strip()
        self.label = t.endswith(':')
        self.mn = '' if self.label or not t else t.split()[0]
        rest = t[len(self.mn):].strip() if self.mn else ''
        ops, depth, cur = [], 0, ''
        for ch in rest:
            if ch in '[(': depth += 1
            if ch in '])': depth -= 1
            if ch == ',' and depth == 0: ops.append(cur.strip()); cur = ''
            else: cur += ch
        if cur.strip(): ops.append(cur.strip())
        self.mods = ''
        if ops:
            last = ops[-1]
            m = re.match(r'^(\S+(?:\([^)]*\))?)\s*(.*)$', last)
            if not self.mn.startswith('s_waitcnt'):
                ops[-1], self.mods = m.group(1), m.group(2)
        self.ops = ops
        mn = self.mn
        base = re.sub(r'_(e32|e64|dpp|sdwa)$', '', mn)
        self.base = base
        self.cls = 'other'; self.w = []; self.r = []
        self.dpp = mn.endswith('_dpp') or 'row_' in self.mods or 'quad_perm' in self.mods or 'wave_' in self.mods
        R = lambda idxs: [x for i in idxs if i < len(ops) for x in regs_of(ops[i])]
        n = len(ops)
        if mn.startswith('v_mfma'):
            self.cls = 'mfma'; self.w = R([0]); self.r = R([1, 2, 3]); self.ab = R([1, 2]); self.c = R([3])
            self.passes = 8 if '32x32x16' in mn else 4 if '16x16x32' in mn else None
            assert self.passes, mn
        elif mn.startswith('v_'):
            self.cls = 'valu'; self.trans = base in TRANS
            if base.startswith('v_cmp'): self.w = R([0]); self.r = R(range(1, n))
            elif base in ('v_add_co_u32', 'v_sub_co_u32', 'v_addc_co_u32'): self.w = R([0, 1]); self.r = R(range(2, n))
            elif 'permlane' in base and 'swap' in base: self.w = R([0, 1]); self.r = R([0, 1])
            else:
                self.w = R([0]); self.r = R(range(1, n))
                if base in ('v_fmac_f32', 'v_dot2c_f32_bf16', 'v_pk_fmac_f16', 'v_writelane_b32') or self.dpp: self.r += R([0])
                if base == 'v_cndmask_b32' and n == 3: self.r += [('s', 'vcc')]
        elif mn.startswith('s_load') or mn.startswith('s_memtime') or mn.startswith('s_memrealtime') or mn.startswith('s_atomic'):
            self.cls = 'smem'; self.w = R([0]); self.r = R(range(1, n))
        elif mn.startswith('s_'):
            self.cls = 'salu'
            if mn.startswith(('s_cmp', 's_cbranch', 's_branch', 's_waitcnt', 's_nop', 's_barrier', 's_endpgm', 's_setprio', 's_sleep', 's_bitcmp')):
                self.r = R(range(n))
            else:
                self.w = R([0]); self.r = R(range(1, n))
                if 'saveexec' in mn: self.w += [('s', 'exec')]; self.r += [('s', 'exec')]
                if mn in ('s_addk_i32', 's_mulk_i32'): self.r += R([0])
        elif mn.startswith('ds_'):
            self.cls = 'ds'
            if mn.startswith(('ds_read', 'ds_bpermute', 'ds_permute', 'ds_swizzle')) or '_rtn' in mn: self.w = R([0]); self.r = R(range(1, n))
            else: self.r = R(range(n))
        elif mn.startswith(('buffer_', 'global_')):
            self.cls = 'vmem'
            self.lds = ' lds' in (' ' + self.mods) or '_lds_' in mn
            self.store = 'store' in mn or ('atomic' in mn and 'sc0' not in self.mods)
            if self.lds: self.r = R(range(n)) + [('s', 'm0')]
            elif self.store: self.r = R(range(n))
            else:
                self.w = R([0]); self.r = R(range(1, n))
                if 'd16' in mn: self.r += R([0])
            self.wide = self.store and ('x4' in mn or 'x3' in mn)
            if self.wide: self.data = R([0]) if mn.startswith('buffer_') else R([1])

_old_init = Ins.__init__
def _init(self, text):
    _old_init(self, text)
    for kind, name in re.findall(r'@([wr]):(\w+)', text):
        (self.w if kind == 'w' else self.r).append(('x', name))
Ins.__init__ = _init

def nstates(ins):
    if ins.label or not ins.mn: return 0
    if ins.mn == 's_nop': return int(ins.ops[0], 0) + 1
    return 1

def need(p, c):
    n = 0
    pw, pr, cw, cr = set(p.w), set(p.r), set(c.w), set(c.r)
    vec = lambda s: {x for x in s if x[0] in 'va'}
    sca = lambda s: {x for x in s if x[0] == 's'}
    if p.cls == 'valu':
        if c.cls == 'mfma' and vec(pw) & cr: n = max(n, 2)
        if c.cls == 'mfma' and ('s', 'exec') in pw: n = max(n, 4)
        if p.trans and c.cls == 'valu' and vec(pw) & cr: n = max(n, 1)
        if sca(pw) & cr:
            if c.cls == 'valu': n = max(n, 4 if c.base in ('v_readlane_b32', 'v_writelane_b32') else 2)
            if c.cls == 'vmem': n = max(n, 5)
            if c.cls in ('salu', 'smem'): n = max(n, 1)
        if c.cls == 'valu' and vec(pw) & cr:
            if c.base in ('v_readlane_b32', 'v_readfirstlane_b32'): n = max(n, 1)
            if c.dpp or 'permlane' in c.base: n = max(n, 2)
        if ('s', 'exec') in pw and c.cls == 'valu':
            if c.dpp: n = max(n, 5)
            if c.base in ('v_readlane_b32', 'v_readfirstlane_b32', 'v_writelane_b32') or 'permlane' in c.base: n = max(n, 4)
    if p.cls == 'valu' and p.base.startswith('v_dot') and c.cls in ('valu', 'mfma', 'vmem', 'ds') and pw & (cr | cw):
        same_acc = c.base == p.base and (set(regs_of(c.ops[1])) | set(regs_of(c.ops[2]))).isdisjoint(pw)
        if not same_acc: n = max(n, 3)
    if p.cls == 'mfma':
        big = {4: 8, 8: 12}[p.passes]
        if c.cls == 'mfma':
            if pw & set(c.ab): n = max(n, big)
            if pw & set(c.c) and not (p.w == c.c and p.passes == c.passes): n = max(n, {4: 6, 8: 10}[p.passes])
            elif pw & cw and not (p.w == c.c and p.passes == c.passes): n = max(n, big)
        elif c.cls in ('valu', 'vmem', 'ds'):
            if pw & (cr | cw): n = max(n, big)
            if c.cls == 'valu' and set(p.c) & cw: n = max(n, {4: 3, 8: 7}[p.passes])
    if p.cls == 'salu' and ('s', 'm0') in pw and c.cls == 'vmem' and c.lds: n = max(n, 1)
    if p.cls == 'vmem' and getattr(p, 'wide', False) and set(p.data) & cw: n = max(n, 2 if c.cls in ('valu', 'mfma') else 1)
    return n

STAMPS = False
DBGST = None
DELAYS = []
WS_STAMP = 0x2000000
class Asm:
    def __init__(self, name):
        self.name = name; self.lines = []; self.names = []
    def stamp(self, name):
        for _ in range(DELAYS.count(name)): self("s_sleep 31")
        if not STAMPS: return
        if not self.names:
            self("v_mov_b32 v255, 0\ns_memrealtime s[100:101]\ns_waitcnt lgkmcnt(0)\nv_writelane_b32 v255, s100, 0")
            self.names += ['rt0', 'rt1']
        if name not in self.names: self.names.append(name)
        self(f"s_memtime s[100:101]\ns_waitcnt lgkmcnt(0)\nv_writelane_b32 v255, s100, {self.names.index(name)}")
    def end(self, kidx):
        if STAMPS:
            self("s_waitcnt vmcnt(0) lgkmcnt(0)")
            self.stamp('end')
            self(f"""
            s_memrealtime s[100:101]
            s_load_dwordx2 s[6:7], s[0:1], 128
            s_lshl_b32 s8, s2, 2
            s_add_u32 s8, s8, s21
            s_lshl_b32 s8, s8, 8
            s_add_u32 s8, s8, {WS_STAMP}
            s_waitcnt lgkmcnt(0)
            v_writelane_b32 v255, s100, 1
            v_lshl_add_u32 v0, v1, 2, s8
            global_store_dword v0, v255, s[6:7]""")
            if DBGST:
                self(f"""
                s_cmp_eq_u32 s2, {DBGST[0]}
                s_cbranch_scc0 LF_nodbg
                s_cmp_eq_u32 s21, 0
                s_cbranch_scc0 LF_nodbg
                s_load_dwordx2 s[6:7], s[0:1], 120
                v_readlane_b32 s8, v255, 2
                v_mov_b32 v4, 0""")
                for i, n in enumerate(DBGST[1:]):
                    self(f"v_readlane_b32 s9, v255, {self.names.index(n)}\ns_nop 3\ns_sub_u32 s9, s9, s8\ns_nop 3\nv_writelane_b32 v4, s9, {i + 1}")
                self("""v_readlane_b32 s9, v255, 0
                s_nop 3
                s_sub_u32 s9, s100, s9
                s_nop 3
                v_writelane_b32 v4, s9, 15
                v_lshlrev_b32 v0, 2, v1
                s_waitcnt lgkmcnt(0)
                s_mov_b64 exec, 0xfffe
                global_store_dword v0, v4, s[6:7]
                LF_nodbg:""")
            open('stamp_names.txt', 'w').write(' '.join(str(n) for n in self.names))
        self("s_endpgm")
    def __call__(self, text):
        for l in text.split('\n'):
            l = l.strip()
            if l and not l.startswith(';'): self.lines.append(l)
    def autowait(self, ins):
        out, vm, lg, on, keep = [], [], [], False, 99
        for c in ins:
            if c.mn == 'AUTO': on = True; keep = int(c.ops[0]) if c.ops else 99; continue
            if c.mn == 'MANUAL': on = False; continue
            if c.label or not c.mn: out.append(c); continue
            if c.mn == 's_waitcnt':
                m = re.search(r'vmcnt\((\d+)\)', c.text)
                if m: k = int(m.group(1)); vm = vm[max(0, len(vm) - k):] if k else []
                m = re.search(r'lgkmcnt\((\d+)\)', c.text)
                if m:
                    k = int(m.group(1))
                    if k == 0: lg = []
                    elif not any(x[1] for x in lg): lg = lg[max(0, len(lg) - k):]
                out.append(c); continue
            if c.mn in ('s_endpgm', 's_branch'): vm, lg = [], []; out.append(c); continue
            if on:
                w = []
                for q, nm, same, cap in ((vm, 'vmcnt', 'vmem', 63), (lg, 'lgkmcnt', 'ds', 15)):
                    t = set(c.r) if c.cls == same else set(c.r) | set(c.w)
                    last = max([i for i, x in enumerate(q) if x[0] & t], default=-1)
                    if last >= 0:
                        n = len(q) - 1 - last
                        if q is vm and not q[last][1]:
                            n_eff = sum(1 for x in q[last + 1:] if not x[1])
                            w.append(f'{nm}({min(n_eff, cap)})'); del q[:last + 1]; continue
                        if q is lg and any(x[1] for x in q): n = 0
                        n = min(n, cap, keep if q is lg else 99)
                        w.append(f'{nm}({n})')
                        del q[:len(q) - n]
                if w: out.append(Ins('s_waitcnt ' + ' '.join(w)))
            if c.cls == 'vmem':
                if '@skip' not in c.text: vm.append((set(c.w), '@ghost' in c.text))
            elif c.cls == 'ds': lg.append((set(c.w), False))
            elif c.cls == 'smem': lg.append((set(c.w), True))
            out.append(c)
        return out
    def finish(self, check=True):
        ins = self.autowait([Ins(l) for l in self.lines])
        out = []
        for c in ins:
            if c.mn and c.mn != 's_nop':
                dist, req = 0, 0
                for p in reversed(out):
                    if dist >= 20: break
                    if p.mn:
                        k = need(p, c)
                        if k - dist > req: req = k - dist
                    dist += nstates(p)
                while req > 0:
                    k = min(req, 16); out.append(Ins(f's_nop {k-1}')); req -= k
            out.append(c)
        if check: self.check_counters(out)
        return '\n'.join(('' if i.label else '    ') + i.text for i in out) + '\n'
    def check_counters(self, ins):
        vm, lg = [], []
        for c in ins:
            if c.label or not c.mn: continue
            if c.mn == 's_waitcnt':
                t = c.text
                m = re.search(r'vmcnt\((\d+)\)', t)
                if m:
                    k = int(m.group(1)); assert k <= 63, t
                    vm = vm[len(vm) - k:] if k < len(vm) and k > 0 else ([] if k == 0 else vm)
                m = re.search(r'lgkmcnt\((\d+)\)', t)
                if m:
                    k = int(m.group(1)); assert k <= 15, t
                    if k == 0: lg = []
                    elif not any(x[2] for x in lg): lg = lg[len(lg) - k:] if k < len(lg) else lg
                continue
            if c.mn in ('s_endpgm', 's_branch'): vm, lg = [], []; continue
            touched = set(c.r) | set(c.w)
            for q in (vm, lg):
                for (rs, tx, _) in q:
                    if rs & touched and not (c.cls == 'vmem' and q is vm and not (rs & set(c.r))) and not (c.cls == 'ds' and q is lg and not (rs & set(c.r))):
                        raise SystemExit(f'[{self.name}] unwaited load: "{tx}" used by "{c.text}"')
            if c.cls == 'vmem':
                if '@skip' not in c.text: vm.append((set() if '@nocheck' in c.text else set(c.w), c.text, False))
            elif c.cls == 'ds': lg.append((set(c.w), c.text, False))
            elif c.cls == 'smem': lg.append((set(c.w), c.text, True))

def kernel_text(name, body):
    return f".globl {name}\n.p2align 8\n.type {name},@function\n{name}:\n{body}"

def descriptor(name, vgpr, agpr=0, sgpr=None):
    sgpr = sgpr or (102 if STAMPS else 100)
    acc = (vgpr + 3) // 4 * 4
    nfv = acc + agpr if agpr else vgpr
    return f""".p2align 6
.amdhsa_kernel {name}
  .amdhsa_next_free_vgpr {nfv}
  .amdhsa_next_free_sgpr {sgpr}
  .amdhsa_accum_offset {acc}
  .amdhsa_group_segment_fixed_size 0
  .amdhsa_kernarg_size 136
  .amdhsa_user_sgpr_count 2
  .amdhsa_user_sgpr_kernarg_segment_ptr 1
  .amdhsa_system_sgpr_workgroup_id_x 1
.end_amdhsa_kernel
"""
```

```python
from asmlib import *
from layoutF import *

F_GRID = 256
NCONV = 160
LNS = 1600
STATP = 12800
MODB = 13312
KT = 33792; KTS = 18432
TAPS = 107520; TCS = 2112; TAPCH = 4 * TCS
STG = TAPS + 4 * TAPCH; STGS = 2112
F_LDS = 149760
OH = 480
UD = 3088
O3 = 4576 + 16; O5 = O3 + UD; O7 = O5 + UD; O9 = O7 + UD
CHS = (O9 + 2048 + 127) // 128 * 128 + 16
OU = 4 * CHS; OS = OU + 16384
W1R = 102400; W2R = W1R + 20480; VRED = W2R + 20480
RED = 81920; STAT = RED + 61440; GBL = STAT + 512
assert OS + 16384 <= TAPS and STG + 4 * STGS <= F_LDS and GBL + 1280 + 2048 <= F_LDS
pU, pAR, pAI, pBR, pBI, pCR, pCI, pLD, pDS, pW1, pW2, pC, pWM, pOUT, pDBG, pWS = 36, 38, 40, 42, 44, 46, 48, 50, 52, 56, 58, 60, 62, 64, 66, 68
def P(p): return f"s[{p}:{p+1}]"
SC = 'sc1'
vL16 = 8
BAND = 210
vRD, vDA, vDB, vD3, vRU, vWU, vWH, vNO, vUO, vMO, vTA, vT2, vT3, vBP = range(230, 244)
vVA, vF1D, vF1A = 244, 250, 251
vSA, vSG, vP2 = 252, 253, 155
vKW, vKR, vPD, vPA, vPT = 120, 121, 122, 123, 133
KACC = 104; SCT = 124; PRM = 134
CDAT = 156; LA = 158; MFR = 164; NR = 184

def srd(k, r, base, off, size):
    k(f"s_add_u32 s{r}, s{base}, {off}\ns_addc_u32 s{r+1}, s{base+1}, 0\ns_mov_b32 s{r+2}, {size}\ns_mov_b32 s{r+3}, 0x20000")
def mf(acc, a, b, first):
    c = '0' if first else f'v[{acc}:{acc+3}]'
    return f"v_mfma_f32_16x16x32_bf16 v[{acc}:{acc+3}], {a}, {b}, {c}"
V4 = lambda r: f"v[{r}:{r+3}]"
A4 = lambda r: f"a[{r}:{r+3}]"

SPINS = []
OPT = {}
def on(name, default=0): return int(OPT.get(name, default))
def wait_flags(k, tag, vdata, vaddr, target, nwait, sleep=2):
    if nwait is not None: k(f"s_waitcnt vmcnt({nwait})")
    k(f"v_cmp_gt_u32 vcc, {target}, v{vdata}\ns_cbranch_vccnz LF_spin{tag}\nLF_go{tag}:")
    SPINS.append(f"""
    LF_spin{tag}:
    s_mov_b32 s30, 40000
    LF_spinl{tag}:
    global_load_dword v{vdata}, v{vaddr}, {P(pDBG if tag.startswith('init') else pWS)} sc1
    s_waitcnt vmcnt(0)
    v_cmp_gt_u32 vcc, {target}, v{vdata}
    s_cbranch_vccz LF_go{tag}
    s_sleep {sleep}
    s_sub_u32 s30, s30, 1
    s_cmp_lg_u32 s30, 0
    s_cbranch_scc1 LF_spinl{tag}
    s_branch LF_go{tag}
    """)

def arrive(k, off, va, vb, shard="s_lshr_b32 s26, s2, 3"):
    k(f"""
    {shard}
    s_lshl_b32 s26, s26, 7
    s_add_u32 s26, s26, {WS_SYNC + off}
    v_lshl_add_u32 v{va}, v1, 12, s26
    v_mov_b32 v{vb}, 1
    s_mov_b64 exec, 0xff
    global_atomic_add v{va}, v{vb}, {P(pWS)} sc1
    s_mov_b64 exec, -1
    """)

def poll_addr(k, off, va):
    k(f"""
    s_and_b32 s26, s2, 7
    s_lshl_b32 s26, s26, 12
    s_add_u32 s26, s26, {WS_SYNC + off}
    v_and_b32 v{va}, 31, v1
    v_lshl_add_u32 v{va}, v{va}, 7, s26
    """)

def rstd_chain(m, q, r=None):
    return f"""v_fma_f32 v{q}, -v{m}, v{m}, v{q}
    v_max_f32 v{q}, 0, v{q}
    v_cvt_pk_bf16_f32 v{q}, v{q}, v{m}
    v_and_b32 v{m}, 0xffff0000, v{q}
    v_lshlrev_b32 v{q}, 16, v{q}
    v_add_f32 v{q}, {f2u(1e-5)}, v{q}
    v_cvt_pk_bf16_f32 v{q}, v{q}, v{q}
    v_lshlrev_b32 v{q}, 16, v{q}
    v_sqrt_f32 v{q}, v{q}
    v_cvt_pk_bf16_f32 v{q}, v{q}, v{q}
    v_lshlrev_b32 v{q}, 16, v{q}
    v_rcp_f32 v{r or q}, v{q}"""

JOBS = 12800
def prologue(k, opts):
    k(f"""
    s_load_dwordx16 s[36:51], s[0:1], 0
    s_load_dwordx2 s[52:53], s[0:1], 64
    s_load_dwordx4 s[60:63], s[0:1], 96
    s_load_dwordx2 s[68:69], s[0:1], 128
    s_load_dwordx4 s[56:59], s[0:1], 80
    s_load_dwordx4 s[64:67], s[0:1], 112
    v_lshrrev_b32 v1, 6, v0
    v_readfirstlane_b32 s21, v1
    v_and_b32 v1, 63, v0
    """)
    if int(opts.get('cpf', 1)):
        k(f"""
        s_getpc_b64 s[24:25]
        LF_pc:
        s_lshr_b32 s26, s2, 3
        s_lshl_b32 s26, s26, 2
        s_add_u32 s26, s26, s21
        s_mul_i32 s26, s26, 384
        s_min_u32 s26, s26, LF_codeend-LF_pc-384
        s_add_u32 s24, s24, s26
        s_addc_u32 s25, s25, 0
        v_min_u32 v2, 2, v1
        v_lshlrev_b32 v2, 7, v2
        v_mov_b32 v3, s25
        v_add_co_u32 v2, vcc, s24, v2
        v_addc_co_u32 v3, vcc, 0, v3, vcc
        global_load_dword v254, v[2:3], off ; @nocheck
        """)
    k(f"""
    v_lshlrev_b32 v{vL16}, 4, v1
    s_cmp_lt_u32 s2, {NCONV}
    s_cbranch_scc0 LF_side
    s_lshl_b32 s20, s2, 2
    s_add_u32 s20, s20, s21               ; channel d
    s_mul_i32 s29, s20, 384
    v_lshl_add_u32 v10, v1, 1, s29
    s_lshl_b32 s29, s20, 1
    v_mov_b32 v11, s29
    v_mov_b32 v{vPA}, 0
    """)
    LD = 'global_load_ushort' if on('ush') else 'global_load_short_d16_hi'
    if not on('ush'):
        for i in list(range(19)) + [20]: k(f"v_mov_b32 v{PRM+i}, 0")
    k(f"""
    s_mul_hi_u32 s25, s2, {(1 << 32) // 60 + 1}       ; kq
    s_mul_i32 s26, s25, 60
    s_sub_u32 s26, s2, s26
    s_mul_i32 s27, s25, 320
    v_lshl_add_u32 v6, v1, 2, s27
    v_and_b32 v7, 15, v1
    v_lshl_add_u32 v7, v7, 2, s27
    s_waitcnt lgkmcnt(0)
    global_load_dword v{CDAT}, v6, {P(pC)}
    global_load_dword v{CDAT+1}, v7, {P(pC)} offset:256
    {LD} v{PRM+18}, v11, {P(pLD)}""")
    for p in range(3):
        for i, ptr in enumerate((pAR, pAI, pBR, pBI, pCR, pCI)):
            k(f"{LD} v{PRM+6*p+i}, v10, {P(ptr)} offset:{128*p}")
    k(f"{LD} v{PRM+20}, v11, {P(pDS)}")
    k.stamp('ldiss')
    lane_consts(k)
    if int(opts.get('tlb', 0)):
        k(f"""
        s_cmp_eq_u32 s21, 1
        s_cbranch_scc0 LF_notlb
        v_min_u32 v2, 11, v1
        v_lshlrev_b32 v2, 21, v2
        v_and_b32 v3, 1, v1
        v_lshlrev_b32 v3, 21, v3
        global_load_dword v253, v2, {P(pWS)} ; @skip
        global_load_dword v253, v3, {P(pOUT)} ; @skip
        s_waitcnt vmcnt(0)
        LF_notlb:
        """)
    k(f"""
    v_lshrrev_b32 v4, 3, v1
    v_and_b32 v5, 7, v1
    v_mul_u32_u24 v3, 7680, v4
    v_lshl_add_u32 v3, v5, 4, v3
    s_mul_i32 s27, s25, 160
    s_mul_i32 s28, s21, 40
    s_add_u32 s28, s28, s27
    s_mul_i32 s28, s28, 7680
    s_lshl_b32 s29, s26, 7
    s_add_u32 s28, s28, s29
    v_add_u32 v3, s28, v3
    s_mul_i32 s29, s21, 5120
    s_add_u32 m0, s29, {MODB}
    s_mul_i32 s25, s25, 15360
    """)
    if not int(opts.get('modlate', 1)): mod_dma(k, 3)
    else: k(f"v_mov_b32 v{LA+5}, v3")
    k(f"""
    s_lshl_b32 s26, s26, 8
    s_add_u32 s25, s25, s26
    s_lshl_b32 s26, s21, 6
    s_add_u32 s25, s25, s26
    v_lshl_add_u32 v{LA}, v1, 2, s25
    v_lshl_add_u32 v7, v12, 3, v11
    v_lshlrev_b32 v7, 7, v7
    v_lshl_add_u32 v7, v10, 3, v7
    s_lshl_b32 s27, s21, 5
    s_add_u32 s27, s27, {MODB}
    v_add_u32 v{LA+1}, s27, v7
    s_mul_i32 s27, s21, 320
    v_lshl_add_u32 v{LA+2}, v1, 2, s27
    v_lshl_add_u32 v{LA+3}, v13, 2, s27
    v_lshl_add_u32 v{LA+4}, v12, 4, s27
    """)

def silu_frags(k, c0, vbp, dst=24):
    k(f"""
    s_mov_b32 s24, {LOG2E + 0x80000000}
    v_lshlrev_b32 v16, 16, v{c0}
    v_and_b32 v17, 0xffff0000, v{c0}
    v_lshlrev_b32 v18, 16, v{c0+1}
    v_and_b32 v19, 0xffff0000, v{c0+1}
    """)
    for i in range(4): k(f"v_mul_f32 v{20+i}, s24, v{16+i}")
    for i in range(4): k(f"v_exp_f32 v{20+i}, v{20+i}")
    for i in range(4): k(f"v_add_f32 v{20+i}, 1.0, v{20+i}")
    for i in range(4): k(f"v_rcp_f32 v{20+i}, v{20+i}")
    for i in range(4): k(f"v_mul_f32 v{16+i}, v{16+i}, v{20+i}")
    k(f"v_cvt_pk_bf16_f32 v16, v16, v17\nv_cvt_pk_bf16_f32 v17, v18, v19")
    k(f"ds_write_b32 v{vbp}, v16\nds_write_b32 v{vbp+1}, v17 offset:256")
    for ks in range(5): k(f"ds_read_b128 {V4(dst+4*ks)}, v{vbp+2} offset:{64*ks}")

def conv_mod(k):
    fr, ac = (184, 204) if on('mmid', 1) else (60, 16)
    k("LF_cmod:\n" + ("" if on('mmid', 1) else "s_mov_b32 s3, 1\n") + "s_waitcnt vmcnt(0) lgkmcnt(0)\ns_barrier\nAUTO")
    for ks in range(5):
        for h in range(2): k(f"ds_read_b64_tr_b16 v[{fr+4*ks+2*h}:{fr+1+4*ks+2*h}], v{LA+1} offset:{4096*ks + 512*h}")
    for ks in range(5): k(mf(ac, V4(MFR + 4 * ks), V4(fr + 4 * ks), ks == 0))
    k(f"""MANUAL
    s_mov_b64 exec, 0xffff
    global_store_dword v{LA}, v{ac}, {P(pWS)} {SC}
    s_mov_b64 exec, -1
    global_load_dword v{vPD}, v{vPA}, {P(pDBG)} sc1 ; @nocheck
    """)
    k.stamp('modst')
    k("s_branch LF_noarr1" if on('mmid', 1) else "s_branch LF_kpass")

def mod_dma(k, v):
    for i in range(5):
        k(f"global_load_lds_dwordx4 v{v}, {P(pWM)}")
        if i < 4: k(f"s_add_u32 m0, m0, 1024\nv_add_u32 v{v}, {8*7680}, v{v}")

def lane_consts(k):
    k("""
    v_bfe_u32 v11, v1, 2, 2               ; r
    v_lshrrev_b32 v12, 4, v1              ; G
    v_and_b32 v10, 3, v1                  ; cc / j
    v_and_b32 v13, 15, v1                 ; a / i
    """)

def w1raw(k):
    k(f"""
    s_lshr_b32 s34, s20, 2
    s_and_b32 s35, s20, 3
    v_lshrrev_b32 v2, 3, v1
    v_and_b32 v3, 6, v2
    v_and_b32 v4, 7, v1
    v_xor_b32 v3, v3, v4
    v_mul_u32_u24 v2, 3072, v2
    v_lshl_add_u32 v2, v3, 4, v2
    s_mul_i32 s35, s35, {160*3072}
    s_lshl_b32 s34, s34, 7
    s_add_u32 s35, s35, s34
    s_mov_b32 m0, {W1R}
    v_add_u32 v2, s35, v2
    """)
    for i in range(20):
        k(f"global_load_lds_dwordx4 v2, {P(pW1)}")
        if i < 19: k(f"s_add_u32 m0, m0, 1024\nv_add_u32 v2, {8*3072}, v2")

def side_mod(k):
    k(f"""
    s_mul_hi_u32 s25, s2, {(1 << 32) // 60 + 1}       ; kq
    s_mul_i32 s26, s25, 60
    s_sub_u32 s26, s2, s26
    s_mul_i32 s27, s25, 320
    v_lshl_add_u32 v15, v1, 2, s27
    v_lshl_add_u32 v16, v13, 2, s27
    global_load_dword v150, v15, {P(pC)}
    global_load_dword v151, v16, {P(pC)} offset:256
    v_lshrrev_b32 v4, 3, v1
    v_and_b32 v5, 7, v1
    v_mul_u32_u24 v4, 7680, v4
    v_lshl_add_u32 v4, v5, 4, v4
    s_mul_i32 s27, s25, {160*7680}
    s_lshl_b32 s28, s26, 7
    s_add_u32 s27, s27, s28
    v_add_u32 v14, s27, v4
    s_mov_b32 m0, s33
    s_mul_i32 s25, s25, 15360
    s_lshl_b32 s26, s26, 8
    s_add_u32 s25, s25, s26
    v_lshl_add_u32 v152, v13, 2, s25
    """)
    for i in range(20):
        k(f"global_load_lds_dwordx4 v14, {P(pWM)}")
        if i < 19: k(f"s_add_u32 m0, m0, 1024\nv_add_u32 v14, {8*7680}, v14")
    k(f"""
    v_lshl_add_u32 v5, v12, 3, v11
    v_lshlrev_b32 v5, 7, v5
    v_lshl_add_u32 v5, v10, 3, v5
    v_add_u32 v5, s33, v5
    s_add_u32 s27, s33, 20480
    v_lshl_add_u32 v158, v1, 2, s27
    v_lshl_add_u32 v159, v13, 2, s27
    v_lshl_add_u32 v160, v12, 4, s27
    s_waitcnt vmcnt(20)
    """)
    silu_frags(k, 150, 158)
    k("AUTO")
    for ks in range(5):
        k(f"s_waitcnt vmcnt({16 - 4*ks})")
        for ct in range(4):
            for h in range(2): k(f"ds_read_b64_tr_b16 v[{60+16*(ks&1)+4*ct+2*h}:{61+16*(ks&1)+4*ct+2*h}], v5 offset:{4096*ks + 512*h + 32*ct}")
        for ct in range(4): k(mf(44 + 4 * ct, V4(24 + 4 * ks), V4(60 + 16 * (ks & 1) + 4 * ct), ks == 0))
    k("MANUAL\ns_mov_b64 exec, 0xffff")
    for ct in range(4): k(f"global_store_dword v152, v{44+4*ct}, {P(pWS)} offset:{64*ct} {SC}")
    k("s_mov_b64 exec, -1")

def side_a(k):
    UD_ = 164
    k(f"""
    s_sub_u32 s20, s2, {NCONV}
    s_mul_i32 s33, s21, {2*JOBS}
    s_add_u32 s34, s33, {JOBS}
    """)
    lane_consts(k)
    k(f"""
    s_mul_i32 s31, s21, 96
    s_add_u32 s31, s31, s20
    s_cmp_lt_u32 s31, 256
    s_waitcnt lgkmcnt(0)
    s_cbranch_scc0 LF_sa_mod
    v_lshrrev_b32 v2, 3, v1
    v_and_b32 v3, 7, v1
    v_lshlrev_b32 v3, 4, v3
    v_mul_u32_u24 v7, 1280, v2
    v_add_u32 v7, v7, v3
    s_mul_i32 s24, s31, 10240
    v_add_u32 v7, s24, v7
    """)
    for q in range(10): k(f"global_load_dwordx4 {V4(UD_+4*q)}, v7, {P(pU)} offset:{128*q}")
    k.stamp('ldiss')
    k(f"""
    v_mul_u32_u24 v7, {LNS - 256}, v2
    v_add3_u32 v7, v7, v3, s33
    v_mul_u32_u24 v9, {LNS - 256}, v11
    v_lshl_add_u32 v9, v12, 5, v9
    v_lshl_add_u32 v9, v10, 3, v9
    v_add_u32 v9, s33, v9
    v_lshrrev_b32 v2, 2, v1
    v_lshlrev_b32 v2, 14, v2
    v_lshl_add_u32 v2, v10, 4, v2
    s_lshl_b32 s24, s31, 6
    s_add_u32 s24, s24, {WS_NT}
    v_add_u32 v2, s24, v2
    s_lshr_b32 s24, s31, 5
    s_lshl_b32 s24, s24, 11
    s_bfe_u32 s25, s31, 0x40001
    s_lshl_b32 s25, s25, 4
    s_add_u32 s24, s24, s25
    s_and_b32 s25, s31, 1
    s_lshl_b32 s25, s25, 9
    s_add_u32 s24, s24, s25
    s_add_u32 s24, s24, {WS_ST}
    v_lshrrev_b32 v3, 5, v1
    v_lshlrev_b32 v3, 8, v3
    v_bfe_u32 v14, v1, 4, 1
    v_lshl_add_u32 v3, v14, 10, v3
    v_bfe_u32 v14, v1, 3, 1
    v_lshl_add_u32 v3, v14, 3, v3
    v_add_u32 v3, s24, v3
    s_mov_b32 s24, 0x3f803f80
    v_mov_b32 v{vPA}, 0
    v_mov_b32 v140, 0
    v_mov_b32 v141, 0
    v_mov_b32 v142, 0
    v_mov_b32 v143, 0
    """)
    for q in range(10):
        k(f"s_waitcnt vmcnt({9 - q})")
        if q == 0: k.stamp('u0')
        k(f"ds_write_b128 v7, {V4(UD_+4*q)} offset:{128*q}")
        for i in range(4):
            r = UD_ + 4 * q + i
            k(f"v_dot2c_f32_bf16 v{140 + 2*(i&1)}, s24, v{r}\nv_dot2c_f32_bf16 v{141 + 2*(i&1)}, v{r}, v{r}")
    k(f"""
    v_pk_add_f32 v[140:141], v[140:141], v[142:143]
    v_add_f32_dpp v140, v140, v140 quad_perm:[1,0,3,2] row_mask:0xf bank_mask:0xf
    v_add_f32_dpp v141, v141, v141 quad_perm:[1,0,3,2] row_mask:0xf bank_mask:0xf
    v_add_f32_dpp v140, v140, v140 quad_perm:[2,3,0,1] row_mask:0xf bank_mask:0xf
    v_add_f32_dpp v141, v141, v141 quad_perm:[2,3,0,1] row_mask:0xf bank_mask:0xf
    v_add_f32_dpp v140, v140, v140 row_half_mirror row_mask:0xf bank_mask:0xf
    v_add_f32_dpp v141, v141, v141 row_half_mirror row_mask:0xf bank_mask:0xf
    v_mul_f32 v140, {f2u(1/640)}, v140
    v_mul_f32 v141, {f2u(1/640)}, v141
    AUTO
    """)
    for ch in range(10):
        k(f"ds_read_b64_tr_b16 v[{UD_+4*ch}:{UD_+4*ch+1}], v9 offset:{128*ch}\nds_read_b64_tr_b16 v[{UD_+4*ch+2}:{UD_+4*ch+3}], v9 offset:{128*ch + 4*(LNS - 256)}")
        if ch == 4: k(rstd_chain(140, 141, 144) + f"\nv_mov_b32 v142, v141\nv_mov_b32 v143, v140\nv_mul_f32 v140, v140, v144\ns_mov_b32 exec_lo, 0x01010101\ns_mov_b32 exec_hi, 0x01010101\nglobal_store_dwordx2 v3, v[142:143], {P(pWS)} {SC}\ns_mov_b64 exec, -1")
    for r in range(8): k(f"v_readlane_b32 s{70+r}, v144, {8*r}")
    for r in range(8): k(f"v_readlane_b32 s{78+r}, v140, {8*r}")
    for r in range(8): k(f"v_mov_b32 v{16+r}, s{78+r}")
    for ch in range(10):
        b = UD_ + 4 * ch; u = 24 + 12 * (ch % 3)
        for i in range(4): k(f"v_lshlrev_b32 v{u+2*i}, 16, v{b+i}\nv_and_b32 v{u+2*i+1}, 0xffff0000, v{b+i}")
        for i in range(4): k(f"v_pk_fma_f32 v[{u+2*i}:{u+2*i+1}], v[{u+2*i}:{u+2*i+1}], s[{70+2*i}:{71+2*i}], v[{16+2*i}:{17+2*i}] neg_lo:[0,0,1] neg_hi:[0,0,1]")
        for i in range(4): k(f"v_cvt_pk_bf16_f32 v{u+8+i}, v{u+2*i}, v{u+2*i+1}")
        k(f"global_store_dwordx4 v2, {V4(u+8)}, {P(pWS)} {SC}")
        if ch < 9: k("v_add_u32 v2, 0x40000, v2")
    k("MANUAL")
    k.stamp('lnst')
    k(f"global_load_dword v{vPD}, v{vPA}, {P(pDBG)} sc1")
    wait_flags(k, 'init2', vPD, vPA, 32, 0)
    arrive(k, S1_OFF, vPD, vPT, "s_and_b32 s26, s31, 31")
    k.stamp('arr1')
    k(f"""
    s_branch LF_sa_end
    LF_sa_mod:
    s_cmp_lt_u32 s20, 80
    s_cbranch_scc0 LF_init
    s_cmp_eq_u32 s21, 3
    s_cbranch_scc0 LF_sa_end
    """)
    side_mod(k)
    k(f"v_mov_b32 v{vPA}, 0\nglobal_load_dword v{vPD}, v{vPA}, {P(pDBG)} sc1")
    wait_flags(k, 'init3', vPD, vPA, 32, 0)
    arrive(k, SM_OFF, vPD, vPT, "s_and_b32 s26, s2, 31")
    k.stamp('modst')
    k("LF_sa_w1:")
    if not on('w1late'): w1raw(k)
    k("LF_sa_end:")
    SPINS.append(f"""
    LF_init:
    s_sub_u32 s24, s20, 80
    s_lshl_b32 s24, s24, 1
    s_add_u32 s24, s24, s21
    s_sub_u32 s24, s24, 2
    s_lshl_b32 s24, s24, 12
    s_add_u32 s24, s24, {WS_SYNC}
    v_add_u32 v30, s24, v{vL16}
    v_mov_b32 v26, 0
    v_mov_b32 v27, 0
    v_mov_b32 v28, 0
    v_mov_b32 v29, 0
    global_store_dwordx4 v30, v[26:29], {P(pWS)} sc1
    global_store_dwordx4 v30, v[26:29], {P(pWS)} offset:1024 sc1
    global_store_dwordx4 v30, v[26:29], {P(pWS)} offset:2048 sc1
    global_store_dwordx4 v30, v[26:29], {P(pWS)} offset:3072 sc1
    v_mov_b32 v31, 1
    s_waitcnt vmcnt(0)
    s_mov_b64 exec, 1
    global_atomic_add v26, v31, {P(pDBG)} sc1
    s_mov_b64 exec, -1
    s_cmp_eq_u32 s21, 3
    s_cbranch_scc1 LF_sa_w1
    s_branch LF_sa_end
    """)

def mlp_setup(k, opts):
    if opts.get('arr', '8x4') == '8x4':
        k("""
        s_and_b32 s24, s2, 7
        s_lshr_b32 s25, s2, 3
        s_lshr_b32 s22, s24, 1
        s_lshl_b32 s22, s22, 3
        s_lshr_b32 s26, s25, 2
        s_add_u32 s22, s22, s26               ; rb
        s_and_b32 s23, s24, 1
        s_lshl_b32 s23, s23, 2
        s_and_b32 s26, s25, 3
        s_add_u32 s23, s23, s26               ; j
        """)
    else:
        k("""
        s_and_b32 s22, s2, 7
        s_lshl_b32 s22, s22, 2
        s_lshr_b32 s26, s2, 6
        s_add_u32 s22, s22, s26               ; rb
        s_bfe_u32 s23, s2, 0x30003            ; j
        """)
    k(f"""
    s_mul_i32 s26, s23, 12
    s_mul_i32 s25, s21, 3
    s_add_u32 s25, s26, s25
    s_lshl_b32 s26, s25, 7
    s_add_u32 s26, s26, {WS_SYNC + F1_OFF}
    v_min_u32 v{vF1D}, 11, v1
    v_lshrrev_b32 v{vF1A}, 2, v{vF1D}
    v_lshl_add_u32 v{vF1A}, v{vF1A}, 7, s26
    v_and_b32 v{vF1D}, 3, v{vF1D}
    v_lshl_add_u32 v{vF1A}, v{vF1D}, 2, v{vF1A}
    s_lshl_b32 s24, s23, 2
    s_add_u32 s24, s24, s21
    s_mul_i32 s24, s24, 61440
    s_add_u32 s26, s24, {WS_W1F}
    """)
    srd(k, 4, pWS, 's26', 61440)
    k(f"s_add_u32 s26, s24, {WS_W2F}")
    srd(k, 8, pWS, 's26', 61440)
    k(f"s_mul_i32 s26, s22, 196608\ns_add_u32 s26, s26, {WS_H}")
    srd(k, 12, pWS, 's26', 196608)
    srd(k, 16, pOUT, 0, L * D * 2)
    k(f"""
    s_and_b32 s26, s21, 1
    s_lshl_b32 s25, s25, 6
    s_add_u32 s25, s25, {WS_V12}
    v_add_u32 v{vVA}, s26, v12
    s_xor_b32 s26, s26, 1
    s_lshl_b32 s26, s26, 1
    v_mov_b32 v{vVA+1}, s26
    v_cmp_gt_u32 vcc, 2, v12
    v_lshl_add_u32 v{vVA+2}, v13, 2, s25
    v_cndmask_b32 v{vVA}, v{vVA+1}, v{vVA}, vcc
    v_lshl_add_u32 v{vVA}, v{vVA}, 6, v{vVA+2}
    s_mul_i32 s26, s23, 320
    s_add_u32 s26, s26, 12800
    v_lshl_add_u32 v{vVA+4}, v1, 2, s26
    v_lshl_add_u32 v{vVA+5}, v13, 2, s26
    s_lshl_b32 s80, s21, 10
    s_xor_b32 s81, s80, 1024
    s_xor_b32 s82, s80, 2048
    s_xor_b32 s83, s80, 3072
    s_mul_i32 s26, s21, 3
    s_add_u32 s26, s26, 1
    s_lshr_b32 s26, s26, 1
    s_mul_i32 s27, s23, 6
    s_add_u32 s26, s26, s27
    s_lshl_b32 s26, s26, 12
    s_lshr_b32 s30, s21, 1
    s_mul_i32 s31, s30, 3
    s_add_u32 s31, s31, 1
    s_add_u32 s27, s27, s31
    s_lshl_b32 s27, s27, 12
    s_add_u32 s72, s80, s26
    s_add_u32 s73, s81, s26
    s_add_u32 s74, s82, s26
    s_add_u32 s75, s83, s26
    s_add_u32 s76, s80, s27
    s_add_u32 s77, s82, s27
    """)

def conv_setup(k):
    k(f"""
    s_mul_i32 s26, s21, {TAPCH}
    s_add_u32 s26, s26, {TAPS}
    v_sub_u32 v14, 3, v11
    v_mul_u32_u24 v14, {TCS}, v14
    v_lshl_add_u32 v14, v10, 3, v14
    v_add_u32 v14, s26, v14
    v_lshlrev_b32 v15, 4, v12
    v_sub_u32 v15, 48, v15
    v_add_u32 v{vTA}, v14, v15
    v_and_b32 v15, 1, v12                 ; G&1
    v_lshrrev_b32 v9, 1, v12              ; G>>1
    v_lshlrev_b32 v16, 3, v15
    v_sub_u32 v14, v14, v16
    v_add_u32 v14, 8, v14
    v_mul_u32_u24 v16, {2*(B3A - B5A)}, v9
    v_add_u32 v{vT2}, v14, v16
    v_mul_u32_u24 v16, {2*(B9 - B7)}, v9
    v_add_u32 v{vT3}, v14, v16
    s_mul_i32 s27, s21, {CHS}
    v_lshlrev_b32 v14, 5, v13
    v_add_u32 v14, s27, v14
    v_lshl_add_u32 v{vRD}, v12, 4, v14    ; h frag: 32a + 16G
    v_lshl_add_u32 v14, v9, 4, v14
    v_mul_u32_u24 v16, {UD}, v15
    v_add_u32 v{vWU}, v14, v16
    v_lshlrev_b32 v14, 7, v15
    v_lshl_add_u32 v14, v11, 5, v14
    v_lshl_add_u32 v14, v10, 3, v14
    v_add_u32 v14, s27, v14               ; 128(G&1) + 32r + 8cc
    v_mul_u32_u24 v16, {UD - 16}, v9
    v_sub_u32 v17, v14, v16
    v_add_u32 v{vDA}, {O5 - 16}, v17
    v_add_u32 v17, v14, v16
    v_add_u32 v{vD3}, {O7}, v17
    v_lshlrev_b32 v16, 5, v9
    v_sub_u32 v16, 16, v16
    v_add_u32 v{vDB}, v{vDA}, v16
    v_bfe_u32 v16, v1, 1, 2
    v_xor_b32 v16, s21, v16
    v_lshlrev_b32 v16, 4, v16
    v_lshl_add_u32 v16, v13, 7, v16
    v_lshl_add_u32 v16, v15, 6, v16
    v_add_u32 v{vRU}, {OU}, v16
    v_mul_u32_u24 v16, {CHS}, v10
    v_lshrrev_b32 v14, 2, v1
    s_lshl_b32 s28, s21, 4
    v_add_u32 v14, s28, v14               ; segment 0..63
    v_lshl_add_u32 v{vWH}, v14, 6, v16
    v_lshlrev_b32 v14, 8, v14
    v_lshl_add_u32 v14, v10, 4, v14
    s_lshl_b32 s29, s2, 14
    s_add_u32 s28, s29, {WS_NT}
    v_add_u32 v{vNO}, s28, v14
    v_xor_b32 v14, v10, v12
    v_and_b32 v16, 0x3c, v1
    v_lshlrev_b32 v16, 4, v16
    v_lshl_add_u32 v14, v14, 4, v16
    s_lshl_b32 s28, s21, 12
    s_add_u32 s29, s29, s28
    s_add_u32 s29, s29, {WS_NT}
    v_add_u32 v{vUO}, s29, v14
    s_add_u32 s29, s28, {WS_ST}
    v_add_u32 v{vSG}, s29, v{vL16}
    v_min_u32 v14, 2, v12
    v_mul_u32_u24 v14, 2560, v14
    v_mul_u32_u24 v16, 15360, v11
    v_add_u32 v14, v14, v16
    v_lshl_add_u32 v14, v10, 2, v14
    s_lshl_b32 s29, s2, 4
    v_add_u32 v{vMO}, s29, v14
    v_lshlrev_b32 v{vBP}, 2, v10
    v_add_u32 v{vSA}, {OS}, v{vL16}
    v_lshlrev_b32 v14, 3, v12
    v_sub_u32 v14, v14, v13
    v_add_u32 v14, 15, v14                ; 8G - i + 15
    v_and_b32 v16, 1, v14
    v_cmp_eq_u32 vcc, 1, v16
    v_lshrrev_b32 v14, 1, v14
    v_min_u32 v14, 15, v14
    v_lshl_or_b32 v14, v14, 16, v14
    """)
    for fi, (lo, hi_) in enumerate(((0, 0), (11, 13), (6, 10), (5, 11), (4, 12))):
        Wv = ((1 << (hi_ - lo + 1)) - 1) << (lo + 15)
        We = sum(((Wv >> (2 * b)) & 1) << b for b in range(16)); Wo = sum(((Wv >> (2 * b + 1)) & 1) << b for b in range(16))
        k(f"v_mov_b32 v16, {We | Wo << 16}\nv_mov_b32 v17, {Wo | (We >> 1) << 16}\nv_cndmask_b32 v16, v16, v17, vcc\nv_pk_lshrrev_b16 v16, v14, v16")
        for q in range(4): k(f"v_and_b32 v17, {0x10001 << q}, v16\nv_mul_u32_u24 v{BAND+4*fi+q}, {0x3f80 >> q}, v17")
    DUM = 2 * 1010
    S = SCT
    k(f"""
    s_mul_i32 s26, s21, {KTS}
    s_add_u32 s26, s26, {KT}
    v_mul_u32_u24 v14, 144, v1
    v_add_u32 v{vKW}, s26, v14
    v_lshrrev_b32 v15, 5, v1              ; hi
    v_lshl_add_u32 v14, v11, 1, v15
    v_mul_u32_u24 v14, 288, v14
    v_bfe_u32 v16, v1, 4, 1
    v_lshl_add_u32 v14, v16, 5, v14
    v_lshl_add_u32 v14, v10, 3, v14
    v_add_u32 v{vKR}, s26, v14
    s_mul_i32 s26, s21, {STGS}
    s_add_u32 s26, s26, {STG}
    v_mov_b32 v24, 0
    v_mov_b32 v25, 0
    v_mov_b32 v26, 0
    v_mov_b32 v27, 0
    v_add_u32 v{S+8}, s26, v{vL16}
    ds_write_b128 v{S+8}, v[24:27]
    ds_write_b128 v{S+8}, v[24:27] offset:1024
    v_mov_b32 v28, s26
    ds_write_b128 v28, v[24:27] offset:2048
    v_and_b32 v34, 1, v1                  ; odd
    v_bfe_u32 v35, v1, 1, 4               ; kappa'
    v_or_b32 v36, v34, v15
    v_mul_u32_u24 v37, 48, v34
    v_mul_u32_u24 v38, 96, v15
    v_add3_u32 v36, v36, v37, v38
    v_add_u32 v36, v36, v35
    v_lshl_add_u32 v{S}, v36, 1, s26
    v_add_u32 v39, {DUM}, v28
    v_add_u32 v36, {2*B5A}, v{S}
    v_cmp_eq_u32 vcc, 0, v35
    v_mul_u32_u24 v37, {B9 - 1 - B7}, v34
    v_lshl_add_u32 v38, v15, 4, v35
    v_cndmask_b32 v{S+1}, v36, v39, vcc
    v_sub_u32 v38, v38, v37
    v_add_u32 v38, {B9}, v38
    v_lshl_add_u32 v{S+2}, v38, 1, s26
    v_add_u32 v37, {2*(BC + 4)}, v28
    v_cmp_eq_u32 vcc, 0, v1
    v_add_u32 v40, {2*(BC + 5)}, v28
    v_add_u32 v41, {2*(B9 + 64)}, v28
    v_cndmask_b32 v{S+3}, v{S+2}, v37, vcc
    v_cndmask_b32 v{S+4}, v39, v40, vcc
    v_cndmask_b32 v{S+5}, v39, v41, vcc
    v_add_u32 v37, {2*(B5A + 32)}, v28
    v_cmp_eq_u32 vcc, 32, v1
    v_and_b32 v38, 31, v1
    v_lshlrev_b32 v38, 4, v38
    v_cndmask_b32 v{S+5}, v{S+5}, v37, vcc
    v_lshl_add_u32 v38, v15, 3, v38
    v_add_u32 v{S+6}, s26, v38            ; 16n + 8hi
    v_and_b32 v37, 30, v1
    v_cmp_eq_u32 vcc, 0, v37
    v_add_u32 v37, {2*1016 - 2*(BA+1+512)}, v28
    v_cndmask_b32 v{S+7}, v37, v{S+6}, vcc
    """)
    for i in range(16): k(f"v_mov_b32 v{KACC+i}, 0")

def cmul(k, z, a, b, t):
    k(f"v_pk_mul_f32 v[{t}:{t+1}], v[{a}:{a+1}], v[{b}:{b+1}] op_sel_hi:[1,0]")
    return f"v_pk_fma_f32 v[{z}:{z+1}], v[{a}:{a+1}], v[{b}:{b+1}], v[{t}:{t+1}] op_sel:[1,1,0] op_sel_hi:[0,1,1] neg_lo:[1,0,0]"
def cmuls(k, lst, tmp):
    for s in [cmul(k, z, a, b, tmp + 2 * i) for i, (z, a, b) in enumerate(lst)]: k(s)

def nloads():
    return "".join(f"global_load_dwordx4 {V4(NR+4*q)}, v{vNO}, {P(pWS)} offset:{64*q} {SC}\n" for q in range(4)) + f"global_load_dword v{NR+16}, v{vMO}, {P(pWS)} {SC}\n"

def hfill(r=16):
    return "".join(f"v_mov_b32 v{r+i}, -1\n" for i in range(4)) + "".join(f"buffer_store_dwordx4 {V4(r)}, v{vL16}, s[12:15], s{72+s} offen {SC}\n" for s in range(6))

def kgen(k, opts):
    AR, BR, CR, DT, DS = PRM, PRM + 2, PRM + 4, PRM + 18, PRM + 20
    TMP, LR, ACC = 14, 22, KACC
    ML = int(opts.get('modlate', 1))
    k(f"""
    s_mov_b32 s86, {LOG2E}
    s_mov_b32 s87, {INV2PI}
    s_mov_b32 s3, 0
    s_waitcnt vmcnt({20 if ML else 25})
    """)
    silu_frags(k, CDAT, LA + 2, MFR)
    k(f"s_waitcnt vmcnt({0 if ML else 5})")
    if ML: mod_dma(k, LA + 5)
    k(f"""
    {f'v_lshlrev_b32 v{DT}, 16, v{DT}' if on('ush') else ''}
    {f'v_lshlrev_b32 v{DS}, 16, v{DS}' if on('ush') else ''}
    v_mul_f32 v14, s86, v{DT}
    v_fma_f32 v15, v{DT}, s86, -v14
    v_fmac_f32 v15, {LOG2E_LO}, v{DT}
    v_exp_f32 v14, v14
    v_mul_f32 v15, {LN2}, v15
    v_fmac_f32 v14, v14, v15
    v_cmp_eq_u32 vcc, 0, v1
    v_cvt_pk_bf16_f32 v14, v14, v14
    v_lshlrev_b32 v{DT}, 16, v14
    v_cndmask_b32 v{ACC}, 0, v{DS}, vcc
    """)
    k.stamp('kparam')
    k("LF_kpass:")
    if on('ush'):
        for i in range(6): k(f"v_lshlrev_b32 v{PRM+i}, 16, v{PRM+i}")
    k(f"""
    v_pk_mul_f32 v[{LR}:{LR+1}], v[{AR}:{AR+1}], v[{DT}:{DT+1}] op_sel_hi:[1,0]
    v_pk_mul_f32 v[{LR}:{LR+1}], v[{LR}:{LR+1}], s[86:87]
    """)
    W = {1: 24, 8: 26, 256: 28, 2: 30, 3: 32, 4: 34, 5: 36, 6: 38, 7: 40, 16: 42, 32: 44, 258: 46, 260: 48, 262: 50, 264: 52, 512: 54}
    Z = [56 + 2 * i for i in range(8)]
    k(f"""
    v_pk_mul_f32 v[20:21], v[{CR}:{CR+1}], v[{BR}:{BR+1}] op_sel_hi:[1,0]
    v_mul_f32 v16, {f2u(8.0)}, v{LR}
    v_mul_f32 v17, {f2u(8.0)}, v{LR+1}
    v_mul_f32 v18, {f2u(256.0)}, v{LR}
    v_mul_f32 v19, {f2u(256.0)}, v{LR+1}
    v_fract_f32 v15, v{LR+1}
    v_fract_f32 v17, v17
    v_fract_f32 v19, v19
    v_exp_f32 v14, v{LR}
    v_exp_f32 v16, v16
    v_exp_f32 v18, v18
    v_pk_fma_f32 v[{Z[0]}:{Z[0]+1}], v[{CR}:{CR+1}], v[{BR}:{BR+1}], v[20:21] op_sel:[1,1,0] op_sel_hi:[0,1,1] neg_lo:[1,0,0]
    """)
    for i, r in enumerate((24, 26, 28)): k(f"v_cos_f32 v{r}, v{15+2*i}\nv_sin_f32 v{r+1}, v{15+2*i}")
    k(f"v_pk_mul_f32 v[{Z[0]}:{Z[0]+1}], v[{Z[0]}:{Z[0]+1}], v[{DT}:{DT+1}] op_sel_hi:[1,0]")
    for i, r in enumerate((24, 26, 28)): k(f"v_pk_mul_f32 v[{r}:{r+1}], v[{r}:{r+1}], v[{14+2*i}:{15+2*i}] op_sel_hi:[1,0]")
    for i in range(6): k(f"v_pk_mov_b32 v[{PRM+2*i}:{PRM+2*i+1}], v[{PRM+6+2*i}:{PRM+7+2*i}], v[{PRM+6+2*i}:{PRM+7+2*i}] op_sel:[0,1]")
    cmuls(k, [(W[2], W[1], W[1]), (W[16], W[8], W[8]), (W[512], W[256], W[256]), (Z[1], Z[0], W[8])], TMP)
    cmuls(k, [(W[3], W[2], W[1]), (W[4], W[2], W[2]), (W[32], W[16], W[16]), (W[258], W[256], W[2])], TMP)
    cmuls(k, [(Z[2], Z[0], W[16]), (Z[3], Z[1], W[16]), (W[5], W[4], W[1]), (W[6], W[4], W[2])], TMP)
    cmuls(k, [(W[7], W[4], W[3]), (W[260], W[256], W[4]), (W[264], W[256], W[8]), (Z[4], Z[0], W[32])], TMP)
    st = {'g': 0}
    NOW = int(opts.get('nokw', 0))
    def half(grp, vals, neg, part):
        pk = 72 + 4 * (st['g'] % 4); st['g'] += 1
        s = '-' if neg and part else ''
        for i in range(4):
            a, b = vals[2 * i], vals[2 * i + 1]
            ra = ('0' if part else '1.0') if a is None else f'{s}v{a+part}'
            k(f"v_cvt_pk_bf16_f32 v{pk+i}, {ra}, {s}v{b+part}")
        if not NOW: k(f"ds_write_b128 v{vKW}, v[{pk}:{pk+3}] offset:{16*grp + 9216*part}")
    def put(grp, vals, neg, between=None):
        half(grp, vals, neg, 0)
        if between: cmuls(k, between, TMP)
        half(grp, vals, neg, 1)
    X = {516: 88, 520: 90, 768: 92, 1024: 94, 772: 96, 1280: 98, 1536: 100, 1792: 102, 2048: W[1]}
    Y = [W[258], W[260], W[262], W[264], W[2], W[3], W[5], W[7]]
    cmuls(k, [(W[262], W[256], W[6]), (Z[5], Z[1], W[32]), (Z[6], Z[2], W[32]), (Z[7], Z[3], W[32])], TMP)
    put(0, [None, W[1], W[2], W[3], W[4], W[5], W[6], W[7]], True, [(X[516], W[512], W[4]), (X[520], W[512], W[8]), (X[768], W[512], W[256]), (X[1024], W[512], W[512])])
    put(1, [W[256], W[256], W[258], W[260], W[260], W[260], W[262], W[264]], True, [(X[772], X[768], W[4]), (X[1280], X[1024], W[256]), (X[1536], X[1024], W[512]), (X[1792], X[1024], X[768])])
    put(4, Z, False, [(Y[0], Z[4], W[32]), (Y[1], Z[5], W[32]), (Y[2], Z[6], W[32]), (Y[3], Z[7], W[32])])
    put(2, [W[512], W[512], W[512], X[516], X[516], X[516], X[520], X[520]], True, [(Y[4], Y[0], W[32]), (Y[5], Y[1], W[32]), (Y[6], Y[2], W[32]), (Y[7], Y[3], W[32])])
    k(f"s_cmp_eq_u32 s3, 1\ns_cbranch_scc1 {'LF_cmod' if on('mmid', 1) else 'LF_arr1'}\ns_cmp_eq_u32 s3, 2\ns_cbranch_scc1 LF_pol1\nLF_noarr1:")
    SPINS.append(f"LF_pol1:\ns_cmp_eq_u32 s21, 0\ns_cbranch_scc0 LF_noarr1\nglobal_load_dword v{vPD}, v{vPA}, {P(pWS)} sc1\ns_branch LF_noarr1")
    a = Asm('x'); a.names = k.names
    a("LF_arr1:")
    if not on('msw', 2): lane_consts(a); mlp_setup(a, opts)
    a("s_waitcnt vmcnt(0)")
    wait_flags(a, 'init', vPD, vPA, 32, None)
    a("s_barrier\ns_cmp_eq_u32 s21, 0\ns_cbranch_scc0 LF_arr1b")
    arrive(a, SM_OFF, vPD, vPT, "s_and_b32 s26, s2, 31")
    a("LF_arr1b:")
    poll_addr(a, S1_OFF, vPA)
    a(f"""v_lshrrev_b32 v{vPT}, 5, v1
    v_lshl_add_u32 v{vPA}, v{vPT}, 16, v{vPA}
    v_cmp_lt_u32 vcc, 47, v1
    v_cndmask_b32 v{vPT}, 8, 7, vcc""")
    a.stamp('arr1')
    a("s_mov_b32 s3, 2\ns_branch LF_kpass" if on('mmid', 1) else "s_branch LF_noarr1")
    SPINS.append('\n'.join(a.lines))
    cmuls(k, [(X[2048], X[1024], X[1024]), (Z[0], Y[4], W[32]), (Z[1], Y[5], W[32]), (Z[2], Y[6], W[32])], TMP)
    put(5, Y, False, [(Z[3], Y[7], W[32]), (Z[4], Z[0], W[32]), (Z[5], Z[1], W[32]), (Z[6], Z[2], W[32])])
    put(3, [X[768], X[1024], X[1536], X[2048], X[772], X[1280], X[1792], X[1024]], True, [(Z[7], Z[3], W[32]), (Y[0], Z[4], W[32]), (Y[1], Z[5], W[32]), (Y[2], Z[6], W[32])])
    put(6, Z, False, [(Y[3], Z[7], W[32]), (Y[4], Y[0], W[32]), (Y[5], Y[1], W[32]), (Y[6], Y[2], W[32])])
    cmuls(k, [(Y[7], Y[3], W[32])], TMP)
    put(7, Y, False)
    k.stamp('ktab_last')
    k("s_cmp_eq_u32 s3, 2\ns_cbranch_scc1 LF_pol2\nLF_nopoll1:")
    SPINS.append(f"LF_pol2:\ns_cmp_eq_u32 s21, 0\ns_cbranch_scc0 LF_nopoll1\nglobal_load_dword v{vP2}, v{vPA}, {P(pWS)} sc1\ns_branch LF_nopoll1")
    FR = 56
    order = [0, 1, 2, 3, 4, 5, 6, 7]
    def rd(s):
        return [f"ds_read_b64_tr_b16 v[{FR + 8*(s % 4) + 4*tb + 2*h}:{FR + 8*(s % 4) + 4*tb + 2*h + 1}], v{vKR} offset:{(16*(s % 4) + h)*144 + 64*tb + 9216*(s // 4)}" for tb in range(2) for h in range(2)]
    k("AUTO")
    for s in range(3):
        for t in rd(s): k(t)
    for s in range(8):
        r = FR + 8 * (s % 4)
        k(f"v_mfma_f32_32x32x16_bf16 v[{ACC}:{ACC+15}], v[{r}:{r+3}], v[{r+4}:{r+7}], v[{ACC}:{ACC+15}]")
        if s + 3 < 8:
            for t in rd(s + 3): k(t)
    if on('mmid', 1): k("MANUAL\ns_cmp_eq_u32 s3, 1\ns_cbranch_scc1 LF_arr1\ns_cmp_eq_u32 s3, 0\ns_mov_b32 s3, 1\ns_cbranch_scc1 LF_kpass")
    else: k("MANUAL\ns_cmp_eq_u32 s3, 0\ns_cbranch_scc1 LF_cmod\ns_cmp_eq_u32 s3, 1\ns_mov_b32 s3, 2\ns_cbranch_scc1 LF_kpass")
    k.stamp('kg3')
    k(f"s_cmp_eq_u32 s21, 0\ns_cbranch_scc0 LF_haven\ns_waitcnt vmcnt(1)\nv_cmp_gt_u32 vcc, v{vPT}, v{vPD}\ns_cbranch_vccz LF_haven\ns_waitcnt vmcnt(0)\nv_mov_b32 v{vPD}, v{vP2}")
    wait_flags(k, 's1', vPD, vPA, f"v{vPT}", None)
    k("LF_haven:\ns_barrier\n" + nloads())
    k.stamp('s1')
    S = SCT
    k(f"""
    v_cmp_ne_u32 vcc, 33, v1
    s_mul_i32 s26, s21, {TAPCH}
    s_add_u32 s26, s26, {TAPS}
    v_add_u32 v14, s26, v{vL16}
    v_cvt_pk_bf16_f32 v24, v{ACC}, v{ACC+1}
    v_cvt_pk_bf16_f32 v25, v{ACC+2}, v{ACC+3}
    v_cvt_pk_bf16_f32 v26, v{ACC+4}, v{ACC+5}
    v_cvt_pk_bf16_f32 v27, v{ACC+6}, v{ACC+7}
    ds_write_b64 v{S+6}, v[24:25] offset:{2*(BA+1)}
    v_cvt_pk_bf16_f32 v28, v{ACC+8}, v{ACC+9}
    v_cvt_pk_bf16_f32 v29, v{ACC+10}, v{ACC+11}
    ds_write_b64 v{S+6}, v[26:27] offset:{2*(BA+1) + 512}
    v_cvt_pk_bf16_f32 v30, v{ACC+8}, v{ACC+12}
    v_cndmask_b32 v29, 0, v29, vcc
    ds_write_b16 v{S+1}, v30
    v_cvt_pk_bf16_f32 v31, v{ACC+13}, v{ACC+14}
    ds_write_b64 v{S+7}, v[28:29] offset:{2*(BA+1) + 1024}
    v_cvt_pk_bf16_f32 v32, v{ACC+15}, v{ACC+15}
    ds_write_b16_d16_hi v{S}, v30 offset:{2*B5A + 32}
    ds_write_b16 v{S+3}, v31
    ds_write_b16 v{S+4}, v31
    ds_write_b16_d16_hi v{S+2}, v31 offset:64
    ds_write_b16 v{S+5}, v32
    AUTO
    ds_read_b128 v[24:27], v{S+8}
    ds_read_b64 v[28:29], v{S+8} offset:16
    ds_read_b128 v[48:51], v{S+8} offset:1024
    ds_read_b64 v[52:53], v{S+8} offset:1040
    """)
    for q, b in enumerate((24, 48)):
        k(f"ds_write_b128 v14, v[{b+2}:{b+5}] offset:{1024*q + 3*TCS}")
        for i in range(4): k(f"v_alignbit_b32 v{b+8+i}, v{b+i+1}, v{b+i}, 16")
        k(f"ds_write_b128 v14, v[{b+8}:{b+11}] offset:{1024*q}")
        for i in range(4): k(f"v_mov_b32 v{b+12+i}, v{b+i+1}")
        k(f"ds_write_b128 v14, v[{b+12}:{b+15}] offset:{1024*q + TCS}")
        for i in range(4): k(f"v_alignbit_b32 v{b+16+i}, v{b+i+2}, v{b+i+1}, 16")
        k(f"ds_write_b128 v14, v[{b+16}:{b+19}] offset:{1024*q + 2*TCS}")
    k("MANUAL")
    k.stamp('kout')

TA0 = 128; T20 = 200
CACC = 12; CU_ = 44; RING = 76; NRING = 8; WTMP = 108; DEC = 132

def conv(k, opts):
    tfr = [f"ds_read_b64_tr_b16 a[{TA0+4*m+2*h}:{TA0+4*m+2*h+1}], v{vTA} offset:{64*m - 8*h + 8}" for m in range(18) for h in range(2)]
    for idx, (base, mu, va) in enumerate([(B5A, 0, vT2), (B5A, 1, vT2), (B5A, 2, vT2), (B5B, 0, vT2), (B5B, 1, vT2), (B5B, 2, vT2)] + [(B7, mu, vT3) for mu in range(4)]):
        tfr += [f"ds_read_b64_tr_b16 a[{T20+4*idx+2*h}:{T20+4*idx+2*h+1}], v{va} offset:{2*(base-3) - 8 + 32*mu - 16*h}" for h in range(2)]
    t2fr = tfr[36:] if on('t2w') else []
    for t in tfr[:56 - len(t2fr)]: k(t)
    k(f"""
    s_lshl_b32 s29, s20, 12
    s_add_u32 s29, s29, {WS_X1}
    s_add_u32 s34, s68, s29
    s_addc_u32 s35, s69, 0
    s_lshl_b32 s28, s21, 12
    s_add_u32 m0, s28, {OU}
    s_mul_i32 s27, s21, {CHS}
    v_mov_b32 v12, 0
    v_mov_b32 v13, 0
    v_mov_b32 v14, 0
    v_mov_b32 v15, 0
    v_min_u32 v17, 29, v1
    v_lshl_add_u32 v17, v17, 4, s27
    v_min_u32 v18, 3, v1
    v_mul_u32_u24 v18, {UD}, v18
    v_add_u32 v18, s27, v18
    s_add_u32 s28, s21, 32
    s_waitcnt vmcnt(0)
    v_add_f32_dpp v40, v{NR+16}, v{NR+16} row_ror:4 row_mask:0xf bank_mask:0xf
    v_add_f32_dpp v40, v40, v40 row_ror:8 row_mask:0xf bank_mask:0xf
    v_cvt_pk_bf16_f32 v40, v40, v40
    v_lshlrev_b32 v40, 16, v40
    ds_bpermute_b32 v42, v{vBP}, v40
    ds_bpermute_b32 v43, v{vBP}, v40 offset:64
    v_readlane_b32 s70, v40, s28
    s_waitcnt lgkmcnt(0)
    s_barrier
    v_add_f32 v43, 1.0, v43
    v_cvt_pk_bf16_f32 v43, v43, 0
    v_lshlrev_b32 v41, 16, v43
    """)
    k.stamp('ndata')
    HT = CU_
    k(f"ds_write_b128 v17, v[12:15]\nds_write_b128 v18, v[12:15] offset:{O3 - 16}")
    for q in range(5):
        if q < 4:
            for x in range(8): k(f"v_dot2_f32_bf16 v{HT+8*q+x}, v{NR+4*q+(x>>1)}, v{41 if x & 1 else 43}, v42")
        if q > 0:
            for i in range(4): k(f"v_cvt_pk_bf16_f32 v{HT+32+4*(q-1)+i}, v{HT+8*(q-1)+2*i}, v{HT+8*(q-1)+2*i+1}")
            k(f"ds_write_b128 v{vWH}, {V4(HT+32+4*(q-1))} offset:{OH + 16*(q-1)}")
    k("s_waitcnt lgkmcnt(0)\ns_barrier")
    k.stamp('prep')
    started = set()
    def M(T, a, b):
        s = mf(CACC + 4 * T, a, b, T not in started); started.add(T); return s
    slots, items = [], []
    def item(e, kind, text, deps=()):
        items.append(dict(id=len(items), e=e, kind=kind, text=text, deps=list(deps))); return len(items) - 1
    ps = list(range(-7, 57))
    LOOK = NRING - 2
    rdtxt = lambda i: f"ds_read_b128 {V4(RING + 4*(i % NRING))}, v{vRD} offset:{64*(ps[i] + 7)}"
    ring, lastw, wwrite, ures = {}, {}, {}, {}
    DI = {'C': 0, 'A': 4, 'B': 10}
    setup = []
    if on('msw', 2):
        ms = Asm('m'); lane_consts(ms); mlp_setup(ms, opts)
        for q, t in enumerate(ms.lines): setup.append(item(q // on('msw', 2), 'sa', t.replace('v10', 'v204').replace('v11', 'v205').replace('v12', 'v206').replace('v13', 'v207'), setup[-1:]))
    img = []
    for q in range(8):
        t = f"global_load_lds_dwordx4 v{vUO if q < 4 else vSG}, {P(pWS)} offset:{1024*(q & 3)} {SC} ; @w:U" + ("\ns_add_u32 m0, m0, 16384" if q == 3 else "")
        img.append(item(1 + 2 * q, 'va', t, img[-1:]))
    if int(opts.get('w2t', 0)):
        w2 = []
        for q, t in enumerate(["s_lshr_b32 s26, s2, 5", "s_mul_i32 s26, s26, 12288", "v_lshlrev_b32 v200, 7, v1", "buffer_load_dword v201, v200, s[8:11], s26 offen",
                               "v_min_u32 v200, 3968, v200", "s_add_u32 s26, s26, 8192", "buffer_load_dword v201, v200, s[8:11], s26 offen"]):
            w2.append(item(int(opts.get('w2t')) + 2 * q, 'va', t, w2[-1:]))
    t2i = [item(100 + 2 * q, 'ds', t) for q, t in enumerate(t2fr)]
    hf = []
    for q, t in enumerate(hfill(196).strip().split('\n')): hf.append(item(4 + q if q < 4 else 20 + int(opts.get('hs', 4)) * q, 'va', t, hf[-1:] + (setup[-1:] if q >= 4 else [])))
    if on('xo', 1):
        for q in range(4): hf.append(item(int(opts.get('xe', 14)) + 4 * q, 'va', f"global_store_dwordx4 v{vL16}, v[196:199], s[34:35] offset:{1024*q} {SC}", hf[3:4]))
    ubar = None
    for i, p in enumerate(ps):
        if i + LOOK < len(ps): ring[i + LOOK] = item(len(slots), 'ring', rdtxt(i + LOOK))
        b = V4(RING + 4 * (i % NRING)); dep = [ring[i]] if i in ring else []
        for T in range(8):
            m = 8 * T - p
            if 0 <= m <= 16: slots.append((M(T, A4(TA0 + 4 * m), b), dep))
            if T >= 4 and m == 32: slots.append((M(T, A4(TA0 + 68), b), dep))
        if p % 8 == 0 and 0 <= p <= 40:
            T = p // 8
            for pr, off in enumerate((O3, O7)):
                if pr == 1 and T >= 4: continue
                t = WTMP + 8 * pr; o = WTMP + 16 + 4 * pr
                for wi in range(2): slots.append((mf(t + 4 * wi, V4(BAND + 4 + 8 * pr + 4 * wi), b, True), dep + lastw.get(pr, [])))
                e = len(slots) + 3
                c = [item(e, 'va', f"v_cvt_pk_bf16_f32 v{o+q}, v{t+2*q}, v{t+2*q+1}") for q in range(4)]
                s0 = item(e + 3, 'va', f"v_permlane16_swap_b32 v{o}, v{o+2}", c)
                s1 = item(e + 3, 'va', f"v_permlane16_swap_b32 v{o+1}, v{o+3}", c)
                w = item(e + 4, 'ds', f"ds_write_b128 v{vWU}, {V4(o)} offset:{off + 512*T}", [s0, s1])
                lastw[pr] = [w]; wwrite.setdefault(T, []).append(w)
            for kind in 'CAB':
                if kind == 'C' and T > 3: continue
                va = {'A': vDA, 'B': vDB, 'C': vD3}[kind]
                r = DEC + 4 * (DI[kind] + T)
                lastw[(kind, T)] = [item(len(slots) + 4, 'ds', f"ds_read_b64_tr_b16 v[{r+2*h}:{r+2*h+1}], v{va} offset:{512*T + 256*h}", wwrite[T]) for h in range(2)]
        if p == 24: ubar = item(len(slots), 'va', "s_barrier ; @r:U", img)
        if p in (26, 29, 33, 36, 39, 44, 48, 52):
            T = (26, 29, 33, 36, 39, 44, 48, 52).index(p)
            ures[T] = item(len(slots), 'ds', f"ds_read_b128 {V4(CU_ + 4*T)}, v{vRU} offset:{2048*T}", [ubar])
    E0 = int(opts.get('e0', 70)); NE1 = int(opts.get('ne1', 20))
    f0_ = item(E0, 'va', f"global_load_dword v{vF1D}, v{vF1A}, {P(pWS)} sc1", setup[-1:] + hf)
    f1 = item(E0 + 45, 'va', f"v_cmp_gt_u32 vcc, 1, v{vF1D}\ns_cmp_eq_u64 vcc, 0\ns_cselect_b32 s6, 61440, 0", [f0_])
    ld = Loader(); prev = f1
    for i in range(NE1): prev = item(E0 + 47 + i * (198 - E0 - 52) // NE1, 'va', ld.w1(), [prev])
    fm = {}; ndirect = len(slots)
    allw = [w for ws_ in wwrite.values() for w in ws_]
    for T in range(8):
        idr = RING + 4 * (T % 4)
        slots.append((f"v_mfma_f32_16x16x32_bf16 {V4(idr)}, {V4(BAND)}, {V4(CU_ + 4*T)}, 0", [ures[T]] + fm.get(T - 4, [])))
        e0 = len(slots) + 3
        for kind, b0, nmu, t0 in (('C', 4, 4, 6), ('A', 2, 3, 0), ('B', 2, 3, 3)):
            for mu in range(nmu):
                P_ = T - b0 - mu
                if P_ >= 0: slots.append((M(T, V4(DEC + 4 * (DI[kind] + P_)), A4(T20 + 4 * (t0 + mu))), lastw[(kind, P_)] + t2i))
        e = len(slots) + 3
        sr = (202, 92, 100)[T % 3]
        sd = [item(ndirect - (8 if T == 0 else 0), 'ds', f"ds_read_b128 {V4(sr+4*h)}, v{vSA} offset:{2048*T + 1024*h}", [ubar] + fm.get(T - 3, [])) for h in range(2)]
        f0 = [item(e0, 'va', f"v_fma_f32 v{idr+r}, v{idr+r}, v{sr+2*r}, v{sr+2*r+1}", sd) for r in range(4)]
        fm[T] = [item(e, 'va', f"v_fma_f32 v{CACC+4*T+r}, v{CACC+4*T+r}, s70, v{idr+r}", f0) for r in range(4)]
        o = WTMP + 4 * (T >> 1) + 2 * (T & 1)
        fm[('c', T)] = [item(e, 'va', f"v_cvt_pk_bf16_f32 v{o+h}, v{CACC+4*T+2*h}, v{CACC+4*T+2*h+1}", fm[T] + allw) for h in range(2)]
        if T & 1: item(e, 'va', f"global_store_dwordx4 v{vL16}, {V4(WTMP + 4*(T >> 1))}, s[34:35] offset:{1024*(T >> 1)} {SC}", fm[('c', T)] + fm[('c', T - 1)] + [f1])
    k("AUTO")
    for i in range(LOOK): k(rdtxt(i))
    weave(k, slots, items)
    k("MANUAL")
    k.stamp('convend')

def weave(k, slots, items):
    done = set()
    def emit(n):
        if n in done: return
        for d in items[n]['deps']: emit(d)
        done.add(n); k(items[n]['text'])
    def pick(kinds, i):
        for it in items:
            if it['id'] not in done and it['kind'] in kinds and it['e'] <= i and all(d in done for d in it['deps']): return it['id']
        return None
    for i, (m, deps) in enumerate(slots):
        for d in deps: emit(d)
        k(m)
        n = pick(('ring',), i)
        if n is None: n = pick(('ds',), i)
        if n is not None: emit(n)
        for _ in range(3):
            n2 = pick(('sa',), i)
            if n2 is not None: emit(n2)
        for _ in range(1 if n is not None else 2):
            n2 = pick(('va',), i)
            if n2 is not None: emit(n2)
    for it in items: emit(it['id'])

def side(k, opts):
    k(f"""
    s_lshr_b32 s34, s20, 2
    s_and_b32 s35, s20, 3
    s_lshl_b32 s32, s34, 2
    s_add_u32 s32, s32, s21
    """)
    if on('w1late'):
        k(f"""
    v_lshrrev_b32 v2, 3, v1
    v_and_b32 v3, 6, v2
    v_and_b32 v4, 7, v1
    v_xor_b32 v3, v3, v4
    v_mul_u32_u24 v2, 3072, v2
    v_lshl_add_u32 v2, v3, 4, v2
    s_mul_i32 s33, s35, 160
    s_mul_i32 s26, s21, 40
    s_add_u32 s33, s33, s26
    s_mul_i32 s33, s33, 3072
    s_lshl_b32 s26, s34, 7
    s_add_u32 s33, s33, s26
    v_add_u32 v2, s33, v2
    s_mul_i32 s26, s21, 5120
    s_add_u32 m0, s26, {W1R}
    s_lshr_b32 s24, s20, 1
    s_and_b32 s25, s20, 1                 ; half
    """)
        for i in range(5):
            k(f"global_load_lds_dwordx4 v2, {P(pW1)}")
            k(f"s_add_u32 m0, m0, 1024\nv_add_u32 v2, {8*3072}, v2" if i < 4 else f"s_add_u32 m0, s26, {W2R}")
    else:
        k(f"""
    s_mul_i32 s26, s21, 5120
    s_add_u32 m0, s26, {W2R}
    s_lshr_b32 s24, s20, 1
    s_and_b32 s25, s20, 1                 ; half
    """)
    k(f"""
    s_mul_i32 s33, s24, {32*1280}
    s_mul_i32 s26, s25, 640
    s_add_u32 s33, s33, s26
    s_mul_i32 s27, s21, 320
    """)
    for i in range(5):
        k(f"""
        v_add_u32 v3, {64*i}, v1
        v_add_u32 v3, s27, v3
        v_mul_u32_u24 v4, 1639, v3
        v_lshrrev_b32 v4, 16, v4
        v_mul_u32_u24 v4, 640, v4
        v_lshl_add_u32 v3, v3, 4, v4
        v_add_u32 v3, s33, v3
        global_load_lds_dwordx4 v3, {P(pW2)}
        """)
        if i < 4: k("s_add_u32 m0, m0, 1024")
    lane_consts(k)
    k(f"""
    v_lshl_add_u32 v9, v12, 2, v11
    v_mul_u32_u24 v9, 640, v9
    v_lshl_add_u32 v9, v10, 3, v9
    s_mul_i32 s26, s21, 160
    s_add_u32 s26, s26, {W2R}
    v_add_u32 v9, s26, v9
    v_lshrrev_b32 v5, 1, v12
    v_and_b32 v6, 1, v12
    v_lshlrev_b32 v5, 4, v5
    v_lshl_add_u32 v5, v6, 2, v5          ; 16(G>>1) + 4(G&1)
    v_add_u32 v2, v5, v11
    v_and_b32 v3, 6, v2
    s_lshl_b32 s26, s21, 1
    v_xor_b32 v3, s26, v3
    v_lshrrev_b32 v4, 1, v10
    v_add_u32 v3, v3, v4
    v_lshlrev_b32 v3, 4, v3
    v_lshl_add_u32 v3, v2, 7, v3
    v_and_b32 v4, 1, v1
    v_lshl_add_u32 v3, v4, 3, v3
    v_add_u32 v130, {W1R}, v3
    ; W2F destination: ((j*4 + KS/12)*12 + order(KS%12))*5 KB, j = 4*half + wave
    s_mul_hi_u32 s26, s24, 0x15555556
    s_mul_i32 s27, s26, 12
    s_sub_u32 s27, s24, s27
    s_lshl_b32 s27, s27, 2
    s_mov_b32 s28, {KORD & 0xffffffff}
    s_mov_b32 s29, {KORD >> 32}
    s_lshr_b64 s[28:29], s[28:29], s27
    s_and_b32 s27, s28, 15
    s_lshl_b32 s28, s25, 2
    s_add_u32 s28, s28, s21
    s_lshl_b32 s28, s28, 2
    s_add_u32 s26, s26, s28
    s_mul_i32 s26, s26, 12
    s_add_u32 s26, s26, s27
    s_mul_i32 s26, s26, 5120
    s_add_u32 s26, s26, {WS_W2F}
    v_add_u32 v129, s26, v{vL16}
    s_mul_i32 s26, s35, 640
    s_add_u32 s26, s26, 7680
    v_lshl_add_u32 v14, v1, 2, s26
    v_and_b32 v15, 31, v1
    v_lshl_add_u32 v15, v15, 2, s26
    ; W1F destination
    s_mul_hi_u32 s26, s32, 0x55555556
    s_mul_i32 s27, s26, 3
    s_sub_u32 s27, s32, s27
    s_add_u32 s28, s27, 2
    s_cmp_ge_u32 s28, 3
    s_cselect_b32 s29, 3, 0
    s_sub_u32 s28, s28, s29
    s_bitcmp1_b32 s26, 0
    s_cselect_b32 s27, s28, s27           ; pass
    s_mul_i32 s26, s26, 60
    s_mul_i32 s28, s35, 10
    s_add_u32 s28, s28, s27
    s_mul_i32 s29, s35, 5
    s_add_u32 s29, s29, 40
    s_cmp_lt_u32 s27, 2
    s_cselect_b32 s28, s28, s29
    s_cselect_b32 s33, 2, 1
    s_lshl_b32 s33, s33, 10
    s_add_u32 s26, s26, s28
    s_lshl_b32 s26, s26, 10
    s_add_u32 s26, s26, {WS_W1F}
    v_add_u32 v128, s26, v{vL16}
    s_lshl_b32 s26, s21, 10
    s_add_u32 s26, s26, {VRED}
    v_lshl_add_u32 v6, v1, 2, s26
    v_and_b32 v7, 31, v1
    v_lshl_add_u32 v2, v7, 1, s26
    v_lshl_add_u32 v7, v7, 2, s26
    v_lshl_add_u32 v4, v1, 1, s26
    v_lshl_add_u32 v3, v5, 1, s26
    v_lshl_add_u32 v5, v5, 2, s26
    s_mul_i32 s26, s35, 12288
    s_lshl_b32 s27, s32, 6
    s_add_u32 s26, s26, s27
    s_add_u32 s26, s26, {WS_V12}
    v_lshl_add_u32 v127, v12, 4, s26
    v_add_u32 v126, 6144, v127
    s_lshl_b32 s26, s32, 7
    s_lshl_b32 s27, s35, 2
    s_add_u32 s26, s26, s27
    s_add_u32 s26, s26, {WS_SYNC + F1_OFF}
    v_mov_b32 v125, s26
    v_mov_b32 v124, 1
    v_mov_b32 v100, 0x3f803f80
    v_mov_b32 v101, 0x3f803f80
    v_mov_b32 v102, 0x3f803f80
    v_mov_b32 v103, 0x3f803f80
    """)
    poll_addr(k, SM_OFF, vPA)
    k("s_waitcnt vmcnt(0)\ns_barrier")
    k.stamp('w1raw')
    k(f"v_bfe_u32 v{vPT}, v1, 4, 1\nv_sub_u32 v{vPT}, 8, v{vPT}\nAUTO")
    for dt in range(5):
        for h in range(2): k(f"ds_read_b64_tr_b16 v[{16+4*dt+2*h}:{17+4*dt+2*h}], v9 offset:{10240*h + 32*dt}")
    for i in range(5):
        for h in range(2): k(f"ds_read_b64_tr_b16 v[{40+4*i+2*h}:{41+4*i+2*h}], v130 offset:{4096*i + 1024*h}")
    for i in range(5):
        for q in range(4): k(f"v_lshlrev_b32 v{136+8*i+2*q}, 16, v{40+4*i+q}\nv_and_b32 v{137+8*i+2*q}, 0xffff0000, v{40+4*i+q}")
    k(f"s_cmp_eq_u32 s21, 0\ns_cbranch_scc0 LF_sd2\nglobal_load_dword v{vPD}, v{vPA}, {P(pWS)} sc1")
    wait_flags(k, 'sm', vPD, vPA, f"v{vPT}", None, int(opts.get('slp', 8)))
    k("LF_sd2:\ns_barrier")
    k.stamp('s1')
    for kq in range(4):
        for wh in range(2):
            for c in range(3):
                k(f"global_load_dword v{60 + 6*kq + 3*wh + c}, v{14 if c < 2 else 15}, {P(pWS)} offset:{2560*wh + 256*c} {SC}")
        if kq < 3: k("v_add_u32 v14, 15360, v14\nv_add_u32 v15, 15360, v15")
    for dt in range(5):
        k(f"global_store_dwordx4 v129, {V4(16+4*dt)}, {P(pWS)} {SC}" + ("\nv_add_u32 v129, 1024, v129" if dt < 4 else ""))
    for i in range(3): k(f"v_pk_add_f32 v[{60+2*i}:{61+2*i}], v[{60+2*i}:{61+2*i}], v[{66+2*i}:{67+2*i}]")
    for i in range(3): k(f"v_pk_add_f32 v[{72+2*i}:{73+2*i}], v[{72+2*i}:{73+2*i}], v[{78+2*i}:{79+2*i}]")
    for i in range(3): k(f"v_pk_add_f32 v[{60+2*i}:{61+2*i}], v[{60+2*i}:{61+2*i}], v[{72+2*i}:{73+2*i}]")
    for c in range(3): k(f"v_cvt_pk_bf16_f32 v{60+c}, v{63+c}, v{60+c}")
    for c in range(3): k(f"v_lshlrev_b32 v{63+c}, 16, v{60+c}\nds_write_b16_d16_hi v{4 if c < 2 else 2}, v{60+c} offset:{640 + 128*c}")
    for c in range(3): k(f"v_add_f32 v{63+c}, 1.0, v{63+c}")
    for c in range(3): k(f"v_cvt_pk_bf16_f32 v{63+c}, v{63+c}, v{63+c}")
    for c in range(3): k(f"v_lshlrev_b32 v{63+c}, 16, v{63+c}\nds_write_b32 v{6 if c < 2 else 7}, v{63+c} offset:{256*c}")
    k.stamp('ndata')
    for i in range(5):
        g = 180 + 12 * i
        for h in range(2): k(f"ds_read_b128 {V4(g+4*h)}, v5 offset:{128*i + 32*h}")
        for h in range(2): k(f"ds_read_b64 v[{g+8+2*h}:{g+9+2*h}], v3 offset:{640 + 64*i + 16*h}")
    for i in range(5):
        g = 180 + 12 * i; u = 136 + 8 * i; o4 = 64 + 4 * i
        for q in range(4): k(f"v_pk_mul_f32 v[{u+2*q}:{u+2*q+1}], v[{u+2*q}:{u+2*q+1}], v[{g+2*q}:{g+2*q+1}]")
        for q in range(4): k(f"v_cvt_pk_bf16_f32 v{o4+q}, v{u+2*q}, v{u+2*q+1}")
        k(f"global_store_dwordx4 v128, {V4(o4)}, {P(pWS)} {SC} ; @w:W1F" + ("\nv_add_u32 v128, s33, v128" if i < 4 else ""))
    for i in range(5):
        k(mf(112, V4(64 + 4 * i), V4(100), i == 0))
        k(mf(116, V4(40 + 4 * i), V4(188 + 12 * i), i == 0))
    k(f"""
    s_mov_b32 exec_lo, 0x00010001
    s_mov_b32 exec_hi, 0x00010001
    global_store_dwordx4 v127, v[112:115], {P(pWS)} {SC} ; @w:W1F
    global_store_dwordx4 v126, v[116:119], {P(pWS)} {SC} ; @w:W1F
    s_mov_b64 exec, -1
    """)
    k(f"s_mov_b64 exec, 1 ; @r:W1F\nglobal_store_dword v125, v124, {P(pWS)} sc1\ns_mov_b64 exec, -1\nMANUAL")
    k.stamp('f1pub')

ST = 16; V12 = 24; ACA, ACB = 48, 80; BF = 96; NBF = 6; TMP = 192; PKD = 208; SQ, SM, ONES = 224, 228, 232; XA = 236
AC2 = 24; HR = 104; NRK = 8; GB = 232; HA = 4
BORD = list(range(20 - NBF, 20)) + list(range(20 - NBF))
W2SLOT = list(range(40)) + [40 + ks for ks in BORD]

class Loader:
    def __init__(self): self.n1 = 0; self.n2 = 0; self.blk = {}
    def txt(self, n, slot, srd_, sreg):
        t = ""
        if self.blk.get(sreg) != n // 4: t = f"s_mov_b32 s{sreg}, {n // 4 * 4096}\n"; self.blk[sreg] = n // 4
        return t + f"buffer_load_dwordx4 a[{4*slot}:{4*slot+3}], v{vL16}, s[{srd_}:{srd_+3}], s{sreg} offen offset:{(n % 4) * 1024} {SC}"
    def w1(self): self.n1 += 1; return self.txt(W2SLOT[self.n1 - 1], W2SLOT[self.n1 - 1], 4, 28)
    def w2(self):
        self.n2 += 1; n = self.n2 - 1; slot = W2SLOT[n]
        if not on('rot'): return self.txt(n, slot, 8, 29)
        return f"buffer_load_dwordx4 a[{4*slot}:{4*slot+3}], v{vL16 if n % 5 < 4 else 2}, s[8:11], s{36 + n // 5} offen offset:{(n % 5 % 4) * 1024} {SC}"
    def next(self, free):
        if self.n1 < 60: return self.w1()
        if self.n2 < min(free, 60): return self.w2()
        return None

def breads(ks, buf):
    b = BF + 16 * (buf % NBF)
    return [f"ds_read_b64_tr_b16 v[{b+4*s+2*h}:{b+4*s+2*h+1}], v{XA + s + (4 if ks >= 10 else 0)} offset:{4096*(ks % 10) + 1024*h}" for s in range(4) for h in range(2)]

def epilogue(acc, p, dst, dstep):
    v1, v2 = V12 + 8 * p, V12 + 8 * p + 4
    o = []
    for s in range(4):
        for h in range(2):
            a = acc + 4 * s + 2 * h
            o.append(f"v_pk_fma_f32 v[{a}:{a+1}], v[{v1+2*h}:{v1+2*h+1}], v[{ST+2*s}:{ST+2*s+1}], v[{a}:{a+1}] op_sel_hi:[1,0,1] neg_lo:[1,0,0] neg_hi:[1,0,0]")
    for s in range(4):
        for h in range(2):
            a = acc + 4 * s + 2 * h
            o.append(f"v_pk_fma_f32 v[{a}:{a+1}], v[{a}:{a+1}], v[{ST+2*s}:{ST+2*s+1}], v[{v2+2*h}:{v2+2*h+1}] op_sel:[0,1,0] op_sel_hi:[1,1,1]")
    o += [f"v_exp_f32 v{TMP+i}, v{acc+i}" for i in range(16)]
    o += [f"v_pk_add_f32 v[{TMP+2*i}:{TMP+2*i+1}], v[{TMP+2*i}:{TMP+2*i+1}], 1.0 op_sel_hi:[1,0]" for i in range(8)]
    o += [f"v_rcp_f32 v{TMP+i}, v{TMP+i}" for i in range(16)]
    o += [f"v_pk_mul_f32 v[{acc+2*i}:{acc+2*i+1}], v[{acc+2*i}:{acc+2*i+1}], v[{TMP+2*i}:{TMP+2*i+1}]" for i in range(8)]
    o += [f"v_cvt_pk_bf16_f32 v{dst + dstep*s + h}, v{acc+4*s+2*h}, v{acc+4*s+2*h+1}" for s in range(4) for h in range(2)]
    return o

def sprinkle(k, ops, extra):
    extra = [e for e in extra if e]
    step = len(ops) / (len(extra) + 1); nxt = step
    for i, o in enumerate(ops):
        k(o)
        while extra and i + 1 >= nxt: k(extra.pop(0)); nxt += step
    for e in extra: k(e)

def mlp(k, opts):
    PRE1 = int(opts.get('pre1', 4)); PB = int(opts.get('pb', 56))
    ld = Loader()
    ld.n1 = int(opts.get('ne1', 20))
    if not on('xo', 1):
        for i in range(PRE1): k(ld.w1() + " ; @skip")
        k(f"s_waitcnt vmcnt({PRE1})")
    k(f"s_mov_b32 s71, 0\ns_barrier\ns_cmp_eq_u32 s21, 0\ns_cbranch_scc0 LF_m1")
    arrive(k, S2_OFF, 12, 13)
    k("LF_m1:")
    k.stamp('arr2')
    k("s_mov_b32 s92, 0")
    k(f"s_cmp_eq_u32 s6, 0\ns_cbranch_scc0 LF_w1ok\nglobal_load_dword v{vF1D}, v{vF1A}, {P(pWS)} sc1")
    wait_flags(k, 'f1', vF1D, vF1A, 1, 0)
    k("s_mov_b32 s6, 61440")
    l2 = Loader()
    while l2.n1 < ld.n1: k(l2.w1())
    k("LF_w1ok:"); ld.blk = {}
    k.stamp('w1ok')
    for kq in range(4):
        k(f"global_load_dword v{48+2*kq}, v{vVA+4}, {P(pWS)} {SC}\nglobal_load_dword v{49+2*kq}, v{vVA+5}, {P(pWS)} offset:256 {SC}")
        if kq < 3: k(f"v_add_u32 v{vVA+4}, 15360, v{vVA+4}\nv_add_u32 v{vVA+5}, 15360, v{vVA+5}")
    for i in range(8): k(f"global_load_dword v{56+i}, v{vVA}, {P(pWS)} {SC}" + (f"\nv_add_u32 v{vVA}, 6144, v{vVA}" if i < 7 else ""))
    n0 = ld.n1
    kmain = k; k = Asm('s'); k.names = kmain.names
    k(f"""
    s_mul_i32 s26, s21, 320
    s_add_u32 s26, s26, {GBL}
    v_lshl_add_u32 v12, v1, 2, s26
    v_and_b32 v13, 15, v1
    v_lshl_add_u32 v13, v13, 2, s26
    s_lshl_b32 s26, s21, 9
    s_add_u32 s26, s26, {GBL + 1280}
    v_lshl_add_u32 v15, v1, 2, s26
    v_lshrrev_b32 v14, 4, v1
    v_lshl_add_u32 v14, v14, 4, s26
    SMALL
    v_pk_add_f32 v[56:57], v[56:57], v[58:59]
    v_pk_add_f32 v[60:61], v[60:61], v[62:63]
    v_pk_add_f32 v[56:57], v[56:57], v[60:61]
    v_mul_f32 v57, {LOG2E + 0x80000000}, v57
    ds_write_b32 v15, v56
    ds_write_b32 v15, v57 offset:256
    ds_read_b128 {V4(V12)}, v14
    ds_read_b128 {V4(V12+4)}, v14 offset:256
    ds_read_b128 {V4(V12+8)}, v14 offset:64
    ds_read_b128 {V4(V12+12)}, v14 offset:320
    ds_read_b128 {V4(V12+16)}, v14 offset:128
    ds_read_b128 {V4(V12+20)}, v14 offset:384
    v_pk_add_f32 v[48:49], v[48:49], v[50:51]
    v_pk_add_f32 v[52:53], v[52:53], v[54:55]
    v_pk_add_f32 v[48:49], v[48:49], v[52:53]
    v_cvt_pk_bf16_f32 v48, v48, v49
    v_and_b32 v49, 0xffff0000, v48
    v_lshlrev_b32 v48, 16, v48
    v_mul_f32 v48, {LN2 + 0x80000000}, v48
    v_mul_f32 v49, {LN2 + 0x80000000}, v49
    ds_write_b32 v12, v48
    ds_write_b32 v13, v49 offset:256
    v_lshrrev_b32 v14, 4, v1              ; G
    v_bfe_u32 v12, v1, 2, 2               ; r
    v_and_b32 v13, 1, v14
    v_lshl_add_u32 v15, v13, 2, v12
    v_lshrrev_b32 v13, 1, v14
    v_lshl_add_u32 v13, v13, 4, v15
    v_lshlrev_b32 v13, 7, v13
    v_and_b32 v12, 1, v1
    v_lshl_add_u32 v13, v12, 3, v13
    v_bfe_u32 v12, v1, 1, 1
    v_lshl_add_u32 v13, v12, 4, v13
    v_and_b32 v15, 6, v15
    """)
    for s in range(4):
        k(f"s_xor_b32 s26, s21, {s}\ns_lshl_b32 s26, s26, 1\nv_xor_b32 v12, s26, v15\nv_lshl_add_u32 v{XA+s}, v12, 4, v13\nv_add_u32 v{XA+4+s}, 40960, v{XA+s}")
    k(f"""
    v_lshrrev_b32 v12, 3, v1
    v_and_b32 v13, 6, v12
    v_and_b32 v15, 7, v1
    v_xor_b32 v13, v13, v15
    v_lshlrev_b32 v12, 12, v12
    v_lshl_add_u32 v3, v13, 4, v12
    s_lshl_b32 s26, s21, 15
    s_lshl_b32 s27, s22, 7
    s_add_u32 s26, s26, s27
    s_add_u32 s26, s26, {WS_X1}
    v_add_u32 v3, s26, v3
    s_lshl_b32 s26, s21, 10
    s_mov_b32 m0, s26
    v_mov_b32 v{ONES}, 0x3f803f80
    v_mov_b32 v{ONES+1}, 0x3f803f80
    v_mov_b32 v{ONES+2}, 0x3f803f80
    v_mov_b32 v{ONES+3}, 0x3f803f80
    s_lshr_b32 s30, s21, 1
    s_lshl_b32 s30, s30, 12
    s_add_u32 s30, s30, {RED}
    s_and_b32 s31, s21, 1
    s_lshl_b32 s31, s31, 3
    v_add_u32 v244, s30, v{vL16}
    v_add_u32 v245, s31, v244
    s_lshl_b32 s26, s22, 9
    s_add_u32 s26, s26, {WS_SYNC + F3_OFF}
    s_lshr_b32 s27, s23, 1
    s_lshl_b32 s27, s27, 7
    s_and_b32 s30, s23, 1
    s_lshl_b32 s30, s30, 4
    s_add_u32 s27, s27, s30
    s_lshl_b32 s30, s21, 2
    s_add_u32 s27, s27, s30
    s_add_u32 s27, s27, s26
    v_mov_b32 v10, s27
    s_lshl_b32 s30, s21, 7
    s_add_u32 s26, s26, s30
    v_and_b32 v11, 7, v1
    v_lshl_add_u32 v11, v11, 2, s26
    s_mul_i32 s78, s21, {12*4096}
    v_and_b32 v9, 15, v1
    v_lshlrev_b32 v9, 3, v9
    s_lshl_b32 s26, s21, 7
    s_add_u32 s26, s26, {STAT}
    v_add_u32 v9, s26, v9
    v_and_b32 v13, 3, v1
    v_cmp_eq_u32 s[84:85], 1, v13
    v_cmp_eq_u32 s[86:87], 2, v13
    v_cmp_eq_u32 s[88:89], 3, v13
    v_bfe_u32 v15, v1, 2, 2
    v_cmp_eq_u32 s[90:91], v14, v15
    """)
    for s in range(4): k(f"v_add_u32 v{HA+s}, s{80+s}, v{vL16}")
    tail_addr = f"""
    s_lshl_b32 s26, s21, 1
    v_lshrrev_b32 v3, 4, v1
    v_bfe_u32 v0, v1, 2, 2
    v_lshl_add_u32 v0, v3, 2, v0
    v_and_b32 v16, 6, v0
    v_xor_b32 v16, s26, v16
    v_bfe_u32 v17, v1, 1, 1
    v_add_u32 v16, v16, v17
    v_lshlrev_b32 v16, 4, v16
    v_lshl_add_u32 v16, v0, 7, v16
    v_and_b32 v17, 1, v1
    v_lshl_add_u32 v16, v17, 3, v16
    s_mul_i32 s26, s23, {80*128}
    v_add_u32 v16, s26, v16
    s_mul_i32 s74, s21, 15360
    s_add_u32 s74, s74, {RED}
    v_and_b32 v17, 15, v1
    v_mul_u32_u24 v17, 176, v17
    v_lshl_add_u32 v17, v3, 3, v17
    v_add_u32 v17, s74, v17
    v_add_u32 v18, s74, v{vL16}
    s_mul_i32 s26, s21, 320
    s_add_u32 s26, s26, {GBL}
    v_lshl_add_u32 v22, v3, 4, s26
    s_lshr_b32 s26, s22, 3
    s_lshl_b32 s26, s26, 9
    s_and_b32 s27, s22, 1
    s_lshl_b32 s27, s27, 7
    s_add_u32 s26, s26, s27
    s_bfe_u32 s27, s22, 0x20001
    s_lshl_b32 s27, s27, 2
    s_add_u32 s26, s26, s27
    s_lshl_b32 s27, s21, 5
    s_add_u32 s26, s26, s27
    s_mul_i32 s26, s26, 1280
    s_mul_i32 s27, s23, 160
    s_add_u32 s75, s26, s27
    """
    first = ""
    for s in range(1, 4): first += f"s_xor_b32 s26, s21, {s}\ns_mul_i32 s26, s26, 15360\ns_add_u32 s26, s26, {RED + 5120*(s-1)}\nv_add_u32 v{4+s}, s26, v{vL16}\n"
    for i in range(3):
        tail_addr += f"""
        v_add_u32 v23, {64*i}, v1
        v_mul_u32_u24 v2, 6554, v23
        v_lshrrev_b32 v2, 16, v2
        v_mul_u32_u24 v3, 10, v2
        v_sub_u32 v23, v23, v3
        v_mul_u32_u24 v3, 176, v2
        v_lshl_add_u32 v3, v23, 4, v3
        v_add_u32 v{19+i}, s74, v3
        v_bfe_u32 v3, v2, 2, 1
        v_lshlrev_b32 v3, 8, v3
        v_bfe_u32 v0, v2, 3, 1
        v_lshl_add_u32 v3, v0, 4, v3
        v_and_b32 v0, 3, v2
        v_add_u32 v3, v3, v0
        v_mul_u32_u24 v3, 1280, v3
        v_lshl_add_u32 v{252+i}, v23, 4, v3
        """
    tail_addr += "v_lshrrev_b32 v2, 5, v1\nv_lshlrev_b32 v2, 30, v2\nv_add_u32 v254, v254, v2\n"
    if on('stash', 1):
        PARK = [16, 17, 18, 19, 20, 21, 22, 252, 253, 254]
        k(tail_addr.replace('v3', 'v12').replace('v0', 'v13').replace('s74', 's93').replace('s75', 's94'))
        for n, r in enumerate(PARK): k(f"v_accvgpr_write_b32 a{240+n}, v{r}")
        k(first.replace('v5,', 'v16,').replace('v6,', 'v17,').replace('v7,', 'v18,'))
        for n in range(3): k(f"v_accvgpr_write_b32 a{250+n}, v{16+n}")
        tail_addr = "".join(f"v_accvgpr_read_b32 v{r}, a{240+n}\n" for n, r in enumerate(PARK))
        first = "".join(f"v_accvgpr_read_b32 v{5+n}, a{250+n}\n" for n in range(3))
    if on('rot'):
        KP = sum(KSEQ[i] << (4 * i) for i in range(8)); KS = sum(KSEQ[8 + i] << (4 * i) for i in range(4))
        k(f"s_lshl_b32 s26, s23, 1\ns_add_u32 s26, s26, s22\ns_mul_i32 s26, s26, {on('rot')}\nv_add_u32 v2, 4096, v{vL16}")
        for i in range(12):
            m, b, K_ = (7, 0, KP) if i < 8 else (3, 40960, KS)
            k(f"s_add_u32 s27, s26, {i}\ns_and_b32 s27, s27, {m}\ns_mul_i32 s{36+i}, s27, 5120\ns_lshl_b32 s27, s27, 2\ns_lshr_b32 s27, {K_}, s27\ns_and_b32 s27, s27, 15\ns_lshl_b32 s27, s27, 12\ns_add_u32 s{48+i}, s27, s78")
            if b: k(f"s_add_u32 s{36+i}, s{36+i}, {b}")
    lines = k.lines; k = kmain
    cut_ = lines.index('SMALL')
    nsm = next(i for i, l in enumerate(lines) if i > cut_ and l.startswith('v_lshrrev_b32 v14, 4, v1'))
    pre, small, rest = lines[:cut_], lines[cut_ + 1:nsm], lines[nsm:]
    ren = lambda ls: [re.sub(r'\bv1([2-5])\b', lambda m: f"v{64 + int(m.group(1))}", l) for l in ls]
    W = [ld.w1() for _ in range(PB - n0)]
    PQ = on('pq', 0); Wq = W[len(W) - PQ:]; W = W[:len(W) - PQ]
    nw = len(W) * len(rest) // (len(rest) + 40)
    sprinkle(k, rest, W[:nw])
    k('\n'.join(ren(pre)))
    k(f"s_waitcnt vmcnt({nw})")
    sprinkle(k, ren(small), W[nw:])
    k.stamp('w1iss')
    k("s_cmp_eq_u32 s21, 0\ns_cbranch_scc0 LF_m2a")
    poll_addr(k, S2_OFF, 13)
    k(f"global_load_dword v12, v13, {P(pWS)} sc1 ; @skip\nLF_m2a:")
    for t in Wq: k(t)
    k("s_cmp_eq_u32 s21, 0\ns_cbranch_scc0 LF_m2")
    wait_flags(k, 's2', 12, 13, 0 if 'x' in opts.get('force', '') else 8, PQ)
    k("LF_m2:\ns_barrier")
    k.stamp('s2')
    k("LF_x1:"); ld.blk = {}
    if on('xo', 1):
        a = Asm('r'); a.names = k.names
        a("LF_xredo:\ns_add_u32 s71, s71, 1\ns_waitcnt vmcnt(0) lgkmcnt(0)\ns_cmp_eq_u32 s21, 0\ns_cbranch_scc0 LF_xredo2")
        a.stamp('xredo')
        poll_addr(a, S2_OFF, 13)
        a(f"global_load_dword v12, v13, {P(pWS)} sc1")
        wait_flags(a, 's2r', 12, 13, 8, 0)
        a("LF_xredo2:\ns_sleep 16\ns_barrier")
        l3 = Loader()
        while l3.n1 < 60: a(l3.w1())
        a(f"v_subrev_u32 v3, {19 * 0x20000}, v3\ns_lshl_b32 s26, s21, 10\ns_mov_b32 m0, s26\ns_waitcnt vmcnt(0)\ns_branch LF_x1")
        SPINS.append('\n'.join(a.lines))
    k("AUTO")
    XCH = [int(x) for x in opts.get('xch', '4,12,20').split(',')]
    def xdma(i): return f"global_load_lds_dwordx4 v3, {P(pWS)} {SC} ; @w:X{sum(i >= c for c in XCH)}" + ("\ns_add_u32 m0, m0, 4096\nv_add_u32 v3, 0x20000, v3" if i < 19 else "")
    XI = int(opts.get('xi', 12))
    for i in range(XI): k(xdma(i))
    xq = [xdma(i) for i in range(XI, 20)]
    k("s_barrier ; @r:X0")
    k.stamp('x0')
    for r in breads(0, 0) + breads(1, 1): k(r)
    LA0, LA1, LA2 = (int(x) for x in opts.get('la', '2,2,0').split(','))
    for ks in range(20):
        if ks + 2 in XCH[:-1]: k(f"s_barrier")
        rs = breads(ks + 2, ks + 2) if ks + 2 < 20 else []
        lds = []
        for _ in range(LA0 if ks < 6 else LA1 + (ks & 1) * LA2):
            dx = max(c for c in [0] + XCH if c <= 20 - len(xq)) - 2 if xq else 99
            dw = ld.n1 // 2 if ld.n1 < 40 else 98
            t = xq.pop(0) if xq and dx <= dw else ld.next(2 * ks)
            if t: lds.append(t)
        b = BF + 16 * (ks % NBF)
        ms = [mf(ACA + 16 * p + 4 * s, A4(4 * (2 * ks + p)), V4(b + 4 * s), ks == 0) for s in range(4) for p in range(2)]
        ms = [mf(SQ, V4(b), V4(b), ks == 0), mf(SM, V4(ONES), V4(b), ks == 0)] + ms
        for i, m in enumerate(ms):
            k(m)
            if i >= 2 and rs: k(rs.pop(0))
            elif lds: k(lds.pop(0))
        for t in lds: k(t)
    k.stamp('passA')
    stat = f"""v_cndmask_b32 v13, v{SQ}, v{SQ+1}, s[84:85]
    v_mul_f32 v12, {f2u(1/640)}, v{SM}
    v_cndmask_b32 v13, v13, v{SQ+2}, s[86:87]
    v_cndmask_b32 v13, v13, v{SQ+3}, s[88:89]
    v_mul_f32 v13, {f2u(1/640)}, v13
    {rstd_chain(12, 13)}
    v_mul_f32 v13, {LOG2E + 0x80000000}, v13"""
    stat = [l.strip() for l in stat.split('\n')]
    stat += [f"s_mov_b64 exec, s[90:91]\nds_write_b64 v9, v[12:13]\ns_mov_b64 exec, -1", "s_waitcnt lgkmcnt(0)\ns_barrier"]
    stat += [f"v_xor_b32 v13, {128*s}, v9\nds_read_b64 v[{ST+2*s}:{ST+2*s+1}], v13" for s in range(4)]
    NB = int(opts.get('nb', 1))
    def passB(n, rsq, fill):
        ks = BORD[n]; b = BF + 16 * ((14 + n) % NBF)
        t = [x for x in [ld.next(40 + n) for _ in range(NB)] if x]
        for s in range(4):
            k(mf(ACB + 4 * s, A4(4 * (40 + ks)), V4(b + 4 * s), n == 0))
            for _ in range(2):
                if fill: k(fill.pop(0))
                elif rsq: k(rsq.pop(0))
            if t and s & 1: k(t.pop(0))
    for n in range(4): passB(n, [], stat)
    for t in stat: k(t)
    if on('xo', 1):
        k(f"""
        v_add_f32 v12, v{ST}, v{ST+2}
        v_add_f32 v13, v{ST+4}, v{ST+6}
        s_cmp_lt_u32 s71, 3
        v_add_f32 v12, v12, v13
        s_cselect_b64 s[30:31], -1, 0
        v_cmp_u_f32 vcc, v12, v12
        s_and_b64 vcc, vcc, s[30:31]
        s_cbranch_vccnz LF_xredo
        """)
    rq = breads(BORD[6], 14 + 6) + breads(BORD[7], 14 + 7)
    passB(4, rq, []); passB(5, rq, [])
    k.stamp('stats')
    NE = int(opts.get('ne', 10))
    sprinkle(k, epilogue(ACA, 0, PKD, 4) + epilogue(ACA + 16, 1, PKD + 2, 4), [ld.next(46) for _ in range(NE)])
    k("v_mov_b32 v14, 1\nv_mov_b32 v15, 2")
    for s in range(4): k(f"buffer_store_dwordx4 {V4(PKD+4*s)}, v{vL16}, s[12:15], s{72+s} offen {SC}")
    k(f"s_mov_b64 exec, 1\nglobal_store_dword v10, v14, {P(pWS)} sc1\ns_mov_b64 exec, -1")
    k.stamp('pairst')
    PN = int(opts.get('pn', 15))
    for n in range(6, 20):
        passB(n, breads(BORD[n + 2], 14 + n + 2) if n + 2 < 20 else [], [])
        if n == PN: k(f"global_load_dword v12, v11, {P(pWS)} sc1")
    k.stamp('passB')
    def hload(i, slots=range(4)):
        r = HR + 16 * (i % NRK)
        if on('rot'): return [f"buffer_load_dwordx4 {V4(r+4*s)}, v{HA+s}, s[12:15], s{48+i} offen {SC}" for s in slots]
        return [(f"s_add_u32 s79, s78, {KSEQ[i] * 4096}\n" if s == slots[0] else "") + f"buffer_load_dwordx4 {V4(r+4*s)}, v{HA+s}, s[12:15], s79 offen {SC}" for s in slots]
    def g2(i, s): return [mf(AC2 + 20 * s + 4 * dt, A4(4 * W2SLOT[5 * i + dt]), V4(HR + 16 * (i % NRK) + 4 * s), i == 0) for dt in range(5)]
    AH = int(opts.get('ahead', 3))
    wait_flags(k, 'h1', 12, 11, 0 if 'h' in opts.get('force', '') else 1, None)
    k.stamp('h1')
    hfirst = [t for i in range(AH) for t in hload(i)]
    NF = int(opts.get('nf', 8))
    for t in hfirst[:NF]: k(t)
    sprinkle(k, epilogue(ACB, 2, PKD, 2), hfirst[NF:] + [ld.next(60) for _ in range(int(opts.get('ns', 0)))])
    for s in range(4): k(f"v_add_u32 v13, s{80+s}, v245\nds_write_b64 v13, v[{PKD+2*s}:{PKD+2*s+1}]")
    k(f"""
    v_add_u32 v22, s80, v244
    v_add_u32 v23, s82, v244
    s_waitcnt lgkmcnt(0)
    s_barrier
    ds_read_b128 v[244:247], v22
    ds_read_b128 v[248:251], v23
    buffer_store_dwordx4 v[244:247], v{vL16}, s[12:15], s76 offen {SC}
    buffer_store_dwordx4 v[248:251], v{vL16}, s[12:15], s77 offen {SC}
    s_mov_b64 exec, 1
    global_store_dword v10, v15, {P(pWS)} sc1
    s_mov_b64 exec, -1
    """)
    k.stamp('singst')
    fill0 = [l.strip() for l in tail_addr.split('\n') if l.strip()]; tail_addr = ""
    a = Asm('z'); a.names = k.names; a.stamp('g2redo')
    SPINS.append("LF_g2redo:\n" + "".join(l + "\n" for l in a.lines) + "s_add_u32 s92, s92, 1\ns_waitcnt vmcnt(0) lgkmcnt(0)\ns_sleep 16\n" + "".join(f"v_add_u32 v{HA+s}, s{80+s}, v{vL16}\n" for s in range(4)) + "\n".join(hfirst) + "\ns_waitcnt vmcnt(0)\ns_branch LF_g2")
    k("LF_g2:"); ld.blk = {}
    PI = int(opts.get('pi', 2))
    for i in range(8):
        q = hload(i + AH) if i + AH < 8 else []
        while ld.n2 < min(60, 5 * i + 15): k(ld.w2())
        for _ in range(-(-(60 - ld.n2) // (8 - i))): q.append(ld.w2())
        if i == PI: q.append(f"global_load_dword v12, v11, {P(pWS)} sc1")
        if i in (1, 2, 4): k.stamp(f'g2_{i}')
        if i == PI + 2:
            k.stamp('h2a')
            wait_flags(k, 'h2', 12, 11, 2, None)
            k.stamp('h2b')
            late = [hload(i2, [s])[0] for s in (1, 2, 3, 0) for i2 in range(8, 12)]
        if i >= max(4, PI + 2):
            nl = -(-len(late) // (8 - i)); q += late[:nl]; late = late[nl:]
        for s in range(4):
            for n, m in enumerate(g2(i, s)):
                k(m)
                if q and n in (0, 2, 4): k(q.pop(0))
                elif fill0: k(fill0.pop(0))
        for t in q: k(t)
    assert not fill0
    k.stamp('g2a')
    U = HR + 64
    tail_addr += "".join(f"ds_read_b64_tr_b16 v[{U+24+2*dt}:{U+25+2*dt}], v16 offset:{2048*dt}\n" for dt in range(5))
    tail_addr += "".join(f"ds_read_b128 {V4(GB+4*dt)}, v22 offset:{64*dt}\n" for dt in range(5))
    tail_addr += "".join(f"v_lshlrev_b32 v{U+4*dt+2*h}, 16, v{U+24+2*dt+h}\nv_and_b32 v{U+4*dt+2*h+1}, 0xffff0000, v{U+24+2*dt+h}\n" for dt in range(5) for h in range(2))
    fill = [l.strip() for l in (first + tail_addr).split('\n') if l.strip()]
    pend = []
    for s in (1, 2, 3, 0):
        for i in range(8, 12):
            for m in g2(i, s):
                k(m)
                if pend and pend[0][0] <= 0: k(pend.pop(0)[1])
                else:
                    for _ in range(2):
                        if fill: k(fill.pop(0))
                pend = [(a - 1, t) for a, t in pend]
        assert not pend
        if s: pend = [(3 + 3 * dt, f"ds_write_b128 v{4+s}, {V4(AC2+20*s+4*dt)} offset:{1024*dt}") for dt in range(5)]
    for t in fill: k(t)
    k(f"""
    v_add_f32 v12, v{AC2+20}, v{AC2+40}
    v_add_f32 v12, v12, v{AC2+60}
    v_add_f32 v12, v12, v{AC2}
    s_cmp_lt_u32 s92, 3
    s_cselect_b64 s[30:31], -1, 0
    v_cmp_u_f32 vcc, v12, v12
    s_and_b64 vcc, vcc, s[30:31]
    s_cbranch_vccnz LF_g2redo
    """)
    k.stamp('g2b')
    k("s_waitcnt lgkmcnt(0)\ns_barrier")
    R0 = 44
    for dt in range(5):
        for s in range(3): k(f"ds_read_b128 {V4(R0+20*s+4*dt)}, v18 offset:{5120*s + 1024*dt}")
    for dt in range(5):
        for h in range(2):
            q = 2 * dt + h
            k(f"v_pk_add_f32 v[{AC2+2*q}:{AC2+2*q+1}], v[{AC2+2*q}:{AC2+2*q+1}], v[{R0+2*q}:{R0+2*q+1}]")
            k(f"v_pk_add_f32 v[{R0+20+2*q}:{R0+21+2*q}], v[{R0+20+2*q}:{R0+21+2*q}], v[{R0+40+2*q}:{R0+41+2*q}]")
        for h in range(2):
            q = 2 * dt + h
            k(f"v_pk_add_f32 v[{AC2+2*q}:{AC2+2*q+1}], v[{AC2+2*q}:{AC2+2*q+1}], v[{R0+20+2*q}:{R0+21+2*q}]")
        for h in range(2):
            q = 2 * dt + h
            k(f"v_pk_fma_f32 v[{AC2+2*q}:{AC2+2*q+1}], v[{AC2+2*q}:{AC2+2*q+1}], v[{GB+2*q}:{GB+2*q+1}], v[{U+2*q}:{U+2*q+1}]")
        k(f"v_cvt_pk_bf16_f32 v{HR+2*dt}, v{AC2+4*dt}, v{AC2+4*dt+1}\nv_cvt_pk_bf16_f32 v{HR+2*dt+1}, v{AC2+4*dt+2}, v{AC2+4*dt+3}")
    for dt in range(5): k(f"ds_write_b64 v17, v[{HR+2*dt}:{HR+2*dt+1}] offset:{32*dt}")
    for i in range(3): k(f"ds_read_b128 {V4(R0+4*i)}, v{19+i}")
    for i in range(3): k(f"buffer_store_dwordx4 {V4(R0+4*i)}, v{252+i}, s[16:19], s{94 if on('stash', 1) else 75} offen {opts.get('ost', '').replace('+', ' ')}")
    k("MANUAL")

def gen_F(opts={}):
    SPINS.clear(); OPT.clear(); OPT.update(opts)
    k = Asm('F')
    k(f"s_cmp_ge_u32 s2, {F_GRID}\ns_cbranch_scc1 LF_end")
    k.stamp('start')
    prologue(k, opts)
    k.stamp('msetup')
    conv_setup(k)
    k.stamp('csetup')
    kgen(k, opts)
    conv(k, opts)
    k("s_branch LF_mlp")
    conv_mod(k)
    k("LF_side:")
    side_a(k)
    side(k, opts)
    lane_consts(k)
    mlp_setup(k, opts)
    k("s_mov_b32 s6, 0\n" + hfill() + "s_waitcnt vmcnt(0)")
    k("LF_mlp:")
    mlp(k, opts)
    k.end(0)
    k("LF_end:\ns_endpgm")
    for s in SPINS: k(s)
    k("LF_codeend:")
    return k.finish()

if __name__ == '__main__':
    print(gen_F())
```

```python
from asmlib import *
from layoutF import *

F_GRID = 256
NCONV = 160
LNS = 1600
STATP = 12800
MODB = 13312
KT = 33792; KTS = 18432
TAPS = 107520; TCS = 2112; TAPCH = 4 * TCS
STG = TAPS + 4 * TAPCH; STGS = 2112
F_LDS = 149760
OH = 480
UD = 3088
O3 = 4576 + 16; O5 = O3 + UD; O7 = O5 + UD; O9 = O7 + UD
CHS = (O9 + 2048 + 127) // 128 * 128 + 16
OU = 4 * CHS; OS = OU + 16384
W1R = 102400; W2R = W1R + 20480; VRED = W2R + 20480
RED = 81920; STAT = RED + 61440; GBL = STAT + 512
assert OS + 16384 <= TAPS and STG + 4 * STGS <= F_LDS and GBL + 1280 + 2048 <= F_LDS
pU, pAR, pAI, pBR, pBI, pCR, pCI, pLD, pDS, pW1, pW2, pC, pWM, pOUT, pDBG, pWS = 36, 38, 40, 42, 44, 46, 48, 50, 52, 56, 58, 60, 62, 64, 66, 68
def P(p): return f"s[{p}:{p+1}]"
SC = 'sc1'
vL16 = 8
BAND = 210
vRD, vDA, vDB, vD3, vRU, vWU, vWH, vNO, vUO, vMO, vTA, vT2, vT3, vBP = range(230, 244)
vVA, vF1D, vF1A = 244, 250, 251
vSA, vSG, vP2 = 252, 253, 155
vKW, vKR, vPD, vPA, vPT = 120, 121, 122, 123, 133
KACC = 104; SCT = 124; PRM = 134
CDAT = 156; LA = 158; MFR = 164; NR = 184

def wsoff(): return f"s_add_u32 s68, s68, {on('wso') << 20}\ns_addc_u32 s69, s69, 0" if on('wso') else ""
def srd(k, r, base, off, size):
    k(f"s_add_u32 s{r}, s{base}, {off}\ns_addc_u32 s{r+1}, s{base+1}, 0\ns_mov_b32 s{r+2}, {size}\ns_mov_b32 s{r+3}, 0x20000")
def mf(acc, a, b, first):
    c = '0' if first else f'v[{acc}:{acc+3}]'
    return f"v_mfma_f32_16x16x32_bf16 v[{acc}:{acc+3}], {a}, {b}, {c}"
V4 = lambda r: f"v[{r}:{r+3}]"
A4 = lambda r: f"a[{r}:{r+3}]"

SPINS = []
OPT = {}
def on(name, default=0): return int(OPT.get(name, default))
def wait_flags(k, tag, vdata, vaddr, target, nwait, sleep=2):
    if nwait is not None: k(f"s_waitcnt vmcnt({nwait})")
    k(f"v_cmp_gt_u32 vcc, {target}, v{vdata}\ns_cbranch_vccnz LF_spin{tag}\nLF_go{tag}:")
    SPINS.append(f"""
    LF_spin{tag}:
    s_mov_b32 s30, 40000
    LF_spinl{tag}:
    global_load_dword v{vdata}, v{vaddr}, {P(pDBG if tag.startswith('init') else pWS)} sc1
    s_waitcnt vmcnt(0)
    v_cmp_gt_u32 vcc, {target}, v{vdata}
    s_cbranch_vccz LF_go{tag}
    s_sleep {sleep}
    s_sub_u32 s30, s30, 1
    s_cmp_lg_u32 s30, 0
    s_cbranch_scc1 LF_spinl{tag}
    s_branch LF_go{tag}
    """)

def arrive(k, off, va, vb, shard="s_lshr_b32 s26, s2, 3"):
    k(f"""
    {shard}
    s_lshl_b32 s26, s26, 7
    s_add_u32 s26, s26, {WS_SYNC + off}
    v_lshl_add_u32 v{va}, v1, 12, s26
    v_mov_b32 v{vb}, 1
    s_mov_b64 exec, 0xff
    global_atomic_add v{va}, v{vb}, {P(pWS)} sc1
    s_mov_b64 exec, -1
    """)

def poll_addr(k, off, va):
    k(f"""
    s_and_b32 s26, s2, 7
    s_lshl_b32 s26, s26, 12
    s_add_u32 s26, s26, {WS_SYNC + off}
    v_and_b32 v{va}, 31, v1
    v_lshl_add_u32 v{va}, v{va}, 7, s26
    """)

def rstd_chain(m, q, r=None):
    return f"""v_fma_f32 v{q}, -v{m}, v{m}, v{q}
    v_max_f32 v{q}, 0, v{q}
    v_cvt_pk_bf16_f32 v{q}, v{q}, v{m}
    v_and_b32 v{m}, 0xffff0000, v{q}
    v_lshlrev_b32 v{q}, 16, v{q}
    v_add_f32 v{q}, {f2u(1e-5)}, v{q}
    v_cvt_pk_bf16_f32 v{q}, v{q}, v{q}
    v_lshlrev_b32 v{q}, 16, v{q}
    v_sqrt_f32 v{q}, v{q}
    v_cvt_pk_bf16_f32 v{q}, v{q}, v{q}
    v_lshlrev_b32 v{q}, 16, v{q}
    v_rcp_f32 v{r or q}, v{q}"""

JOBS = 12800
def prologue(k, opts):
    k(f"""
    s_load_dwordx16 s[36:51], s[0:1], 0
    s_load_dwordx2 s[52:53], s[0:1], 64
    s_load_dwordx4 s[60:63], s[0:1], 96
    s_load_dwordx2 s[68:69], s[0:1], 128
    s_load_dwordx4 s[56:59], s[0:1], 80
    s_load_dwordx4 s[64:67], s[0:1], 112
    v_lshrrev_b32 v1, 6, v0
    v_readfirstlane_b32 s21, v1
    v_and_b32 v1, 63, v0
    """)
    if int(opts.get('cpf', 1)):
        k(f"""
        s_getpc_b64 s[24:25]
        LF_pc:
        s_lshr_b32 s26, s2, 3
        s_lshl_b32 s26, s26, 2
        s_add_u32 s26, s26, s21
        s_mul_i32 s26, s26, 384
        s_min_u32 s26, s26, LF_codeend-LF_pc-384
        s_add_u32 s24, s24, s26
        s_addc_u32 s25, s25, 0
        v_min_u32 v2, 2, v1
        v_lshlrev_b32 v2, 7, v2
        v_mov_b32 v3, s25
        v_add_co_u32 v2, vcc, s24, v2
        v_addc_co_u32 v3, vcc, 0, v3, vcc
        global_load_dword v254, v[2:3], off ; @nocheck
        """)
    k(f"""
    v_lshlrev_b32 v{vL16}, 4, v1
    s_cmp_lt_u32 s2, {NCONV}
    s_cbranch_scc0 LF_side
    s_lshl_b32 s20, s2, 2
    s_add_u32 s20, s20, s21               ; channel d
    s_mul_i32 s29, s20, 384
    v_lshl_add_u32 v10, v1, 1, s29
    s_lshl_b32 s29, s20, 1
    v_mov_b32 v11, s29
    v_mov_b32 v{vPA}, 0
    """)
    LD = 'global_load_ushort' if on('ush') else 'global_load_short_d16_hi'
    if not on('ush'):
        for i in list(range(19)) + [20]: k(f"v_mov_b32 v{PRM+i}, 0")
    k(f"""
    s_mul_hi_u32 s25, s2, {(1 << 32) // 60 + 1}       ; kq
    s_mul_i32 s26, s25, 60
    s_sub_u32 s26, s2, s26
    s_mul_i32 s27, s25, 320
    v_lshl_add_u32 v6, v1, 2, s27
    v_and_b32 v7, 15, v1
    v_lshl_add_u32 v7, v7, 2, s27
    s_waitcnt lgkmcnt(0)
    {wsoff()}
    global_load_dword v{CDAT}, v6, {P(pC)}
    global_load_dword v{CDAT+1}, v7, {P(pC)} offset:256
    {LD} v{PRM+18}, v11, {P(pLD)}""")
    for p in range(3):
        for i, ptr in enumerate((pAR, pAI, pBR, pBI, pCR, pCI)):
            k(f"{LD} v{PRM+6*p+i}, v10, {P(ptr)} offset:{128*p}")
    k(f"{LD} v{PRM+20}, v11, {P(pDS)}")
    k.stamp('ldiss')
    lane_consts(k)
    if int(opts.get('tlb', 0)):
        k(f"""
        s_cmp_eq_u32 s21, 1
        s_cbranch_scc0 LF_notlb
        v_min_u32 v2, 11, v1
        v_lshlrev_b32 v2, 21, v2
        v_and_b32 v3, 1, v1
        v_lshlrev_b32 v3, 21, v3
        global_load_dword v253, v2, {P(pWS)} ; @skip
        global_load_dword v253, v3, {P(pOUT)} ; @skip
        s_waitcnt vmcnt(0)
        LF_notlb:
        """)
    k(f"""
    v_lshrrev_b32 v4, 3, v1
    v_and_b32 v5, 7, v1
    v_mul_u32_u24 v3, 7680, v4
    v_lshl_add_u32 v3, v5, 4, v3
    s_mul_i32 s27, s25, 160
    s_mul_i32 s28, s21, 40
    s_add_u32 s28, s28, s27
    s_mul_i32 s28, s28, 7680
    s_lshl_b32 s29, s26, 7
    s_add_u32 s28, s28, s29
    v_add_u32 v3, s28, v3
    s_mul_i32 s29, s21, 5120
    s_add_u32 m0, s29, {MODB}
    s_mul_i32 s25, s25, 15360
    """)
    if not int(opts.get('modlate', 1)): mod_dma(k, 3)
    else: k(f"v_mov_b32 v{LA+5}, v3")
    k(f"""
    s_lshl_b32 s26, s26, 8
    s_add_u32 s25, s25, s26
    s_lshl_b32 s26, s21, 6
    s_add_u32 s25, s25, s26
    v_lshl_add_u32 v{LA}, v1, 2, s25
    v_lshl_add_u32 v7, v12, 3, v11
    v_lshlrev_b32 v7, 7, v7
    v_lshl_add_u32 v7, v10, 3, v7
    s_lshl_b32 s27, s21, 5
    s_add_u32 s27, s27, {MODB}
    v_add_u32 v{LA+1}, s27, v7
    s_mul_i32 s27, s21, 320
    v_lshl_add_u32 v{LA+2}, v1, 2, s27
    v_lshl_add_u32 v{LA+3}, v13, 2, s27
    v_lshl_add_u32 v{LA+4}, v12, 4, s27
    """)

def silu_frags(k, c0, vbp, dst=24):
    k(f"""
    s_mov_b32 s24, {LOG2E + 0x80000000}
    v_lshlrev_b32 v16, 16, v{c0}
    v_and_b32 v17, 0xffff0000, v{c0}
    v_lshlrev_b32 v18, 16, v{c0+1}
    v_and_b32 v19, 0xffff0000, v{c0+1}
    """)
    for i in range(4): k(f"v_mul_f32 v{20+i}, s24, v{16+i}")
    for i in range(4): k(f"v_exp_f32 v{20+i}, v{20+i}")
    for i in range(4): k(f"v_add_f32 v{20+i}, 1.0, v{20+i}")
    for i in range(4): k(f"v_rcp_f32 v{20+i}, v{20+i}")
    for i in range(4): k(f"v_mul_f32 v{16+i}, v{16+i}, v{20+i}")
    k(f"v_cvt_pk_bf16_f32 v16, v16, v17\nv_cvt_pk_bf16_f32 v17, v18, v19")
    k(f"ds_write_b32 v{vbp}, v16\nds_write_b32 v{vbp+1}, v17 offset:256")
    for ks in range(5): k(f"ds_read_b128 {V4(dst+4*ks)}, v{vbp+2} offset:{64*ks}")

def conv_mod(k):
    fr, ac = (184, 204) if on('mmid', 1) else (60, 16)
    k("LF_cmod:\n" + ("" if on('mmid', 1) else "s_mov_b32 s3, 1\n") + "s_waitcnt vmcnt(0) lgkmcnt(0)\ns_barrier\nAUTO")
    for ks in range(5):
        for h in range(2): k(f"ds_read_b64_tr_b16 v[{fr+4*ks+2*h}:{fr+1+4*ks+2*h}], v{LA+1} offset:{4096*ks + 512*h}")
    for ks in range(5): k(mf(ac, V4(MFR + 4 * ks), V4(fr + 4 * ks), ks == 0))
    k(f"""MANUAL
    s_mov_b64 exec, 0xffff
    global_store_dword v{LA}, v{ac}, {P(pWS)} {SC}
    s_mov_b64 exec, -1
    global_load_dword v{vPD}, v{vPA}, {P(pDBG)} sc1 ; @nocheck
    """)
    k.stamp('modst')
    k("s_branch LF_noarr1" if on('mmid', 1) else "s_branch LF_kpass")

def mod_dma(k, v):
    for i in range(5):
        k(f"global_load_lds_dwordx4 v{v}, {P(pWM)}")
        if i < 4: k(f"s_add_u32 m0, m0, 1024\nv_add_u32 v{v}, {8*7680}, v{v}")

def lane_consts(k):
    k("""
    v_bfe_u32 v11, v1, 2, 2               ; r
    v_lshrrev_b32 v12, 4, v1              ; G
    v_and_b32 v10, 3, v1                  ; cc / j
    v_and_b32 v13, 15, v1                 ; a / i
    """)

def w1raw(k):
    k(f"""
    s_lshr_b32 s34, s20, 2
    s_and_b32 s35, s20, 3
    v_lshrrev_b32 v2, 3, v1
    v_and_b32 v3, 6, v2
    v_and_b32 v4, 7, v1
    v_xor_b32 v3, v3, v4
    v_mul_u32_u24 v2, 3072, v2
    v_lshl_add_u32 v2, v3, 4, v2
    s_mul_i32 s35, s35, {160*3072}
    s_lshl_b32 s34, s34, 7
    s_add_u32 s35, s35, s34
    s_mov_b32 m0, {W1R}
    v_add_u32 v2, s35, v2
    """)
    for i in range(20):
        k(f"global_load_lds_dwordx4 v2, {P(pW1)}")
        if i < 19: k(f"s_add_u32 m0, m0, 1024\nv_add_u32 v2, {8*3072}, v2")

def side_mod(k):
    k(f"""
    s_mul_hi_u32 s25, s2, {(1 << 32) // 60 + 1}       ; kq
    s_mul_i32 s26, s25, 60
    s_sub_u32 s26, s2, s26
    s_mul_i32 s27, s25, 320
    v_lshl_add_u32 v15, v1, 2, s27
    v_lshl_add_u32 v16, v13, 2, s27
    global_load_dword v150, v15, {P(pC)}
    global_load_dword v151, v16, {P(pC)} offset:256
    v_lshrrev_b32 v4, 3, v1
    v_and_b32 v5, 7, v1
    v_mul_u32_u24 v4, 7680, v4
    v_lshl_add_u32 v4, v5, 4, v4
    s_mul_i32 s27, s25, {160*7680}
    s_lshl_b32 s28, s26, 7
    s_add_u32 s27, s27, s28
    v_add_u32 v14, s27, v4
    s_mov_b32 m0, s33
    s_mul_i32 s25, s25, 15360
    s_lshl_b32 s26, s26, 8
    s_add_u32 s25, s25, s26
    v_lshl_add_u32 v152, v13, 2, s25
    """)
    for i in range(20):
        k(f"global_load_lds_dwordx4 v14, {P(pWM)}")
        if i < 19: k(f"s_add_u32 m0, m0, 1024\nv_add_u32 v14, {8*7680}, v14")
    k(f"""
    v_lshl_add_u32 v5, v12, 3, v11
    v_lshlrev_b32 v5, 7, v5
    v_lshl_add_u32 v5, v10, 3, v5
    v_add_u32 v5, s33, v5
    s_add_u32 s27, s33, 20480
    v_lshl_add_u32 v158, v1, 2, s27
    v_lshl_add_u32 v159, v13, 2, s27
    v_lshl_add_u32 v160, v12, 4, s27
    s_waitcnt vmcnt(20)
    """)
    silu_frags(k, 150, 158)
    k("AUTO")
    for ks in range(5):
        k(f"s_waitcnt vmcnt({16 - 4*ks})")
        for ct in range(4):
            for h in range(2): k(f"ds_read_b64_tr_b16 v[{60+16*(ks&1)+4*ct+2*h}:{61+16*(ks&1)+4*ct+2*h}], v5 offset:{4096*ks + 512*h + 32*ct}")
        for ct in range(4): k(mf(44 + 4 * ct, V4(24 + 4 * ks), V4(60 + 16 * (ks & 1) + 4 * ct), ks == 0))
    k("MANUAL\ns_mov_b64 exec, 0xffff")
    for ct in range(4): k(f"global_store_dword v152, v{44+4*ct}, {P(pWS)} offset:{64*ct} {SC}")
    k("s_mov_b64 exec, -1")

def side_a(k):
    UD_ = 164
    k(f"""
    s_sub_u32 s20, s2, {NCONV}
    s_mul_i32 s33, s21, {2*JOBS}
    s_add_u32 s34, s33, {JOBS}
    """)
    lane_consts(k)
    k(f"""
    s_mul_i32 s31, s21, 96
    s_add_u32 s31, s31, s20
    s_cmp_lt_u32 s31, 256
    s_waitcnt lgkmcnt(0)
    {wsoff()}
    s_cmp_lt_u32 s31, 256
    s_cbranch_scc0 LF_sa_mod
    v_lshrrev_b32 v2, 3, v1
    v_and_b32 v3, 7, v1
    v_lshlrev_b32 v3, 4, v3
    v_mul_u32_u24 v7, 1280, v2
    v_add_u32 v7, v7, v3
    s_mul_i32 s24, s31, 10240
    v_add_u32 v7, s24, v7
    """)
    for q in range(10): k(f"global_load_dwordx4 {V4(UD_+4*q)}, v7, {P(pU)} offset:{128*q}")
    k.stamp('ldiss')
    k(f"""
    v_mul_u32_u24 v7, {LNS - 256}, v2
    v_add3_u32 v7, v7, v3, s33
    v_mul_u32_u24 v9, {LNS - 256}, v11
    v_lshl_add_u32 v9, v12, 5, v9
    v_lshl_add_u32 v9, v10, 3, v9
    v_add_u32 v9, s33, v9
    v_lshrrev_b32 v2, 2, v1
    v_lshlrev_b32 v2, 14, v2
    v_lshl_add_u32 v2, v10, 4, v2
    s_lshl_b32 s24, s31, 6
    s_add_u32 s24, s24, {WS_NT}
    v_add_u32 v2, s24, v2
    s_lshr_b32 s24, s31, 5
    s_lshl_b32 s24, s24, 11
    s_bfe_u32 s25, s31, 0x40001
    s_lshl_b32 s25, s25, 4
    s_add_u32 s24, s24, s25
    s_and_b32 s25, s31, 1
    s_lshl_b32 s25, s25, 9
    s_add_u32 s24, s24, s25
    s_add_u32 s24, s24, {WS_ST}
    v_lshrrev_b32 v3, 5, v1
    v_lshlrev_b32 v3, 8, v3
    v_bfe_u32 v14, v1, 4, 1
    v_lshl_add_u32 v3, v14, 10, v3
    v_bfe_u32 v14, v1, 3, 1
    v_lshl_add_u32 v3, v14, 3, v3
    v_add_u32 v3, s24, v3
    s_mov_b32 s24, 0x3f803f80
    v_mov_b32 v{vPA}, 0
    v_mov_b32 v140, 0
    v_mov_b32 v141, 0
    v_mov_b32 v142, 0
    v_mov_b32 v143, 0
    """)
    for q in range(10):
        k(f"s_waitcnt vmcnt({9 - q})")
        if q == 0: k.stamp('u0')
        k(f"ds_write_b128 v7, {V4(UD_+4*q)} offset:{128*q}")
        for i in range(4):
            r = UD_ + 4 * q + i
            k(f"v_dot2c_f32_bf16 v{140 + 2*(i&1)}, s24, v{r}\nv_dot2c_f32_bf16 v{141 + 2*(i&1)}, v{r}, v{r}")
    k(f"""
    v_pk_add_f32 v[140:141], v[140:141], v[142:143]
    v_add_f32_dpp v140, v140, v140 quad_perm:[1,0,3,2] row_mask:0xf bank_mask:0xf
    v_add_f32_dpp v141, v141, v141 quad_perm:[1,0,3,2] row_mask:0xf bank_mask:0xf
    v_add_f32_dpp v140, v140, v140 quad_perm:[2,3,0,1] row_mask:0xf bank_mask:0xf
    v_add_f32_dpp v141, v141, v141 quad_perm:[2,3,0,1] row_mask:0xf bank_mask:0xf
    v_add_f32_dpp v140, v140, v140 row_half_mirror row_mask:0xf bank_mask:0xf
    v_add_f32_dpp v141, v141, v141 row_half_mirror row_mask:0xf bank_mask:0xf
    v_mul_f32 v140, {f2u(1/640)}, v140
    v_mul_f32 v141, {f2u(1/640)}, v141
    AUTO
    """)
    for ch in range(10):
        k(f"ds_read_b64_tr_b16 v[{UD_+4*ch}:{UD_+4*ch+1}], v9 offset:{128*ch}\nds_read_b64_tr_b16 v[{UD_+4*ch+2}:{UD_+4*ch+3}], v9 offset:{128*ch + 4*(LNS - 256)}")
        if ch == 4: k(rstd_chain(140, 141, 144) + f"\nv_mov_b32 v142, v141\nv_mov_b32 v143, v140\nv_mul_f32 v140, v140, v144\ns_mov_b32 exec_lo, 0x01010101\ns_mov_b32 exec_hi, 0x01010101\nglobal_store_dwordx2 v3, v[142:143], {P(pWS)} {SC}\ns_mov_b64 exec, -1")
    for r in range(8): k(f"v_readlane_b32 s{70+r}, v144, {8*r}")
    for r in range(8): k(f"v_readlane_b32 s{78+r}, v140, {8*r}")
    for r in range(8): k(f"v_mov_b32 v{16+r}, s{78+r}")
    for ch in range(10):
        b = UD_ + 4 * ch; u = 24 + 12 * (ch % 3)
        for i in range(4): k(f"v_lshlrev_b32 v{u+2*i}, 16, v{b+i}\nv_and_b32 v{u+2*i+1}, 0xffff0000, v{b+i}")
        for i in range(4): k(f"v_pk_fma_f32 v[{u+2*i}:{u+2*i+1}], v[{u+2*i}:{u+2*i+1}], s[{70+2*i}:{71+2*i}], v[{16+2*i}:{17+2*i}] neg_lo:[0,0,1] neg_hi:[0,0,1]")
        for i in range(4): k(f"v_cvt_pk_bf16_f32 v{u+8+i}, v{u+2*i}, v{u+2*i+1}")
        k(f"global_store_dwordx4 v2, {V4(u+8)}, {P(pWS)} {SC}")
        if ch < 9: k("v_add_u32 v2, 0x40000, v2")
    k("MANUAL")
    k.stamp('lnst')
    k(f"global_load_dword v{vPD}, v{vPA}, {P(pDBG)} sc1")
    wait_flags(k, 'init2', vPD, vPA, 32, 0)
    arrive(k, S1_OFF, vPD, vPT, "s_and_b32 s26, s31, 31")
    k.stamp('arr1')
    k(f"""
    s_branch LF_sa_end
    LF_sa_mod:
    s_cmp_lt_u32 s20, 80
    s_cbranch_scc0 LF_init
    s_cmp_eq_u32 s21, 3
    s_cbranch_scc0 LF_sa_end
    """)
    side_mod(k)
    k(f"v_mov_b32 v{vPA}, 0\nglobal_load_dword v{vPD}, v{vPA}, {P(pDBG)} sc1")
    wait_flags(k, 'init3', vPD, vPA, 32, 0)
    arrive(k, SM_OFF, vPD, vPT, "s_and_b32 s26, s2, 31")
    k.stamp('modst')
    k("LF_sa_w1:")
    if not on('w1late'): w1raw(k)
    k("LF_sa_end:")
    SPINS.append(f"""
    LF_init:
    s_sub_u32 s24, s20, 80
    s_lshl_b32 s24, s24, 1
    s_add_u32 s24, s24, s21
    s_sub_u32 s24, s24, 2
    s_lshl_b32 s24, s24, 12
    s_add_u32 s24, s24, {WS_SYNC}
    v_add_u32 v30, s24, v{vL16}
    v_mov_b32 v26, 0
    v_mov_b32 v27, 0
    v_mov_b32 v28, 0
    v_mov_b32 v29, 0
    global_store_dwordx4 v30, v[26:29], {P(pWS)} sc1
    global_store_dwordx4 v30, v[26:29], {P(pWS)} offset:1024 sc1
    global_store_dwordx4 v30, v[26:29], {P(pWS)} offset:2048 sc1
    global_store_dwordx4 v30, v[26:29], {P(pWS)} offset:3072 sc1
    v_mov_b32 v31, 1
    s_waitcnt vmcnt(0)
    s_mov_b64 exec, 1
    global_atomic_add v26, v31, {P(pDBG)} sc1
    s_mov_b64 exec, -1
    s_cmp_eq_u32 s21, 3
    s_cbranch_scc1 LF_sa_w1
    s_branch LF_sa_end
    """)

def mlp_setup(k, opts):
    if opts.get('arr', '8x4') == '8x4':
        k("""
        s_and_b32 s24, s2, 7
        s_lshr_b32 s25, s2, 3
        s_lshr_b32 s22, s24, 1
        s_lshl_b32 s22, s22, 3
        s_lshr_b32 s26, s25, 2
        s_add_u32 s22, s22, s26               ; rb
        s_and_b32 s23, s24, 1
        s_lshl_b32 s23, s23, 2
        s_and_b32 s26, s25, 3
        s_add_u32 s23, s23, s26               ; j
        """)
    else:
        k("""
        s_and_b32 s22, s2, 7
        s_lshl_b32 s22, s22, 2
        s_lshr_b32 s26, s2, 6
        s_add_u32 s22, s22, s26               ; rb
        s_bfe_u32 s23, s2, 0x30003            ; j
        """)
    k(f"""
    s_mul_i32 s26, s23, 12
    s_mul_i32 s25, s21, 3
    s_add_u32 s25, s26, s25
    s_lshl_b32 s26, s25, 7
    s_add_u32 s26, s26, {WS_SYNC + F1_OFF}
    v_min_u32 v{vF1D}, 11, v1
    v_lshrrev_b32 v{vF1A}, 2, v{vF1D}
    v_lshl_add_u32 v{vF1A}, v{vF1A}, 7, s26
    v_and_b32 v{vF1D}, 3, v{vF1D}
    v_lshl_add_u32 v{vF1A}, v{vF1D}, 2, v{vF1A}
    s_lshl_b32 s24, s23, 2
    s_add_u32 s24, s24, s21
    s_mul_i32 s24, s24, 61440
    s_add_u32 s26, s24, {WS_W1F}
    """)
    srd(k, 4, pWS, 's26', 61440)
    k(f"s_add_u32 s26, s24, {WS_W2F}")
    srd(k, 8, pWS, 's26', 61440)
    k(f"s_mul_i32 s26, s22, 196608\ns_add_u32 s26, s26, {WS_H}")
    srd(k, 12, pWS, 's26', 196608)
    srd(k, 16, pOUT, 0, L * D * 2)
    k(f"""
    s_and_b32 s26, s21, 1
    s_lshl_b32 s25, s25, 6
    s_add_u32 s25, s25, {WS_V12}
    v_add_u32 v{vVA}, s26, v12
    s_xor_b32 s26, s26, 1
    s_lshl_b32 s26, s26, 1
    v_mov_b32 v{vVA+1}, s26
    v_cmp_gt_u32 vcc, 2, v12
    v_lshl_add_u32 v{vVA+2}, v13, 2, s25
    v_cndmask_b32 v{vVA}, v{vVA+1}, v{vVA}, vcc
    v_lshl_add_u32 v{vVA}, v{vVA}, 6, v{vVA+2}
    s_mul_i32 s26, s23, 320
    s_add_u32 s26, s26, 12800
    v_lshl_add_u32 v{vVA+4}, v1, 2, s26
    v_lshl_add_u32 v{vVA+5}, v13, 2, s26
    s_lshl_b32 s80, s21, 10
    s_xor_b32 s81, s80, 1024
    s_xor_b32 s82, s80, 2048
    s_xor_b32 s83, s80, 3072
    s_mul_i32 s26, s21, 3
    s_add_u32 s26, s26, 1
    s_lshr_b32 s26, s26, 1
    s_mul_i32 s27, s23, 6
    s_add_u32 s26, s26, s27
    s_lshl_b32 s26, s26, 12
    s_lshr_b32 s30, s21, 1
    s_mul_i32 s31, s30, 3
    s_add_u32 s31, s31, 1
    s_add_u32 s27, s27, s31
    s_lshl_b32 s27, s27, 12
    s_add_u32 s72, s80, s26
    s_add_u32 s73, s81, s26
    s_add_u32 s74, s82, s26
    s_add_u32 s75, s83, s26
    s_add_u32 s76, s80, s27
    s_add_u32 s77, s82, s27
    """)

def conv_setup(k):
    k(f"""
    s_mul_i32 s26, s21, {TAPCH}
    s_add_u32 s26, s26, {TAPS}
    v_sub_u32 v14, 3, v11
    v_mul_u32_u24 v14, {TCS}, v14
    v_lshl_add_u32 v14, v10, 3, v14
    v_add_u32 v14, s26, v14
    v_lshlrev_b32 v15, 4, v12
    v_sub_u32 v15, 48, v15
    v_add_u32 v{vTA}, v14, v15
    v_and_b32 v15, 1, v12                 ; G&1
    v_lshrrev_b32 v9, 1, v12              ; G>>1
    v_lshlrev_b32 v16, 3, v15
    v_sub_u32 v14, v14, v16
    v_add_u32 v14, 8, v14
    v_mul_u32_u24 v16, {2*(B3A - B5A)}, v9
    v_add_u32 v{vT2}, v14, v16
    v_mul_u32_u24 v16, {2*(B9 - B7)}, v9
    v_add_u32 v{vT3}, v14, v16
    s_mul_i32 s27, s21, {CHS}
    v_lshlrev_b32 v14, 5, v13
    v_add_u32 v14, s27, v14
    v_lshl_add_u32 v{vRD}, v12, 4, v14    ; h frag: 32a + 16G
    v_lshl_add_u32 v14, v9, 4, v14
    v_mul_u32_u24 v16, {UD}, v15
    v_add_u32 v{vWU}, v14, v16
    v_lshlrev_b32 v14, 7, v15
    v_lshl_add_u32 v14, v11, 5, v14
    v_lshl_add_u32 v14, v10, 3, v14
    v_add_u32 v14, s27, v14               ; 128(G&1) + 32r + 8cc
    v_mul_u32_u24 v16, {UD - 16}, v9
    v_sub_u32 v17, v14, v16
    v_add_u32 v{vDA}, {O5 - 16}, v17
    v_add_u32 v17, v14, v16
    v_add_u32 v{vD3}, {O7}, v17
    v_lshlrev_b32 v16, 5, v9
    v_sub_u32 v16, 16, v16
    v_add_u32 v{vDB}, v{vDA}, v16
    v_bfe_u32 v16, v1, 1, 2
    v_xor_b32 v16, s21, v16
    v_lshlrev_b32 v16, 4, v16
    v_lshl_add_u32 v16, v13, 7, v16
    v_lshl_add_u32 v16, v15, 6, v16
    v_add_u32 v{vRU}, {OU}, v16
    v_mul_u32_u24 v16, {CHS}, v10
    v_lshrrev_b32 v14, 2, v1
    s_lshl_b32 s28, s21, 4
    v_add_u32 v14, s28, v14               ; segment 0..63
    v_lshl_add_u32 v{vWH}, v14, 6, v16
    v_lshlrev_b32 v14, 8, v14
    v_lshl_add_u32 v14, v10, 4, v14
    s_lshl_b32 s29, s2, 14
    s_add_u32 s28, s29, {WS_NT}
    v_add_u32 v{vNO}, s28, v14
    v_xor_b32 v14, v10, v12
    v_and_b32 v16, 0x3c, v1
    v_lshlrev_b32 v16, 4, v16
    v_lshl_add_u32 v14, v14, 4, v16
    s_lshl_b32 s28, s21, 12
    s_add_u32 s29, s29, s28
    s_add_u32 s29, s29, {WS_NT}
    v_add_u32 v{vUO}, s29, v14
    s_add_u32 s29, s28, {WS_ST}
    v_add_u32 v{vSG}, s29, v{vL16}
    v_min_u32 v14, 2, v12
    v_mul_u32_u24 v14, 2560, v14
    v_mul_u32_u24 v16, 15360, v11
    v_add_u32 v14, v14, v16
    v_lshl_add_u32 v14, v10, 2, v14
    s_lshl_b32 s29, s2, 4
    v_add_u32 v{vMO}, s29, v14
    v_lshlrev_b32 v{vBP}, 2, v10
    v_add_u32 v{vSA}, {OS}, v{vL16}
    v_lshlrev_b32 v14, 3, v12
    v_sub_u32 v14, v14, v13
    v_add_u32 v14, 15, v14                ; 8G - i + 15
    v_and_b32 v16, 1, v14
    v_cmp_eq_u32 vcc, 1, v16
    v_lshrrev_b32 v14, 1, v14
    v_min_u32 v14, 15, v14
    v_lshl_or_b32 v14, v14, 16, v14
    """)
    for fi, (lo, hi_) in enumerate(((0, 0), (11, 13), (6, 10), (5, 11), (4, 12))):
        Wv = ((1 << (hi_ - lo + 1)) - 1) << (lo + 15)
        We = sum(((Wv >> (2 * b)) & 1) << b for b in range(16)); Wo = sum(((Wv >> (2 * b + 1)) & 1) << b for b in range(16))
        k(f"v_mov_b32 v16, {We | Wo << 16}\nv_mov_b32 v17, {Wo | (We >> 1) << 16}\nv_cndmask_b32 v16, v16, v17, vcc\nv_pk_lshrrev_b16 v16, v14, v16")
        for q in range(4): k(f"v_and_b32 v17, {0x10001 << q}, v16\nv_mul_u32_u24 v{BAND+4*fi+q}, {0x3f80 >> q}, v17")
    DUM = 2 * 1010
    S = SCT
    k(f"""
    s_mul_i32 s26, s21, {KTS}
    s_add_u32 s26, s26, {KT}
    v_mul_u32_u24 v14, 144, v1
    v_add_u32 v{vKW}, s26, v14
    v_lshrrev_b32 v15, 5, v1              ; hi
    v_lshl_add_u32 v14, v11, 1, v15
    v_mul_u32_u24 v14, 288, v14
    v_bfe_u32 v16, v1, 4, 1
    v_lshl_add_u32 v14, v16, 5, v14
    v_lshl_add_u32 v14, v10, 3, v14
    v_add_u32 v{vKR}, s26, v14
    s_mul_i32 s26, s21, {STGS}
    s_add_u32 s26, s26, {STG}
    v_mov_b32 v24, 0
    v_mov_b32 v25, 0
    v_mov_b32 v26, 0
    v_mov_b32 v27, 0
    v_add_u32 v{S+8}, s26, v{vL16}
    ds_write_b128 v{S+8}, v[24:27]
    ds_write_b128 v{S+8}, v[24:27] offset:1024
    v_mov_b32 v28, s26
    ds_write_b128 v28, v[24:27] offset:2048
    v_and_b32 v34, 1, v1                  ; odd
    v_bfe_u32 v35, v1, 1, 4               ; kappa'
    v_or_b32 v36, v34, v15
    v_mul_u32_u24 v37, 48, v34
    v_mul_u32_u24 v38, 96, v15
    v_add3_u32 v36, v36, v37, v38
    v_add_u32 v36, v36, v35
    v_lshl_add_u32 v{S}, v36, 1, s26
    v_add_u32 v39, {DUM}, v28
    v_add_u32 v36, {2*B5A}, v{S}
    v_cmp_eq_u32 vcc, 0, v35
    v_mul_u32_u24 v37, {B9 - 1 - B7}, v34
    v_lshl_add_u32 v38, v15, 4, v35
    v_cndmask_b32 v{S+1}, v36, v39, vcc
    v_sub_u32 v38, v38, v37
    v_add_u32 v38, {B9}, v38
    v_lshl_add_u32 v{S+2}, v38, 1, s26
    v_add_u32 v37, {2*(BC + 4)}, v28
    v_cmp_eq_u32 vcc, 0, v1
    v_add_u32 v40, {2*(BC + 5)}, v28
    v_add_u32 v41, {2*(B9 + 64)}, v28
    v_cndmask_b32 v{S+3}, v{S+2}, v37, vcc
    v_cndmask_b32 v{S+4}, v39, v40, vcc
    v_cndmask_b32 v{S+5}, v39, v41, vcc
    v_add_u32 v37, {2*(B5A + 32)}, v28
    v_cmp_eq_u32 vcc, 32, v1
    v_and_b32 v38, 31, v1
    v_lshlrev_b32 v38, 4, v38
    v_cndmask_b32 v{S+5}, v{S+5}, v37, vcc
    v_lshl_add_u32 v38, v15, 3, v38
    v_add_u32 v{S+6}, s26, v38            ; 16n + 8hi
    v_and_b32 v37, 30, v1
    v_cmp_eq_u32 vcc, 0, v37
    v_add_u32 v37, {2*1016 - 2*(BA+1+512)}, v28
    v_cndmask_b32 v{S+7}, v37, v{S+6}, vcc
    """)
    for i in range(16): k(f"v_mov_b32 v{KACC+i}, 0")

def cmul(k, z, a, b, t):
    k(f"v_pk_mul_f32 v[{t}:{t+1}], v[{a}:{a+1}], v[{b}:{b+1}] op_sel_hi:[1,0]")
    return f"v_pk_fma_f32 v[{z}:{z+1}], v[{a}:{a+1}], v[{b}:{b+1}], v[{t}:{t+1}] op_sel:[1,1,0] op_sel_hi:[0,1,1] neg_lo:[1,0,0]"
def cmuls(k, lst, tmp):
    for s in [cmul(k, z, a, b, tmp + 2 * i) for i, (z, a, b) in enumerate(lst)]: k(s)

def nloads():
    return "".join(f"global_load_dwordx4 {V4(NR+4*q)}, v{vNO}, {P(pWS)} offset:{64*q} {SC}\n" for q in range(4)) + f"global_load_dword v{NR+16}, v{vMO}, {P(pWS)} {SC}\n"

def hfill(r=16):
    return "".join(f"v_mov_b32 v{r+i}, -1\n" for i in range(4)) + "".join(f"buffer_store_dwordx4 {V4(r)}, v{vL16}, s[12:15], s{72+s} offen {SC}\n" for s in range(6))

def kgen(k, opts):
    AR, BR, CR, DT, DS = PRM, PRM + 2, PRM + 4, PRM + 18, PRM + 20
    TMP, LR, ACC = 14, 22, KACC
    ML = int(opts.get('modlate', 1))
    k(f"""
    s_mov_b32 s86, {LOG2E}
    s_mov_b32 s87, {INV2PI}
    s_mov_b32 s3, 0
    s_waitcnt vmcnt({20 if ML else 25})
    """)
    silu_frags(k, CDAT, LA + 2, MFR)
    k(f"s_waitcnt vmcnt({0 if ML else 5})")
    if ML: mod_dma(k, LA + 5)
    k(f"""
    {f'v_lshlrev_b32 v{DT}, 16, v{DT}' if on('ush') else ''}
    {f'v_lshlrev_b32 v{DS}, 16, v{DS}' if on('ush') else ''}
    v_mul_f32 v14, s86, v{DT}
    v_fma_f32 v15, v{DT}, s86, -v14
    v_fmac_f32 v15, {LOG2E_LO}, v{DT}
    v_exp_f32 v14, v14
    v_mul_f32 v15, {LN2}, v15
    v_fmac_f32 v14, v14, v15
    v_cmp_eq_u32 vcc, 0, v1
    v_cvt_pk_bf16_f32 v14, v14, v14
    v_lshlrev_b32 v{DT}, 16, v14
    v_cndmask_b32 v{ACC}, 0, v{DS}, vcc
    """)
    k.stamp('kparam')
    k("LF_kpass:")
    if on('ush'):
        for i in range(6): k(f"v_lshlrev_b32 v{PRM+i}, 16, v{PRM+i}")
    k(f"""
    v_pk_mul_f32 v[{LR}:{LR+1}], v[{AR}:{AR+1}], v[{DT}:{DT+1}] op_sel_hi:[1,0]
    v_pk_mul_f32 v[{LR}:{LR+1}], v[{LR}:{LR+1}], s[86:87]
    """)
    W = {1: 24, 8: 26, 256: 28, 2: 30, 3: 32, 4: 34, 5: 36, 6: 38, 7: 40, 16: 42, 32: 44, 258: 46, 260: 48, 262: 50, 264: 52, 512: 54}
    Z = [56 + 2 * i for i in range(8)]
    k(f"""
    v_pk_mul_f32 v[20:21], v[{CR}:{CR+1}], v[{BR}:{BR+1}] op_sel_hi:[1,0]
    v_mul_f32 v16, {f2u(8.0)}, v{LR}
    v_mul_f32 v17, {f2u(8.0)}, v{LR+1}
    v_mul_f32 v18, {f2u(256.0)}, v{LR}
    v_mul_f32 v19, {f2u(256.0)}, v{LR+1}
    v_fract_f32 v15, v{LR+1}
    v_fract_f32 v17, v17
    v_fract_f32 v19, v19
    v_exp_f32 v14, v{LR}
    v_exp_f32 v16, v16
    v_exp_f32 v18, v18
    v_pk_fma_f32 v[{Z[0]}:{Z[0]+1}], v[{CR}:{CR+1}], v[{BR}:{BR+1}], v[20:21] op_sel:[1,1,0] op_sel_hi:[0,1,1] neg_lo:[1,0,0]
    """)
    for i, r in enumerate((24, 26, 28)): k(f"v_cos_f32 v{r}, v{15+2*i}\nv_sin_f32 v{r+1}, v{15+2*i}")
    k(f"v_pk_mul_f32 v[{Z[0]}:{Z[0]+1}], v[{Z[0]}:{Z[0]+1}], v[{DT}:{DT+1}] op_sel_hi:[1,0]")
    for i, r in enumerate((24, 26, 28)): k(f"v_pk_mul_f32 v[{r}:{r+1}], v[{r}:{r+1}], v[{14+2*i}:{15+2*i}] op_sel_hi:[1,0]")
    for i in range(6): k(f"v_pk_mov_b32 v[{PRM+2*i}:{PRM+2*i+1}], v[{PRM+6+2*i}:{PRM+7+2*i}], v[{PRM+6+2*i}:{PRM+7+2*i}] op_sel:[0,1]")
    cmuls(k, [(W[2], W[1], W[1]), (W[16], W[8], W[8]), (W[512], W[256], W[256]), (Z[1], Z[0], W[8])], TMP)
    cmuls(k, [(W[3], W[2], W[1]), (W[4], W[2], W[2]), (W[32], W[16], W[16]), (W[258], W[256], W[2])], TMP)
    cmuls(k, [(Z[2], Z[0], W[16]), (Z[3], Z[1], W[16]), (W[5], W[4], W[1]), (W[6], W[4], W[2])], TMP)
    cmuls(k, [(W[7], W[4], W[3]), (W[260], W[256], W[4]), (W[264], W[256], W[8]), (Z[4], Z[0], W[32])], TMP)
    st = {'g': 0}
    NOW = int(opts.get('nokw', 0))
    def half(grp, vals, neg, part):
        pk = 72 + 4 * (st['g'] % 4); st['g'] += 1
        s = '-' if neg and part else ''
        for i in range(4):
            a, b = vals[2 * i], vals[2 * i + 1]
            ra = ('0' if part else '1.0') if a is None else f'{s}v{a+part}'
            k(f"v_cvt_pk_bf16_f32 v{pk+i}, {ra}, {s}v{b+part}")
        if not NOW: k(f"ds_write_b128 v{vKW}, v[{pk}:{pk+3}] offset:{16*grp + 9216*part}")
    def put(grp, vals, neg, between=None):
        half(grp, vals, neg, 0)
        if between: cmuls(k, between, TMP)
        half(grp, vals, neg, 1)
    X = {516: 88, 520: 90, 768: 92, 1024: 94, 772: 96, 1280: 98, 1536: 100, 1792: 102, 2048: W[1]}
    Y = [W[258], W[260], W[262], W[264], W[2], W[3], W[5], W[7]]
    cmuls(k, [(W[262], W[256], W[6]), (Z[5], Z[1], W[32]), (Z[6], Z[2], W[32]), (Z[7], Z[3], W[32])], TMP)
    put(0, [None, W[1], W[2], W[3], W[4], W[5], W[6], W[7]], True, [(X[516], W[512], W[4]), (X[520], W[512], W[8]), (X[768], W[512], W[256]), (X[1024], W[512], W[512])])
    put(1, [W[256], W[256], W[258], W[260], W[260], W[260], W[262], W[264]], True, [(X[772], X[768], W[4]), (X[1280], X[1024], W[256]), (X[1536], X[1024], W[512]), (X[1792], X[1024], X[768])])
    put(4, Z, False, [(Y[0], Z[4], W[32]), (Y[1], Z[5], W[32]), (Y[2], Z[6], W[32]), (Y[3], Z[7], W[32])])
    put(2, [W[512], W[512], W[512], X[516], X[516], X[516], X[520], X[520]], True, [(Y[4], Y[0], W[32]), (Y[5], Y[1], W[32]), (Y[6], Y[2], W[32]), (Y[7], Y[3], W[32])])
    k(f"s_cmp_eq_u32 s3, 1\ns_cbranch_scc1 {'LF_cmod' if on('mmid', 1) else 'LF_arr1'}\ns_cmp_eq_u32 s3, 2\ns_cbranch_scc1 LF_pol1\nLF_noarr1:")
    SPINS.append(f"LF_pol1:\ns_cmp_eq_u32 s21, 0\ns_cbranch_scc0 LF_noarr1\nglobal_load_dword v{vPD}, v{vPA}, {P(pWS)} sc1\ns_branch LF_noarr1")
    a = Asm('x'); a.names = k.names
    a("LF_arr1:")
    if not on('msw', 2): lane_consts(a); mlp_setup(a, opts)
    a("s_waitcnt vmcnt(0)")
    wait_flags(a, 'init', vPD, vPA, 32, None)
    a("s_barrier\ns_cmp_eq_u32 s21, 0\ns_cbranch_scc0 LF_arr1b")
    arrive(a, SM_OFF, vPD, vPT, "s_and_b32 s26, s2, 31")
    a("LF_arr1b:")
    poll_addr(a, S1_OFF, vPA)
    a(f"""v_lshrrev_b32 v{vPT}, 5, v1
    v_lshl_add_u32 v{vPA}, v{vPT}, 16, v{vPA}
    v_cmp_lt_u32 vcc, 47, v1
    v_cndmask_b32 v{vPT}, 8, 7, vcc""")
    a.stamp('arr1')
    a("s_mov_b32 s3, 2\ns_branch LF_kpass" if on('mmid', 1) else "s_branch LF_noarr1")
    SPINS.append('\n'.join(a.lines))
    cmuls(k, [(X[2048], X[1024], X[1024]), (Z[0], Y[4], W[32]), (Z[1], Y[5], W[32]), (Z[2], Y[6], W[32])], TMP)
    put(5, Y, False, [(Z[3], Y[7], W[32]), (Z[4], Z[0], W[32]), (Z[5], Z[1], W[32]), (Z[6], Z[2], W[32])])
    put(3, [X[768], X[1024], X[1536], X[2048], X[772], X[1280], X[1792], X[1024]], True, [(Z[7], Z[3], W[32]), (Y[0], Z[4], W[32]), (Y[1], Z[5], W[32]), (Y[2], Z[6], W[32])])
    put(6, Z, False, [(Y[3], Z[7], W[32]), (Y[4], Y[0], W[32]), (Y[5], Y[1], W[32]), (Y[6], Y[2], W[32])])
    cmuls(k, [(Y[7], Y[3], W[32])], TMP)
    put(7, Y, False)
    k.stamp('ktab_last')
    k("s_cmp_eq_u32 s3, 2\ns_cbranch_scc1 LF_pol2\nLF_nopoll1:")
    SPINS.append(f"LF_pol2:\ns_cmp_eq_u32 s21, 0\ns_cbranch_scc0 LF_nopoll1\nglobal_load_dword v{vP2}, v{vPA}, {P(pWS)} sc1\ns_branch LF_nopoll1")
    FR = 56
    order = [0, 1, 2, 3, 4, 5, 6, 7]
    def rd(s):
        return [f"ds_read_b64_tr_b16 v[{FR + 8*(s % 4) + 4*tb + 2*h}:{FR + 8*(s % 4) + 4*tb + 2*h + 1}], v{vKR} offset:{(16*(s % 4) + h)*144 + 64*tb + 9216*(s // 4)}" for tb in range(2) for h in range(2)]
    k("AUTO")
    for s in range(3):
        for t in rd(s): k(t)
    for s in range(8):
        r = FR + 8 * (s % 4)
        k(f"v_mfma_f32_32x32x16_bf16 v[{ACC}:{ACC+15}], v[{r}:{r+3}], v[{r+4}:{r+7}], v[{ACC}:{ACC+15}]")
        if s + 3 < 8:
            for t in rd(s + 3): k(t)
    if on('mmid', 1): k("MANUAL\ns_cmp_eq_u32 s3, 1\ns_cbranch_scc1 LF_arr1\ns_cmp_eq_u32 s3, 0\ns_mov_b32 s3, 1\ns_cbranch_scc1 LF_kpass")
    else: k("MANUAL\ns_cmp_eq_u32 s3, 0\ns_cbranch_scc1 LF_cmod\ns_cmp_eq_u32 s3, 1\ns_mov_b32 s3, 2\ns_cbranch_scc1 LF_kpass")
    k.stamp('kg3')
    k(f"s_cmp_eq_u32 s21, 0\ns_cbranch_scc0 LF_haven\ns_waitcnt vmcnt(1)\nv_cmp_gt_u32 vcc, v{vPT}, v{vPD}\ns_cbranch_vccz LF_haven\ns_waitcnt vmcnt(0)\nv_mov_b32 v{vPD}, v{vP2}")
    wait_flags(k, 's1', vPD, vPA, f"v{vPT}", None)
    k("LF_haven:\ns_barrier\n" + nloads())
    k.stamp('s1')
    S = SCT
    k(f"""
    v_cmp_ne_u32 vcc, 33, v1
    s_mul_i32 s26, s21, {TAPCH}
    s_add_u32 s26, s26, {TAPS}
    v_add_u32 v14, s26, v{vL16}
    v_cvt_pk_bf16_f32 v24, v{ACC}, v{ACC+1}
    v_cvt_pk_bf16_f32 v25, v{ACC+2}, v{ACC+3}
    v_cvt_pk_bf16_f32 v26, v{ACC+4}, v{ACC+5}
    v_cvt_pk_bf16_f32 v27, v{ACC+6}, v{ACC+7}
    ds_write_b64 v{S+6}, v[24:25] offset:{2*(BA+1)}
    v_cvt_pk_bf16_f32 v28, v{ACC+8}, v{ACC+9}
    v_cvt_pk_bf16_f32 v29, v{ACC+10}, v{ACC+11}
    ds_write_b64 v{S+6}, v[26:27] offset:{2*(BA+1) + 512}
    v_cvt_pk_bf16_f32 v30, v{ACC+8}, v{ACC+12}
    v_cndmask_b32 v29, 0, v29, vcc
    ds_write_b16 v{S+1}, v30
    v_cvt_pk_bf16_f32 v31, v{ACC+13}, v{ACC+14}
    ds_write_b64 v{S+7}, v[28:29] offset:{2*(BA+1) + 1024}
    v_cvt_pk_bf16_f32 v32, v{ACC+15}, v{ACC+15}
    ds_write_b16_d16_hi v{S}, v30 offset:{2*B5A + 32}
    ds_write_b16 v{S+3}, v31
    ds_write_b16 v{S+4}, v31
    ds_write_b16_d16_hi v{S+2}, v31 offset:64
    ds_write_b16 v{S+5}, v32
    AUTO
    ds_read_b128 v[24:27], v{S+8}
    ds_read_b64 v[28:29], v{S+8} offset:16
    ds_read_b128 v[48:51], v{S+8} offset:1024
    ds_read_b64 v[52:53], v{S+8} offset:1040
    """)
    for q, b in enumerate((24, 48)):
        k(f"ds_write_b128 v14, v[{b+2}:{b+5}] offset:{1024*q + 3*TCS}")
        for i in range(4): k(f"v_alignbit_b32 v{b+8+i}, v{b+i+1}, v{b+i}, 16")
        k(f"ds_write_b128 v14, v[{b+8}:{b+11}] offset:{1024*q}")
        for i in range(4): k(f"v_mov_b32 v{b+12+i}, v{b+i+1}")
        k(f"ds_write_b128 v14, v[{b+12}:{b+15}] offset:{1024*q + TCS}")
        for i in range(4): k(f"v_alignbit_b32 v{b+16+i}, v{b+i+2}, v{b+i+1}, 16")
        k(f"ds_write_b128 v14, v[{b+16}:{b+19}] offset:{1024*q + 2*TCS}")
    k("MANUAL")
    k.stamp('kout')

TA0 = 128; T20 = 200
CACC = 12; CU_ = 44; RING = 76; NRING = 8; WTMP = 108; DEC = 132

def conv(k, opts):
    tfr = [f"ds_read_b64_tr_b16 a[{TA0+4*m+2*h}:{TA0+4*m+2*h+1}], v{vTA} offset:{64*m - 8*h + 8}" for m in range(18) for h in range(2)]
    for idx, (base, mu, va) in enumerate([(B5A, 0, vT2), (B5A, 1, vT2), (B5A, 2, vT2), (B5B, 0, vT2), (B5B, 1, vT2), (B5B, 2, vT2)] + [(B7, mu, vT3) for mu in range(4)]):
        tfr += [f"ds_read_b64_tr_b16 a[{T20+4*idx+2*h}:{T20+4*idx+2*h+1}], v{va} offset:{2*(base-3) - 8 + 32*mu - 16*h}" for h in range(2)]
    t2fr = tfr[36:] if on('t2w') else []
    for t in tfr[:56 - len(t2fr)]: k(t)
    k(f"""
    s_lshl_b32 s29, s20, 12
    s_add_u32 s29, s29, {WS_X1}
    s_add_u32 s34, s68, s29
    s_addc_u32 s35, s69, 0
    s_lshl_b32 s28, s21, 12
    s_add_u32 m0, s28, {OU}
    s_mul_i32 s27, s21, {CHS}
    v_mov_b32 v12, 0
    v_mov_b32 v13, 0
    v_mov_b32 v14, 0
    v_mov_b32 v15, 0
    v_min_u32 v17, 29, v1
    v_lshl_add_u32 v17, v17, 4, s27
    v_min_u32 v18, 3, v1
    v_mul_u32_u24 v18, {UD}, v18
    v_add_u32 v18, s27, v18
    s_add_u32 s28, s21, 32
    s_waitcnt vmcnt(0)
    v_add_f32_dpp v40, v{NR+16}, v{NR+16} row_ror:4 row_mask:0xf bank_mask:0xf
    v_add_f32_dpp v40, v40, v40 row_ror:8 row_mask:0xf bank_mask:0xf
    v_cvt_pk_bf16_f32 v40, v40, v40
    v_lshlrev_b32 v40, 16, v40
    ds_bpermute_b32 v42, v{vBP}, v40
    ds_bpermute_b32 v43, v{vBP}, v40 offset:64
    v_readlane_b32 s70, v40, s28
    s_waitcnt lgkmcnt(0)
    s_barrier
    v_add_f32 v43, 1.0, v43
    v_cvt_pk_bf16_f32 v43, v43, 0
    v_lshlrev_b32 v41, 16, v43
    """)
    k.stamp('ndata')
    HT = CU_
    k(f"ds_write_b128 v17, v[12:15]\nds_write_b128 v18, v[12:15] offset:{O3 - 16}")
    for q in range(5):
        if q < 4:
            for x in range(8): k(f"v_dot2_f32_bf16 v{HT+8*q+x}, v{NR+4*q+(x>>1)}, v{41 if x & 1 else 43}, v42")
        if q > 0:
            for i in range(4): k(f"v_cvt_pk_bf16_f32 v{HT+32+4*(q-1)+i}, v{HT+8*(q-1)+2*i}, v{HT+8*(q-1)+2*i+1}")
            k(f"ds_write_b128 v{vWH}, {V4(HT+32+4*(q-1))} offset:{OH + 16*(q-1)}")
    k("s_waitcnt lgkmcnt(0)\ns_barrier")
    k.stamp('prep')
    started = set()
    def M(T, a, b):
        s = mf(CACC + 4 * T, a, b, T not in started); started.add(T); return s
    slots, items = [], []
    def item(e, kind, text, deps=()):
        items.append(dict(id=len(items), e=e, kind=kind, text=text, deps=list(deps))); return len(items) - 1
    ps = list(range(-7, 57))
    LOOK = NRING - 2
    rdtxt = lambda i: f"ds_read_b128 {V4(RING + 4*(i % NRING))}, v{vRD} offset:{64*(ps[i] + 7)}"
    ring, lastw, wwrite, ures = {}, {}, {}, {}
    DI = {'C': 0, 'A': 4, 'B': 10}
    setup = []
    if on('msw', 2):
        ms = Asm('m'); lane_consts(ms); mlp_setup(ms, opts)
        for q, t in enumerate(ms.lines): setup.append(item(q // on('msw', 2), 'sa', t.replace('v10', 'v204').replace('v11', 'v205').replace('v12', 'v206').replace('v13', 'v207'), setup[-1:]))
    img = []
    for q in range(8):
        t = f"global_load_lds_dwordx4 v{vUO if q < 4 else vSG}, {P(pWS)} offset:{1024*(q & 3)} {SC} ; @w:U" + ("\ns_add_u32 m0, m0, 16384" if q == 3 else "")
        img.append(item(1 + 2 * q, 'va', t, img[-1:]))
    if int(opts.get('w2t', 0)):
        w2 = []
        for q, t in enumerate(["s_lshr_b32 s26, s2, 5", "s_mul_i32 s26, s26, 12288", "v_lshlrev_b32 v200, 7, v1", "buffer_load_dword v201, v200, s[8:11], s26 offen",
                               "v_min_u32 v200, 3968, v200", "s_add_u32 s26, s26, 8192", "buffer_load_dword v201, v200, s[8:11], s26 offen"]):
            w2.append(item(int(opts.get('w2t')) + 2 * q, 'va', t, w2[-1:]))
    t2i = [item(100 + 2 * q, 'ds', t) for q, t in enumerate(t2fr)]
    hf = []
    for q, t in enumerate(hfill(196).strip().split('\n')): hf.append(item(4 + q if q < 4 else 20 + int(opts.get('hs', 4)) * q, 'va', t, hf[-1:] + (setup[-1:] if q >= 4 else [])))
    if on('xo', 1):
        for q in range(4): hf.append(item(int(opts.get('xe', 14)) + 4 * q, 'va', f"global_store_dwordx4 v{vL16}, v[196:199], s[34:35] offset:{1024*q} {SC}", hf[3:4]))
    ubar = None
    for i, p in enumerate(ps):
        if i + LOOK < len(ps): ring[i + LOOK] = item(len(slots), 'ring', rdtxt(i + LOOK))
        b = V4(RING + 4 * (i % NRING)); dep = [ring[i]] if i in ring else []
        for T in range(8):
            m = 8 * T - p
            if 0 <= m <= 16: slots.append((M(T, A4(TA0 + 4 * m), b), dep))
            if T >= 4 and m == 32: slots.append((M(T, A4(TA0 + 68), b), dep))
        if p % 8 == 0 and 0 <= p <= 40:
            T = p // 8
            for pr, off in enumerate((O3, O7)):
                if pr == 1 and T >= 4: continue
                t = WTMP + 8 * pr; o = WTMP + 16 + 4 * pr
                for wi in range(2): slots.append((mf(t + 4 * wi, V4(BAND + 4 + 8 * pr + 4 * wi), b, True), dep + lastw.get(pr, [])))
                e = len(slots) + 3
                c = [item(e, 'va', f"v_cvt_pk_bf16_f32 v{o+q}, v{t+2*q}, v{t+2*q+1}") for q in range(4)]
                s0 = item(e + 3, 'va', f"v_permlane16_swap_b32 v{o}, v{o+2}", c)
                s1 = item(e + 3, 'va', f"v_permlane16_swap_b32 v{o+1}, v{o+3}", c)
                w = item(e + 4, 'ds', f"ds_write_b128 v{vWU}, {V4(o)} offset:{off + 512*T}", [s0, s1])
                lastw[pr] = [w]; wwrite.setdefault(T, []).append(w)
            for kind in 'CAB':
                if kind == 'C' and T > 3: continue
                va = {'A': vDA, 'B': vDB, 'C': vD3}[kind]
                r = DEC + 4 * (DI[kind] + T)
                lastw[(kind, T)] = [item(len(slots) + 4, 'ds', f"ds_read_b64_tr_b16 v[{r+2*h}:{r+2*h+1}], v{va} offset:{512*T + 256*h}", wwrite[T]) for h in range(2)]
        if p == 24: ubar = item(len(slots), 'va', "s_barrier ; @r:U", img)
        if p in (26, 29, 33, 36, 39, 44, 48, 52):
            T = (26, 29, 33, 36, 39, 44, 48, 52).index(p)
            ures[T] = item(len(slots), 'ds', f"ds_read_b128 {V4(CU_ + 4*T)}, v{vRU} offset:{2048*T}", [ubar])
    E0 = int(opts.get('e0', 70)); NE1 = int(opts.get('ne1', 20))
    f0_ = item(E0, 'va', f"global_load_dword v{vF1D}, v{vF1A}, {P(pWS)} sc1", setup[-1:] + hf)
    f1 = item(E0 + 45, 'va', f"v_cmp_gt_u32 vcc, 1, v{vF1D}\ns_cmp_eq_u64 vcc, 0\ns_cselect_b32 s6, 61440, 0", [f0_])
    ld = Loader(); prev = f1
    for i in range(NE1): prev = item(E0 + 47 + i * (198 - E0 - 52) // NE1, 'va', ld.w1(), [prev])
    fm = {}; ndirect = len(slots)
    allw = [w for ws_ in wwrite.values() for w in ws_]
    for T in range(8):
        idr = RING + 4 * (T % 4)
        slots.append((f"v_mfma_f32_16x16x32_bf16 {V4(idr)}, {V4(BAND)}, {V4(CU_ + 4*T)}, 0", [ures[T]] + fm.get(T - 4, [])))
        e0 = len(slots) + 3
        for kind, b0, nmu, t0 in (('C', 4, 4, 6), ('A', 2, 3, 0), ('B', 2, 3, 3)):
            for mu in range(nmu):
                P_ = T - b0 - mu
                if P_ >= 0: slots.append((M(T, V4(DEC + 4 * (DI[kind] + P_)), A4(T20 + 4 * (t0 + mu))), lastw[(kind, P_)] + t2i))
        e = len(slots) + 3
        sr = (202, 92, 100)[T % 3]
        sd = [item(ndirect - (8 if T == 0 else 0), 'ds', f"ds_read_b128 {V4(sr+4*h)}, v{vSA} offset:{2048*T + 1024*h}", [ubar] + fm.get(T - 3, [])) for h in range(2)]
        f0 = [item(e0, 'va', f"v_fma_f32 v{idr+r}, v{idr+r}, v{sr+2*r}, v{sr+2*r+1}", sd) for r in range(4)]
        fm[T] = [item(e, 'va', f"v_fma_f32 v{CACC+4*T+r}, v{CACC+4*T+r}, s70, v{idr+r}", f0) for r in range(4)]
        o = WTMP + 4 * (T >> 1) + 2 * (T & 1)
        fm[('c', T)] = [item(e, 'va', f"v_cvt_pk_bf16_f32 v{o+h}, v{CACC+4*T+2*h}, v{CACC+4*T+2*h+1}", fm[T] + allw) for h in range(2)]
        if T & 1: item(e, 'va', f"global_store_dwordx4 v{vL16}, {V4(WTMP + 4*(T >> 1))}, s[34:35] offset:{1024*(T >> 1)} {SC}", fm[('c', T)] + fm[('c', T - 1)] + [f1])
    k("AUTO")
    for i in range(LOOK): k(rdtxt(i))
    weave(k, slots, items)
    k("MANUAL")
    k.stamp('convend')

def weave(k, slots, items):
    done = set()
    def emit(n):
        if n in done: return
        for d in items[n]['deps']: emit(d)
        done.add(n); k(items[n]['text'])
    def pick(kinds, i):
        for it in items:
            if it['id'] not in done and it['kind'] in kinds and it['e'] <= i and all(d in done for d in it['deps']): return it['id']
        return None
    for i, (m, deps) in enumerate(slots):
        for d in deps: emit(d)
        k(m)
        n = pick(('ring',), i)
        if n is None: n = pick(('ds',), i)
        if n is not None: emit(n)
        for _ in range(3):
            n2 = pick(('sa',), i)
            if n2 is not None: emit(n2)
        for _ in range(1 if n is not None else 2):
            n2 = pick(('va',), i)
            if n2 is not None: emit(n2)
    for it in items: emit(it['id'])

def side(k, opts):
    k(f"""
    s_lshr_b32 s34, s20, 2
    s_and_b32 s35, s20, 3
    s_lshl_b32 s32, s34, 2
    s_add_u32 s32, s32, s21
    """)
    if on('w1late'):
        k(f"""
    v_lshrrev_b32 v2, 3, v1
    v_and_b32 v3, 6, v2
    v_and_b32 v4, 7, v1
    v_xor_b32 v3, v3, v4
    v_mul_u32_u24 v2, 3072, v2
    v_lshl_add_u32 v2, v3, 4, v2
    s_mul_i32 s33, s35, 160
    s_mul_i32 s26, s21, 40
    s_add_u32 s33, s33, s26
    s_mul_i32 s33, s33, 3072
    s_lshl_b32 s26, s34, 7
    s_add_u32 s33, s33, s26
    v_add_u32 v2, s33, v2
    s_mul_i32 s26, s21, 5120
    s_add_u32 m0, s26, {W1R}
    s_lshr_b32 s24, s20, 1
    s_and_b32 s25, s20, 1                 ; half
    """)
        for i in range(5):
            k(f"global_load_lds_dwordx4 v2, {P(pW1)}")
            k(f"s_add_u32 m0, m0, 1024\nv_add_u32 v2, {8*3072}, v2" if i < 4 else f"s_add_u32 m0, s26, {W2R}")
    else:
        k(f"""
    s_mul_i32 s26, s21, 5120
    s_add_u32 m0, s26, {W2R}
    s_lshr_b32 s24, s20, 1
    s_and_b32 s25, s20, 1                 ; half
    """)
    k(f"""
    s_mul_i32 s33, s24, {32*1280}
    s_mul_i32 s26, s25, 640
    s_add_u32 s33, s33, s26
    s_mul_i32 s27, s21, 320
    """)
    for i in range(5):
        k(f"""
        v_add_u32 v3, {64*i}, v1
        v_add_u32 v3, s27, v3
        v_mul_u32_u24 v4, 1639, v3
        v_lshrrev_b32 v4, 16, v4
        v_mul_u32_u24 v4, 640, v4
        v_lshl_add_u32 v3, v3, 4, v4
        v_add_u32 v3, s33, v3
        global_load_lds_dwordx4 v3, {P(pW2)}
        """)
        if i < 4: k("s_add_u32 m0, m0, 1024")
    lane_consts(k)
    k(f"""
    v_lshl_add_u32 v9, v12, 2, v11
    v_mul_u32_u24 v9, 640, v9
    v_lshl_add_u32 v9, v10, 3, v9
    s_mul_i32 s26, s21, 160
    s_add_u32 s26, s26, {W2R}
    v_add_u32 v9, s26, v9
    v_lshrrev_b32 v5, 1, v12
    v_and_b32 v6, 1, v12
    v_lshlrev_b32 v5, 4, v5
    v_lshl_add_u32 v5, v6, 2, v5          ; 16(G>>1) + 4(G&1)
    v_add_u32 v2, v5, v11
    v_and_b32 v3, 6, v2
    s_lshl_b32 s26, s21, 1
    v_xor_b32 v3, s26, v3
    v_lshrrev_b32 v4, 1, v10
    v_add_u32 v3, v3, v4
    v_lshlrev_b32 v3, 4, v3
    v_lshl_add_u32 v3, v2, 7, v3
    v_and_b32 v4, 1, v1
    v_lshl_add_u32 v3, v4, 3, v3
    v_add_u32 v130, {W1R}, v3
    ; W2F destination: ((j*4 + KS/12)*12 + order(KS%12))*5 KB, j = 4*half + wave
    s_mul_hi_u32 s26, s24, 0x15555556
    s_mul_i32 s27, s26, 12
    s_sub_u32 s27, s24, s27
    s_lshl_b32 s27, s27, 2
    s_mov_b32 s28, {KORD & 0xffffffff}
    s_mov_b32 s29, {KORD >> 32}
    s_lshr_b64 s[28:29], s[28:29], s27
    s_and_b32 s27, s28, 15
    s_lshl_b32 s28, s25, 2
    s_add_u32 s28, s28, s21
    s_lshl_b32 s28, s28, 2
    s_add_u32 s26, s26, s28
    s_mul_i32 s26, s26, 12
    s_add_u32 s26, s26, s27
    s_mul_i32 s26, s26, 5120
    s_add_u32 s26, s26, {WS_W2F}
    v_add_u32 v129, s26, v{vL16}
    s_mul_i32 s26, s35, 640
    s_add_u32 s26, s26, 7680
    v_lshl_add_u32 v14, v1, 2, s26
    v_and_b32 v15, 31, v1
    v_lshl_add_u32 v15, v15, 2, s26
    ; W1F destination
    s_mul_hi_u32 s26, s32, 0x55555556
    s_mul_i32 s27, s26, 3
    s_sub_u32 s27, s32, s27
    s_add_u32 s28, s27, 2
    s_cmp_ge_u32 s28, 3
    s_cselect_b32 s29, 3, 0
    s_sub_u32 s28, s28, s29
    s_bitcmp1_b32 s26, 0
    s_cselect_b32 s27, s28, s27           ; pass
    s_mul_i32 s26, s26, 60
    s_mul_i32 s28, s35, 10
    s_add_u32 s28, s28, s27
    s_mul_i32 s29, s35, 5
    s_add_u32 s29, s29, 40
    s_cmp_lt_u32 s27, 2
    s_cselect_b32 s28, s28, s29
    s_cselect_b32 s33, 2, 1
    s_lshl_b32 s33, s33, 10
    s_add_u32 s26, s26, s28
    s_lshl_b32 s26, s26, 10
    s_add_u32 s26, s26, {WS_W1F}
    v_add_u32 v128, s26, v{vL16}
    s_lshl_b32 s26, s21, 10
    s_add_u32 s26, s26, {VRED}
    v_lshl_add_u32 v6, v1, 2, s26
    v_and_b32 v7, 31, v1
    v_lshl_add_u32 v2, v7, 1, s26
    v_lshl_add_u32 v7, v7, 2, s26
    v_lshl_add_u32 v4, v1, 1, s26
    v_lshl_add_u32 v3, v5, 1, s26
    v_lshl_add_u32 v5, v5, 2, s26
    s_mul_i32 s26, s35, 12288
    s_lshl_b32 s27, s32, 6
    s_add_u32 s26, s26, s27
    s_add_u32 s26, s26, {WS_V12}
    v_lshl_add_u32 v127, v12, 4, s26
    v_add_u32 v126, 6144, v127
    s_lshl_b32 s26, s32, 7
    s_lshl_b32 s27, s35, 2
    s_add_u32 s26, s26, s27
    s_add_u32 s26, s26, {WS_SYNC + F1_OFF}
    v_mov_b32 v125, s26
    v_mov_b32 v124, 1
    v_mov_b32 v100, 0x3f803f80
    v_mov_b32 v101, 0x3f803f80
    v_mov_b32 v102, 0x3f803f80
    v_mov_b32 v103, 0x3f803f80
    """)
    poll_addr(k, SM_OFF, vPA)
    k("s_waitcnt vmcnt(0)\ns_barrier")
    k.stamp('w1raw')
    k(f"v_bfe_u32 v{vPT}, v1, 4, 1\nv_sub_u32 v{vPT}, 8, v{vPT}\nAUTO")
    for dt in range(5):
        for h in range(2): k(f"ds_read_b64_tr_b16 v[{16+4*dt+2*h}:{17+4*dt+2*h}], v9 offset:{10240*h + 32*dt}")
    for i in range(5):
        for h in range(2): k(f"ds_read_b64_tr_b16 v[{40+4*i+2*h}:{41+4*i+2*h}], v130 offset:{4096*i + 1024*h}")
    for i in range(5):
        for q in range(4): k(f"v_lshlrev_b32 v{136+8*i+2*q}, 16, v{40+4*i+q}\nv_and_b32 v{137+8*i+2*q}, 0xffff0000, v{40+4*i+q}")
    k(f"s_cmp_eq_u32 s21, 0\ns_cbranch_scc0 LF_sd2\nglobal_load_dword v{vPD}, v{vPA}, {P(pWS)} sc1")
    wait_flags(k, 'sm', vPD, vPA, f"v{vPT}", None, int(opts.get('slp', 8)))
    k("LF_sd2:\ns_barrier")
    k.stamp('s1')
    for kq in range(4):
        for wh in range(2):
            for c in range(3):
                k(f"global_load_dword v{60 + 6*kq + 3*wh + c}, v{14 if c < 2 else 15}, {P(pWS)} offset:{2560*wh + 256*c} {SC}")
        if kq < 3: k("v_add_u32 v14, 15360, v14\nv_add_u32 v15, 15360, v15")
    for dt in range(5):
        k(f"global_store_dwordx4 v129, {V4(16+4*dt)}, {P(pWS)} {SC}" + ("\nv_add_u32 v129, 1024, v129" if dt < 4 else ""))
    for i in range(3): k(f"v_pk_add_f32 v[{60+2*i}:{61+2*i}], v[{60+2*i}:{61+2*i}], v[{66+2*i}:{67+2*i}]")
    for i in range(3): k(f"v_pk_add_f32 v[{72+2*i}:{73+2*i}], v[{72+2*i}:{73+2*i}], v[{78+2*i}:{79+2*i}]")
    for i in range(3): k(f"v_pk_add_f32 v[{60+2*i}:{61+2*i}], v[{60+2*i}:{61+2*i}], v[{72+2*i}:{73+2*i}]")
    for c in range(3): k(f"v_cvt_pk_bf16_f32 v{60+c}, v{63+c}, v{60+c}")
    for c in range(3): k(f"v_lshlrev_b32 v{63+c}, 16, v{60+c}\nds_write_b16_d16_hi v{4 if c < 2 else 2}, v{60+c} offset:{640 + 128*c}")
    for c in range(3): k(f"v_add_f32 v{63+c}, 1.0, v{63+c}")
    for c in range(3): k(f"v_cvt_pk_bf16_f32 v{63+c}, v{63+c}, v{63+c}")
    for c in range(3): k(f"v_lshlrev_b32 v{63+c}, 16, v{63+c}\nds_write_b32 v{6 if c < 2 else 7}, v{63+c} offset:{256*c}")
    k.stamp('ndata')
    for i in range(5):
        g = 180 + 12 * i
        for h in range(2): k(f"ds_read_b128 {V4(g+4*h)}, v5 offset:{128*i + 32*h}")
        for h in range(2): k(f"ds_read_b64 v[{g+8+2*h}:{g+9+2*h}], v3 offset:{640 + 64*i + 16*h}")
    for i in range(5):
        g = 180 + 12 * i; u = 136 + 8 * i; o4 = 64 + 4 * i
        for q in range(4): k(f"v_pk_mul_f32 v[{u+2*q}:{u+2*q+1}], v[{u+2*q}:{u+2*q+1}], v[{g+2*q}:{g+2*q+1}]")
        for q in range(4): k(f"v_cvt_pk_bf16_f32 v{o4+q}, v{u+2*q}, v{u+2*q+1}")
        k(f"global_store_dwordx4 v128, {V4(o4)}, {P(pWS)} {SC} ; @w:W1F" + ("\nv_add_u32 v128, s33, v128" if i < 4 else ""))
    for i in range(5):
        k(mf(112, V4(64 + 4 * i), V4(100), i == 0))
        k(mf(116, V4(40 + 4 * i), V4(188 + 12 * i), i == 0))
    k(f"""
    s_mov_b32 exec_lo, 0x00010001
    s_mov_b32 exec_hi, 0x00010001
    global_store_dwordx4 v127, v[112:115], {P(pWS)} {SC} ; @w:W1F
    global_store_dwordx4 v126, v[116:119], {P(pWS)} {SC} ; @w:W1F
    s_mov_b64 exec, -1
    """)
    k(f"s_mov_b64 exec, 1 ; @r:W1F\nglobal_store_dword v125, v124, {P(pWS)} sc1\ns_mov_b64 exec, -1\nMANUAL")
    k.stamp('f1pub')

ST = 16; V12 = 24; ACA, ACB = 48, 80; BF = 96; NBF = 6; TMP = 192; PKD = 208; SQ, SM, ONES = 224, 228, 232; XA = 236
AC2 = 24; HR = 104; NRK = 8; GB = 232; HA = 4
BORD = list(range(20 - NBF, 20)) + list(range(20 - NBF))
W2SLOT = list(range(40)) + [40 + ks for ks in BORD]

class Loader:
    def __init__(self): self.n1 = 0; self.n2 = 0; self.blk = {}
    def txt(self, n, slot, srd_, sreg):
        t = ""
        if self.blk.get(sreg) != n // 4: t = f"s_mov_b32 s{sreg}, {n // 4 * 4096}\n"; self.blk[sreg] = n // 4
        return t + f"buffer_load_dwordx4 a[{4*slot}:{4*slot+3}], v{vL16}, s[{srd_}:{srd_+3}], s{sreg} offen offset:{(n % 4) * 1024} {SC}"
    def w1(self): self.n1 += 1; return self.txt(W2SLOT[self.n1 - 1], W2SLOT[self.n1 - 1], 4, 28)
    def w2(self):
        self.n2 += 1; n = self.n2 - 1; slot = W2SLOT[n]
        if not on('rot'): return self.txt(n, slot, 8, 29)
        return f"buffer_load_dwordx4 a[{4*slot}:{4*slot+3}], v{vL16 if n % 5 < 4 else 2}, s[8:11], s{36 + n // 5} offen offset:{(n % 5 % 4) * 1024} {SC}"
    def next(self, free):
        if self.n1 < 60: return self.w1()
        if self.n2 < min(free, 60): return self.w2()
        return None

def breads(ks, buf):
    b = BF + 16 * (buf % NBF)
    return [f"ds_read_b64_tr_b16 v[{b+4*s+2*h}:{b+4*s+2*h+1}], v{XA + s + (4 if ks >= 10 else 0)} offset:{4096*(ks % 10) + 1024*h}" for s in range(4) for h in range(2)]

def epilogue(acc, p, dst, dstep):
    v1, v2 = V12 + 8 * p, V12 + 8 * p + 4
    o = []
    for s in range(4):
        for h in range(2):
            a = acc + 4 * s + 2 * h
            o.append(f"v_pk_fma_f32 v[{a}:{a+1}], v[{v1+2*h}:{v1+2*h+1}], v[{ST+2*s}:{ST+2*s+1}], v[{a}:{a+1}] op_sel_hi:[1,0,1] neg_lo:[1,0,0] neg_hi:[1,0,0]")
    for s in range(4):
        for h in range(2):
            a = acc + 4 * s + 2 * h
            o.append(f"v_pk_fma_f32 v[{a}:{a+1}], v[{a}:{a+1}], v[{ST+2*s}:{ST+2*s+1}], v[{v2+2*h}:{v2+2*h+1}] op_sel:[0,1,0] op_sel_hi:[1,1,1]")
    o += [f"v_exp_f32 v{TMP+i}, v{acc+i}" for i in range(16)]
    o += [f"v_pk_add_f32 v[{TMP+2*i}:{TMP+2*i+1}], v[{TMP+2*i}:{TMP+2*i+1}], 1.0 op_sel_hi:[1,0]" for i in range(8)]
    o += [f"v_rcp_f32 v{TMP+i}, v{TMP+i}" for i in range(16)]
    o += [f"v_pk_mul_f32 v[{acc+2*i}:{acc+2*i+1}], v[{acc+2*i}:{acc+2*i+1}], v[{TMP+2*i}:{TMP+2*i+1}]" for i in range(8)]
    o += [f"v_cvt_pk_bf16_f32 v{dst + dstep*s + h}, v{acc+4*s+2*h}, v{acc+4*s+2*h+1}" for s in range(4) for h in range(2)]
    return o

def sprinkle(k, ops, extra):
    extra = [e for e in extra if e]
    step = len(ops) / (len(extra) + 1); nxt = step
    for i, o in enumerate(ops):
        k(o)
        while extra and i + 1 >= nxt: k(extra.pop(0)); nxt += step
    for e in extra: k(e)

def mlp(k, opts):
    PRE1 = int(opts.get('pre1', 4)); PB = int(opts.get('pb', 60))
    ld = Loader()
    ld.n1 = int(opts.get('ne1', 20))
    if not on('xo', 1):
        for i in range(PRE1): k(ld.w1() + " ; @skip")
        k(f"s_waitcnt vmcnt({PRE1})")
    k(f"s_mov_b32 s71, 0\ns_barrier\ns_cmp_eq_u32 s21, 0\ns_cbranch_scc0 LF_m1")
    arrive(k, S2_OFF, 12, 13)
    k("LF_m1:")
    k.stamp('arr2')
    k("s_mov_b32 s92, 0")
    k(f"s_cmp_eq_u32 s6, 0\ns_cbranch_scc0 LF_w1ok\nglobal_load_dword v{vF1D}, v{vF1A}, {P(pWS)} sc1")
    wait_flags(k, 'f1', vF1D, vF1A, 1, 0)
    k("s_mov_b32 s6, 61440")
    l2 = Loader()
    while l2.n1 < ld.n1: k(l2.w1())
    k("LF_w1ok:"); ld.blk = {}
    k.stamp('w1ok')
    for kq in range(4):
        k(f"global_load_dword v{48+2*kq}, v{vVA+4}, {P(pWS)} {SC}\nglobal_load_dword v{49+2*kq}, v{vVA+5}, {P(pWS)} offset:256 {SC}")
        if kq < 3: k(f"v_add_u32 v{vVA+4}, 15360, v{vVA+4}\nv_add_u32 v{vVA+5}, 15360, v{vVA+5}")
    for i in range(8): k(f"global_load_dword v{56+i}, v{vVA}, {P(pWS)} {SC}" + (f"\nv_add_u32 v{vVA}, 6144, v{vVA}" if i < 7 else ""))
    n0 = ld.n1
    kmain = k; k = Asm('s'); k.names = kmain.names
    k(f"""
    s_mul_i32 s26, s21, 320
    s_add_u32 s26, s26, {GBL}
    v_lshl_add_u32 v12, v1, 2, s26
    v_and_b32 v13, 15, v1
    v_lshl_add_u32 v13, v13, 2, s26
    s_lshl_b32 s26, s21, 9
    s_add_u32 s26, s26, {GBL + 1280}
    v_lshl_add_u32 v15, v1, 2, s26
    v_lshrrev_b32 v14, 4, v1
    v_lshl_add_u32 v14, v14, 4, s26
    SMALL
    v_pk_add_f32 v[56:57], v[56:57], v[58:59]
    v_pk_add_f32 v[60:61], v[60:61], v[62:63]
    v_pk_add_f32 v[56:57], v[56:57], v[60:61]
    v_mul_f32 v57, {LOG2E + 0x80000000}, v57
    ds_write_b32 v15, v56
    ds_write_b32 v15, v57 offset:256
    ds_read_b128 {V4(V12)}, v14
    ds_read_b128 {V4(V12+4)}, v14 offset:256
    ds_read_b128 {V4(V12+8)}, v14 offset:64
    ds_read_b128 {V4(V12+12)}, v14 offset:320
    ds_read_b128 {V4(V12+16)}, v14 offset:128
    ds_read_b128 {V4(V12+20)}, v14 offset:384
    v_pk_add_f32 v[48:49], v[48:49], v[50:51]
    v_pk_add_f32 v[52:53], v[52:53], v[54:55]
    v_pk_add_f32 v[48:49], v[48:49], v[52:53]
    v_cvt_pk_bf16_f32 v48, v48, v49
    v_and_b32 v49, 0xffff0000, v48
    v_lshlrev_b32 v48, 16, v48
    v_mul_f32 v48, {LN2 + 0x80000000}, v48
    v_mul_f32 v49, {LN2 + 0x80000000}, v49
    ds_write_b32 v12, v48
    ds_write_b32 v13, v49 offset:256
    v_lshrrev_b32 v14, 4, v1              ; G
    v_bfe_u32 v12, v1, 2, 2               ; r
    v_and_b32 v13, 1, v14
    v_lshl_add_u32 v15, v13, 2, v12
    v_lshrrev_b32 v13, 1, v14
    v_lshl_add_u32 v13, v13, 4, v15
    v_lshlrev_b32 v13, 7, v13
    v_and_b32 v12, 1, v1
    v_lshl_add_u32 v13, v12, 3, v13
    v_bfe_u32 v12, v1, 1, 1
    v_lshl_add_u32 v13, v12, 4, v13
    v_and_b32 v15, 6, v15
    """)
    for s in range(4):
        k(f"s_xor_b32 s26, s21, {s}\ns_lshl_b32 s26, s26, 1\nv_xor_b32 v12, s26, v15\nv_lshl_add_u32 v{XA+s}, v12, 4, v13\nv_add_u32 v{XA+4+s}, 40960, v{XA+s}")
    k(f"""
    v_lshrrev_b32 v12, 3, v1
    v_and_b32 v13, 6, v12
    v_and_b32 v15, 7, v1
    v_xor_b32 v13, v13, v15
    v_lshlrev_b32 v12, 12, v12
    v_lshl_add_u32 v3, v13, 4, v12
    s_lshl_b32 s26, s21, 15
    s_lshl_b32 s27, s22, 7
    s_add_u32 s26, s26, s27
    s_add_u32 s26, s26, {WS_X1}
    v_add_u32 v3, s26, v3
    s_lshl_b32 s26, s21, 10
    s_mov_b32 m0, s26
    v_mov_b32 v{ONES}, 0x3f803f80
    v_mov_b32 v{ONES+1}, 0x3f803f80
    v_mov_b32 v{ONES+2}, 0x3f803f80
    v_mov_b32 v{ONES+3}, 0x3f803f80
    s_lshr_b32 s30, s21, 1
    s_lshl_b32 s30, s30, 12
    s_add_u32 s30, s30, {RED}
    s_and_b32 s31, s21, 1
    s_lshl_b32 s31, s31, 3
    v_add_u32 v244, s30, v{vL16}
    v_add_u32 v245, s31, v244
    s_lshl_b32 s26, s22, 9
    s_add_u32 s26, s26, {WS_SYNC + F3_OFF}
    s_lshr_b32 s27, s23, 1
    s_lshl_b32 s27, s27, 7
    s_and_b32 s30, s23, 1
    s_lshl_b32 s30, s30, 4
    s_add_u32 s27, s27, s30
    s_lshl_b32 s30, s21, 2
    s_add_u32 s27, s27, s30
    s_add_u32 s27, s27, s26
    v_mov_b32 v10, s27
    s_lshl_b32 s30, s21, 7
    s_add_u32 s26, s26, s30
    v_and_b32 v11, 7, v1
    v_lshl_add_u32 v11, v11, 2, s26
    s_mul_i32 s78, s21, {12*4096}
    v_and_b32 v9, 15, v1
    v_lshlrev_b32 v9, 3, v9
    s_lshl_b32 s26, s21, 7
    s_add_u32 s26, s26, {STAT}
    v_add_u32 v9, s26, v9
    v_and_b32 v13, 3, v1
    v_cmp_eq_u32 s[84:85], 1, v13
    v_cmp_eq_u32 s[86:87], 2, v13
    v_cmp_eq_u32 s[88:89], 3, v13
    v_bfe_u32 v15, v1, 2, 2
    v_cmp_eq_u32 s[90:91], v14, v15
    """)
    for s in range(4): k(f"v_add_u32 v{HA+s}, s{80+s}, v{vL16}")
    tail_addr = f"""
    s_lshl_b32 s26, s21, 1
    v_lshrrev_b32 v3, 4, v1
    v_bfe_u32 v0, v1, 2, 2
    v_lshl_add_u32 v0, v3, 2, v0
    v_and_b32 v16, 6, v0
    v_xor_b32 v16, s26, v16
    v_bfe_u32 v17, v1, 1, 1
    v_add_u32 v16, v16, v17
    v_lshlrev_b32 v16, 4, v16
    v_lshl_add_u32 v16, v0, 7, v16
    v_and_b32 v17, 1, v1
    v_lshl_add_u32 v16, v17, 3, v16
    s_mul_i32 s26, s23, {80*128}
    v_add_u32 v16, s26, v16
    s_mul_i32 s74, s21, 15360
    s_add_u32 s74, s74, {RED}
    v_and_b32 v17, 15, v1
    v_mul_u32_u24 v17, 176, v17
    v_lshl_add_u32 v17, v3, 3, v17
    v_add_u32 v17, s74, v17
    v_add_u32 v18, s74, v{vL16}
    s_mul_i32 s26, s21, 320
    s_add_u32 s26, s26, {GBL}
    v_lshl_add_u32 v22, v3, 4, s26
    s_lshr_b32 s26, s22, 3
    s_lshl_b32 s26, s26, 9
    s_and_b32 s27, s22, 1
    s_lshl_b32 s27, s27, 7
    s_add_u32 s26, s26, s27
    s_bfe_u32 s27, s22, 0x20001
    s_lshl_b32 s27, s27, 2
    s_add_u32 s26, s26, s27
    s_lshl_b32 s27, s21, 5
    s_add_u32 s26, s26, s27
    s_mul_i32 s26, s26, 1280
    s_mul_i32 s27, s23, 160
    s_add_u32 s75, s26, s27
    """
    first = ""
    for s in range(1, 4): first += f"s_xor_b32 s26, s21, {s}\ns_mul_i32 s26, s26, 15360\ns_add_u32 s26, s26, {RED + 5120*(s-1)}\nv_add_u32 v{4+s}, s26, v{vL16}\n"
    for i in range(3):
        tail_addr += f"""
        v_add_u32 v23, {64*i}, v1
        v_mul_u32_u24 v2, 6554, v23
        v_lshrrev_b32 v2, 16, v2
        v_mul_u32_u24 v3, 10, v2
        v_sub_u32 v23, v23, v3
        v_mul_u32_u24 v3, 176, v2
        v_lshl_add_u32 v3, v23, 4, v3
        v_add_u32 v{19+i}, s74, v3
        v_bfe_u32 v3, v2, 2, 1
        v_lshlrev_b32 v3, 8, v3
        v_bfe_u32 v0, v2, 3, 1
        v_lshl_add_u32 v3, v0, 4, v3
        v_and_b32 v0, 3, v2
        v_add_u32 v3, v3, v0
        v_mul_u32_u24 v3, 1280, v3
        v_lshl_add_u32 v{252+i}, v23, 4, v3
        """
    tail_addr += "v_lshrrev_b32 v2, 5, v1\nv_lshlrev_b32 v2, 30, v2\nv_add_u32 v254, v254, v2\n"
    if on('stash', 1):
        PARK = [16, 17, 18, 19, 20, 21, 22, 252, 253, 254]
        k(tail_addr.replace('v3', 'v12').replace('v0', 'v13').replace('s74', 's93').replace('s75', 's94'))
        for n, r in enumerate(PARK): k(f"v_accvgpr_write_b32 a{240+n}, v{r}")
        k(first.replace('v5,', 'v16,').replace('v6,', 'v17,').replace('v7,', 'v18,'))
        for n in range(3): k(f"v_accvgpr_write_b32 a{250+n}, v{16+n}")
        tail_addr = "".join(f"v_accvgpr_read_b32 v{r}, a{240+n}\n" for n, r in enumerate(PARK))
        first = "".join(f"v_accvgpr_read_b32 v{5+n}, a{250+n}\n" for n in range(3))
    if on('rot'):
        KP = sum(KSEQ[i] << (4 * i) for i in range(8)); KS = sum(KSEQ[8 + i] << (4 * i) for i in range(4))
        k(f"s_lshl_b32 s26, s23, 1\ns_add_u32 s26, s26, s22\ns_mul_i32 s26, s26, {on('rot')}\nv_add_u32 v2, 4096, v{vL16}")
        for i in range(12):
            m, b, K_ = (7, 0, KP) if i < 8 else (3, 40960, KS)
            k(f"s_add_u32 s27, s26, {i}\ns_and_b32 s27, s27, {m}\ns_mul_i32 s{36+i}, s27, 5120\ns_lshl_b32 s27, s27, 2\ns_lshr_b32 s27, {K_}, s27\ns_and_b32 s27, s27, 15\ns_lshl_b32 s27, s27, 12\ns_add_u32 s{48+i}, s27, s78")
            if b: k(f"s_add_u32 s{36+i}, s{36+i}, {b}")
    lines = k.lines; k = kmain
    cut_ = lines.index('SMALL')
    nsm = next(i for i, l in enumerate(lines) if i > cut_ and l.startswith('v_lshrrev_b32 v14, 4, v1'))
    pre, small, rest = lines[:cut_], lines[cut_ + 1:nsm], lines[nsm:]
    ren = lambda ls: [re.sub(r'\bv1([2-5])\b', lambda m: f"v{64 + int(m.group(1))}", l) for l in ls]
    W = [ld.w1() for _ in range(PB - n0)]
    PQ = on('pq', 8); Wq = W[len(W) - PQ:]; W = W[:len(W) - PQ]
    nw = len(W) * len(rest) // (len(rest) + 40)
    sprinkle(k, rest, W[:nw])
    k('\n'.join(ren(pre)))
    k(f"s_waitcnt vmcnt({nw})")
    sprinkle(k, ren(small), W[nw:])
    k.stamp('w1iss')
    k("s_cmp_eq_u32 s21, 0\ns_cbranch_scc0 LF_m2a")
    poll_addr(k, S2_OFF, 13)
    k(f"global_load_dword v12, v13, {P(pWS)} sc1 ; @skip\nLF_m2a:")
    for t in Wq: k(t)
    k("s_cmp_eq_u32 s21, 0\ns_cbranch_scc0 LF_m2")
    wait_flags(k, 's2', 12, 13, 0 if 'x' in opts.get('force', '') else 8, PQ)
    k("LF_m2:\ns_barrier")
    k.stamp('s2')
    k("LF_x1:"); ld.blk = {}
    if on('xo', 1):
        a = Asm('r'); a.names = k.names
        a("LF_xredo:\ns_add_u32 s71, s71, 1\ns_waitcnt vmcnt(0) lgkmcnt(0)\ns_cmp_eq_u32 s21, 0\ns_cbranch_scc0 LF_xredo2")
        a.stamp('xredo')
        poll_addr(a, S2_OFF, 13)
        a(f"global_load_dword v12, v13, {P(pWS)} sc1")
        wait_flags(a, 's2r', 12, 13, 8, 0)
        a("LF_xredo2:\ns_sleep 16\ns_barrier")
        l3 = Loader()
        while l3.n1 < 60: a(l3.w1())
        a(f"v_subrev_u32 v3, {19 * 0x20000}, v3\ns_lshl_b32 s26, s21, 10\ns_mov_b32 m0, s26\ns_waitcnt vmcnt(0)\ns_branch LF_x1")
        SPINS.append('\n'.join(a.lines))
    k("AUTO")
    XCH = [int(x) for x in opts.get('xch', '4,12,20').split(',')]
    def xdma(i): return f"global_load_lds_dwordx4 v3, {P(pWS)} {SC} ; @w:X{sum(i >= c for c in XCH)}" + ("\ns_add_u32 m0, m0, 4096\nv_add_u32 v3, 0x20000, v3" if i < 19 else "")
    XI = int(opts.get('xi', 12))
    for i in range(XI): k(xdma(i))
    xq = [xdma(i) for i in range(XI, 20)]
    k("s_barrier ; @r:X0")
    k.stamp('x0')
    for r in breads(0, 0) + breads(1, 1): k(r)
    LA0, LA1, LA2 = (int(x) for x in opts.get('la', '2,2,0').split(','))
    for ks in range(20):
        if ks + 2 in XCH[:-1]: k(f"s_barrier")
        rs = breads(ks + 2, ks + 2) if ks + 2 < 20 else []
        lds = []
        for _ in range(LA0 if ks < 6 else LA1 + (ks & 1) * LA2):
            dx = max(c for c in [0] + XCH if c <= 20 - len(xq)) - 2 if xq else 99
            dw = ld.n1 // 2 if ld.n1 < 40 else 98
            t = xq.pop(0) if xq and dx <= dw else ld.next(2 * ks)
            if t: lds.append(t)
        b = BF + 16 * (ks % NBF)
        ms = [mf(ACA + 16 * p + 4 * s, A4(4 * (2 * ks + p)), V4(b + 4 * s), ks == 0) for s in range(4) for p in range(2)]
        ms = [mf(SQ, V4(b), V4(b), ks == 0), mf(SM, V4(ONES), V4(b), ks == 0)] + ms
        for i, m in enumerate(ms):
            k(m)
            if i >= 2 and rs: k(rs.pop(0))
            elif lds: k(lds.pop(0))
        for t in lds: k(t)
    k.stamp('passA')
    stat = f"""v_cndmask_b32 v13, v{SQ}, v{SQ+1}, s[84:85]
    v_mul_f32 v12, {f2u(1/640)}, v{SM}
    v_cndmask_b32 v13, v13, v{SQ+2}, s[86:87]
    v_cndmask_b32 v13, v13, v{SQ+3}, s[88:89]
    v_mul_f32 v13, {f2u(1/640)}, v13
    {rstd_chain(12, 13)}
    v_mul_f32 v13, {LOG2E + 0x80000000}, v13"""
    stat = [l.strip() for l in stat.split('\n')]
    stat += [f"s_mov_b64 exec, s[90:91]\nds_write_b64 v9, v[12:13]\ns_mov_b64 exec, -1", "s_waitcnt lgkmcnt(0)\ns_barrier"]
    stat += [f"v_xor_b32 v13, {128*s}, v9\nds_read_b64 v[{ST+2*s}:{ST+2*s+1}], v13" for s in range(4)]
    NB = int(opts.get('nb', 1))
    def passB(n, rsq, fill):
        ks = BORD[n]; b = BF + 16 * ((14 + n) % NBF)
        t = [x for x in [ld.next(40 + n) for _ in range(NB)] if x]
        for s in range(4):
            k(mf(ACB + 4 * s, A4(4 * (40 + ks)), V4(b + 4 * s), n == 0))
            for _ in range(2):
                if fill: k(fill.pop(0))
                elif rsq: k(rsq.pop(0))
            if t and s & 1: k(t.pop(0))
    for n in range(4): passB(n, [], stat)
    for t in stat: k(t)
    if on('xo', 1):
        k(f"""
        v_add_f32 v12, v{ST}, v{ST+2}
        v_add_f32 v13, v{ST+4}, v{ST+6}
        s_cmp_lt_u32 s71, 3
        v_add_f32 v12, v12, v13
        s_cselect_b64 s[30:31], -1, 0
        v_cmp_u_f32 vcc, v12, v12
        s_and_b64 vcc, vcc, s[30:31]
        s_cbranch_vccnz LF_xredo
        """)
    rq = breads(BORD[6], 14 + 6) + breads(BORD[7], 14 + 7)
    passB(4, rq, []); passB(5, rq, [])
    k.stamp('stats')
    NE = int(opts.get('ne', 10))
    sprinkle(k, epilogue(ACA, 0, PKD, 4) + epilogue(ACA + 16, 1, PKD + 2, 4), [ld.next(46) for _ in range(NE)])
    k("v_mov_b32 v14, 1\nv_mov_b32 v15, 2")
    for s in range(4): k(f"buffer_store_dwordx4 {V4(PKD+4*s)}, v{vL16}, s[12:15], s{72+s} offen {SC}")
    k(f"s_mov_b64 exec, 1\nglobal_store_dword v10, v14, {P(pWS)} sc1\ns_mov_b64 exec, -1")
    k.stamp('pairst')
    PN = int(opts.get('pn', 15))
    for n in range(6, 20):
        passB(n, breads(BORD[n + 2], 14 + n + 2) if n + 2 < 20 else [], [])
        if n == PN: k(f"global_load_dword v12, v11, {P(pWS)} sc1")
    k.stamp('passB')
    def hload(i, slots=range(4)):
        r = HR + 16 * (i % NRK)
        if on('rot'): return [f"buffer_load_dwordx4 {V4(r+4*s)}, v{HA+s}, s[12:15], s{48+i} offen {SC}" for s in slots]
        return [(f"s_add_u32 s79, s78, {KSEQ[i] * 4096}\n" if s == slots[0] else "") + f"buffer_load_dwordx4 {V4(r+4*s)}, v{HA+s}, s[12:15], s79 offen {SC}" for s in slots]
    def g2(i, s): return [mf(AC2 + 20 * s + 4 * dt, A4(4 * W2SLOT[5 * i + dt]), V4(HR + 16 * (i % NRK) + 4 * s), i == 0) for dt in range(5)]
    AH = int(opts.get('ahead', 3))
    wait_flags(k, 'h1', 12, 11, 0 if 'h' in opts.get('force', '') else 1, None)
    k.stamp('h1')
    hfirst = [t for i in range(AH) for t in hload(i)]
    NF = int(opts.get('nf', 8))
    for t in hfirst[:NF]: k(t)
    sprinkle(k, epilogue(ACB, 2, PKD, 2), hfirst[NF:] + [ld.next(60) for _ in range(int(opts.get('ns', 0)))])
    for s in range(4): k(f"v_add_u32 v13, s{80+s}, v245\nds_write_b64 v13, v[{PKD+2*s}:{PKD+2*s+1}]")
    k(f"""
    v_add_u32 v22, s80, v244
    v_add_u32 v23, s82, v244
    s_waitcnt lgkmcnt(0)
    s_barrier
    ds_read_b128 v[244:247], v22
    ds_read_b128 v[248:251], v23
    buffer_store_dwordx4 v[244:247], v{vL16}, s[12:15], s76 offen {SC}
    buffer_store_dwordx4 v[248:251], v{vL16}, s[12:15], s77 offen {SC}
    s_mov_b64 exec, 1
    global_store_dword v10, v15, {P(pWS)} sc1
    s_mov_b64 exec, -1
    """)
    k.stamp('singst')
    fill0 = [l.strip() for l in tail_addr.split('\n') if l.strip()]; tail_addr = ""
    a = Asm('z'); a.names = k.names; a.stamp('g2redo')
    SPINS.append("LF_g2redo:\n" + "".join(l + "\n" for l in a.lines) + "s_add_u32 s92, s92, 1\ns_waitcnt vmcnt(0) lgkmcnt(0)\ns_sleep 16\n" + "".join(f"v_add_u32 v{HA+s}, s{80+s}, v{vL16}\n" for s in range(4)) + "\n".join(hfirst) + "\ns_waitcnt vmcnt(0)\ns_branch LF_g2")
    k("LF_g2:"); ld.blk = {}
    PI = int(opts.get('pi', 2))
    for i in range(8):
        q = hload(i + AH) if i + AH < 8 else []
        while ld.n2 < min(60, 5 * i + 15): k(ld.w2())
        for _ in range(-(-(60 - ld.n2) // (8 - i))): q.append(ld.w2())
        if i == PI: q.append(f"global_load_dword v12, v11, {P(pWS)} sc1")
        if i in (1, 2, 4): k.stamp(f'g2_{i}')
        if i == PI + 2:
            k.stamp('h2a')
            wait_flags(k, 'h2', 12, 11, 2, None)
            k.stamp('h2b')
            late = [hload(i2, [s])[0] for s in (1, 2, 3, 0) for i2 in range(8, 12)]
        if i >= max(4, PI + 2):
            nl = -(-len(late) // (8 - i)); q += late[:nl]; late = late[nl:]
        for s in range(4):
            for n, m in enumerate(g2(i, s)):
                k(m)
                if q and n in (0, 2, 4): k(q.pop(0))
                elif fill0: k(fill0.pop(0))
        for t in q: k(t)
    assert not fill0
    k.stamp('g2a')
    U = HR + 64
    tail_addr += "".join(f"ds_read_b64_tr_b16 v[{U+24+2*dt}:{U+25+2*dt}], v16 offset:{2048*dt}\n" for dt in range(5))
    tail_addr += "".join(f"ds_read_b128 {V4(GB+4*dt)}, v22 offset:{64*dt}\n" for dt in range(5))
    tail_addr += "".join(f"v_lshlrev_b32 v{U+4*dt+2*h}, 16, v{U+24+2*dt+h}\nv_and_b32 v{U+4*dt+2*h+1}, 0xffff0000, v{U+24+2*dt+h}\n" for dt in range(5) for h in range(2))
    fill = [l.strip() for l in (first + tail_addr).split('\n') if l.strip()]
    pend = []
    for s in (1, 2, 3, 0):
        for i in range(8, 12):
            for m in g2(i, s):
                k(m)
                if pend and pend[0][0] <= 0: k(pend.pop(0)[1])
                else:
                    for _ in range(2):
                        if fill: k(fill.pop(0))
                pend = [(a - 1, t) for a, t in pend]
        assert not pend
        if s: pend = [(3 + 3 * dt, f"ds_write_b128 v{4+s}, {V4(AC2+20*s+4*dt)} offset:{1024*dt}") for dt in range(5)]
    for t in fill: k(t)
    k(f"""
    v_add_f32 v12, v{AC2+20}, v{AC2+40}
    v_add_f32 v12, v12, v{AC2+60}
    v_add_f32 v12, v12, v{AC2}
    s_cmp_lt_u32 s92, 3
    s_cselect_b64 s[30:31], -1, 0
    v_cmp_u_f32 vcc, v12, v12
    s_and_b64 vcc, vcc, s[30:31]
    s_cbranch_vccnz LF_g2redo
    """)
    k.stamp('g2b')
    k("s_waitcnt lgkmcnt(0)\ns_barrier")
    R0 = 44
    for dt in range(5):
        for s in range(3): k(f"ds_read_b128 {V4(R0+20*s+4*dt)}, v18 offset:{5120*s + 1024*dt}")
    for dt in range(5):
        for h in range(2):
            q = 2 * dt + h
            k(f"v_pk_add_f32 v[{AC2+2*q}:{AC2+2*q+1}], v[{AC2+2*q}:{AC2+2*q+1}], v[{R0+2*q}:{R0+2*q+1}]")
            k(f"v_pk_add_f32 v[{R0+20+2*q}:{R0+21+2*q}], v[{R0+20+2*q}:{R0+21+2*q}], v[{R0+40+2*q}:{R0+41+2*q}]")
        for h in range(2):
            q = 2 * dt + h
            k(f"v_pk_add_f32 v[{AC2+2*q}:{AC2+2*q+1}], v[{AC2+2*q}:{AC2+2*q+1}], v[{R0+20+2*q}:{R0+21+2*q}]")
        for h in range(2):
            q = 2 * dt + h
            k(f"v_pk_fma_f32 v[{AC2+2*q}:{AC2+2*q+1}], v[{AC2+2*q}:{AC2+2*q+1}], v[{GB+2*q}:{GB+2*q+1}], v[{U+2*q}:{U+2*q+1}]")
        k(f"v_cvt_pk_bf16_f32 v{HR+2*dt}, v{AC2+4*dt}, v{AC2+4*dt+1}\nv_cvt_pk_bf16_f32 v{HR+2*dt+1}, v{AC2+4*dt+2}, v{AC2+4*dt+3}")
    for dt in range(5): k(f"ds_write_b64 v17, v[{HR+2*dt}:{HR+2*dt+1}] offset:{32*dt}")
    for i in range(3): k(f"ds_read_b128 {V4(R0+4*i)}, v{19+i}")
    for i in range(3): k(f"buffer_store_dwordx4 {V4(R0+4*i)}, v{252+i}, s[16:19], s{94 if on('stash', 1) else 75} offen {opts.get('ost', '').replace('+', ' ')}")
    k("MANUAL")

def gen_F(opts={}):
    SPINS.clear(); OPT.clear(); OPT.update(opts)
    k = Asm('F')
    k(f"s_cmp_ge_u32 s2, {F_GRID}\ns_cbranch_scc1 LF_end")
    k.stamp('start')
    prologue(k, opts)
    k.stamp('msetup')
    conv_setup(k)
    k.stamp('csetup')
    kgen(k, opts)
    conv(k, opts)
    k("s_branch LF_mlp")
    conv_mod(k)
    k("LF_side:")
    side_a(k)
    side(k, opts)
    lane_consts(k)
    mlp_setup(k, opts)
    k("s_mov_b32 s6, 0\n" + hfill() + "s_waitcnt vmcnt(0)")
    k("LF_mlp:")
    mlp(k, opts)
    k.end(0)
    k("LF_end:\ns_endpgm")
    for s in SPINS: k(s)
    k("LF_codeend:")
    return k.finish()

if __name__ == '__main__':
    print(gen_F())
```

```python
import re

REG_RE = re.compile(r'(?<![\w.])([vas])(?:(\d+)|\[(\d+):(\d+)\])(?![\w])')
TRANS = ('v_exp_f32', 'v_log_f32', 'v_rcp_f32', 'v_rsq_f32', 'v_sqrt_f32', 'v_sin_f32', 'v_cos_f32', 'v_rcp_iflag_f32')

def regs_of(tok):
    out = []
    for m in REG_RE.finditer(tok):
        k = m.group(1)
        if m.group(2) is not None: out.append((k, int(m.group(2))))
        else: out += [(k, i) for i in range(int(m.group(3)), int(m.group(4)) + 1)]
    if re.search(r'\bvcc\b', tok): out += [('s', 'vcc')]
    if re.search(r'\bexec\b', tok): out += [('s', 'exec')]
    if re.search(r'\bm0\b', tok): out += [('s', 'm0')]
    return out

class Ins:
    def __init__(self, text):
        self.text = text
        t = text.split(';')[0].strip()
        self.label = t.endswith(':')
        self.mn = '' if self.label or not t else t.split()[0]
        rest = t[len(self.mn):].strip() if self.mn else ''
        ops, depth, cur = [], 0, ''
        for ch in rest:
            if ch in '[(': depth += 1
            if ch in '])': depth -= 1
            if ch == ',' and depth == 0: ops.append(cur.strip()); cur = ''
            else: cur += ch
        if cur.strip(): ops.append(cur.strip())
        self.mods = ''
        if ops:
            last = ops[-1]
            m = re.match(r'^(\S+(?:\([^)]*\))?)\s*(.*)$', last)
            if not self.mn.startswith('s_waitcnt'):
                ops[-1], self.mods = m.group(1), m.group(2)
        self.ops = ops
        mn = self.mn
        base = re.sub(r'_(e32|e64|dpp|sdwa)$', '', mn)
        self.base = base
        self.cls = 'other'; self.w = []; self.r = []
        self.dpp = mn.endswith('_dpp') or 'row_' in self.mods or 'quad_perm' in self.mods or 'wave_' in self.mods
        R = lambda idxs: [x for i in idxs if i < len(ops) for x in regs_of(ops[i])]
        n = len(ops)
        if mn.startswith('v_mfma'):
            self.cls = 'mfma'; self.w = R([0]); self.r = R([1, 2, 3]); self.ab = R([1, 2]); self.c = R([3])
            self.passes = 8 if '32x32x16' in mn else 4 if '16x16x32' in mn else None
            assert self.passes, mn
        elif mn.startswith('v_'):
            self.cls = 'valu'; self.trans = base in TRANS
            if base.startswith('v_cmp'): self.w = R([0]); self.r = R(range(1, n))
            elif base in ('v_add_co_u32', 'v_sub_co_u32', 'v_addc_co_u32'): self.w = R([0, 1]); self.r = R(range(2, n))
            elif 'permlane' in base and 'swap' in base: self.w = R([0, 1]); self.r = R([0, 1])
            else:
                self.w = R([0]); self.r = R(range(1, n))
                if base in ('v_fmac_f32', 'v_dot2c_f32_bf16', 'v_pk_fmac_f16', 'v_writelane_b32') or self.dpp: self.r += R([0])
                if base == 'v_cndmask_b32' and n == 3: self.r += [('s', 'vcc')]
        elif mn.startswith('s_load') or mn.startswith('s_memtime') or mn.startswith('s_memrealtime') or mn.startswith('s_atomic'):
            self.cls = 'smem'; self.w = R([0]); self.r = R(range(1, n))
        elif mn.startswith('s_'):
            self.cls = 'salu'
            if mn.startswith(('s_cmp', 's_cbranch', 's_branch', 's_waitcnt', 's_nop', 's_barrier', 's_endpgm', 's_setprio', 's_sleep', 's_bitcmp')):
                self.r = R(range(n))
            else:
                self.w = R([0]); self.r = R(range(1, n))
                if 'saveexec' in mn: self.w += [('s', 'exec')]; self.r += [('s', 'exec')]
                if mn in ('s_addk_i32', 's_mulk_i32'): self.r += R([0])
        elif mn.startswith('ds_'):
            self.cls = 'ds'
            if mn.startswith(('ds_read', 'ds_bpermute', 'ds_permute', 'ds_swizzle')) or '_rtn' in mn: self.w = R([0]); self.r = R(range(1, n))
            else: self.r = R(range(n))
        elif mn.startswith('buffer_wbl2'):
            self.cls = 'vmem'; self.lds = False; self.store = True; self.wide = False
        elif mn.startswith(('buffer_', 'global_')):
            self.cls = 'vmem'
            self.lds = ' lds' in (' ' + self.mods) or '_lds_' in mn
            self.store = 'store' in mn or ('atomic' in mn and 'sc0' not in self.mods)
            if self.lds: self.r = R(range(n)) + [('s', 'm0')]
            elif self.store: self.r = R(range(n))
            else:
                self.w = R([0]); self.r = R(range(1, n))
                if 'd16' in mn: self.r += R([0])
            self.wide = self.store and ('x4' in mn or 'x3' in mn)
            if self.wide: self.data = R([0]) if mn.startswith('buffer_') else R([1])

_old_init = Ins.__init__
def _init(self, text):
    _old_init(self, text)
    for kind, name in re.findall(r'@([wr]):(\w+)', text):
        (self.w if kind == 'w' else self.r).append(('x', name))
Ins.__init__ = _init

def nstates(ins):
    if ins.label or not ins.mn: return 0
    if ins.mn == 's_nop': return int(ins.ops[0], 0) + 1
    return 1

def need(p, c):
    n = 0
    pw, pr, cw, cr = set(p.w), set(p.r), set(c.w), set(c.r)
    vec = lambda s: {x for x in s if x[0] in 'va'}
    sca = lambda s: {x for x in s if x[0] == 's'}
    if p.cls == 'valu':
        if c.cls == 'mfma' and vec(pw) & cr: n = max(n, 2)
        if c.cls == 'mfma' and ('s', 'exec') in pw: n = max(n, 4)
        if p.trans and c.cls == 'valu' and vec(pw) & cr: n = max(n, 1)
        if sca(pw) & cr:
            if c.cls == 'valu': n = max(n, 4 if c.base in ('v_readlane_b32', 'v_writelane_b32') else 2)
            if c.cls == 'vmem': n = max(n, 5)
            if c.cls in ('salu', 'smem'): n = max(n, 1)
        if c.cls == 'valu' and vec(pw) & cr:
            if c.base in ('v_readlane_b32', 'v_readfirstlane_b32'): n = max(n, 1)
            if c.dpp or 'permlane' in c.base: n = max(n, 2)
        if ('s', 'exec') in pw and c.cls == 'valu':
            if c.dpp: n = max(n, 5)
            if c.base in ('v_readlane_b32', 'v_readfirstlane_b32', 'v_writelane_b32') or 'permlane' in c.base: n = max(n, 4)
    if p.cls == 'valu' and p.base.startswith('v_dot') and c.cls in ('valu', 'mfma', 'vmem', 'ds') and pw & (cr | cw):
        same_acc = c.base == p.base and (set(regs_of(c.ops[1])) | set(regs_of(c.ops[2]))).isdisjoint(pw)
        if not same_acc: n = max(n, 3)
    if p.cls == 'mfma':
        big = {4: 8, 8: 12}[p.passes]
        if c.cls == 'mfma':
            if pw & set(c.ab): n = max(n, big)
            if pw & set(c.c) and not (p.w == c.c and p.passes == c.passes): n = max(n, {4: 6, 8: 10}[p.passes])
            elif pw & cw and not (p.w == c.c and p.passes == c.passes): n = max(n, big)
        elif c.cls in ('valu', 'vmem', 'ds'):
            if pw & (cr | cw): n = max(n, big)
            if c.cls == 'valu' and set(p.c) & cw: n = max(n, {4: 3, 8: 7}[p.passes])
    if p.cls == 'salu' and ('s', 'm0') in pw and c.cls == 'vmem' and c.lds: n = max(n, 1)
    if p.cls == 'vmem' and getattr(p, 'wide', False) and set(p.data) & cw: n = max(n, 2 if c.cls in ('valu', 'mfma') else 1)
    return n

STAMPS = False
DBGST = None
DELAYS = []
DELAYN = 16
WS_STAMP = 0x2000000
class Asm:
    def __init__(self, name):
        self.name = name; self.lines = []; self.names = []
    def stamp(self, name):
        for _ in range(DELAYS.count(name)): self(f"s_sleep {DELAYN}")
        if not STAMPS: return
        if not self.names:
            self("v_mov_b32 v255, 0\ns_memrealtime s[100:101]\ns_waitcnt lgkmcnt(0)\nv_writelane_b32 v255, s100, 0")
            self.names += ['rt0', 'rt1']
        if name not in self.names: self.names.append(name)
        self(f"s_memtime s[100:101]\ns_waitcnt lgkmcnt(0)\nv_writelane_b32 v255, s100, {self.names.index(name)}")
    def end(self, kidx):
        if STAMPS:
            self("s_waitcnt vmcnt(0) lgkmcnt(0)")
            self.stamp('end')
            self(f"""
            s_memrealtime s[100:101]
            s_load_dwordx2 s[6:7], s[0:1], 128
            s_lshl_b32 s8, s2, 2
            s_add_u32 s8, s8, s21
            s_lshl_b32 s8, s8, 8
            s_add_u32 s8, s8, {WS_STAMP}
            s_waitcnt lgkmcnt(0)
            v_writelane_b32 v255, s100, 1
            v_lshl_add_u32 v0, v1, 2, s8
            global_store_dword v0, v255, s[6:7]""")
            if DBGST:
                self(f"""
                s_cmp_eq_u32 s2, {DBGST[0]}
                s_cbranch_scc0 LF_nodbg
                s_cmp_eq_u32 s21, 0
                s_cbranch_scc0 LF_nodbg
                s_load_dwordx2 s[6:7], s[0:1], 120
                v_readlane_b32 s8, v255, 2
                v_mov_b32 v4, 0""")
                for i, n in enumerate(DBGST[1:]):
                    self(f"v_readlane_b32 s9, v255, {self.names.index(n)}\ns_nop 3\ns_sub_u32 s9, s9, s8\ns_nop 3\nv_writelane_b32 v4, s9, {i + 1}")
                self("""v_readlane_b32 s9, v255, 0
                s_nop 3
                s_sub_u32 s9, s100, s9
                s_nop 3
                v_writelane_b32 v4, s9, 15
                v_lshlrev_b32 v0, 2, v1
                s_waitcnt lgkmcnt(0)
                s_mov_b64 exec, 0xfffe
                global_store_dword v0, v4, s[6:7]
                LF_nodbg:""")
            open('stamp_names.txt', 'w').write(' '.join(str(n) for n in self.names))
        self("s_endpgm")
    def __call__(self, text):
        for l in text.split('\n'):
            l = l.strip()
            if l and not l.startswith(';'): self.lines.append(l)
    def autowait(self, ins):
        out, vm, lg, on, keep = [], [], [], False, 99
        for c in ins:
            if c.mn == 'AUTO': on = True; keep = int(c.ops[0]) if c.ops else 99; continue
            if c.mn == 'MANUAL': on = False; continue
            if c.label or not c.mn: out.append(c); continue
            if c.mn == 's_waitcnt':
                m = re.search(r'vmcnt\((\d+)\)', c.text)
                if m: k = int(m.group(1)); vm = vm[max(0, len(vm) - k):] if k else []
                m = re.search(r'lgkmcnt\((\d+)\)', c.text)
                if m:
                    k = int(m.group(1))
                    if k == 0: lg = []
                    elif not any(x[1] for x in lg): lg = lg[max(0, len(lg) - k):]
                out.append(c); continue
            if c.mn in ('s_endpgm', 's_branch'): vm, lg = [], []; out.append(c); continue
            if on:
                w = []
                for q, nm, same, cap in ((vm, 'vmcnt', 'vmem', 63), (lg, 'lgkmcnt', 'ds', 15)):
                    t = set(c.r) if c.cls == same else set(c.r) | set(c.w)
                    last = max([i for i, x in enumerate(q) if x[0] & t], default=-1)
                    if last >= 0:
                        n = len(q) - 1 - last
                        if q is vm and not q[last][1]:
                            n_eff = sum(1 for x in q[last + 1:] if not x[1])
                            w.append(f'{nm}({min(n_eff, cap)})'); del q[:last + 1]; continue
                        if q is lg and any(x[1] for x in q): n = 0
                        n = min(n, cap, keep if q is lg else 99)
                        w.append(f'{nm}({n})')
                        del q[:len(q) - n]
                if w: out.append(Ins('s_waitcnt ' + ' '.join(w)))
            if c.cls == 'vmem':
                if '@skip' not in c.text: vm.append((set(c.w), '@ghost' in c.text))
            elif c.cls == 'ds': lg.append((set(c.w), False))
            elif c.cls == 'smem': lg.append((set(c.w), True))
            out.append(c)
        return out
    def finish(self, check=True):
        ins = self.autowait([Ins(l) for l in self.lines])
        out = []
        for c in ins:
            if c.mn and c.mn != 's_nop':
                dist, req = 0, 0
                for p in reversed(out):
                    if dist >= 20: break
                    if p.mn:
                        k = need(p, c)
                        if k - dist > req: req = k - dist
                    dist += nstates(p)
                while req > 0:
                    k = min(req, 16); out.append(Ins(f's_nop {k-1}')); req -= k
            out.append(c)
        if check: self.check_counters(out)
        return '\n'.join(('' if i.label else '    ') + i.text for i in out) + '\n'
    def check_counters(self, ins):
        vm, lg = [], []
        for c in ins:
            if c.label or not c.mn: continue
            if c.mn == 's_waitcnt':
                t = c.text
                m = re.search(r'vmcnt\((\d+)\)', t)
                if m:
                    k = int(m.group(1)); assert k <= 63, t
                    vm = vm[len(vm) - k:] if k < len(vm) and k > 0 else ([] if k == 0 else vm)
                m = re.search(r'lgkmcnt\((\d+)\)', t)
                if m:
                    k = int(m.group(1)); assert k <= 15, t
                    if k == 0: lg = []
                    elif not any(x[2] for x in lg): lg = lg[len(lg) - k:] if k < len(lg) else lg
                continue
            if c.mn in ('s_endpgm', 's_branch'): vm, lg = [], []; continue
            touched = set(c.r) | set(c.w)
            for q in (vm, lg):
                for (rs, tx, _) in q:
                    if rs & touched and not (c.cls == 'vmem' and q is vm and not (rs & set(c.r))) and not (c.cls == 'ds' and q is lg and not (rs & set(c.r))):
                        raise SystemExit(f'[{self.name}] unwaited load: "{tx}" used by "{c.text}"')
            if c.cls == 'vmem':
                if '@skip' not in c.text: vm.append((set() if '@nocheck' in c.text else set(c.w), c.text, False))
            elif c.cls == 'ds': lg.append((set(c.w), c.text, False))
            elif c.cls == 'smem': lg.append((set(c.w), c.text, True))

def kernel_text(name, body):
    return f".globl {name}\n.p2align 8\n.type {name},@function\n{name}:\n{body}"

def descriptor(name, vgpr, agpr=0, sgpr=None):
    sgpr = sgpr or (102 if STAMPS else 100)
    acc = (vgpr + 3) // 4 * 4
    nfv = acc + agpr if agpr else vgpr
    return f""".p2align 6
.amdhsa_kernel {name}
  .amdhsa_next_free_vgpr {nfv}
  .amdhsa_next_free_sgpr {sgpr}
  .amdhsa_accum_offset {acc}
  .amdhsa_group_segment_fixed_size 0
  .amdhsa_kernarg_size 136
  .amdhsa_user_sgpr_count 2
  .amdhsa_user_sgpr_kernarg_segment_ptr 1
  .amdhsa_system_sgpr_workgroup_id_x 1
.end_amdhsa_kernel
"""
```

```python
from asmlib import *
from layoutF import *

F_GRID = 256
NCONV = 160
LNS = 1600
STATP = 12800
MODB = 13312
KT = 33792; KTS = 18432
TAPS = 107520; TCS = 2112; TAPCH = 4 * TCS
STG = TAPS + 4 * TAPCH; STGS = 2112
F_LDS = 149760
OH = 480
UD = 3088
O3 = 4576 + 16; O5 = O3 + UD; O7 = O5 + UD; O9 = O7 + UD
CHS = (O9 + 2048 + 127) // 128 * 128 + 16
OU = 4 * CHS; OS = OU + 16384
W1R = 102400; W2R = W1R + 20480; VRED = W2R + 20480
RED = 81920; STAT = RED + 61440; GBL = STAT + 512
assert OS + 16384 <= TAPS and STG + 4 * STGS <= F_LDS and GBL + 1280 + 2048 <= F_LDS
pU, pAR, pAI, pBR, pBI, pCR, pCI, pLD, pDS, pW1, pW2, pC, pWM, pOUT, pDBG, pWS = 36, 38, 40, 42, 44, 46, 48, 50, 52, 56, 58, 60, 62, 64, 66, 68
def P(p): return f"s[{p}:{p+1}]"
SC = 'sc1'
vL16 = 8
BAND = 210
vRD, vDA, vDB, vD3, vRU, vWU, vWH, vNO, vUO, vMO, vTA, vT2, vT3, vBP = range(230, 244)
vVA, vF1D, vF1A = 244, 250, 251
vSA, vSG, vP2 = 252, 253, 155
vKW, vKR, vPD, vPA, vPT = 120, 121, 122, 123, 133
KACC = 104; SCT = 124; PRM = 134
CDAT = 156; LA = 158; MFR = 164; NR = 184

def wsoff(): return f"s_add_u32 s68, s68, {on('wso') << 20}\ns_addc_u32 s69, s69, 0" if on('wso') else ""
def srd(k, r, base, off, size):
    k(f"s_add_u32 s{r}, s{base}, {off}\ns_addc_u32 s{r+1}, s{base+1}, 0\ns_mov_b32 s{r+2}, {size}\ns_mov_b32 s{r+3}, 0x20000")
def mf(acc, a, b, first):
    c = '0' if first else f'v[{acc}:{acc+3}]'
    return f"v_mfma_f32_16x16x32_bf16 v[{acc}:{acc+3}], {a}, {b}, {c}"
V4 = lambda r: f"v[{r}:{r+3}]"
A4 = lambda r: f"a[{r}:{r+3}]"

SPINS = []
OPT = {}
def on(name, default=0): return int(OPT.get(name, default))
def wait_flags(k, tag, vdata, vaddr, target, nwait, sleep=2):
    if nwait is not None: k(f"s_waitcnt vmcnt({nwait})")
    k(f"v_cmp_gt_u32 vcc, {target}, v{vdata}\ns_cbranch_vccnz LF_spin{tag}\nLF_go{tag}:")
    SPINS.append(f"""
    LF_spin{tag}:
    s_mov_b32 s30, 40000
    LF_spinl{tag}:
    global_load_dword v{vdata}, v{vaddr}, {P(pDBG if tag.startswith('init') else pWS)} sc1
    s_waitcnt vmcnt(0)
    v_cmp_gt_u32 vcc, {target}, v{vdata}
    s_cbranch_vccz LF_go{tag}
    s_sleep {sleep}
    s_sub_u32 s30, s30, 1
    s_cmp_lg_u32 s30, 0
    s_cbranch_scc1 LF_spinl{tag}
    s_branch LF_go{tag}
    """)

def arrive(k, off, va, vb, shard="s_lshr_b32 s26, s2, 3"):
    k(f"""
    {shard}
    s_lshl_b32 s26, s26, 7
    s_add_u32 s26, s26, {WS_SYNC + off}
    v_lshl_add_u32 v{va}, v1, 12, s26
    v_mov_b32 v{vb}, 1
    s_mov_b64 exec, 0xff
    global_atomic_add v{va}, v{vb}, {P(pWS)} sc1
    s_mov_b64 exec, -1
    """)

def poll_addr(k, off, va, mask=31):
    k(f"""
    s_and_b32 s26, s2, 7
    s_lshl_b32 s26, s26, 12
    s_add_u32 s26, s26, {WS_SYNC + off}
    v_and_b32 v{va}, {mask}, v1
    v_lshl_add_u32 v{va}, v{va}, 7, s26
    """)

def rstd_chain(m, q, r=None):
    return f"""v_fma_f32 v{q}, -v{m}, v{m}, v{q}
    v_max_f32 v{q}, 0, v{q}
    v_cvt_pk_bf16_f32 v{q}, v{q}, v{m}
    v_and_b32 v{m}, 0xffff0000, v{q}
    v_lshlrev_b32 v{q}, 16, v{q}
    v_add_f32 v{q}, {f2u(1e-5)}, v{q}
    v_cvt_pk_bf16_f32 v{q}, v{q}, v{q}
    v_lshlrev_b32 v{q}, 16, v{q}
    v_sqrt_f32 v{q}, v{q}
    v_cvt_pk_bf16_f32 v{q}, v{q}, v{q}
    v_lshlrev_b32 v{q}, 16, v{q}
    v_rcp_f32 v{r or q}, v{q}"""

JOBS = 12800
def prologue(k, opts):
    k(f"""
    s_load_dwordx16 s[36:51], s[0:1], 0
    s_load_dwordx2 s[52:53], s[0:1], 64
    s_load_dwordx4 s[60:63], s[0:1], 96
    s_load_dwordx2 s[68:69], s[0:1], 128
    s_load_dwordx4 s[56:59], s[0:1], 80
    s_load_dwordx4 s[64:67], s[0:1], 112
    v_lshrrev_b32 v1, 6, v0
    v_readfirstlane_b32 s21, v1
    v_and_b32 v1, 63, v0
    """)
    if int(opts.get('cpf', 1)):
        k(f"""
        s_getpc_b64 s[24:25]
        LF_pc:
        s_lshr_b32 s26, s2, 3
        s_lshl_b32 s26, s26, 2
        s_add_u32 s26, s26, s21
        s_mul_i32 s26, s26, 384
        s_min_u32 s26, s26, LF_codeend-LF_pc-384
        s_add_u32 s24, s24, s26
        s_addc_u32 s25, s25, 0
        v_min_u32 v2, 2, v1
        v_lshlrev_b32 v2, 7, v2
        v_mov_b32 v3, s25
        v_add_co_u32 v2, vcc, s24, v2
        v_addc_co_u32 v3, vcc, 0, v3, vcc
        global_load_dword v254, v[2:3], off ; @nocheck
        """)
    k(f"""
    v_lshlrev_b32 v{vL16}, 4, v1
    s_cmp_lt_u32 s2, {NCONV}
    s_cbranch_scc0 LF_side
    s_lshl_b32 s20, s2, 2
    s_add_u32 s20, s20, s21               ; channel d
    s_mul_i32 s29, s20, 384
    v_lshl_add_u32 v10, v1, 1, s29
    s_lshl_b32 s29, s20, 1
    v_mov_b32 v11, s29
    v_mov_b32 v{vPA}, 0
    """)
    LD = 'global_load_ushort' if on('ush') else 'global_load_short_d16_hi'
    if not on('ush'):
        for i in list(range(19)) + [20]: k(f"v_mov_b32 v{PRM+i}, 0")
    k(f"""
    s_mul_hi_u32 s25, s2, {(1 << 32) // 40 + 1}       ; kq
    s_mul_i32 s26, s25, 40
    s_sub_u32 s26, s2, s26
    s_cmp_ge_u32 s26, 30
    s_cselect_b32 s27, 20, 0
    s_add_u32 s26, s26, s27               ; column block: shift, scale, gate of the first half and the last gate
    s_mul_i32 s27, s25, 320
    v_lshl_add_u32 v6, v1, 2, s27
    v_and_b32 v7, 15, v1
    v_lshl_add_u32 v7, v7, 2, s27
    s_waitcnt lgkmcnt(0)
    {wsoff()}
    global_load_dword v{CDAT}, v6, {P(pC)}
    global_load_dword v{CDAT+1}, v7, {P(pC)} offset:256
    {LD} v{PRM+18}, v11, {P(pLD)}""")
    for p in range(3):
        for i, ptr in enumerate((pAR, pAI, pBR, pBI, pCR, pCI)):
            k(f"{LD} v{PRM+6*p+i}, v10, {P(ptr)} offset:{128*p}")
    k(f"{LD} v{PRM+20}, v11, {P(pDS)}")
    k.stamp('ldiss')
    lane_consts(k)
    if int(opts.get('tlb', 0)):
        k(f"""
        s_cmp_eq_u32 s21, 1
        s_cbranch_scc0 LF_notlb
        v_min_u32 v2, 11, v1
        v_lshlrev_b32 v2, 21, v2
        v_and_b32 v3, 1, v1
        v_lshlrev_b32 v3, 21, v3
        global_load_dword v253, v2, {P(pWS)} ; @skip
        global_load_dword v253, v3, {P(pOUT)} ; @skip
        s_waitcnt vmcnt(0)
        LF_notlb:
        """)
    k(f"""
    v_lshrrev_b32 v4, 3, v1
    v_and_b32 v5, 7, v1
    v_mul_u32_u24 v3, 7680, v4
    v_lshl_add_u32 v3, v5, 4, v3
    s_mul_i32 s27, s25, 160
    s_mul_i32 s28, s21, 40
    s_add_u32 s28, s28, s27
    s_mul_i32 s28, s28, 7680
    s_lshl_b32 s29, s26, 7
    s_add_u32 s28, s28, s29
    v_add_u32 v3, s28, v3
    s_mul_i32 s29, s21, 5120
    s_add_u32 m0, s29, {MODB}
    s_mul_i32 s25, s25, 15360
    """)
    if not int(opts.get('modlate', 1)): mod_dma(k, 3)
    else: k(f"v_mov_b32 v{LA+5}, v3")
    k(f"""
    s_lshl_b32 s26, s26, 8
    s_add_u32 s25, s25, s26
    s_lshl_b32 s26, s21, 6
    s_add_u32 s25, s25, s26
    v_lshl_add_u32 v{LA}, v1, 2, s25
    v_lshl_add_u32 v7, v12, 3, v11
    v_lshlrev_b32 v7, 7, v7
    v_lshl_add_u32 v7, v10, 3, v7
    s_lshl_b32 s27, s21, 5
    s_add_u32 s27, s27, {MODB}
    v_add_u32 v{LA+1}, s27, v7
    s_mul_i32 s27, s21, 320
    v_lshl_add_u32 v{LA+2}, v1, 2, s27
    v_lshl_add_u32 v{LA+3}, v13, 2, s27
    v_lshl_add_u32 v{LA+4}, v12, 4, s27
    """)

def silu_frags(k0, c0, vbp, dst=24, t=16):
    k = Asm('t')
    k(f"""
    s_mov_b32 s24, {LOG2E + 0x80000000}
    v_lshlrev_b32 v16, 16, v{c0}
    v_and_b32 v17, 0xffff0000, v{c0}
    v_lshlrev_b32 v18, 16, v{c0+1}
    v_and_b32 v19, 0xffff0000, v{c0+1}
    """)
    for i in range(4): k(f"v_mul_f32 v{20+i}, s24, v{16+i}")
    for i in range(4): k(f"v_exp_f32 v{20+i}, v{20+i}")
    for i in range(4): k(f"v_add_f32 v{20+i}, 1.0, v{20+i}")
    for i in range(4): k(f"v_rcp_f32 v{20+i}, v{20+i}")
    for i in range(4): k(f"v_mul_f32 v{16+i}, v{16+i}, v{20+i}")
    k(f"v_cvt_pk_bf16_f32 v16, v16, v17\nv_cvt_pk_bf16_f32 v17, v18, v19")
    k(f"ds_write_b32 v{vbp}, v16\nds_write_b32 v{vbp+1}, v17 offset:256")
    for l in k.lines: k0(re.sub(r'\bv(1[6-9]|2[0-3])\b', lambda m: f"v{int(m.group(1)) - 16 + t}", l))
    for ks in range(5): k0(f"ds_read_b128 {V4(dst+4*ks)}, v{vbp+2} offset:{64*ks}")

def conv_mod(k):
    fr, ac = (184, 204) if on('mmid', 1) else (60, 16)
    k("LF_cmod:\n" + ("" if on('mmid', 1) else "s_mov_b32 s3, 1\n") )
    if on('sl'): silu_frags(k, CDAT, LA + 2, MFR, 200)
    k("s_waitcnt vmcnt(0) lgkmcnt(0)\ns_barrier\nAUTO")
    for ks in range(5):
        for h in range(2): k(f"ds_read_b64_tr_b16 v[{fr+4*ks+2*h}:{fr+1+4*ks+2*h}], v{LA+1} offset:{4096*ks + 512*h}")
    for ks in range(5): k(mf(ac, V4(MFR + 4 * ks), V4(fr + 4 * ks), ks == 0))
    k(f"""MANUAL
    s_mov_b64 exec, 0xffff
    global_store_dword v{LA}, v{ac}, {P(pWS)} {SC}
    s_mov_b64 exec, -1
    global_load_dword v{vPD}, v{vPA}, {P(pDBG)} sc1 ; @nocheck
    """)
    k.stamp('modst')
    k("s_branch LF_noarr1" if on('mmid', 1) else "s_branch LF_kpass")

def mod_dma(k, v):
    for i in range(5):
        k(f"global_load_lds_dwordx4 v{v}, {P(pWM)}")
        if i < 4: k(f"s_add_u32 m0, m0, 1024\nv_add_u32 v{v}, {8*7680}, v{v}")

def lane_consts(k):
    k("""
    v_bfe_u32 v11, v1, 2, 2               ; r
    v_lshrrev_b32 v12, 4, v1              ; G
    v_and_b32 v10, 3, v1                  ; cc / j
    v_and_b32 v13, 15, v1                 ; a / i
    """)

def w1raw(k):
    k(f"""
    s_lshr_b32 s34, s20, 2
    s_and_b32 s35, s20, 3
    v_lshrrev_b32 v2, 3, v1
    v_and_b32 v3, 6, v2
    v_and_b32 v4, 7, v1
    v_xor_b32 v3, v3, v4
    v_mul_u32_u24 v2, 3072, v2
    v_lshl_add_u32 v2, v3, 4, v2
    s_mul_i32 s35, s35, {160*3072}
    s_lshl_b32 s34, s34, 7
    s_add_u32 s35, s35, s34
    s_mov_b32 m0, {W1R}
    v_add_u32 v2, s35, v2
    """)
    for i in range(20):
        k(f"global_load_lds_dwordx4 v2, {P(pW1)}")
        if i < 19: k(f"s_add_u32 m0, m0, 1024\nv_add_u32 v2, {8*3072}, v2")

def side_mod(k):
    k(f"""
    s_mul_hi_u32 s25, s20, {(1 << 32) // 20 + 1}      ; kq
    s_mul_i32 s26, s25, 20
    s_sub_u32 s26, s20, s26
    s_add_u32 s26, s26, 30                ; column block: shift and scale of the second half
    s_mul_i32 s27, s25, 320
    v_lshl_add_u32 v15, v1, 2, s27
    v_lshl_add_u32 v16, v13, 2, s27
    global_load_dword v150, v15, {P(pC)}
    global_load_dword v151, v16, {P(pC)} offset:256
    v_lshrrev_b32 v4, 3, v1
    v_and_b32 v5, 7, v1
    v_mul_u32_u24 v4, 7680, v4
    v_lshl_add_u32 v4, v5, 4, v4
    s_mul_i32 s27, s25, {160*7680}
    s_lshl_b32 s28, s26, 7
    s_add_u32 s27, s27, s28
    v_add_u32 v14, s27, v4
    s_mov_b32 m0, s33
    s_mul_i32 s25, s25, 15360
    s_lshl_b32 s26, s26, 8
    s_add_u32 s25, s25, s26
    v_lshl_add_u32 v152, v13, 2, s25
    """)
    for i in range(20):
        k(f"global_load_lds_dwordx4 v14, {P(pWM)}")
        if i < 19: k(f"s_add_u32 m0, m0, 1024\nv_add_u32 v14, {8*7680}, v14")
    k(f"""
    v_lshl_add_u32 v5, v12, 3, v11
    v_lshlrev_b32 v5, 7, v5
    v_lshl_add_u32 v5, v10, 3, v5
    v_add_u32 v5, s33, v5
    s_add_u32 s27, s33, 20480
    v_lshl_add_u32 v158, v1, 2, s27
    v_lshl_add_u32 v159, v13, 2, s27
    v_lshl_add_u32 v160, v12, 4, s27
    s_waitcnt vmcnt(20)
    """)
    silu_frags(k, 150, 158)
    k("AUTO")
    for ks in range(5):
        k(f"s_waitcnt vmcnt({16 - 4*ks})")
        for ct in range(4):
            for h in range(2): k(f"ds_read_b64_tr_b16 v[{60+16*(ks&1)+4*ct+2*h}:{61+16*(ks&1)+4*ct+2*h}], v5 offset:{4096*ks + 512*h + 32*ct}")
        for ct in range(4): k(mf(44 + 4 * ct, V4(24 + 4 * ks), V4(60 + 16 * (ks & 1) + 4 * ct), ks == 0))
    k("MANUAL\ns_mov_b64 exec, 0xffff")
    for ct in range(4): k(f"global_store_dword v152, v{44+4*ct}, {P(pWS)} offset:{64*ct} {SC}")
    k("s_mov_b64 exec, -1")

def side_a(k):
    UD_ = 164
    k(f"""
    s_sub_u32 s20, s2, {NCONV}
    s_mul_i32 s33, s21, {2*JOBS}
    s_add_u32 s34, s33, {JOBS}
    """)
    lane_consts(k)
    k(f"""
    s_mul_i32 s31, s21, 96
    s_add_u32 s31, s31, s20
    s_cmp_lt_u32 s31, 256
    s_waitcnt lgkmcnt(0)
    {wsoff()}
    s_cmp_lt_u32 s31, 256
    s_cbranch_scc0 LF_sa_mod
    v_lshrrev_b32 v2, 3, v1
    v_and_b32 v3, 7, v1
    v_lshlrev_b32 v3, 4, v3
    v_mul_u32_u24 v7, 1280, v2
    v_add_u32 v7, v7, v3
    s_mul_i32 s24, s31, 10240
    v_add_u32 v7, s24, v7
    """)
    for q in range(10): k(f"global_load_dwordx4 {V4(UD_+4*q)}, v7, {P(pU)} offset:{128*q}")
    k.stamp('ldiss')
    k(f"""
    v_mul_u32_u24 v7, {LNS - 256}, v2
    v_add3_u32 v7, v7, v3, s33
    v_mul_u32_u24 v9, {LNS - 256}, v11
    v_lshl_add_u32 v9, v12, 5, v9
    v_lshl_add_u32 v9, v10, 3, v9
    v_add_u32 v9, s33, v9
    v_lshrrev_b32 v2, 2, v1
    v_lshlrev_b32 v2, 14, v2
    v_lshl_add_u32 v2, v10, 4, v2
    s_lshl_b32 s24, s31, 6
    s_add_u32 s24, s24, {WS_NT}
    v_add_u32 v2, s24, v2
    s_lshr_b32 s24, s31, 5
    s_lshl_b32 s24, s24, 11
    s_bfe_u32 s25, s31, 0x40001
    s_lshl_b32 s25, s25, 4
    s_add_u32 s24, s24, s25
    s_and_b32 s25, s31, 1
    s_lshl_b32 s25, s25, 9
    s_add_u32 s24, s24, s25
    s_add_u32 s24, s24, {WS_ST}
    v_lshrrev_b32 v3, 5, v1
    v_lshlrev_b32 v3, 8, v3
    v_bfe_u32 v14, v1, 4, 1
    v_lshl_add_u32 v3, v14, 10, v3
    v_bfe_u32 v14, v1, 3, 1
    v_lshl_add_u32 v3, v14, 3, v3
    v_add_u32 v3, s24, v3
    s_mov_b32 s24, 0x3f803f80
    v_mov_b32 v{vPA}, 0
    v_mov_b32 v140, 0
    v_mov_b32 v141, 0
    v_mov_b32 v142, 0
    v_mov_b32 v143, 0
    """)
    for q in range(10):
        k(f"s_waitcnt vmcnt({9 - q})")
        if q == 0: k.stamp('u0')
        k(f"ds_write_b128 v7, {V4(UD_+4*q)} offset:{128*q}")
        for i in range(4):
            r = UD_ + 4 * q + i
            k(f"v_dot2c_f32_bf16 v{140 + 2*(i&1)}, s24, v{r}\nv_dot2c_f32_bf16 v{141 + 2*(i&1)}, v{r}, v{r}")
    k(f"""
    v_pk_add_f32 v[140:141], v[140:141], v[142:143]
    v_add_f32_dpp v140, v140, v140 quad_perm:[1,0,3,2] row_mask:0xf bank_mask:0xf
    v_add_f32_dpp v141, v141, v141 quad_perm:[1,0,3,2] row_mask:0xf bank_mask:0xf
    v_add_f32_dpp v140, v140, v140 quad_perm:[2,3,0,1] row_mask:0xf bank_mask:0xf
    v_add_f32_dpp v141, v141, v141 quad_perm:[2,3,0,1] row_mask:0xf bank_mask:0xf
    v_add_f32_dpp v140, v140, v140 row_half_mirror row_mask:0xf bank_mask:0xf
    v_add_f32_dpp v141, v141, v141 row_half_mirror row_mask:0xf bank_mask:0xf
    v_mul_f32 v140, {f2u(1/640)}, v140
    v_mul_f32 v141, {f2u(1/640)}, v141
    AUTO
    """)
    for ch in range(10):
        k(f"ds_read_b64_tr_b16 v[{UD_+4*ch}:{UD_+4*ch+1}], v9 offset:{128*ch}\nds_read_b64_tr_b16 v[{UD_+4*ch+2}:{UD_+4*ch+3}], v9 offset:{128*ch + 4*(LNS - 256)}")
        if ch == 4: k(rstd_chain(140, 141, 144) + f"\nv_mov_b32 v142, v141\nv_mov_b32 v143, v140\nv_mul_f32 v140, v140, v144\ns_mov_b32 exec_lo, 0x01010101\ns_mov_b32 exec_hi, 0x01010101\nglobal_store_dwordx2 v3, v[142:143], {P(pWS)} {SC}\ns_mov_b64 exec, -1")
    for r in range(8): k(f"v_readlane_b32 s{70+r}, v144, {8*r}")
    for r in range(8): k(f"v_readlane_b32 s{78+r}, v140, {8*r}")
    for r in range(8): k(f"v_mov_b32 v{16+r}, s{78+r}")
    for ch in range(10):
        b = UD_ + 4 * ch; u = 24 + 12 * (ch % 3)
        for i in range(4): k(f"v_lshlrev_b32 v{u+2*i}, 16, v{b+i}\nv_and_b32 v{u+2*i+1}, 0xffff0000, v{b+i}")
        for i in range(4): k(f"v_pk_fma_f32 v[{u+2*i}:{u+2*i+1}], v[{u+2*i}:{u+2*i+1}], s[{70+2*i}:{71+2*i}], v[{16+2*i}:{17+2*i}] neg_lo:[0,0,1] neg_hi:[0,0,1]")
        for i in range(4): k(f"v_cvt_pk_bf16_f32 v{u+8+i}, v{u+2*i}, v{u+2*i+1}")
        k(f"global_store_dwordx4 v2, {V4(u+8)}, {P(pWS)} {SC}")
        if ch < 9: k("v_add_u32 v2, 0x40000, v2")
    k("MANUAL")
    k.stamp('lnst')
    k(f"global_load_dword v{vPD}, v{vPA}, {P(pDBG)} sc1")
    wait_flags(k, 'init2', vPD, vPA, 32, 0)
    arrive(k, S1_OFF, vPD, vPT, "s_and_b32 s26, s31, 31")
    k.stamp('arr1')
    k(f"""
    s_branch LF_sa_end
    LF_sa_mod:
    s_cmp_lt_u32 s20, 80
    s_cbranch_scc0 LF_init
    s_cmp_eq_u32 s21, 3
    s_cbranch_scc0 LF_sa_end
    """)
    side_mod(k)
    k(f"v_mov_b32 v{vPA}, 0\nglobal_load_dword v{vPD}, v{vPA}, {P(pDBG)} sc1")
    wait_flags(k, 'init3', vPD, vPA, 32, 0)
    arrive(k, S2_OFF + 4, vPD, vPT, "s_and_b32 s26, s2, 15")
    k.stamp('modst')
    k("LF_sa_w1:")
    if not on('w1late'): w1raw(k)
    k("LF_sa_end:")
    SPINS.append(f"""
    LF_init:
    s_sub_u32 s24, s20, 80
    s_lshl_b32 s24, s24, 1
    s_add_u32 s24, s24, s21
    s_sub_u32 s24, s24, 2
    s_lshl_b32 s24, s24, 12
    s_add_u32 s24, s24, {WS_SYNC}
    v_add_u32 v30, s24, v{vL16}
    v_mov_b32 v26, 0
    v_mov_b32 v27, 0
    v_mov_b32 v28, 0
    v_mov_b32 v29, 0
    global_store_dwordx4 v30, v[26:29], {P(pWS)} sc1
    global_store_dwordx4 v30, v[26:29], {P(pWS)} offset:1024 sc1
    global_store_dwordx4 v30, v[26:29], {P(pWS)} offset:2048 sc1
    global_store_dwordx4 v30, v[26:29], {P(pWS)} offset:3072 sc1
    v_mov_b32 v31, 1
    s_waitcnt vmcnt(0)
    s_mov_b64 exec, 1
    global_atomic_add v26, v31, {P(pDBG)} sc1
    s_mov_b64 exec, -1
    s_cmp_eq_u32 s21, 3
    s_cbranch_scc1 LF_sa_w1
    s_branch LF_sa_end
    """)

def mlp_setup(k, opts):
    if opts.get('arr', '8x4') == '8x4':
        k("""
        s_and_b32 s24, s2, 7
        s_lshr_b32 s25, s2, 3
        s_lshr_b32 s22, s24, 1
        s_lshl_b32 s22, s22, 3
        s_lshr_b32 s26, s25, 2
        s_add_u32 s22, s22, s26               ; rb
        s_and_b32 s23, s24, 1
        s_lshl_b32 s23, s23, 2
        s_and_b32 s26, s25, 3
        s_add_u32 s23, s23, s26               ; j
        """)
    else:
        k("""
        s_and_b32 s22, s2, 7
        s_lshl_b32 s22, s22, 2
        s_lshr_b32 s26, s2, 6
        s_add_u32 s22, s22, s26               ; rb
        s_bfe_u32 s23, s2, 0x30003            ; j
        """)
    k(f"""
    s_mul_i32 s26, s23, 12
    s_mul_i32 s25, s21, 3
    s_add_u32 s25, s26, s25               ; first f tile of this wave
    s_lshl_b32 s26, s25, 7
    s_add_u32 s26, s26, {WS_SYNC + F1_OFF}
    v_min_u32 v{vF1D}, 11, v1
    v_lshrrev_b32 v{vF1A}, 2, v{vF1D}
    v_lshl_add_u32 v{vF1A}, v{vF1A}, 7, s26
    v_and_b32 v{vF1D}, 3, v{vF1D}
    v_lshl_add_u32 v{vF1A}, v{vF1D}, 2, v{vF1A}
    s_lshl_b32 s24, s23, 2
    s_add_u32 s24, s24, s21
    s_mul_i32 s24, s24, 61440
    s_add_u32 s26, s24, {WS_W1F}
    """)
    srd(k, 4, pWS, 's26', 61440)
    k(f"s_add_u32 s26, s24, {WS_W2F}")
    srd(k, 8, pWS, 's26', 61440)
    k(f"s_mul_i32 s26, s22, 196608\ns_add_u32 s26, s26, {WS_H}")
    srd(k, 12, pWS, 's26', 196608)
    srd(k, 16, pOUT, 0, L * D * 2)
    k(f"""
    s_and_b32 s26, s21, 1
    s_lshl_b32 s25, s25, 6
    s_add_u32 s25, s25, {WS_V12}
    v_add_u32 v{vVA}, s26, v12            ; tile of pass 0 / 1
    s_xor_b32 s26, s26, 1
    s_lshl_b32 s26, s26, 1
    v_mov_b32 v{vVA+1}, s26               ; tile of pass 2
    v_cmp_gt_u32 vcc, 2, v12
    v_lshl_add_u32 v{vVA+2}, v13, 2, s25
    v_cndmask_b32 v{vVA}, v{vVA+1}, v{vVA}, vcc
    v_lshl_add_u32 v{vVA}, v{vVA}, 6, v{vVA+2}
    s_mul_i32 s26, s23, 320
    s_add_u32 s26, s26, 12800
    v_lshl_add_u32 v{vVA+4}, v1, 2, s26
    v_lshl_add_u32 v{vVA+5}, v13, 2, s26
    s_lshl_b32 s80, s21, 10
    s_xor_b32 s81, s80, 1024
    s_xor_b32 s82, s80, 2048
    s_xor_b32 s83, s80, 3072
    s_mul_i32 s26, s21, 3
    s_add_u32 s26, s26, 1
    s_lshr_b32 s26, s26, 1
    s_mul_i32 s27, s23, 6
    s_add_u32 s26, s26, s27
    s_lshl_b32 s26, s26, 12
    s_lshr_b32 s30, s21, 1
    s_mul_i32 s31, s30, 3
    s_add_u32 s31, s31, 1
    s_add_u32 s27, s27, s31
    s_lshl_b32 s27, s27, 12               ; single k-step base
    s_add_u32 s72, s80, s26
    s_add_u32 s73, s81, s26
    s_add_u32 s74, s82, s26
    s_add_u32 s75, s83, s26
    s_add_u32 s76, s80, s27
    s_add_u32 s77, s82, s27
    """)

def conv_setup(k, part=3):
    if part & 1: conv_setup1(k)
    if part & 2: conv_setup2(k)

def conv_setup1(k):
    k(f"""
    s_mul_i32 s26, s21, {TAPCH}
    s_add_u32 s26, s26, {TAPS}
    v_sub_u32 v14, 3, v11
    v_mul_u32_u24 v14, {TCS}, v14
    v_lshl_add_u32 v14, v10, 3, v14
    v_add_u32 v14, s26, v14
    v_lshlrev_b32 v15, 4, v12
    v_sub_u32 v15, 48, v15
    v_add_u32 v{vTA}, v14, v15
    v_and_b32 v15, 1, v12                 ; G&1
    v_lshrrev_b32 v9, 1, v12              ; G>>1
    v_lshlrev_b32 v16, 3, v15
    v_sub_u32 v14, v14, v16
    v_add_u32 v14, 8, v14
    v_mul_u32_u24 v16, {2*(B3A - B5A)}, v9
    v_add_u32 v{vT2}, v14, v16
    v_mul_u32_u24 v16, {2*(B9 - B7)}, v9
    v_add_u32 v{vT3}, v14, v16
    s_mul_i32 s27, s21, {CHS}
    v_lshlrev_b32 v14, 5, v13
    v_add_u32 v14, s27, v14
    v_lshl_add_u32 v{vRD}, v12, 4, v14    ; h frag: 32a + 16G
    v_lshl_add_u32 v14, v9, 4, v14
    v_mul_u32_u24 v16, {UD}, v15
    v_add_u32 v{vWU}, v14, v16
    v_lshlrev_b32 v14, 7, v15
    v_lshl_add_u32 v14, v11, 5, v14
    v_lshl_add_u32 v14, v10, 3, v14
    v_add_u32 v14, s27, v14               ; 128(G&1) + 32r + 8cc
    v_mul_u32_u24 v16, {UD - 16}, v9
    v_sub_u32 v17, v14, v16
    v_add_u32 v{vDA}, {O5 - 16}, v17
    v_add_u32 v17, v14, v16
    v_add_u32 v{vD3}, {O7}, v17
    v_lshlrev_b32 v16, 5, v9
    v_sub_u32 v16, 16, v16
    v_add_u32 v{vDB}, v{vDA}, v16
    v_bfe_u32 v16, v1, 1, 2
    v_xor_b32 v16, s21, v16
    v_lshlrev_b32 v16, 4, v16
    v_lshl_add_u32 v16, v13, 7, v16
    v_lshl_add_u32 v16, v15, 6, v16
    v_add_u32 v{vRU}, {OU}, v16
    v_mul_u32_u24 v16, {CHS}, v10
    v_lshrrev_b32 v14, 2, v1
    s_lshl_b32 s28, s21, 4
    v_add_u32 v14, s28, v14               ; segment 0..63
    v_lshl_add_u32 v{vWH}, v14, 6, v16
    v_lshlrev_b32 v14, 8, v14
    v_lshl_add_u32 v14, v10, 4, v14
    s_lshl_b32 s29, s2, 14
    s_add_u32 s28, s29, {WS_NT}
    v_add_u32 v{vNO}, s28, v14
    v_xor_b32 v14, v10, v12
    v_and_b32 v16, 0x3c, v1
    v_lshlrev_b32 v16, 4, v16
    v_lshl_add_u32 v14, v14, 4, v16
    s_lshl_b32 s28, s21, 12
    s_add_u32 s29, s29, s28
    s_add_u32 s29, s29, {WS_NT}
    v_add_u32 v{vUO}, s29, v14
    s_add_u32 s29, s28, {WS_ST}
    v_add_u32 v{vSG}, s29, v{vL16}
    v_min_u32 v14, 2, v12
    v_mul_u32_u24 v14, 2560, v14
    v_mul_u32_u24 v16, 15360, v11
    v_add_u32 v14, v14, v16
    v_lshl_add_u32 v14, v10, 2, v14
    s_lshl_b32 s29, s2, 4
    v_add_u32 v{vMO}, s29, v14
    v_lshlrev_b32 v{vBP}, 2, v10
    v_add_u32 v{vSA}, {OS}, v{vL16}
    v_lshlrev_b32 v14, 3, v12
    v_sub_u32 v14, v14, v13
    v_add_u32 v14, 15, v14                ; 8G - i + 15
    v_and_b32 v16, 1, v14
    v_cmp_eq_u32 vcc, 1, v16
    v_lshrrev_b32 v14, 1, v14
    v_min_u32 v14, 15, v14
    v_lshl_or_b32 v14, v14, 16, v14
    """)
    for fi, (lo, hi_) in enumerate(((0, 0), (11, 13), (6, 10), (5, 11), (4, 12))):
        Wv = ((1 << (hi_ - lo + 1)) - 1) << (lo + 15)
        We = sum(((Wv >> (2 * b)) & 1) << b for b in range(16)); Wo = sum(((Wv >> (2 * b + 1)) & 1) << b for b in range(16))
        k(f"v_mov_b32 v16, {We | Wo << 16}\nv_mov_b32 v17, {Wo | (We >> 1) << 16}\nv_cndmask_b32 v16, v16, v17, vcc\nv_pk_lshrrev_b16 v16, v14, v16")
        for q in range(4): k(f"v_and_b32 v17, {0x10001 << q}, v16\nv_mul_u32_u24 v{BAND+4*fi+q}, {0x3f80 >> q}, v17")

def conv_setup2(k):
    DUM = 2 * 1010
    S = SCT
    k(f"""
    s_mul_i32 s26, s21, {KTS}
    s_add_u32 s26, s26, {KT}
    v_mul_u32_u24 v14, 144, v1
    v_add_u32 v{vKW}, s26, v14
    v_lshrrev_b32 v15, 5, v1              ; hi
    v_lshl_add_u32 v14, v11, 1, v15
    v_mul_u32_u24 v14, 288, v14
    v_bfe_u32 v16, v1, 4, 1
    v_lshl_add_u32 v14, v16, 5, v14
    v_lshl_add_u32 v14, v10, 3, v14
    v_add_u32 v{vKR}, s26, v14
    s_mul_i32 s26, s21, {STGS}
    s_add_u32 s26, s26, {STG}
    v_mov_b32 v24, 0
    v_mov_b32 v25, 0
    v_mov_b32 v26, 0
    v_mov_b32 v27, 0
    v_add_u32 v{S+8}, s26, v{vL16}
    ds_write_b128 v{S+8}, v[24:27]
    ds_write_b128 v{S+8}, v[24:27] offset:1024
    v_mov_b32 v28, s26
    ds_write_b128 v28, v[24:27] offset:2048
    v_and_b32 v34, 1, v1                  ; odd
    v_bfe_u32 v35, v1, 1, 4               ; kappa'
    v_or_b32 v36, v34, v15
    v_mul_u32_u24 v37, 48, v34
    v_mul_u32_u24 v38, 96, v15
    v_add3_u32 v36, v36, v37, v38
    v_add_u32 v36, v36, v35
    v_lshl_add_u32 v{S}, v36, 1, s26
    v_add_u32 v39, {DUM}, v28
    v_add_u32 v36, {2*B5A}, v{S}
    v_cmp_eq_u32 vcc, 0, v35
    v_mul_u32_u24 v37, {B9 - 1 - B7}, v34
    v_lshl_add_u32 v38, v15, 4, v35
    v_cndmask_b32 v{S+1}, v36, v39, vcc
    v_sub_u32 v38, v38, v37
    v_add_u32 v38, {B9}, v38
    v_lshl_add_u32 v{S+2}, v38, 1, s26
    v_add_u32 v37, {2*(BC + 4)}, v28
    v_cmp_eq_u32 vcc, 0, v1
    v_add_u32 v40, {2*(BC + 5)}, v28
    v_add_u32 v41, {2*(B9 + 64)}, v28
    v_cndmask_b32 v{S+3}, v{S+2}, v37, vcc
    v_cndmask_b32 v{S+4}, v39, v40, vcc
    v_cndmask_b32 v{S+5}, v39, v41, vcc
    v_add_u32 v37, {2*(B5A + 32)}, v28
    v_cmp_eq_u32 vcc, 32, v1
    v_and_b32 v38, 31, v1
    v_lshlrev_b32 v38, 4, v38
    v_cndmask_b32 v{S+5}, v{S+5}, v37, vcc
    v_lshl_add_u32 v38, v15, 3, v38
    v_add_u32 v{S+6}, s26, v38            ; 16n + 8hi
    v_and_b32 v37, 30, v1
    v_cmp_eq_u32 vcc, 0, v37
    v_add_u32 v37, {2*1016 - 2*(BA+1+512)}, v28
    v_cndmask_b32 v{S+7}, v37, v{S+6}, vcc
    """)
    for i in range(16): k(f"v_mov_b32 v{KACC+i}, 0")

def cmul(k, z, a, b, t):
    k(f"v_pk_mul_f32 v[{t}:{t+1}], v[{a}:{a+1}], v[{b}:{b+1}] op_sel_hi:[1,0]")
    return f"v_pk_fma_f32 v[{z}:{z+1}], v[{a}:{a+1}], v[{b}:{b+1}], v[{t}:{t+1}] op_sel:[1,1,0] op_sel_hi:[0,1,1] neg_lo:[1,0,0]"
def cmuls(k, lst, tmp):
    for s in [cmul(k, z, a, b, tmp + 2 * i) for i, (z, a, b) in enumerate(lst)]: k(s)

def nloads():
    return "".join(f"global_load_dwordx4 {V4(NR+4*q)}, v{vNO}, {P(pWS)} offset:{64*q} {SC}\n" for q in range(4)) + f"global_load_dword v{NR+16}, v{vMO}, {P(pWS)} {SC}\n"

def hfill(r=16):
    return "".join(f"v_mov_b32 v{r+i}, -1\n" for i in range(4)) + "".join(f"buffer_store_dwordx4 {V4(r)}, v{vL16}, s[12:15], s{72+s} offen {SC}\n" for s in range(6))

def kgen(k, opts):
    AR, BR, CR, DT, DS = PRM, PRM + 2, PRM + 4, PRM + 18, PRM + 20
    TMP, LR, ACC = 14, 22, KACC
    ML = int(opts.get('modlate', 1))
    k(f"""
    s_mov_b32 s86, {LOG2E}
    s_mov_b32 s87, {INV2PI}
    s_mov_b32 s3, 0
    s_waitcnt vmcnt({20 if ML else 25})
    """)
    if not on('sl'): silu_frags(k, CDAT, LA + 2, MFR)
    k(f"s_waitcnt vmcnt({0 if ML else 5})")
    if ML: mod_dma(k, LA + 5)
    k(f"""
    {f'v_lshlrev_b32 v{DT}, 16, v{DT}' if on('ush') else ''}
    {f'v_lshlrev_b32 v{DS}, 16, v{DS}' if on('ush') else ''}
    v_mul_f32 v14, s86, v{DT}
    v_fma_f32 v15, v{DT}, s86, -v14
    v_fmac_f32 v15, {LOG2E_LO}, v{DT}
    v_exp_f32 v14, v14
    v_mul_f32 v15, {LN2}, v15
    v_fmac_f32 v14, v14, v15
    v_cmp_eq_u32 vcc, 0, v1
    v_cvt_pk_bf16_f32 v14, v14, v14
    v_lshlrev_b32 v{DT}, 16, v14
    v_cndmask_b32 v{ACC}, 0, v{DS}, vcc
    """)
    k.stamp('kparam')
    k("LF_kpass:")
    if on('ush'):
        for i in range(6): k(f"v_lshlrev_b32 v{PRM+i}, 16, v{PRM+i}")
    k(f"""
    v_pk_mul_f32 v[{LR}:{LR+1}], v[{AR}:{AR+1}], v[{DT}:{DT+1}] op_sel_hi:[1,0]
    v_pk_mul_f32 v[{LR}:{LR+1}], v[{LR}:{LR+1}], s[86:87]
    """)
    W = {1: 24, 8: 26, 256: 28, 2: 30, 3: 32, 4: 34, 5: 36, 6: 38, 7: 40, 16: 42, 32: 44, 258: 46, 260: 48, 262: 50, 264: 52, 512: 54}
    Z = [56 + 2 * i for i in range(8)]
    k(f"""
    v_pk_mul_f32 v[20:21], v[{CR}:{CR+1}], v[{BR}:{BR+1}] op_sel_hi:[1,0]
    v_mul_f32 v16, {f2u(8.0)}, v{LR}
    v_mul_f32 v17, {f2u(8.0)}, v{LR+1}
    v_mul_f32 v18, {f2u(256.0)}, v{LR}
    v_mul_f32 v19, {f2u(256.0)}, v{LR+1}
    v_fract_f32 v15, v{LR+1}
    v_fract_f32 v17, v17
    v_fract_f32 v19, v19
    v_exp_f32 v14, v{LR}
    v_exp_f32 v16, v16
    v_exp_f32 v18, v18
    v_pk_fma_f32 v[{Z[0]}:{Z[0]+1}], v[{CR}:{CR+1}], v[{BR}:{BR+1}], v[20:21] op_sel:[1,1,0] op_sel_hi:[0,1,1] neg_lo:[1,0,0]
    """)
    for i, r in enumerate((24, 26, 28)): k(f"v_cos_f32 v{r}, v{15+2*i}\nv_sin_f32 v{r+1}, v{15+2*i}")
    k(f"v_pk_mul_f32 v[{Z[0]}:{Z[0]+1}], v[{Z[0]}:{Z[0]+1}], v[{DT}:{DT+1}] op_sel_hi:[1,0]")
    for i, r in enumerate((24, 26, 28)): k(f"v_pk_mul_f32 v[{r}:{r+1}], v[{r}:{r+1}], v[{14+2*i}:{15+2*i}] op_sel_hi:[1,0]")
    for i in range(6): k(f"v_pk_mov_b32 v[{PRM+2*i}:{PRM+2*i+1}], v[{PRM+6+2*i}:{PRM+7+2*i}], v[{PRM+6+2*i}:{PRM+7+2*i}] op_sel:[0,1]")
    cmuls(k, [(W[2], W[1], W[1]), (W[16], W[8], W[8]), (W[512], W[256], W[256]), (Z[1], Z[0], W[8])], TMP)
    cmuls(k, [(W[3], W[2], W[1]), (W[4], W[2], W[2]), (W[32], W[16], W[16]), (W[258], W[256], W[2])], TMP)
    cmuls(k, [(Z[2], Z[0], W[16]), (Z[3], Z[1], W[16]), (W[5], W[4], W[1]), (W[6], W[4], W[2])], TMP)
    cmuls(k, [(W[7], W[4], W[3]), (W[260], W[256], W[4]), (W[264], W[256], W[8]), (Z[4], Z[0], W[32])], TMP)
    st = {'g': 0}
    NOW = int(opts.get('nokw', 0))
    def half(grp, vals, neg, part):
        pk = 72 + 4 * (st['g'] % 4); st['g'] += 1
        s = '-' if neg and part else ''
        for i in range(4):
            a, b = vals[2 * i], vals[2 * i + 1]
            ra = ('0' if part else '1.0') if a is None else f'{s}v{a+part}'
            k(f"v_cvt_pk_bf16_f32 v{pk+i}, {ra}, {s}v{b+part}")
        if not NOW: k(f"ds_write_b128 v{vKW}, v[{pk}:{pk+3}] offset:{16*grp + 9216*part}")
    def put(grp, vals, neg, between=None):
        half(grp, vals, neg, 0)
        if between: cmuls(k, between, TMP)
        half(grp, vals, neg, 1)
    X = {516: 88, 520: 90, 768: 92, 1024: 94, 772: 96, 1280: 98, 1536: 100, 1792: 102, 2048: W[1]}
    Y = [W[258], W[260], W[262], W[264], W[2], W[3], W[5], W[7]]
    cmuls(k, [(W[262], W[256], W[6]), (Z[5], Z[1], W[32]), (Z[6], Z[2], W[32]), (Z[7], Z[3], W[32])], TMP)
    put(0, [None, W[1], W[2], W[3], W[4], W[5], W[6], W[7]], True, [(X[516], W[512], W[4]), (X[520], W[512], W[8]), (X[768], W[512], W[256]), (X[1024], W[512], W[512])])
    put(1, [W[256], W[256], W[258], W[260], W[260], W[260], W[262], W[264]], True, [(X[772], X[768], W[4]), (X[1280], X[1024], W[256]), (X[1536], X[1024], W[512]), (X[1792], X[1024], X[768])])
    put(4, Z, False, [(Y[0], Z[4], W[32]), (Y[1], Z[5], W[32]), (Y[2], Z[6], W[32]), (Y[3], Z[7], W[32])])
    put(2, [W[512], W[512], W[512], X[516], X[516], X[516], X[520], X[520]], True, [(Y[4], Y[0], W[32]), (Y[5], Y[1], W[32]), (Y[6], Y[2], W[32]), (Y[7], Y[3], W[32])])
    k(f"s_cmp_eq_u32 s3, 1\ns_cbranch_scc1 {'LF_cmod' if on('mmid', 1) else 'LF_arr1'}\ns_cmp_eq_u32 s3, 2\ns_cbranch_scc1 LF_pol1\nLF_noarr1:")
    SPINS.append(f"LF_pol1:\ns_cmp_eq_u32 s21, 0\ns_cbranch_scc0 LF_noarr1\nglobal_load_dword v{vPD}, v{vPA}, {P(pWS)} sc1\ns_branch LF_noarr1")
    a = Asm('x'); a.names = k.names
    a("LF_arr1:")
    if not on('msw', 3): lane_consts(a); mlp_setup(a, opts)
    a("s_waitcnt vmcnt(0)")
    wait_flags(a, 'init', vPD, vPA, 32, None)
    a("s_barrier\ns_cmp_eq_u32 s21, 0\ns_cbranch_scc0 LF_arr1b")
    arrive(a, SM_OFF, vPD, vPT, "s_and_b32 s26, s2, 31")
    a("LF_arr1b:")
    poll_addr(a, S1_OFF, vPA)
    a(f"""v_lshrrev_b32 v{vPT}, 5, v1
    v_lshl_add_u32 v{vPA}, v{vPT}, 16, v{vPA}
    v_cmp_lt_u32 vcc, 31, v1
    v_cndmask_b32 v{vPT}, 8, 5, vcc""")
    a.stamp('arr1')
    a("s_mov_b32 s3, 2\ns_branch LF_kpass" if on('mmid', 1) else "s_branch LF_noarr1")
    SPINS.append('\n'.join(a.lines))
    cmuls(k, [(X[2048], X[1024], X[1024]), (Z[0], Y[4], W[32]), (Z[1], Y[5], W[32]), (Z[2], Y[6], W[32])], TMP)
    put(5, Y, False, [(Z[3], Y[7], W[32]), (Z[4], Z[0], W[32]), (Z[5], Z[1], W[32]), (Z[6], Z[2], W[32])])
    put(3, [X[768], X[1024], X[1536], X[2048], X[772], X[1280], X[1792], X[1024]], True, [(Z[7], Z[3], W[32]), (Y[0], Z[4], W[32]), (Y[1], Z[5], W[32]), (Y[2], Z[6], W[32])])
    put(6, Z, False, [(Y[3], Z[7], W[32]), (Y[4], Y[0], W[32]), (Y[5], Y[1], W[32]), (Y[6], Y[2], W[32])])
    cmuls(k, [(Y[7], Y[3], W[32])], TMP)
    put(7, Y, False)
    k.stamp('ktab_last')
    k("s_cmp_eq_u32 s3, 2\ns_cbranch_scc1 LF_pol2\nLF_nopoll1:")
    SPINS.append(f"LF_pol2:\ns_cmp_eq_u32 s21, 0\ns_cbranch_scc0 LF_nopoll1\nglobal_load_dword v{vP2}, v{vPA}, {P(pWS)} sc1\ns_branch LF_nopoll1")
    FR = 56
    order = [0, 1, 2, 3, 4, 5, 6, 7]
    def rd(s):
        return [f"ds_read_b64_tr_b16 v[{FR + 8*(s % 4) + 4*tb + 2*h}:{FR + 8*(s % 4) + 4*tb + 2*h + 1}], v{vKR} offset:{(16*(s % 4) + h)*144 + 64*tb + 9216*(s // 4)}" for tb in range(2) for h in range(2)]
    k("AUTO")
    for s in range(3):
        for t in rd(s): k(t)
    for s in range(8):
        r = FR + 8 * (s % 4)
        k(f"v_mfma_f32_32x32x16_bf16 v[{ACC}:{ACC+15}], v[{r}:{r+3}], v[{r+4}:{r+7}], v[{ACC}:{ACC+15}]")
        if s + 3 < 8:
            for t in rd(s + 3): k(t)
    if on('mmid', 1): k("MANUAL\ns_cmp_eq_u32 s3, 1\ns_cbranch_scc1 LF_arr1\ns_cmp_eq_u32 s3, 0\ns_mov_b32 s3, 1\ns_cbranch_scc1 LF_kpass")
    else: k("MANUAL\ns_cmp_eq_u32 s3, 0\ns_cbranch_scc1 LF_cmod\ns_cmp_eq_u32 s3, 1\ns_mov_b32 s3, 2\ns_cbranch_scc1 LF_kpass")
    k.stamp('kg3')
    if on('cs2') == 1: lane_consts(k); conv_setup(k, 1)
    k(f"s_cmp_eq_u32 s21, 0\ns_cbranch_scc0 LF_haven\ns_waitcnt vmcnt(1)\nv_cmp_gt_u32 vcc, v{vPT}, v{vPD}\ns_cbranch_vccz LF_haven\ns_waitcnt vmcnt(0)\nv_mov_b32 v{vPD}, v{vP2}")
    wait_flags(k, 's1', vPD, vPA, f"v{vPT}", None)
    if on('cs2') == 2:
        pass
    k("LF_haven:\ns_barrier\n" + nloads())
    if on('xe2'):
        k(f"s_lshl_b32 s29, s20, 12\ns_add_u32 s29, s29, {WS_X1}\nv_add_u32 v20, s29, v{vL16}\n" + "".join(f"v_mov_b32 v{16+i}, -1\n" for i in range(4)))
        for q in range(4): k(f"global_store_dwordx4 v20, v[16:19], {P(pWS)} offset:{1024*q} {SC}")
    k.stamp('s1')
    S = SCT
    k(f"""
    v_cmp_ne_u32 vcc, 33, v1
    s_mul_i32 s26, s21, {TAPCH}
    s_add_u32 s26, s26, {TAPS}
    v_add_u32 v14, s26, v{vL16}
    v_cvt_pk_bf16_f32 v24, v{ACC}, v{ACC+1}
    v_cvt_pk_bf16_f32 v25, v{ACC+2}, v{ACC+3}
    v_cvt_pk_bf16_f32 v26, v{ACC+4}, v{ACC+5}
    v_cvt_pk_bf16_f32 v27, v{ACC+6}, v{ACC+7}
    ds_write_b64 v{S+6}, v[24:25] offset:{2*(BA+1)}
    v_cvt_pk_bf16_f32 v28, v{ACC+8}, v{ACC+9}
    v_cvt_pk_bf16_f32 v29, v{ACC+10}, v{ACC+11}
    ds_write_b64 v{S+6}, v[26:27] offset:{2*(BA+1) + 512}
    v_cvt_pk_bf16_f32 v30, v{ACC+8}, v{ACC+12}
    v_cndmask_b32 v29, 0, v29, vcc
    ds_write_b16 v{S+1}, v30
    v_cvt_pk_bf16_f32 v31, v{ACC+13}, v{ACC+14}
    ds_write_b64 v{S+7}, v[28:29] offset:{2*(BA+1) + 1024}
    v_cvt_pk_bf16_f32 v32, v{ACC+15}, v{ACC+15}
    ds_write_b16_d16_hi v{S}, v30 offset:{2*B5A + 32}
    ds_write_b16 v{S+3}, v31
    ds_write_b16 v{S+4}, v31
    ds_write_b16_d16_hi v{S+2}, v31 offset:64
    ds_write_b16 v{S+5}, v32
    AUTO
    ds_read_b128 v[24:27], v{S+8}
    ds_read_b64 v[28:29], v{S+8} offset:16
    ds_read_b128 v[48:51], v{S+8} offset:1024
    ds_read_b64 v[52:53], v{S+8} offset:1040
    """)
    for q, b in enumerate((24, 48)):
        k(f"ds_write_b128 v14, v[{b+2}:{b+5}] offset:{1024*q + 3*TCS}")
        for i in range(4): k(f"v_alignbit_b32 v{b+8+i}, v{b+i+1}, v{b+i}, 16")
        k(f"ds_write_b128 v14, v[{b+8}:{b+11}] offset:{1024*q}")
        for i in range(4): k(f"v_mov_b32 v{b+12+i}, v{b+i+1}")
        k(f"ds_write_b128 v14, v[{b+12}:{b+15}] offset:{1024*q + TCS}")
        for i in range(4): k(f"v_alignbit_b32 v{b+16+i}, v{b+i+2}, v{b+i+1}, 16")
        k(f"ds_write_b128 v14, v[{b+16}:{b+19}] offset:{1024*q + 2*TCS}")
    k("MANUAL")
    k.stamp('kout')

TA0 = 128; T20 = 200
CACC = 12; CU_ = 44; RING = 76; NRING = 8; WTMP = 108; DEC = 132

def conv(k, opts):
    tfr = [f"ds_read_b64_tr_b16 a[{TA0+4*m+2*h}:{TA0+4*m+2*h+1}], v{vTA} offset:{64*m - 8*h + 8}" for m in range(18) for h in range(2)]
    for idx, (base, mu, va) in enumerate([(B5A, 0, vT2), (B5A, 1, vT2), (B5A, 2, vT2), (B5B, 0, vT2), (B5B, 1, vT2), (B5B, 2, vT2)] + [(B7, mu, vT3) for mu in range(4)]):
        tfr += [f"ds_read_b64_tr_b16 a[{T20+4*idx+2*h}:{T20+4*idx+2*h+1}], v{va} offset:{2*(base-3) - 8 + 32*mu - 16*h}" for h in range(2)]
    t2fr = tfr[36:] if on('t2w') else []
    for t in tfr[:56 - len(t2fr)]: k(t)
    k(f"""
    s_lshl_b32 s29, s20, 12
    s_add_u32 s29, s29, {WS_X1}
    s_add_u32 s34, s68, s29
    s_addc_u32 s35, s69, 0
    s_lshl_b32 s28, s21, 12
    s_add_u32 m0, s28, {OU}
    s_mul_i32 s27, s21, {CHS}
    v_mov_b32 v12, 0
    v_mov_b32 v13, 0
    v_mov_b32 v14, 0
    v_mov_b32 v15, 0
    v_min_u32 v17, 29, v1
    v_lshl_add_u32 v17, v17, 4, s27
    v_min_u32 v18, 3, v1
    v_mul_u32_u24 v18, {UD}, v18
    v_add_u32 v18, s27, v18
    s_add_u32 s28, s21, 32
    s_waitcnt vmcnt({4 if on('xe2') else 0})
    v_add_f32_dpp v40, v{NR+16}, v{NR+16} row_ror:4 row_mask:0xf bank_mask:0xf
    v_add_f32_dpp v40, v40, v40 row_ror:8 row_mask:0xf bank_mask:0xf
    v_cvt_pk_bf16_f32 v40, v40, v40
    v_lshlrev_b32 v40, 16, v40
    ds_bpermute_b32 v42, v{vBP}, v40
    ds_bpermute_b32 v43, v{vBP}, v40 offset:64
    v_readlane_b32 s70, v40, s28
    s_waitcnt lgkmcnt(0)
    s_barrier
    v_add_f32 v43, 1.0, v43
    v_cvt_pk_bf16_f32 v43, v43, 0
    v_lshlrev_b32 v41, 16, v43
    """)
    k.stamp('ndata')
    HT = CU_
    k(f"ds_write_b128 v17, v[12:15]\nds_write_b128 v18, v[12:15] offset:{O3 - 16}")
    for q in range(5):
        if q < 4:
            for x in range(8): k(f"v_dot2_f32_bf16 v{HT+8*q+x}, v{NR+4*q+(x>>1)}, v{41 if x & 1 else 43}, v42")
        if q > 0:
            for i in range(4): k(f"v_cvt_pk_bf16_f32 v{HT+32+4*(q-1)+i}, v{HT+8*(q-1)+2*i}, v{HT+8*(q-1)+2*i+1}")
            k(f"ds_write_b128 v{vWH}, {V4(HT+32+4*(q-1))} offset:{OH + 16*(q-1)}")
    k("s_waitcnt lgkmcnt(0)\ns_barrier")
    k.stamp('prep')
    started = set()
    def M(T, a, b):
        s = mf(CACC + 4 * T, a, b, T not in started); started.add(T); return s
    slots, items = [], []
    def item(e, kind, text, deps=()):
        items.append(dict(id=len(items), e=e, kind=kind, text=text, deps=list(deps))); return len(items) - 1
    ps = list(range(-7, 57))
    LOOK = NRING - 2
    rdtxt = lambda i: f"ds_read_b128 {V4(RING + 4*(i % NRING))}, v{vRD} offset:{64*(ps[i] + 7)}"
    ring, lastw, wwrite, ures = {}, {}, {}, {}
    DI = {'C': 0, 'A': 4, 'B': 10}
    setup = []
    if on('msw', 3):
        ms = Asm('m'); lane_consts(ms); mlp_setup(ms, opts)
        for q, t in enumerate(ms.lines): setup.append(item(q // on('msw', 3), 'sa', t.replace('v10', 'v204').replace('v11', 'v205').replace('v12', 'v206').replace('v13', 'v207'), setup[-1:]))
    img = []
    for q in range(8):
        t = f"global_load_lds_dwordx4 v{vUO if q < 4 else vSG}, {P(pWS)} offset:{1024*(q & 3)} {SC} ; @w:U" + ("\ns_add_u32 m0, m0, 16384" if q == 3 else "")
        img.append(item(1 + 2 * q, 'va', t, img[-1:]))
    if int(opts.get('w2t', 0)):
        w2 = []
        for q, t in enumerate(["s_lshr_b32 s26, s2, 5", "s_mul_i32 s26, s26, 12288", "v_lshlrev_b32 v200, 7, v1", "buffer_load_dword v201, v200, s[8:11], s26 offen",
                               "v_min_u32 v200, 3968, v200", "s_add_u32 s26, s26, 8192", "buffer_load_dword v201, v200, s[8:11], s26 offen"]):
            w2.append(item(int(opts.get('w2t')) + 2 * q, 'va', t, w2[-1:]))
    t2i = [item(100 + 2 * q, 'ds', t) for q, t in enumerate(t2fr)]
    hf = []
    for q, t in enumerate(hfill(196).strip().split('\n')[:4 if on('hsd') else 10]): hf.append(item(4 + q if q < 4 else 20 + int(opts.get('hs', 4)) * q, 'va', t, hf[-1:] + (setup[-1:] if q >= 4 else [])))
    if on('xo', 1) and not on('xe2'):
        for q in range(4): hf.append(item(int(opts.get('xe', 14)) + 4 * q, 'va', f"global_store_dwordx4 v{vL16}, v[196:199], s[34:35] offset:{1024*q} {SC}", hf[3:4]))
    ubar = None
    for i, p in enumerate(ps):
        if i + LOOK < len(ps): ring[i + LOOK] = item(len(slots), 'ring', rdtxt(i + LOOK))
        b = V4(RING + 4 * (i % NRING)); dep = [ring[i]] if i in ring else []
        for T in range(8):
            m = 8 * T - p
            if 0 <= m <= 16: slots.append((M(T, A4(TA0 + 4 * m), b), dep))
            if T >= 4 and m == 32: slots.append((M(T, A4(TA0 + 68), b), dep))
        if p % 8 == 0 and 0 <= p <= 40:
            T = p // 8
            for pr, off in enumerate((O3, O7)):
                if pr == 1 and T >= 4: continue
                t = WTMP + 8 * pr; o = WTMP + 16 + 4 * pr
                for wi in range(2): slots.append((mf(t + 4 * wi, V4(BAND + 4 + 8 * pr + 4 * wi), b, True), dep + lastw.get(pr, [])))
                e = len(slots) + 3
                c = [item(e, 'va', f"v_cvt_pk_bf16_f32 v{o+q}, v{t+2*q}, v{t+2*q+1}") for q in range(4)]
                s0 = item(e + 3, 'va', f"v_permlane16_swap_b32 v{o}, v{o+2}", c)
                s1 = item(e + 3, 'va', f"v_permlane16_swap_b32 v{o+1}, v{o+3}", c)
                w = item(e + 4, 'ds', f"ds_write_b128 v{vWU}, {V4(o)} offset:{off + 512*T}", [s0, s1])
                lastw[pr] = [w]; wwrite.setdefault(T, []).append(w)
            for kind in 'CAB':
                if kind == 'C' and T > 3: continue
                va = {'A': vDA, 'B': vDB, 'C': vD3}[kind]
                r = DEC + 4 * (DI[kind] + T)
                lastw[(kind, T)] = [item(len(slots) + 4, 'ds', f"ds_read_b64_tr_b16 v[{r+2*h}:{r+2*h+1}], v{va} offset:{512*T + 256*h}", wwrite[T]) for h in range(2)]
        if p == 24: ubar = item(len(slots), 'va', "s_barrier ; @r:U", img)
        if p in (26, 29, 33, 36, 39, 44, 48, 52):
            T = (26, 29, 33, 36, 39, 44, 48, 52).index(p)
            ures[T] = item(len(slots), 'ds', f"ds_read_b128 {V4(CU_ + 4*T)}, v{vRU} offset:{2048*T}", [ubar])
    E0 = int(opts.get('e0', 70)); NE1 = int(opts.get('ne1', 20))
    f0_ = item(E0, 'va', f"global_load_dword v{vF1D}, v{vF1A}, {P(pWS)} sc1", setup[-1:] + hf)
    f1 = item(E0 + on('ed', 35), 'va', f"v_cmp_gt_u32 vcc, 1, v{vF1D}\ns_cmp_eq_u64 vcc, 0\ns_cselect_b32 s6, 61440, 0", [f0_])
    ld = Loader(); prev = f1
    for i in range(NE1): prev = item(E0 + on('ed', 35) + 2 + i * (198 - E0 - on('ed', 35) - 7) // NE1, 'va', ld.w1(), [prev])
    fm = {}; ndirect = len(slots)
    allw = [w for ws_ in wwrite.values() for w in ws_]
    for T in range(8):
        idr = RING + 4 * (T % 4)
        slots.append((f"v_mfma_f32_16x16x32_bf16 {V4(idr)}, {V4(BAND)}, {V4(CU_ + 4*T)}, 0", [ures[T]] + fm.get(T - 4, [])))
        e0 = len(slots) + 3
        for kind, b0, nmu, t0 in (('C', 4, 4, 6), ('A', 2, 3, 0), ('B', 2, 3, 3)):
            for mu in range(nmu):
                P_ = T - b0 - mu
                if P_ >= 0: slots.append((M(T, V4(DEC + 4 * (DI[kind] + P_)), A4(T20 + 4 * (t0 + mu))), lastw[(kind, P_)] + t2i))
        e = len(slots) + 3
        sr = (202, 92, 100)[T % 3]
        sd = [item(ndirect - (8 if T == 0 else 0), 'ds', f"ds_read_b128 {V4(sr+4*h)}, v{vSA} offset:{2048*T + 1024*h}", [ubar] + fm.get(T - 3, [])) for h in range(2)]
        f0 = [item(e0, 'va', f"v_fma_f32 v{idr+r}, v{idr+r}, v{sr+2*r}, v{sr+2*r+1}", sd) for r in range(4)]
        fm[T] = [item(e, 'va', f"v_fma_f32 v{CACC+4*T+r}, v{CACC+4*T+r}, s70, v{idr+r}", f0) for r in range(4)]
        o = WTMP + 4 * (T >> 1) + 2 * (T & 1)
        fm[('c', T)] = [item(e, 'va', f"v_cvt_pk_bf16_f32 v{o+h}, v{CACC+4*T+2*h}, v{CACC+4*T+2*h+1}", fm[T] + allw) for h in range(2)]
        if T & 1: item(e, 'va', f"global_store_dwordx4 v{vL16}, {V4(WTMP + 4*(T >> 1))}, s[34:35] offset:{1024*(T >> 1)} {SC}", fm[('c', T)] + fm[('c', T - 1)] + [f1])
    k("AUTO")
    for i in range(LOOK): k(rdtxt(i))
    weave(k, slots, items)
    k("MANUAL")
    k.stamp('convend')

def weave(k, slots, items):
    done = set()
    def emit(n):
        if n in done: return
        for d in items[n]['deps']: emit(d)
        done.add(n); k(items[n]['text'])
    def pick(kinds, i):
        for it in items:
            if it['id'] not in done and it['kind'] in kinds and it['e'] <= i and all(d in done for d in it['deps']): return it['id']
        return None
    for i, (m, deps) in enumerate(slots):
        for d in deps: emit(d)
        if on('cst') and i in (30, 60, 90, 120, 150, 175): k.stamp(f'c{i}')
        k(m)
        n = pick(('ring',), i)
        if n is None: n = pick(('ds',), i)
        if n is not None: emit(n)
        for _ in range(3):
            n2 = pick(('sa',), i)
            if n2 is not None: emit(n2)
        for _ in range(1 if n is not None else 2):
            n2 = pick(('va',), i)
            if n2 is not None: emit(n2)
    for it in items: emit(it['id'])

def side(k, opts):
    k(f"""
    s_lshr_b32 s34, s20, 2
    s_and_b32 s35, s20, 3
    s_lshl_b32 s32, s34, 2
    s_add_u32 s32, s32, s21               ; f tile of this wave
    """)
    if on('w1late'):
        k(f"""
    v_lshrrev_b32 v2, 3, v1
    v_and_b32 v3, 6, v2
    v_and_b32 v4, 7, v1
    v_xor_b32 v3, v3, v4
    v_mul_u32_u24 v2, 3072, v2
    v_lshl_add_u32 v2, v3, 4, v2
    s_mul_i32 s33, s35, 160
    s_mul_i32 s26, s21, 40
    s_add_u32 s33, s33, s26
    s_mul_i32 s33, s33, 3072
    s_lshl_b32 s26, s34, 7
    s_add_u32 s33, s33, s26
    v_add_u32 v2, s33, v2
    s_mul_i32 s26, s21, 5120
    s_add_u32 m0, s26, {W1R}
    s_lshr_b32 s24, s20, 1
    s_and_b32 s25, s20, 1                 ; half
    """)
        for i in range(5):
            k(f"global_load_lds_dwordx4 v2, {P(pW1)}")
            k(f"s_add_u32 m0, m0, 1024\nv_add_u32 v2, {8*3072}, v2" if i < 4 else f"s_add_u32 m0, s26, {W2R}")
    else:
        k(f"""
    s_mul_i32 s26, s21, 5120
    s_add_u32 m0, s26, {W2R}
    s_lshr_b32 s24, s20, 1
    s_and_b32 s25, s20, 1                 ; half
    """)
    k(f"""
    s_mul_i32 s33, s24, {32*1280}
    s_mul_i32 s26, s25, 640
    s_add_u32 s33, s33, s26
    s_mul_i32 s27, s21, 320
    """)
    for i in range(5):
        k(f"""
        v_add_u32 v3, {64*i}, v1
        v_add_u32 v3, s27, v3
        v_mul_u32_u24 v4, 1639, v3
        v_lshrrev_b32 v4, 16, v4
        v_mul_u32_u24 v4, 640, v4
        v_lshl_add_u32 v3, v3, 4, v4
        v_add_u32 v3, s33, v3
        global_load_lds_dwordx4 v3, {P(pW2)}
        """)
        if i < 4: k("s_add_u32 m0, m0, 1024")
    lane_consts(k)
    k(f"""
    v_lshl_add_u32 v9, v12, 2, v11
    v_mul_u32_u24 v9, 640, v9
    v_lshl_add_u32 v9, v10, 3, v9
    s_mul_i32 s26, s21, 160
    s_add_u32 s26, s26, {W2R}
    v_add_u32 v9, s26, v9
    v_lshrrev_b32 v5, 1, v12
    v_and_b32 v6, 1, v12
    v_lshlrev_b32 v5, 4, v5
    v_lshl_add_u32 v5, v6, 2, v5          ; 16(G>>1) + 4(G&1)
    v_add_u32 v2, v5, v11
    v_and_b32 v3, 6, v2
    s_lshl_b32 s26, s21, 1
    v_xor_b32 v3, s26, v3
    v_lshrrev_b32 v4, 1, v10
    v_add_u32 v3, v3, v4
    v_lshlrev_b32 v3, 4, v3
    v_lshl_add_u32 v3, v2, 7, v3
    v_and_b32 v4, 1, v1
    v_lshl_add_u32 v3, v4, 3, v3
    v_add_u32 v130, {W1R}, v3
    ; W2F destination: ((j*4 + KS/12)*12 + order(KS%12))*5 KB, j = 4*half + wave
    s_mul_hi_u32 s26, s24, 0x15555556
    s_mul_i32 s27, s26, 12
    s_sub_u32 s27, s24, s27
    s_lshl_b32 s27, s27, 2
    s_mov_b32 s28, {KORD & 0xffffffff}
    s_mov_b32 s29, {KORD >> 32}
    s_lshr_b64 s[28:29], s[28:29], s27
    s_and_b32 s27, s28, 15
    s_lshl_b32 s28, s25, 2
    s_add_u32 s28, s28, s21
    s_lshl_b32 s28, s28, 2
    s_add_u32 s26, s26, s28
    s_mul_i32 s26, s26, 12
    s_add_u32 s26, s26, s27
    s_mul_i32 s26, s26, 5120
    s_add_u32 s26, s26, {WS_W2F}
    v_add_u32 v129, s26, v{vL16}
    s_mul_i32 s26, s35, 640
    s_add_u32 s26, s26, 7680
    v_lshl_add_u32 v14, v1, 2, s26
    v_and_b32 v15, 31, v1
    v_lshl_add_u32 v15, v15, 2, s26
    ; W1F destination
    s_mul_hi_u32 s26, s32, 0x55555556
    s_mul_i32 s27, s26, 3
    s_sub_u32 s27, s32, s27
    s_add_u32 s28, s27, 2
    s_cmp_ge_u32 s28, 3
    s_cselect_b32 s29, 3, 0
    s_sub_u32 s28, s28, s29
    s_bitcmp1_b32 s26, 0
    s_cselect_b32 s27, s28, s27           ; pass
    s_mul_i32 s26, s26, 60
    s_mul_i32 s28, s35, 10
    s_add_u32 s28, s28, s27
    s_mul_i32 s29, s35, 5
    s_add_u32 s29, s29, 40
    s_cmp_lt_u32 s27, 2
    s_cselect_b32 s28, s28, s29
    s_cselect_b32 s33, 2, 1
    s_lshl_b32 s33, s33, 10
    s_add_u32 s26, s26, s28
    s_lshl_b32 s26, s26, 10
    s_add_u32 s26, s26, {WS_W1F}
    v_add_u32 v128, s26, v{vL16}
    s_lshl_b32 s26, s21, 10
    s_add_u32 s26, s26, {VRED}
    v_lshl_add_u32 v6, v1, 2, s26
    v_and_b32 v7, 31, v1
    v_lshl_add_u32 v2, v7, 1, s26
    v_lshl_add_u32 v7, v7, 2, s26
    v_lshl_add_u32 v4, v1, 1, s26
    v_lshl_add_u32 v3, v5, 1, s26
    v_lshl_add_u32 v5, v5, 2, s26
    s_mul_i32 s26, s35, 12288
    s_lshl_b32 s27, s32, 6
    s_add_u32 s26, s26, s27
    s_add_u32 s26, s26, {WS_V12}
    v_lshl_add_u32 v127, v12, 4, s26
    v_add_u32 v126, 6144, v127
    s_lshl_b32 s26, s32, 7
    s_lshl_b32 s27, s35, 2
    s_add_u32 s26, s26, s27
    s_add_u32 s26, s26, {WS_SYNC + F1_OFF}
    v_mov_b32 v125, s26                   ; flag of (tile, quarter)
    v_mov_b32 v124, 1
    v_mov_b32 v100, 0x3f803f80
    v_mov_b32 v101, 0x3f803f80
    v_mov_b32 v102, 0x3f803f80
    v_mov_b32 v103, 0x3f803f80
    """)
    poll_addr(k, S2_OFF + 4, vPA, 15)
    k("s_waitcnt vmcnt(0)\ns_barrier")
    k.stamp('w1raw')
    k(f"v_mov_b32 v{vPT}, 5\nAUTO")
    for dt in range(5):
        for h in range(2): k(f"ds_read_b64_tr_b16 v[{16+4*dt+2*h}:{17+4*dt+2*h}], v9 offset:{10240*h + 32*dt}")
    for i in range(5):
        for h in range(2): k(f"ds_read_b64_tr_b16 v[{40+4*i+2*h}:{41+4*i+2*h}], v130 offset:{4096*i + 1024*h}")
    for i in range(5):
        for q in range(4): k(f"v_lshlrev_b32 v{136+8*i+2*q}, 16, v{40+4*i+q}\nv_and_b32 v{137+8*i+2*q}, 0xffff0000, v{40+4*i+q}")
    if on('sse'):
        k("MANUAL"); ms = Asm('m'); lane_consts(ms); mlp_setup(ms, opts)
        k('\n'.join(l.replace('v10', 'v104').replace('v11', 'v105').replace('v12', 'v106').replace('v13', 'v107') for l in ms.lines))
        if on('sse') == 2: k(hfill(108))
        k("AUTO")
    k(f"s_cmp_eq_u32 s21, 0\ns_cbranch_scc0 LF_sd2\nglobal_load_dword v{vPD}, v{vPA}, {P(pWS)} sc1")
    wait_flags(k, 'sm', vPD, vPA, f"v{vPT}", None, int(opts.get('slp', 8)))
    k("LF_sd2:\ns_barrier")
    k.stamp('s1')
    for kq in range(4):
        for wh in range(2):
            for c in range(3):
                k(f"global_load_dword v{60 + 6*kq + 3*wh + c}, v{14 if c < 2 else 15}, {P(pWS)} offset:{2560*wh + 256*c} {SC}")
        if kq < 3: k("v_add_u32 v14, 15360, v14\nv_add_u32 v15, 15360, v15")
    for dt in range(5):
        k(f"global_store_dwordx4 v129, {V4(16+4*dt)}, {P(pWS)} {SC}" + ("\nv_add_u32 v129, 1024, v129" if dt < 4 else ""))
    for i in range(3): k(f"v_pk_add_f32 v[{60+2*i}:{61+2*i}], v[{60+2*i}:{61+2*i}], v[{66+2*i}:{67+2*i}]")
    for i in range(3): k(f"v_pk_add_f32 v[{72+2*i}:{73+2*i}], v[{72+2*i}:{73+2*i}], v[{78+2*i}:{79+2*i}]")
    for i in range(3): k(f"v_pk_add_f32 v[{60+2*i}:{61+2*i}], v[{60+2*i}:{61+2*i}], v[{72+2*i}:{73+2*i}]")
    for c in range(3): k(f"v_cvt_pk_bf16_f32 v{60+c}, v{63+c}, v{60+c}")
    for c in range(3): k(f"v_lshlrev_b32 v{63+c}, 16, v{60+c}\nds_write_b16_d16_hi v{4 if c < 2 else 2}, v{60+c} offset:{640 + 128*c}")
    for c in range(3): k(f"v_add_f32 v{63+c}, 1.0, v{63+c}")
    for c in range(3): k(f"v_cvt_pk_bf16_f32 v{63+c}, v{63+c}, v{63+c}")
    for c in range(3): k(f"v_lshlrev_b32 v{63+c}, 16, v{63+c}\nds_write_b32 v{6 if c < 2 else 7}, v{63+c} offset:{256*c}")
    k.stamp('ndata')
    for i in range(5):
        g = 180 + 12 * i
        for h in range(2): k(f"ds_read_b128 {V4(g+4*h)}, v5 offset:{128*i + 32*h}")
        for h in range(2): k(f"ds_read_b64 v[{g+8+2*h}:{g+9+2*h}], v3 offset:{640 + 64*i + 16*h}")
    for i in range(5):
        g = 180 + 12 * i; u = 136 + 8 * i; o4 = 64 + 4 * i
        for q in range(4): k(f"v_pk_mul_f32 v[{u+2*q}:{u+2*q+1}], v[{u+2*q}:{u+2*q+1}], v[{g+2*q}:{g+2*q+1}]")
        for q in range(4): k(f"v_cvt_pk_bf16_f32 v{o4+q}, v{u+2*q}, v{u+2*q+1}")
        k(f"global_store_dwordx4 v128, {V4(o4)}, {P(pWS)} {SC} ; @w:W1F" + ("\nv_add_u32 v128, s33, v128" if i < 4 else ""))
    for i in range(5):
        k(mf(112, V4(64 + 4 * i), V4(100), i == 0))
        k(mf(116, V4(40 + 4 * i), V4(188 + 12 * i), i == 0))
    k(f"""
    s_mov_b32 exec_lo, 0x00010001
    s_mov_b32 exec_hi, 0x00010001
    global_store_dwordx4 v127, v[112:115], {P(pWS)} {SC} ; @w:W1F
    global_store_dwordx4 v126, v[116:119], {P(pWS)} {SC} ; @w:W1F
    s_mov_b64 exec, -1
    """)
    k(f"s_mov_b64 exec, 1 ; @r:W1F\nglobal_store_dword v125, v124, {P(pWS)} sc1\ns_mov_b64 exec, -1\nMANUAL")
    k.stamp('f1pub')

ST = 16; V12 = 24; ACA, ACB = 48, 80; BF = 96; NBF = 6; TMP = 192; PKD = 208; SQ, SM, ONES = 224, 228, 232; XA = 236
AC2 = 24; HR = 104; NRK = 8; GB = 232; HA = 4
BORD = list(range(20 - NBF, 20)) + list(range(20 - NBF))
W2SLOT = list(range(40)) + [40 + ks for ks in BORD]

class Loader:
    def __init__(self): self.n1 = 0; self.n2 = 0; self.blk = {}
    def txt(self, n, slot, srd_, sreg):
        t = ""
        if self.blk.get(sreg) != n // 4: t = f"s_mov_b32 s{sreg}, {n // 4 * 4096}\n"; self.blk[sreg] = n // 4
        return t + f"buffer_load_dwordx4 a[{4*slot}:{4*slot+3}], v{vL16}, s[{srd_}:{srd_+3}], s{sreg} offen offset:{(n % 4) * 1024} {SC}"
    def w1(self): self.n1 += 1; return self.txt(W2SLOT[self.n1 - 1], W2SLOT[self.n1 - 1], 4, 28)
    def w2(self):
        self.n2 += 1; n = self.n2 - 1; slot = W2SLOT[n]
        if not on('rot'): return self.txt(n, slot, 8, 29)
        return f"buffer_load_dwordx4 a[{4*slot}:{4*slot+3}], v{vL16 if n % 5 < 4 else 2}, s[8:11], s{36 + n // 5} offen offset:{(n % 5 % 4) * 1024} {SC}"
    def next(self, free):
        if self.n1 < 60: return self.w1()
        if self.n2 < min(free, 60): return self.w2()
        return None

def breads(ks, buf):
    b = BF + 16 * (buf % NBF)
    return [f"ds_read_b64_tr_b16 v[{b+4*s+2*h}:{b+4*s+2*h+1}], v{XA + s + (4 if ks >= 10 else 0)} offset:{4096*(ks % 10) + 1024*h}" for s in range(4) for h in range(2)]

def epilogue(acc, p, dst, dstep):
    v1, v2 = V12 + 8 * p, V12 + 8 * p + 4
    o = []
    for s in range(4):
        for h in range(2):
            a = acc + 4 * s + 2 * h
            o.append(f"v_pk_fma_f32 v[{a}:{a+1}], v[{v1+2*h}:{v1+2*h+1}], v[{ST+2*s}:{ST+2*s+1}], v[{a}:{a+1}] op_sel_hi:[1,0,1] neg_lo:[1,0,0] neg_hi:[1,0,0]")
    for s in range(4):
        for h in range(2):
            a = acc + 4 * s + 2 * h
            o.append(f"v_pk_fma_f32 v[{a}:{a+1}], v[{a}:{a+1}], v[{ST+2*s}:{ST+2*s+1}], v[{v2+2*h}:{v2+2*h+1}] op_sel:[0,1,0] op_sel_hi:[1,1,1]")
    o += [f"v_exp_f32 v{TMP+i}, v{acc+i}" for i in range(16)]
    o += [f"v_pk_add_f32 v[{TMP+2*i}:{TMP+2*i+1}], v[{TMP+2*i}:{TMP+2*i+1}], 1.0 op_sel_hi:[1,0]" for i in range(8)]
    o += [f"v_rcp_f32 v{TMP+i}, v{TMP+i}" for i in range(16)]
    o += [f"v_pk_mul_f32 v[{acc+2*i}:{acc+2*i+1}], v[{acc+2*i}:{acc+2*i+1}], v[{TMP+2*i}:{TMP+2*i+1}]" for i in range(8)]
    o += [f"v_cvt_pk_bf16_f32 v{dst + dstep*s + h}, v{acc+4*s+2*h}, v{acc+4*s+2*h+1}" for s in range(4) for h in range(2)]
    return o

def sprinkle(k, ops, extra):
    extra = [e for e in extra if e]
    step = len(ops) / (len(extra) + 1); nxt = step
    for i, o in enumerate(ops):
        k(o)
        while extra and i + 1 >= nxt: k(extra.pop(0)); nxt += step
    for e in extra: k(e)

def mlp(k, opts):
    PRE1 = int(opts.get('pre1', 4)); PB = int(opts.get('pb', 60))
    ld = Loader()
    HSC = '' if on('hplain') else SC
    ld.n1 = int(opts.get('ne1', 20))
    if not on('xo', 1):
        for i in range(PRE1): k(ld.w1() + " ; @skip")
        k(f"s_waitcnt vmcnt({PRE1})")
    k(f"s_mov_b32 s71, 0\ns_barrier\ns_cmp_eq_u32 s21, 0\ns_cbranch_scc0 LF_m1")
    arrive(k, S2_OFF, 12, 13)
    k("LF_m1:")
    k.stamp('arr2')
    k("s_mov_b32 s92, 0")
    if on('sf', 1):
        k(f"s_cmp_eq_u32 s6, 0\ns_cbranch_scc0 LF_w1ok")
        wait_flags(k, 'f1', vF1D, vF1A, 1, None)
    else:
        k(f"s_cmp_eq_u32 s6, 0\ns_cbranch_scc0 LF_w1ok\nglobal_load_dword v{vF1D}, v{vF1A}, {P(pWS)} sc1")
        wait_flags(k, 'f1', vF1D, vF1A, 1, 0)
    k("s_mov_b32 s6, 61440")
    l2 = Loader()
    while l2.n1 < ld.n1: k(l2.w1())
    k("LF_w1ok:"); ld.blk = {}
    k.stamp('w1ok')
    for kq in range(4):
        k(f"global_load_dword v{48+2*kq}, v{vVA+4}, {P(pWS)} {SC}\nglobal_load_dword v{49+2*kq}, v{vVA+5}, {P(pWS)} offset:256 {SC}")
        if kq < 3: k(f"v_add_u32 v{vVA+4}, 15360, v{vVA+4}\nv_add_u32 v{vVA+5}, 15360, v{vVA+5}")
    for i in range(8): k(f"global_load_dword v{56+i}, v{vVA}, {P(pWS)} {SC}" + (f"\nv_add_u32 v{vVA}, 6144, v{vVA}" if i < 7 else ""))
    n0 = ld.n1
    kmain = k; k = Asm('s'); k.names = kmain.names
    k(f"""
    s_mul_i32 s26, s21, 320
    s_add_u32 s26, s26, {GBL}
    v_lshl_add_u32 v12, v1, 2, s26
    v_and_b32 v13, 15, v1
    v_lshl_add_u32 v13, v13, 2, s26
    s_lshl_b32 s26, s21, 9
    s_add_u32 s26, s26, {GBL + 1280}
    v_lshl_add_u32 v15, v1, 2, s26
    v_lshrrev_b32 v14, 4, v1
    v_lshl_add_u32 v14, v14, 4, s26
    SMALL
    v_pk_add_f32 v[56:57], v[56:57], v[58:59]
    v_pk_add_f32 v[60:61], v[60:61], v[62:63]
    v_pk_add_f32 v[56:57], v[56:57], v[60:61]
    v_mul_f32 v57, {LOG2E + 0x80000000}, v57
    ds_write_b32 v15, v56
    ds_write_b32 v15, v57 offset:256
    ds_read_b128 {V4(V12)}, v14
    ds_read_b128 {V4(V12+4)}, v14 offset:256
    ds_read_b128 {V4(V12+8)}, v14 offset:64
    ds_read_b128 {V4(V12+12)}, v14 offset:320
    ds_read_b128 {V4(V12+16)}, v14 offset:128
    ds_read_b128 {V4(V12+20)}, v14 offset:384
    v_pk_add_f32 v[48:49], v[48:49], v[50:51]
    v_pk_add_f32 v[52:53], v[52:53], v[54:55]
    v_pk_add_f32 v[48:49], v[48:49], v[52:53]
    v_cvt_pk_bf16_f32 v48, v48, v49
    v_and_b32 v49, 0xffff0000, v48
    v_lshlrev_b32 v48, 16, v48
    v_mul_f32 v48, {LN2 + 0x80000000}, v48
    v_mul_f32 v49, {LN2 + 0x80000000}, v49
    ds_write_b32 v12, v48
    ds_write_b32 v13, v49 offset:256
    v_lshrrev_b32 v14, 4, v1              ; G
    v_bfe_u32 v12, v1, 2, 2               ; r
    v_and_b32 v13, 1, v14
    v_lshl_add_u32 v15, v13, 2, v12
    v_lshrrev_b32 v13, 1, v14
    v_lshl_add_u32 v13, v13, 4, v15
    v_lshlrev_b32 v13, 7, v13
    v_and_b32 v12, 1, v1
    v_lshl_add_u32 v13, v12, 3, v13
    v_bfe_u32 v12, v1, 1, 1
    v_lshl_add_u32 v13, v12, 4, v13
    v_and_b32 v15, 6, v15
    """)
    for s in range(4):
        k(f"s_xor_b32 s26, s21, {s}\ns_lshl_b32 s26, s26, 1\nv_xor_b32 v12, s26, v15\nv_lshl_add_u32 v{XA+s}, v12, 4, v13\nv_add_u32 v{XA+4+s}, 40960, v{XA+s}")
    k(f"""
    v_lshrrev_b32 v12, 3, v1
    v_and_b32 v13, 6, v12
    v_and_b32 v15, 7, v1
    v_xor_b32 v13, v13, v15
    v_lshlrev_b32 v12, 12, v12
    v_lshl_add_u32 v3, v13, 4, v12
    s_lshl_b32 s26, s21, 15
    s_lshl_b32 s27, s22, 7
    s_add_u32 s26, s26, s27
    s_add_u32 s26, s26, {WS_X1}
    v_add_u32 v3, s26, v3
    s_lshl_b32 s26, s21, 10
    s_mov_b32 m0, s26
    v_mov_b32 v{ONES}, 0x3f803f80
    v_mov_b32 v{ONES+1}, 0x3f803f80
    v_mov_b32 v{ONES+2}, 0x3f803f80
    v_mov_b32 v{ONES+3}, 0x3f803f80
    s_lshr_b32 s30, s21, 1
    s_lshl_b32 s30, s30, 12
    s_add_u32 s30, s30, {RED}
    s_and_b32 s31, s21, 1
    s_lshl_b32 s31, s31, 3
    v_add_u32 v244, s30, v{vL16}
    v_add_u32 v245, s31, v244
    s_lshl_b32 s26, s22, 9
    s_add_u32 s26, s26, {WS_SYNC + F3_OFF}
    s_lshr_b32 s27, s23, 1
    s_lshl_b32 s27, s27, 7
    s_and_b32 s30, s23, 1
    s_lshl_b32 s30, s30, 4
    s_add_u32 s27, s27, s30
    s_lshl_b32 s30, s21, 2
    s_add_u32 s27, s27, s30
    s_add_u32 s27, s27, s26
    v_mov_b32 v10, s27
    s_lshl_b32 s30, s21, 7
    s_add_u32 s26, s26, s30
    v_and_b32 v11, 7, v1
    v_lshl_add_u32 v11, v11, 2, s26
    s_mul_i32 s78, s21, {12*4096}
    v_and_b32 v9, 15, v1
    v_lshlrev_b32 v9, 3, v9
    s_lshl_b32 s26, s21, 7
    s_add_u32 s26, s26, {STAT}
    v_add_u32 v9, s26, v9
    v_and_b32 v13, 3, v1
    v_cmp_eq_u32 s[84:85], 1, v13
    v_cmp_eq_u32 s[86:87], 2, v13
    v_cmp_eq_u32 s[88:89], 3, v13
    v_bfe_u32 v15, v1, 2, 2
    v_cmp_eq_u32 s[90:91], v14, v15
    """)
    for s in range(4): k(f"v_add_u32 v{HA+s}, s{80+s}, v{vL16}")
    tail_addr = f"""
    s_lshl_b32 s26, s21, 1
    v_lshrrev_b32 v3, 4, v1
    v_bfe_u32 v0, v1, 2, 2
    v_lshl_add_u32 v0, v3, 2, v0
    v_and_b32 v16, 6, v0
    v_xor_b32 v16, s26, v16
    v_bfe_u32 v17, v1, 1, 1
    v_add_u32 v16, v16, v17
    v_lshlrev_b32 v16, 4, v16
    v_lshl_add_u32 v16, v0, 7, v16
    v_and_b32 v17, 1, v1
    v_lshl_add_u32 v16, v17, 3, v16
    s_mul_i32 s26, s23, {80*128}
    v_add_u32 v16, s26, v16
    s_mul_i32 s74, s21, 15360
    s_add_u32 s74, s74, {RED}
    v_and_b32 v17, 15, v1
    v_mul_u32_u24 v17, 176, v17
    v_lshl_add_u32 v17, v3, 3, v17
    v_add_u32 v17, s74, v17
    v_add_u32 v18, s74, v{vL16}
    s_mul_i32 s26, s21, 320
    s_add_u32 s26, s26, {GBL}
    v_lshl_add_u32 v22, v3, 4, s26
    s_lshr_b32 s26, s22, 3
    s_lshl_b32 s26, s26, 9
    s_and_b32 s27, s22, 1
    s_lshl_b32 s27, s27, 7
    s_add_u32 s26, s26, s27
    s_bfe_u32 s27, s22, 0x20001
    s_lshl_b32 s27, s27, 2
    s_add_u32 s26, s26, s27
    s_lshl_b32 s27, s21, 5
    s_add_u32 s26, s26, s27
    s_mul_i32 s26, s26, 1280
    s_mul_i32 s27, s23, 160
    s_add_u32 s75, s26, s27
    """
    first = ""
    for s in range(1, 4): first += f"s_xor_b32 s26, s21, {s}\ns_mul_i32 s26, s26, 15360\ns_add_u32 s26, s26, {RED + 5120*(s-1)}\nv_add_u32 v{4+s}, s26, v{vL16}\n"
    for i in range(3):
        tail_addr += f"""
        v_add_u32 v23, {64*i}, v1
        v_mul_u32_u24 v2, 6554, v23
        v_lshrrev_b32 v2, 16, v2
        v_mul_u32_u24 v3, 10, v2
        v_sub_u32 v23, v23, v3
        v_mul_u32_u24 v3, 176, v2
        v_lshl_add_u32 v3, v23, 4, v3
        v_add_u32 v{19+i}, s74, v3
        v_bfe_u32 v3, v2, 2, 1
        v_lshlrev_b32 v3, 8, v3
        v_bfe_u32 v0, v2, 3, 1
        v_lshl_add_u32 v3, v0, 4, v3
        v_and_b32 v0, 3, v2
        v_add_u32 v3, v3, v0
        v_mul_u32_u24 v3, 1280, v3
        v_lshl_add_u32 v{252+i}, v23, 4, v3
        """
    tail_addr += "v_lshrrev_b32 v2, 5, v1\nv_lshlrev_b32 v2, 30, v2\nv_add_u32 v254, v254, v2\n"
    if on('stash', 1):
        PARK = [16, 17, 18, 19, 20, 21, 22, 252, 253, 254]
        k(tail_addr.replace('v3', 'v12').replace('v0', 'v13').replace('s74', 's93').replace('s75', 's94'))
        for n, r in enumerate(PARK): k(f"v_accvgpr_write_b32 a{240+n}, v{r}")
        k(first.replace('v5,', 'v16,').replace('v6,', 'v17,').replace('v7,', 'v18,'))
        for n in range(3): k(f"v_accvgpr_write_b32 a{250+n}, v{16+n}")
        tail_addr = "".join(f"v_accvgpr_read_b32 v{r}, a{240+n}\n" for n, r in enumerate(PARK))
        first = "".join(f"v_accvgpr_read_b32 v{5+n}, a{250+n}\n" for n in range(3))
    if on('rot'):
        KP = sum(KSEQ[i] << (4 * i) for i in range(8)); KS = sum(KSEQ[8 + i] << (4 * i) for i in range(4))
        k(f"s_lshl_b32 s26, s23, 1\ns_add_u32 s26, s26, s22\ns_mul_i32 s26, s26, {on('rot')}\nv_add_u32 v2, 4096, v{vL16}")
        for i in range(12):
            m, b, K_ = (7, 0, KP) if i < 8 else (3, 40960, KS)
            k(f"s_add_u32 s27, s26, {i}\ns_and_b32 s27, s27, {m}\ns_mul_i32 s{36+i}, s27, 5120\ns_lshl_b32 s27, s27, 2\ns_lshr_b32 s27, {K_}, s27\ns_and_b32 s27, s27, 15\ns_lshl_b32 s27, s27, 12\ns_add_u32 s{48+i}, s27, s78")
            if b: k(f"s_add_u32 s{36+i}, s{36+i}, {b}")
    lines = k.lines; k = kmain
    cut_ = lines.index('SMALL')
    nsm = next(i for i, l in enumerate(lines) if i > cut_ and l.startswith('v_lshrrev_b32 v14, 4, v1'))
    pre, small, rest = lines[:cut_], lines[cut_ + 1:nsm], lines[nsm:]
    ren = lambda ls: [re.sub(r'\bv1([2-5])\b', lambda m: f"v{64 + int(m.group(1))}", l) for l in ls]
    W = [ld.w1() for _ in range(PB - n0)]
    PQ = on('pq', 8); Wq = W[len(W) - PQ:]; W = W[:len(W) - PQ]
    nw = len(W) * len(rest) // (len(rest) + 40)
    sprinkle(k, rest, W[:nw])
    k('\n'.join(ren(pre)))
    k(f"s_waitcnt vmcnt({nw})")
    sprinkle(k, ren(small), W[nw:])
    if on('sp'): k(f"v_readfirstlane_b32 s44, v11\ns_add_u32 s44, s44, s68\ns_addc_u32 s45, s69, 0")
    k.stamp('w1iss')
    XCH = [int(x) for x in opts.get('xch', '3,9,20').split(',')]
    def xdma(i): return f"global_load_lds_dwordx4 v3, {P(pWS)} {SC} ; @w:X{sum(i >= c for c in XCH)}" + ("\ns_add_u32 m0, m0, 4096\nv_add_u32 v3, 0x20000, v3" if i < 19 else "")
    XI = int(opts.get('xi', 12)); XE = on('xearly') if on('xo', 1) else 0
    if XE:
        poll_addr(k, S2_OFF, 13)
        k(f"global_load_dword v12, v13, {P(pWS)} sc1")
        for i in range(XE): k(xdma(i))
        for t in Wq: k(t)
        k(f"s_waitcnt vmcnt({XE + PQ})\nv_cmp_gt_u32 vcc, {0 if 'x' in opts.get('force', '') else 8}, v12\ns_cbranch_vccnz LF_xagain")
        a = Asm('e'); a("LF_xagain:")
        wait_flags(a, 's2', 12, 13, 8, 0)
        a(f"v_subrev_u32 v3, {XE * 0x20000}, v3\ns_lshl_b32 s26, s21, 10\ns_mov_b32 m0, s26")
        for i in range(XE): a(xdma(i))
        a("s_waitcnt vmcnt(0)\ns_branch LF_x1")
        SPINS.append('\n'.join(a.lines))
    else:
        k("s_cmp_eq_u32 s21, 0\ns_cbranch_scc0 LF_m2a")
        poll_addr(k, S2_OFF, 13)
        k(f"global_load_dword v12, v13, {P(pWS)} sc1 ; @skip\nLF_m2a:")
        for t in Wq: k(t)
        k("s_cmp_eq_u32 s21, 0\ns_cbranch_scc0 LF_m2")
        wait_flags(k, 's2', 12, 13, 0 if 'x' in opts.get('force', '') else 8, PQ)
        k("LF_m2:\ns_barrier")
    k.stamp('s2')
    k("LF_x1:"); ld.blk = {}
    if on('xo', 1):
        a = Asm('r'); a.names = k.names
        a("LF_xredo:\ns_add_u32 s71, s71, 1\ns_waitcnt vmcnt(0) lgkmcnt(0)\ns_cmp_eq_u32 s21, 0\ns_cbranch_scc0 LF_xredo2")
        a.stamp('xredo')
        poll_addr(a, S2_OFF, 13)
        a(f"global_load_dword v12, v13, {P(pWS)} sc1")
        wait_flags(a, 's2r', 12, 13, 8, 0)
        a("LF_xredo2:\ns_sleep 16\ns_barrier")
        l3 = Loader()
        while l3.n1 < 60: a(l3.w1())
        a(f"v_subrev_u32 v3, {19 * 0x20000}, v3\ns_lshl_b32 s26, s21, 10\ns_mov_b32 m0, s26")
        for i in range(XE): a(xdma(i))
        a("s_waitcnt vmcnt(0)\ns_branch LF_x1")
        SPINS.append('\n'.join(a.lines))
    k("AUTO")
    for i in range(XE, XI): k(xdma(i))
    xq = [xdma(i) for i in range(XI, 20)]
    k("s_barrier ; @r:X0")
    k.stamp('x0')
    for r in breads(0, 0) + breads(1, 1): k(r)
    LA0, LA1, LA2 = (int(x) for x in opts.get('la', '2,2,0').split(','))
    for ks in range(20):
        if ks + 2 in XCH[:-1]: k(f"s_barrier")
        rs = breads(ks + 2, ks + 2) if ks + 2 < 20 else []
        lds = []
        for _ in range(LA0 if ks < 6 else LA1 + (ks & 1) * LA2):
            dx = max(c for c in [0] + XCH if c <= 20 - len(xq)) - 2 if xq else 99
            dw = ld.n1 // 2 if ld.n1 < 40 else 98
            t = xq.pop(0) if xq and dx <= dw else ld.next(2 * ks)
            if t: lds.append(t)
        b = BF + 16 * (ks % NBF)
        ms = [mf(ACA + 16 * p + 4 * s, A4(4 * (2 * ks + p)), V4(b + 4 * s), ks == 0) for s in range(4) for p in range(2)]
        ms = [mf(SQ, V4(b), V4(b), ks == 0), mf(SM, V4(ONES), V4(b), ks == 0)] + ms
        for i, m in enumerate(ms):
            k(m)
            if i >= 2 and rs: k(rs.pop(0))
            elif lds: k(lds.pop(0))
        for t in lds: k(t)
    k.stamp('passA')
    stat = f"""v_cndmask_b32 v13, v{SQ}, v{SQ+1}, s[84:85]
    v_mul_f32 v12, {f2u(1/640)}, v{SM}
    v_cndmask_b32 v13, v13, v{SQ+2}, s[86:87]
    v_cndmask_b32 v13, v13, v{SQ+3}, s[88:89]
    v_mul_f32 v13, {f2u(1/640)}, v13
    {rstd_chain(12, 13)}
    v_mul_f32 v13, {LOG2E + 0x80000000}, v13"""
    stat = [l.strip() for l in stat.split('\n')]
    stat += [f"s_mov_b64 exec, s[90:91]\nds_write_b64 v9, v[12:13]\ns_mov_b64 exec, -1", "s_waitcnt lgkmcnt(0)\ns_barrier"]
    stat += [f"v_xor_b32 v13, {128*s}, v9\nds_read_b64 v[{ST+2*s}:{ST+2*s+1}], v13" for s in range(4)]
    NB = int(opts.get('nb', 2))
    def passB(n, rsq, fill):
        ks = BORD[n]; b = BF + 16 * ((14 + n) % NBF)
        t = [x for x in [ld.next(40 + n) for _ in range(NB)] if x]
        for s in range(4):
            k(mf(ACB + 4 * s, A4(4 * (40 + ks)), V4(b + 4 * s), n == 0))
            for _ in range(2):
                if fill: k(fill.pop(0))
                elif rsq: k(rsq.pop(0))
            if t and s & 1: k(t.pop(0))
    for n in range(4): passB(n, [], stat)
    for t in stat: k(t)
    if on('xo', 1):
        k(f"""
        v_add_f32 v12, v{ST}, v{ST+2}
        v_add_f32 v13, v{ST+4}, v{ST+6}
        s_cmp_lt_u32 s71, 3
        v_add_f32 v12, v12, v13
        s_cselect_b64 s[30:31], -1, 0
        v_cmp_u_f32 vcc, v12, v12
        s_and_b64 vcc, vcc, s[30:31]
        s_cbranch_vccnz LF_xredo
        """)
    rq = breads(BORD[6], 14 + 6) + breads(BORD[7], 14 + 7)
    passB(4, rq, []); passB(5, rq, [])
    k.stamp('stats')
    NE = int(opts.get('ne', 8))
    sprinkle(k, epilogue(ACA, 0, PKD, 4) + epilogue(ACA + 16, 1, PKD + 2, 4), [ld.next(46) for _ in range(NE)])
    k("v_mov_b32 v14, 1\nv_mov_b32 v15, 2")
    for s in range(4): k(f"buffer_store_dwordx4 {V4(PKD+4*s)}, v{vL16}, s[12:15], s{72+s} offen {HSC}")
    k(f"s_mov_b64 exec, 1\nglobal_store_dword v10, v14, {P(pWS)} sc1\ns_mov_b64 exec, -1")
    k.stamp('pairst')
    PN = int(opts.get('pn', 15))
    for n in range(6, 20):
        passB(n, breads(BORD[n + 2], 14 + n + 2) if n + 2 < 20 else [], [])
        if n == PN: k(f"global_load_dword v12, v11, {P(pWS)} sc1")
    k.stamp('passB')
    def hload(i, slots=range(4)):
        r = HR + 16 * (i % NRK)
        if on('rot'): return [f"buffer_load_dwordx4 {V4(r+4*s)}, v{HA+s}, s[12:15], s{48+i} offen {SC}" for s in slots]
        return [(f"s_add_u32 s79, s78, {KSEQ[i] * 4096}\n" if s == slots[0] else "") + f"buffer_load_dwordx4 {V4(r+4*s)}, v{HA+s}, s[12:15], s79 offen {SC}" for s in slots]
    def g2(i, s): return [mf(AC2 + 20 * s + 4 * dt, A4(4 * W2SLOT[5 * i + dt]), V4(HR + 16 * (i % NRK) + 4 * s), i == 0) for dt in range(5)]
    AH = int(opts.get('ahead', 4))
    wait_flags(k, 'h1', 12, 11, 0 if 'h' in opts.get('force', '') else 1, None)
    k.stamp('h1')
    hfirst = [t for i in range(AH) for t in hload(i)]
    NF = int(opts.get('nf', 8))
    for t in hfirst[:NF]: k(t)
    sprinkle(k, epilogue(ACB, 2, PKD, 2), hfirst[NF:] + [ld.next(60) for _ in range(int(opts.get('ns', 0)))])
    hmore = [t for i in range(AH, AH + on('ah2')) for t in hload(i)]; AH += on('ah2'); hfirst += hmore
    for s in range(4): k(f"v_add_u32 v13, s{80+s}, v245\nds_write_b64 v13, v[{PKD+2*s}:{PKD+2*s+1}]")
    k(f"""
    v_add_u32 v22, s80, v244
    v_add_u32 v23, s82, v244
    s_waitcnt lgkmcnt(0)
    s_barrier
    ds_read_b128 v[244:247], v22
    ds_read_b128 v[248:251], v23
    {chr(10).join(hmore)}
    buffer_store_dwordx4 v[244:247], v{vL16}, s[12:15], s76 offen {HSC}
    buffer_store_dwordx4 v[248:251], v{vL16}, s[12:15], s77 offen {HSC}
    s_mov_b64 exec, 1
    global_store_dword v10, v15, {P(pWS)} sc1
    s_mov_b64 exec, -1
    """)
    k.stamp('singst')
    fill0 = [l.strip() for l in tail_addr.split('\n') if l.strip()]; tail_addr = ""
    a = Asm('z'); a.names = k.names; a.stamp('g2redo')
    SPINS.append("LF_g2redo:\n" + "".join(l + "\n" for l in a.lines) + "s_add_u32 s92, s92, 1\ns_waitcnt vmcnt(0) lgkmcnt(0)\ns_sleep 16\n" + "".join(f"v_add_u32 v{HA+s}, s{80+s}, v{vL16}\n" for s in range(4)) + "\n".join(hfirst) + "\ns_waitcnt vmcnt(0)\ns_branch LF_g2")
    k("LF_g2:"); ld.blk = {}
    PI = int(opts.get('pi', 2))
    for i in range(8):
        q = hload(i + AH) if i + AH < 8 else []
        while ld.n2 < min(60, 5 * i + 15): k(ld.w2())
        for _ in range(-(-(60 - ld.n2) // (8 - i))): q.append(ld.w2())
        if on('sp'):
            if i == PI: k("s_load_dwordx8 s[36:43], s[44:45], 0 glc")
        elif i == PI: q.append(f"global_load_dword v12, v11, {P(pWS)} sc1")
        if i in (1, 2, 4): k.stamp(f'g2_{i}')
        if on('wb') and i == on('wb'): k(f"s_lshr_b32 s26, s2, 3\ns_add_u32 s26, s26, s21\ns_cmp_lg_u32 s26, 0\ns_cbranch_scc1 LF_nowb\nbuffer_wbl2 sc1 ; @skip\nLF_nowb:")
        if i == PI + on('pw', 2):
            k.stamp('h2a')
            if on('sp'):
                k("s_waitcnt lgkmcnt(0)\n" + "".join(f"s_min_u32 s36, s36, s{37+n}\n" for n in range(7)) + "v_mov_b32 v12, s36")
            wait_flags(k, 'h2', 12, 11, 2, None)
            k.stamp('h2b')
            late = [hload(i2, [s])[0] for s in (1, 2, 3, 0) for i2 in range(8, 12)]
        if i >= PI + on('pw', 2):
            ok = [t for t in late if int(re.search(r'v\[(\d+)', t).group(1)) < HR + 16 * i]
            nl = -(-len(late) // (on('le', 8) - i)) if i < on('le', 8) else len(late)
            for t in ok[:nl]: q.append(t); late.remove(t)
        for s in range(4):
            for n, m in enumerate(g2(i, s)):
                k(m)
                if q and n in (0, 2, 4): k(q.pop(0))
                elif fill0: k(fill0.pop(0))
        for t in q: k(t)
    assert not fill0 and not late
    k.stamp('g2a')
    U = HR + 64
    tail_addr += "".join(f"ds_read_b64_tr_b16 v[{U+24+2*dt}:{U+25+2*dt}], v16 offset:{2048*dt}\n" for dt in range(5))
    tail_addr += "".join(f"ds_read_b128 {V4(GB+4*dt)}, v22 offset:{64*dt}\n" for dt in range(5))
    tail_addr += "".join(f"v_lshlrev_b32 v{U+4*dt+2*h}, 16, v{U+24+2*dt+h}\nv_and_b32 v{U+4*dt+2*h+1}, 0xffff0000, v{U+24+2*dt+h}\n" for dt in range(5) for h in range(2))
    fill = [l.strip() for l in (first + tail_addr).split('\n') if l.strip()]
    pend = []
    for s in (1, 2, 3, 0):
        for i in range(8, 12):
            for m in g2(i, s):
                k(m)
                if pend and pend[0][0] <= 0: k(pend.pop(0)[1])
                else:
                    for _ in range(2):
                        if fill: k(fill.pop(0))
                pend = [(a - 1, t) for a, t in pend]
        assert not pend
        if s: pend = [(3 + 3 * dt, f"ds_write_b128 v{4+s}, {V4(AC2+20*s+4*dt)} offset:{1024*dt}") for dt in range(5)]
    for t in fill: k(t)
    k(f"""
    v_add_f32 v12, v{AC2+20}, v{AC2+40}
    v_add_f32 v12, v12, v{AC2+60}
    v_add_f32 v12, v12, v{AC2}
    s_cmp_lt_u32 s92, 3
    s_cselect_b64 s[30:31], -1, 0
    v_cmp_u_f32 vcc, v12, v12
    s_and_b64 vcc, vcc, s[30:31]
    s_cbranch_vccnz LF_g2redo
    """)
    k.stamp('g2b')
    k("s_waitcnt lgkmcnt(0)\ns_barrier")
    R0 = 44
    for dt in range(5):
        for s in range(3): k(f"ds_read_b128 {V4(R0+20*s+4*dt)}, v18 offset:{5120*s + 1024*dt}")
    for dt in range(5):
        for h in range(2):
            q = 2 * dt + h
            k(f"v_pk_add_f32 v[{AC2+2*q}:{AC2+2*q+1}], v[{AC2+2*q}:{AC2+2*q+1}], v[{R0+2*q}:{R0+2*q+1}]")
            k(f"v_pk_add_f32 v[{R0+20+2*q}:{R0+21+2*q}], v[{R0+20+2*q}:{R0+21+2*q}], v[{R0+40+2*q}:{R0+41+2*q}]")
        for h in range(2):
            q = 2 * dt + h
            k(f"v_pk_add_f32 v[{AC2+2*q}:{AC2+2*q+1}], v[{AC2+2*q}:{AC2+2*q+1}], v[{R0+20+2*q}:{R0+21+2*q}]")
        for h in range(2):
            q = 2 * dt + h
            k(f"v_pk_fma_f32 v[{AC2+2*q}:{AC2+2*q+1}], v[{AC2+2*q}:{AC2+2*q+1}], v[{GB+2*q}:{GB+2*q+1}], v[{U+2*q}:{U+2*q+1}]")
        k(f"v_cvt_pk_bf16_f32 v{HR+2*dt}, v{AC2+4*dt}, v{AC2+4*dt+1}\nv_cvt_pk_bf16_f32 v{HR+2*dt+1}, v{AC2+4*dt+2}, v{AC2+4*dt+3}")
    for dt in range(5): k(f"ds_write_b64 v17, v[{HR+2*dt}:{HR+2*dt+1}] offset:{32*dt}")
    for i in range(3): k(f"ds_read_b128 {V4(R0+4*i)}, v{19+i}")
    for i in range(3): k(f"buffer_store_dwordx4 {V4(R0+4*i)}, v{252+i}, s[16:19], s{94 if on('stash', 1) else 75} offen {opts.get('ost', '').replace('+', ' ')}")
    k("MANUAL")

def gen_F(opts={}):
    SPINS.clear(); OPT.clear(); OPT.update(opts)
    k = Asm('F')
    k(f"s_cmp_ge_u32 s2, {F_GRID}\ns_cbranch_scc1 LF_end")
    k.stamp('start')
    prologue(k, opts)
    k.stamp('msetup')
    conv_setup(k, 2 if on('cs2') else 3)
    k.stamp('csetup')
    kgen(k, opts)
    conv(k, opts)
    k("s_branch LF_mlp")
    conv_mod(k)
    k("LF_side:")
    side_a(k)
    side(k, opts)
    if not on('sse'): lane_consts(k); mlp_setup(k, opts)
    poll_addr(k, SM_OFF, vPA)
    k(f"global_load_dword v{vPD}, v{vPA}, {P(pWS)} sc1")
    if on('sse') == 2: k(f"s_mov_b32 s6, 0\nglobal_load_dword v{vF1D}, v{vF1A}, {P(pWS)} sc1\ns_waitcnt vmcnt(0)")
    elif on('hsd'):
        k(f"s_sub_u32 s26, s2, {NCONV}\ns_lshl_b32 s26, s26, 2\ns_add_u32 s26, s26, s21\ns_lshl_b32 s26, s26, 14\ns_add_u32 s26, s26, {WS_H}\nv_add_u32 v20, s26, v{vL16}")
        k("".join(f"v_mov_b32 v{16+i}, -1\n" for i in range(4)))
        for q in range(16): k(f"global_store_dwordx4 v20, v[16:19], {P(pWS)} offset:{1024*(q & 3)} {SC}" + ("\nv_add_u32 v20, 4096, v20" if q & 3 == 3 else ""))
        k("s_mov_b32 s6, 0\ns_waitcnt vmcnt(0)")
    else: k("s_mov_b32 s6, 0\n" + hfill() + f"global_load_dword v{vF1D}, v{vF1A}, {P(pWS)} sc1\ns_waitcnt vmcnt(0)")
    wait_flags(k, 'smg', vPD, vPA, 5, 0)
    k("LF_mlp:")
    mlp(k, opts)
    k.end(0)
    k("LF_end:\ns_endpgm")
    for s in SPINS: k(s)
    k("LF_codeend:")
    return k.finish()

if __name__ == '__main__':
    print(gen_F())
```
